```python
import torch

def _softmax(x, axis=-1):
    return torch.softmax(x, dim=axis)
def _gelu(x):
    return torch.nn.functional.gelu(x, approximate="tanh")
def _silu(x):
    return torch.nn.functional.silu(x)
def _sigmoid(x):
    return torch.sigmoid(x)
def _layernorm(x, axis=-1, eps=1e-5):
    m = x.mean(dim=axis, keepdim=True)
    v = x.var(dim=axis, keepdim=True, unbiased=False)
    return (x - m) / torch.sqrt(v + eps)
def _scatter_add(tgt, idx, src, axis=0):
    return tgt.clone().index_add_(axis, idx, src)
def _segment_sum(src, seg, n):
    out = torch.zeros((n,) + src.shape[1:], dtype=src.dtype)
    return out.index_add_(0, seg, src)
def _pad(x, pw):
    flat = tuple(v for pair in reversed(pw) for v in pair)
    return torch.nn.functional.pad(x, flat)

kernel_name = 'parallel_sum__grouped_kv_mqa__geglu_ffn__prompt'

def setup_inputs():

    _w = (lambda a: (lambda t: t.to(torch.bfloat16) if t.is_floating_point() else t)(torch.as_tensor(a)))
    def _A_setup():
        B, S, D, H = 1, 2048, 576, 32
        Dh = D // H
        return {
            "x": _w((lambda *s: torch.randn(*s, dtype=torch.bfloat16) * 0.05)(B, S, D)),
            "wq": _w((lambda *s: torch.randn(*s, dtype=torch.bfloat16) * 0.2)(D, H * Dh)),
            "wk": _w((lambda *s: torch.randn(*s, dtype=torch.bfloat16) * 0.2)(D, Dh)),
            "wv": _w((lambda *s: torch.randn(*s, dtype=torch.bfloat16) * 0.1)(D, Dh)),
            "wo": _w((lambda *s: torch.randn(*s, dtype=torch.bfloat16) * 0.1)(H * Dh, D)),
        }
    _A_in = _A_setup()

    def _B_setup():
        B, S, D, F = 1, 2048, 576, 4608
        return {
            "x": _w((lambda *s: torch.randn(*s, dtype=torch.bfloat16) * 0.05)(B, S, D)),
            "w_gate": _w((lambda *s: torch.randn(*s, dtype=torch.bfloat16) * 0.1)(D, F)),
            "w_up": _w((lambda *s: torch.randn(*s, dtype=torch.bfloat16) * 0.1)(D, F)),
            "w_down": _w((lambda *s: torch.randn(*s, dtype=torch.bfloat16) * 0.1)(F, D)),
        }
    _B_in = _B_setup()

    return {
        "A_x": _A_in["x"],
        "A_wq": _A_in["wq"],
        "A_wk": _A_in["wk"],
        "A_wv": _A_in["wv"],
        "A_wo": _A_in["wo"],
        "B_x": _B_in["x"],
        "B_w_gate": _B_in["w_gate"],
        "B_w_up": _B_in["w_up"],
        "B_w_down": _B_in["w_down"],
    }

def reference(A_x, A_wq, A_wk, A_wv, A_wo, B_x, B_w_gate, B_w_up, B_w_down):
    def _A_ref(x, wq, wk, wv, wo):
        B, S, D = x.shape
        H = 32
        Dh = D // H
        q = (lambda x, *d: x.permute(*d))((x @ wq).reshape(B, S, H, Dh), 0, 2, 1, 3)
        k = x @ wk
        v = x @ wv
        scores = torch.einsum("bhqd,bkd->bhqk", q, k) * (Dh ** -0.5)
        p = _softmax(scores, axis=-1)
        o = torch.einsum("bhqk,bkd->bhqd", p, v)
        return (lambda x, *d: x.permute(*d))(o, 0, 2, 1, 3).reshape(B, S, H * Dh) @ wo

    def _B_ref(x, w_gate, w_up, w_down):
        return (_gelu(x @ w_gate) * (x @ w_up)) @ w_down

    x = A_x
    xn = _layernorm(x, axis=-1)
    return x + _A_ref(xn, A_wq, A_wk, A_wv, A_wo) + _B_ref(xn, B_w_gate, B_w_up, B_w_down)
```

```python
import sys
from ubl import *
ON_GPU = os.path.exists('/dev/kfd')
body = """
    s_load_dwordx4 s[4:7], s[0:1], 0
    s_waitcnt lgkmcnt(0)
    s_mov_b32 s8, s4
    s_and_b32 s9, s5, 0xffff
    s_mov_b32 s10, 0x100000
    s_mov_b32 s11, 0x20000
    s_mov_b32 s12, s6
    s_and_b32 s13, s7, 0xffff
    s_mov_b32 s14, 2300
    s_mov_b32 s15, 0x20000
    v_mul_u32_u24 v1, 36, v0
    s_mov_b32 m0, 1024
    s_nop 0
    buffer_load_dwordx4 v1, s[12:15], 0 offen offset:32 sc1 lds
    s_waitcnt vmcnt(0)
    v_lshlrev_b32 v2, 4, v0
    ds_read_b128 v[4:7], v2 offset:1056
    v_lshlrev_b32 v3, 3, v0
    ds_read_b64_tr_b16 a[0:1], v3 offset:1056
    s_waitcnt lgkmcnt(0)
    v_accvgpr_read_b32 v8, a0
    v_accvgpr_read_b32 v9, a1
    v_mov_b32 v10, 0
    v_mov_b32 v11, 0
    v_mov_b32 v12, 0
    v_mov_b32 v13, 0
    v_mov_b32 v20, 1.0
    v_mov_b32 v21, 2.0
    v_mov_b32 v22, 4.0
    v_mov_b32 v23, 0.5
    s_mov_b32 s20, 2
    s_set_gpr_idx_on s20, 8
    v_cvt_pk_bf16_f32 v10, v20, v21
    s_set_gpr_idx_off
    v_cvt_pk_bf16_f32 v11, v22, v23
    s_mov_b32 s21, m0
    v_mov_b32 v13, s21
    v_mov_b32 v14, v0
    v_add_u32 v15, 100, v0
    v_mov_b32 v16, v0
    v_add_u32 v17, 100, v0
    s_nop 1
    v_permlane16_swap_b32 v14, v15
    v_permlane32_swap_b32 v16, v17
    v_mov_b32 v18, 0x40003f80
    v_mov_b32 v19, 0x40400000
    v_mov_b32 v24, 0x3f803f80
    v_dot2_f32_bf16 v19, v18, v24, v19
    v_lshlrev_b32 v1, 6, v0
    buffer_store_dwordx4 v[4:7], v1, s[8:11], 0 offen
    buffer_store_dwordx4 v[8:11], v1, s[8:11], 0 offen offset:16
    buffer_store_dwordx4 v[12:15], v1, s[8:11], 0 offen offset:32
    buffer_store_dwordx4 v[16:19], v1, s[8:11], 0 offen offset:48
    s_waitcnt vmcnt(0)
"""
co = build(wrap(body, grid=1, block=64, lds=4096, vgpr=512, acc=256), tag="misc")
if ON_GPU:
    inp = np.arange(4096, dtype=np.uint16)
    din = DeviceBuffer.from_numpy(inp); out = DeviceBuffer(1<<20)
    run(co, "k_kernel", 1, 64, 4096, [out.ptr, din.ptr, out.ptr, out.ptr])
    r = out.to_numpy(np.uint32, (64, 16))
    d = r[:, :4].copy().view(np.uint16)
    print("dma lanes 0,1,2,61,62,63:", d[[0,1,2,61,62,63]])
    exp = np.stack([np.arange(18*i+16, 18*i+24) for i in range(64)])
    print("unaligned ok:", np.array_equal(d[:62], exp[:62]))
    t = r[:, 4:6].copy().view(np.uint16)
    lin = d.reshape(-1)
    ex = np.zeros((64,4), np.uint16)
    for l in range(64):
        g = l//16
        for rr in range(4):
            src_lane = 16*g + 4*rr + (l%16)//4
            ex[l, rr] = lin[src_lane*4 + l%4]
    print("tr ok:", np.array_equal(t, ex))
    print("gpridx v10..13:", [hex(x) for x in r[0, 6:10]])
    print("pl16 vdst", r[::8, 10], "vsrc", r[::8, 11])
    print("pl32 vdst", r[::8, 12], "vsrc", r[::8, 13])
    print("dot2", r[0, 15:16].view(np.float32))
```

```python
import re

TRANS = ("v_exp_f32", "v_rcp_f32", "v_rsq_f32", "v_log_f32", "v_sqrt_f32")


def regs_of(tok):
    tok = tok.strip()
    tok = tok.lstrip("-")
    m = re.fullmatch(r"abs\((.*)\)", tok)
    if m:
        tok = m.group(1)
    m = re.fullmatch(r"([vas])(\d+)", tok)
    if m:
        return [m.group(1) + m.group(2)]
    m = re.fullmatch(r"([vas])\[(\d+):(\d+)\]", tok)
    if m:
        return [m.group(1) + str(i) for i in range(int(m.group(2)), int(m.group(3)) + 1)]
    if tok in ("vcc", "exec", "m0"):
        return [tok]
    return []


class Ins:
    __slots__ = ("text", "op", "kind", "rd", "wr", "tag", "passes", "srcc", "ab", "vm", "lg", "nop", "need", "idx")

    def __init__(self, text, tag=None, need=None, idx=None):
        self.text = text
        self.tag = tag
        self.need = need
        self.idx = idx
        t = text.split(";")[0].strip()
        self.vm = self.lg = None
        self.nop = 1
        self.passes = 0
        self.srcc = []
        self.ab = []
        self.rd = []
        self.wr = []
        if t.endswith(":") or t.startswith(".") or not t:
            self.op = ""
            self.kind = "label"
            self.nop = 0
            return
        parts = t.split(None, 1)
        op = self.op = parts[0]
        rest = parts[1] if len(parts) > 1 else ""
        ops = [o.strip() for o in rest.split(",")]
        mods = ""
        if ops:
            sp = ops[-1].split(None, 1)
            if sp:
                ops[-1] = sp[0]
                mods = sp[1] if len(sp) > 1 else ""
        R = [regs_of(o) for o in ops]
        flat = lambda l: [x for y in l for x in y]
        if op.startswith("v_mfma") or op.startswith("v_smfmac"):
            self.kind = "mfma"
            self.passes = 8 if "32x32" in op else 4
            self.wr = R[0]
            if op.startswith("v_smfmac"):
                self.srcc = R[0]
                self.ab = R[1] + R[2] + R[3]
            else:
                self.srcc = R[3]
                self.ab = R[1] + R[2]
            self.rd = self.ab + self.srcc
        elif op.startswith("ds_read"):
            self.kind = "lds"
            self.wr = R[0]
            self.rd = R[1]
        elif op.startswith("ds_write"):
            self.kind = "lds"
            self.rd = flat(R)
        elif op.startswith("buffer_load") or op.startswith("global_load"):
            self.kind = "vmem"
            if re.search(r"\blds\b", mods):
                self.rd = flat(R) + ["m0"]
            else:
                self.wr = R[0]
                self.rd = flat(R[1:])
        elif op.startswith("buffer_store") or op.startswith("buffer_atomic"):
            self.kind = "vmem"
            self.rd = flat(R)
        elif op == "s_waitcnt":
            self.kind = "wait"
            m = re.search(r"vmcnt\((\d+)\)", t)
            if m:
                self.vm = int(m.group(1))
            m = re.search(r"lgkmcnt\((\d+)\)", t)
            if m:
                self.lg = int(m.group(1))
        elif op == "s_nop":
            self.kind = "salu"
            self.nop = int(ops[0]) + 1
        elif op.startswith("s_load") or op in ("s_memtime", "s_memrealtime"):
            self.kind = "smem"
            self.wr = R[0]
            self.rd = flat(R[1:])
        elif op.startswith("s_cmp") or op.startswith("s_bitcmp") or op.startswith("s_cbranch") or op in ("s_branch", "s_barrier", "s_endpgm", "s_sleep", "s_setprio", "s_set_gpr_idx_off"):
            self.kind = "salu"
            self.rd = flat(R)
            if op in ("s_cbranch_vccnz", "s_cbranch_vccz"):
                self.rd = ["vcc"]
        elif op == "s_set_gpr_idx_on":
            self.kind = "salu"
            self.rd = R[0]
            self.wr = ["m0"]
        elif op.startswith("s_"):
            self.kind = "salu"
            self.wr = R[0]
            self.rd = flat(R[1:])
        elif op.startswith("v_"):
            self.kind = "trans" if op.replace("_e32", "").replace("_e64", "") in TRANS else "valu"
            if op.startswith("v_permlane"):
                self.wr = R[0] + R[1]
                self.rd = R[0] + R[1]
            elif op.startswith("v_dot2c") or op.startswith("v_fmac"):
                self.wr = R[0]
                self.rd = flat(R)
            elif op.startswith("v_cndmask") and len(ops) == 4:
                self.wr = R[0]
                self.rd = flat(R[1:])
            else:
                self.wr = R[0]
                self.rd = flat(R[1:])
        else:
            raise ValueError("unknown instruction: " + text)

    def cost(self):
        if self.kind == "trans":
            return 8
        return 4


class Seg:
    def __init__(self, name):
        self.name = name
        self.ins = []

    def __call__(self, text, **kw):
        for l in text.split("\n"):
            l = l.strip()
            if l:
                self.ins.append(Ins(l, **kw))
        return self

    def add(self, i):
        self.ins.append(i)

    def extend(self, l):
        self.ins.extend(l)

    def text(self):
        out = []
        for i in self.ins:
            out.append(i.text if i.kind == "label" else "    " + i.text)
        return "\n".join(out) + "\n"


def check_trace(trace, name="", verbose=False):
    probs = []
    vmq = []
    lgq = []
    pend_vm = {}
    pend_lg = {}
    pos = 0
    last_valu_wr = {}
    last_mfma_wr = {}
    last_srcc_rd = {}
    last_salu_m0 = -100
    last_store_data = {}
    done_tags = set()
    seen_tags = set()
    maxvm = 0
    scc = None
    NOSCC = ("s_mov", "s_cselect", "s_mul_i32", "s_nop", "s_cbranch", "s_branch", "s_barrier", "s_sleep", "s_set_gpr", "s_endpgm", "s_setprio", "s_getreg", "s_getpc")

    def P(i, n, msg):
        probs.append(f"[{name}] #{n} '{i.text}': {msg}")

    for n, i in enumerate(trace):
        if i.kind == "label":
            continue
        here = pos
        isvalu = i.kind in ("valu", "trans")
        wr = list(i.wr)
        if i.idx:
            wr = [r[0] + str(int(r[1:]) + o) for r in i.wr for o in i.idx]
        for r in i.rd + wr:
            if r in pend_vm and not (i.kind == "vmem" and r in wr and r not in i.rd):
                P(i, n, f"{r} has vm load pending from '{pend_vm[r].text}'")
                del pend_vm[r]
            if r in pend_lg and not (i.kind == "lds" and r in wr and r not in i.rd):
                P(i, n, f"{r} has lgkm load pending from '{pend_lg[r].text}'")
                del pend_lg[r]
        if i.need:
            for t in i.need:
                if t.startswith("lds:"):
                    if any(q.tag == t[4:] for q in lgq):
                        P(i, n, f"lds tag {t} still outstanding")
                elif t.startswith("old:"):
                    tg, k = t[4:].split("/")
                    c = sum(1 for q in vmq if q.tag == tg)
                    if c > int(k):
                        P(i, n, f"vm tag {tg}: {c} outstanding > {k}")
                else:
                    if any(q.tag == t for q in vmq):
                        P(i, n, f"vm tag {t} still outstanding")
                    if t not in seen_tags:
                        P(i, n, f"vm tag {t} never issued")

        def dist(d, r):
            return here - d[r][0] if r in d else 1000

        if i.kind == "mfma":
            for r in i.rd:
                if dist(last_valu_wr, r) < 2:
                    P(i, n, f"VALU write {r} -> MFMA read needs 2")
            for r in i.ab:
                if r in last_mfma_wr:
                    need = 8 if last_mfma_wr[r][1].passes == 4 else 12
                    if dist(last_mfma_wr, r) < need:
                        P(i, n, f"MFMA write {r} -> MFMA A/B read needs {need}, has {dist(last_mfma_wr, r)}")
            for r in set(i.srcc + i.wr):
                if r in last_mfma_wr:
                    p = last_mfma_wr[r][1]
                    exact = (p.wr == (i.srcc if r in i.srcc else i.wr)) and p.passes == i.passes
                    if not exact:
                        need = 6 if p.passes == 4 else 10
                        if dist(last_mfma_wr, r) < need:
                            P(i, n, f"MFMA write {r} -> overlapped SrcC/D needs {need}")
        if isvalu or i.kind in ("vmem", "lds"):
            for r in i.rd + wr:
                if r in last_mfma_wr:
                    need = 8 if last_mfma_wr[r][1].passes == 4 else 12
                    if dist(last_mfma_wr, r) < need:
                        P(i, n, f"MFMA write {r} -> access needs {need}, has {dist(last_mfma_wr, r)}")
        if isvalu:
            for r in wr:
                if r in last_srcc_rd:
                    need = 3 if last_srcc_rd[r][1].passes == 4 else 7
                    if dist(last_srcc_rd, r) < need:
                        P(i, n, f"MFMA SrcC read {r} -> VALU write needs {need}")
                if dist(last_store_data, r) < 2:
                    P(i, n, f"store data {r} -> VALU write needs 2")
            for r in i.rd:
                if r in last_valu_wr:
                    p = last_valu_wr[r][1]
                    d = dist(last_valu_wr, r)
                    if p.kind == "trans" and i.kind != "trans" and d < 1:
                        P(i, n, f"trans write {r} -> VALU read needs 1")
                    if i.op.startswith("v_permlane") and d < 2:
                        P(i, n, f"VALU write {r} -> permlane needs 2")
                    if (i.op.startswith("v_readfirstlane") or i.op.startswith("v_readlane")) and d < 1:
                        P(i, n, f"VALU write {r} -> readlane needs 1")
                    if (r[0] == "s" or r == "vcc") and d < 2:
                        P(i, n, f"VALU write {r} -> VALU const read needs 2")
                    if p.op.startswith("v_dot") and d < 3:
                        same_c = p.op == i.op and r in i.wr
                        if not same_c:
                            P(i, n, f"dot write {r} -> read needs 3")
            for r in wr:
                if r in last_valu_wr and last_valu_wr[r][1].op.startswith("v_dot") and last_valu_wr[r][1].op != i.op and dist(last_valu_wr, r) < 3:
                    P(i, n, f"dot write {r} -> write needs 3")
        if i.kind in ("lds", "vmem") and wr:
            for r in wr:
                if dist(last_store_data, r) < 1:
                    P(i, n, f"store data {r} -> write needs 1")
        if i.kind == "vmem":
            for r in i.rd:
                if r[0] == "s" and dist(last_valu_wr, r) < 5:
                    P(i, n, f"VALU write {r} -> VMEM read needs 5")
            if "m0" in i.rd and here - last_salu_m0 < 1:
                P(i, n, "m0 write -> DMA needs 1")
        if i.kind == "salu":
            for r in i.rd:
                if (r[0] == "s" or r == "vcc") and dist(last_valu_wr, r) < 1:
                    P(i, n, f"VALU write {r} -> SALU read (pad 1+)")

        if i.op.startswith("s_cselect") or i.op.startswith("s_cbranch_scc"):
            if scc is None or not (scc.op.startswith("s_cmp") or scc.op.startswith("s_bitcmp") or scc.op in ("s_and_b64", "s_or_b64")):
                P(i, n, f"SCC last written by '{scc.text if scc else None}'")
        if i.op == "s_addc_u32" and (scc is None or scc.op != "s_add_u32"):
            P(i, n, "addc without add")
        if i.kind == "salu" and not i.op.startswith(NOSCC):
            scc = i
        pos += i.nop
        if i.kind == "wait":
            if i.vm is not None:
                while len(vmq) > i.vm:
                    q = vmq.pop(0)
                    for r in q.wr:
                        if pend_vm.get(r) is q:
                            del pend_vm[r]
            if i.lg is not None:
                if any(q.kind == "smem" for q in lgq) and i.lg != 0:
                    P(i, n, "counted lgkmcnt with SMEM outstanding")
                while len(lgq) > i.lg:
                    q = lgq.pop(0)
                    for r in q.wr:
                        if pend_lg.get(r) is q:
                            del pend_lg[r]
        elif i.kind == "vmem":
            vmq.append(i)
            maxvm = max(maxvm, len(vmq))
            if len(vmq) > 63:
                P(i, n, "more than 63 vm ops outstanding")
            if i.tag:
                seen_tags.add(i.tag)
            for r in i.wr:
                pend_vm[r] = i
            if i.op.startswith("buffer_store_dwordx4") or i.op.startswith("buffer_store_dwordx3"):
                for r in regs_of(i.text.split(None, 1)[1].split(",")[0]):
                    last_store_data[r] = (pos, i)
        elif i.kind in ("lds", "smem"):
            lgq.append(i)
            for r in i.wr:
                pend_lg[r] = i
        if isvalu:
            for r in wr:
                last_valu_wr[r] = (pos, i)
                last_mfma_wr.pop(r, None)
        elif i.kind == "mfma":
            for r in i.wr:
                last_mfma_wr[r] = (pos, i)
                last_valu_wr.pop(r, None)
            for r in i.srcc:
                last_srcc_rd[r] = (pos, i)
        elif i.kind == "salu":
            for r in i.wr:
                last_valu_wr.pop(r, None)
            if "m0" in i.wr:
                last_salu_m0 = pos
        else:
            for r in i.wr:
                last_valu_wr.pop(r, None)
                last_mfma_wr.pop(r, None)
    return probs


def est_cycles(ins):
    t = 0
    pipe = 0
    prev = None
    shadow = False
    for i in ins:
        if i.kind == "label":
            continue
        if i.kind == "mfma":
            t = max(t, pipe)
            pipe = t + 4 * i.passes
            c = 12 if i.op.startswith("v_smfmac") else (4 if "1k" in i.op else 8)
            t += c
            shadow = c >= 8
        else:
            if i.kind in ("salu", "wait") and shadow and i.op not in ("s_barrier",) and i.nop == 1:
                pass
            elif i.op == "s_barrier":
                t += 36
            elif i.op == "s_nop":
                t += 4 * i.nop
            else:
                t += i.cost()
                if i.kind in ("lds", "vmem") and prev is not None and prev.kind in ("valu", "trans"):
                    t += 8
                if i.op.startswith("buffer_store_dwordx4"):
                    t += 16
            shadow = False
        prev = i
    return max(t, pipe)
```

```python
import math, struct, sys
from asmlib import Ins, Seg, check_trace, est_cycles
from sched import Timeline, Item, LAT

NAME = "parallel_sum__grouped_kv_mqa__geglu_ffn__prompt"


def f32(x):
    return "0x%08x" % struct.unpack("<I", struct.pack("<f", x))[0]


LOG2E = 1.4426950408889634
K0 = 2 * LOG2E * math.sqrt(2 / math.pi)
K1 = K0 * 0.044715
ALPHA = K1 ** (1.0 / 3.0)
K0P = K0 / ALPHA
CK = LOG2E / math.sqrt(18.0) / ALPHA ** 2
MOFF = 84.0
OOB = 0x40000000

SLOT = 36864
KVS0, KVS1, KVST = 110592, 131072, 20480
WS_KV, WS_FLAG, WS_HX, WS_OM, WS_PART, WS_STAMP = 0, 0x40000, 0x80000, 0x300000, 0x600000, 0x1C00000
WS_SIZE = 0x2000000
DD = 20

sX, sG, sU, sD, sWS, sOUT, sDBG, sQ, sKV, sWO, sPF = 8, 12, 16, 20, 24, 28, 32, 36, 40, 44, 72
sW, sR, sS, sROLE, sE1, sE2 = 76, 77, 78, 79, 80, 81
sM0W, sA, sC0, sC1, sINC, sIT, sHI, sNK, sT0, sT1, sT2, sT3 = 82, 83, 84, 85, 86, 87, 88, 89, 90, 91, 92, 93
sST, sFL, sPFO, sPOL, sSTN, sFLN = 94, 95, 96, 97, 98, 99
sMASK = 4
sMK2 = 6


def srd(n):
    return f"s[{n}:{n + 3}]"


vL, vT0, vT1, vT2, vT3 = 1, 2, 3, 4, 5
vL16, vFLG = 6, 7
vRB = 8
vDM, vPF, vPOL, vONE = 24, 25, 26, 27
vTMP = 20
vGL, vG, vU, vH = 32, 64, 96, 128
vLO, vRAW = 40, 112
aXN, aFR, aH0 = 0, 144, 216


def vr(a, n=4):
    return f"v[{a}:{a + n - 1}]" if n > 1 else f"v{a}"


def ar(a, n=4):
    return f"a[{a}:{a + n - 1}]" if n > 1 else f"a{a}"


def xn(u, k):
    return ar(aXN + 4 * (18 * u + k))


def frag(gam, i):
    return aFR + 36 * (gam % 2) + 4 * i


class Gen:
    def __init__(self, C=1, stamps=False, xpf=True, wpf=True):
        self.C = C
        self.stamps = stamps
        self.xpf = xpf
        self.wpf = wpf
        self.segs = []
        self.nstamp = {}

    def seg(self, name):
        s = Seg(name)
        self.segs.append(s)
        return s

    def stamp(self, s, k):
        if not self.stamps:
            return
        s(f"""s_waitcnt lgkmcnt(0)
        s_memtime s[48:49]
        s_memrealtime s[50:51]
        s_waitcnt lgkmcnt(0)
        v_writelane_b32 v0, s48, {2 * k}
        v_writelane_b32 v0, s50, {2 * k + 1}""")

    def stamp_flush(self, s):
        if not self.stamps:
            return
        s(f"""s_lshl_b32 s48, s2, 2
        s_add_u32 s48, s48, s{sW}
        s_lshl_b32 s48, s48, 8
        s_add_u32 s48, s48, {WS_STAMP}
        v_lshlrev_b32 v{vT0}, 2, v{vL}
        buffer_store_dword v0, v{vT0}, {srd(sWS)}, s48 offen""")

    def std_reads(self, gam0, pos0, slot, tag):
        R = []
        n = 0
        for ct in range(4):
            for i in range(9):
                for h in range(2):
                    f = frag(gam0 + ct, i) + 2 * h
                    off = slot * SLOT + 4096 * i + 2048 * h
                    ins = Ins(f"ds_read_b64_tr_b16 {ar(f, 2)}, v{vRB + 4 * (off // 65536) + ct} offset:{off % 65536}", tag=tag)
                    g0 = pos0 + 18 * ct
                    dl = g0 + i - LAT - 1
                    if ct == 3:
                        dl = min(dl, pos0 + 72 - DD - LAT)
                    R.append(Item("r", ins, pos0 - DD + n * 66.0 / 72.0, earliest=max(g0 - 27 + i, pos0 - DD), deadline=dl))
                    n += 1
        return R

    def std_mfmas(self, tl, gam0, pos0, acc, bfun, zero):
        for ct in range(4):
            for u in range(2):
                for i in range(9):
                    c = vr(acc + 4 * (2 * ct + u))
                    cin = "0" if (zero and i == 0) else c
                    tl.m[pos0 + 18 * ct + 9 * u + i] = Ins(f"v_mfma_f32_16x16x32_bf16 {c}, {ar(frag(gam0 + ct, i))}, {bfun(u, i)}, {cin}")

    def barrier(self, tl, p, vm, need):
        g = tl.gap(p)
        g.shadow.append(Ins(f"s_waitcnt vmcnt({vm}) lgkmcnt(0)"))
        g.bar.append(Ins("s_barrier", need=need))

    def dmas(self, tl, positions, slot, srdn, voff, first, inc, tag, ldsstep=4096):
        for i, p in enumerate(positions):
            tl.gap(p - 1).shadow.append(Ins(f"s_add_u32 m0, s{sM0W}, {slot * SLOT + ldsstep * i}"))
            tl.gap(p).shadow.append(Ins(first if (i == 0 and first) else f"s_add_u32 s{sA}, s{sA}, {inc}"))
            tl.gap(p).mem.append(Ins(f"buffer_load_dwordx4 v{voff}, {srd(srdn)}, s{sA} offen lds", tag=tag))

    def gelu_items(self, base, t0, t1, idx, hreg):
        raw = []
        for j in range(8):
            rel = base + 72 + 9 * j + 8 + 4
            dl = base + 288 + 9 * j - 1
            g, t = vG + 4 * j, vGL + 4 * j
            for e in range(4):
                raw.append(("v", [Ins(f"v_fma_f32 v{t + e}, -v{g + e}, v{g + e}, s{sNK}")], rel, dl))
            for e in range(4):
                raw.append(("v", [Ins(f"v_mul_f32 v{t + e}, v{t + e}, v{g + e}")], rel, dl))
            for e in range(4):
                raw.append(("v", [Ins(f"v_exp_f32 v{t + e}, v{t + e}")], rel, dl))
            for e in range(4):
                raw.append(("v", [Ins(f"v_add_f32 v{t + e}, 1.0, v{t + e}")], rel, dl))
            for e in range(4):
                raw.append(("v", [Ins(f"v_rcp_f32 v{t + e}, v{t + e}")], rel, dl))
            for e in range(4):
                raw.append(("v", [Ins(f"v_mul_f32 v{t + e}, v{t + e}, v{g + e}")], rel, dl))
        for j in (0, 2, 4, 6, 1, 3, 5, 7):
            ct, u = j // 2, j % 2
            rel = base + 216 + 9 * j + 8 + 4
            dl = base + 288 + 144 + 9 * j - 1
            t, uu = vGL + 4 * j, vU + 4 * j
            h = hreg + 8 * (ct // 2) + 4 * u + 2 * (ct % 2)
            for e in range(4):
                raw.append(("v", [Ins(f"v_mul_f32 v{t + e}, v{t + e}, v{uu + e}")], rel, dl))
            if idx:
                offs = [16 * k for k in range(8)]
                raw.append(("x", [Ins(f"v_cvt_pk_bf16_f32 v{h + e}, v{t + 2 * e}, v{t + 2 * e + 1}", idx=offs) for e in range(2)], rel, dl))
            else:
                for e in range(2):
                    raw.append(("v", [Ins(f"v_cvt_pk_bf16_f32 v{h + e}, v{t + 2 * e}, v{t + 2 * e + 1}")], rel, dl))
        items = []
        for k, ins, rel, dl in raw:
            if k == "x":
                items.append(Item("x", ins, 0, rel, dl, pre=Ins(f"s_set_gpr_idx_on s{sHI}, 8"), post=Ins("s_set_gpr_idx_off")))
            else:
                items.append(Item("v", ins, 0, rel, dl))
        tot = sum(i.cost() for i in items)
        c = 0
        for i in items:
            i.target = t0 + (t1 - t0) * c / tot
            c += i.cost()
        return items

    def prologue(self):
        C = self.C
        s = self.seg("entry")
        s(f"""s_cmp_ge_u32 s2, 256
        s_cbranch_scc1 L_end
        s_load_dwordx16 s[48:63], s[0:1], 0
        s_load_dwordx8 s[64:71], s[0:1], 64
        v_lshrrev_b32 v{vT0}, 6, v0
        v_and_b32 v{vL}, 63, v0
        v_readfirstlane_b32 s{sW}, v{vT0}
        s_and_b32 s{sT0}, s2, 7
        s_lshr_b32 s{sT1}, s2, 3
        s_and_b32 s{sROLE}, s{sT1}, 1
        s_lshr_b32 s{sT1}, s{sT1}, 1""")
        lc = C.bit_length() - 1
        s(f"""s_and_b32 s{sS}, s{sT0}, {8 // C - 1}
        s_lshl_b32 s{sS}, s{sS}, {lc}
        s_and_b32 s{sT2}, s{sT1}, {C - 1}
        s_add_u32 s{sS}, s{sS}, s{sT2}
        s_lshl_b32 s{sE1}, s{sT2}, 1
        s_add_u32 s{sE1}, s{sE1}, s{sROLE}
        s_lshr_b32 s{sE2}, s{sT1}, {lc}
        s_lshr_b32 s{sR}, s{sT0}, {3 - lc}
        s_lshl_b32 s{sR}, s{sR}, {4 - lc}
        s_add_u32 s{sR}, s{sR}, s{sE2}
        s_lshl_b32 s{sM0W}, s{sW}, 10
        v_lshlrev_b32 v{vL16}, 4, v{vL}
        v_and_b32 v{vT0}, 15, v{vL}
        v_lshrrev_b32 v{vT1}, 4, v{vL}
        s_lshl_b32 s{sT0}, s{sW}, 5
        v_add_u32 v{vT2}, s{sT0}, v{vT0}
        v_mul_u32_u24 v{vT2}, 1152, v{vT2}
        v_lshl_add_u32 v{vTMP}, v{vT1}, 4, v{vT2}
        s_mul_i32 s{sT0}, s{sR}, 147456
        s_mul_i32 s{sT1}, s{sS}, 1152
        s_waitcnt lgkmcnt(0)""")
        self.stamp0(s)

        def mk(n, src, offreg, size, sub=False):
            if offreg is None:
                s(f"s_mov_b32 s{n}, s{src}\ns_and_b32 s{n + 1}, s{src + 1}, 0xffff")
            else:
                s(f"s_add_u32 s{n}, s{src}, s{offreg}\ns_addc_u32 s{n + 1}, s{src + 1}, 0\ns_and_b32 s{n + 1}, s{n + 1}, 0xffff")
            if sub:
                s(f"s_sub_u32 s{n + 2}, {size}, s{offreg}")
            else:
                s(f"s_mov_b32 s{n + 2}, {size}")
            s(f"s_mov_b32 s{n + 3}, 0x20000")

        mk(sX, 48, sT0, 147456)
        if self.xpf:
            per = 144 // C
            s(f"""s_lshl_b32 s{sT2}, s{sE1}, 2
            s_add_u32 s{sT2}, s{sT2}, s{sW}
            s_mul_i32 s{sT2}, s{sT2}, {per * 128}
            v_lshlrev_b32 v{vT2}, 7, v{vL}
            v_mov_b32 v{vT3}, {OOB}""")
            n = (per + 63) // 64
            lanes = per // n
            s(f"v_cmp_gt_u32 vcc, {lanes}, v{vL}\ns_nop 1\nv_cndmask_b32 v{vT2}, v{vT3}, v{vT2}, vcc")
            for i in range(n):
                s(f"buffer_load_dword v{vT3}, v{vT2}, {srd(sX)}, s{sT2} offen", tag="pf")
                if i + 1 < n:
                    s(f"s_add_u32 s{sT2}, s{sT2}, {lanes * 128}")
        mk(sG, 60, sT1, 5308416, sub=True)
        mk(sU, 62, sT1, 5308416, sub=True)
        mk(sOUT, 66, sT0, 147456)
        s(f"s_mul_i32 s{sT0}, s{sS}, 663552\ns_mul_i32 s{sT1}, s{sS}, 144")
        mk(sD, 64, sT0, 663552)
        mk(sQ, 50, sT1, 663552, sub=True)
        mk(sWS, 70, None, WS_SIZE)
        mk(sDBG, 68, None, 256)
        mk(sWO, 56, None, 663552)
        s(f"""s_bitcmp1_b32 s{sS}, 1
        s_cselect_b32 s{sKV}, s54, s52
        s_cselect_b32 s{sKV + 1}, s55, s53
        s_and_b32 s{sKV + 1}, s{sKV + 1}, 0xffff
        s_mov_b32 s{sKV + 2}, 20736
        s_mov_b32 s{sKV + 3}, 0x20000
        s_cmp_ge_u32 s{sW}, 2
        s_cselect_b32 s{sPF}, s{sU}, s{sG}
        s_cselect_b32 s{sPF + 1}, s{sU + 1}, s{sG + 1}
        s_mov_b32 s{sPF + 2}, s{sG + 2}
        s_mov_b32 s{sPF + 3}, 0x20000""")
        s(f"""s_cmp_eq_u32 s{sROLE}, 0
        s_cselect_b32 s{sC0}, 128, 0""")
        npf = 1 if C <= 2 else 2
        self.npf = npf
        lanes = 18 * C // npf
        self.pfstep = lanes * (32 // C)
        s(f"""s_and_b32 s{sT0}, s{sW}, 1
        s_lshl_b32 s{sT1}, s{sE2}, 1
        s_add_u32 s{sT0}, s{sT0}, s{sT1}
        v_lshlrev_b32 v{vT0}, {5 - lc}, v{vL}
        v_add_u32 v{vT0}, s{sT0}, v{vT0}
        v_mul_u32_u24 v{vPF}, 9216, v{vT0}
        v_mul_u32_u24 v{vPOL}, 1152, v{vT0}
        v_mov_b32 v{vT1}, {OOB}
        v_cmp_gt_u32 vcc, {lanes}, v{vL}
        s_nop 1
        v_cndmask_b32 v{vPF}, v{vT1}, v{vPF}, vcc
        v_cndmask_b32 v{vPOL}, v{vT1}, v{vPOL}, vcc""")
        if self.wpf:
            for i in range(npf):
                s(f"s_add_u32 s{sT0}, s{sC0}, {i * self.pfstep * 9216}")
                s(f"buffer_load_dword v{vT3}, v{vPF}, {srd(sPF)}, s{sT0} offen", tag="pf")
        s(f"""s_cmp_eq_u32 s{sROLE}, 0
        s_cbranch_scc1 L_nokv""")
        k = self.seg("kvdma")
        k(f"""v_lshrrev_b32 v{vT0}, 1, v{vL}
        v_mul_u32_u24 v{vT0}, 36, v{vT0}
        v_and_b32 v{vT1}, 1, v{vL}
        v_lshl_add_u32 v{vT0}, v{vT1}, 4, v{vT0}
        s_and_b32 s{sT0}, s{sS}, 1
        s_lshl_b32 s{sT0}, s{sT0}, 5
        s_mul_i32 s{sT1}, s{sW}, 1152
        s_add_u32 s{sA}, s{sT0}, s{sT1}""")
        for i in range(5):
            k(f"s_add_u32 m0, s{sM0W}, {3 * SLOT + 4096 * i}")
            k(f"s_add_u32 s{sT0}, s{sA}, {4608 * i}")
            k(f"buffer_load_dwordx4 v{vT0}, {srd(sKV)}, s{sT0} offen lds", tag="kvimg")
        s = self.seg("xload")
        s("L_nokv:")
        s(f"s_mov_b32 s{sT3}, 18432")
        xl = []
        for u in range(2):
            for kk in range(18):
                so = "0" if u == 0 else f"s{sT3}"
                xl.append([Ins(f"buffer_load_dwordx4 {vr(vRAW + 4 * (18 * u + kk))}, v{vTMP}, {srd(sX)}, {so} offen offset:{64 * kk}", tag=f"x{18 * u + kk}")])
        NUP = 12
        for q in xl[:NUP]:
            s.extend(q)
        s(f"""v_lshrrev_b32 v{vT0}, 2, v{vL}
        v_lshlrev_b32 v{vT0}, 7, v{vT0}
        v_and_b32 v{vT1}, 3, v{vL}
        v_lshl_add_u32 v{vT0}, v{vT1}, 3, v{vT0}
        v_bfe_u32 v{vT1}, v{vL}, 3, 2""")
        for ct in range(4):
            s(f"""v_xor_b32 v{vT2}, {ct}, v{vT1}
            v_lshl_add_u32 v{vRB + ct}, v{vT2}, 5, v{vT0}
            v_add_u32 v{vRB + 4 + ct}, 0x10000, v{vRB + ct}
            v_add_u32 v{vRB + 8 + ct}, 0x20000, v{vRB + ct}""")
        s(f"""v_bfe_u32 v{vT0}, v{vL}, 1, 2
        v_lshrrev_b32 v{vT1}, 4, v{vL}
        v_xor_b32 v{vTMP + 2}, v{vT0}, v{vT1}
        v_and_b32 v{vT1}, 1, v{vL}
        v_lshlrev_b32 v{vT1}, 4, v{vT1}
        v_lshl_add_u32 v{vTMP + 1}, v{vTMP + 2}, 5, v{vT1}""")
        s(f"""v_lshrrev_b32 v{vT0}, 5, v{vL}
        v_bfe_u32 v{vT1}, v{vL}, 3, 2
        v_lshl_add_u32 v{vT0}, v{vT0}, 3, v{vT1}
        s_and_b32 s{sT0}, s{sW}, 1
        s_lshl_b32 s{sT0}, s{sT0}, 4
        s_lshr_b32 s{sT1}, s{sW}, 1
        s_lshl_b32 s{sT1}, s{sT1}, 2
        s_add_u32 s{sT0}, s{sT0}, s{sT1}
        v_add_u32 v{vTMP + 3}, s{sT0}, v{vT0}
        v_mul_u32_u24 v{vDM}, 9216, v{vTMP + 3}
        v_add_u32 v{vDM}, v{vDM}, v{vTMP + 1}
        v_mov_b32 v{vT1}, {OOB}
        v_cmp_eq_u32 vcc, 0, v{vL}
        v_mov_b32 v{vONE}, 1
        s_mov_b32 s{sNK}, {f32(-K0P)}
        v_cndmask_b32 v{vFLG}, v{vT1}, 0, vcc
        s_mov_b32 s{sMASK}, 0
        s_mov_b32 s{sMASK + 1}, -1
        s_mov_b32 s{sINC}, {32 * 9216}
        s_cmp_eq_u32 s{sROLE}, 0
        s_cbranch_scc1 L_nokv2""")
        k = self.seg("kvread")
        k(f"""v_lshrrev_b32 v{vT0}, 4, v{vL}
        v_bfe_u32 v{vT1}, v{vL}, 2, 2
        v_lshl_add_u32 v{vT0}, v{vT0}, 3, v{vT1}
        v_and_b32 v{vT1}, 3, v{vL}
        v_lshlrev_b32 v{vT1}, 3, v{vT1}
        v_lshl_add_u32 v{vT0}, v{vT0}, 5, v{vT1}
        v_add_u32 v{vT0}, {3 * SLOT}, v{vT0}
        s_waitcnt vmcnt({NUP})""")
        k("s_barrier", need=["kvimg"])
        for kk in range(18):
            for h in range(2):
                k(f"ds_read_b64_tr_b16 {ar(aFR + 4 * kk + 2 * h, 2)}, v{vT0} offset:{1024 * kk + 128 * h}", tag="kvfr")
        s = self.seg("ln")
        s("L_nokv2:")
        queue = list(xl[NUP:])
        if self.wpf:
            for i in range(npf):
                queue.append([Ins(f"s_cmp_eq_u32 s{sROLE}, 0"),
                              Ins(f"s_cselect_b32 s{sT0}, {256 + i * self.pfstep * 9216}, {OOB}"),
                              Ins(f"buffer_load_dword v{vT3}, v{vPF}, {srd(sPF)}, s{sT0} offen", tag="pf")])
                queue.append([Ins(f"s_lshr_b32 s{sT1}, s{sW}, 1"),
                              Ins(f"s_mul_i32 s{sT1}, s{sT1}, 140"),
                              Ins(f"s_add_u32 s{sT1}, s{sT1}, {i * self.pfstep * 1152}"),
                              Ins(f"s_cmp_eq_u32 s{sROLE}, 0"),
                              Ins(f"s_cselect_b32 s{sT1}, {OOB}, s{sT1}"),
                              Ins(f"buffer_load_dword v{vT3}, v{vPOL}, {srd(sQ)}, s{sT1} offen", tag="pf")])
        pfq = queue[len(xl) - NUP:]
        queue = queue[:len(xl) - NUP]
        for st in range(4):
            for i in range(9):
                q = []
                if st == 3 and i == 0:
                    q += [Ins("s_waitcnt lgkmcnt(0)"), Ins("s_barrier", need=["lds:kvfr"])]
                q.append(Ins(f"s_add_u32 m0, s{sM0W}, {st * SLOT + 4096 * i}"))
                q.append(Ins(f"s_mov_b32 s{sA}, s{sC0}" if (i == 0 and st % 2 == 0) else f"s_add_u32 s{sA}, s{sA}, s{sINC}"))
                q.append(Ins(f"buffer_load_dwordx4 v{vDM}, {srd(sG if st < 2 else sU)}, s{sA} offen lds", tag=f"st{st}"))
                queue.append(q)
            if st == 1:
                queue += pfq
        issued = [NUP]

        def pop(n=1):
            for _ in range(n):
                if queue:
                    s.extend(queue.pop(0))
                    issued[0] += 1

        vS, vQ, vS2, vQ2, vRS, vBI = 32, 33, 34, 35, 36, 38
        s(f"s_mov_b32 s{sT2}, 0x3f803f80")
        for u in range(2):
            s(f"v_mov_b32 v{vS}, 0\nv_mov_b32 v{vQ}, 0")
            for kk in range(18):
                n = 18 * u + kk
                if u == 0 or kk % 6 == 0:
                    last = n if u == 0 else n + 5
                    s(f"s_waitcnt vmcnt({issued[0] - last - 1})")
                if n == 0:
                    self.stamp(s, 10)
                pop(1)
                for j in range(4):
                    r = vRAW + 4 * n + j
                    lo = vLO + 4 * kk + j
                    s(f"""v_dot2c_f32_bf16 v{vS}, s{sT2}, v{r}
                    v_dot2c_f32_bf16 v{vQ}, v{r}, v{r}
                    v_lshlrev_b32 v{lo}, 16, v{r}
                    v_and_b32 v{r}, 0xffff0000, v{r}""")
            self.stamp(s, 11 + 2 * u)
            s(f"""s_nop 0
            v_mov_b32 v{vS2}, v{vS}
            v_mov_b32 v{vQ2}, v{vQ}
            s_nop 0
            v_permlane16_swap_b32 v{vS}, v{vS2}
            v_permlane16_swap_b32 v{vQ}, v{vQ2}
            v_add_f32 v{vS}, v{vS}, v{vS2}
            v_add_f32 v{vQ}, v{vQ}, v{vQ2}
            v_mov_b32 v{vS2}, v{vS}
            v_mov_b32 v{vQ2}, v{vQ}
            s_nop 0
            v_permlane32_swap_b32 v{vS}, v{vS2}
            v_permlane32_swap_b32 v{vQ}, v{vQ2}
            v_add_f32 v{vS}, v{vS}, v{vS2}
            v_add_f32 v{vQ}, v{vQ}, v{vQ2}
            v_mul_f32 v{vS}, {f32(1 / 576)}, v{vS}
            v_mul_f32 v{vQ}, {f32(1 / 576)}, v{vQ}
            v_fma_f32 v{vQ}, -v{vS}, v{vS}, v{vQ}
            v_max_f32 v{vQ}, 0, v{vQ}
            v_add_f32 v{vQ}, {f32(1e-5)}, v{vQ}
            v_rsq_f32 v{vQ}, v{vQ}
            s_nop 0
            v_mul_f32 v{vRS}, {f32(ALPHA)}, v{vQ}
            v_mul_f32 v{vRS + 1}, {f32(ALPHA)}, v{vQ}
            v_mul_f32 v{vBI}, v{vRS}, -v{vS}
            v_mul_f32 v{vBI + 1}, v{vRS}, -v{vS}""")
            for kk in range(18):
                n = 18 * u + kk
                pop(1)
                r, lo = vRAW + 4 * n, vLO + 4 * kk
                for j in (0, 2):
                    s(f"v_pk_fma_f32 {vr(lo + j, 2)}, {vr(lo + j, 2)}, {vr(vRS, 2)}, {vr(vBI, 2)}")
                    s(f"v_pk_fma_f32 {vr(r + j, 2)}, {vr(r + j, 2)}, {vr(vRS, 2)}, {vr(vBI, 2)}")
                for j in range(4):
                    s(f"v_cvt_pk_bf16_f32 v{lo + j}, v{lo + j}, v{r + j}")
                for j in range(4):
                    s(f"v_accvgpr_write_b32 a{aXN + 4 * n + j}, v{lo + j}")
            self.stamp(s, 12 + 2 * u)
        pop(100)
        self.stamp(s, 1)
        s(f"""s_cmp_lg_u32 s{sROLE}, 0
        s_cbranch_scc1 L_p1""")

    def stamp0(self, s):
        if not self.stamps:
            return
        s(f"""s_memtime s[100:101]
        s_waitcnt lgkmcnt(0)
        v_writelane_b32 v0, s100, 0
        s_memrealtime s[100:101]
        s_waitcnt lgkmcnt(0)
        v_writelane_b32 v0, s100, 1""")

    def p0(self):
        tl = Timeline()
        xb = lambda h: (lambda u, i: xn(u, 9 * h + i))
        for st, (acc, h) in enumerate(((vG, 0), (vG, 1), (vU, 0), (vU, 1), (vG, 0))):
            self.std_mfmas(tl, 4 * st, 72 * st, acc, xb(h), h == 0)
        V = self.gelu_items(0, 85, 373, True, vH)
        wrapV = [i for i in V if i.target >= 340]
        for i in wrapV:
            i.target -= 288
            i.earliest -= 288
            i.deadline -= 288
        V = wrapV + [i for i in V if i not in wrapV]
        dpos = {1: [55 + 7 * i for i in range(9)], 2: [127 + 7 * i for i in range(9)], 3: [199 + 7 * i for i in range(9)], 4: [270 + 2 * i for i in range(9)]}
        state = {}
        for st in range(1, 5):
            b = 72 * st - DD
            self.barrier(tl, b, 18, [f"st{st % 4}", f"lds:r{(st - 1) % 4}"])
            sl = st - 1
            first = f"s_mov_b32 s{sA}, s{sC0 if sl < 2 else sC1}" if sl % 2 == 0 else None
            self.dmas(tl, dpos[st], sl, sG if sl < 2 else sU, vDM, first, f"s{sINC}", f"st{sl}")
            if st == 4:
                for i in range(self.npf):
                    if i:
                        tl.gap(291 + 2 * i).shadow.append(Ins(f"s_add_u32 s{sPFO}, s{sPFO}, {self.pfstep * 9216}"))
                    tl.gap(291 + 2 * i).mem.append(Ins(f"buffer_load_dword v{vT3}, v{vPF}, {srd(sPF)}, s{sPFO} offen", tag="pf"))
                tl.gap(296).mem.append(Ins(f"buffer_load_dword v{vPOL}, off, {srd(sDBG)}, s{sPOL} sc1", tag="poll"))
            if st == 2:
                for p, t in ((130, f"s_add_u32 s{sHI}, s{sHI}, 16"), (131, f"s_and_b32 s{sHI}, s{sHI}, 127"),
                             (137, f"s_add_u32 s{sIT}, s{sIT}, 1"), (138, f"s_lshl_b32 s{sPFO}, s{sIT}, 7"),
                             (144, f"s_add_u32 s{sPFO}, s{sPFO}, 384"), (145, f"s_add_u32 s{sC0}, s{sC0}, 128")):
                    tl.gap(p).shadow.append(Ins(t))
                for p, t in ((151, [f"s_cmp_lt_u32 s{sIT}, {6 if self.wpf else 0}"]), (152, [f"s_cselect_b32 s{sPFO}, s{sPFO}, {OOB}"]),
                             (158, [f"s_cmp_eq_u32 s{sIT}, 6"]), (159, [f"s_cselect_b32 s{sPOL}, s{sT3}, {OOB}"])):
                    for x in t:
                        tl.gap(p).shadow.append(Ins(x))
            if st == 3:
                tl.gap(202).shadow.append(Ins(f"s_add_u32 s{sC1}, s{sC1}, 128"))
            R = self.std_reads(4 * st, 72 * st, st % 4, f"r{st % 4}")
            if st < 4:
                tl.fill(b, b + 72, R, V, flushR=10 ** 9, flushV=b + 72)
                tl.insert_lgkm_waits(b, b + 72, [])
            else:
                tl.fill(b, 288, R, V)
                state["nR"] = 72 - len(R)
                state["V"] = [i.ins[0].text for i in V] + [i.ins[0].text for i in wrapV]
                state["out"] = tl.insert_lgkm_waits(b, 288, [])
                state["pre"] = [m for p in range(b, 288) for m in tl.gap(p).mem if m.kind == "lds"]
                state["prew"] = [m for p in range(b + 1, 288) for m in tl.gap(p).ins() if m.kind == "lds" or (m.kind == "wait" and m.lg is not None)]
                state["prew"] = [m for m in tl.gap(b).mem if m.kind == "lds"] + state["prew"]
                tl.fill(288, 340, R, V, flushR=10 ** 9, flushV=10 ** 9)
                tl.insert_lgkm_waits(288, 340, state["out"])
        self.state = state
        s = self.seg("p0pre")
        s(f"""s_add_u32 s{sC0}, s{sC0}, 128
        s_mov_b32 s{sC1}, s{sC0}
        s_mov_b32 s{sIT}, 0
        s_mov_b32 s{sHI}, 112
        s_mov_b32 s{sPFO}, {384 if self.wpf else OOB}
        s_mov_b32 s{sPOL}, {OOB}
        s_lshl_b32 s{sT3}, s{sR}, 2
        s_add_u32 s{sT3}, s{sT3}, 128
        s_waitcnt vmcnt(27)""")
        s("s_barrier", need=["st0"])
        s.extend(state["prew"])
        s(".p2align 3")
        a = self.seg("aloop")
        a("L_aloop:")
        a.extend(tl.emit(288, 340) + tl.emit(52, 288))
        a(f"""s_cmp_lt_u32 s{sIT}, 7
        s_cbranch_scc1 L_aloop""")
        a2 = self.seg("aexit")
        a2(f"""s_cmp_eq_u32 s{sIT}, 7
        s_cbranch_scc0 L_bstart""")
        w = self.seg("aswitch")
        w(f"""v_readfirstlane_b32 s{sT0}, v{vPOL}
        s_mov_b32 s{sT1}, 0
        s_cmp_ge_u32 s{sT0}, 8
        s_cbranch_scc1 L_hready""")
        sp = self.seg("hspin")
        sp(f"""L_hspin:
        s_sleep 4
        buffer_load_dword v{vPOL}, off, {srd(sDBG)}, s{sT3} sc1
        s_add_u32 s{sT1}, s{sT1}, 1
        s_waitcnt vmcnt(0)
        v_readfirstlane_b32 s{sT0}, v{vPOL}
        s_cmp_gt_u32 s{sT1}, 0x40000
        s_cbranch_scc1 L_end
        s_cmp_ge_u32 s{sT0}, 8
        s_cbranch_scc0 L_hspin""")
        w = self.seg("aswitch2")
        w(f"""L_hready:
        s_lshl_b32 s{sT0}, s{sR}, 3
        s_add_u32 s{sT0}, s{sT0}, s{sS}
        s_lshl_b32 s{sT1}, s{sT0}, 2
        s_add_u32 s{sT1}, s{sT1}, s{sW}
        s_lshl_b32 s{sT1}, s{sT1}, 12
        s_add_u32 s{sT1}, s{sT1}, {WS_HX}""")
        for k in range(4):
            w(f"buffer_load_dwordx4 {ar(aH0 + 4 * k)}, v{vL16}, {srd(sWS)}, s{sT1} offen offset:{1024 * k} sc1", tag="h0")
        w(f"""s_mov_b32 s{sG}, s{sD}
        s_mov_b32 s{sG + 1}, s{sD + 1}
        s_mov_b32 s{sG + 2}, s{sD + 2}
        s_mov_b32 s{sU}, s{sD}
        s_mov_b32 s{sU + 1}, s{sD + 1}
        s_mov_b32 s{sU + 2}, s{sD + 2}
        s_mov_b32 s{sINC}, {32 * 1152}
        s_lshl_b32 s{sC0}, s{sS}, 7
        s_add_u32 s{sC1}, s{sS}, 1
        s_and_b32 s{sC1}, s{sC1}, 7
        s_lshl_b32 s{sC1}, s{sC1}, 7
        v_lshrrev_b32 v{vT0}, 3, v{vL}
        s_lshl_b32 s{sT1}, s{sW}, 3
        v_add_u32 v{vT0}, s{sT1}, v{vT0}
        v_mul_u32_u24 v{vT0}, 1152, v{vT0}
        v_add_u32 v{vDM}, v{vT0}, v{vTMP + 1}
        s_mul_i32 s{sT2}, s{sT0}, {9 * 16384}
        s_lshl_b32 s{sT1}, s{sW}, 12
        s_add_u32 s{sT2}, s{sT2}, s{sT1}
        s_add_u32 s{sT2}, s{sT2}, {WS_PART}
        s_lshl_b32 s{sT3}, s{sR}, 12
        s_lshl_b32 s{sT1}, s{sW}, 7
        s_add_u32 s{sT3}, s{sT3}, s{sT1}
        s_lshl_b32 s{sT1}, s{sS}, 2
        s_add_u32 s{sT3}, s{sT3}, s{sT1}
        s_add_u32 s{sT3}, s{sT3}, {WS_FLAG + 32}
        s_branch L_aloop""")

        def hb(h):
            def f(u, i):
                k = 9 * h + i
                c, a_ = k // 2, k % 2
                if c == 0:
                    return ar(aH0 + 8 * a_ + 4 * u)
                return vr(vH + 16 * (c - 1) + 8 * a_ + 4 * u)
            return f

        def outv(base):
            V = []
            for j in range(8):
                ct, u = j // 2, j % 2
                rel = base + 72 + 9 * j + 8 + 8
                dl = base + 144 + 9 * j - 1
                p = vU + 8 * (ct // 2) + 4 * u + 2 * (ct % 2)
                for e in range(2):
                    V.append(Item("v", Ins(f"v_cvt_pk_bf16_f32 v{p + e}, v{vG + 4 * j + 2 * e}, v{vG + 4 * j + 2 * e + 1}"), rel + e, rel, dl))
                if ct % 2 == 1:
                    k = 2 * (ct // 2) + u
                    V.append(Item("m", Ins(f"buffer_store_dwordx4 {vr(vU + 4 * k)}, v{vL16}, {srd(sWS)}, s{sST} offen offset:{1024 * k} sc1", tag="part"), rel + 2, rel + 1))
            return V

        tb = Timeline()
        for step in range(4):
            for h in range(2):
                self.std_mfmas(tb, 8 * step + 4 * h, 144 * step + 72 * h, vG, hb(h), h == 0)
        Vall = self.gelu_items(-288, 85 - 288, 373 - 288, False, vH + 112)
        nrem = 0
        for t in state["V"]:
            nrem += 2 if t.startswith("v_cvt") else 1
        V = Vall[len(Vall) - nrem:]
        assert V[0].ins[0].text == state["V"][0], (V[0].ins[0].text, state["V"][0])
        tot = sum(i.cost() for i in V)
        c = 0
        for i in V:
            i.target = 80.0 * c / tot
            c += i.cost()
            if i.ins[0].op.startswith("v_cvt"):
                u = ((int(i.ins[0].wr[0][1:]) - vH) // 4) % 2
                i.deadline = 72 + 7 + 9 * u - 2
        R = self.std_reads(0, 0, 0, "r0")[state["nR"]:]
        out = [(p - 288, m) for p, m in state["out"]]
        tb.fill(0, 52, R, V, flushR=10 ** 9)
        tb.insert_lgkm_waits(0, 52, out)
        bstate = {}
        for st in range(1, 7):
            b = 72 * st - DD
            step = (st - 1) // 2
            sl = (st - 1) % 4
            base = 144 * step
            if st % 2 == 1:
                self.barrier(tb, b, 18, [f"st{st % 4}", f"lds:r{sl}"])
                V += outv(base)
                self.dmas(tb, [b + 14 + 6 * i for i in range(9)], sl, sD, vDM, f"s_mov_b32 s{sA}, s{sC0}", 32 * 1152, f"st{sl}")
                seq = [f"s_add_u32 s{sT0}, s{sIT}, s{sS}", f"s_and_b32 s{sT1}, s{sT0}, 7",
                       f"s_cmp_lt_u32 s{sIT}, 8", f"s_cselect_b32 s{sT1}, s{sT1}, 8",
                       f"s_add_u32 s{sT0}, s{sT0}, 2", f"s_and_b32 s{sT0}, s{sT0}, 7",
                       f"s_cmp_lt_u32 s{sIT}, 6", f"s_cselect_b32 s{sT0}, s{sT0}, 8",
                       f"s_lshl_b32 s{sC0}, s{sT0}, 7",
                       f"s_cmp_lt_u32 s{sIT}, 7", f"s_cselect_b32 s{sC0}, s{sC0}, {OOB}"]
                for k, t in enumerate(seq):
                    tb.gap(b + 1 + k).shadow.append(Ins(t))
                for p, t in ((b + 15, f"s_lshl_b32 s{sST}, s{sT1}, 14"), (b + 16, f"s_add_u32 s{sST}, s{sST}, s{sT2}"),
                             (b + 17, f"s_mov_b32 s{sFL}, s{sFLN}"), (b + 21, f"s_lshl_b32 s{sFLN}, s{sT1}, 9"),
                             (b + 22, f"s_add_u32 s{sFLN}, s{sFLN}, s{sT3}"), (b + 23, f"s_add_u32 s{sIT}, s{sIT}, 1")):
                    tb.gap(p).shadow.append(Ins(t))
            else:
                self.barrier(tb, b, 11, [f"st{st % 4}", f"lds:r{sl}", "old:part/2"])
                tb.gap(b).mem.append(Ins(f"buffer_store_dword v{vONE}, v{vFLG}, {srd(sWS)}, s{sFL} offen sc1", tag="flag"))
                self.dmas(tb, [b + 2 + 2 * i for i in range(9)], sl, sD, vDM, None, 32 * 1152, f"st{sl}")
            R = self.std_reads(4 * st, 72 * st, st % 4, f"r{st % 4}")
            if st % 2 == 1:
                tb.fill(b, b + 72, R, V, flushR=10 ** 9, flushV=b + 70)
                tb.insert_lgkm_waits(b, b + 72, [])
            else:
                e = b + DD
                tb.fill(b, e, R, V)
                o = tb.insert_lgkm_waits(b, e, [])
                bstate[st] = (len(R), [i.ins[0].text for i in V], [(p - e) for p, m in o])
                if st == 6:
                    tailV = list(V)
                    break
                tb.fill(e, b + 72, R, V, flushR=10 ** 9, flushV=10 ** 9)
                tb.insert_lgkm_waits(e, b + 72, o)
        assert bstate[2] == bstate[6] == bstate[4], bstate
        s = self.seg("b0")
        s(f"""L_bstart:
        s_mov_b32 s{sIT}, 0
        s_mov_b32 s{sFLN}, {OOB}""")
        self.stamp(s, 2)
        s.extend(tb.emit(0, 144))
        s(".p2align 3")
        bl = self.seg("bloop")
        bl("L_bloop:")
        bl.extend(tb.emit(144, 432))
        bl(f"""s_cmp_lt_u32 s{sIT}, 9
        s_cbranch_scc1 L_bloop""")
        e = self.seg("bend")
        e("s_nop 5")
        for it in tailV:
            e.extend(it.ins)
        e(f"""v_lshlrev_b32 v{vT0}, 9, v{vL}
        v_mov_b32 v{vT1}, {OOB}
        v_cmp_gt_u32 vcc, 8, v{vL}
        s_add_u32 s{sT3}, s{sT3}, 32
        s_nop 0
        v_cndmask_b32 v{vT0}, v{vT1}, v{vT0}, vcc
        s_waitcnt vmcnt(0)""")
        e(f"buffer_store_dword v{vONE}, v{vT0}, {srd(sWS)}, s{sT3} offen sc1", need=["part"])
        self.stamp(e, 3)
        self.stamp_flush(e)
        e("s_endpgm")

    def text(self):
        head = open("cdna_kernels/" + NAME + ".s.ref").read()
        lines = head.split("\n")
        top = [l for l in lines if l.startswith(";") and "@launch" not in l and "Override" not in l and "grid=ceil" not in l]
        out = "\n".join(top) + "\n; @launch grid=(256,1,1) block=(256,1,1) lds=163840\n"
        out += f""".amdgcn_target "amdgcn-amd-amdhsa--gfx950"
.text
.globl {NAME}_kernel
.p2align 8
.type {NAME}_kernel,@function
{NAME}_kernel:
"""
        for s in self.segs:
            out += f"; ---- {s.name}\n" + s.text()
        out += f"""L_end:
    s_endpgm
.section .rodata,"a"
.p2align 6
.amdhsa_kernel {NAME}_kernel
  .amdhsa_next_free_vgpr 512
  .amdhsa_next_free_sgpr 102
  .amdhsa_accum_offset 256
  .amdhsa_group_segment_fixed_size 0
  .amdhsa_kernarg_size 96
  .amdhsa_user_sgpr_count 2
  .amdhsa_user_sgpr_kernarg_segment_ptr 1
  .amdhsa_system_sgpr_workgroup_id_x 1
.end_amdhsa_kernel
"""
        return out

    def trace(self, names):
        d = {s.name: s for s in self.segs}
        t = []
        for n in names:
            t += d[n].ins
        return t
```

```python
from asmlib import Ins

LAT = 6


class Gap:
    __slots__ = ("shadow", "bar", "mem", "valu", "post", "nreads")

    def __init__(self):
        self.shadow = []
        self.bar = []
        self.mem = []
        self.valu = []
        self.post = []
        self.nreads = 0

    def used(self):
        u = sum(5 if m.op.startswith("buffer_store_dwordx4") else 1 for m in self.mem)
        u += sum(v.cost() // 4 for v in self.valu) + len(self.post) + max(0, len(self.shadow) - 1)
        return u

    def ins(self):
        return self.shadow + self.bar + self.mem + self.valu + self.post


class Item:
    def __init__(self, kind, ins, target, earliest=-10 ** 9, deadline=10 ** 9, pre=None, post=None):
        self.kind = kind
        self.ins = ins if isinstance(ins, list) else [ins]
        self.target = target
        self.earliest = earliest
        self.deadline = deadline
        self.pre = pre
        self.post = post
        self.pos = None

    def cost(self):
        if self.kind in ("r", "m"):
            return 1
        return sum(i.cost() // 4 for i in self.ins) + (1 if self.post else 0)


class Timeline:
    def __init__(self):
        self.g = {}
        self.m = {}

    def gap(self, p):
        if p not in self.g:
            self.g[p] = Gap()
        return self.g[p]

    def place(self, it, p):
        g = self.gap(p)
        it.pos = p
        assert it.earliest <= p <= it.deadline, (it.ins[0].text, it.earliest, p, it.deadline)
        if it.kind == "r":
            g.mem.insert(g.nreads, it.ins[0])
            g.nreads += 1
        elif it.kind == "m":
            g.mem.extend(it.ins)
        else:
            if it.pre:
                g.shadow.append(it.pre)
            g.valu.extend(it.ins)
            if it.post:
                g.post.append(it.post)

    def fill(self, p0, p1, R, V, aheadR=5, aheadV=4, lagmax=1.0, flushR=None, flushV=None):
        for p in range(p0, p1):
            g = self.gap(p)

            def ok(it, room, over=False):
                if it.earliest > p:
                    return False
                if it.kind == "x":
                    return not g.shadow and not g.mem and not g.valu and not g.bar
                if g.post:
                    return False
                if it.kind == "m":
                    return not g.valu and (room >= 1 or over)
                if it.kind == "r":
                    if g.nreads >= 2:
                        return False
                    if g.nreads == 1 and self.gap(p - 1).nreads >= 2 and not over:
                        return False
                return over or it.cost() <= room

            for q, cap in ((R, 1.5), (V, 1.0)):
                while q:
                    must = max((k + 1 - cap * (x.deadline - p) for k, x in enumerate(q[:60])), default=0)
                    if must > 0 and ok(q[0], 0, over=True):
                        self.place(q.pop(0), p)
                    else:
                        break
            while True:
                room = 2 - g.used()
                if room <= 0:
                    break
                c = []
                if R and p - R[0].target > -aheadR and ok(R[0], room):
                    c.append((p - R[0].target, R))
                if V and p - V[0].target > -aheadV and ok(V[0], room):
                    c.append((p - V[0].target, V))
                if not c:
                    break
                c.sort(key=lambda x: -x[0])
                q = c[0][1]
                self.place(q.pop(0), p)
            for q in (R, V):
                n = 0
                while q and n < 4:
                    it = q[0]
                    left = p1 - 1 - p
                    must = it.deadline <= p
                    fl = flushR if q is R else flushV
                    if fl is not None:
                        rem = sum(1 for x in q if x.target < fl)
                        if rem > left * (2 if q is R else 2):
                            must = True
                    lag = p - it.target
                    if (must or (lag >= lagmax and g.used() <= 2)) and ok(it, 0, over=True):
                        self.place(q.pop(0), p)
                        n += 1
                    else:
                        break
        for q, fl in ((R, flushR), (V, flushV)):
            if fl is not None:
                assert not any(x.target < fl for x in q), ("unflushed", q[0].ins[0].text, q[0].target, p1)

    def insert_lgkm_waits(self, p0, p1, issued_before):
        seq = list(issued_before)
        done = 0
        start_idx = {}
        lastwait = p0 - 1
        for p in range(p0, p1):
            g = self.gap(p)
            start_idx[p] = len(seq)
            for s in g.shadow + g.bar:
                if s.kind == "wait" and s.lg is not None:
                    done = max(done, len(seq) - s.lg)
                    lastwait = p
            for m in g.mem:
                if m.kind == "lds":
                    seq.append((p, m))
            nxt = self.m.get(p + 1)
            if nxt is None:
                continue
            need = 0
            rd = set(nxt.rd)
            for k in range(done, len(seq)):
                if rd & set(seq[k][1].wr):
                    need = k + 1
            if need > done:
                rg = seq[need - 1][0]
                q = None
                for c in range(p, max(rg + LAT - 1, lastwait, p0 - 1), -1):
                    if not self.gap(c).shadow:
                        q = c
                        break
                if q is None:
                    q = p
                if rg >= q:
                    n = len(seq) - need
                    self.gap(p).post.append(Ins(f"s_waitcnt lgkmcnt({min(n, 15)})"))
                    done = len(seq) - min(n, 15)
                else:
                    cover = need
                    for k in range(need, start_idx[q]):
                        if seq[k][0] <= q - LAT:
                            cover = k + 1
                    n = min(start_idx[q] - cover, 15)
                    self.gap(q).shadow.insert(0, Ins(f"s_waitcnt lgkmcnt({n})"))
                    done = start_idx[q] - n
                lastwait = q
        return seq[done:]

    def emit(self, p0, p1, first_mfma=True):
        out = []
        for p in range(p0, p1):
            if p in self.m and (first_mfma or p > p0):
                out.append(self.m[p])
            out.extend(self.gap(p).ins())
        return out
```

```python
from gen import *

vQ1, vQ2 = 96, 112
vS_, vO_ = 128, 192
vK1, vK2, vV_ = 32, 40, 48
vKA, vK2A, vVA, vIDX = 64, 65, 66, 67
vXE = 50
vWM, vWN, vINB, vOA = 68, 69, 30, 31
vKVA = 32
vXA = 20


class Gen1(Gen):
    def spin(self, name, mask, lim="0x40000", first=True):
        s = self.seg(name)
        s(f"""s_mov_b32 s{sT1}, 0
        L_{name}:
        buffer_load_dword v{vPOL}, v{vINB}, {srd(sWS)}, s{sFL} offen sc1
        s_add_u32 s{sT1}, s{sT1}, 1
        s_cmp_gt_u32 s{sT1}, {lim}
        s_cbranch_scc1 L_end
        s_waitcnt vmcnt(0)
        v_cmp_eq_u32 vcc, 0, v{vPOL}
        s_nop 1
        s_and_b64 vcc, vcc, {mask}
        s_cbranch_scc1 L_{name}""")

    def p1(self):
        s = self.seg("p1a")
        s(f"""L_p1:
        s_bitcmp1_b32 s{sS}, 2
        s_cbranch_scc1 L_kvu1
        s_bitcmp1_b32 s{sS}, 1
        s_cbranch_scc1 L_kv01""")
        for u in range(2):
            for o in range(2):
                k = self.seg(f"kv{u}{o}")
                if u == 1 and o == 0:
                    k(f"L_kvu1:\ns_bitcmp1_b32 s{sS}, 1\ns_cbranch_scc1 L_kv11")
                elif o == 1:
                    k(f"L_kv{u}{o}:")
                for kk in range(18):
                    a, b = ar(aFR + 4 * kk), xn(u, kk)
                    if o:
                        a, b = b, a
                    k(f"v_mfma_f32_16x16x32_bf16 {vr(vKVA)}, {a}, {b}, {'0' if kk == 0 else vr(vKVA)}")
                if not (u == 1 and o == 1):
                    k("s_branch L_kvdone")
        tl = Timeline()
        xb = lambda h: (lambda u, i: xn(u, 9 * h + i))
        for st, (acc, h) in enumerate(((vG, 0), (vG, 1), (vU, 0), (vU, 1), (vG, 0), (vG, 1))):
            self.std_mfmas(tl, 4 * st, 72 * st, acc, xb(h), h == 0)
        for h in range(2):
            for u in range(2):
                for i in range(9):
                    c = vr(vGL + 4 * u)
                    tl.m[432 + 18 * h + 9 * u + i] = Ins(f"v_mfma_f32_16x16x32_bf16 {c}, {ar(frag(24 + h, i))}, {xn(u, 9 * h + i)}, {'0' if h == 0 and i == 0 else c}")
        V = self.gelu_items(0, 85, 378, False, vH)
        for k in range(4):
            V.append(Item("m", Ins(f"buffer_store_dwordx4 {vr(vH + 4 * k)}, v{vL16}, {srd(sWS)}, s{sST} offen offset:{1024 * k} sc1", tag="hst"), 379 + 2 * k, 379))
        for j in range(8):
            ct, u = j // 2, j % 2
            rel = 360 + 9 * j + 8 + 8
            q = vQ1 + 4 * (2 * u + ct // 2)
            for e in range(2):
                V.append(Item("v", Ins(f"v_cvt_pk_bf16_f32 v{q + 2 * (ct % 2) + e}, v{vG + 4 * j + 2 * e}, v{vG + 4 * j + 2 * e + 1}"), max(rel, 388 + 2 * j) + e, rel))
        for q in range(4):
            for e in range(2):
                V.append(Item("v", Ins(f"v_permlane16_swap_b32 v{vQ1 + 4 * q + e}, v{vQ1 + 4 * q + 2 + e}"), 446 + 2 * q + e, 446))
        for r in list(range(vO_, vO_ + 64)):
            pass
        vQM, vQX, vRX = vTMP + 8, vTMP + 9, vTMP + 10
        R = self.std_reads(0, 0, 0, "r0")
        tl.fill(-DD, 52, R, V, flushR=10 ** 9)
        tl.insert_lgkm_waits(-DD, 52, [])
        vmn = {1: 20, 2: 9, 3: 19, 4: 19, 5: 10, 6: 15}
        for st in range(1, 7):
            b = 72 * st - DD
            need = {1: ["st1"], 2: ["st2", "kvst"], 3: ["st3"], 4: ["q0"], 5: ["q1"], 6: ["q2"]}[st] + [f"lds:r{st - 1}"]
            self.barrier(tl, b, vmn[st], need)
            if st == 1:
                self.dmas(tl, [b + 3 + 3 * i for i in range(9)], 0, sQ, vQM, f"s_mov_b32 s{sA}, 0", 32 * 1152, "q0")
            if st == 2:
                tl.gap(b).mem.append(Ins(f"buffer_atomic_add v{vONE}, v{vFLG}, {srd(sDBG)}, s{sPOL} offen sc1", tag="arr"))
                self.dmas(tl, [b + 3 + 7 * i for i in range(9)], 1, sQ, vQM, None, 32 * 1152, "q1")
            if st == 3:
                self.dmas(tl, [b + 3 + 7 * i for i in range(9)], 2, sQ, vQX, f"s_mov_b32 s{sA}, 0", 64 * 1152, "q2")
            if st == 4:
                tl.gap(self.kvpoll).mem.append(Ins(f"buffer_load_dword v{vPOL}, v{vT2}, {srd(sDBG)}, 0 offen sc1", tag="poll"))
            if st < 6:
                R = self.std_reads(4 * st, 72 * st, st % 4, f"r{st}")
            else:
                R = []
                for h in range(2):
                    for i in range(9):
                        for hh in range(2):
                            ins = Ins(f"ds_read_b64_tr_b16 {ar(frag(24 + h, i) + 2 * hh, 2)}, v{vRX} offset:{2048 * (9 * h + i) + 256 * hh}", tag="r6")
                            g0 = 432 + 18 * h
                            R.append(Item("r", ins, b + len(R), earliest=max(g0 - 27 + i, b), deadline=g0 + i - LAT - 1))
            if st == 5:
                c = self.kvchk
                tl.gap(c).shadow.append(Ins("s_waitcnt vmcnt(0)"))
                tl.gap(c).valu += [Ins(f"v_cmp_gt_u32 vcc, 16, v{vPOL}")]
                tl.gap(c).post += [Ins("s_nop 0")]
                tl.gap(c + 1).shadow += [Ins("s_cbranch_vccnz L_kvspin"), Ins("L_kvok:")]
                for sg in range(2):
                    for i in range(5):
                        p = c + 3 + 7 * sg + i + (1 if i == 4 else 0)
                        if i in (0, 4):
                            tl.gap(p - 1).shadow.append(Ins(f"s_add_u32 m0, s{sC1}, {KVS0 + KVST * sg + 1024 * i}"))
                            tl.gap(p).shadow.append(Ins(f"s_add_u32 s{sA}, s{sC1}, {KVST * sg + 1024 * i}"))
                        tl.gap(p).mem.append(Ins(f"buffer_load_dwordx4 v{vL16}, {srd(sWS)}, s{sA} offen offset:{1024 * (i % 4)} sc1 lds", tag=f"kv{sg}"))
            e = b + 72 if st < 6 else 468
            tl.fill(b, e, R, V, flushR=10 ** 9, flushV=(10 ** 9 if st == 6 else None))
            tl.insert_lgkm_waits(b, e, [])
        s = self.seg("p1b")
        s(f"""L_kvdone:
        s_waitcnt vmcnt(27)""")
        s("s_barrier", need=["st0"])
        pre = tl.emit(-DD, 0)
        s.extend([i for i in pre if i.kind == "lds"])
        nl = 0
        prew = []
        for i in pre:
            if i.kind == "lds":
                nl += 1
            elif i.kind == "wait":
                prew.append(i.lg + sum(1 for x in pre if x.kind == "lds") - nl)
        s(f"""v_and_b32 v{vT0}, 15, v{vL}
        v_lshrrev_b32 v{vT1}, 5, v{vL}
        v_bfe_u32 v{vT2}, v{vL}, 4, 1
        s_lshr_b32 s{sT0}, s{sR}, 1
        s_mul_i32 s{sT0}, s{sT0}, {KVST}
        s_and_b32 s{sT1}, s{sR}, 1
        s_lshl_b32 s{sT2}, s{sT1}, 2
        s_add_u32 s{sT2}, s{sT2}, s{sW}
        s_lshr_b32 s{sT3}, s{sS}, 2
        v_lshlrev_b32 v{vPF}, 4, v{vT0}
        v_lshl_add_u32 v{vPF}, v{vT2}, 3, v{vPF}
        s_bitcmp1_b32 s{sS}, 1
        s_cbranch_scc1 L_epv""")
        k = self.seg("epk")
        for e in range(4):
            k(f"v_mul_f32 v{vKVA + e}, {f32(CK)}, v{vKVA + e}")
        k(f"""v_cvt_pk_bf16_f32 v{vKVA}, v{vKVA}, v{vKVA + 1}
        v_cvt_pk_bf16_f32 v{vKVA + 1}, v{vKVA + 2}, v{vKVA + 3}
        s_lshl_b32 s{sT3}, s{sT3}, 8
        s_add_u32 s{sT0}, s{sT0}, s{sT3}
        s_bitcmp1_b32 s{sS}, 0
        s_cbranch_scc1 L_epkx""")
        k = self.seg("epkm")
        k(f"""s_lshl_b32 s{sT2}, s{sT2}, 10
        s_add_u32 s{sT0}, s{sT0}, s{sT2}
        v_lshl_add_u32 v{vPF}, v{vT1}, 9, v{vPF}""")
        k(f"buffer_store_dwordx2 {vr(vKVA, 2)}, v{vPF}, {srd(sWS)}, s{sT0} offen sc1", tag="kvst")
        k("s_branch L_epdone")
        k = self.seg("epkx")
        k(f"""L_epkx:
        s_mul_i32 s{sT1}, s{sT1}, 640
        s_lshl_b32 s{sT2}, s{sW}, 2
        s_add_u32 s{sT0}, s{sT0}, s{sT1}
        s_add_u32 s{sT0}, s{sT0}, s{sT2}
        s_add_u32 s{sT0}, s{sT0}, 18432
        v_mov_b32 v{vT1}, {OOB}
        v_cmp_gt_u32 vcc, 16, v{vL}
        s_nop 1
        v_cndmask_b32 v{vPF}, v{vT1}, v{vPF}, vcc""")
        k(f"buffer_store_dword v{vKVA}, v{vPF}, {srd(sWS)}, s{sT0} offen sc1", tag="kvst")
        k("s_branch L_epdone")
        k = self.seg("epv")
        k(f"""L_epv:
        v_cvt_pk_bf16_f32 v{vKVA}, v{vKVA}, v{vKVA + 1}
        v_cvt_pk_bf16_f32 v{vKVA + 1}, v{vKVA + 2}, v{vKVA + 3}
        s_lshl_b32 s{sT2}, s{sT2}, 1
        s_add_u32 s{sT2}, s{sT2}, s{sT3}
        s_mul_i32 s{sT2}, s{sT2}, 640
        s_add_u32 s{sT0}, s{sT0}, s{sT2}
        s_add_u32 s{sT0}, s{sT0}, 8192
        v_mul_u32_u24 v{vT1}, 320, v{vT1}
        v_add_u32 v{vPF}, v{vPF}, v{vT1}
        s_bitcmp1_b32 s{sS}, 0
        s_cbranch_scc0 L_epvs""")
        k = self.seg("epvx")
        k(f"""s_add_u32 s{sT0}, s{sT0}, 256
        v_mov_b32 v{vT1}, 0x3f803f80
        v_cmp_eq_u32 vcc, 2, v{vT0}
        s_nop 1
        v_cndmask_b32 v{vKVA}, v{vKVA}, v{vT1}, vcc
        v_cndmask_b32 v{vKVA + 1}, v{vKVA + 1}, v{vT1}, vcc
        v_cmp_ne_u32 vcc, 3, v{vT0}
        v_mov_b32 v{vT1}, {OOB}
        s_nop 0
        v_cndmask_b32 v{vKVA}, 0, v{vKVA}, vcc
        v_cndmask_b32 v{vKVA + 1}, 0, v{vKVA + 1}, vcc
        v_cmp_gt_u32 vcc, 4, v{vT0}
        s_nop 1
        v_cndmask_b32 v{vPF}, v{vT1}, v{vPF}, vcc""")
        k = self.seg("epvs")
        k("L_epvs:")
        k(f"buffer_store_dwordx2 {vr(vKVA, 2)}, v{vPF}, {srd(sWS)}, s{sT0} offen sc1", tag="kvst")
        s = self.seg("p1c")
        s(f"""L_epdone:
        s_lshl_b32 s{sT0}, s{sR}, 3
        s_add_u32 s{sT0}, s{sT0}, s{sS}
        s_lshl_b32 s{sT0}, s{sT0}, 2
        s_add_u32 s{sT0}, s{sT0}, s{sW}
        s_lshl_b32 s{sFL}, s{sT0}, 7
        s_add_u32 s{sFL}, s{sFL}, {WS_FLAG}
        s_lshl_b32 s{sST}, s{sT0}, 12
        s_add_u32 s{sST}, s{sST}, {WS_HX}
        v_lshlrev_b32 v{vT0}, 2, v{vL}
        v_mov_b32 v{vT1}, {OOB}
        v_mov_b32 v{vT2}, 0
        v_cndmask_b32 v{vT0}, v{vT0}, v{vT1}, s[{sMASK}:{sMASK + 1}]""")
        s(f"buffer_store_dword v{vT2}, v{vT0}, {srd(sWS)}, s{sFL} offen sc1", tag="kvst")
        s(f"""s_lshr_b32 s{sT0}, s{sR}, 1
        s_lshl_b32 s{sT0}, s{sT0}, 2
        s_cmp_eq_u32 s{sW}, 0
        s_cselect_b32 s{sPOL}, s{sT0}, {OOB}
        s_mul_i32 s{sC1}, s{sW}, 5120
        v_mul_u32_u24 v{vQM}, 1152, v{vTMP + 3}
        v_mul_u32_u24 v{vT0}, 36, v{vTMP + 2}
        v_and_b32 v{vT1}, 1, v{vL}
        v_lshlrev_b32 v{vT1}, 4, v{vT1}
        v_add3_u32 v{vQM}, v{vQM}, v{vT0}, v{vT1}
        v_lshrrev_b32 v{vT0}, 2, v{vL}
        s_lshl_b32 s{sT0}, s{sW}, 4
        v_add_u32 v{vT0}, s{sT0}, v{vT0}
        v_mul_u32_u24 v{vT0}, 1152, v{vT0}
        v_and_b32 v{vT1}, 3, v{vL}
        v_mul_u32_u24 v{vT2}, 36, v{vT1}
        v_add3_u32 v{vQX}, v{vT0}, v{vT2}, 32
        v_lshrrev_b32 v{vT0}, 4, v{vL}
        v_bfe_u32 v{vT2}, v{vL}, 2, 2
        v_lshl_add_u32 v{vT0}, v{vT0}, 3, v{vT2}
        v_lshlrev_b32 v{vT0}, 6, v{vT0}
        v_lshl_add_u32 v{vT0}, v{vT1}, 4, v{vT0}
        v_add_u32 v{vRX}, {2 * SLOT}, v{vT0}
        v_and_b32 v{vT2}, 7, v{vL}
        v_lshlrev_b32 v{vT2}, 2, v{vT2}""")
        if prew:
            s(f"s_waitcnt lgkmcnt({min(15, min(prew))})")
        self.stamp(s, 2)
        g = self.seg("p1gemm")
        g.extend(tl.emit(0, 468))
        self.att()
        k = self.seg("kvspin")
        k(f"""L_kvspin:
        s_mov_b32 s{sT1}, 0
        L_kvspin2:
        s_sleep 2
        buffer_load_dword v{vPOL}, v{vT2}, {srd(sDBG)}, 0 offen sc1
        s_add_u32 s{sT1}, s{sT1}, 1
        s_cmp_gt_u32 s{sT1}, 0x40000
        s_cbranch_scc1 L_end
        s_waitcnt vmcnt(0)
        v_cmp_gt_u32 vcc, 16, v{vPOL}
        s_nop 1
        s_cbranch_vccnz L_kvspin2
        s_branch L_kvok""")
        self.fallback()

    def qk(self, sb, q, kt, kbuf=None):
        k1 = vK1 + 4 * (kt % 2)
        k2 = vK2 + 4 * ((kt // 4) % 2) + 2 * ((kt % 4) // 2)
        q2 = vQ2 + 4 * q + 2 * (kt % 2)
        S = vr(vS_ + 16 * sb, 16)
        return (Ins(f"v_mfma_f32_32x32x16_bf16 {S}, {vr(k1)}, {vr(vQ1 + 4 * q)}, 0"),
                Ins(f"v_mfma_f32_32x32x8bf16_1k {S}, {vr(k2, 2)}, {vr(q2, 2)}, {S}"))

    def pv(self, sb, q, kt):
        O = vr(vO_ + 16 * q, 16)
        v = vV_ + 8 * (kt % 2)
        return tuple(Ins(f"v_smfmac_f32_32x32x32_bf16 {O}, {vr(v + 4 * f)}, {vr(vS_ + 16 * sb + 8 * f, 8)}, v{vIDX}") for f in range(2))

    def kvreads(self, kt):
        sl, i = (kt // 8) % 2, kt % 8
        o = KVST * sl
        k1 = Ins(f"ds_read_b128 {vr(vK1 + 4 * (kt % 2))}, v{vKA} offset:{o + 1024 * i}", tag="kvr")
        k2 = Ins(f"ds_read_b128 {vr(vK2 + 4 * ((kt // 4) % 2))}, v{vK2A} offset:{o + 640 * (i // 4)}", tag="kvr") if kt % 4 == 0 else None
        vv = [Ins(f"ds_read_b128 {vr(vV_ + 8 * (kt % 2) + 4 * f)}, v{vVA} offset:{o + 640 * (2 * i + f)}", tag="kvr") for f in range(2)]
        return k1, k2, vv

    def att(self):
        s = self.seg("attpre")
        self.stamp(s, 3)
        s(f"""v_add_u32 v{vKA}, {KVS0}, v{vL16}
        v_add_u32 v{vK2A}, {KVS0 + 18432}, v{vL16}
        v_mov_b32 v{vT0}, {KVS0 + 8192 + 288}
        v_cndmask_b32 v{vK2A}, v{vK2A}, v{vT0}, s[{sMASK}:{sMASK + 1}]
        v_and_b32 v{vT0}, 31, v{vL}
        v_cmp_eq_u32 vcc, 22, v{vT0}
        v_min_u32 v{vT1}, 19, v{vT0}
        v_lshrrev_b32 v{vT0}, 5, v{vL}
        v_cndmask_b32 v{vT1}, v{vT1}, 18, vcc
        v_mul_u32_u24 v{vT0}, 320, v{vT0}
        v_lshl_add_u32 v{vT0}, v{vT1}, 4, v{vT0}
        v_add_u32 v{vVA}, {KVS0 + 8192}, v{vT0}
        v_mov_b32 v{vIDX}, 0xdddddddd""")
        for u in range(2):
            s(f"""v_cvt_pk_bf16_f32 v{vQ2 + 8 * u}, v{vGL + 4 * u}, v{vGL + 4 * u + 1}
            v_mov_b32 v{vQ2 + 8 * u + 4}, 0""")
        for q in range(4):
            s(f"v_mov_b32 v{vQ2 + 4 * q + 1}, 0\nv_mov_b32 v{vQ2 + 4 * q + 2}, 0")
        for u in range(2):
            s(f"v_permlane32_swap_b32 v{vQ2 + 8 * u}, v{vQ2 + 8 * u + 4}")
        s("s_waitcnt vmcnt(9) lgkmcnt(0)")
        s("s_barrier", need=["kv0", "lds:r6"])
        k1, k2, vv = self.kvreads(0)
        s.extend([k1, k2] + vv)
        s(f"""v_lshrrev_b32 v{vT0}, 5, v{vL}
        v_bfe_u32 v{vT1}, v{vL}, 3, 2
        v_mad_u32_u24 v{vT2}, v{vT0}, 18, v{vT1}
        s_lshl_b32 s{sT0}, s{sW}, 2
        v_add_u32 v{vT2}, s{sT0}, v{vT2}
        v_mul_u32_u24 v{vT2}, 1152, v{vT2}
        v_add_u32 v{vWM}, v{vT2}, v{vTMP + 1}
        v_lshrrev_b32 v{vT2}, 1, v{vT1}
        v_lshl_add_u32 v{vT1}, v{vT2}, 4, v{vT1}
        v_mul_u32_u24 v{vT0}, 72, v{vT0}
        s_and_b32 s{sT0}, s{sW}, 1
        s_mul_i32 s{sT0}, s{sT0}, 144
        s_lshr_b32 s{sT1}, s{sW}, 1
        s_mul_i32 s{sT1}, s{sT1}, 36
        s_add_u32 s{sT0}, s{sT0}, s{sT1}
        s_add_u32 s{sT0}, s{sT0}, 16
        v_add3_u32 v{vT0}, v{vT0}, v{vT1}, s{sT0}
        v_mul_u32_u24 v{vT0}, 1152, v{vT0}
        v_add_u32 v{vT0}, v{vT0}, v{vTMP + 1}
        s_lshl_b32 s{sC0}, s{sS}, 7""")
        for a in range(2):
            s(f"s_add_u32 m0, s{sM0W}, {4096 * (16 + a)}\ns_add_u32 s{sT0}, s{sC0}, {288 * 1152 * a}")
            s(f"buffer_load_dwordx4 v{vT0}, {srd(sWO)}, s{sT0} offen lds", tag="wo")
        s(f"""v_bfe_u32 v{vT0}, v{vL}, 1, 2
        v_bfe_u32 v{vT1}, v{vL}, 3, 1
        v_mad_u32_u24 v{vT2}, v{vT1}, 18, v{vT0}
        v_lshrrev_b32 v{vT1}, 4, v{vL}
        v_lshl_add_u32 v{vT2}, v{vT1}, 2, v{vT2}
        v_mul_u32_u24 v{vT2}, 1152, v{vT2}
        v_and_b32 v{vT1}, 1, v{vL}
        v_lshl_add_u32 v{vWN}, v{vT1}, 4, v{vT2}
        v_lshrrev_b32 v{vT2}, 1, v{vT0}
        v_lshl_add_u32 v{vT0}, v{vT2}, 4, v{vT0}
        v_bfe_u32 v{vT2}, v{vL}, 3, 2
        v_mul_u32_u24 v{vT2}, 72, v{vT2}
        v_add3_u32 v{vT0}, v{vT0}, v{vT2}, 16
        v_lshrrev_b32 v{vT2}, 5, v{vL}
        v_mad_u32_u24 v{vT0}, v{vT2}, 36, v{vT0}
        v_mul_u32_u24 v{vT0}, 1152, v{vT0}
        v_lshl_add_u32 v{vT0}, v{vT1}, 4, v{vT0}
        s_and_b32 s{sT2}, s{sS}, 3
        s_lshl_b32 s{sT2}, s{sT2}, 5
        s_add_u32 s{sT2}, s{sT2}, 1024
        s_mul_i32 s{sT0}, s{sW}, {288 * 1152}
        s_add_u32 s{sT0}, s{sT0}, s{sT2}
        s_add_u32 m0, s{sM0W}, {2 * SLOT + 16384}
        s_mul_i32 s{sT1}, s{sW}, {36 * 1152}""")
        s(f"buffer_load_dwordx4 v{vT0}, {srd(sWO)}, s{sT0} offen lds", tag="wo")
        s(f"""s_add_u32 s{sSTN}, s{sT1}, s{sT2}
        s_waitcnt lgkmcnt(0)""")
        for q in range(4):
            s.extend(self.qk(q, q, 0))
        for r in range(vO_, vO_ + 64):
            s(f"v_mov_b32 v{r}, 0")
        for r in range(vV_ + 8, vV_ + 16):
            s(f"v_mov_b32 v{r}, 0")
        for q in range(4):
            b = vS_ + 16 * q
            s(f"v_max3_f32 v{b}, v{b}, v{b + 1}, v{b + 2}")
            for j in range(3, 15, 2):
                s(f"v_max3_f32 v{b}, v{b}, v{b + j}, v{b + j + 1}")
            s(f"v_max_f32 v{b}, v{b}, v{b + 15}\nv_mov_b32 v{b + 1}, v{b}")
        s("s_nop 0")
        for q in range(4):
            b = vS_ + 16 * q
            s(f"v_permlane32_swap_b32 v{b}, v{b + 1}")
        for q in range(4):
            b = vS_ + 16 * q
            s(f"""v_max_f32 v{b}, v{b}, v{b + 1}
            v_sub_f32 v{b}, {f32(-MOFF)}, v{b}
            v_cvt_pk_bf16_f32 v{b}, v{b}, 0
            v_cndmask_b32 v{vQ2 + 4 * q}, v{vQ2 + 4 * q}, v{b}, s[{sMASK}:{sMASK + 1}]
            v_mov_b32 v{vQ2 + 4 * q + 3}, v{vQ2 + 4 * q}""")
        s.extend(self.qk(0, 0, 0))
        for r in range(vS_ + 48, vS_ + 64):
            s(f"v_mov_b32 v{r}, 0")
        per = 81 * self.C
        s(f"""s_mov_b32 s{sIT}, 0
        s_add_u32 s{sINC}, s{sC1}, {2 * KVST}
        s_mov_b32 s{sHI}, s{sM0W}
        s_lshl_b32 s{sT0}, s{sR}, 2
        s_add_u32 s{sT0}, s{sT0}, 128
        s_cmp_eq_u32 s{sW}, 0
        s_cselect_b32 s{sPOL}, s{sT0}, {OOB}
        s_lshl_b32 s{sPFO}, s{sE2}, 2
        s_add_u32 s{sPFO}, s{sPFO}, s{sW}
        s_mul_i32 s{sPFO}, s{sPFO}, {per * 128}
        v_lshlrev_b32 v{vPF}, 7, v{vL}
        v_mov_b32 v{vT1}, {OOB}
        v_cmp_gt_u32 vcc, {(per + 5) // 6}, v{vL}
        s_nop 1
        v_cndmask_b32 v{vPF}, v{vT1}, v{vPF}, vcc
        .p2align 3""")
        a = self.seg("attloop")
        a("L_att:")
        for tau in range(64):
            kt, q = tau // 4, tau % 4
            ms = list(self.qk((tau + 1) % 4, (tau + 1) % 4, (tau + 1) // 4)) + list(self.pv((tau - 1) % 4, (tau - 1) % 4, ((tau - 1) // 4) % 16))
            ex = [[], [], [], []]
            k1, k2, vv = self.kvreads((kt + 1) % 16)
            newstage = (kt + 1) % 8 == 0
            if q == 0:
                if newstage:
                    sg = (kt + 1) // 8 % 2
                    ex[0] += [Ins("s_waitcnt vmcnt(0)"), Ins("s_barrier", need=[f"kv{sg}", "lds:kvr"] + (["hst"] if sg == 1 else []))]
                    if sg == 1:
                        ex[0] += [Ins(f"buffer_atomic_add v{vONE}, v{vFLG}, {srd(sDBG)}, s{sPOL} offen sc1", tag="arr")]
                ex[0].append(k1)
                if k2:
                    ex[2].append(k2)
                if newstage:
                    ex[2].insert(0, Ins(f"s_add_u32 m0, s{sC1}, {KVS0 + KVST * (1 - sg)}"))
                    ex[3] += [Ins(f"s_mov_b32 s{sPOL}, {OOB}")] if sg == 1 else []
                    ex[3].append(Ins(f"buffer_load_dwordx4 v{vL16}, {srd(sWS)}, s{sINC} offen sc1 lds", tag=f"kv{1 - sg}"))
            if q == 1:
                ex[0].append(vv[0])
                ex[2].append(vv[1])
                if newstage:
                    ex[3].append(Ins(f"buffer_load_dwordx4 v{vL16}, {srd(sWS)}, s{sINC} offen offset:1024 sc1 lds", tag=f"kv{1 - sg}"))
            if q == 2:
                if newstage:
                    ex[0].append(Ins(f"buffer_load_dwordx4 v{vL16}, {srd(sWS)}, s{sINC} offen offset:2048 sc1 lds", tag=f"kv{1 - sg}"))
                    ex[2].append(Ins(f"buffer_load_dwordx4 v{vL16}, {srd(sWS)}, s{sINC} offen offset:3072 sc1 lds", tag=f"kv{1 - sg}"))
                ex[3].append(Ins("s_waitcnt lgkmcnt(0)"))
            if q == 3 and newstage:
                ex[0].append(Ins(f"s_add_u32 m0, s{sC1}, {KVS0 + KVST * (1 - sg) + 4096}"))
                ex[2] += [Ins(f"s_add_u32 s{sA}, s{sINC}, 4096"),
                          Ins(f"buffer_load_dwordx4 v{vL16}, {srd(sWS)}, s{sA} offen sc1 lds", tag=f"kv{1 - sg}")]
                ex[3].append(Ins(f"s_add_u32 s{sINC}, s{sINC}, {KVST}"))
            if kt % 8 in (0, 1) and q == 3:
                ex[0].append(Ins(f"s_mov_b32 m0, s{sHI}"))
                ex[2] += [Ins(f"s_add_u32 s{sHI}, s{sHI}, 4096"), Ins(f"buffer_load_dwordx4 v{vWM}, {srd(sWO)}, s{sC0} offen lds", tag="wo")]
                ex[3].append(Ins(f"s_add_u32 s{sC0}, s{sC0}, {36 * 1152}"))
            if kt == 2 and q == 2:
                ex[0].append(Ins(f"s_lshl_b32 s{sT0}, s{sIT}, 12"))
                ex[2].append(Ins(f"s_add_u32 s{sT0}, s{sT0}, s{sM0W}"))
            if kt == 2 and q == 3:
                ex[0].append(Ins(f"s_add_u32 m0, s{sT0}, {2 * SLOT}"))
                ex[2] += [Ins(f"s_add_u32 s{sIT}, s{sIT}, 1"), Ins(f"buffer_load_dwordx4 v{vWN}, {srd(sWO)}, s{sSTN} offen lds", tag="wo")]
                ex[3].append(Ins(f"s_add_u32 s{sSTN}, s{sSTN}, {4 * 36 * 1152}"))
            if self.wpf and kt in (3, 10) and q == 3:
                ex[0].append(Ins(f"buffer_load_dword v{vT3}, v{vPF}, {srd(sD)}, s{sPFO} offen", tag="pf"))
                ex[2].append(Ins(f"s_add_u32 s{sPFO}, s{sPFO}, {((per + 5) // 6) * 128}"))
            if tau == 63:
                ex[3].append(Ins(f"s_cmp_lt_u32 s{sIT}, 4"))
            sb = vS_ + 16 * (tau % 4)
            for m in range(4):
                a.add(ms[m])
                a.extend(ex[m])
                for e in range(4):
                    a(f"v_exp_f32 v{sb + 4 * m + e}, v{sb + 4 * m + e}")
        a("s_cbranch_scc1 L_att")
        s = self.seg("attend")
        s("s_nop 0")
        s.extend(self.pv(3, 3, 15))
        self.stamp(s, 4)
        s(f"""v_lshlrev_b32 v{vINB}, 2, v{vL}
        v_mov_b32 v{vT1}, {OOB}
        v_cndmask_b32 v{vINB}, v{vINB}, v{vT1}, s[{sMASK}:{sMASK + 1}]
        v_and_b32 v{vT0}, 15, v{vL}
        s_lshl_b32 s{sT0}, s{sW}, 5
        v_add_u32 v{vT0}, s{sT0}, v{vT0}
        v_mul_u32_u24 v{vT0}, 1152, v{vT0}
        v_lshrrev_b32 v{vT1}, 4, v{vL}
        v_lshl_add_u32 v{vOA}, v{vT1}, 3, v{vT0}
        s_mov_b32 s{sT0}, {f32(2.0 ** -105)}
        s_mov_b32 s{sT1}, {f32(2.0 ** 120)}
        s_mov_b64 s[{sMK2}:{sMK2 + 1}], 0""")
        for q in range(4):
            o = vO_ + 16 * q
            t = vS_ + 4 * q
            s(f"""v_cndmask_b32 v{t + 2}, v{o + 8}, v{o + 10}, s[{sMASK}:{sMASK + 1}]
            v_cndmask_b32 v{t + 3}, v{o + 9}, v{o + 10}, s[{sMASK}:{sMASK + 1}]
            v_min3_f32 v{t}, abs(v{t + 2}), abs(v{t + 3}), v{o + 10}
            v_add_f32 v{t + 1}, abs(v{t + 2}), abs(v{t + 3})
            v_add_f32 v{t + 1}, v{t + 1}, v{o + 10}""")
            for j in range(0, 8, 2):
                s(f"""v_min3_f32 v{t}, v{t}, abs(v{o + j}), abs(v{o + j + 1})
                v_add_f32 v{t + 2}, abs(v{o + j}), abs(v{o + j + 1})
                v_add_f32 v{t + 1}, v{t + 1}, v{t + 2}""")
            s(f"""v_cmp_nle_f32 vcc, s{sT0}, v{t}
            s_nop 0
            s_or_b64 s[{sMK2}:{sMK2 + 1}], s[{sMK2}:{sMK2 + 1}], vcc
            v_cmp_ngt_f32 vcc, s{sT1}, v{t + 1}
            s_nop 0
            s_or_b64 s[{sMK2}:{sMK2 + 1}], s[{sMK2}:{sMK2 + 1}], vcc""")
        if self.forcefb:
            s(f"s_or_b64 s[{sMK2}:{sMK2 + 1}], s[{sMK2}:{sMK2 + 1}], 1")
        s("s_cbranch_scc1 L_fb")
        s = self.seg("opub")
        s(f"""L_fbdone:
        s_lshl_b32 s{sT0}, s{sR}, 2
        s_add_u32 s{sT0}, s{sT0}, s{sW}
        s_mul_i32 s{sC1}, s{sT0}, 36864
        s_add_u32 s{sC1}, s{sC1}, {WS_OM}
        s_lshl_b32 s{sT0}, s{sS}, 11
        s_add_u32 s{sT0}, s{sT0}, s{sC1}
        s_add_u32 s{sT1}, s{sT0}, 18432
        s_lshl_b32 s{sT2}, s{sS}, 8
        s_add_u32 s{sT2}, s{sT2}, s{sC1}
        s_add_u32 s{sT2}, s{sT2}, 16384
        s_add_u32 s{sT3}, s{sT2}, 18432
        v_and_b32 v{vT0}, 15, v{vL}
        v_lshrrev_b32 v{vT1}, 4, v{vL}
        v_lshlrev_b32 v{vT1}, 2, v{vT1}
        v_lshl_add_u32 v{vT0}, v{vT0}, 4, v{vT1}
        v_mov_b32 v{vT1}, {OOB}
        v_cndmask_b32 v{vT0}, v{vT0}, v{vT1}, s[{sMASK}:{sMASK + 1}]""")
        for q in range(4):
            s(f"v_rcp_f32 v{vO_ + 16 * q + 10}, v{vO_ + 16 * q + 10}")
        for q in range(4):
            o = vO_ + 16 * q
            u, hp = q // 2, q % 2
            s(f"v_mul_f32 v{o + 10}, {f32(ALPHA)}, v{o + 10}")
            for j in range(10):
                s(f"v_mul_f32 v{o + j}, v{o + j}, v{o + 10}")
            for j in range(5):
                s(f"v_cvt_pk_bf16_f32 v{o + j}, v{o + 2 * j}, v{o + 2 * j + 1}")
            s(f"buffer_store_dwordx4 {vr(o)}, v{vL16}, {srd(sWS)}, s{sT0 + u} offen offset:{1024 * hp} sc1", tag="ost")
            s(f"buffer_store_dword v{o + 4}, v{vT0}, {srd(sWS)}, s{sT2 + u} offen offset:{8 * hp} sc1", tag="ost")
        vXR = 32
        s(f"""s_lshl_b32 s{sC0}, s{sS}, 7
        s_add_u32 s{sINC}, s{sC0}, 18432
        s_and_b32 s{sSTN}, s{sS}, 3
        s_lshl_b32 s{sSTN}, s{sSTN}, 5
        s_lshr_b32 s{sT0}, s{sS}, 2
        s_mul_i32 s{sT0}, s{sT0}, 18432
        s_add_u32 s{sSTN}, s{sSTN}, s{sT0}""")
        for j in range(8):
            ct, u = j // 2, j % 2
            s(f"buffer_load_dwordx2 {vr(vXR + 2 * j, 2)}, v{vOA}, {srd(sX)}, s{sINC if u else sC0} offen offset:{32 * ct}", tag="xr")
        s(f"buffer_load_dwordx2 {vr(vXR + 16, 2)}, v{vOA}, {srd(sX)}, s{sSTN} offen offset:1024", tag="xr")
        s(f"""s_mul_i32 s{sST}, s{sR}, {8 * 9 * 16384}
        s_lshl_b32 s{sT0}, s{sW}, 12
        s_add_u32 s{sST}, s{sST}, s{sT0}
        s_add_u32 s{sST}, s{sST}, {WS_PART}
        s_add_u32 s{sFLN}, s{sST}, {8 * 16384}
        s_lshl_b32 s{sT0}, s{sS}, 14
        s_add_u32 s{sST}, s{sST}, s{sT0}
        s_add_u32 s{sT0}, s{sS}, 5
        s_and_b32 s{sT0}, s{sT0}, 7
        s_lshl_b32 s{sMK2}, 0x0f0f, s{sT0}
        s_and_b32 s{sMK2}, s{sMK2}, 0xff00
        s_mov_b32 s{sMK2 + 1}, 0
        v_lshlrev_b32 v{vT0}, 9, v{vL}
        v_cmp_gt_u32 vcc, 8, v{vL}
        s_lshl_b32 s{sT2}, s{sS}, 9
        s_sub_u32 s{sT2}, s{sFL}, s{sT2}
        v_cndmask_b32 v{vT0}, v{vT1}, v{vT0}, vcc
        s_lshl_b32 s{sT0}, s{sS}, 2
        s_add_u32 s{sT2}, s{sT2}, s{sT0}
        s_waitcnt vmcnt(9)""")
        s(f"buffer_store_dword v{vONE}, v{vT0}, {srd(sWS)}, s{sT2} offen sc1", need=["ost"])
        self.stamp(s, 5)
        self.spin("w_pm0", f"s[{sMK2}:{sMK2 + 1}]")

        def pload(s, i0):
            for i in range(4):
                s(f"""s_sub_u32 s{sT0}, s{sS}, {i0 + i}
                s_and_b32 s{sT0}, s{sT0}, 7
                s_mul_i32 s{sT0}, s{sT0}, {9 * 16384}
                s_add_u32 s{sT0}, s{sT0}, s{sST}""")
                for k in range(4):
                    s(f"buffer_load_dwordx4 {vr(vS_ + 16 * i + 4 * k)}, v{vL16}, {srd(sWS)}, s{sT0} offen offset:{1024 * k} sc1", tag=f"pl{i}")

        def pacc(s, i, first):
            for j in range(8):
                ct, u = j // 2, j % 2
                p = vS_ + 16 * i + 8 * (ct // 2) + 4 * u + 2 * (ct % 2)
                for e in range(2):
                    c = vG + 4 * j + 2 * e
                    if first:
                        s(f"v_lshlrev_b32 v{c}, 16, v{p + e}\nv_and_b32 v{c + 1}, 0xffff0000, v{p + e}")
                    else:
                        s(f"""v_lshlrev_b32 v{vT0}, 16, v{p + e}
                        v_and_b32 v{vT1}, 0xffff0000, v{p + e}
                        v_pk_add_f32 {vr(c, 2)}, {vr(c, 2)}, {vr(vT0, 2)}""")

        s = self.seg("pl0")
        pload(s, 0)
        vXU = 96
        for j in range(9):
            d = vXU + 4 * j if j < 8 else vXE
            for e in range(2):
                s(f"v_lshlrev_b32 v{d + 2 * e}, 16, v{vXR + 2 * j + e}\nv_and_b32 v{d + 2 * e + 1}, 0xffff0000, v{vXR + 2 * j + e}")
        self.spin("w_o", "0xff")
        s = self.seg("ogat")
        self.stamp(s, 6)
        gl = []
        for h in range(2):
            for u in range(2):
                for i in range(9):
                    n = 18 * u + 9 * h + i
                    gl.append([Ins(f"s_add_u32 s{sA}, s{sC1}, {1024 * n}"),
                               Ins(f"buffer_load_dwordx4 {xn(u, 9 * h + i)}, v{vL16}, {srd(sWS)}, s{sA} offen sc1", tag=f"og{2 * h + u}")])
        for i in range(4):
            for q in gl[9 * i:9 * i + 9]:
                s.extend(q)
            pacc(s, i, i == 0)
        vRN = 28
        s(f"""v_lshrrev_b32 v{vT0}, 2, v{vL}
        v_lshlrev_b32 v{vT0}, 5, v{vT0}
        v_and_b32 v{vT1}, 3, v{vL}
        v_lshl_add_u32 v{vT0}, v{vT1}, 3, v{vT0}
        v_add_u32 v{vRN}, {2 * SLOT}, v{vT0}""")
        tf = Timeline()
        xb = lambda h: (lambda u, i: xn(u, 9 * h + i))
        R = []
        for h in range(2):
            self.std_mfmas(tf, 4 * h, 72 * h, vG, xb(h), False)
            R += self.std_reads(4 * h, 72 * h, h, "fr")
        for h in range(2):
            for i in range(9):
                for hh in range(2):
                    ins = Ins(f"ds_read_b64_tr_b16 {ar(frag(8 + h, i) + 2 * hh, 2)}, v{vRN} offset:{1024 * (9 * h + i) + 512 * hh}", tag="fr")
                    g0 = 144 + 18 * h
                    R.append(Item("r", ins, g0 - 27 + i, earliest=g0 - 27 + i))
        tf.gap(-1).post.append(Ins("s_waitcnt vmcnt(27)"))
        tf.gap(8).shadow.append(Ins("s_waitcnt vmcnt(18)"))
        tf.gap(71).shadow.append(Ins("s_waitcnt vmcnt(9)"))
        tf.gap(80).shadow.append(Ins("s_waitcnt vmcnt(0)"))
        tf.fill(-DD, 148, R, [], flushR=10 ** 9, lagmax=0.0)
        tf.insert_lgkm_waits(-DD, 144, [])
        s.extend(tf.emit(-DD, 148))
        s(f"""s_xor_b32 s{sMK2}, s{sMK2}, 0xff00
        s_waitcnt lgkmcnt(0)
        s_bitcmp1_b32 s{sS}, 2
        s_cbranch_scc1 L_xu1""")
        for u in range(2):
            k = self.seg(f"xu{u}")
            if u:
                k("L_xu1:")
            for kk in range(18):
                k(f"v_mfma_f32_16x16x32_bf16 {vr(vXA)}, {ar(frag(8 + kk // 9, kk % 9))}, {xn(u, kk)}, {'0' if kk == 0 else vr(vXA)}")
            if not u:
                k("s_branch L_xud")
        s = self.seg("xud")
        s("L_xud:")
        self.stamp(s, 7)
        self.spin("w_pm1", f"s[{sMK2}:{sMK2 + 1}]")
        s = self.seg("pl1")
        pload(s, 4)
        for i in range(4):
            s(f"s_waitcnt vmcnt({12 - 4 * i})")
            pacc(s, i, False)
        s(f"s_mov_b32 s{sT2}, {f32(1.0 / ALPHA ** 2)}")
        for j in range(8):
            ct, u = j // 2, j % 2
            c = vG + 4 * j
            for e in range(4):
                s(f"v_fma_f32 v{c + e}, v{c + e}, s{sT2}, v{vXU + 4 * j + e}")
            s(f"v_cvt_pk_bf16_f32 v{c}, v{c}, v{c + 1}\nv_cvt_pk_bf16_f32 v{c + 1}, v{c + 2}, v{c + 3}")
            s(f"buffer_store_dwordx2 {vr(c, 2)}, v{vOA}, {srd(sOUT)}, s{sINC if u else sC0} offen offset:{32 * ct}")
        s(f"""s_and_b32 s{sT0}, s{sS}, 2
        s_lshr_b32 s{sT1}, s{sS}, 2
        s_add_u32 s{sT0}, s{sT0}, s{sT1}
        s_lshl_b32 s{sT0}, s{sT0}, 10
        s_and_b32 s{sT1}, s{sS}, 1
        s_lshl_b32 s{sT1}, s{sT1}, 3
        s_add_u32 s{sT0}, s{sT0}, s{sT1}
        s_add_u32 s{sFLN}, s{sFLN}, s{sT0}""")
        self.stamp(s, 8)
        self.spin("w_pl", "0xff0000")
        s = self.seg("fin")
        for p in range(8):
            s(f"buffer_load_dwordx2 {vr(vS_ + 2 * p, 2)}, v{vL16}, {srd(sWS)}, s{sFLN} offen sc1")
            if p < 7:
                s(f"s_add_u32 s{sFLN}, s{sFLN}, {9 * 16384}")
        for p in range(8):
            s(f"s_waitcnt vmcnt({7 - p})")
            for e in range(2):
                s(f"""v_lshlrev_b32 v{vT0}, 16, v{vS_ + 2 * p + e}
                v_and_b32 v{vT1}, 0xffff0000, v{vS_ + 2 * p + e}
                v_pk_add_f32 {vr(vXA + 2 * e, 2)}, {vr(vXA + 2 * e, 2)}, {vr(vT0, 2)}""")
        for e in range(4):
            s(f"v_fma_f32 v{vXA + e}, v{vXA + e}, s{sT2}, v{vXE + e}")
        s(f"""v_cvt_pk_bf16_f32 v{vXA}, v{vXA}, v{vXA + 1}
        v_cvt_pk_bf16_f32 v{vXA + 1}, v{vXA + 2}, v{vXA + 3}
        buffer_store_dwordx2 {vr(vXA, 2)}, v{vOA}, {srd(sOUT)}, s{sSTN} offen offset:1024""")
        self.stamp(s, 9)
        self.stamp_flush(s)
        s("s_endpgm")

    def fallback(self):
        vM = vXA
        s = self.seg("fb0")
        s(f"""L_fb:
        s_waitcnt vmcnt(0) lgkmcnt(0)
        v_and_b32 v{vT0}, 31, v{vL}
        v_lshlrev_b32 v{vT0}, 4, v{vT0}
        v_subrev_u32 v{vT1}, {KVS0}, v{vVA}
        v_mov_b32 v{vK2 + 1}, 0
        s_mov_b32 s{sIT}, 0""")
        for q in range(4):
            s(f"v_cndmask_b32 v{vQ2 + 4 * q}, v{vQ2 + 4 * q}, 0, s[{sMASK}:{sMASK + 1}]\nv_mov_b32 v{vM + q}, 0xff800000")
        for r in range(vO_, vO_ + 64):
            s(f"v_mov_b32 v{r}, 0")

        def loads(k, withv):
            k(f"""s_lshr_b32 s{sT0}, s{sIT}, 3
            s_mul_i32 s{sT0}, s{sT0}, {KVST}
            s_and_b32 s{sT1}, s{sIT}, 7
            s_lshl_b32 s{sT2}, s{sT1}, 10
            s_add_u32 s{sT2}, s{sT2}, s{sT0}
            buffer_load_dwordx4 {vr(vK1)}, v{vL16}, {srd(sWS)}, s{sT2} offen sc1
            s_lshr_b32 s{sT2}, s{sT1}, 2
            s_mul_i32 s{sT2}, s{sT2}, 640
            s_and_b32 s{sT3}, s{sT1}, 3
            s_lshl_b32 s{sT3}, s{sT3}, 2
            s_add_u32 s{sT2}, s{sT2}, s{sT3}
            s_add_u32 s{sT2}, s{sT2}, s{sT0}
            s_add_u32 s{sT2}, s{sT2}, 18432
            buffer_load_dword v{vK2}, v{vT0}, {srd(sWS)}, s{sT2} offen sc1""")
            if withv:
                k(f"""s_mul_i32 s{sT2}, s{sT1}, 1280
                s_add_u32 s{sT2}, s{sT2}, s{sT0}
                buffer_load_dwordx4 {vr(vV_)}, v{vT1}, {srd(sWS)}, s{sT2} offen sc1
                buffer_load_dwordx4 {vr(vV_ + 4)}, v{vT1}, {srd(sWS)}, s{sT2} offen offset:640 sc1""")
            k("s_waitcnt vmcnt(0)")
            for q in range(4):
                k.extend(self.qk(q, q, 0))
            k("s_nop 11")

        k = self.seg("fb1")
        k("L_fb1:")
        loads(k, False)
        for q in range(4):
            for j in range(0, 16, 2):
                k(f"v_max3_f32 v{vM + q}, v{vM + q}, v{vS_ + 16 * q + j}, v{vS_ + 16 * q + j + 1}")
        k(f"""s_add_u32 s{sIT}, s{sIT}, 1
        s_cmp_lt_u32 s{sIT}, 64
        s_cbranch_scc1 L_fb1""")
        k = self.seg("fb2")
        for q in range(4):
            k(f"v_mov_b32 v{vS_ + q}, v{vM + q}")
        k("s_nop 0")
        for q in range(4):
            k(f"v_permlane32_swap_b32 v{vM + q}, v{vS_ + q}")
        for q in range(4):
            k(f"v_max_f32 v{vM + q}, v{vM + q}, v{vS_ + q}")
        k(f"s_mov_b32 s{sIT}, 0")
        k = self.seg("fb3")
        k("L_fb3:")
        loads(k, True)
        for q in range(4):
            for j in range(16):
                k(f"v_sub_f32 v{vS_ + 16 * q + j}, v{vS_ + 16 * q + j}, v{vM + q}")
            for j in range(16):
                k(f"v_exp_f32 v{vS_ + 16 * q + j}, v{vS_ + 16 * q + j}")
        k("s_nop 1")
        for q in range(4):
            k.extend(self.pv(q, q, 0))
        k(f"""s_add_u32 s{sIT}, s{sIT}, 1
        s_cmp_lt_u32 s{sIT}, 64
        s_cbranch_scc1 L_fb3""")
        k = self.seg("fb4")
        k("s_nop 11\ns_branch L_fbdone")


def build(path, C=1, stamps=False, xpf=True, wpf=True, forcefb=False, kvpoll=300, kvchk=356, verbose=True):
    g = Gen1(C=C, stamps=stamps, xpf=xpf, wpf=wpf)
    g.forcefb = forcefb
    g.kvpoll, g.kvchk = kvpoll, kvchk
    g.prologue()
    g.p0()
    g.p1()
    probs = []
    t0 = ["entry", "xload", "ln", "p0pre"] + ["aloop"] * 7 + ["aexit", "aswitch", "aswitch2", "aloop", "aexit", "b0"] + ["bloop"] * 4 + ["bend"]
    probs += check_trace(g.trace(t0), "P0")
    for u in range(2):
        for o, eps in ((0, ["epk", "epkm"]), (0, ["epk", "epkx"]), (1, ["epv", "epvs"]), (1, ["epv", "epvx", "epvs"])):
            for fb in ([], ["fb0", "fb1", "fb1", "fb2", "fb3", "fb3", "fb4"]):
                t1 = ["entry", "kvdma", "xload", "kvread", "ln", "p1a", f"kv{u}{o}", "p1b"] + eps + ["p1c", "p1gemm", "attpre"] + ["attloop"] * 4 + \
                     ["attend"] + fb + ["opub", "w_pm0", "pl0", "w_o", "ogat", f"xu{u}", "xud", "w_pm1", "pl1", "w_pl", "fin"]
                probs += check_trace(g.trace(t1), "P1")
    seen = set()
    for p in probs:
        key = p.split("'", 1)[1]
        if key not in seen:
            seen.add(key)
            print(p)
    if verbose:
        for s in g.segs:
            n = sum(1 for i in s.ins if i.kind != "label")
            nm = sum(1 for i in s.ins if i.kind == "mfma")
            if n > 40:
                print(f"{s.name:10s} ins {n:5d} mfma {nm:4d} est {est_cycles(s.ins)}")
    open(path, "w").write(g.text())
    return len(seen)


if __name__ == "__main__":
    import argparse
    ap = argparse.ArgumentParser()
    ap.add_argument("-o", default="cdna_kernels/" + NAME + ".s")
    ap.add_argument("-C", type=int, default=1)
    ap.add_argument("--stamps", action="store_true")
    ap.add_argument("--noxpf", action="store_true")
    ap.add_argument("--nowpf", action="store_true")
    ap.add_argument("--fb", action="store_true")
    a = ap.parse_args()
    n = build(a.o, a.C, a.stamps, not a.noxpf, not a.nowpf, a.fb)
    print("problems:", n)
```

```python
import re

TRANS = ("v_exp_f32", "v_rcp_f32", "v_rsq_f32", "v_log_f32", "v_sqrt_f32")


def regs_of(tok):
    tok = tok.strip()
    tok = tok.lstrip("-")
    m = re.fullmatch(r"abs\((.*)\)", tok)
    if m:
        tok = m.group(1)
    m = re.fullmatch(r"([vas])(\d+)", tok)
    if m:
        return [m.group(1) + m.group(2)]
    m = re.fullmatch(r"([vas])\[(\d+):(\d+)\]", tok)
    if m:
        return [m.group(1) + str(i) for i in range(int(m.group(2)), int(m.group(3)) + 1)]
    if tok in ("vcc", "exec", "m0"):
        return [tok]
    return []


class Ins:
    __slots__ = ("text", "op", "kind", "rd", "wr", "tag", "passes", "srcc", "ab", "vm", "lg", "nop", "need", "idx", "auto", "dpp")

    def __init__(self, text, tag=None, need=None, idx=None, auto=None):
        self.text = text
        self.auto = auto
        self.tag = tag
        self.need = need
        self.idx = idx
        t = text.split(";")[0].strip()
        self.dpp = "_dpp" in t
        t = re.sub(r"\s(quad_perm|op_sel|op_sel_hi):\[[^\]]*\]", "", t)
        self.vm = self.lg = None
        self.nop = 1
        self.passes = 0
        self.srcc = []
        self.ab = []
        self.rd = []
        self.wr = []
        if t.endswith(":") or t.startswith(".") or not t:
            self.op = ""
            self.kind = "label"
            self.nop = 0
            return
        parts = t.split(None, 1)
        op = self.op = parts[0]
        rest = parts[1] if len(parts) > 1 else ""
        ops = [o.strip() for o in rest.split(",")]
        mods = ""
        if ops:
            sp = ops[-1].split(None, 1)
            if sp:
                ops[-1] = sp[0]
                mods = sp[1] if len(sp) > 1 else ""
        R = [regs_of(o) for o in ops]
        flat = lambda l: [x for y in l for x in y]
        if op.startswith("v_mfma") or op.startswith("v_smfmac"):
            self.kind = "mfma"
            self.passes = 8 if "32x32" in op else 4
            self.wr = R[0]
            if op.startswith("v_smfmac"):
                self.srcc = R[0]
                self.ab = R[1] + R[2] + R[3]
            else:
                self.srcc = R[3]
                self.ab = R[1] + R[2]
            self.rd = self.ab + self.srcc
        elif op.startswith("ds_read"):
            self.kind = "lds"
            self.wr = R[0]
            self.rd = R[1]
        elif op.startswith("ds_write"):
            self.kind = "lds"
            self.rd = flat(R)
        elif op.startswith("buffer_load") or op.startswith("global_load"):
            self.kind = "vmem"
            if re.search(r"\blds\b", mods):
                self.rd = flat(R) + ["m0"]
            else:
                self.wr = R[0]
                self.rd = flat(R[1:])
        elif op.startswith("buffer_store") or op.startswith("buffer_atomic"):
            self.kind = "vmem"
            self.rd = flat(R)
        elif op == "s_waitcnt":
            self.kind = "wait"
            m = re.search(r"vmcnt\((\d+)\)", t)
            if m:
                self.vm = int(m.group(1))
            m = re.search(r"lgkmcnt\((\d+)\)", t)
            if m:
                self.lg = int(m.group(1))
        elif op == "s_nop":
            self.kind = "salu"
            self.nop = int(ops[0]) + 1
        elif op.startswith("s_load") or op in ("s_memtime", "s_memrealtime"):
            self.kind = "smem"
            self.wr = R[0]
            self.rd = flat(R[1:])
        elif op.startswith("s_cmp") or op.startswith("s_bitcmp") or op.startswith("s_cbranch") or op in ("s_branch", "s_barrier", "s_endpgm", "s_sleep", "s_setprio", "s_set_gpr_idx_off"):
            self.kind = "salu"
            self.rd = flat(R)
            if op in ("s_cbranch_vccnz", "s_cbranch_vccz"):
                self.rd = ["vcc"]
        elif op == "s_set_gpr_idx_on":
            self.kind = "salu"
            self.rd = R[0]
            self.wr = ["m0"]
        elif op.startswith("s_"):
            self.kind = "salu"
            self.wr = R[0]
            self.rd = flat(R[1:])
        elif op.startswith("v_"):
            self.kind = "trans" if op.replace("_e32", "").replace("_e64", "") in TRANS else "valu"
            if op.startswith("v_permlane"):
                self.wr = R[0] + R[1]
                self.rd = R[0] + R[1]
            elif op.startswith("v_dot2c") or op.startswith("v_fmac"):
                self.wr = R[0]
                self.rd = flat(R)
            elif op.startswith("v_cndmask") and len(ops) == 4:
                self.wr = R[0]
                self.rd = flat(R[1:])
            else:
                self.wr = R[0]
                self.rd = flat(R[1:])
        else:
            raise ValueError("unknown instruction: " + text)

    def cost(self):
        if self.kind == "trans":
            return 8
        return 4


class Seg:
    def __init__(self, name):
        self.name = name
        self.ins = []

    def __call__(self, text, **kw):
        for l in text.split("\n"):
            l = l.strip()
            if l:
                self.ins.append(Ins(l, **kw))
        return self

    def add(self, i):
        self.ins.append(i)

    def extend(self, l):
        self.ins.extend(l)

    def text(self):
        out = []
        for i in self.ins:
            out.append(i.text if i.kind == "label" else "    " + i.text)
        return "\n".join(out) + "\n"


def check_trace(trace, name="", verbose=False):
    probs = []
    vmq = []
    lgq = []
    pend_vm = {}
    pend_lg = {}
    pos = 0
    last_valu_wr = {}
    last_mfma_wr = {}
    last_srcc_rd = {}
    last_salu_m0 = -100
    last_store_data = {}
    done_tags = set()
    seen_tags = set()
    maxvm = 0
    scc = None
    NOSCC = ("s_mov", "s_cselect", "s_mul_i32", "s_nop", "s_cbranch", "s_branch", "s_barrier", "s_sleep", "s_set_gpr", "s_endpgm", "s_setprio", "s_getreg", "s_getpc")

    def P(i, n, msg):
        probs.append(f"[{name}] #{n} '{i.text}': {msg}")

    for n, i in enumerate(trace):
        if i.kind == "label":
            continue
        here = pos
        isvalu = i.kind in ("valu", "trans")
        wr = list(i.wr)
        if i.idx:
            wr = [r[0] + str(int(r[1:]) + o) for r in i.wr for o in i.idx]
        for r in i.rd + wr:
            if r in pend_vm and not (i.kind == "vmem" and r in wr and r not in i.rd):
                P(i, n, f"{r} has vm load pending from '{pend_vm[r].text}'")
                del pend_vm[r]
            if r in pend_lg and not (i.kind == "lds" and r in wr and r not in i.rd):
                P(i, n, f"{r} has lgkm load pending from '{pend_lg[r].text}'")
                del pend_lg[r]
        if i.need:
            for t in i.need:
                if t.startswith("lds:"):
                    tg, _, k = t[4:].partition("/")
                    if sum(1 for q in lgq if q.tag == tg) > int(k or 0):
                        P(i, n, f"lds tag {t} still outstanding")
                elif t.startswith("old:"):
                    tg, k = t[4:].split("/")
                    c = sum(1 for q in vmq if q.tag == tg)
                    if c > int(k):
                        P(i, n, f"vm tag {tg}: {c} outstanding > {k}")
                else:
                    if any(q.tag == t for q in vmq):
                        P(i, n, f"vm tag {t} still outstanding")
                    if t not in seen_tags:
                        P(i, n, f"vm tag {t} never issued")

        def dist(d, r):
            return here - d[r][0] if r in d else 1000

        if i.kind == "mfma":
            for r in i.rd:
                if dist(last_valu_wr, r) < 2:
                    P(i, n, f"VALU write {r} -> MFMA read needs 2")
            for r in i.ab:
                if r in last_mfma_wr:
                    need = 8 if last_mfma_wr[r][1].passes == 4 else 12
                    if dist(last_mfma_wr, r) < need:
                        P(i, n, f"MFMA write {r} -> MFMA A/B read needs {need}, has {dist(last_mfma_wr, r)}")
            for r in set(i.srcc + i.wr):
                if r in last_mfma_wr:
                    p = last_mfma_wr[r][1]
                    exact = (p.wr == (i.srcc if r in i.srcc else i.wr)) and p.passes == i.passes
                    if not exact:
                        need = 6 if p.passes == 4 else 10
                        if dist(last_mfma_wr, r) < need:
                            P(i, n, f"MFMA write {r} -> overlapped SrcC/D needs {need}")
        if isvalu or i.kind in ("vmem", "lds"):
            for r in i.rd + wr:
                if r in last_mfma_wr:
                    need = 8 if last_mfma_wr[r][1].passes == 4 else 12
                    if dist(last_mfma_wr, r) < need:
                        P(i, n, f"MFMA write {r} -> access needs {need}, has {dist(last_mfma_wr, r)}")
        if isvalu:
            for r in wr:
                if r in last_srcc_rd:
                    need = 3 if last_srcc_rd[r][1].passes == 4 else 7
                    if dist(last_srcc_rd, r) < need:
                        P(i, n, f"MFMA SrcC read {r} -> VALU write needs {need}")
                if dist(last_store_data, r) < 2:
                    P(i, n, f"store data {r} -> VALU write needs 2")
            for r in i.rd:
                if r in last_valu_wr:
                    p = last_valu_wr[r][1]
                    d = dist(last_valu_wr, r)
                    if p.kind == "trans" and i.kind != "trans" and d < 1:
                        P(i, n, f"trans write {r} -> VALU read needs 1")
                    if i.dpp and d < 2:
                        P(i, n, f"VALU write {r} -> DPP needs 2")
                    if i.op.startswith("v_permlane") and d < 2:
                        P(i, n, f"VALU write {r} -> permlane needs 2")
                    if (i.op.startswith("v_readfirstlane") or i.op.startswith("v_readlane")) and d < 1:
                        P(i, n, f"VALU write {r} -> readlane needs 1")
                    if (r[0] == "s" or r == "vcc") and d < 2:
                        P(i, n, f"VALU write {r} -> VALU const read needs 2")
                    if p.op.startswith("v_dot") and d < 3:
                        same_c = p.op == i.op and r in i.wr
                        if not same_c:
                            P(i, n, f"dot write {r} -> read needs 3")
            for r in wr:
                if r in last_valu_wr and last_valu_wr[r][1].op.startswith("v_dot") and last_valu_wr[r][1].op != i.op and dist(last_valu_wr, r) < 3:
                    P(i, n, f"dot write {r} -> write needs 3")
        if i.kind in ("lds", "vmem") and wr:
            for r in wr:
                if dist(last_store_data, r) < 1:
                    P(i, n, f"store data {r} -> write needs 1")
        if i.kind == "vmem":
            for r in i.rd:
                if r[0] == "s" and dist(last_valu_wr, r) < 5:
                    P(i, n, f"VALU write {r} -> VMEM read needs 5")
            if "m0" in i.rd and here - last_salu_m0 < 1:
                P(i, n, "m0 write -> DMA needs 1")
        if i.kind == "salu":
            for r in i.rd:
                if (r[0] == "s" or r == "vcc") and dist(last_valu_wr, r) < 1:
                    P(i, n, f"VALU write {r} -> SALU read (pad 1+)")

        if i.op.startswith("s_cselect") or i.op.startswith("s_cbranch_scc"):
            if scc is None or not (scc.op.startswith("s_cmp") or scc.op.startswith("s_bitcmp") or scc.op in ("s_and_b64", "s_or_b64")):
                P(i, n, f"SCC last written by '{scc.text if scc else None}'")
        if i.op == "s_addc_u32" and (scc is None or scc.op != "s_add_u32"):
            P(i, n, "addc without add")
        if i.kind == "salu" and not i.op.startswith(NOSCC):
            scc = i
        pos += i.nop
        if i.kind == "wait":
            if i.vm is not None:
                while len(vmq) > i.vm:
                    q = vmq.pop(0)
                    for r in q.wr:
                        if pend_vm.get(r) is q:
                            del pend_vm[r]
            if i.lg is not None:
                if any(q.kind == "smem" for q in lgq) and i.lg != 0:
                    P(i, n, "counted lgkmcnt with SMEM outstanding")
                while len(lgq) > i.lg:
                    q = lgq.pop(0)
                    for r in q.wr:
                        if pend_lg.get(r) is q:
                            del pend_lg[r]
        elif i.kind == "vmem":
            vmq.append(i)
            maxvm = max(maxvm, len(vmq))
            if len(vmq) > 63:
                P(i, n, "more than 63 vm ops outstanding")
            if i.tag:
                seen_tags.add(i.tag)
            for r in i.wr:
                pend_vm[r] = i
            if i.op.startswith("buffer_store_dwordx4") or i.op.startswith("buffer_store_dwordx3"):
                for r in regs_of(i.text.split(None, 1)[1].split(",")[0]):
                    last_store_data[r] = (pos, i)
        elif i.kind in ("lds", "smem"):
            lgq.append(i)
            for r in i.wr:
                pend_lg[r] = i
        if isvalu:
            for r in wr:
                last_valu_wr[r] = (pos, i)
                last_mfma_wr.pop(r, None)
        elif i.kind == "mfma":
            for r in i.wr:
                last_mfma_wr[r] = (pos, i)
                last_valu_wr.pop(r, None)
            for r in i.srcc:
                last_srcc_rd[r] = (pos, i)
        elif i.kind == "salu":
            for r in i.wr:
                last_valu_wr.pop(r, None)
            if "m0" in i.wr:
                last_salu_m0 = pos
        else:
            for r in i.wr:
                last_valu_wr.pop(r, None)
                last_mfma_wr.pop(r, None)
    return probs


def est_cycles(ins):
    t = 0
    pipe = 0
    prev = None
    shadow = False
    for i in ins:
        if i.kind == "label":
            continue
        if i.kind == "mfma":
            t = max(t, pipe)
            pipe = t + 4 * i.passes
            c = 12 if i.op.startswith("v_smfmac") else (4 if "1k" in i.op else 8)
            t += c
            shadow = c >= 8
        else:
            if i.kind in ("salu", "wait") and shadow and i.op not in ("s_barrier",) and i.nop == 1:
                pass
            elif i.op == "s_barrier":
                t += 36
            elif i.op == "s_nop":
                t += 4 * i.nop
            else:
                t += i.cost()
                if i.kind in ("lds", "vmem") and prev is not None and prev.kind in ("valu", "trans"):
                    t += 8
                if i.op.startswith("buffer_store_dwordx4"):
                    t += 16
            shadow = False
        prev = i
    return max(t, pipe)


def auto_vm(traces):
    best = {}
    for tr in traces:
        ops = []
        for i in tr:
            if i.kind == "vmem":
                ops.append(i.tag)
            elif i.kind == "wait" and i.auto:
                last = -1
                for k in range(len(ops) - 1, -1, -1):
                    if ops[k] in i.auto:
                        last = k
                        break
                n = min(63, len(ops) - 1 - last) if last >= 0 else 63
                best[id(i)] = (i, min(n, best.get(id(i), (i, 63))[1]))
    for i, n in best.values():
        i.vm = n
        i.text = re.sub(r"vmcnt\(\d+\)", f"vmcnt({n})", i.text)
```

```python
import math, struct, sys
from asmlib import Ins, Seg, check_trace, est_cycles, auto_vm
from sched import Timeline, Item, LAT

NAME = "parallel_sum__grouped_kv_mqa__geglu_ffn__prompt"


def f32(x):
    return "0x%08x" % struct.unpack("<I", struct.pack("<f", x))[0]


LOG2E = 1.4426950408889634
K0 = 2 * LOG2E * math.sqrt(2 / math.pi)
K1 = K0 * 0.044715
ALPHA = K1 ** (1.0 / 3.0)
K0P = K0 / ALPHA
CK = LOG2E / math.sqrt(18.0) / ALPHA ** 2
MOFF = 84.0
OOB = 0x40000000

SLOT = 36864
KVS0, KVS1, KVST = 110592, 131072, 20480
WS_KV, WS_FLAG, WS_HX, WS_OM, WS_PART, WS_STAMP = 0, 0x40000, 0x80000, 0x300000, 0x600000, 0x1C00000
WS_SIZE = 0x2000000
DD = 20

sX, sG, sU, sD, sWS, sOUT, sDBG, sQ, sKV, sWO, sPF = 8, 12, 16, 20, 24, 28, 32, 36, 40, 44, 72
sW, sR, sS, sROLE, sE1, sE2 = 76, 77, 78, 79, 80, 81
sM0W, sA, sC0, sC1, sINC, sIT, sHI, sNK, sT0, sT1, sT2, sT3 = 82, 83, 84, 85, 86, 87, 88, 89, 90, 91, 92, 93
sST, sFL, sPFO, sPOL, sSTN, sFLN = 94, 95, 96, 97, 98, 99
sUN, sINU = 48, 51
sMASK = 4
sMK2 = 6


def srd(n):
    return f"s[{n}:{n + 3}]"


vL, vT0, vT1, vT2, vT3 = 1, 2, 3, 4, 5
vL16, vFLG = 6, 7
vRB = 8
vDM, vPF, vPOL, vONE = 24, 25, 26, 27
vTMP = 20
vDU = 28
vGL, vG, vU, vH = 32, 64, 96, 128
vLO, vRAW = 40, 112
aXN, aFR, aH0 = 0, 144, 216


def vr(a, n=4):
    return f"v[{a}:{a + n - 1}]" if n > 1 else f"v{a}"


def ar(a, n=4):
    return f"a[{a}:{a + n - 1}]" if n > 1 else f"a{a}"


def xn(u, k):
    return ar(aXN + 4 * (18 * u + k))


def frag(gam, i):
    return aFR + 36 * (gam % 2) + 4 * i


class Gen:
    def __init__(self, C=1, stamps=False, xpf=True, wpf=True, **kw):
        self.o = kw
        self.C = C
        self.stamps = stamps
        self.xpf = xpf
        self.wpf = wpf
        self.segs = []
        self.nstamp = {}

    def seg(self, name):
        s = Seg(name)
        self.segs.append(s)
        return s

    def stamp(self, s, k):
        if not self.stamps:
            return
        s(f"""s_waitcnt lgkmcnt(0)
        s_memtime s[52:53]
        s_memrealtime s[54:55]
        s_waitcnt lgkmcnt(0)
        v_writelane_b32 v0, s52, {2 * k}
        v_writelane_b32 v0, s54, {2 * k + 1}""")

    def stamp_flush(self, s):
        if not self.stamps:
            return
        s(f"""s_lshl_b32 s48, s2, 2
        s_add_u32 s48, s48, s{sW}
        s_lshl_b32 s48, s48, 8
        s_add_u32 s48, s48, {WS_STAMP}
        v_lshlrev_b32 v{vT0}, 2, v{vL}
        buffer_store_dword v0, v{vT0}, {srd(sWS)}, s48 offen""")

    def std_reads(self, gam0, pos0, slot, tag):
        R = []
        n = 0
        for ct in range(4):
            for i in range(9):
                for h in range(2):
                    f = frag(gam0 + ct, i) + 2 * h
                    off = slot * SLOT + 4096 * i + 2048 * h
                    ins = Ins(f"ds_read_b64_tr_b16 {ar(f, 2)}, v{vRB + 4 * (off // 65536) + ct} offset:{off % 65536}", tag=tag)
                    g0 = pos0 + 18 * ct
                    R.append(Item("r", ins, pos0 - DD + n, earliest=g0 - 27 + i, deadline=g0 + i - LAT - 1))
                    n += 1
        return R

    def std_mfmas(self, tl, gam0, pos0, acc, bfun, zero):
        for ct in range(4):
            for u in range(2):
                for i in range(9):
                    c = vr(acc + 4 * (2 * ct + u))
                    cin = "0" if (zero and i == 0) else c
                    tl.m[pos0 + 18 * ct + 9 * u + i] = Ins(f"v_mfma_f32_16x16x32_bf16 {c}, {ar(frag(gam0 + ct, i))}, {bfun(u, i)}, {cin}")

    def barrier(self, tl, p, vmtags, ldstag):
        g = tl.gap(p)
        g.shadow.append(Ins("s_waitcnt vmcnt(63) lgkmcnt(6)", auto=vmtags))
        g.bar.append(Ins("s_barrier", need=list(vmtags) + [f"lds:{ldstag}/6"]))

    def dmas(self, tl, stage, srdn, voff, first, inc, tag):
        for i in range(9):
            p = 72 * (stage - 3) + 6 + 8 * i
            tl.gap(p - 1).shadow.append(Ins(f"s_add_u32 m0, s{sM0W}, {(stage % 4) * SLOT + 4096 * i}"))
            tl.gap(p).shadow.append(Ins(first if (i == 0 and first) else f"s_add_u32 s{sA}, s{sA}, {inc}"))
            tl.gap(p).mem.append(Ins(f"buffer_load_dwordx4 v{voff}, {srd(srdn)}, s{sA} offen lds", tag=tag))

    def shadows(self, tl, p, seq):
        for t in seq:
            tt = t if isinstance(t, tuple) else (t,)
            while any(tl.gap(p + k).shadow for k in range(len(tt))):
                p += 1
            for x in tt:
                tl.gap(p).shadow.append(Ins(x))
                p += 1
        return p

    def gelu_items(self, base, t0, t1, idx, hreg):
        raw = []
        for j in range(8):
            rel = base + 72 + 9 * j + 8 + 4
            dl = base + 288 + 9 * j - 1
            g, t = vG + 4 * j, vGL + 4 * j
            for e in range(4):
                raw.append(("v", [Ins(f"v_fma_f32 v{t + e}, -v{g + e}, v{g + e}, s{sNK}")], rel, dl))
            for e in range(4):
                raw.append(("v", [Ins(f"v_mul_f32 v{t + e}, v{t + e}, v{g + e}")], rel, dl))
            for e in range(4):
                raw.append(("v", [Ins(f"v_exp_f32 v{t + e}, v{t + e}")], rel, dl))
            for e in range(4):
                raw.append(("v", [Ins(f"v_add_f32 v{t + e}, 1.0, v{t + e}")], rel, dl))
            for e in range(4):
                raw.append(("v", [Ins(f"v_rcp_f32 v{t + e}, v{t + e}")], rel, dl))
            for e in range(4):
                raw.append(("v", [Ins(f"v_mul_f32 v{t + e}, v{t + e}, v{g + e}")], rel, dl))
        for j in (0, 2, 4, 6, 1, 3, 5, 7):
            ct, u = j // 2, j % 2
            rel = base + 216 + 9 * j + 8 + 4
            dl = base + 288 + 144 + 9 * j - 1
            t, uu = vGL + 4 * j, vU + 4 * j
            h = hreg + 8 * (ct // 2) + 4 * u + 2 * (ct % 2)
            for e in range(4):
                raw.append(("v", [Ins(f"v_mul_f32 v{t + e}, v{t + e}, v{uu + e}")], rel, dl))
            if idx:
                offs = [16 * k for k in range(8)]
                raw.append(("x", [Ins(f"v_cvt_pk_bf16_f32 v{h + e}, v{t + 2 * e}, v{t + 2 * e + 1}", idx=offs) for e in range(2)], rel, dl))
            else:
                for e in range(2):
                    raw.append(("v", [Ins(f"v_cvt_pk_bf16_f32 v{h + e}, v{t + 2 * e}, v{t + 2 * e + 1}")], rel, dl))
        items = []
        for k, ins, rel, dl in raw:
            if k == "x":
                items.append(Item("x", ins, 0, rel, dl, pre=Ins(f"s_set_gpr_idx_on s{sHI}, 8"), post=Ins("s_set_gpr_idx_off")))
            else:
                items.append(Item("v", ins, 0, rel, dl))
        for c, i in enumerate(items):
            i.target = t0 + (t1 - t0) * c / len(items)
        return items

    def prologue(self):
        C = self.C
        s = self.seg("entry")
        s(f"""s_cmp_ge_u32 s2, 256
        s_cbranch_scc1 L_end
        s_load_dwordx16 s[48:63], s[0:1], 0
        s_load_dwordx8 s[64:71], s[0:1], 64
        v_lshrrev_b32 v{vT0}, 6, v0
        v_and_b32 v{vL}, 63, v0
        v_readfirstlane_b32 s{sW}, v{vT0}
        s_and_b32 s{sT0}, s2, 7
        s_lshr_b32 s{sT1}, s2, 3
        s_and_b32 s{sROLE}, s{sT1}, 1
        s_lshr_b32 s{sT1}, s{sT1}, 1""")
        lc = C.bit_length() - 1
        s(f"""s_and_b32 s{sS}, s{sT0}, {8 // C - 1}
        s_lshl_b32 s{sS}, s{sS}, {lc}
        s_and_b32 s{sT2}, s{sT1}, {C - 1}
        s_add_u32 s{sS}, s{sS}, s{sT2}
        s_lshl_b32 s{sE1}, s{sT2}, 1
        s_add_u32 s{sE1}, s{sE1}, s{sROLE}
        s_lshr_b32 s{sE2}, s{sT1}, {lc}
        s_lshr_b32 s{sR}, s{sT0}, {3 - lc}
        s_lshl_b32 s{sR}, s{sR}, {4 - lc}
        s_add_u32 s{sR}, s{sR}, s{sE2}
        s_lshl_b32 s{sM0W}, s{sW}, 10
        v_lshlrev_b32 v{vL16}, 4, v{vL}
        v_lshrrev_b32 v{vT0}, 3, v{vL}
        v_and_b32 v{vT1}, 7, v{vL}
        s_lshl_b32 s{sT0}, s{sW}, 5
        v_add_u32 v{vT2}, s{sT0}, v{vT0}
        v_mul_u32_u24 v{vT2}, 1152, v{vT2}
        v_lshl_add_u32 v{vTMP}, v{vT1}, 4, v{vT2}
        s_mul_i32 s{sT0}, s{sR}, 147456
        s_mul_i32 s{sT1}, s{sS}, 1152
        s_waitcnt lgkmcnt(0)""")
        self.stamp0(s)

        def mk(n, src, offreg, size, sub=False):
            if offreg is None:
                s(f"s_mov_b32 s{n}, s{src}\ns_and_b32 s{n + 1}, s{src + 1}, 0xffff")
            else:
                s(f"s_add_u32 s{n}, s{src}, s{offreg}\ns_addc_u32 s{n + 1}, s{src + 1}, 0\ns_and_b32 s{n + 1}, s{n + 1}, 0xffff")
            if sub:
                s(f"s_sub_u32 s{n + 2}, {size}, s{offreg}")
            else:
                s(f"s_mov_b32 s{n + 2}, {size}")
            s(f"s_mov_b32 s{n + 3}, 0x20000")

        mk(sX, 48, sT0, 147456)
        if self.xpf:
            per = 144 // C
            s(f"""s_lshl_b32 s{sT2}, s{sE1}, 2
            s_add_u32 s{sT2}, s{sT2}, s{sW}
            s_mul_i32 s{sT2}, s{sT2}, {per * 128}
            v_lshlrev_b32 v{vT2}, 7, v{vL}
            v_mov_b32 v{vT3}, {OOB}""")
            n = (per + 63) // 64
            lanes = per // n
            s(f"v_cmp_gt_u32 vcc, {lanes}, v{vL}\ns_nop 1\nv_cndmask_b32 v{vT2}, v{vT3}, v{vT2}, vcc")
            for i in range(n):
                s(f"buffer_load_dword v{vT3}, v{vT2}, {srd(sX)}, s{sT2} offen", tag="pf")
                if i + 1 < n:
                    s(f"s_add_u32 s{sT2}, s{sT2}, {lanes * 128}")
        mk(sG, 60, sT1, 5308416, sub=True)
        mk(sU, 62, sT1, 5308416, sub=True)
        mk(sOUT, 66, sT0, 147456)
        s(f"s_mul_i32 s{sT0}, s{sS}, 663552\ns_mul_i32 s{sT1}, s{sS}, 144")
        mk(sD, 64, sT0, 663552)
        mk(sQ, 50, sT1, 663552, sub=True)
        mk(sWS, 70, None, WS_SIZE)
        mk(sDBG, 68, None, 256)
        mk(sWO, 56, None, 663552)
        s(f"""s_bitcmp1_b32 s{sS}, 1
        s_cselect_b32 s{sKV}, s54, s52
        s_cselect_b32 s{sKV + 1}, s55, s53
        s_and_b32 s{sKV + 1}, s{sKV + 1}, 0xffff
        s_mov_b32 s{sKV + 2}, 20736
        s_mov_b32 s{sKV + 3}, 0x20000
        s_cmp_ge_u32 s{sW}, 2
        s_cselect_b32 s{sPF}, s{sU}, s{sG}
        s_cselect_b32 s{sPF + 1}, s{sU + 1}, s{sG + 1}
        s_mov_b32 s{sPF + 2}, s{sG + 2}
        s_mov_b32 s{sPF + 3}, 0x20000""")
        s(f"""s_cmp_eq_u32 s{sROLE}, 0
        s_cselect_b32 s{sC0}, 128, 0""")
        npf = 1 if C <= 2 else 2
        self.npf = npf
        lanes = 18 * C // npf
        self.pfstep = lanes * (32 // C)
        s(f"""s_and_b32 s{sT0}, s{sW}, 1
        s_lshl_b32 s{sT1}, s{sE2}, 1
        s_add_u32 s{sT0}, s{sT0}, s{sT1}
        v_lshlrev_b32 v{vT0}, {5 - lc}, v{vL}
        v_add_u32 v{vT0}, s{sT0}, v{vT0}
        v_mul_u32_u24 v{vPF}, 9216, v{vT0}
        v_mul_u32_u24 v{vPOL}, 1152, v{vT0}
        v_mov_b32 v{vT1}, {OOB}
        v_cmp_gt_u32 vcc, {lanes}, v{vL}
        s_nop 1
        v_cndmask_b32 v{vPF}, v{vT1}, v{vPF}, vcc
        v_cndmask_b32 v{vPOL}, v{vT1}, v{vPOL}, vcc""")
        pf1 = []
        if self.wpf:
            for i in range(npf):
                pf1.append([Ins(f"s_add_u32 s{sT0}, s{sC0}, {i * self.pfstep * 9216}"),
                            Ins(f"buffer_load_dword v{vT3}, v{vPF}, {srd(sPF)}, s{sT0} offen", tag="pf")])
        pfpos = self.o.get("pfpos", 36)
        if pfpos == 0:
            for q in pf1:
                s.extend(q)
        s(f"""s_cmp_eq_u32 s{sROLE}, 0
        s_cbranch_scc1 L_nokv""")
        k = self.seg("kvdma")
        k(f"""v_lshrrev_b32 v{vT0}, 1, v{vL}
        v_mul_u32_u24 v{vT0}, 36, v{vT0}
        v_and_b32 v{vT1}, 1, v{vL}
        v_lshl_add_u32 v{vT0}, v{vT1}, 4, v{vT0}
        s_and_b32 s{sT0}, s{sS}, 1
        s_lshl_b32 s{sT0}, s{sT0}, 5
        s_mul_i32 s{sT1}, s{sW}, 1152
        s_add_u32 s{sA}, s{sT0}, s{sT1}""")
        for i in range(5):
            k(f"s_add_u32 m0, s{sM0W}, {3 * SLOT + 4096 * i}")
            k(f"s_add_u32 s{sT0}, s{sA}, {4608 * i}")
            k(f"buffer_load_dwordx4 v{vT0}, {srd(sKV)}, s{sT0} offen lds", tag="kvimg")
        s = self.seg("xload")
        s("L_nokv:")
        s(f"s_mov_b32 s{sST}, 9216\ns_mov_b32 s{sFL}, 18432\ns_mov_b32 s{sSTN}, 27648")
        xl = []
        for rg in range(4):
            for c in range(9):
                so = ("0", f"s{sST}", f"s{sFL}", f"s{sSTN}")[rg]
                xl.append([Ins(f"buffer_load_dwordx4 {vr(vRAW + 4 * (9 * rg + c))}, v{vTMP}, {srd(sX)}, {so} offen offset:{128 * c}", tag=f"x{9 * rg + c}")])
        NUP = self.o.get("nup", 12)
        for q in xl[:NUP]:
            s.extend(q)
        s(f"""v_lshrrev_b32 v{vT0}, 2, v{vL}
        v_lshlrev_b32 v{vT0}, 7, v{vT0}
        v_and_b32 v{vT1}, 3, v{vL}
        v_lshl_add_u32 v{vT0}, v{vT1}, 3, v{vT0}
        v_bfe_u32 v{vT1}, v{vL}, 3, 2""")
        for ct in range(4):
            s(f"""v_xor_b32 v{vT2}, {ct}, v{vT1}
            v_lshl_add_u32 v{vRB + ct}, v{vT2}, 5, v{vT0}
            v_add_u32 v{vRB + 4 + ct}, 0x10000, v{vRB + ct}
            v_add_u32 v{vRB + 8 + ct}, 0x20000, v{vRB + ct}""")
        s(f"""v_bfe_u32 v{vT0}, v{vL}, 1, 2
        v_lshrrev_b32 v{vT1}, 4, v{vL}
        v_xor_b32 v{vTMP + 2}, v{vT0}, v{vT1}
        v_and_b32 v{vT1}, 1, v{vL}
        v_lshlrev_b32 v{vT1}, 4, v{vT1}
        v_lshl_add_u32 v{vTMP + 1}, v{vTMP + 2}, 5, v{vT1}""")
        s(f"""v_lshrrev_b32 v{vT0}, 5, v{vL}
        v_bfe_u32 v{vT1}, v{vL}, 3, 2
        v_lshl_add_u32 v{vT0}, v{vT0}, 3, v{vT1}
        s_and_b32 s{sT0}, s{sW}, 1
        s_lshl_b32 s{sT0}, s{sT0}, 4
        s_lshr_b32 s{sT1}, s{sW}, 1
        s_lshl_b32 s{sT1}, s{sT1}, 2
        s_add_u32 s{sT0}, s{sT0}, s{sT1}
        v_add_u32 v{vTMP + 3}, s{sT0}, v{vT0}
        v_mul_u32_u24 v{vDM}, 9216, v{vTMP + 3}
        v_add_u32 v{vDM}, v{vDM}, v{vTMP + 1}
        v_mov_b32 v{vT1}, {OOB}
        v_cmp_eq_u32 vcc, 0, v{vL}
        v_mov_b32 v{vONE}, 1
        s_mov_b32 s{sNK}, {f32(-K0P)}
        v_cndmask_b32 v{vFLG}, v{vT1}, 0, vcc
        s_mov_b32 s{sMASK}, 0
        s_mov_b32 s{sMASK + 1}, -1
        s_mov_b32 s{sINC}, {32 * 9216}
        s_cmp_eq_u32 s{sROLE}, 0
        s_cbranch_scc1 L_nokv2""")
        k = self.seg("kvread")
        k(f"""v_lshrrev_b32 v{vT0}, 4, v{vL}
        v_bfe_u32 v{vT1}, v{vL}, 2, 2
        v_lshl_add_u32 v{vT0}, v{vT0}, 3, v{vT1}
        v_and_b32 v{vT1}, 3, v{vL}
        v_lshlrev_b32 v{vT1}, 3, v{vT1}
        v_lshl_add_u32 v{vT0}, v{vT0}, 5, v{vT1}
        v_add_u32 v{vT0}, {3 * SLOT}, v{vT0}
        """)
        k("s_waitcnt vmcnt(63)", auto=["kvimg"])
        k("s_barrier", need=["kvimg"])
        for kk in range(18):
            for h in range(2):
                k(f"ds_read_b64_tr_b16 {ar(aFR + 4 * kk + 2 * h, 2)}, v{vT0} offset:{1024 * kk + 128 * h}", tag="kvfr")
        s = self.seg("ln")
        s("L_nokv2:")
        queue = list(xl[NUP:])
        if pfpos > 0:
            k = max(0, pfpos - NUP)
            queue = queue[:k] + pf1 + queue[k:]
        pf2 = []
        if self.wpf:
            for i in range(npf):
                pf2.append([Ins(f"s_cmp_eq_u32 s{sROLE}, 0"),
                            Ins(f"s_cselect_b32 s{sT0}, {256 + i * self.pfstep * 9216}, {OOB}"),
                            Ins(f"buffer_load_dword v{vT3}, v{vPF}, {srd(sPF)}, s{sT0} offen", tag="pf")])
                pf2.append([Ins(f"s_lshr_b32 s{sT1}, s{sW}, 1"),
                            Ins(f"s_mul_i32 s{sT1}, s{sT1}, 140"),
                            Ins(f"s_add_u32 s{sT1}, s{sT1}, {i * self.pfstep * 1152}"),
                            Ins(f"s_cmp_eq_u32 s{sROLE}, 0"),
                            Ins(f"s_cselect_b32 s{sT1}, {OOB}, s{sT1}"),
                            Ins(f"buffer_load_dword v{vT3}, v{vPOL}, {srd(sQ)}, s{sT1} offen", tag="pf")])
        for st in range(3):
            for i in range(9):
                queue.append([Ins(f"s_add_u32 m0, s{sM0W}, {st * SLOT + 4096 * i}"),
                              Ins(f"s_mov_b32 s{sA}, s{sC0}" if (i == 0 and st % 2 == 0) else f"s_add_u32 s{sA}, s{sA}, s{sINC}"),
                              Ins(f"buffer_load_dwordx4 v{vDM}, {srd(sG if st < 2 else sU)}, s{sA} offen lds", tag=f"st{st}")])
        queue += pf2

        def pop(n=1):
            for _ in range(n):
                if queue:
                    s.extend(queue.pop(0))

        vBW, vBR = 28, 30
        s(f"""v_lshrrev_b32 v{vT0}, 4, v{vL}
        v_xor_b32 v{vT0}, v{vT0}, v{vL}
        s_lshl_b32 s{sT0}, s{sW}, 12
        s_add_u32 s{sT0}, s{sT0}, {4 * SLOT}
        v_lshl_add_u32 v{vBW}, v{vT0}, 4, s{sT0}
        v_xor_b32 v{vBW + 1}, 64, v{vBW}
        v_and_b32 v{vT0}, 15, v{vL}
        v_lshrrev_b32 v{vT1}, 4, v{vL}
        v_lshrrev_b32 v{vT2}, 1, v{vT0}
        v_xor_b32 v{vT1}, v{vT1}, v{vT2}
        v_lshl_add_u32 v{vT0}, v{vT0}, 3, v{vT1}
        v_lshl_add_u32 v{vBR}, v{vT0}, 4, s{sT0}
        v_xor_b32 v{vBR + 1}, 64, v{vBR}
        s_mov_b32 s{sT2}, 0x3f803f80""")
        vS = 32
        for u in range(2):
            for j in range(4):
                s(f"v_mov_b32 v{vS + j}, 0")
            for kk in range(18):
                n = 18 * u + kk
                r2 = kk // 9
                if u == 0 or kk % 6 == 0:
                    s("s_waitcnt vmcnt(63)", auto=[f"x{n if u == 0 else n + 5}"])
                if n == 0:
                    self.stamp(s, 10)
                pop(1)
                for j in range(4):
                    r = vRAW + 4 * n + j
                    lo = vLO + 4 * kk + j
                    s(f"""v_dot2c_f32_bf16 v{vS + r2}, s{sT2}, v{r}
                    v_dot2c_f32_bf16 v{vS + 2 + r2}, v{r}, v{r}
                    v_lshlrev_b32 v{lo}, 16, v{r}
                    v_and_b32 v{r}, 0xffff0000, v{r}""")
            self.stamp(s, 11 + 2 * u)
            for m in ("quad_perm:[1,0,3,2]", "quad_perm:[2,3,0,1]", "row_half_mirror"):
                for j in (0, 2, 1, 3):
                    s(f"v_add_f32_dpp v{vS + j}, v{vS + j}, v{vS + j} {m} row_mask:0xf bank_mask:0xf")
            for j in range(4):
                s(f"v_mul_f32 v{vS + j}, {f32(1 / 576)}, v{vS + j}")
            for t in ("v_fma_f32 v{q}, -v{m}, v{m}, v{q}", "v_max_f32 v{q}, 0, v{q}", "v_add_f32 v{q}, " + f32(1e-5) + ", v{q}", "v_rsq_f32 v{q}, v{q}",
                      "NOP", "v_mul_f32 v{r}, " + f32(ALPHA) + ", v{q}", "v_mul_f32 v{b}, v{r}, -v{m}"):
                if t == "NOP":
                    continue
                for r2 in range(2):
                    s(t.format(q=vS + 2 + r2, m=vS + r2, r=36 + 2 * r2, b=37 + 2 * r2))
            for c in range(9):
                for r2 in range(2):
                    r, lo = vRAW + 4 * (18 * u + 9 * r2 + c), vLO + 4 * (9 * r2 + c)
                    k = vr(36 + 2 * r2, 2)
                    for j in (0, 2):
                        s(f"v_pk_fma_f32 {vr(lo + j, 2)}, {vr(lo + j, 2)}, {k}, {k} op_sel:[0,0,1] op_sel_hi:[1,0,1]")
                        s(f"v_pk_fma_f32 {vr(r + j, 2)}, {vr(r + j, 2)}, {k}, {k} op_sel:[0,0,1] op_sel_hi:[1,0,1]")
                    for j in range(4):
                        s(f"v_cvt_pk_bf16_f32 v{lo + j}, v{lo + j}, v{r + j}")
                o = 2048 * (c % 2)
                for r2 in range(2):
                    s(f"ds_write_b128 v{vBW + r2}, {vr(vLO + 4 * (9 * r2 + c))} offset:{o + 1024 * r2}")
                for hh in range(2):
                    s(f"ds_read_b128 {xn(u, 2 * c + hh)}, v{vBR + hh} offset:{o}")
                pop(2)
            self.stamp(s, 12 + 2 * u)
        pop(100)
        s("s_waitcnt lgkmcnt(0)")
        self.stamp(s, 1)
        s(f"""s_cmp_lg_u32 s{sROLE}, 0
        s_cbranch_scc1 L_p1""")

    def stamp0(self, s):
        if not self.stamps:
            return
        s(f"""s_memtime s[100:101]
        s_waitcnt lgkmcnt(0)
        v_writelane_b32 v0, s100, 0
        s_memrealtime s[100:101]
        s_waitcnt lgkmcnt(0)
        v_writelane_b32 v0, s100, 1""")

    def p0(self):
        tl = Timeline()
        xb = lambda h: (lambda u, i: xn(u, 9 * h + i))
        for st, (acc, h) in enumerate(((vG, 0), (vG, 1), (vU, 0), (vU, 1), (vG, 0), (vG, 1))):
            self.std_mfmas(tl, 4 * st, 72 * st, acc, xb(h), h == 0)
            tl.put_reads(self.std_reads(4 * st, 72 * st, st % 4, f"r{st % 4}"))
            if st:
                self.barrier(tl, 72 * st - DD, [f"st{st % 4}"], f"r{(st - 1) % 4}")
        for st in range(3, 9):
            sl = st % 4
            first = f"s_mov_b32 s{sA}, s{sC0 if sl < 2 else sC1}" if sl % 2 == 0 else None
            self.dmas(tl, st, sG if sl < 2 else sU, vDM if sl < 2 else vDU, first, f"s{sINC if sl < 2 else sINU}", f"st{sl}")
        for i in range(self.npf):
            if i:
                tl.gap(290 + 8 * i).shadow.append(Ins(f"s_add_u32 s{sPFO}, s{sPFO}, {self.pfstep * 9216}"))
            tl.gap(290 + 8 * i).mem.append(Ins(f"buffer_load_dword v{vT3}, v{vPF}, {srd(sPF)}, s{sPFO} offen", tag="pf"))
        tl.gap(306).mem.append(Ins(f"buffer_load_dword v{vPOL}, off, {srd(sDBG)}, s{sPOL} sc1", tag="poll"))
        self.shadows(tl, 120, [f"s_add_u32 s{sHI}, s{sHI}, 16", f"s_and_b32 s{sHI}, s{sHI}, 127", f"s_add_u32 s{sIT}, s{sIT}, 1",
                               f"s_lshl_b32 s{sPFO}, s{sIT}, 7", f"s_add_u32 s{sPFO}, s{sPFO}, 384", f"s_add_u32 s{sC0}, s{sC0}, 128",
                               (f"s_cmp_lt_u32 s{sIT}, {6 if self.wpf else 0}", f"s_cselect_b32 s{sPFO}, s{sPFO}, {OOB}"),
                               (f"s_cmp_eq_u32 s{sIT}, 6", f"s_cselect_b32 s{sPOL}, s{sT3}, {OOB}"),
                               f"s_mov_b32 s{sU}, s{sUN}", f"s_mov_b32 s{sU + 1}, s{sUN + 1}", f"s_mov_b32 s{sU + 2}, s{sUN + 2}", f"s_mov_b32 s{sINU}, s{sINC}"])
        self.shadows(tl, 224, [f"s_add_u32 s{sC1}, s{sC1}, 128"])
        tl.gap(287).shadow.append(Ins(f"s_cmp_lt_u32 s{sIT}, 7"))
        tl.gap(160).valu.append(Ins(f"v_mov_b32 v{vDU}, v{vDM}"))
        V = self.gelu_items(0, 85, 371, True, vH)
        tl.fill(85, 288, V)
        state = {"V": [i.ins[0].text for i in V]}
        tl.fill(288, 373, V, flush=10 ** 9)
        for p in range(288, 373):
            tl.g[p - 288] = tl.g[p]
        pre = [(p, m) for p in range(262, 268) for m in tl.gap(p).mem if m.kind == "lds"]
        state["out"] = tl.insert_lgkm_waits(268, 288, pre)
        tl.insert_lgkm_waits(0, 268, [(p - 288, m) for p, m in state["out"]])
        prew = [m for m in tl.gap(268).mem if m.kind == "lds"]
        prew += [m for p in range(269, 288) for m in tl.gap(p).ins() if m.kind == "lds" or (m.kind == "wait" and m.lg is not None)]
        s = self.seg("p0pre")
        s(f"""s_add_u32 s{sC0}, s{sC0}, 128
        s_mov_b32 s{sC1}, s{sC0}
        s_mov_b32 s{sIT}, 0
        s_mov_b32 s{sHI}, 112
        s_mov_b32 s{sPFO}, {384 if self.wpf else OOB}
        s_mov_b32 s{sPOL}, {OOB}
        s_lshl_b32 s{sT3}, s{sR}, 2
        s_add_u32 s{sT3}, s{sT3}, 128
        s_mov_b32 s{sUN}, s{sU}
        s_mov_b32 s{sUN + 1}, s{sU + 1}
        s_mov_b32 s{sUN + 2}, s{sU + 2}
        s_mov_b32 s{sINU}, s{sINC}
        v_mov_b32 v{vDU}, v{vDM}""")
        s("s_waitcnt vmcnt(63)", auto=["st0"])
        s("s_barrier", need=["st0"])
        s.extend(prew)
        s(".p2align 3")
        a = self.seg("aloop")
        a("L_aloop:")
        a.extend(tl.emit(0, 288))
        a("s_cbranch_scc1 L_aloop")
        a2 = self.seg("aexit")
        a2(f"""s_cmp_eq_u32 s{sIT}, 7
        s_cbranch_scc0 L_bstart""")
        w = self.seg("aswitch")
        w(f"""v_readfirstlane_b32 s{sT0}, v{vPOL}
        s_mov_b32 s{sT1}, 0
        s_cmp_ge_u32 s{sT0}, 8
        s_cbranch_scc1 L_hready""")
        sp = self.seg("hspin")
        sp(f"""L_hspin:
        s_sleep 4
        buffer_load_dword v{vPOL}, off, {srd(sDBG)}, s{sT3} sc1
        s_add_u32 s{sT1}, s{sT1}, 1
        s_waitcnt vmcnt(0)
        v_readfirstlane_b32 s{sT0}, v{vPOL}
        s_cmp_gt_u32 s{sT1}, 0x40000
        s_cbranch_scc1 L_end
        s_cmp_ge_u32 s{sT0}, 8
        s_cbranch_scc0 L_hspin""")
        w = self.seg("aswitch2")
        w(f"""L_hready:
        s_lshl_b32 s{sT0}, s{sR}, 3
        s_add_u32 s{sT0}, s{sT0}, s{sS}
        s_lshl_b32 s{sT1}, s{sT0}, 2
        s_add_u32 s{sT1}, s{sT1}, s{sW}
        s_lshl_b32 s{sT1}, s{sT1}, 12
        s_add_u32 s{sT1}, s{sT1}, {WS_HX}""")
        for k in range(4):
            w(f"buffer_load_dwordx4 {ar(aH0 + 4 * k)}, v{vL16}, {srd(sWS)}, s{sT1} offen offset:{1024 * k} sc1", tag="h0")
        w(f"""s_mov_b32 s{sG}, s{sD}
        s_mov_b32 s{sG + 1}, s{sD + 1}
        s_mov_b32 s{sG + 2}, s{sD + 2}
        s_mov_b32 s{sUN}, s{sD}
        s_mov_b32 s{sUN + 1}, s{sD + 1}
        s_mov_b32 s{sUN + 2}, s{sD + 2}
        s_mov_b32 s{sINC}, {32 * 1152}
        s_lshl_b32 s{sC0}, s{sS}, 7
        s_add_u32 s{sC1}, s{sS}, 1
        s_and_b32 s{sC1}, s{sC1}, 7
        s_lshl_b32 s{sC1}, s{sC1}, 7
        v_lshrrev_b32 v{vT0}, 3, v{vL}
        s_lshl_b32 s{sT1}, s{sW}, 3
        v_add_u32 v{vT0}, s{sT1}, v{vT0}
        v_mul_u32_u24 v{vT0}, 1152, v{vT0}
        v_add_u32 v{vDM}, v{vT0}, v{vTMP + 1}
        s_mul_i32 s{sT2}, s{sT0}, {9 * 16384}
        s_lshl_b32 s{sT1}, s{sW}, 12
        s_add_u32 s{sT2}, s{sT2}, s{sT1}
        s_add_u32 s{sT2}, s{sT2}, {WS_PART}
        s_lshl_b32 s{sT3}, s{sR}, 12
        s_lshl_b32 s{sT1}, s{sW}, 7
        s_add_u32 s{sT3}, s{sT3}, s{sT1}
        s_lshl_b32 s{sT1}, s{sS}, 2
        s_add_u32 s{sT3}, s{sT3}, s{sT1}
        s_add_u32 s{sT3}, s{sT3}, {WS_FLAG + 32}
        s_branch L_aloop""")

        def hb(h):
            def f(u, i):
                k = 9 * h + i
                c, a_ = k // 2, k % 2
                if c == 0:
                    return ar(aH0 + 8 * a_ + 4 * u)
                return vr(vH + 16 * (c - 1) + 8 * a_ + 4 * u)
            return f

        def outv(base, tag):
            V = []
            for j in range(8):
                ct, u = j // 2, j % 2
                rel = base + 72 + 9 * j + 8 + 8
                dl = base + 144 + 9 * j - 1
                p = vU + 8 * (ct // 2) + 4 * u + 2 * (ct % 2)
                for e in range(2):
                    V.append(Item("v", Ins(f"v_cvt_pk_bf16_f32 v{p + e}, v{vG + 4 * j + 2 * e}, v{vG + 4 * j + 2 * e + 1}"), rel + e, rel, dl))
                if ct % 2 == 1:
                    k = 2 * (ct // 2) + u
                    V.append(Item("m", Ins(f"buffer_store_dwordx4 {vr(vU + 4 * k)}, v{vL16}, {srd(sWS)}, s{sST} offen offset:{1024 * k} sc1", tag=tag), rel + 2, rel + 1))
            return V

        tb = Timeline()
        fpos = self.o.get("fpos", 124)
        for st in range(8):
            h = st % 2
            self.std_mfmas(tb, 4 * st, 72 * st, vG, hb(h), h == 0)
            tb.put_reads(self.std_reads(4 * st, 72 * st, st % 4, f"r{st % 4}"))
            if st:
                self.barrier(tb, 72 * st - DD, [f"st{st % 4}"], f"r{(st - 1) % 4}")
        for st in range(3, 9):
            self.dmas(tb, st, sD, vDM, f"s_mov_b32 s{sA}, s{sC0}" if st % 2 == 0 else None, 32 * 1152, f"st{st % 4}")
        for step in range(3):
            base = 144 * step
            prev = f"part{(step - 1) % 2}"
            g = tb.gap(base + fpos)
            if g.bar:
                g.shadow[0].auto.append(prev)
            else:
                g.shadow.append(Ins("s_waitcnt vmcnt(63)", auto=[prev]))
            g.mem.append(Ins(f"buffer_store_dword v{vONE}, v{vFLG}, {srd(sWS)}, s{sFL} offen sc1", tag="flag", need=[f"old:{prev}/0"]))
            e = self.shadows(tb, base + 30, [f"s_add_u32 s{sT0}, s{sIT}, s{sS}", f"s_and_b32 s{sT1}, s{sT0}, 7",
                                             (f"s_cmp_lt_u32 s{sIT}, 8", f"s_cselect_b32 s{sT1}, s{sT1}, 8"),
                                             f"s_add_u32 s{sT0}, s{sT0}, 2", f"s_and_b32 s{sT0}, s{sT0}, 7",
                                             (f"s_cmp_lt_u32 s{sIT}, 6", f"s_cselect_b32 s{sT0}, s{sT0}, 8"),
                                             f"s_lshl_b32 s{sC0}, s{sT0}, 7",
                                             (f"s_cmp_lt_u32 s{sIT}, 7", f"s_cselect_b32 s{sC0}, s{sC0}, {OOB}"),
                                             f"s_lshl_b32 s{sST}, s{sT1}, 14", f"s_add_u32 s{sST}, s{sST}, s{sT2}",
                                             f"s_mov_b32 s{sFL}, s{sFLN}", f"s_lshl_b32 s{sFLN}, s{sT1}, 9",
                                             f"s_add_u32 s{sFLN}, s{sFLN}, s{sT3}", f"s_add_u32 s{sIT}, s{sIT}, 1"])
            assert e < base + min(fpos, 76)
        tb.gap(431).shadow.append(Ins(f"s_cmp_lt_u32 s{sIT}, 9"))
        Vall = self.gelu_items(-288, 0, 1, False, vH + 112)
        nrem = sum(2 if t.startswith("v_cvt") else 1 for t in state["V"])
        V = Vall[len(Vall) - nrem:]
        assert V[0].ins[0].text == state["V"][0], (V[0].ins[0].text, state["V"][0])
        for c, i in enumerate(V):
            i.target = 82.0 * c / len(V)
            if i.ins[0].op.startswith("v_cvt"):
                u = ((int(i.ins[0].wr[0][1:]) - vH) // 4) % 2
                i.deadline = 72 + 7 + 9 * u - 2
        bstate = []
        o = [(p - 288, m) for p, m in state["out"]]
        for step in range(3):
            V += outv(144 * step, f"part{step % 2}")
            tb.fill(144 * step, 144 * step + 144, V)
            o = tb.insert_lgkm_waits(144 * step, 144 * step + 144, o)
            bstate.append(([i.ins[0].text for i in V], len(o)))
            for p in range(144 * step + 20, 144 * step + 90):
                assert not any(m.op.startswith("buffer_store_dwordx4") for m in tb.gap(p).mem)
        assert bstate[0][0] == bstate[2][0] and bstate[2][1] <= bstate[0][1], bstate
        tailV = list(V)
        s = self.seg("b0")
        s(f"""L_bstart:
        s_mov_b32 s{sIT}, 0
        s_mov_b32 s{sFLN}, {OOB}""")
        self.stamp(s, 2)
        s.extend(tb.emit(0, 144))
        s(".p2align 3")
        bl = self.seg("bloop")
        bl("L_bloop:")
        bl.extend(tb.emit(144, 432))
        bl("s_cbranch_scc1 L_bloop")
        e = self.seg("bend")
        e("s_nop 5")
        for it in tailV:
            e.extend(it.ins)
        e(f"""v_lshlrev_b32 v{vT0}, 9, v{vL}
        v_mov_b32 v{vT1}, {OOB}
        v_cmp_gt_u32 vcc, 8, v{vL}
        s_add_u32 s{sT3}, s{sT3}, 32
        s_nop 0
        v_cndmask_b32 v{vT0}, v{vT1}, v{vT0}, vcc
        s_waitcnt vmcnt(0)""")
        e(f"buffer_store_dword v{vONE}, v{vT0}, {srd(sWS)}, s{sT3} offen sc1", need=["part0", "part1"])
        self.stamp(e, 3)
        self.stamp_flush(e)
        e("s_endpgm")

    def text(self):
        head = open("cdna_kernels/" + NAME + ".s.ref").read()
        lines = head.split("\n")
        top = [l for l in lines if l.startswith(";") and "@launch" not in l and "Override" not in l and "grid=ceil" not in l]
        out = "\n".join(top) + "\n; @launch grid=(256,1,1) block=(256,1,1) lds=163840\n"
        out += f""".amdgcn_target "amdgcn-amd-amdhsa--gfx950"
.text
.globl {NAME}_kernel
.p2align 8
.type {NAME}_kernel,@function
{NAME}_kernel:
"""
        for s in self.segs:
            out += f"; ---- {s.name}\n" + s.text()
        out += f"""L_end:
    s_endpgm
.section .rodata,"a"
.p2align 6
.amdhsa_kernel {NAME}_kernel
  .amdhsa_next_free_vgpr 512
  .amdhsa_next_free_sgpr 102
  .amdhsa_accum_offset 256
  .amdhsa_group_segment_fixed_size 0
  .amdhsa_kernarg_size 96
  .amdhsa_user_sgpr_count 2
  .amdhsa_user_sgpr_kernarg_segment_ptr 1
  .amdhsa_system_sgpr_workgroup_id_x 1
.end_amdhsa_kernel
"""
        return out

    def trace(self, names):
        d = {s.name: s for s in self.segs}
        t = []
        for n in names:
            t += d[n].ins
        return t
```

```python
from asmlib import Ins

LAT = 6


class Gap:
    __slots__ = ("shadow", "bar", "mem", "valu", "post", "nreads")

    def __init__(self):
        self.shadow = []
        self.bar = []
        self.mem = []
        self.valu = []
        self.post = []
        self.nreads = 0

    def used(self):
        u = sum(5 if m.op.startswith("buffer_store_dwordx4") else 1 for m in self.mem)
        u += sum(v.cost() // 4 for v in self.valu) + len(self.post) + max(0, len(self.shadow) - 1)
        return u

    def ins(self):
        return self.shadow + self.bar + self.mem + self.valu + self.post


class Item:
    def __init__(self, kind, ins, target, earliest=-10 ** 9, deadline=10 ** 9, pre=None, post=None):
        self.kind = kind
        self.ins = ins if isinstance(ins, list) else [ins]
        self.target = target
        self.earliest = earliest
        self.deadline = deadline
        self.pre = pre
        self.post = post
        self.pos = None

    def cost(self):
        if self.kind in ("r", "m"):
            return 1
        return sum(i.cost() // 4 for i in self.ins) + (1 if self.post else 0)


class Timeline:
    def __init__(self):
        self.g = {}
        self.m = {}

    def gap(self, p):
        if p not in self.g:
            self.g[p] = Gap()
        return self.g[p]

    def place(self, it, p):
        g = self.gap(p)
        it.pos = p
        assert it.earliest <= p <= it.deadline, (it.ins[0].text, it.earliest, p, it.deadline)
        if it.kind == "r":
            g.mem.insert(g.nreads, it.ins[0])
            g.nreads += 1
        elif it.kind == "m":
            g.mem.extend(it.ins)
        else:
            if it.pre:
                g.shadow.append(it.pre)
            g.valu.extend(it.ins)
            if it.post:
                g.post.append(it.post)

    def put_reads(self, R):
        for it in R:
            self.place(it, int(it.target))

    def fill(self, p0, p1, V, ahead=2, lagmax=1.0, flush=None):
        for p in range(p0, p1):
            g = self.gap(p)

            def ok(it):
                if it.earliest > p or g.post:
                    return False
                if it.kind == "x":
                    return not g.shadow and not g.valu and not g.bar and len(g.mem) == g.nreads
                if it.kind == "m":
                    return not g.valu
                return True

            n = 0
            while V and n < 6:
                it = V[0]
                if not ok(it):
                    break
                room = 2 - g.used()
                must = max((k + 1 - 1.0 * (x.deadline - p) for k, x in enumerate(V[:60])), default=0) > 0
                if flush is not None and sum(1 for x in V if x.target < flush) > (p1 - 1 - p):
                    must = True
                lag = p - it.target
                if must or (room >= 1 and lag > -ahead) or (room >= 0 and lag >= lagmax and it.cost() == 1):
                    self.place(V.pop(0), p)
                    n += 1
                else:
                    break
        if flush is not None:
            assert not any(x.target < flush for x in V), ("unflushed", V[0].ins[0].text, V[0].target, p1)

    def insert_lgkm_waits(self, p0, p1, issued_before):
        seq = list(issued_before)
        done = 0
        start_idx = {}
        lastwait = p0 - 1
        for p in range(p0, p1):
            g = self.gap(p)
            start_idx[p] = len(seq)
            for s in g.shadow + g.bar:
                if s.kind == "wait" and s.lg is not None:
                    done = max(done, len(seq) - s.lg)
                    lastwait = p
            for m in g.mem:
                if m.kind == "lds":
                    seq.append((p, m))
            nxt = self.m.get(p + 1)
            if nxt is None:
                continue
            need = 0
            rd = set(nxt.rd)
            for k in range(done, len(seq)):
                if rd & set(seq[k][1].wr):
                    need = k + 1
            if need > done:
                rg = seq[need - 1][0]
                q = None
                for c in range(p, max(rg + LAT - 1, lastwait, p0 - 1), -1):
                    if not self.gap(c).shadow:
                        q = c
                        break
                if q is None:
                    q = p
                if rg >= q:
                    n = len(seq) - need
                    self.gap(p).post.append(Ins(f"s_waitcnt lgkmcnt({min(n, 15)})"))
                    done = len(seq) - min(n, 15)
                else:
                    cover = need
                    for k in range(need, start_idx[q]):
                        if seq[k][0] <= q - LAT:
                            cover = k + 1
                    n = min(start_idx[q] - cover, 15)
                    self.gap(q).shadow.insert(0, Ins(f"s_waitcnt lgkmcnt({n})"))
                    done = start_idx[q] - n
                lastwait = q
        return seq[done:]

    def emit(self, p0, p1, first_mfma=True):
        out = []
        for p in range(p0, p1):
            if p in self.m and (first_mfma or p > p0):
                out.append(self.m[p])
            out.extend(self.gap(p).ins())
        return out
```

```python
from gen import *

vQ1, vQ2 = 96, 112
vS_, vO_ = 128, 192
vK1, vK2, vV_ = 32, 40, 48
vKA, vK2A, vVA, vIDX = 64, 65, 66, 67
vXE = 50
vWM, vWN, vINB, vOA = 68, 69, 30, 31
vKVA = 32
XRES, XRESN = 94208, 151552
sXL, sXN, sPE = 48, 49, 50
vSEL = 56
vXA = 72


class Gen1(Gen):
    def spin(self, name, mask, lim="0x40000", first=True):
        s = self.seg(name)
        s(f"""s_mov_b32 s{sT1}, 0
        L_{name}:
        buffer_load_dword v{vPOL}, v{vINB}, {srd(sWS)}, s{sFL} offen sc1
        s_add_u32 s{sT1}, s{sT1}, 1
        s_cmp_gt_u32 s{sT1}, {lim}
        s_cbranch_scc1 L_end
        s_waitcnt vmcnt(0)
        v_cmp_eq_u32 vcc, 0, v{vPOL}
        s_nop 1
        s_and_b64 vcc, vcc, {mask}
        s_cbranch_scc1 L_{name}""")

    def p1(self):
        s = self.seg("p1a")
        s(f"""L_p1:
        s_bitcmp1_b32 s{sS}, 2
        s_cbranch_scc1 L_kvu1
        s_bitcmp1_b32 s{sS}, 1
        s_cbranch_scc1 L_kv01""")
        for u in range(2):
            for o in range(2):
                k = self.seg(f"kv{u}{o}")
                if u == 1 and o == 0:
                    k(f"L_kvu1:\ns_bitcmp1_b32 s{sS}, 1\ns_cbranch_scc1 L_kv11")
                elif o == 1:
                    k(f"L_kv{u}{o}:")
                for kk in range(18):
                    a, b = ar(aFR + 4 * kk), xn(u, kk)
                    if o:
                        a, b = b, a
                    k(f"v_mfma_f32_16x16x32_bf16 {vr(vKVA)}, {a}, {b}, {'0' if kk == 0 else vr(vKVA)}")
                if not (u == 1 and o == 1):
                    k("s_branch L_kvdone")
        tl = Timeline()
        xb = lambda h: (lambda u, i: xn(u, 9 * h + i))
        for st, (acc, h) in enumerate(((vG, 0), (vG, 1), (vU, 0), (vU, 1), (vG, 0), (vG, 1))):
            self.std_mfmas(tl, 4 * st, 72 * st, acc, xb(h), h == 0)
        for h in range(2):
            for u in range(2):
                for i in range(9):
                    c = vr(vGL + 4 * u)
                    tl.m[432 + 18 * h + 9 * u + i] = Ins(f"v_mfma_f32_16x16x32_bf16 {c}, {ar(frag(24 + h, i))}, {xn(u, 9 * h + i)}, {'0' if h == 0 and i == 0 else c}")
        V = self.gelu_items(0, 85, 384, False, vH)
        for k in range(4):
            V.append(Item("m", Ins(f"buffer_store_dwordx4 {vr(vH + 4 * k)}, v{vL16}, {srd(sWS)}, s{sST} offen offset:{1024 * k} sc1", tag="hst"), 400 + 2 * k, 400))
        for j in range(8):
            ct, u = j // 2, j % 2
            rel = 360 + 9 * j + 8 + 8
            q = vQ1 + 4 * (2 * u + ct // 2)
            for e in range(2):
                V.append(Item("v", Ins(f"v_cvt_pk_bf16_f32 v{q + 2 * (ct % 2) + e}, v{vG + 4 * j + 2 * e}, v{vG + 4 * j + 2 * e + 1}"), max(rel, 410 + 2 * j) + e, rel))
        for q in range(4):
            for e in range(2):
                V.append(Item("v", Ins(f"v_permlane16_swap_b32 v{vQ1 + 4 * q + e}, v{vQ1 + 4 * q + 2 + e}"), 446 + 2 * q + e, 446))
        vQM, vQX, vRX = 28, 29, 30
        for st in range(6):
            tl.put_reads(self.std_reads(4 * st, 72 * st, st % 4, f"r{st}"))
        R = []
        for h in range(2):
            for i in range(9):
                for hh in range(2):
                    ins = Ins(f"ds_read_b64_tr_b16 {ar(frag(24 + h, i) + 2 * hh, 2)}, v{vRX} offset:{2048 * (9 * h + i) + 256 * hh}", tag="r6")
                    g0 = 432 + 18 * h
                    R.append(Item("r", ins, 432 - DD + len(R), earliest=g0 - 27 + i, deadline=g0 + i - LAT - 1))
        tl.put_reads(R)
        arr = self.o.get("kvarr", 2)
        for st in range(1, 7):
            self.barrier(tl, 72 * st - DD, [("st1", "st2", "st3", "q0", "q1", "q2")[st - 1]] + (["kvst"] if st == arr else []), f"r{st - 1}")
        tl.gap(72 * arr - DD).mem.append(Ins(f"buffer_atomic_add v{vONE}, v{vFLG}, {srd(sDBG)}, s{sPOL} offen sc1", tag="arr"))
        self.dmas(tl, 3, sU, vDM, None, f"s{sINC}", "st3")
        self.dmas(tl, 4, sQ, vQM, f"s_mov_b32 s{sA}, 0", 32 * 1152, "q0")
        self.dmas(tl, 5, sQ, vQM, None, 32 * 1152, "q1")
        self.dmas(tl, 6, sQ, vQX, f"s_mov_b32 s{sA}, 0", 64 * 1152, "q2")
        tl.gap(self.kvpoll).mem.append(Ins(f"buffer_load_dword v{vPOL}, v{vT2}, {srd(sDBG)}, 0 offen sc1", tag="poll"))
        c = self.kvchk
        assert c >= 341
        tl.gap(c).shadow.append(Ins("s_waitcnt vmcnt(63)", auto=["poll"]))
        tl.gap(c).valu += [Ins(f"v_cmp_gt_u32 vcc, 16, v{vPOL}")]
        tl.gap(c + 2).shadow += [Ins("s_cbranch_vccnz L_kvspin"), Ins("L_kvok:")]
        for sg in range(2):
            for i in range(5):
                p = c + 4 + 4 * (5 * sg + i)
                if i in (0, 4):
                    tl.gap(p - 1).shadow.append(Ins(f"s_add_u32 m0, s{sC1}, {KVS0 + KVST * sg + 1024 * i}"))
                    tl.gap(p).shadow.append(Ins(f"s_add_u32 s{sA}, s{sC1}, {KVST * sg + 1024 * i}"))
                tl.gap(p).mem.append(Ins(f"buffer_load_dwordx4 v{vL16}, {srd(sWS)}, s{sA} offen offset:{1024 * (i % 4)} sc1 lds", tag=f"kv{sg}"))
        tl.fill(0, 468, V, flush=10 ** 9)
        tl.insert_lgkm_waits(-DD, 468, [])
        s = self.seg("p1b")
        s("L_kvdone:")
        s("s_waitcnt vmcnt(63)", auto=["st0"])
        s("s_barrier", need=["st0"])
        pre = tl.emit(-DD, 0)
        s.extend([i for i in pre if i.kind == "lds"])
        nl = 0
        prew = []
        for i in pre:
            if i.kind == "lds":
                nl += 1
            elif i.kind == "wait":
                prew.append(i.lg + sum(1 for x in pre if x.kind == "lds") - nl)
        s(f"""v_and_b32 v{vT0}, 15, v{vL}
        v_lshrrev_b32 v{vT1}, 5, v{vL}
        v_bfe_u32 v{vT2}, v{vL}, 4, 1
        s_lshr_b32 s{sT0}, s{sR}, 1
        s_mul_i32 s{sT0}, s{sT0}, {KVST}
        s_and_b32 s{sT1}, s{sR}, 1
        s_lshl_b32 s{sT2}, s{sT1}, 2
        s_add_u32 s{sT2}, s{sT2}, s{sW}
        s_lshr_b32 s{sT3}, s{sS}, 2
        v_lshlrev_b32 v{vPF}, 4, v{vT0}
        v_lshl_add_u32 v{vPF}, v{vT2}, 3, v{vPF}
        s_bitcmp1_b32 s{sS}, 1
        s_cbranch_scc1 L_epv""")
        k = self.seg("epk")
        for e in range(4):
            k(f"v_mul_f32 v{vKVA + e}, {f32(CK)}, v{vKVA + e}")
        k(f"""v_cvt_pk_bf16_f32 v{vKVA}, v{vKVA}, v{vKVA + 1}
        v_cvt_pk_bf16_f32 v{vKVA + 1}, v{vKVA + 2}, v{vKVA + 3}
        s_lshl_b32 s{sT3}, s{sT3}, 8
        s_add_u32 s{sT0}, s{sT0}, s{sT3}
        s_bitcmp1_b32 s{sS}, 0
        s_cbranch_scc1 L_epkx""")
        k = self.seg("epkm")
        k(f"""s_lshl_b32 s{sT2}, s{sT2}, 10
        s_add_u32 s{sT0}, s{sT0}, s{sT2}
        v_lshl_add_u32 v{vPF}, v{vT1}, 9, v{vPF}""")
        k(f"buffer_store_dwordx2 {vr(vKVA, 2)}, v{vPF}, {srd(sWS)}, s{sT0} offen sc1", tag="kvst")
        k("s_branch L_epdone")
        k = self.seg("epkx")
        k(f"""L_epkx:
        s_mul_i32 s{sT1}, s{sT1}, 640
        s_lshl_b32 s{sT2}, s{sW}, 2
        s_add_u32 s{sT0}, s{sT0}, s{sT1}
        s_add_u32 s{sT0}, s{sT0}, s{sT2}
        s_add_u32 s{sT0}, s{sT0}, 18432
        v_mov_b32 v{vT1}, {OOB}
        v_cmp_gt_u32 vcc, 16, v{vL}
        s_nop 1
        v_cndmask_b32 v{vPF}, v{vT1}, v{vPF}, vcc""")
        k(f"buffer_store_dword v{vKVA}, v{vPF}, {srd(sWS)}, s{sT0} offen sc1", tag="kvst")
        k("s_branch L_epdone")
        k = self.seg("epv")
        k(f"""L_epv:
        v_cvt_pk_bf16_f32 v{vKVA}, v{vKVA}, v{vKVA + 1}
        v_cvt_pk_bf16_f32 v{vKVA + 1}, v{vKVA + 2}, v{vKVA + 3}
        s_lshl_b32 s{sT2}, s{sT2}, 1
        s_add_u32 s{sT2}, s{sT2}, s{sT3}
        s_mul_i32 s{sT2}, s{sT2}, 640
        s_add_u32 s{sT0}, s{sT0}, s{sT2}
        s_add_u32 s{sT0}, s{sT0}, 8192
        v_mul_u32_u24 v{vT1}, 320, v{vT1}
        v_add_u32 v{vPF}, v{vPF}, v{vT1}
        s_bitcmp1_b32 s{sS}, 0
        s_cbranch_scc0 L_epvs""")
        k = self.seg("epvx")
        k(f"""s_add_u32 s{sT0}, s{sT0}, 256
        v_mov_b32 v{vT1}, 0x3f803f80
        v_cmp_eq_u32 vcc, 2, v{vT0}
        s_nop 1
        v_cndmask_b32 v{vKVA}, v{vKVA}, v{vT1}, vcc
        v_cndmask_b32 v{vKVA + 1}, v{vKVA + 1}, v{vT1}, vcc
        v_cmp_ne_u32 vcc, 3, v{vT0}
        v_mov_b32 v{vT1}, {OOB}
        s_nop 0
        v_cndmask_b32 v{vKVA}, 0, v{vKVA}, vcc
        v_cndmask_b32 v{vKVA + 1}, 0, v{vKVA + 1}, vcc
        v_cmp_gt_u32 vcc, 4, v{vT0}
        s_nop 1
        v_cndmask_b32 v{vPF}, v{vT1}, v{vPF}, vcc""")
        k = self.seg("epvs")
        k("L_epvs:")
        k(f"buffer_store_dwordx2 {vr(vKVA, 2)}, v{vPF}, {srd(sWS)}, s{sT0} offen sc1", tag="kvst")
        s = self.seg("p1c")
        s(f"""L_epdone:
        s_lshl_b32 s{sT0}, s{sR}, 3
        s_add_u32 s{sT0}, s{sT0}, s{sS}
        s_lshl_b32 s{sT0}, s{sT0}, 2
        s_add_u32 s{sT0}, s{sT0}, s{sW}
        s_lshl_b32 s{sFL}, s{sT0}, 7
        s_add_u32 s{sFL}, s{sFL}, {WS_FLAG}
        s_lshl_b32 s{sST}, s{sT0}, 12
        s_add_u32 s{sST}, s{sST}, {WS_HX}
        v_lshlrev_b32 v{vT0}, 2, v{vL}
        v_mov_b32 v{vT1}, {OOB}
        v_mov_b32 v{vT2}, 0
        v_cndmask_b32 v{vT0}, v{vT0}, v{vT1}, s[{sMASK}:{sMASK + 1}]""")
        s(f"buffer_store_dword v{vT2}, v{vT0}, {srd(sWS)}, s{sFL} offen sc1", tag="kvst")
        s(f"""s_lshr_b32 s{sT0}, s{sR}, 1
        s_lshl_b32 s{sT0}, s{sT0}, 2
        s_cmp_eq_u32 s{sW}, 0
        s_cselect_b32 s{sPOL}, s{sT0}, {OOB}
        s_mul_i32 s{sC1}, s{sW}, 5120
        v_mul_u32_u24 v{vQM}, 1152, v{vTMP + 3}
        v_mul_u32_u24 v{vT0}, 36, v{vTMP + 2}
        v_and_b32 v{vT1}, 1, v{vL}
        v_lshlrev_b32 v{vT1}, 4, v{vT1}
        v_add3_u32 v{vQM}, v{vQM}, v{vT0}, v{vT1}
        v_lshrrev_b32 v{vT0}, 2, v{vL}
        s_lshl_b32 s{sT0}, s{sW}, 4
        v_add_u32 v{vT0}, s{sT0}, v{vT0}
        v_mul_u32_u24 v{vT0}, 1152, v{vT0}
        v_and_b32 v{vT1}, 3, v{vL}
        v_mul_u32_u24 v{vT2}, 36, v{vT1}
        v_add3_u32 v{vQX}, v{vT0}, v{vT2}, 32
        v_lshrrev_b32 v{vT0}, 4, v{vL}
        v_bfe_u32 v{vT2}, v{vL}, 2, 2
        v_lshl_add_u32 v{vT0}, v{vT0}, 3, v{vT2}
        v_lshlrev_b32 v{vT0}, 6, v{vT0}
        v_lshl_add_u32 v{vT0}, v{vT1}, 4, v{vT0}
        v_add_u32 v{vRX}, {2 * SLOT}, v{vT0}
        v_and_b32 v{vT2}, 7, v{vL}
        v_lshlrev_b32 v{vT2}, 2, v{vT2}""")
        if prew:
            s(f"s_waitcnt lgkmcnt({min(15, min(prew))})")
        self.stamp(s, 2)
        g = self.seg("p1gemm")
        g.extend(tl.emit(0, 468))
        self.att()
        k = self.seg("kvspin")
        k(f"""L_kvspin:
        s_mov_b32 s{sT1}, 0
        L_kvspin2:
        s_sleep 2
        buffer_load_dword v{vPOL}, v{vT2}, {srd(sDBG)}, 0 offen sc1
        s_add_u32 s{sT1}, s{sT1}, 1
        s_cmp_gt_u32 s{sT1}, 0x40000
        s_cbranch_scc1 L_end
        s_waitcnt vmcnt(0)
        v_cmp_gt_u32 vcc, 16, v{vPOL}
        s_nop 1
        s_cbranch_vccnz L_kvspin2
        s_branch L_kvok""")
        self.fallback()

    def qk(self, sb, q, kt, kbuf=None):
        k1 = vK1 + 4 * (kt % 2)
        k2 = vK2 + 4 * ((kt // 4) % 2) + 2 * ((kt % 4) // 2)
        q2 = vQ2 + 4 * q + 2 * (kt % 2)
        S = vr(vS_ + 16 * sb, 16)
        return (Ins(f"v_mfma_f32_32x32x16_bf16 {S}, {vr(k1)}, {vr(vQ1 + 4 * q)}, 0"),
                Ins(f"v_mfma_f32_32x32x8bf16_1k {S}, {vr(k2, 2)}, {vr(q2, 2)}, {S}"))

    def pv(self, sb, q, kt):
        O = vr(vO_ + 16 * q, 16)
        v = vV_ + 8 * (kt % 2)
        return tuple(Ins(f"v_smfmac_f32_32x32x32_bf16 {O}, {vr(v + 4 * f)}, {vr(vS_ + 16 * sb + 8 * f, 8)}, v{vIDX}") for f in range(2))

    def kvreads(self, kt):
        sl, i = (kt // 8) % 2, kt % 8
        o = KVST * sl
        k1 = Ins(f"ds_read_b128 {vr(vK1 + 4 * (kt % 2))}, v{vKA} offset:{o + 1024 * i}", tag="kvr")
        k2 = Ins(f"ds_read_b128 {vr(vK2 + 4 * ((kt // 4) % 2))}, v{vK2A} offset:{o + 640 * (i // 4)}", tag="kvr") if kt % 4 == 0 else None
        vv = [Ins(f"ds_read_b128 {vr(vV_ + 8 * (kt % 2) + 4 * f)}, v{vVA} offset:{o + 640 * (2 * i + f)}", tag="kvr") for f in range(2)]
        return k1, k2, vv

    def att(self):
        s = self.seg("attpre")
        self.stamp(s, 3)
        s(f"""v_add_u32 v{vKA}, {KVS0}, v{vL16}
        v_add_u32 v{vK2A}, {KVS0 + 18432}, v{vL16}
        v_mov_b32 v{vT0}, {KVS0 + 8192 + 288}
        v_cndmask_b32 v{vK2A}, v{vK2A}, v{vT0}, s[{sMASK}:{sMASK + 1}]
        v_and_b32 v{vT0}, 31, v{vL}
        v_cmp_eq_u32 vcc, 22, v{vT0}
        v_min_u32 v{vT1}, 19, v{vT0}
        v_lshrrev_b32 v{vT0}, 5, v{vL}
        v_cndmask_b32 v{vT1}, v{vT1}, 18, vcc
        v_mul_u32_u24 v{vT0}, 320, v{vT0}
        v_lshl_add_u32 v{vT0}, v{vT1}, 4, v{vT0}
        v_add_u32 v{vVA}, {KVS0 + 8192}, v{vT0}
        v_mov_b32 v{vIDX}, 0xdddddddd""")
        for u in range(2):
            s(f"""v_cvt_pk_bf16_f32 v{vQ2 + 8 * u}, v{vGL + 4 * u}, v{vGL + 4 * u + 1}
            v_mov_b32 v{vQ2 + 8 * u + 4}, 0""")
        for q in range(4):
            s(f"v_mov_b32 v{vQ2 + 4 * q + 1}, 0\nv_mov_b32 v{vQ2 + 4 * q + 2}, 0")
        for u in range(2):
            s(f"v_permlane32_swap_b32 v{vQ2 + 8 * u}, v{vQ2 + 8 * u + 4}")
        s("s_waitcnt vmcnt(63) lgkmcnt(0)", auto=["kv0"])
        s("s_barrier", need=["kv0", "lds:r6"])
        k1, k2, vv = self.kvreads(0)
        s.extend([k1, k2] + vv)
        s(f"""v_lshrrev_b32 v{vT0}, 5, v{vL}
        v_bfe_u32 v{vT1}, v{vL}, 3, 2
        v_mad_u32_u24 v{vT2}, v{vT0}, 18, v{vT1}
        s_lshl_b32 s{sT0}, s{sW}, 2
        v_add_u32 v{vT2}, s{sT0}, v{vT2}
        v_mul_u32_u24 v{vT2}, 1152, v{vT2}
        v_add_u32 v{vWM}, v{vT2}, v{vTMP + 1}
        v_lshrrev_b32 v{vT2}, 1, v{vT1}
        v_lshl_add_u32 v{vT1}, v{vT2}, 4, v{vT1}
        v_mul_u32_u24 v{vT0}, 72, v{vT0}
        s_and_b32 s{sT0}, s{sW}, 1
        s_mul_i32 s{sT0}, s{sT0}, 144
        s_lshr_b32 s{sT1}, s{sW}, 1
        s_mul_i32 s{sT1}, s{sT1}, 36
        s_add_u32 s{sT0}, s{sT0}, s{sT1}
        s_add_u32 s{sT0}, s{sT0}, 16
        v_add3_u32 v{vT0}, v{vT0}, v{vT1}, s{sT0}
        v_mul_u32_u24 v{vT0}, 1152, v{vT0}
        v_add_u32 v{vT0}, v{vT0}, v{vTMP + 1}
        s_lshl_b32 s{sC0}, s{sS}, 7""")
        for a in range(2):
            s(f"s_add_u32 m0, s{sM0W}, {4096 * (16 + a)}\ns_add_u32 s{sT0}, s{sC0}, {288 * 1152 * a}")
            s(f"buffer_load_dwordx4 v{vT0}, {srd(sWO)}, s{sT0} offen lds", tag="wo")
        s(f"""v_bfe_u32 v{vT0}, v{vL}, 1, 2
        v_bfe_u32 v{vT1}, v{vL}, 3, 1
        v_mad_u32_u24 v{vT2}, v{vT1}, 18, v{vT0}
        v_lshrrev_b32 v{vT1}, 4, v{vL}
        v_lshl_add_u32 v{vT2}, v{vT1}, 2, v{vT2}
        v_mul_u32_u24 v{vT2}, 1152, v{vT2}
        v_and_b32 v{vT1}, 1, v{vL}
        v_lshl_add_u32 v{vWN}, v{vT1}, 4, v{vT2}
        v_lshrrev_b32 v{vT2}, 1, v{vT0}
        v_lshl_add_u32 v{vT0}, v{vT2}, 4, v{vT0}
        v_bfe_u32 v{vT2}, v{vL}, 3, 2
        v_mul_u32_u24 v{vT2}, 72, v{vT2}
        v_add3_u32 v{vT0}, v{vT0}, v{vT2}, 16
        v_lshrrev_b32 v{vT2}, 5, v{vL}
        v_mad_u32_u24 v{vT0}, v{vT2}, 36, v{vT0}
        v_mul_u32_u24 v{vT0}, 1152, v{vT0}
        v_lshl_add_u32 v{vT0}, v{vT1}, 4, v{vT0}
        s_and_b32 s{sT2}, s{sS}, 3
        s_lshl_b32 s{sT2}, s{sT2}, 5
        s_add_u32 s{sT2}, s{sT2}, 1024
        s_mul_i32 s{sT0}, s{sW}, {288 * 1152}
        s_add_u32 s{sT0}, s{sT0}, s{sT2}
        s_add_u32 m0, s{sM0W}, {2 * SLOT + 16384}
        s_mul_i32 s{sT1}, s{sW}, {36 * 1152}""")
        s(f"buffer_load_dwordx4 v{vT0}, {srd(sWO)}, s{sT0} offen lds", tag="wo")
        s(f"""s_add_u32 s{sSTN}, s{sT1}, s{sT2}
        s_waitcnt lgkmcnt(0)""")
        s(f"""s_lshl_b32 s{sT0}, s{sW}, 12
        s_add_u32 s{sXL}, s{sT0}, {XRES}
        s_lshl_b32 s{sT3}, s{sS}, 7""")
        for i in range(4):
            s(f"s_add_u32 m0, s{sXL}, {1024 * i}\ns_add_u32 s{sT0}, s{sT3}, {9216 * i}")
            s(f"buffer_load_dwordx4 v{vTMP}, {srd(sX)}, s{sT0} offen lds", tag="xr")
        s(f"""v_lshrrev_b32 v{vT0}, 1, v{vL}
        v_mul_u32_u24 v{vT0}, 1152, v{vT0}
        v_lshl_add_u32 v{vT0}, v{vT1}, 4, v{vT0}
        v_mov_b32 v{vT1}, {OOB}
        v_cndmask_b32 v{vT0}, v{vT0}, v{vT1}, s[{sMASK}:{sMASK + 1}]
        v_lshlrev_b32 v{vINB}, 2, v{vL}
        v_cndmask_b32 v{vINB}, v{vINB}, v{vT1}, s[{sMASK}:{sMASK + 1}]
        s_lshr_b32 s{sT0}, s{sS}, 2
        s_lshl_b32 s{sT1}, s{sW}, 1
        s_add_u32 s{sT0}, s{sT0}, s{sT1}
        s_mul_i32 s{sT0}, s{sT0}, 18432
        s_add_u32 m0, s{sM0W}, {XRESN}
        s_add_u32 s{sXN}, s{sT0}, s{sT2}""")
        s(f"buffer_load_dwordx4 v{vT0}, {srd(sX)}, s{sXN} offen lds", tag="xr")
        s(f"""s_mul_i32 s{sST}, s{sR}, {8 * 9 * 16384}
        s_lshl_b32 s{sT0}, s{sW}, 12
        s_add_u32 s{sST}, s{sST}, s{sT0}
        s_add_u32 s{sST}, s{sST}, {WS_PART}
        s_add_u32 s{sFLN}, s{sST}, {8 * 16384}
        s_lshl_b32 s{sT0}, s{sS}, 14
        s_add_u32 s{sST}, s{sST}, s{sT0}
        s_mov_b32 s{sPE}, {OOB}""")
        for q in range(4):
            s.extend(self.qk(q, q, 0))
        for r in range(vO_, vO_ + 64):
            s(f"v_mov_b32 v{r}, 0")
        for r in range(vV_ + 8, vV_ + 16):
            s(f"v_mov_b32 v{r}, 0")
        for q in range(4):
            b = vS_ + 16 * q
            s(f"v_max3_f32 v{b}, v{b}, v{b + 1}, v{b + 2}")
            for j in range(3, 15, 2):
                s(f"v_max3_f32 v{b}, v{b}, v{b + j}, v{b + j + 1}")
            s(f"v_max_f32 v{b}, v{b}, v{b + 15}\nv_mov_b32 v{b + 1}, v{b}")
        s("s_nop 0")
        for q in range(4):
            b = vS_ + 16 * q
            s(f"v_permlane32_swap_b32 v{b}, v{b + 1}")
        for q in range(4):
            b = vS_ + 16 * q
            s(f"""v_max_f32 v{b}, v{b}, v{b + 1}
            v_sub_f32 v{b}, {f32(-MOFF)}, v{b}
            v_cvt_pk_bf16_f32 v{b}, v{b}, 0
            v_cndmask_b32 v{vQ2 + 4 * q}, v{vQ2 + 4 * q}, v{b}, s[{sMASK}:{sMASK + 1}]
            v_mov_b32 v{vQ2 + 4 * q + 3}, v{vQ2 + 4 * q}""")
        s.extend(self.qk(0, 0, 0))
        for r in range(vS_ + 48, vS_ + 64):
            s(f"v_mov_b32 v{r}, 0")
        per = 81 * self.C
        s(f"""s_mov_b32 s{sIT}, 0
        s_add_u32 s{sINC}, s{sC1}, {2 * KVST}
        s_mov_b32 s{sHI}, s{sM0W}
        s_lshl_b32 s{sT0}, s{sR}, 2
        s_add_u32 s{sT0}, s{sT0}, 128
        s_cmp_eq_u32 s{sW}, 0
        s_cselect_b32 s{sPOL}, s{sT0}, {OOB}
        s_lshl_b32 s{sPFO}, s{sE2}, 2
        s_add_u32 s{sPFO}, s{sPFO}, s{sW}
        s_mul_i32 s{sPFO}, s{sPFO}, {per * 128}
        v_lshlrev_b32 v{vPF}, 7, v{vL}
        v_mov_b32 v{vT1}, {OOB}
        v_cmp_gt_u32 vcc, {(per + 5) // 6}, v{vL}
        s_nop 1
        v_cndmask_b32 v{vPF}, v{vT1}, v{vPF}, vcc
        .p2align 3""")
        a = self.seg("attloop")
        a("L_att:")
        for tau in range(64):
            kt, q = tau // 4, tau % 4
            ms = list(self.qk((tau + 1) % 4, (tau + 1) % 4, (tau + 1) // 4)) + list(self.pv((tau - 1) % 4, (tau - 1) % 4, ((tau - 1) // 4) % 16))
            ex = [[], [], [], []]
            k1, k2, vv = self.kvreads((kt + 1) % 16)
            newstage = (kt + 1) % 8 == 0
            if q == 0:
                if newstage:
                    sg = (kt + 1) // 8 % 2
                    ex[0] += [Ins("s_waitcnt vmcnt(0)"), Ins("s_barrier", need=[f"kv{sg}", "lds:kvr"] + (["hst"] if sg == 1 else []))]
                    if sg == 1:
                        ex[0] += [Ins(f"buffer_atomic_add v{vONE}, v{vFLG}, {srd(sDBG)}, s{sPOL} offen sc1", tag="arr")]
                ex[0].append(k1)
                if k2:
                    ex[2].append(k2)
                if newstage:
                    ex[2].insert(0, Ins(f"s_add_u32 m0, s{sC1}, {KVS0 + KVST * (1 - sg)}"))
                    ex[3] += [Ins(f"s_mov_b32 s{sPOL}, {OOB}")] if sg == 1 else []
                    ex[3].append(Ins(f"buffer_load_dwordx4 v{vL16}, {srd(sWS)}, s{sINC} offen sc1 lds", tag=f"kv{1 - sg}"))
            if q == 1:
                ex[0].append(vv[0])
                ex[2].append(vv[1])
                if newstage:
                    ex[3].append(Ins(f"buffer_load_dwordx4 v{vL16}, {srd(sWS)}, s{sINC} offen offset:1024 sc1 lds", tag=f"kv{1 - sg}"))
            if q == 2:
                if newstage:
                    ex[0].append(Ins(f"buffer_load_dwordx4 v{vL16}, {srd(sWS)}, s{sINC} offen offset:2048 sc1 lds", tag=f"kv{1 - sg}"))
                    ex[2].append(Ins(f"buffer_load_dwordx4 v{vL16}, {srd(sWS)}, s{sINC} offen offset:3072 sc1 lds", tag=f"kv{1 - sg}"))
                ex[3].append(Ins("s_waitcnt lgkmcnt(0)"))
            if q == 3 and newstage:
                ex[0].append(Ins(f"s_add_u32 m0, s{sC1}, {KVS0 + KVST * (1 - sg) + 4096}"))
                ex[2] += [Ins(f"s_add_u32 s{sA}, s{sINC}, 4096"),
                          Ins(f"buffer_load_dwordx4 v{vL16}, {srd(sWS)}, s{sA} offen sc1 lds", tag=f"kv{1 - sg}")]
                ex[3].append(Ins(f"s_add_u32 s{sINC}, s{sINC}, {KVST}"))
            if kt % 8 in (0, 1) and q == 3:
                ex[0].append(Ins(f"s_mov_b32 m0, s{sHI}"))
                ex[2] += [Ins(f"s_add_u32 s{sHI}, s{sHI}, 4096"), Ins(f"buffer_load_dwordx4 v{vWM}, {srd(sWO)}, s{sC0} offen lds", tag="wo")]
                ex[3].append(Ins(f"s_add_u32 s{sC0}, s{sC0}, {36 * 1152}"))
            if kt == 2 and q == 2:
                ex[0].append(Ins(f"s_lshl_b32 s{sT0}, s{sIT}, 12"))
                ex[2].append(Ins(f"s_add_u32 s{sT0}, s{sT0}, s{sM0W}"))
            if kt == 2 and q == 3:
                ex[0].append(Ins(f"s_add_u32 m0, s{sT0}, {2 * SLOT}"))
                ex[2] += [Ins(f"s_add_u32 s{sIT}, s{sIT}, 1"), Ins(f"buffer_load_dwordx4 v{vWN}, {srd(sWO)}, s{sSTN} offen lds", tag="wo")]
                ex[3].append(Ins(f"s_add_u32 s{sSTN}, s{sSTN}, {4 * 36 * 1152}"))
            if self.wpf and kt in (3, 10) and q == 3:
                ex[0].append(Ins(f"buffer_load_dword v{vT3}, v{vPF}, {srd(sD)}, s{sPFO} offen", tag="pf"))
                ex[2].append(Ins(f"s_add_u32 s{sPFO}, s{sPFO}, {((per + 5) // 6) * 128}"))
            if self.ne and tau == self.etau - 7:
                ex[0].append(Ins(f"s_cmp_eq_u32 s{sIT}, 4"))
                ex[2].append(Ins(f"s_cselect_b32 s{sPE}, s{sFL}, {OOB}"))
                ex[3].append(Ins(f"buffer_load_dword v{vPOL}, v{vINB}, {srd(sWS)}, s{sPE} offen sc1", tag="poll"))
            if self.ne and tau == self.etau:
                ex[2].append(Ins(f"s_cmp_eq_u32 s{sIT}, 4"))
                ex[3] += [Ins("s_cbranch_scc1 L_early"), Ins("L_earlyd:")]
                split = True
            if tau == 63:
                ex[3].append(Ins(f"s_cmp_lt_u32 s{sIT}, 4"))
            sb = vS_ + 16 * (tau % 4)
            for m in range(4):
                a.add(ms[m])
                a.extend(ex[m])
                if self.ne and tau == self.etau and m == 3:
                    a = self.seg("attloop2")
                for e in range(4):
                    a(f"v_exp_f32 v{sb + 4 * m + e}, v{sb + 4 * m + e}")
        a("s_cbranch_scc1 L_att")
        s = self.seg("attend")
        s("s_nop 0")
        s.extend(self.pv(3, 3, 15))
        self.stamp(s, 4)
        s(f"""s_nop 1
        s_mov_b32 s{sT0}, {f32(2.0 ** -105)}
        s_mov_b32 s{sT1}, {f32(2.0 ** 120)}
        s_mov_b64 s[{sMK2}:{sMK2 + 1}], 0""")
        for q in range(4):
            o = vO_ + 16 * q
            t = vS_ + 4 * q
            s(f"""v_cndmask_b32 v{t + 2}, v{o + 8}, v{o + 10}, s[{sMASK}:{sMASK + 1}]
            v_cndmask_b32 v{t + 3}, v{o + 9}, v{o + 10}, s[{sMASK}:{sMASK + 1}]
            v_min3_f32 v{t}, abs(v{t + 2}), abs(v{t + 3}), v{o + 10}
            v_add_f32 v{t + 1}, abs(v{t + 2}), abs(v{t + 3})
            v_add_f32 v{t + 1}, v{t + 1}, v{o + 10}""")
            for j in range(0, 8, 2):
                s(f"""v_min3_f32 v{t}, v{t}, abs(v{o + j}), abs(v{o + j + 1})
                v_add_f32 v{t + 2}, abs(v{o + j}), abs(v{o + j + 1})
                v_add_f32 v{t + 1}, v{t + 1}, v{t + 2}""")
            s(f"""v_cmp_nle_f32 vcc, s{sT0}, v{t}
            s_nop 0
            s_or_b64 s[{sMK2}:{sMK2 + 1}], s[{sMK2}:{sMK2 + 1}], vcc
            v_cmp_ngt_f32 vcc, s{sT1}, v{t + 1}
            s_nop 0
            s_or_b64 s[{sMK2}:{sMK2 + 1}], s[{sMK2}:{sMK2 + 1}], vcc""")
        if self.forcefb:
            s(f"s_or_b64 s[{sMK2}:{sMK2 + 1}], s[{sMK2}:{sMK2 + 1}], 1")
        s("s_cbranch_scc1 L_fb")
        s = self.seg("opub")
        s(f"""L_fbdone:
        s_lshl_b32 s{sT0}, s{sR}, 2
        s_add_u32 s{sT0}, s{sT0}, s{sW}
        s_mul_i32 s{sC1}, s{sT0}, 36864
        s_add_u32 s{sC1}, s{sC1}, {WS_OM}
        s_lshl_b32 s{sT0}, s{sS}, 11
        s_add_u32 s{sT0}, s{sT0}, s{sC1}
        s_add_u32 s{sT1}, s{sT0}, 18432
        s_lshl_b32 s{sT2}, s{sS}, 8
        s_add_u32 s{sT2}, s{sT2}, s{sC1}
        s_add_u32 s{sT2}, s{sT2}, 16384
        s_add_u32 s{sT3}, s{sT2}, 18432
        v_and_b32 v{vT0}, 15, v{vL}
        v_lshrrev_b32 v{vT1}, 4, v{vL}
        v_lshlrev_b32 v{vT1}, 2, v{vT1}
        v_lshl_add_u32 v{vT0}, v{vT0}, 4, v{vT1}
        v_mov_b32 v{vT1}, {OOB}
        v_cndmask_b32 v{vT0}, v{vT0}, v{vT1}, s[{sMASK}:{sMASK + 1}]""")
        for q in range(4):
            s(f"v_rcp_f32 v{vO_ + 16 * q + 10}, v{vO_ + 16 * q + 10}")
        for q in range(4):
            o = vO_ + 16 * q
            u, hp = q // 2, q % 2
            s(f"v_mul_f32 v{o + 10}, {f32(ALPHA)}, v{o + 10}")
            for j in range(10):
                s(f"v_mul_f32 v{o + j}, v{o + j}, v{o + 10}")
            for j in range(5):
                s(f"v_cvt_pk_bf16_f32 v{o + j}, v{o + 2 * j}, v{o + 2 * j + 1}")
            s(f"buffer_store_dwordx4 {vr(o)}, v{vL16}, {srd(sWS)}, s{sT0 + u} offen offset:{1024 * hp} sc1", tag="ost")
            s(f"buffer_store_dword v{o + 4}, v{vT0}, {srd(sWS)}, s{sT2 + u} offen offset:{8 * hp} sc1", tag="ost")
        ne, n2, n3 = self.ne, self.n2, self.n3
        s(f"buffer_load_dword v{vPOL}, v{vINB}, {srd(sWS)}, s{sFL} offen sc1", tag="poll")
        vXR, vXU, vBA = 32, 96, 29
        s(f"""v_and_b32 v{vT0}, 15, v{vL}
        v_lshrrev_b32 v{vT2}, 4, v{vL}
        v_lshlrev_b32 v{vT3}, 3, v{vT2}
        v_lshl_add_u32 v{vBA}, v{vT0}, 7, v{vT3}
        v_add_u32 v{vBA}, s{sXL}, v{vBA}
        v_lshl_add_u32 v{vOA}, v{vT0}, 5, v{vT3}
        s_add_u32 s{sT0}, s{sM0W}, {XRESN}
        v_add_u32 v{vOA}, s{sT0}, v{vOA}""")
        for j in range(8):
            s(f"ds_read_b64 {vr(vXR + 2 * j, 2)}, v{vBA} offset:{2048 * (j % 2) + 32 * (j // 2)}", need=["xr"])
        s(f"ds_read_b64 {vr(vXR + 16, 2)}, v{vOA}")
        s(f"""v_mul_u32_u24 v{vOA}, 1152, v{vT0}
        v_add_u32 v{vOA}, v{vOA}, v{vT3}
        v_lshlrev_b32 v{vT2}, 2, v{vT2}
        v_sub_u32 v{vT0}, v{vT0}, v{vT2}
        v_and_b32 v{vT2}, 1, v{vT0}
        v_lshlrev_b32 v{vT2}, 4, v{vT2}
        v_mov_b32 v{vT3}, 0x3f80
        v_lshlrev_b32 v{vT3}, v{vT2}, v{vT3}
        v_lshrrev_b32 v{vT0}, 1, v{vT0}
        v_cmp_eq_u32 vcc, 0, v{vT0}
        v_mov_b32 v{vSEL}, 0
        v_mov_b32 v{vSEL + 1}, 0
        v_cndmask_b32 v{vSEL + 2}, 0, v{vT3}, vcc
        v_cmp_eq_u32 vcc, 1, v{vT0}
        v_mov_b32 v{vSEL + 4}, 0
        v_mov_b32 v{vSEL + 5}, 0
        v_cndmask_b32 v{vSEL + 3}, 0, v{vT3}, vcc
        v_lshlrev_b32 v{vT0}, 9, v{vL}
        v_cmp_gt_u32 vcc, 8, v{vL}
        s_lshl_b32 s{sT2}, s{sS}, 9
        s_sub_u32 s{sT2}, s{sFL}, s{sT2}
        v_cndmask_b32 v{vT0}, v{vT1}, v{vT0}, vcc
        s_lshl_b32 s{sT0}, s{sS}, 2
        s_add_u32 s{sT2}, s{sT2}, s{sT0}""")

        def preg(i):
            if i < ne:
                return lambda k: ar(aFR + 16 * i + 4 * k)
            return lambda k: vr(vS_ + 16 * (i - ne) + 4 * k)

        def pmask(s, i0, n):
            s(f"""s_add_u32 s{sT0}, s{sS}, {(16 - (i0 + n - 1)) % 8}
            s_and_b32 s{sT0}, s{sT0}, 7
            s_lshl_b32 s{sMK2}, {hex(((1 << n) - 1) * 0x101)}, s{sT0}
            s_and_b32 s{sMK2}, s{sMK2}, 0xff00
            s_mov_b32 s{sMK2 + 1}, 0""")

        def pload(i0, n):
            out = []
            for i in range(i0, i0 + n):
                q = [Ins(f"s_sub_u32 s{sT0}, s{sS}, {i}"), Ins(f"s_and_b32 s{sT0}, s{sT0}, 7"),
                     Ins(f"s_mul_i32 s{sT0}, s{sT0}, {9 * 16384}"), Ins(f"s_add_u32 s{sT0}, s{sT0}, s{sST}")]
                q += [Ins(f"buffer_load_dwordx4 {preg(i)(k)}, v{vL16}, {srd(sWS)}, s{sT0} offen offset:{1024 * k} sc1", tag=f"pl{i}") for k in range(4)]
                out += q
            return out

        def pacc(i0, n):
            out = []
            for j in range(8):
                ct, u = j // 2, j % 2
                c = vr(vG + 4 * j)
                for i in range(i0, i0 + n):
                    out.append(Ins(f"v_mfma_f32_16x16x32_bf16 {c}, {vr(vSEL + (0 if ct % 2 else 2))}, {preg(i)(2 * (ct // 2) + u)}, {'0' if i == 0 else c}"))
            return out

        self.pmask, self.pload = pmask, pload
        unp = []
        for j in range(9):
            d = vXU + 4 * j if j < 8 else vXE
            for e in range(2):
                unp += [Ins(f"v_lshlrev_b32 v{d + 2 * e}, 16, v{vXR + 2 * j + e}"), Ins(f"v_and_b32 v{d + 2 * e + 1}, 0xffff0000, v{vXR + 2 * j + e}")]
        s("s_waitcnt lgkmcnt(0)")
        for m in pacc(0, ne):
            s.add(m)
            s.extend(unp[:2])
            unp = unp[2:]
        s.extend(unp)
        pmask(s, ne, n2)
        s("s_waitcnt vmcnt(0)")
        s(f"buffer_store_dword v{vONE}, v{vT0}, {srd(sWS)}, s{sT2} offen sc1", need=["ost"])
        self.stamp(s, 5)
        s(f"""v_cmp_eq_u32 vcc, 0, v{vPOL}
        s_nop 1
        s_and_b64 vcc, vcc, s[{sMK2}:{sMK2 + 1}]
        s_cbranch_scc0 L_pl2""")
        self.spin("w_pm2", f"s[{sMK2}:{sMK2 + 1}]")
        s = self.seg("pl2")
        s("L_pl2:")
        s.extend(pload(ne, n2))
        self.spin("w_o", "0xff")
        s = self.seg("ogat")
        self.stamp(s, 6)
        gl = []
        for h in range(2):
            for u in range(2):
                for i in range(9):
                    n = 18 * u + 9 * h + i
                    gl.append([Ins(f"s_add_u32 s{sA}, s{sC1}, {1024 * n}"),
                               Ins(f"buffer_load_dwordx4 {xn(u, 9 * h + i)}, v{vL16}, {srd(sWS)}, s{sA} offen sc1", tag=f"og{2 * h + u}")])
        for q in gl[:10]:
            s.extend(q)
        s.extend(pacc(ne, n2))
        vRN = 28
        s(f"""v_lshrrev_b32 v{vT0}, 2, v{vL}
        v_lshlrev_b32 v{vT0}, 5, v{vT0}
        v_and_b32 v{vT1}, 3, v{vL}
        v_lshl_add_u32 v{vT0}, v{vT1}, 3, v{vT0}
        v_add_u32 v{vRN}, {2 * SLOT}, v{vT0}""")
        pmask(s, ne + n2, n3)
        tf = Timeline()
        xb = lambda h: (lambda u, i: xn(u, 9 * h + i))
        for h in range(2):
            self.std_mfmas(tf, 4 * h, 72 * h, vG, xb(h), False)
            tf.put_reads(self.std_reads(4 * h, 72 * h, h, "fr"))
        R = []
        for h in range(2):
            for i in range(9):
                for hh in range(2):
                    ins = Ins(f"ds_read_b64_tr_b16 {ar(frag(8 + h, i) + 2 * hh, 2)}, v{vRN} offset:{1024 * (9 * h + i) + 512 * hh}", tag="fr")
                    R.append(Item("r", ins, (124 + i * 2 + hh) if h == 0 and i < 2 else (128 + (len(R) - 4) // 2), earliest=144 + 18 * h - 27 + i))
        tf.put_reads(R)
        ng = self.o.get("ngpre", 20)
        for q in gl[10:ng]:
            tf.gap(-1).post.extend(q)
        tf.gap(-1).post.append(Ins("s_waitcnt vmcnt(63)", auto=["og0"]))
        for k, q in enumerate(gl[ng:]):
            p = k if k < 8 else 8 + 4 * (k - 7)
            tf.gap(p).shadow.append(q[0])
            tf.gap(p).mem.append(q[1])
        tf.gap(50).mem.append(Ins(f"buffer_load_dword v{vPOL}, v{vINB}, {srd(sWS)}, s{sFL} offen sc1", tag="poll"))
        tf.gap(8).shadow.append(Ins("s_waitcnt vmcnt(63)", auto=["og1"]))
        tf.gap(71).shadow.append(Ins("s_waitcnt vmcnt(63)", auto=["og2"]))
        tf.gap(80).shadow.append(Ins("s_waitcnt vmcnt(63)", auto=["og3"]))
        tf.gap(84).shadow.append(Ins("s_waitcnt vmcnt(0)"))
        tf.gap(84).valu.append(Ins(f"v_cmp_eq_u32 vcc, 0, v{vPOL}"))
        tf.gap(85).shadow.append(Ins(f"s_and_b64 vcc, vcc, s[{sMK2}:{sMK2 + 1}]"))
        tf.gap(86).shadow.append(Ins("s_cbranch_scc1 L_pm3"))
        tf.gap(86).shadow.append(Ins("L_pm3d:"))
        p = 87
        for i in pload(ne + n2, n3):
            if i.kind == "salu":
                tf.gap(p).shadow.append(i)
                p += 1
            else:
                tf.gap(p).mem.append(i)
                p += 3
        tf.insert_lgkm_waits(-DD, 144, [])
        s.extend(tf.emit(-DD, 144))
        n4 = 8 - ne - n2 - n3
        pmask(s, 8 - n4, n4)
        s(f"""s_waitcnt lgkmcnt(0)
        s_bitcmp1_b32 s{sS}, 2
        s_cbranch_scc1 L_xu1""")
        vXB = 20
        for u in range(2):
            k = self.seg(f"xu{u}")
            if u:
                k("L_xu1:")
            for kk in range(18):
                k(f"v_mfma_f32_16x16x32_bf16 {vr(vXB)}, {ar(frag(8 + kk // 9, kk % 9))}, {xn(u, kk)}, {'0' if kk == 0 else vr(vXB)}")
            if not u:
                k("s_branch L_xud")
        s = self.seg("xud")
        s("L_xud:")
        self.stamp(s, 7)
        self.spin("w_pm4", f"s[{sMK2}:{sMK2 + 1}]")
        s = self.seg("pl4")
        s.extend(pload(8 - n4, n4))
        s.extend(pacc(ne + n2, n3))
        s(f"""s_mov_b32 s{sT2}, {f32(1.0 / ALPHA ** 2)}
        v_add_u32 v{vT2}, s{sXL}, v{vL16}
        v_lshrrev_b32 v{vT0}, 3, v{vL}
        v_and_b32 v{vT1}, 7, v{vL}
        s_lshl_b32 s{sT0}, s{sW}, 5
        v_add_u32 v{vT0}, s{sT0}, v{vT0}
        v_mul_u32_u24 v{vT0}, 1152, v{vT0}
        v_lshl_add_u32 v{vT3}, v{vT1}, 4, v{vT0}
        s_and_b32 s{sT0}, s{sS}, 2
        s_lshr_b32 s{sT1}, s{sS}, 2
        s_add_u32 s{sT0}, s{sT0}, s{sT1}
        s_lshl_b32 s{sT0}, s{sT0}, 10
        s_and_b32 s{sT1}, s{sS}, 1
        s_lshl_b32 s{sT1}, s{sT1}, 3
        s_add_u32 s{sT0}, s{sT0}, s{sT1}
        s_add_u32 s{sFLN}, s{sFLN}, s{sT0}
        s_lshl_b32 s{sC0}, s{sS}, 7
        s_waitcnt vmcnt(0)""")
        s.extend(pacc(8 - n4, n4))
        s(f"buffer_load_dword v{vPOL}, v{vINB}, {srd(sWS)}, s{sFL} offen sc1", tag="poll")
        s(f"v_mov_b32 v{vSEL + 6}, v{vSEL + 2}\nv_mov_b32 v{vSEL + 7}, v{vSEL + 3}")
        for j in range(8):
            c = vG + 4 * j
            for e in range(4):
                s(f"v_fma_f32 v{c + e}, v{c + e}, s{sT2}, v{vXU + 4 * j + e}")
            s(f"v_cvt_pk_bf16_f32 v{c}, v{c}, v{c + 1}\nv_cvt_pk_bf16_f32 v{c + 1}, v{c + 2}, v{c + 3}")
        for j in range(8):
            s(f"ds_write_b64 v{vBA}, {vr(vG + 4 * j, 2)} offset:{2048 * (j % 2) + 32 * (j // 2)}")
        for i in range(4):
            s(f"ds_read_b128 {vr(vXU + 4 * i)}, v{vT2} offset:{1024 * i}")
        s(f"v_mov_b32 v{vSEL + 4}, v{vSEL + 2}\nv_mov_b32 v{vSEL + 5}, v{vSEL + 3}")
        for i in range(4):
            s(f"s_waitcnt lgkmcnt({3 - i})")
            s(f"buffer_store_dwordx4 {vr(vXU + 4 * i)}, v{vT3}, {srd(sOUT)}, s{sC0} offen{self.o.get('outflag', '')}")
            if i < 3:
                s(f"s_add_u32 s{sC0}, s{sC0}, 9216")
        self.stamp(s, 8)
        s("s_waitcnt vmcnt(63)", auto=["poll"])
        s(f"""v_cmp_eq_u32 vcc, 0, v{vPOL}
        s_nop 1
        s_and_b64 vcc, vcc, 0xff0000
        s_cbranch_scc0 L_fin""")
        self.spin("w_pl", "0xff0000")
        s = self.seg("fin")
        s("L_fin:")
        for p in range(8):
            s(f"buffer_load_dwordx2 {vr(vS_ + 2 * p, 2)}, v{vL16}, {srd(sWS)}, s{sFLN} offen sc1")
            if p < 7:
                s(f"s_add_u32 s{sFLN}, s{sFLN}, {9 * 16384}")
        for p in range(4):
            s(f"s_waitcnt vmcnt({6 - 2 * p})")
            s(f"v_mfma_f32_16x16x32_bf16 {vr(vXB)}, {vr(vSEL + 4)}, {vr(vS_ + 4 * p)}, {vr(vXB)}")
        s("s_nop 7")
        for e in range(4):
            s(f"v_fma_f32 v{vXB + e}, v{vXB + e}, s{sT2}, v{vXE + e}")
        s(f"""v_cvt_pk_bf16_f32 v{vXB}, v{vXB}, v{vXB + 1}
        v_cvt_pk_bf16_f32 v{vXB + 1}, v{vXB + 2}, v{vXB + 3}
        buffer_store_dwordx2 {vr(vXB, 2)}, v{vOA}, {srd(sOUT)}, s{sXN} offen{self.o.get('outflag', '')}""")
        self.stamp(s, 9)
        self.stamp_flush(s)
        s("s_endpgm")
        s = self.seg("pm3a")
        s("L_pm3:")
        self.spin("w_pm3", f"s[{sMK2}:{sMK2 + 1}]")
        s = self.seg("pm3b")
        s("s_branch L_pm3d")
        if ne:
            s = self.seg("early")
            s("L_early:")
            pmask(s, 0, ne)
            s("s_waitcnt vmcnt(63)", auto=["poll"])
            s(f"""v_cmp_eq_u32 vcc, 0, v{vPOL}
            s_nop 1
            s_and_b64 vcc, vcc, s[{sMK2}:{sMK2 + 1}]
            s_cbranch_scc0 L_early2""")
            self.spin("w_pm1", f"s[{sMK2}:{sMK2 + 1}]")
            s = self.seg("early2")
            s("L_early2:")
            s.extend(pload(0, ne))
            s("s_branch L_earlyd")

    def fallback(self):
        vM = vXA
        s = self.seg("fb0")
        s(f"""L_fb:
        s_waitcnt vmcnt(0) lgkmcnt(0)
        v_and_b32 v{vT0}, 31, v{vL}
        v_lshlrev_b32 v{vT0}, 4, v{vT0}
        v_subrev_u32 v{vT1}, {KVS0}, v{vVA}
        v_mov_b32 v{vK2 + 1}, 0
        s_mov_b32 s{sIT}, 0""")
        for q in range(4):
            s(f"v_cndmask_b32 v{vQ2 + 4 * q}, v{vQ2 + 4 * q}, 0, s[{sMASK}:{sMASK + 1}]\nv_mov_b32 v{vM + q}, 0xff800000")
        for r in range(vO_, vO_ + 64):
            s(f"v_mov_b32 v{r}, 0")

        def loads(k, withv):
            k(f"""s_lshr_b32 s{sT0}, s{sIT}, 3
            s_mul_i32 s{sT0}, s{sT0}, {KVST}
            s_and_b32 s{sT1}, s{sIT}, 7
            s_lshl_b32 s{sT2}, s{sT1}, 10
            s_add_u32 s{sT2}, s{sT2}, s{sT0}
            buffer_load_dwordx4 {vr(vK1)}, v{vL16}, {srd(sWS)}, s{sT2} offen sc1
            s_lshr_b32 s{sT2}, s{sT1}, 2
            s_mul_i32 s{sT2}, s{sT2}, 640
            s_and_b32 s{sT3}, s{sT1}, 3
            s_lshl_b32 s{sT3}, s{sT3}, 2
            s_add_u32 s{sT2}, s{sT2}, s{sT3}
            s_add_u32 s{sT2}, s{sT2}, s{sT0}
            s_add_u32 s{sT2}, s{sT2}, 18432
            buffer_load_dword v{vK2}, v{vT0}, {srd(sWS)}, s{sT2} offen sc1""")
            if withv:
                k(f"""s_mul_i32 s{sT2}, s{sT1}, 1280
                s_add_u32 s{sT2}, s{sT2}, s{sT0}
                buffer_load_dwordx4 {vr(vV_)}, v{vT1}, {srd(sWS)}, s{sT2} offen sc1
                buffer_load_dwordx4 {vr(vV_ + 4)}, v{vT1}, {srd(sWS)}, s{sT2} offen offset:640 sc1""")
            k("s_waitcnt vmcnt(0)")
            for q in range(4):
                k.extend(self.qk(q, q, 0))
            k("s_nop 11")

        k = self.seg("fb1")
        k("L_fb1:")
        loads(k, False)
        for q in range(4):
            for j in range(0, 16, 2):
                k(f"v_max3_f32 v{vM + q}, v{vM + q}, v{vS_ + 16 * q + j}, v{vS_ + 16 * q + j + 1}")
        k(f"""s_add_u32 s{sIT}, s{sIT}, 1
        s_cmp_lt_u32 s{sIT}, 64
        s_cbranch_scc1 L_fb1""")
        k = self.seg("fb2")
        for q in range(4):
            k(f"v_mov_b32 v{vS_ + q}, v{vM + q}")
        k("s_nop 0")
        for q in range(4):
            k(f"v_permlane32_swap_b32 v{vM + q}, v{vS_ + q}")
        for q in range(4):
            k(f"v_max_f32 v{vM + q}, v{vM + q}, v{vS_ + q}")
        k(f"s_mov_b32 s{sIT}, 0")
        k = self.seg("fb3")
        k("L_fb3:")
        loads(k, True)
        for q in range(4):
            for j in range(16):
                k(f"v_sub_f32 v{vS_ + 16 * q + j}, v{vS_ + 16 * q + j}, v{vM + q}")
            for j in range(16):
                k(f"v_exp_f32 v{vS_ + 16 * q + j}, v{vS_ + 16 * q + j}")
        k("s_nop 1")
        for q in range(4):
            k.extend(self.pv(q, q, 0))
        k(f"""s_add_u32 s{sIT}, s{sIT}, 1
        s_cmp_lt_u32 s{sIT}, 64
        s_cbranch_scc1 L_fb3""")
        k = self.seg("fb4")
        k("s_nop 11\ns_branch L_fbdone")


def build(path, C=1, stamps=False, xpf=True, wpf=True, forcefb=False, verbose=True, **kw):
    g = Gen1(C=C, stamps=stamps, xpf=xpf, wpf=wpf, **kw)
    g.forcefb = forcefb
    g.kvpoll, g.kvchk = kw.get("kvpoll", 300), kw.get("kvchk", 356)
    g.ne, g.n2, g.n3, g.etau = kw.get("ne", 3), kw.get("n2", 2), kw.get("n3", 2), kw.get("etau", 52)
    g.prologue()
    g.p0()
    g.p1()
    probs = []
    traces = [("P0", g.trace(["entry", "xload", "ln", "p0pre"] + ["aloop"] * 7 + ["aexit", "aswitch", "aswitch2", "aloop", "aexit", "b0"] + ["bloop"] * 4 + ["bend"]))]
    for u in range(2):
        for o, eps in ((0, ["epk", "epkm"]), (0, ["epk", "epkx"]), (1, ["epv", "epvs"]), (1, ["epv", "epvx", "epvs"])):
            for fb in ([], ["fb0", "fb1", "fb1", "fb2", "fb3", "fb3", "fb4"]):
                att = ["attloop", "attloop2"] * 3 + ["attloop", "early", "early2", "attloop2"] if g.ne else ["attloop"] * 4
                t1 = ["entry", "kvdma", "xload", "kvread", "ln", "p1a", f"kv{u}{o}", "p1b"] + eps + ["p1c", "p1gemm", "attpre"] + att + \
                     ["attend"] + fb + ["opub", "pl2", "w_o", "ogat", f"xu{u}", "xud", "w_pm4", "pl4", "fin"]
                traces.append(("P1", g.trace(t1)))
    auto_vm([t for _, t in traces])
    for n, t in traces:
        probs += check_trace(t, n)
    seen = set()
    for p in probs:
        key = p.split("'", 1)[1]
        if key not in seen:
            seen.add(key)
            print(p)
    if verbose:
        for s in g.segs:
            n = sum(1 for i in s.ins if i.kind != "label")
            nm = sum(1 for i in s.ins if i.kind == "mfma")
            if n > 40:
                print(f"{s.name:10s} ins {n:5d} mfma {nm:4d} est {est_cycles(s.ins)}")
    open(path, "w").write(g.text())
    return len(seen)


if __name__ == "__main__":
    import argparse
    ap = argparse.ArgumentParser()
    ap.add_argument("-o", default="cdna_kernels/" + NAME + ".s")
    ap.add_argument("-C", type=int, default=1)
    ap.add_argument("--stamps", action="store_true")
    ap.add_argument("--noxpf", action="store_true")
    ap.add_argument("--nowpf", action="store_true")
    ap.add_argument("--fb", action="store_true")
    ap.add_argument("kw", nargs="*")
    a = ap.parse_args()
    kw = {}
    for x in a.kw:
        k, v = x.split("=")
        kw[k] = int(v) if v.lstrip("-").isdigit() else " " + v
    n = build(a.o, a.C, a.stamps, not a.noxpf, not a.nowpf, a.fb, **kw)
    print("problems:", n)
```

```python
import math, struct, sys
from asmlib import Ins, Seg, check_trace, est_cycles, auto_vm
from sched import Timeline, Item, LAT

NAME = "parallel_sum__grouped_kv_mqa__geglu_ffn__prompt"


def f32(x):
    return "0x%08x" % struct.unpack("<I", struct.pack("<f", x))[0]


LOG2E = 1.4426950408889634
K0 = 2 * LOG2E * math.sqrt(2 / math.pi)
K1 = K0 * 0.044715
ALPHA = K1 ** (1.0 / 3.0)
K0P = K0 / ALPHA
CK = LOG2E / math.sqrt(18.0) / ALPHA ** 2
MOFF = 84.0
OOB = 0x40000000

SLOT = 36864
KVS0, KVS1, KVST = 110592, 131072, 20480
WS_KV, WS_FLAG, WS_HX, WS_OM, WS_PART, WS_STAMP = 0, 0x40000, 0x80000, 0x300000, 0x600000, 0x1C00000
WS_SIZE = 0x2000000
DD = 20

sX, sG, sU, sD, sWS, sOUT, sDBG, sQ, sKV, sWO, sPF = 8, 12, 16, 20, 24, 28, 32, 36, 40, 44, 72
sW, sR, sS, sROLE, sE1, sE2 = 76, 77, 78, 79, 80, 81
sM0W, sA, sC0, sC1, sINC, sIT, sHI, sNK, sT0, sT1, sT2, sT3 = 82, 83, 84, 85, 86, 87, 88, 89, 90, 91, 92, 93
sST, sFL, sPFO, sPOL, sSTN, sFLN = 94, 95, 96, 97, 98, 99
pG, pU, sDM, sDG, sINN, sNRN = 48, 50, 56, 60, 68, 69
sMASK = 4
sMK2 = 6


def srd(n):
    return f"s[{n}:{n + 3}]"


vL, vT0, vT1, vT2, vT3 = 1, 2, 3, 4, 5
vL16, vFLG = 6, 7
vRB = 8
vDM, vPF, vPOL, vONE = 24, 25, 26, 27
vTMP = 20
vDN = 28
vGL, vG, vU, vH = 32, 64, 96, 128
vLO, vRAW = 40, 112
aXN, aFR, aH0 = 0, 144, 216


def vr(a, n=4):
    return f"v[{a}:{a + n - 1}]" if n > 1 else f"v{a}"


def ar(a, n=4):
    return f"a[{a}:{a + n - 1}]" if n > 1 else f"a{a}"


def xn(u, k):
    return ar(aXN + 4 * (18 * u + k))


def frag(gam, i):
    return aFR + 36 * (gam % 2) + 4 * i


class Gen:
    def __init__(self, C=1, stamps=False, xpf=True, wpf=True, **kw):
        self.o = kw
        self.C = C
        self.stamps = stamps
        self.xpf = xpf
        self.wpf = wpf
        self.segs = []
        self.nstamp = {}

    def seg(self, name):
        s = Seg(name)
        self.segs.append(s)
        return s

    def stamp(self, s, k):
        if not self.stamps:
            return
        s(f"""s_waitcnt lgkmcnt(0)
        s_memtime s[52:53]
        s_memrealtime s[54:55]
        s_waitcnt lgkmcnt(0)
        v_writelane_b32 v0, s52, {2 * k}
        v_writelane_b32 v0, s54, {2 * k + 1}""")

    def stamp_flush(self, s):
        if not self.stamps:
            return
        s(f"""s_lshl_b32 s48, s2, 2
        s_add_u32 s48, s48, s{sW}
        s_lshl_b32 s48, s48, 8
        s_add_u32 s48, s48, {WS_STAMP}
        v_lshlrev_b32 v{vT0}, 2, v{vL}
        buffer_store_dword v0, v{vT0}, {srd(sWS)}, s48 offen""")

    def std_reads(self, gam0, pos0, slot, tag):
        R = []
        n = 0
        for ct in range(4):
            for i in range(9):
                for h in range(2):
                    f = frag(gam0 + ct, i) + 2 * h
                    off = slot * SLOT + 4096 * i + 2048 * h
                    ins = Ins(f"ds_read_b64_tr_b16 {ar(f, 2)}, v{vRB + 4 * (off // 65536) + ct} offset:{off % 65536}", tag=tag)
                    g0 = pos0 + 18 * ct
                    R.append(Item("r", ins, pos0 - DD + n, earliest=g0 - 27 + i, deadline=g0 + i - LAT - 1))
                    n += 1
        return R

    def std_mfmas(self, tl, gam0, pos0, acc, bfun, zero):
        for ct in range(4):
            for u in range(2):
                for i in range(9):
                    c = vr(acc + 4 * (2 * ct + u))
                    cin = "0" if (zero and i == 0) else c
                    tl.m[pos0 + 18 * ct + 9 * u + i] = Ins(f"v_mfma_f32_16x16x32_bf16 {c}, {ar(frag(gam0 + ct, i))}, {bfun(u, i)}, {cin}")

    def barrier(self, tl, p, vmtags, ldstag):
        g = tl.gap(p)
        g.shadow.append(Ins("s_waitcnt vmcnt(63) lgkmcnt(6)", auto=vmtags))
        g.bar.append(Ins("s_barrier", need=list(vmtags) + [f"lds:{ldstag}/6"]))

    def dmas(self, tl, stage, voff, first, inc, tag, srdn=None):
        for i in range(9):
            p = 72 * (stage - 3) + 7 + 8 * i
            m0 = f"s_add_u32 m0, s{sM0W}, {(stage % 4) * SLOT + 4096 * i}"
            if srdn is not None:
                sh = [m0, first[0] if (i == 0 and first) else f"s_add_u32 s{sA}, s{sA}, {inc}"]
                op = f"buffer_load_dwordx4 v{voff}, {srd(srdn)}, s{sA} offen lds"
            else:
                sh = [m0] + (first if (i == 0 and first) else [f"s_add_u32 s{sDM}, s{sDM}, {inc}", f"s_addc_u32 s{sDM + 1}, s{sDM + 1}, 0"])
                op = f"buffer_load_dwordx4 v{voff}, {srd(sDM)}, 0 offen lds"
            for k, t in enumerate(sh):
                tl.gap(p - len(sh) + 1 + k).shadow.append(Ins(t))
            tl.gap(p).mem.append(Ins(op, tag=tag))

    def shadows(self, tl, p, seq):
        for t in seq:
            tt = t if isinstance(t, tuple) else (t,)
            while any(tl.gap(p + k).shadow for k in range(len(tt))):
                p += 1
            for x in tt:
                tl.gap(p).shadow.append(Ins(x))
                p += 1
        return p

    def gelu_items(self, base, t0, t1, idx, hreg):
        raw = []
        for j in range(8):
            rel = base + 72 + 9 * j + 8 + 4
            dl = base + 288 + 9 * j - 1
            g, t = vG + 4 * j, vGL + 4 * j
            for e in range(4):
                raw.append(("v", [Ins(f"v_fma_f32 v{t + e}, -v{g + e}, v{g + e}, s{sNK}")], rel, dl))
            for e in range(4):
                raw.append(("v", [Ins(f"v_mul_f32 v{t + e}, v{t + e}, v{g + e}")], rel, dl))
            for e in range(4):
                raw.append(("v", [Ins(f"v_exp_f32 v{t + e}, v{t + e}")], rel, dl))
            for e in range(4):
                raw.append(("v", [Ins(f"v_add_f32 v{t + e}, 1.0, v{t + e}")], rel, dl))
            for e in range(4):
                raw.append(("v", [Ins(f"v_rcp_f32 v{t + e}, v{t + e}")], rel, dl))
            for e in range(4):
                raw.append(("v", [Ins(f"v_mul_f32 v{t + e}, v{t + e}, v{g + e}")], rel, dl))
        for j in (0, 2, 4, 6, 1, 3, 5, 7):
            ct, u = j // 2, j % 2
            rel = base + 216 + 9 * j + 8 + 4
            dl = base + 288 + 144 + 9 * j - 1
            t, uu = vGL + 4 * j, vU + 4 * j
            h = hreg + 8 * (ct // 2) + 4 * u + 2 * (ct % 2)
            for e in range(4):
                raw.append(("v", [Ins(f"v_mul_f32 v{t + e}, v{t + e}, v{uu + e}")], rel, dl))
            if idx:
                offs = [16 * k for k in range(8)]
                raw.append(("x", [Ins(f"v_cvt_pk_bf16_f32 v{h + e}, v{t + 2 * e}, v{t + 2 * e + 1}", idx=offs) for e in range(2)], rel, dl))
            else:
                for e in range(2):
                    raw.append(("v", [Ins(f"v_cvt_pk_bf16_f32 v{h + e}, v{t + 2 * e}, v{t + 2 * e + 1}")], rel, dl))
        items = []
        for k, ins, rel, dl in raw:
            if k == "x":
                items.append(Item("x", ins, 0, rel, dl, pre=Ins(f"s_set_gpr_idx_on s{sHI}, 8"), post=Ins("s_set_gpr_idx_off")))
            else:
                items.append(Item("v", ins, 0, rel, dl))
        for c, i in enumerate(items):
            i.target = t0 + (t1 - t0) * c / len(items)
        return items

    def prologue(self):
        C = self.C
        s = self.seg("entry")
        s(f"""s_cmp_ge_u32 s2, 256
        s_cbranch_scc1 L_end
        s_load_dwordx16 s[48:63], s[0:1], 0
        s_load_dwordx8 s[64:71], s[0:1], 64
        v_lshrrev_b32 v{vT0}, 6, v0
        v_and_b32 v{vL}, 63, v0
        v_readfirstlane_b32 s{sW}, v{vT0}
        s_and_b32 s{sT0}, s2, 7
        s_lshr_b32 s{sT1}, s2, 3
        s_and_b32 s{sROLE}, s{sT1}, 1
        s_lshr_b32 s{sT1}, s{sT1}, 1""")
        lc = C.bit_length() - 1
        s(f"""s_and_b32 s{sS}, s{sT0}, {8 // C - 1}
        s_lshl_b32 s{sS}, s{sS}, {lc}
        s_and_b32 s{sT2}, s{sT1}, {C - 1}
        s_add_u32 s{sS}, s{sS}, s{sT2}
        s_lshl_b32 s{sE1}, s{sT2}, 1
        s_add_u32 s{sE1}, s{sE1}, s{sROLE}
        s_lshr_b32 s{sE2}, s{sT1}, {lc}
        s_lshr_b32 s{sR}, s{sT0}, {3 - lc}
        s_lshl_b32 s{sR}, s{sR}, {4 - lc}
        s_add_u32 s{sR}, s{sR}, s{sE2}
        s_lshl_b32 s{sM0W}, s{sW}, 10
        v_lshlrev_b32 v{vL16}, 4, v{vL}
        v_lshrrev_b32 v{vT0}, 3, v{vL}
        v_and_b32 v{vT1}, 7, v{vL}
        s_lshl_b32 s{sT0}, s{sW}, 5
        v_add_u32 v{vT2}, s{sT0}, v{vT0}
        v_mul_u32_u24 v{vT2}, 1152, v{vT2}
        v_lshl_add_u32 v{vTMP}, v{vT1}, 4, v{vT2}
        v_and_b32 v{vT0}, 48, v{vL}
        v_xor_b32 v28, v{vTMP}, v{vT0}
        v_xor_b32 v29, 64, v28
        v_add_u32 v29, 9216, v29
        v_add_u32 v30, 18432, v28
        v_add_u32 v31, 18432, v29
        s_mul_i32 s{sT0}, s{sR}, 147456
        s_mul_i32 s{sT1}, s{sS}, 1152
        s_waitcnt lgkmcnt(0)""")
        self.stamp0(s)

        def mk(n, src, offreg, size, sub=False):
            if offreg is None:
                s(f"s_mov_b32 s{n}, s{src}\ns_and_b32 s{n + 1}, s{src + 1}, 0xffff")
            else:
                s(f"s_add_u32 s{n}, s{src}, s{offreg}\ns_addc_u32 s{n + 1}, s{src + 1}, 0\ns_and_b32 s{n + 1}, s{n + 1}, 0xffff")
            if sub:
                s(f"s_sub_u32 s{n + 2}, {size}, s{offreg}")
            else:
                s(f"s_mov_b32 s{n + 2}, {size}")
            s(f"s_mov_b32 s{n + 3}, 0x20000")

        mk(sX, 48, sT0, 147456)
        vXO = 28
        xl = []
        for u in range(2):
            for c in range(9):
                for r2 in range(2):
                    rg = 2 * u + r2
                    xl.append([Ins(f"s_add_u32 m0, s{sM0W}, {rg * SLOT + 4096 * c - 128 * c}"),
                               Ins(f"buffer_load_dwordx4 v{vXO + rg}, {srd(sX)}, 0 offen offset:{128 * c} lds", tag=f"x{9 * u + c}")])
        NUP = self.o.get("nup", 12)
        xpos = self.o.get("xpos", 0)
        for k, q in enumerate(xl[:NUP] + [None]):
            if self.xpf and k == min(xpos, NUP):
                per = 144 // C
                n = (per + 63) // 64
                lanes = per // n
                s(f"""s_lshl_b32 s{sT2}, s{sE1}, 2
                s_add_u32 s{sT2}, s{sT2}, s{sW}
                s_mul_i32 s{sT2}, s{sT2}, {per * 128}
                v_min_u32 v{vT2}, {lanes - 1}, v{vL}
                v_lshlrev_b32 v{vT2}, 7, v{vT2}""")
                for i in range(n):
                    s(f"buffer_load_dword v{vT3}, v{vT2}, {srd(sX)}, s{sT2} offen", tag="pf")
                    if i + 1 < n:
                        s(f"s_add_u32 s{sT2}, s{sT2}, {lanes * 128}")
            if q:
                s.add(q[0])
                s("s_nop 0")
                s.add(q[1])
        mk(sG, 60, sT1, 5308416, sub=True)
        mk(sU, 62, sT1, 5308416, sub=True)
        mk(sOUT, 66, sT0, 147456)
        s(f"s_mul_i32 s{sT0}, s{sS}, 663552\ns_mul_i32 s{sT1}, s{sS}, 144")
        mk(sD, 64, sT0, 663552)
        mk(sQ, 50, sT1, 663552, sub=True)
        mk(sWS, 70, None, WS_SIZE)
        mk(sDBG, 68, None, 256)
        mk(sWO, 56, None, 663552)
        s(f"""s_bitcmp1_b32 s{sS}, 1
        s_cselect_b32 s{sKV}, s54, s52
        s_cselect_b32 s{sKV + 1}, s55, s53
        s_and_b32 s{sKV + 1}, s{sKV + 1}, 0xffff
        s_mov_b32 s{sKV + 2}, 20736
        s_mov_b32 s{sKV + 3}, 0x20000
        s_cmp_ge_u32 s{sW}, 2
        s_cselect_b32 s{sPF}, s{sU}, s{sG}
        s_cselect_b32 s{sPF + 1}, s{sU + 1}, s{sG + 1}
        s_mov_b32 s{sPF + 2}, s{sG + 2}
        s_mov_b32 s{sPF + 3}, 0x20000
        s_cmp_eq_u32 s{sROLE}, 0
        s_cselect_b32 s{sC0}, 128, 0
        s_add_u32 s{sT0}, s{sC0}, {8 * 32 * 9216}
        s_add_u32 s{sDM}, s{sU}, s{sT0}
        s_addc_u32 s{sDM + 1}, s{sU + 1}, 0
        s_mov_b32 s{sDM + 2}, {31 * 9216 + 128}
        s_mov_b32 s{sDM + 3}, 0x20000""")
        npf = 1 if C <= 2 else 2
        self.npf = npf
        lanes = 18 * C // npf
        self.pfstep = lanes * (32 // C)
        s(f"""s_and_b32 s{sT0}, s{sW}, 1
        s_lshl_b32 s{sT1}, s{sE2}, 1
        s_add_u32 s{sT0}, s{sT0}, s{sT1}
        v_lshlrev_b32 v{vT0}, {5 - lc}, v{vL}
        v_add_u32 v{vT0}, s{sT0}, v{vT0}
        v_mul_u32_u24 v{vPF}, 9216, v{vT0}
        v_mul_u32_u24 v{vPOL}, 1152, v{vT0}
        v_mov_b32 v{vT1}, {OOB}
        v_cmp_gt_u32 vcc, {lanes}, v{vL}
        s_nop 1
        v_cndmask_b32 v{vPF}, v{vT1}, v{vPF}, vcc
        v_cndmask_b32 v{vPOL}, v{vT1}, v{vPOL}, vcc""")
        s(f"""v_lshrrev_b32 v{vT0}, 2, v{vL}
        v_lshlrev_b32 v{vT0}, 7, v{vT0}
        v_and_b32 v{vT1}, 3, v{vL}
        v_lshl_add_u32 v{vT0}, v{vT1}, 3, v{vT0}
        v_bfe_u32 v{vT1}, v{vL}, 3, 2""")
        for ct in range(4):
            s(f"""v_xor_b32 v{vT2}, {ct}, v{vT1}
            v_lshl_add_u32 v{vRB + ct}, v{vT2}, 5, v{vT0}
            v_add_u32 v{vRB + 4 + ct}, 0x10000, v{vRB + ct}
            v_add_u32 v{vRB + 8 + ct}, 0x20000, v{vRB + ct}""")
        s(f"""v_bfe_u32 v{vT0}, v{vL}, 1, 2
        v_lshrrev_b32 v{vT1}, 4, v{vL}
        v_xor_b32 v{vTMP + 2}, v{vT0}, v{vT1}
        v_and_b32 v{vT1}, 1, v{vL}
        v_lshlrev_b32 v{vT1}, 4, v{vT1}
        v_lshl_add_u32 v{vTMP + 1}, v{vTMP + 2}, 5, v{vT1}""")
        vXB = (vFLG, vONE)
        aONE = 252
        s(f"""v_lshrrev_b32 v{vT0}, 5, v{vL}
        v_bfe_u32 v{vT1}, v{vL}, 3, 2
        v_lshl_add_u32 v{vT0}, v{vT0}, 3, v{vT1}
        s_and_b32 s{sT0}, s{sW}, 1
        s_lshl_b32 s{sT0}, s{sT0}, 4
        s_lshr_b32 s{sT1}, s{sW}, 1
        s_lshl_b32 s{sT1}, s{sT1}, 2
        s_add_u32 s{sT0}, s{sT0}, s{sT1}
        v_add_u32 v{vTMP + 3}, s{sT0}, v{vT0}
        v_mul_u32_u24 v{vDM}, 9216, v{vTMP + 3}
        v_add_u32 v{vDM}, v{vDM}, v{vTMP + 1}
        s_mov_b32 s{sNK}, {f32(-K0P)}
        s_mov_b32 s{sMASK}, 0
        s_mov_b32 s{sMASK + 1}, -1
        s_mov_b32 s{sINC}, {32 * 9216}
        v_bfe_u32 v{vT0}, v{vL}, 1, 3
        v_lshrrev_b32 v{vT1}, 4, v{vL}
        v_xor_b32 v{vT0}, v{vT0}, v{vT1}
        v_and_b32 v{vT2}, 7, v{vL}
        v_lshl_add_u32 v{vT0}, v{vT2}, 3, v{vT0}
        v_lshl_add_u32 v{vT0}, v{vT0}, 4, s{sM0W}
        v_bfe_u32 v{vT2}, v{vL}, 3, 1
        v_mul_u32_u24 v{vT2}, {SLOT}, v{vT2}
        v_add_u32 v{vXB[0]}, v{vT0}, v{vT2}
        v_xor_b32 v{vXB[1]}, 64, v{vXB[0]}
        v_and_b32 v{vT0}, 15, v{vL}
        v_lshlrev_b32 v{vT1}, 2, v{vT1}
        v_sub_u32 v{vT0}, v{vT0}, v{vT1}
        v_mov_b32 v{vT1}, 0x3f803f80""")
        for j in range(4):
            s(f"v_cmp_eq_u32 s[{sDG + 2 * j}:{sDG + 2 * j + 1}], {j}, v{vT0}\nv_accvgpr_write_b32 a{aONE + j}, v{vT1}")
        s(f"""s_and_b32 s{sT2}, s{sE2}, 3
        s_lshl_b32 s{sT2}, s{sT2}, 2
        s_add_u32 s{sT2}, s{sT2}, s{sW}
        s_mul_i32 s{sT2}, s{sT2}, {11 * 128}
        s_cmp_eq_u32 s{sROLE}, 0
        s_cselect_b32 s{sT2}, {OOB}, s{sT2}
        v_min_u32 v{vT2}, 10, v{vL}
        v_lshlrev_b32 v{vT2}, 7, v{vT2}""")
        s = self.seg("ln")
        pf1, pf2 = [], []
        if self.wpf:
            pf1.append([Ins(f"buffer_load_dword v{vT3}, v{vT2}, {srd(sKV)}, s{sT2} offen", tag="pf")])
            for i in range(npf):
                pf1.append([Ins(f"s_add_u32 s{sT0}, s{sC0}, {i * self.pfstep * 9216}"),
                            Ins(f"buffer_load_dword v{vT3}, v{vPF}, {srd(sPF)}, s{sT0} offen", tag="pf")])
        self.pf2 = lambda col: [x for i in range(npf) for x in (Ins(f"s_mov_b32 s{sT0}, {col + i * self.pfstep * 9216}"),
                                                                 Ins(f"buffer_load_dword v{vT3}, v{vPF}, {srd(sPF)}, s{sT0} offen", tag="pf"))]
        wl = []
        for st in range(3):
            for i in range(9):
                wl.append([Ins(f"s_add_u32 m0, s{sM0W}, {st * SLOT + 4096 * i}"),
                           Ins(f"s_mov_b32 s{sA}, s{sC0}" if (i == 0 and st % 2 == 0) else f"s_add_u32 s{sA}, s{sA}, s{sINC}"),
                           Ins(f"buffer_load_dwordx4 v{vDM}, {srd(sG if st < 2 else sU)}, s{sA} offen lds", tag=f"st{st}", need=[f"lds:xr{st // 2}"])])
        pfpos = max(NUP, self.o.get("pfpos", 36))
        g0 = self.o.get("g0", 0)
        w1 = self.o.get("w1", 18)
        wskip = self.o.get("wskip", 0)
        q0 = xl[NUP:pfpos] + (wl[:g0] if pfpos == 36 else []) + pf1 + xl[pfpos:]
        vSU, vGR, vK = 32, 36, 2

        def xread(u, c, hh):
            return Ins(f"ds_read_b128 {vr(vRAW + 4 * (18 * u + 2 * c + hh))}, v{vXB[hh]} offset:{4096 * c}", tag=f"xr{u}", need=[f"x{9 * u + c}"])

        def xwait(u, c):
            return Ins("s_waitcnt vmcnt(63)", auto=[f"x{9 * u + c}"])

        def vmop(s, q, pad):
            s.extend(q[:-1])
            if pad and len(q) == 2 and "m0" in q[0].wr:
                s("s_nop 0")
            s.add(q[-1])

        for u in range(2):
            queue = q0 if u == 0 else [None] * wskip + wl[g0:w1]
            if u == 0:
                for c in range(2):
                    s.add(xwait(0, c))
                    s.extend([xread(0, c, 0), xread(0, c, 1)])
                    if c == 0:
                        self.stamp(s, 10)
            s("s_waitcnt lgkmcnt(2)")
            for c in range(9):
                for hh in range(2):
                    n = 2 * c + hh
                    r, lo = vRAW + 4 * (18 * u + n), vLO + 4 * n
                    s(f"v_mfma_f32_16x16x32_bf16 {vr(vSU)}, {ar(aONE)}, {vr(r)}, {'0' if n == 0 else vr(vSU)}")
                    if hh == 0 and c + 2 < 9:
                        s.add(xwait(u, c + 2))
                        s.add(xread(u, c + 2, 0))
                    if hh == 1 and queue:
                        q = queue.pop(0)
                        if q:
                            vmop(s, q, True)
                    for j in range(4):
                        s(f"v_lshlrev_b32 v{lo + j}, 16, v{r + j}")
                    s(f"v_mfma_f32_16x16x32_bf16 {vr(vGR)}, {vr(r)}, {vr(r)}, {'0' if n == 0 else vr(vGR)}")
                    if hh == 0:
                        q = queue.pop(0) if queue else None
                        if q:
                            s.extend(q[:-1])
                        if c + 2 < 9:
                            s.add(xread(u, c + 2, 1))
                        elif q and len(q) == 2:
                            s("s_nop 0")
                        if q:
                            s.add(q[-1])
                    elif c < 8:
                        s(f"s_waitcnt lgkmcnt({2 if c + 2 < 9 else 0})")
                    for j in range(4):
                        s(f"v_and_b32 v{r + j}, 0xffff0000, v{r + j}")
            self.stamp(s, 11 + 2 * u)
            if u == 0:
                s(f"v_add_u32 v{vXB[0]}, {2 * SLOT}, v{vXB[0]}\nv_add_u32 v{vXB[1]}, {2 * SLOT}, v{vXB[1]}\ns_nop 1")
            else:
                assert not queue
                queue = wl[w1:]
                s(f"""s_cmp_eq_u32 s{sROLE}, 0
                s_cbranch_scc1 L_nokv""")
                k = self.seg("kvdma")
                k(f"""v_lshrrev_b32 v{vT0}, 1, v{vL}
                v_mul_u32_u24 v{vT0}, 36, v{vT0}
                v_and_b32 v{vT1}, 1, v{vL}
                v_lshl_add_u32 v{vT0}, v{vT1}, 4, v{vT0}
                s_and_b32 s{sT0}, s{sS}, 1
                s_lshl_b32 s{sT0}, s{sT0}, 5
                s_mul_i32 s{sT1}, s{sW}, 1152
                s_add_u32 s{sT1}, s{sT0}, s{sT1}""")
                for i in range(5):
                    k(f"s_add_u32 m0, s{sM0W}, {3 * SLOT + 4096 * i}")
                    k(f"s_add_u32 s{sT0}, s{sT1}, {4608 * i}")
                    k(f"buffer_load_dwordx4 v{vT0}, {srd(sKV)}, s{sT0} offen lds", tag="kvimg", need=["lds:xr1"])
                s = self.seg("ln2")
                s("L_nokv:\ns_nop 1")
            s(f"v_cndmask_b32 v{vGR}, 0, v{vGR}, s[{sDG}:{sDG + 1}]")
            for j in range(1, 4):
                s(f"v_cndmask_b32 v{vGR}, v{vGR}, v{vGR + j}, s[{sDG + 2 * j}:{sDG + 2 * j + 1}]")
            s(f"""v_mov_b32 v{vGR + 1}, v{vGR}
            v_mul_f32 v{vSU}, {f32(1 / 576)}, v{vSU}
            s_nop 0
            v_permlane16_swap_b32 v{vGR}, v{vGR + 1}
            v_add_f32 v{vGR}, v{vGR}, v{vGR + 1}
            v_mov_b32 v{vGR + 1}, v{vGR}
            v_mul_f32 v{vSU + 1}, v{vSU}, v{vSU}
            s_nop 0
            v_permlane32_swap_b32 v{vGR}, v{vGR + 1}
            v_add_f32 v{vGR}, v{vGR}, v{vGR + 1}
            v_mul_f32 v{vGR}, {f32(1 / 576)}, v{vGR}
            v_sub_f32 v{vGR}, v{vGR}, v{vSU + 1}
            v_max_f32 v{vGR}, 0, v{vGR}
            v_add_f32 v{vGR}, {f32(1e-5)}, v{vGR}
            v_rsq_f32 v{vGR}, v{vGR}
            s_nop 0
            v_mul_f32 v{vK}, {f32(ALPHA)}, v{vGR}
            v_mul_f32 v{vK + 1}, v{vK}, -v{vSU}""")
            for n in range(18):
                r, lo = vRAW + 4 * (18 * u + n), vLO + 4 * n
                k = vr(vK, 2)
                lim = 16 if u == 0 else 18
                while queue and (n % 2 == 0 or len(queue) > (lim - n) // 2):
                    vmop(s, queue.pop(0), True)
                    if len(queue) < lim - n:
                        break
                if u == 0 and n == 16:
                    assert not queue
                    s.add(xwait(1, 1))
                    s.extend([xread(1, c, hh) for c in range(2) for hh in range(2)])
                for j in (0, 2):
                    s(f"v_pk_fma_f32 {vr(lo + j, 2)}, {vr(lo + j, 2)}, {k}, {k} op_sel:[0,0,1] op_sel_hi:[1,0,1]")
                    s(f"v_pk_fma_f32 {vr(r + j, 2)}, {vr(r + j, 2)}, {k}, {k} op_sel:[0,0,1] op_sel_hi:[1,0,1]")
                for j in range(4):
                    s(f"v_cvt_pk_bf16_f32 v{lo + j}, v{lo + j}, v{r + j}")
                for j in range(4):
                    s(f"v_accvgpr_write_b32 a{aXN + 4 * (18 * u + n) + j}, v{lo + j}")
            assert not queue
            self.stamp(s, 12 + 2 * u)
        s(f"""v_mov_b32 v{vT1}, {OOB}
        v_cmp_eq_u32 vcc, 0, v{vL}
        v_mov_b32 v{vONE}, 1
        s_nop 0
        v_cndmask_b32 v{vFLG}, v{vT1}, 0, vcc""")
        self.stamp(s, 1)
        s(f"""s_cmp_lg_u32 s{sROLE}, 0
        s_cbranch_scc1 L_p1""")

    def stamp0(self, s):
        if not self.stamps:
            return
        s(f"""s_memtime s[100:101]
        s_waitcnt lgkmcnt(0)
        v_writelane_b32 v0, s100, 0
        s_memrealtime s[100:101]
        s_waitcnt lgkmcnt(0)
        v_writelane_b32 v0, s100, 1""")

    def p0(self):
        tl = Timeline()
        xb = lambda h: (lambda u, i: xn(u, 9 * h + i))
        for st, (acc, h) in enumerate(((vG, 0), (vG, 1), (vU, 0), (vU, 1), (vG, 0), (vG, 1))):
            self.std_mfmas(tl, 4 * st, 72 * st, acc, xb(h), h == 0)
            tl.put_reads(self.std_reads(4 * st, 72 * st, st % 4, f"r{st % 4}"))
            if st:
                self.barrier(tl, 72 * st - DD, [f"st{st % 4}"], f"r{(st - 1) % 4}")
        for st in range(3, 9):
            sl = st % 4
            first = [f"s_mov_b32 s{sDM}, s{pG if sl < 2 else pU}", f"s_mov_b32 s{sDM + 1}, s{(pG if sl < 2 else pU) + 1}"] if sl % 2 == 0 else None
            self.dmas(tl, st, vDM, first, f"s{sINC}", f"st{sl}")
        tl.gap(306).mem.append(Ins(f"buffer_load_dword v{vPOL}, off, {srd(sDBG)}, s{sPOL} sc1", tag="poll"))
        e = self.shadows(tl, 360, [f"s_mov_b32 s{sINC}, s{sINN}", f"s_mov_b32 s{sDM + 2}, s{sNRN}"])
        assert e <= 365
        tl.gap(362).valu.append(Ins(f"v_mov_b32 v{vDM}, v{vDN}"))
        self.shadows(tl, 120, [f"s_add_u32 s{sHI}, s{sHI}, 16", f"s_and_b32 s{sHI}, s{sHI}, 127", f"s_add_u32 s{sIT}, s{sIT}, 1",
                               (f"s_add_u32 s{pG}, s{pG}, 128", f"s_addc_u32 s{pG + 1}, s{pG + 1}, 0"),
                               (f"s_cmp_eq_u32 s{sIT}, 6", f"s_cselect_b32 s{sPOL}, s{sT3}, {OOB}")])
        self.shadows(tl, 224, [(f"s_add_u32 s{pU}, s{pU}, 128", f"s_addc_u32 s{pU + 1}, s{pU + 1}, 0")])
        tl.gap(287).shadow.append(Ins(f"s_cmp_lt_u32 s{sIT}, 7"))
        V = self.gelu_items(0, 85, 371, True, vH)
        tl.fill(85, 288, V)
        state = {"V": [i.ins[0].text for i in V]}
        tl.fill(288, 373, V, flush=10 ** 9)
        for p in range(288, 373):
            tl.g[p - 288] = tl.g[p]
        pre = [(p, m) for p in range(262, 268) for m in tl.gap(p).mem if m.kind == "lds"]
        state["out"] = tl.insert_lgkm_waits(268, 288, pre)
        tl.insert_lgkm_waits(0, 268, [(p - 288, m) for p, m in state["out"]])
        prew = [m for m in tl.gap(268).mem if m.kind == "lds"]
        prew += [m for p in range(269, 288) for m in tl.gap(p).ins() if m.kind == "lds" or (m.kind == "wait" and m.lg is not None)]
        s = self.seg("p0pre")
        if self.wpf:
            for c in range(self.o.get("npf0", 1)):
                s.extend(self.pf2(256 + 128 * c))
        s(f"""s_add_u32 s{pG}, s{sG}, 256
        s_addc_u32 s{pG + 1}, s{sG + 1}, 0
        s_add_u32 s{pU}, s{sU}, 256
        s_addc_u32 s{pU + 1}, s{sU + 1}, 0
        s_mov_b32 s{sIT}, 0
        s_mov_b32 s{sHI}, 112
        s_mov_b32 s{sPOL}, {OOB}
        s_lshl_b32 s{sT3}, s{sR}, 2
        s_add_u32 s{sT3}, s{sT3}, 128
        s_mov_b32 s{sINN}, s{sINC}
        s_mov_b32 s{sNRN}, s{sDM + 2}
        v_mov_b32 v{vDN}, v{vDM}""")
        s("s_waitcnt vmcnt(63)", auto=["st0"])
        s("s_barrier", need=["st0"])
        s.extend(prew)
        s(".p2align 3")
        a = self.seg("aloop")
        a("L_aloop:")
        a.extend(tl.emit(0, 288))
        a("s_cbranch_scc1 L_aloop")
        a2 = self.seg("aexit")
        a2(f"""s_cmp_eq_u32 s{sIT}, 7
        s_cbranch_scc0 L_bstart""")
        w = self.seg("aswitch")
        w(f"""v_readfirstlane_b32 s{sT0}, v{vPOL}
        s_mov_b32 s{sT1}, 0
        s_cmp_ge_u32 s{sT0}, 8
        s_cbranch_scc1 L_hready""")
        sp = self.seg("hspin")
        sp(f"""L_hspin:
        s_sleep 4
        buffer_load_dword v{vPOL}, off, {srd(sDBG)}, s{sT3} sc1
        s_add_u32 s{sT1}, s{sT1}, 1
        s_waitcnt vmcnt(0)
        v_readfirstlane_b32 s{sT0}, v{vPOL}
        s_cmp_gt_u32 s{sT1}, 0x40000
        s_cbranch_scc1 L_end
        s_cmp_ge_u32 s{sT0}, 8
        s_cbranch_scc0 L_hspin""")
        w = self.seg("aswitch2")
        w(f"""L_hready:
        s_lshl_b32 s{sT0}, s{sR}, 3
        s_add_u32 s{sT0}, s{sT0}, s{sS}
        s_lshl_b32 s{sT1}, s{sT0}, 2
        s_add_u32 s{sT1}, s{sT1}, s{sW}
        s_lshl_b32 s{sT1}, s{sT1}, 12
        s_add_u32 s{sT1}, s{sT1}, {WS_HX}""")
        for k in range(4):
            w(f"buffer_load_dwordx4 {ar(aH0 + 4 * k)}, v{vL16}, {srd(sWS)}, s{sT1} offen offset:{1024 * k} sc1", tag="h0")
        w(f"""s_mov_b32 s{sINN}, {32 * 1152}
        s_mov_b32 s{sNRN}, {31 * 1152 + 128}
        s_lshl_b32 s{sC0}, s{sS}, 7
        s_add_u32 s{pG}, s{sD}, s{sC0}
        s_addc_u32 s{pG + 1}, s{sD + 1}, 0
        s_add_u32 s{sC0}, s{sC0}, 128
        s_and_b32 s{sC0}, s{sC0}, 1023
        s_add_u32 s{pU}, s{sD}, s{sC0}
        s_addc_u32 s{pU + 1}, s{sD + 1}, 0
        v_lshrrev_b32 v{vT0}, 3, v{vL}
        s_lshl_b32 s{sT1}, s{sW}, 3
        v_add_u32 v{vT0}, s{sT1}, v{vT0}
        v_mul_u32_u24 v{vT0}, 1152, v{vT0}
        v_add_u32 v{vDN}, v{vT0}, v{vTMP + 1}
        s_mul_i32 s{sT2}, s{sT0}, {9 * 16384}
        s_lshl_b32 s{sT1}, s{sW}, 12
        s_add_u32 s{sT2}, s{sT2}, s{sT1}
        s_add_u32 s{sT2}, s{sT2}, {WS_PART}
        s_lshl_b32 s{sT3}, s{sR}, 12
        s_lshl_b32 s{sT1}, s{sW}, 7
        s_add_u32 s{sT3}, s{sT3}, s{sT1}
        s_lshl_b32 s{sT1}, s{sS}, 2
        s_add_u32 s{sT3}, s{sT3}, s{sT1}
        s_add_u32 s{sT3}, s{sT3}, {WS_FLAG + 32}
        s_branch L_aloop""")

        def hb(h):
            def f(u, i):
                k = 9 * h + i
                c, a_ = k // 2, k % 2
                if c == 0:
                    return ar(aH0 + 8 * a_ + 4 * u)
                return vr(vH + 16 * (c - 1) + 8 * a_ + 4 * u)
            return f

        def outv(base, tag):
            V = []
            for j in range(8):
                ct, u = j // 2, j % 2
                rel = base + 72 + 9 * j + 8 + 8
                dl = base + 144 + 9 * j - 1
                p = vU + 8 * (ct // 2) + 4 * u + 2 * (ct % 2)
                for e in range(2):
                    V.append(Item("v", Ins(f"v_cvt_pk_bf16_f32 v{p + e}, v{vG + 4 * j + 2 * e}, v{vG + 4 * j + 2 * e + 1}"), rel + e, rel, dl))
                if ct % 2 == 1:
                    k = 2 * (ct // 2) + u
                    V.append(Item("m", Ins(f"buffer_store_dwordx4 {vr(vU + 4 * k)}, v{vL16}, {srd(sWS)}, s{sST} offen offset:{1024 * k} sc1", tag=tag), rel + 2, rel + 1))
            return V

        tb = Timeline()
        fpos = self.o.get("fpos", 124)
        for st in range(8):
            h = st % 2
            self.std_mfmas(tb, 4 * st, 72 * st, vG, hb(h), h == 0)
            tb.put_reads(self.std_reads(4 * st, 72 * st, st % 4, f"r{st % 4}"))
            if st:
                self.barrier(tb, 72 * st - DD, [f"st{st % 4}"], f"r{(st - 1) % 4}")
        for st in range(3, 9):
            first = [f"s_mov_b32 s{sDM + 2}, s{sNRN}", f"s_add_u32 s{sDM}, s{sD}, s{sC0}", f"s_addc_u32 s{sDM + 1}, s{sD + 1}, 0"]
            self.dmas(tb, st, vDM, first if st % 2 == 0 else None, 32 * 1152, f"st{st % 4}")
        for step in range(3):
            base = 144 * step
            prev = f"part{(step - 1) % 2}"
            g = tb.gap(base + fpos)
            if g.bar:
                g.shadow[0].auto.append(prev)
            else:
                g.shadow.append(Ins("s_waitcnt vmcnt(63)", auto=[prev]))
            g.mem.append(Ins(f"buffer_store_dword v{vONE}, v{vFLG}, {srd(sWS)}, s{sFL} offen sc1", tag="flag", need=[f"old:{prev}/0"]))
            e = self.shadows(tb, base + 24, [f"s_add_u32 s{sT0}, s{sIT}, s{sS}", f"s_and_b32 s{sT1}, s{sT0}, 7",
                                             (f"s_cmp_lt_u32 s{sIT}, 8", f"s_cselect_b32 s{sT1}, s{sT1}, 8"),
                                             f"s_add_u32 s{sT0}, s{sT0}, 2", f"s_and_b32 s{sT0}, s{sT0}, 7",
                                             (f"s_cmp_lt_u32 s{sIT}, 6", f"s_cselect_b32 s{sT0}, s{sT0}, 8"),
                                             f"s_lshl_b32 s{sC0}, s{sT0}, 7",
                                             (f"s_cmp_lt_u32 s{sIT}, 7", f"s_cselect_b32 s{sNRN}, s{sNRN}, 0"),
                                             f"s_lshl_b32 s{sST}, s{sT1}, 14", f"s_add_u32 s{sST}, s{sST}, s{sT2}",
                                             f"s_mov_b32 s{sFL}, s{sFLN}", f"s_lshl_b32 s{sFLN}, s{sT1}, 9",
                                             f"s_add_u32 s{sFLN}, s{sFLN}, s{sT3}", f"s_add_u32 s{sIT}, s{sIT}, 1"])
            assert e < base + min(fpos, 76)
        tb.gap(431).shadow.append(Ins(f"s_cmp_lt_u32 s{sIT}, 9"))
        Vall = self.gelu_items(-288, 0, 1, False, vH + 112)
        nrem = sum(2 if t.startswith("v_cvt") else 1 for t in state["V"])
        V = Vall[len(Vall) - nrem:]
        assert V[0].ins[0].text == state["V"][0], (V[0].ins[0].text, state["V"][0])
        for c, i in enumerate(V):
            i.target = 82.0 * c / len(V)
            if i.ins[0].op.startswith("v_cvt"):
                u = ((int(i.ins[0].wr[0][1:]) - vH) // 4) % 2
                i.deadline = 72 + 7 + 9 * u - 2
        bstate = []
        o = [(p - 288, m) for p, m in state["out"]]
        for step in range(3):
            V += outv(144 * step, f"part{step % 2}")
            tb.fill(144 * step, 144 * step + 144, V)
            o = tb.insert_lgkm_waits(144 * step, 144 * step + 144, o)
            bstate.append(([i.ins[0].text for i in V], len(o)))
            for p in range(144 * step + 20, 144 * step + 90):
                assert not any(m.op.startswith("buffer_store_dwordx4") for m in tb.gap(p).mem)
        assert bstate[0][0] == bstate[2][0] and bstate[2][1] <= bstate[0][1], bstate
        tailV = list(V)
        s = self.seg("b0")
        s(f"""L_bstart:
        s_mov_b32 s{sIT}, 0
        s_mov_b32 s{sFLN}, {OOB}""")
        self.stamp(s, 2)
        s.extend(tb.emit(0, 144))
        s(".p2align 3")
        bl = self.seg("bloop")
        bl("L_bloop:")
        bl.extend(tb.emit(144, 432))
        bl("s_cbranch_scc1 L_bloop")
        e = self.seg("bend")
        e("s_nop 5")
        for it in tailV:
            e.extend(it.ins)
        e(f"""v_lshlrev_b32 v{vT0}, 9, v{vL}
        v_mov_b32 v{vT1}, {OOB}
        v_cmp_gt_u32 vcc, 8, v{vL}
        s_add_u32 s{sT3}, s{sT3}, 32
        s_nop 0
        v_cndmask_b32 v{vT0}, v{vT1}, v{vT0}, vcc""")
        self.stamp(e, 3)
        e("s_waitcnt vmcnt(0)")
        e(f"buffer_store_dword v{vONE}, v{vT0}, {srd(sWS)}, s{sT3} offen sc1", need=["part0", "part1"])
        self.stamp(e, 4)
        self.stamp_flush(e)
        e("s_endpgm")

    def text(self):
        head = open("cdna_kernels/" + NAME + ".s.ref").read()
        lines = head.split("\n")
        top = [l for l in lines if l.startswith(";") and "@launch" not in l and "Override" not in l and "grid=ceil" not in l]
        out = "\n".join(top) + "\n; @launch grid=(256,1,1) block=(256,1,1) lds=163840\n"
        out += f""".amdgcn_target "amdgcn-amd-amdhsa--gfx950"
.text
.globl {NAME}_kernel
.p2align 8
.type {NAME}_kernel,@function
{NAME}_kernel:
"""
        for s in self.segs:
            out += f"; ---- {s.name}\n" + s.text()
        out += f"""L_end:
    s_endpgm
.section .rodata,"a"
.p2align 6
.amdhsa_kernel {NAME}_kernel
  .amdhsa_next_free_vgpr 512
  .amdhsa_next_free_sgpr 102
  .amdhsa_accum_offset 256
  .amdhsa_group_segment_fixed_size 0
  .amdhsa_kernarg_size 96
  .amdhsa_user_sgpr_count 2
  .amdhsa_user_sgpr_kernarg_segment_ptr 1
  .amdhsa_system_sgpr_workgroup_id_x 1
.end_amdhsa_kernel
"""
        return out

    def trace(self, names):
        d = {s.name: s for s in self.segs}
        t = []
        for n in names:
            t += d[n].ins
        return t
```

```python
from gen import *

vQ1, vQ2 = 96, 112
vS_, vO_ = 128, 192
vK1, vK2, vV_ = 32, 40, 48
vKA, vK2A, vVA, vIDX = 64, 65, 66, 67
vXE = 50
vWM, vWN, vINB, vOA = 68, 69, 30, 31
vKVA = 32
vT4 = 54
vEP = 36
vPD = 70
sPG = 51
XRES, XRESN = 94208, 151552
sXL, sXN, sPE = 48, 49, 50
vSEL = 56
vXA = 72


class Gen1(Gen):
    def spin(self, name, mask, lim="0x40000", first=True):
        s = self.seg(name)
        s(f"""s_mov_b32 s{sT1}, 0
        L_{name}:
        buffer_load_dword v{vPOL}, v{vINB}, {srd(sWS)}, s{sFL} offen sc1
        s_add_u32 s{sT1}, s{sT1}, 1
        s_cmp_gt_u32 s{sT1}, {lim}
        s_cbranch_scc1 L_end
        s_waitcnt vmcnt(0)
        v_cmp_eq_u32 vcc, 0, v{vPOL}
        s_nop 1
        s_and_b64 vcc, vcc, {mask}
        s_cbranch_scc1 L_{name}""")

    def p1(self):
        s = self.seg("p1a")
        s("L_p1:")
        if self.wpf:
            for i in range(self.npf):
                s(f"""s_lshr_b32 s{sT1}, s{sW}, 1
                s_mul_i32 s{sT1}, s{sT1}, 140
                s_add_u32 s{sT1}, s{sT1}, {i * self.pfstep * 1152}""")
                s(f"buffer_load_dword v{vT3}, v{vPOL}, {srd(sQ)}, s{sT1} offen", tag="pf")
        s(f"""v_lshrrev_b32 v{vT0}, 4, v{vL}
        v_bfe_u32 v{vT1}, v{vL}, 2, 2
        v_lshl_add_u32 v{vT0}, v{vT0}, 3, v{vT1}
        v_and_b32 v{vT1}, 3, v{vL}
        v_lshlrev_b32 v{vT1}, 3, v{vT1}
        v_lshl_add_u32 v{vT0}, v{vT0}, 5, v{vT1}
        v_add_u32 v{vT0}, {3 * SLOT}, v{vT0}""")
        s("s_waitcnt vmcnt(63)", auto=["kvimg", "st0"])
        s("s_barrier", need=["kvimg", "st0"])
        for kk in range(18):
            for h in range(2):
                s(f"ds_read_b64_tr_b16 {ar(aFR + 4 * kk + 2 * h, 2)}, v{vT0} offset:{1024 * kk + 128 * h}", tag="kvfr")
        s(f"""s_bitcmp1_b32 s{sS}, 2
        s_cbranch_scc1 L_kvu1
        s_bitcmp1_b32 s{sS}, 1
        s_cbranch_scc1 L_kv01""")
        for u in range(2):
            for o in range(2):
                k = self.seg(f"kv{u}{o}")
                if u == 1 and o == 0:
                    k(f"L_kvu1:\ns_bitcmp1_b32 s{sS}, 1\ns_cbranch_scc1 L_kv11")
                elif o == 1:
                    k(f"L_kv{u}{o}:")
                for kk in range(18):
                    a, b = ar(aFR + 4 * kk), xn(u, kk)
                    if o:
                        a, b = b, a
                    if kk in (0, 10):
                        k(f"s_waitcnt lgkmcnt({15 if kk == 0 else 0})")
                    k(f"v_mfma_f32_16x16x32_bf16 {vr(vKVA)}, {a}, {b}, {'0' if kk == 0 else vr(vKVA)}")
                if not (u == 1 and o == 1):
                    k("s_branch L_kvdone")
        tl = Timeline()
        xb = lambda h: (lambda u, i: xn(u, 9 * h + i))
        for st, (acc, h) in enumerate(((vG, 0), (vG, 1), (vU, 0), (vU, 1), (vG, 0), (vG, 1))):
            self.std_mfmas(tl, 4 * st, 72 * st, acc, xb(h), h == 0)
        for h in range(2):
            for u in range(2):
                for i in range(9):
                    c = vr(vGL + 4 * u)
                    tl.m[432 + 18 * h + 9 * u + i] = Ins(f"v_mfma_f32_16x16x32_bf16 {c}, {ar(frag(24 + h, i))}, {xn(u, 9 * h + i)}, {'0' if h == 0 and i == 0 else c}")
        V = self.gelu_items(0, 85, 384, False, vH)
        for k in range(4):
            V.append(Item("m", Ins(f"buffer_store_dwordx4 {vr(vH + 4 * k)}, v{vL16}, {srd(sWS)}, s{sST} offen offset:{1024 * k} sc1", tag="hst"), 400 + 2 * k, 400))
        for j in range(8):
            ct, u = j // 2, j % 2
            rel = 360 + 9 * j + 8 + 8
            q = vQ1 + 4 * (2 * u + ct // 2)
            for e in range(2):
                V.append(Item("v", Ins(f"v_cvt_pk_bf16_f32 v{q + 2 * (ct % 2) + e}, v{vG + 4 * j + 2 * e}, v{vG + 4 * j + 2 * e + 1}"), max(rel, 410 + 2 * j) + e, rel))
        for q in range(4):
            for e in range(2):
                V.append(Item("v", Ins(f"v_permlane16_swap_b32 v{vQ1 + 4 * q + e}, v{vQ1 + 4 * q + 2 + e}"), 446 + 2 * q + e, 446))
        vQM, vQX, vRX = 28, 29, 30
        for st in range(6):
            tl.put_reads(self.std_reads(4 * st, 72 * st, st % 4, f"r{st}"))
        R = []
        for h in range(2):
            for i in range(9):
                for hh in range(2):
                    ins = Ins(f"ds_read_b64_tr_b16 {ar(frag(24 + h, i) + 2 * hh, 2)}, v{vRX} offset:{2048 * (9 * h + i) + 256 * hh}", tag="r6")
                    g0 = 432 + 18 * h
                    R.append(Item("r", ins, 432 - DD + len(R), earliest=g0 - 27 + i, deadline=g0 + i - LAT - 1))
        tl.put_reads(R)
        arr = self.o.get("kvarr", 2)
        for st in range(1, 7):
            self.barrier(tl, 72 * st - DD, [("st1", "st2", "st3", "q0", "q1", "q2")[st - 1]] + (["kvst"] if st == arr else []), f"r{st - 1}")
        tl.gap(72 * arr - DD).mem.append(Ins(f"buffer_atomic_add v{vONE}, v{vFLG}, {srd(sDBG)}, s{sPOL} offen sc1", tag="arr"))
        self.dmas(tl, 3, vDM, None, f"s{sINC}", "st3")
        self.dmas(tl, 4, vQM, [f"s_mov_b32 s{sDM + 2}, {31 * 1152 + 140}", f"s_mov_b32 s{sDM}, s{sQ}", f"s_mov_b32 s{sDM + 1}, s{sQ + 1}"], 32 * 1152, "q0")
        self.dmas(tl, 5, vQM, None, 32 * 1152, "q1")
        self.dmas(tl, 6, vQX, [f"s_mov_b32 s{sA}, 0"], 64 * 1152, "q2", srdn=sQ)
        tl.gap(self.kvpoll).mem.append(Ins(f"buffer_load_dword v{vPOL}, v{vT2}, {srd(sDBG)}, 0 offen sc1", tag="poll"))
        c = self.kvchk
        assert c >= 341
        tl.gap(c).shadow.append(Ins("s_waitcnt vmcnt(63)", auto=["poll"]))
        tl.gap(c).valu += [Ins(f"v_cmp_gt_u32 vcc, 16, v{vPOL}")]
        tl.gap(c + 2).shadow += [Ins("s_cbranch_vccnz L_kvspin"), Ins("L_kvok:")]
        for sg in range(2):
            for i in range(5):
                p = c + 4 + 4 * (5 * sg + i)
                if i in (0, 4):
                    tl.gap(p - 1).shadow.append(Ins(f"s_add_u32 m0, s{sC1}, {KVS0 + KVST * sg + 1024 * i}"))
                    tl.gap(p).shadow.append(Ins(f"s_add_u32 s{sA}, s{sC1}, {KVST * sg + 1024 * i}"))
                tl.gap(p).mem.append(Ins(f"buffer_load_dwordx4 v{vL16}, {srd(sWS)}, s{sA} offen offset:{1024 * (i % 4)} sc1 lds", tag=f"kv{sg}"))
        tl.fill(0, 468, V, flush=10 ** 9)
        tl.insert_lgkm_waits(-DD, 468, [])
        s = self.seg("p1b")
        s("L_kvdone:")
        s("s_barrier", need=["lds:kvfr"])
        pre = tl.emit(-DD, 0)
        s.extend([i for i in pre if i.kind == "lds"])
        nl = 0
        prew = []
        for i in pre:
            if i.kind == "lds":
                nl += 1
            elif i.kind == "wait":
                prew.append(i.lg + sum(1 for x in pre if x.kind == "lds") - nl)
        s(f"""v_and_b32 v{vT0}, 15, v{vL}
        v_lshrrev_b32 v{vT1}, 5, v{vL}
        v_bfe_u32 v{vT2}, v{vL}, 4, 1
        s_lshr_b32 s{sT0}, s{sR}, 1
        s_mul_i32 s{sT0}, s{sT0}, {KVST}
        s_and_b32 s{sT1}, s{sR}, 1
        s_lshl_b32 s{sT2}, s{sT1}, 2
        s_add_u32 s{sT2}, s{sT2}, s{sW}
        s_lshr_b32 s{sT3}, s{sS}, 2
        v_lshlrev_b32 v{vEP}, 4, v{vT0}
        v_lshl_add_u32 v{vEP}, v{vT2}, 3, v{vEP}
        s_bitcmp1_b32 s{sS}, 1
        s_cbranch_scc1 L_epv""")
        k = self.seg("epk")
        for e in range(4):
            k(f"v_mul_f32 v{vKVA + e}, {f32(CK)}, v{vKVA + e}")
        k(f"""v_cvt_pk_bf16_f32 v{vKVA}, v{vKVA}, v{vKVA + 1}
        v_cvt_pk_bf16_f32 v{vKVA + 1}, v{vKVA + 2}, v{vKVA + 3}
        s_lshl_b32 s{sT3}, s{sT3}, 8
        s_add_u32 s{sT0}, s{sT0}, s{sT3}
        s_bitcmp1_b32 s{sS}, 0
        s_cbranch_scc1 L_epkx""")
        k = self.seg("epkm")
        k(f"""s_lshl_b32 s{sT2}, s{sT2}, 10
        s_add_u32 s{sT0}, s{sT0}, s{sT2}
        v_lshl_add_u32 v{vEP}, v{vT1}, 9, v{vEP}""")
        k(f"buffer_store_dwordx2 {vr(vKVA, 2)}, v{vEP}, {srd(sWS)}, s{sT0} offen sc1", tag="kvst")
        k("s_branch L_epdone")
        k = self.seg("epkx")
        k(f"""L_epkx:
        s_mul_i32 s{sT1}, s{sT1}, 640
        s_lshl_b32 s{sT2}, s{sW}, 2
        s_add_u32 s{sT0}, s{sT0}, s{sT1}
        s_add_u32 s{sT0}, s{sT0}, s{sT2}
        s_add_u32 s{sT0}, s{sT0}, 18432
        v_mov_b32 v{vT1}, {OOB}
        v_cmp_gt_u32 vcc, 16, v{vL}
        s_nop 1
        v_cndmask_b32 v{vEP}, v{vT1}, v{vEP}, vcc""")
        k(f"buffer_store_dword v{vKVA}, v{vEP}, {srd(sWS)}, s{sT0} offen sc1", tag="kvst")
        k("s_branch L_epdone")
        k = self.seg("epv")
        k(f"""L_epv:
        v_cvt_pk_bf16_f32 v{vKVA}, v{vKVA}, v{vKVA + 1}
        v_cvt_pk_bf16_f32 v{vKVA + 1}, v{vKVA + 2}, v{vKVA + 3}
        s_lshl_b32 s{sT2}, s{sT2}, 1
        s_add_u32 s{sT2}, s{sT2}, s{sT3}
        s_mul_i32 s{sT2}, s{sT2}, 640
        s_add_u32 s{sT0}, s{sT0}, s{sT2}
        s_add_u32 s{sT0}, s{sT0}, 8192
        v_mul_u32_u24 v{vT1}, 320, v{vT1}
        v_add_u32 v{vEP}, v{vEP}, v{vT1}
        s_bitcmp1_b32 s{sS}, 0
        s_cbranch_scc0 L_epvs""")
        k = self.seg("epvx")
        k(f"""s_add_u32 s{sT0}, s{sT0}, 256
        v_mov_b32 v{vT1}, 0x3f803f80
        v_cmp_eq_u32 vcc, 2, v{vT0}
        s_nop 1
        v_cndmask_b32 v{vKVA}, v{vKVA}, v{vT1}, vcc
        v_cndmask_b32 v{vKVA + 1}, v{vKVA + 1}, v{vT1}, vcc
        v_cmp_ne_u32 vcc, 3, v{vT0}
        v_mov_b32 v{vT1}, {OOB}
        s_nop 0
        v_cndmask_b32 v{vKVA}, 0, v{vKVA}, vcc
        v_cndmask_b32 v{vKVA + 1}, 0, v{vKVA + 1}, vcc
        v_cmp_gt_u32 vcc, 4, v{vT0}
        s_nop 1
        v_cndmask_b32 v{vEP}, v{vT1}, v{vEP}, vcc""")
        k = self.seg("epvs")
        k("L_epvs:")
        k(f"buffer_store_dwordx2 {vr(vKVA, 2)}, v{vEP}, {srd(sWS)}, s{sT0} offen sc1", tag="kvst")
        s = self.seg("p1c")
        s(f"""L_epdone:
        s_lshl_b32 s{sT0}, s{sR}, 3
        s_add_u32 s{sT0}, s{sT0}, s{sS}
        s_lshl_b32 s{sT0}, s{sT0}, 2
        s_add_u32 s{sT0}, s{sT0}, s{sW}
        s_lshl_b32 s{sFL}, s{sT0}, 7
        s_add_u32 s{sFL}, s{sFL}, {WS_FLAG}
        s_lshl_b32 s{sST}, s{sT0}, 12
        s_add_u32 s{sST}, s{sST}, {WS_HX}
        v_lshlrev_b32 v{vT0}, 2, v{vL}
        v_mov_b32 v{vT1}, {OOB}
        v_mov_b32 v{vT2}, 0
        v_cndmask_b32 v{vT0}, v{vT0}, v{vT1}, s[{sMASK}:{sMASK + 1}]""")
        s(f"buffer_store_dword v{vT2}, v{vT0}, {srd(sWS)}, s{sFL} offen sc1", tag="kvst")
        s(f"""s_lshr_b32 s{sT0}, s{sR}, 1
        s_lshl_b32 s{sT0}, s{sT0}, 2
        s_cmp_eq_u32 s{sW}, 0
        s_cselect_b32 s{sPOL}, s{sT0}, {OOB}
        s_mul_i32 s{sC1}, s{sW}, 5120
        v_mul_u32_u24 v{vQM}, 1152, v{vTMP + 3}
        v_mul_u32_u24 v{vT0}, 36, v{vTMP + 2}
        v_and_b32 v{vT1}, 1, v{vL}
        v_lshlrev_b32 v{vT1}, 4, v{vT1}
        v_add3_u32 v{vQM}, v{vQM}, v{vT0}, v{vT1}
        v_lshrrev_b32 v{vT0}, 2, v{vL}
        s_lshl_b32 s{sT0}, s{sW}, 4
        v_add_u32 v{vT0}, s{sT0}, v{vT0}
        v_mul_u32_u24 v{vT0}, 1152, v{vT0}
        v_and_b32 v{vT1}, 3, v{vL}
        v_mul_u32_u24 v{vT2}, 36, v{vT1}
        v_add3_u32 v{vQX}, v{vT0}, v{vT2}, 32
        v_lshrrev_b32 v{vT0}, 4, v{vL}
        v_bfe_u32 v{vT2}, v{vL}, 2, 2
        v_lshl_add_u32 v{vT0}, v{vT0}, 3, v{vT2}
        v_lshlrev_b32 v{vT0}, 6, v{vT0}
        v_lshl_add_u32 v{vT0}, v{vT1}, 4, v{vT0}
        v_add_u32 v{vRX}, {2 * SLOT}, v{vT0}
        v_and_b32 v{vT2}, 7, v{vL}
        v_lshlrev_b32 v{vT2}, 2, v{vT2}""")
        if prew:
            s(f"s_waitcnt lgkmcnt({min(15, min(prew))})")
        self.stamp(s, 2)
        g = self.seg("p1gemm")
        g.extend(tl.emit(0, 468))
        self.att()
        k = self.seg("kvspin")
        k(f"""L_kvspin:
        s_mov_b32 s{sT1}, 0
        L_kvspin2:
        s_sleep 2
        buffer_load_dword v{vPOL}, v{vT2}, {srd(sDBG)}, 0 offen sc1
        s_add_u32 s{sT1}, s{sT1}, 1
        s_cmp_gt_u32 s{sT1}, 0x40000
        s_cbranch_scc1 L_end
        s_waitcnt vmcnt(0)
        v_cmp_gt_u32 vcc, 16, v{vPOL}
        s_nop 1
        s_cbranch_vccnz L_kvspin2
        s_branch L_kvok""")
        self.fallback()

    def qk(self, sb, q, kt, kbuf=None):
        k1 = vK1 + 4 * (kt % 2)
        k2 = vK2 + 4 * ((kt // 4) % 2) + 2 * ((kt % 4) // 2)
        q2 = vQ2 + 4 * q + 2 * (kt % 2)
        S = vr(vS_ + 16 * sb, 16)
        return (Ins(f"v_mfma_f32_32x32x16_bf16 {S}, {vr(k1)}, {vr(vQ1 + 4 * q)}, 0"),
                Ins(f"v_mfma_f32_32x32x8bf16_1k {S}, {vr(k2, 2)}, {vr(q2, 2)}, {S}"))

    def pv(self, sb, q, kt):
        O = vr(vO_ + 16 * q, 16)
        v = vV_ + 8 * (kt % 2)
        return tuple(Ins(f"v_smfmac_f32_32x32x32_bf16 {O}, {vr(v + 4 * f)}, {vr(vS_ + 16 * sb + 8 * f, 8)}, v{vIDX}") for f in range(2))

    def kvreads(self, kt):
        sl, i = (kt // 8) % 2, kt % 8
        o = KVST * sl
        k1 = Ins(f"ds_read_b128 {vr(vK1 + 4 * (kt % 2))}, v{vKA} offset:{o + 1024 * i}", tag="kvr")
        k2 = Ins(f"ds_read_b128 {vr(vK2 + 4 * ((kt // 4) % 2))}, v{vK2A} offset:{o + 640 * (i // 4)}", tag="kvr") if kt % 4 == 0 else None
        vv = [Ins(f"ds_read_b128 {vr(vV_ + 8 * (kt % 2) + 4 * f)}, v{vVA} offset:{o + 640 * (2 * i + f)}", tag="kvr") for f in range(2)]
        return k1, k2, vv

    def att(self):
        s = self.seg("attpre")
        self.stamp(s, 3)
        s(f"""v_add_u32 v{vKA}, {KVS0}, v{vL16}
        v_add_u32 v{vK2A}, {KVS0 + 18432}, v{vL16}
        v_mov_b32 v{vT0}, {KVS0 + 8192 + 288}
        v_cndmask_b32 v{vK2A}, v{vK2A}, v{vT0}, s[{sMASK}:{sMASK + 1}]
        v_and_b32 v{vT0}, 31, v{vL}
        v_cmp_eq_u32 vcc, 22, v{vT0}
        v_min_u32 v{vT1}, 19, v{vT0}
        v_lshrrev_b32 v{vT0}, 5, v{vL}
        v_cndmask_b32 v{vT1}, v{vT1}, 18, vcc
        v_mul_u32_u24 v{vT0}, 320, v{vT0}
        v_lshl_add_u32 v{vT0}, v{vT1}, 4, v{vT0}
        v_add_u32 v{vVA}, {KVS0 + 8192}, v{vT0}
        v_mov_b32 v{vIDX}, 0xdddddddd""")
        for u in range(2):
            s(f"""v_cvt_pk_bf16_f32 v{vQ2 + 8 * u}, v{vGL + 4 * u}, v{vGL + 4 * u + 1}
            v_mov_b32 v{vQ2 + 8 * u + 4}, 0""")
        for q in range(4):
            s(f"v_mov_b32 v{vQ2 + 4 * q + 1}, 0\nv_mov_b32 v{vQ2 + 4 * q + 2}, 0")
        for u in range(2):
            s(f"v_permlane32_swap_b32 v{vQ2 + 8 * u}, v{vQ2 + 8 * u + 4}")
        s("s_waitcnt vmcnt(63) lgkmcnt(0)", auto=["kv0"])
        s("s_barrier", need=["kv0", "lds:r6"])
        k1, k2, vv = self.kvreads(0)
        s.extend([k1, k2] + vv)
        s(f"""v_lshrrev_b32 v{vT0}, 5, v{vL}
        v_bfe_u32 v{vT1}, v{vL}, 3, 2
        v_mad_u32_u24 v{vT2}, v{vT0}, 18, v{vT1}
        s_lshl_b32 s{sT0}, s{sW}, 2
        v_add_u32 v{vT2}, s{sT0}, v{vT2}
        v_mul_u32_u24 v{vT2}, 1152, v{vT2}
        v_add_u32 v{vWM}, v{vT2}, v{vTMP + 1}
        v_lshrrev_b32 v{vT2}, 1, v{vT1}
        v_lshl_add_u32 v{vT1}, v{vT2}, 4, v{vT1}
        v_mul_u32_u24 v{vT0}, 72, v{vT0}
        s_and_b32 s{sT0}, s{sW}, 1
        s_mul_i32 s{sT0}, s{sT0}, 144
        s_lshr_b32 s{sT1}, s{sW}, 1
        s_mul_i32 s{sT1}, s{sT1}, 36
        s_add_u32 s{sT0}, s{sT0}, s{sT1}
        s_add_u32 s{sT0}, s{sT0}, 16
        v_add3_u32 v{vT0}, v{vT0}, v{vT1}, s{sT0}
        v_mul_u32_u24 v{vT0}, 1152, v{vT0}
        v_add_u32 v{vT0}, v{vT0}, v{vTMP + 1}
        s_lshl_b32 s{sC0}, s{sS}, 7""")
        for a in range(2):
            s(f"s_add_u32 m0, s{sM0W}, {4096 * (16 + a)}\ns_add_u32 s{sT0}, s{sC0}, {288 * 1152 * a}")
            s(f"buffer_load_dwordx4 v{vT0}, {srd(sWO)}, s{sT0} offen lds", tag="wo")
        s(f"""v_bfe_u32 v{vT0}, v{vL}, 1, 2
        v_bfe_u32 v{vT1}, v{vL}, 3, 1
        v_mad_u32_u24 v{vT2}, v{vT1}, 18, v{vT0}
        v_lshrrev_b32 v{vT1}, 4, v{vL}
        v_lshl_add_u32 v{vT2}, v{vT1}, 2, v{vT2}
        v_mul_u32_u24 v{vT2}, 1152, v{vT2}
        v_and_b32 v{vT1}, 1, v{vL}
        v_lshl_add_u32 v{vWN}, v{vT1}, 4, v{vT2}
        v_lshrrev_b32 v{vT2}, 1, v{vT0}
        v_lshl_add_u32 v{vT0}, v{vT2}, 4, v{vT0}
        v_bfe_u32 v{vT2}, v{vL}, 3, 2
        v_mul_u32_u24 v{vT2}, 72, v{vT2}
        v_add3_u32 v{vT0}, v{vT0}, v{vT2}, 16
        v_lshrrev_b32 v{vT2}, 5, v{vL}
        v_mad_u32_u24 v{vT0}, v{vT2}, 36, v{vT0}
        v_mul_u32_u24 v{vT0}, 1152, v{vT0}
        v_lshl_add_u32 v{vT0}, v{vT1}, 4, v{vT0}
        s_and_b32 s{sT2}, s{sS}, 3
        s_lshl_b32 s{sT2}, s{sT2}, 5
        s_add_u32 s{sT2}, s{sT2}, 1024
        s_mul_i32 s{sT0}, s{sW}, {288 * 1152}
        s_add_u32 s{sT0}, s{sT0}, s{sT2}
        s_add_u32 m0, s{sM0W}, {2 * SLOT + 16384}
        s_mul_i32 s{sT1}, s{sW}, {36 * 1152}""")
        s(f"buffer_load_dwordx4 v{vT0}, {srd(sWO)}, s{sT0} offen lds", tag="wo")
        s(f"""s_add_u32 s{sSTN}, s{sT1}, s{sT2}
        s_waitcnt lgkmcnt(0)""")
        s(f"""s_lshl_b32 s{sT0}, s{sW}, 12
        s_add_u32 s{sXL}, s{sT0}, {XRES}
        s_lshl_b32 s{sT3}, s{sS}, 7""")
        for i in range(4):
            s(f"s_add_u32 m0, s{sXL}, {1024 * i}\ns_add_u32 s{sT0}, s{sT3}, {9216 * i}")
            s(f"buffer_load_dwordx4 v{vTMP}, {srd(sX)}, s{sT0} offen lds", tag="xr")
        s(f"""v_lshrrev_b32 v{vT0}, 1, v{vL}
        v_mul_u32_u24 v{vT0}, 1152, v{vT0}
        v_lshl_add_u32 v{vT0}, v{vT1}, 4, v{vT0}
        v_mov_b32 v{vT1}, {OOB}
        v_cndmask_b32 v{vT0}, v{vT0}, v{vT1}, s[{sMASK}:{sMASK + 1}]
        v_lshlrev_b32 v{vINB}, 2, v{vL}
        v_cndmask_b32 v{vINB}, v{vINB}, v{vT1}, s[{sMASK}:{sMASK + 1}]
        s_lshr_b32 s{sT0}, s{sS}, 2
        s_lshl_b32 s{sT1}, s{sW}, 1
        s_add_u32 s{sT0}, s{sT0}, s{sT1}
        s_mul_i32 s{sT0}, s{sT0}, 18432
        s_add_u32 m0, s{sM0W}, {XRESN}
        s_add_u32 s{sXN}, s{sT0}, s{sT2}""")
        s(f"buffer_load_dwordx4 v{vT0}, {srd(sX)}, s{sXN} offen lds", tag="xr")
        s(f"""s_mul_i32 s{sST}, s{sR}, {8 * 9 * 16384}
        s_lshl_b32 s{sT0}, s{sW}, 12
        s_add_u32 s{sST}, s{sST}, s{sT0}
        s_add_u32 s{sST}, s{sST}, {WS_PART}
        s_add_u32 s{sFLN}, s{sST}, {8 * 16384}
        s_lshl_b32 s{sT0}, s{sS}, 14
        s_add_u32 s{sST}, s{sST}, s{sT0}
        s_mov_b32 s{sPE}, {OOB}""")
        if self.wpf:
            s.extend(self.pf2(512))
        for q in range(4):
            s.extend(self.qk(q, q, 0))
        for r in range(vO_, vO_ + 64):
            s(f"v_mov_b32 v{r}, 0")
        for r in range(vV_ + 8, vV_ + 16):
            s(f"v_mov_b32 v{r}, 0")
        for q in range(4):
            b = vS_ + 16 * q
            s(f"v_max3_f32 v{b}, v{b}, v{b + 1}, v{b + 2}")
            for j in range(3, 15, 2):
                s(f"v_max3_f32 v{b}, v{b}, v{b + j}, v{b + j + 1}")
            s(f"v_max_f32 v{b}, v{b}, v{b + 15}\nv_mov_b32 v{b + 1}, v{b}")
        s("s_nop 0")
        for q in range(4):
            b = vS_ + 16 * q
            s(f"v_permlane32_swap_b32 v{b}, v{b + 1}")
        for q in range(4):
            b = vS_ + 16 * q
            s(f"""v_max_f32 v{b}, v{b}, v{b + 1}
            v_sub_f32 v{b}, {f32(-MOFF)}, v{b}
            v_cvt_pk_bf16_f32 v{b}, v{b}, 0
            v_cndmask_b32 v{vQ2 + 4 * q}, v{vQ2 + 4 * q}, v{b}, s[{sMASK}:{sMASK + 1}]
            v_mov_b32 v{vQ2 + 4 * q + 3}, v{vQ2 + 4 * q}""")
        s.extend(self.qk(0, 0, 0))
        for r in range(vS_ + 48, vS_ + 64):
            s(f"v_mov_b32 v{r}, 0")
        per = 81 * self.C
        nd = 1 if self.C <= 2 else 2
        dl = -(-per // (4 * nd))
        s(f"""s_mov_b32 s{sIT}, 0
        s_add_u32 s{sINC}, s{sC1}, {2 * KVST}
        s_mov_b32 s{sHI}, s{sM0W}
        s_lshl_b32 s{sT0}, s{sR}, 2
        s_add_u32 s{sT0}, s{sT0}, 128
        s_cmp_eq_u32 s{sW}, 0
        s_cselect_b32 s{sPOL}, s{sT0}, {OOB}
        s_lshl_b32 s{sPFO}, s{sE2}, 2
        s_add_u32 s{sPFO}, s{sPFO}, s{sW}
        s_mul_i32 s{sPFO}, s{sPFO}, {per * 128}
        s_mov_b32 s{sPG}, 640
        v_min_u32 v{vPD}, {dl - 1}, v{vL}
        v_lshlrev_b32 v{vPD}, 7, v{vPD}
        .p2align 3""")
        a = self.seg("attloop")
        a("L_att:")
        for tau in range(64):
            kt, q = tau // 4, tau % 4
            ms = list(self.qk((tau + 1) % 4, (tau + 1) % 4, (tau + 1) // 4)) + list(self.pv((tau - 1) % 4, (tau - 1) % 4, ((tau - 1) // 4) % 16))
            ex = [[], [], [], []]
            k1, k2, vv = self.kvreads((kt + 1) % 16)
            newstage = (kt + 1) % 8 == 0
            if q == 0:
                if newstage:
                    sg = (kt + 1) // 8 % 2
                    tg = [f"kv{sg}", "wo", "xr"] + (["hst"] if sg == 1 else [])
                    ex[0] += [Ins("s_waitcnt vmcnt(63)", auto=tg), Ins("s_barrier", need=tg + ["lds:kvr"])]
                    if sg == 1:
                        ex[0] += [Ins(f"buffer_atomic_add v{vONE}, v{vFLG}, {srd(sDBG)}, s{sPOL} offen sc1", tag="arr")]
                ex[0].append(k1)
                if k2:
                    ex[2].append(k2)
                if newstage:
                    ex[2].insert(0, Ins(f"s_add_u32 m0, s{sC1}, {KVS0 + KVST * (1 - sg)}"))
                    ex[3] += [Ins(f"s_mov_b32 s{sPOL}, {OOB}")] if sg == 1 else []
                    ex[3].append(Ins(f"buffer_load_dwordx4 v{vL16}, {srd(sWS)}, s{sINC} offen sc1 lds", tag=f"kv{1 - sg}"))
            if q == 1:
                ex[0].append(vv[0])
                ex[2].append(vv[1])
                if newstage:
                    ex[3].append(Ins(f"buffer_load_dwordx4 v{vL16}, {srd(sWS)}, s{sINC} offen offset:1024 sc1 lds", tag=f"kv{1 - sg}"))
            if q == 2:
                if newstage:
                    ex[0].append(Ins(f"buffer_load_dwordx4 v{vL16}, {srd(sWS)}, s{sINC} offen offset:2048 sc1 lds", tag=f"kv{1 - sg}"))
                    ex[2].append(Ins(f"buffer_load_dwordx4 v{vL16}, {srd(sWS)}, s{sINC} offen offset:3072 sc1 lds", tag=f"kv{1 - sg}"))
                ex[3].append(Ins("s_waitcnt lgkmcnt(0)"))
            if q == 3 and newstage:
                ex[0].append(Ins(f"s_add_u32 m0, s{sC1}, {KVS0 + KVST * (1 - sg) + 4096}"))
                ex[2] += [Ins(f"s_add_u32 s{sA}, s{sINC}, 4096"),
                          Ins(f"buffer_load_dwordx4 v{vL16}, {srd(sWS)}, s{sA} offen sc1 lds", tag=f"kv{1 - sg}")]
                ex[3].append(Ins(f"s_add_u32 s{sINC}, s{sINC}, {KVST}"))
            if kt % 8 in (0, 1) and q == 3:
                ex[0].append(Ins(f"s_mov_b32 m0, s{sHI}"))
                ex[2] += [Ins(f"s_add_u32 s{sHI}, s{sHI}, 4096"), Ins(f"buffer_load_dwordx4 v{vWM}, {srd(sWO)}, s{sC0} offen lds", tag="wo")]
                ex[3].append(Ins(f"s_add_u32 s{sC0}, s{sC0}, {36 * 1152}"))
            if kt == 2 and q == 2:
                ex[0].append(Ins(f"s_lshl_b32 s{sT0}, s{sIT}, 12"))
                ex[2].append(Ins(f"s_add_u32 s{sT0}, s{sT0}, s{sM0W}"))
            if kt == 2 and q == 3:
                ex[0].append(Ins(f"s_add_u32 m0, s{sT0}, {2 * SLOT}"))
                ex[2] += [Ins(f"s_add_u32 s{sIT}, s{sIT}, 1"), Ins(f"buffer_load_dwordx4 v{vWN}, {srd(sWO)}, s{sSTN} offen lds", tag="wo")]
                ex[3].append(Ins(f"s_add_u32 s{sSTN}, s{sSTN}, {4 * 36 * 1152}"))
            if self.wpf and kt % 8 == 3 and q == 2:
                ex[0].append(Ins(f"s_cmp_lt_u32 s{sIT}, 3"))
                ex[2].append(Ins(f"s_cselect_b32 s{sT0}, 0, {OOB}"))
            if self.wpf and (kt % 8 == 3 or (kt % 8 == 4 and self.npf == 2)) and q == 3:
                ex[0].append(Ins(f"s_add_u32 s{sT1}, s{sT0}, s{sPG}"))
                if kt % 8 == 4:
                    ex[2].append(Ins(f"s_add_u32 s{sT1}, s{sT1}, {self.pfstep * 9216}"))
                ex[2].append(Ins(f"buffer_load_dword v{vT3}, v{vPF}, {srd(sPF)}, s{sT1} offen", tag="pf"))
                if kt % 8 == 2 + self.npf:
                    ex[3].append(Ins(f"s_add_u32 s{sPG}, s{sPG}, 128"))
            if self.wpf and kt % 8 == 4 and (q == 0 or (q == 2 and nd == 2)):
                ex[0].insert(0, Ins(f"s_add_u32 s{sT1}, s{sT0}, s{sPFO}"))
                ex[2] += [Ins(f"s_add_u32 s{sPFO}, s{sPFO}, {dl * 128}"), Ins(f"buffer_load_dword v{vT3}, v{vPD}, {srd(sD)}, s{sT1} offen", tag="pf")]
            if self.ne and tau == self.etau - 7:
                ex[0].append(Ins(f"s_cmp_eq_u32 s{sIT}, 4"))
                ex[2].append(Ins(f"s_cselect_b32 s{sPE}, s{sFL}, {OOB}"))
                ex[3].append(Ins(f"buffer_load_dword v{vPOL}, v{vINB}, {srd(sWS)}, s{sPE} offen sc1", tag="poll"))
            if self.ne and tau == self.etau:
                ex[2].append(Ins(f"s_cmp_eq_u32 s{sIT}, 4"))
                ex[3] += [Ins("s_cbranch_scc1 L_early"), Ins("L_earlyd:")]
                split = True
            if tau == 63:
                ex[3].append(Ins(f"s_cmp_lt_u32 s{sIT}, 4"))
            sb = vS_ + 16 * (tau % 4)
            for m in range(4):
                a.add(ms[m])
                a.extend(ex[m])
                if self.ne and tau == self.etau and m == 3:
                    a = self.seg("attloop2")
                for e in range(4):
                    a(f"v_exp_f32 v{sb + 4 * m + e}, v{sb + 4 * m + e}")
        a("s_cbranch_scc1 L_att")
        s = self.seg("attend")
        s("s_nop 0")
        s.extend(self.pv(3, 3, 15))
        self.stamp(s, 4)
        s(f"""s_nop 1
        s_mov_b32 s{sT0}, {f32(2.0 ** -105)}
        s_mov_b32 s{sT1}, {f32(2.0 ** 120)}
        s_mov_b64 s[{sMK2}:{sMK2 + 1}], 0""")
        for q in range(4):
            o = vO_ + 16 * q
            t = vS_ + 4 * q
            s(f"""v_cndmask_b32 v{t + 2}, v{o + 8}, v{o + 10}, s[{sMASK}:{sMASK + 1}]
            v_cndmask_b32 v{t + 3}, v{o + 9}, v{o + 10}, s[{sMASK}:{sMASK + 1}]
            v_min3_f32 v{t}, abs(v{t + 2}), abs(v{t + 3}), v{o + 10}
            v_add_f32 v{t + 1}, abs(v{t + 2}), abs(v{t + 3})
            v_add_f32 v{t + 1}, v{t + 1}, v{o + 10}""")
            for j in range(0, 8, 2):
                s(f"""v_min3_f32 v{t}, v{t}, abs(v{o + j}), abs(v{o + j + 1})
                v_add_f32 v{t + 2}, abs(v{o + j}), abs(v{o + j + 1})
                v_add_f32 v{t + 1}, v{t + 1}, v{t + 2}""")
            s(f"""v_cmp_nle_f32 vcc, s{sT0}, v{t}
            s_nop 0
            s_or_b64 s[{sMK2}:{sMK2 + 1}], s[{sMK2}:{sMK2 + 1}], vcc
            v_cmp_ngt_f32 vcc, s{sT1}, v{t + 1}
            s_nop 0
            s_or_b64 s[{sMK2}:{sMK2 + 1}], s[{sMK2}:{sMK2 + 1}], vcc""")
        if self.forcefb:
            s(f"s_or_b64 s[{sMK2}:{sMK2 + 1}], s[{sMK2}:{sMK2 + 1}], 1")
        s("s_cbranch_scc1 L_fb")
        s = self.seg("opub")
        s(f"""L_fbdone:
        s_lshl_b32 s{sT0}, s{sR}, 2
        s_add_u32 s{sT0}, s{sT0}, s{sW}
        s_mul_i32 s{sC1}, s{sT0}, 36864
        s_add_u32 s{sC1}, s{sC1}, {WS_OM}
        s_lshl_b32 s{sT0}, s{sS}, 11
        s_add_u32 s{sT0}, s{sT0}, s{sC1}
        s_add_u32 s{sT1}, s{sT0}, 18432
        s_lshl_b32 s{sT2}, s{sS}, 8
        s_add_u32 s{sT2}, s{sT2}, s{sC1}
        s_add_u32 s{sT2}, s{sT2}, 16384
        s_add_u32 s{sT3}, s{sT2}, 18432
        v_and_b32 v{vT0}, 15, v{vL}
        v_lshrrev_b32 v{vT1}, 4, v{vL}
        v_lshlrev_b32 v{vT1}, 2, v{vT1}
        v_lshl_add_u32 v{vT0}, v{vT0}, 4, v{vT1}
        v_mov_b32 v{vT1}, {OOB}
        v_cndmask_b32 v{vT0}, v{vT0}, v{vT1}, s[{sMASK}:{sMASK + 1}]""")
        for q in range(4):
            s(f"v_rcp_f32 v{vO_ + 16 * q + 10}, v{vO_ + 16 * q + 10}")
        for q in range(4):
            o = vO_ + 16 * q
            u, hp = q // 2, q % 2
            s(f"v_mul_f32 v{o + 10}, {f32(ALPHA)}, v{o + 10}")
            for j in range(10):
                s(f"v_mul_f32 v{o + j}, v{o + j}, v{o + 10}")
            for j in range(5):
                s(f"v_cvt_pk_bf16_f32 v{o + j}, v{o + 2 * j}, v{o + 2 * j + 1}")
            s(f"buffer_store_dwordx4 {vr(o)}, v{vL16}, {srd(sWS)}, s{sT0 + u} offen offset:{1024 * hp} sc1", tag="ost")
            s(f"buffer_store_dword v{o + 4}, v{vT0}, {srd(sWS)}, s{sT2 + u} offen offset:{8 * hp} sc1", tag="ost")
        ne, n2, n3 = self.ne, self.n2, self.n3
        s(f"buffer_load_dword v{vPOL}, v{vINB}, {srd(sWS)}, s{sFL} offen sc1", tag="poll")
        vXR, vXU, vBA = 32, 96, 29
        s(f"""v_and_b32 v{vT0}, 15, v{vL}
        v_lshrrev_b32 v{vT2}, 4, v{vL}
        v_lshlrev_b32 v{vT4}, 3, v{vT2}
        v_lshl_add_u32 v{vBA}, v{vT0}, 7, v{vT4}
        v_add_u32 v{vBA}, s{sXL}, v{vBA}
        v_lshl_add_u32 v{vOA}, v{vT0}, 5, v{vT4}
        s_add_u32 s{sT0}, s{sM0W}, {XRESN}
        v_add_u32 v{vOA}, s{sT0}, v{vOA}""")
        for j in range(8):
            s(f"ds_read_b64 {vr(vXR + 2 * j, 2)}, v{vBA} offset:{2048 * (j % 2) + 32 * (j // 2)}", need=["xr"])
        s(f"ds_read_b64 {vr(vXR + 16, 2)}, v{vOA}")
        s(f"""v_mul_u32_u24 v{vOA}, 1152, v{vT0}
        v_add_u32 v{vOA}, v{vOA}, v{vT4}
        v_lshlrev_b32 v{vT2}, 2, v{vT2}
        v_sub_u32 v{vT0}, v{vT0}, v{vT2}
        v_and_b32 v{vT2}, 1, v{vT0}
        v_lshlrev_b32 v{vT2}, 4, v{vT2}
        v_mov_b32 v{vT4}, 0x3f80
        v_lshlrev_b32 v{vT4}, v{vT2}, v{vT4}
        v_lshrrev_b32 v{vT0}, 1, v{vT0}
        v_cmp_eq_u32 vcc, 0, v{vT0}
        v_mov_b32 v{vSEL}, 0
        v_mov_b32 v{vSEL + 1}, 0
        v_cndmask_b32 v{vSEL + 2}, 0, v{vT4}, vcc
        v_cmp_eq_u32 vcc, 1, v{vT0}
        v_mov_b32 v{vSEL + 4}, 0
        v_mov_b32 v{vSEL + 5}, 0
        v_cndmask_b32 v{vSEL + 3}, 0, v{vT4}, vcc
        v_lshlrev_b32 v{vT0}, 9, v{vL}
        v_cmp_gt_u32 vcc, 8, v{vL}
        s_lshl_b32 s{sT2}, s{sS}, 9
        s_sub_u32 s{sT2}, s{sFL}, s{sT2}
        v_cndmask_b32 v{vT0}, v{vT1}, v{vT0}, vcc
        s_lshl_b32 s{sT0}, s{sS}, 2
        s_add_u32 s{sT2}, s{sT2}, s{sT0}""")

        def preg(i):
            if i < ne:
                return lambda k: ar(aFR + 16 * i + 4 * k)
            return lambda k: vr(vS_ + 16 * (i - ne) + 4 * k)

        def pmask(s, i0, n):
            s(f"""s_add_u32 s{sT0}, s{sS}, {(16 - (i0 + n - 1)) % 8}
            s_and_b32 s{sT0}, s{sT0}, 7
            s_lshl_b32 s{sMK2}, {hex(((1 << n) - 1) * 0x101)}, s{sT0}
            s_and_b32 s{sMK2}, s{sMK2}, 0xff00
            s_mov_b32 s{sMK2 + 1}, 0""")

        def pload(i0, n):
            out = []
            for i in range(i0, i0 + n):
                q = [Ins(f"s_sub_u32 s{sT0}, s{sS}, {i}"), Ins(f"s_and_b32 s{sT0}, s{sT0}, 7"),
                     Ins(f"s_mul_i32 s{sT0}, s{sT0}, {9 * 16384}"), Ins(f"s_add_u32 s{sT0}, s{sT0}, s{sST}")]
                q += [Ins(f"buffer_load_dwordx4 {preg(i)(k)}, v{vL16}, {srd(sWS)}, s{sT0} offen offset:{1024 * k} sc1", tag=f"pl{i}") for k in range(4)]
                out += q
            return out

        def pacc(i0, n):
            out = []
            for j in range(8):
                ct, u = j // 2, j % 2
                c = vr(vG + 4 * j)
                for i in range(i0, i0 + n):
                    out.append(Ins(f"v_mfma_f32_16x16x32_bf16 {c}, {vr(vSEL + (0 if ct % 2 else 2))}, {preg(i)(2 * (ct // 2) + u)}, {'0' if i == 0 else c}"))
            return out

        self.pmask, self.pload = pmask, pload
        unp = []
        for j in range(9):
            d = vXU + 4 * j if j < 8 else vXE
            for e in range(2):
                unp += [Ins(f"v_lshlrev_b32 v{d + 2 * e}, 16, v{vXR + 2 * j + e}"), Ins(f"v_and_b32 v{d + 2 * e + 1}, 0xffff0000, v{vXR + 2 * j + e}")]
        s("s_waitcnt vmcnt(63) lgkmcnt(0)", auto=[f"pl{i}" for i in range(ne)])
        for m in pacc(0, ne):
            s.add(m)
            s.extend(unp[:2])
            unp = unp[2:]
        s.extend(unp)
        pmask(s, ne, n2)
        s("s_waitcnt vmcnt(0)")
        s(f"buffer_store_dword v{vONE}, v{vT0}, {srd(sWS)}, s{sT2} offen sc1", need=["ost"])
        self.stamp(s, 5)
        s(f"""v_cmp_eq_u32 vcc, 0, v{vPOL}
        s_nop 1
        s_and_b64 vcc, vcc, s[{sMK2}:{sMK2 + 1}]
        s_cbranch_scc0 L_pl2""")
        self.spin("w_pm2", f"s[{sMK2}:{sMK2 + 1}]")
        s = self.seg("pl2")
        s("L_pl2:")
        s.extend(pload(ne, n2))
        self.spin("w_o", "0xff")
        s = self.seg("ogat")
        self.stamp(s, 6)
        gl = []
        for h in range(2):
            for u in range(2):
                for i in range(9):
                    n = 18 * u + 9 * h + i
                    gl.append([Ins(f"s_add_u32 s{sA}, s{sC1}, {1024 * n}"),
                               Ins(f"buffer_load_dwordx4 {xn(u, 9 * h + i)}, v{vL16}, {srd(sWS)}, s{sA} offen sc1", tag=f"og{2 * h + u}")])
        for q in gl[:10]:
            s.extend(q)
        s.extend(pacc(ne, n2))
        vRN = 28
        s(f"""v_lshrrev_b32 v{vT0}, 2, v{vL}
        v_lshlrev_b32 v{vT0}, 5, v{vT0}
        v_and_b32 v{vT1}, 3, v{vL}
        v_lshl_add_u32 v{vT0}, v{vT1}, 3, v{vT0}
        v_add_u32 v{vRN}, {2 * SLOT}, v{vT0}""")
        pmask(s, ne + n2, n3)
        tf = Timeline()
        xb = lambda h: (lambda u, i: xn(u, 9 * h + i))
        for h in range(2):
            self.std_mfmas(tf, 4 * h, 72 * h, vG, xb(h), False)
            tf.put_reads(self.std_reads(4 * h, 72 * h, h, "fr"))
        R = []
        for h in range(2):
            for i in range(9):
                for hh in range(2):
                    ins = Ins(f"ds_read_b64_tr_b16 {ar(frag(8 + h, i) + 2 * hh, 2)}, v{vRN} offset:{1024 * (9 * h + i) + 512 * hh}", tag="fr")
                    R.append(Item("r", ins, (124 + i * 2 + hh) if h == 0 and i < 2 else (128 + (len(R) - 4) // 2), earliest=144 + 18 * h - 27 + i))
        tf.put_reads(R)
        ng = self.o.get("ngpre", 20)
        for q in gl[10:ng]:
            tf.gap(-1).post.extend(q)
        tf.gap(-1).post.append(Ins("s_waitcnt vmcnt(63)", auto=["og0"]))
        for k, q in enumerate(gl[ng:]):
            p = k if k < 8 else 8 + 4 * (k - 7)
            tf.gap(p).shadow.append(q[0])
            tf.gap(p).mem.append(q[1])
        tf.gap(50).mem.append(Ins(f"buffer_load_dword v{vPOL}, v{vINB}, {srd(sWS)}, s{sFL} offen sc1", tag="poll"))
        tf.gap(8).shadow.append(Ins("s_waitcnt vmcnt(63)", auto=["og1"]))
        tf.gap(71).shadow.append(Ins("s_waitcnt vmcnt(63)", auto=["og2"]))
        tf.gap(80).shadow.append(Ins("s_waitcnt vmcnt(63)", auto=["og3"]))
        tf.gap(84).shadow.append(Ins("s_waitcnt vmcnt(0)"))
        tf.gap(84).valu.append(Ins(f"v_cmp_eq_u32 vcc, 0, v{vPOL}"))
        tf.gap(85).shadow.append(Ins(f"s_and_b64 vcc, vcc, s[{sMK2}:{sMK2 + 1}]"))
        tf.gap(86).shadow.append(Ins("s_cbranch_scc1 L_pm3"))
        tf.gap(86).shadow.append(Ins("L_pm3d:"))
        p = 87
        for i in pload(ne + n2, n3):
            if i.kind == "salu":
                tf.gap(p).shadow.append(i)
                p += 1
            else:
                tf.gap(p).mem.append(i)
                p += 3
        tf.insert_lgkm_waits(-DD, 144, [])
        s.extend(tf.emit(-DD, 144))
        n4 = 8 - ne - n2 - n3
        pmask(s, 8 - n4, n4)
        s(f"""s_waitcnt lgkmcnt(0)
        s_bitcmp1_b32 s{sS}, 2
        s_cbranch_scc1 L_xu1""")
        vXB = 20
        for u in range(2):
            k = self.seg(f"xu{u}")
            if u:
                k("L_xu1:")
            for kk in range(18):
                k(f"v_mfma_f32_16x16x32_bf16 {vr(vXB)}, {ar(frag(8 + kk // 9, kk % 9))}, {xn(u, kk)}, {'0' if kk == 0 else vr(vXB)}")
            if not u:
                k("s_branch L_xud")
        s = self.seg("xud")
        s("L_xud:")
        self.stamp(s, 7)
        self.spin("w_pm4", f"s[{sMK2}:{sMK2 + 1}]")
        s = self.seg("pl4")
        s.extend(pload(8 - n4, n4))
        s.extend(pacc(ne + n2, n3))
        s(f"""s_mov_b32 s{sT2}, {f32(1.0 / ALPHA ** 2)}
        v_add_u32 v{vT2}, s{sXL}, v{vL16}
        v_lshrrev_b32 v{vT0}, 3, v{vL}
        v_and_b32 v{vT1}, 7, v{vL}
        s_lshl_b32 s{sT0}, s{sW}, 5
        v_add_u32 v{vT0}, s{sT0}, v{vT0}
        v_mul_u32_u24 v{vT0}, 1152, v{vT0}
        v_lshl_add_u32 v{vT3}, v{vT1}, 4, v{vT0}
        s_and_b32 s{sT0}, s{sS}, 2
        s_lshr_b32 s{sT1}, s{sS}, 2
        s_add_u32 s{sT0}, s{sT0}, s{sT1}
        s_lshl_b32 s{sT0}, s{sT0}, 10
        s_and_b32 s{sT1}, s{sS}, 1
        s_lshl_b32 s{sT1}, s{sT1}, 3
        s_add_u32 s{sT0}, s{sT0}, s{sT1}
        s_add_u32 s{sFLN}, s{sFLN}, s{sT0}
        s_lshl_b32 s{sC0}, s{sS}, 7
        s_waitcnt vmcnt(0)""")
        s.extend(pacc(8 - n4, n4))
        s(f"buffer_load_dword v{vPOL}, v{vINB}, {srd(sWS)}, s{sFL} offen sc1", tag="poll")
        s(f"v_mov_b32 v{vSEL + 6}, v{vSEL + 2}\nv_mov_b32 v{vSEL + 7}, v{vSEL + 3}")
        for j in range(8):
            c = vG + 4 * j
            for e in range(4):
                s(f"v_fma_f32 v{c + e}, v{c + e}, s{sT2}, v{vXU + 4 * j + e}")
            s(f"v_cvt_pk_bf16_f32 v{c}, v{c}, v{c + 1}\nv_cvt_pk_bf16_f32 v{c + 1}, v{c + 2}, v{c + 3}")
        for j in range(8):
            s(f"ds_write_b64 v{vBA}, {vr(vG + 4 * j, 2)} offset:{2048 * (j % 2) + 32 * (j // 2)}")
        for i in range(4):
            s(f"ds_read_b128 {vr(vXU + 4 * i)}, v{vT2} offset:{1024 * i}")
        s(f"v_mov_b32 v{vSEL + 4}, v{vSEL + 2}\nv_mov_b32 v{vSEL + 5}, v{vSEL + 3}")
        for i in range(4):
            s(f"s_waitcnt lgkmcnt({3 - i})")
            s(f"buffer_store_dwordx4 {vr(vXU + 4 * i)}, v{vT3}, {srd(sOUT)}, s{sC0} offen{self.o.get('outflag', '')}")
            if i < 3:
                s(f"s_add_u32 s{sC0}, s{sC0}, 9216")
        self.stamp(s, 8)
        s("s_waitcnt vmcnt(63)", auto=["poll"])
        s(f"""v_cmp_eq_u32 vcc, 0, v{vPOL}
        s_nop 1
        s_and_b64 vcc, vcc, 0xff0000
        s_cbranch_scc0 L_fin""")
        self.spin("w_pl", "0xff0000")
        s = self.seg("fin")
        s("L_fin:")
        for p in range(8):
            s(f"buffer_load_dwordx2 {vr(vS_ + 2 * p, 2)}, v{vL16}, {srd(sWS)}, s{sFLN} offen sc1")
            if p < 7:
                s(f"s_add_u32 s{sFLN}, s{sFLN}, {9 * 16384}")
        for p in range(4):
            s(f"s_waitcnt vmcnt({6 - 2 * p})")
            s(f"v_mfma_f32_16x16x32_bf16 {vr(vXB)}, {vr(vSEL + 4)}, {vr(vS_ + 4 * p)}, {vr(vXB)}")
        s("s_nop 7")
        for e in range(4):
            s(f"v_fma_f32 v{vXB + e}, v{vXB + e}, s{sT2}, v{vXE + e}")
        s(f"""v_cvt_pk_bf16_f32 v{vXB}, v{vXB}, v{vXB + 1}
        v_cvt_pk_bf16_f32 v{vXB + 1}, v{vXB + 2}, v{vXB + 3}
        buffer_store_dwordx2 {vr(vXB, 2)}, v{vOA}, {srd(sOUT)}, s{sXN} offen{self.o.get('outflag', '')}""")
        self.stamp(s, 9)
        self.stamp_flush(s)
        s("s_endpgm")
        s = self.seg("pm3a")
        s("L_pm3:")
        self.spin("w_pm3", f"s[{sMK2}:{sMK2 + 1}]")
        s = self.seg("pm3b")
        s("s_branch L_pm3d")
        if ne:
            s = self.seg("early")
            s("L_early:")
            pmask(s, 0, ne)
            s("s_waitcnt vmcnt(63)", auto=["poll"])
            s(f"""v_cmp_eq_u32 vcc, 0, v{vPOL}
            s_nop 1
            s_and_b64 vcc, vcc, s[{sMK2}:{sMK2 + 1}]
            s_cbranch_scc0 L_early2""")
            self.spin("w_pm1", f"s[{sMK2}:{sMK2 + 1}]")
            s = self.seg("early2")
            s("L_early2:")
            s.extend(pload(0, ne))
            s("s_branch L_earlyd")

    def fallback(self):
        vM = vXA
        s = self.seg("fb0")
        s(f"""L_fb:
        s_waitcnt vmcnt(0) lgkmcnt(0)
        v_and_b32 v{vT0}, 31, v{vL}
        v_lshlrev_b32 v{vT0}, 4, v{vT0}
        v_subrev_u32 v{vT1}, {KVS0}, v{vVA}
        v_mov_b32 v{vK2 + 1}, 0
        s_mov_b32 s{sIT}, 0""")
        for q in range(4):
            s(f"v_cndmask_b32 v{vQ2 + 4 * q}, v{vQ2 + 4 * q}, 0, s[{sMASK}:{sMASK + 1}]\nv_mov_b32 v{vM + q}, 0xff800000")
        for r in range(vO_, vO_ + 64):
            s(f"v_mov_b32 v{r}, 0")

        def loads(k, withv):
            k(f"""s_lshr_b32 s{sT0}, s{sIT}, 3
            s_mul_i32 s{sT0}, s{sT0}, {KVST}
            s_and_b32 s{sT1}, s{sIT}, 7
            s_lshl_b32 s{sT2}, s{sT1}, 10
            s_add_u32 s{sT2}, s{sT2}, s{sT0}
            buffer_load_dwordx4 {vr(vK1)}, v{vL16}, {srd(sWS)}, s{sT2} offen sc1
            s_lshr_b32 s{sT2}, s{sT1}, 2
            s_mul_i32 s{sT2}, s{sT2}, 640
            s_and_b32 s{sT3}, s{sT1}, 3
            s_lshl_b32 s{sT3}, s{sT3}, 2
            s_add_u32 s{sT2}, s{sT2}, s{sT3}
            s_add_u32 s{sT2}, s{sT2}, s{sT0}
            s_add_u32 s{sT2}, s{sT2}, 18432
            buffer_load_dword v{vK2}, v{vT0}, {srd(sWS)}, s{sT2} offen sc1""")
            if withv:
                k(f"""s_mul_i32 s{sT2}, s{sT1}, 1280
                s_add_u32 s{sT2}, s{sT2}, s{sT0}
                buffer_load_dwordx4 {vr(vV_)}, v{vT1}, {srd(sWS)}, s{sT2} offen sc1
                buffer_load_dwordx4 {vr(vV_ + 4)}, v{vT1}, {srd(sWS)}, s{sT2} offen offset:640 sc1""")
            k("s_waitcnt vmcnt(0)")
            for q in range(4):
                k.extend(self.qk(q, q, 0))
            k("s_nop 11")

        k = self.seg("fb1")
        k("L_fb1:")
        loads(k, False)
        for q in range(4):
            for j in range(0, 16, 2):
                k(f"v_max3_f32 v{vM + q}, v{vM + q}, v{vS_ + 16 * q + j}, v{vS_ + 16 * q + j + 1}")
        k(f"""s_add_u32 s{sIT}, s{sIT}, 1
        s_cmp_lt_u32 s{sIT}, 64
        s_cbranch_scc1 L_fb1""")
        k = self.seg("fb2")
        for q in range(4):
            k(f"v_mov_b32 v{vS_ + q}, v{vM + q}")
        k("s_nop 0")
        for q in range(4):
            k(f"v_permlane32_swap_b32 v{vM + q}, v{vS_ + q}")
        for q in range(4):
            k(f"v_max_f32 v{vM + q}, v{vM + q}, v{vS_ + q}")
        k(f"s_mov_b32 s{sIT}, 0")
        k = self.seg("fb3")
        k("L_fb3:")
        loads(k, True)
        for q in range(4):
            for j in range(16):
                k(f"v_sub_f32 v{vS_ + 16 * q + j}, v{vS_ + 16 * q + j}, v{vM + q}")
            for j in range(16):
                k(f"v_exp_f32 v{vS_ + 16 * q + j}, v{vS_ + 16 * q + j}")
        k("s_nop 1")
        for q in range(4):
            k.extend(self.pv(q, q, 0))
        k(f"""s_add_u32 s{sIT}, s{sIT}, 1
        s_cmp_lt_u32 s{sIT}, 64
        s_cbranch_scc1 L_fb3""")
        k = self.seg("fb4")
        k("s_nop 11\ns_branch L_fbdone")


def build(path, C=1, stamps=False, xpf=True, wpf=True, forcefb=False, verbose=True, **kw):
    g = Gen1(C=C, stamps=stamps, xpf=xpf, wpf=wpf, **kw)
    g.forcefb = forcefb
    g.kvpoll, g.kvchk = kw.get("kvpoll", 300), kw.get("kvchk", 356)
    g.ne, g.n2, g.n3, g.etau = kw.get("ne", 3), kw.get("n2", 2), kw.get("n3", 2), kw.get("etau", 52)
    g.prologue()
    g.p0()
    g.p1()
    probs = []
    traces = [("P0", g.trace(["entry", "ln", "ln2", "p0pre"] + ["aloop"] * 7 + ["aexit", "aswitch", "aswitch2", "aloop", "aexit", "b0"] + ["bloop"] * 4 + ["bend"]))]
    for u in range(2):
        for o, eps in ((0, ["epk", "epkm"]), (0, ["epk", "epkx"]), (1, ["epv", "epvs"]), (1, ["epv", "epvx", "epvs"])):
            for fb in ([], ["fb0", "fb1", "fb1", "fb2", "fb3", "fb3", "fb4"]):
                att = ["attloop", "attloop2"] * 3 + ["attloop", "early", "early2", "attloop2"] if g.ne else ["attloop"] * 4
                t1 = ["entry", "ln", "kvdma", "ln2", "p1a", f"kv{u}{o}", "p1b"] + eps + ["p1c", "p1gemm", "attpre"] + att + \
                     ["attend"] + fb + ["opub", "pl2", "w_o", "ogat", f"xu{u}", "xud", "w_pm4", "pl4", "fin"]
                traces.append(("P1", g.trace(t1)))
    auto_vm([t for _, t in traces])
    for n, t in traces:
        probs += check_trace(t, n)
    seen = set()
    for p in probs:
        key = p.split("'", 1)[1]
        if key not in seen:
            seen.add(key)
            print(p)
    if verbose:
        for s in g.segs:
            n = sum(1 for i in s.ins if i.kind != "label")
            nm = sum(1 for i in s.ins if i.kind == "mfma")
            if n > 40:
                print(f"{s.name:10s} ins {n:5d} mfma {nm:4d} est {est_cycles(s.ins)}")
    open(path, "w").write(g.text())
    return len(seen)


if __name__ == "__main__":
    import argparse
    ap = argparse.ArgumentParser()
    ap.add_argument("-o", default="cdna_kernels/" + NAME + ".s")
    ap.add_argument("-C", type=int, default=1)
    ap.add_argument("--stamps", action="store_true")
    ap.add_argument("--noxpf", action="store_true")
    ap.add_argument("--nowpf", action="store_true")
    ap.add_argument("--fb", action="store_true")
    ap.add_argument("kw", nargs="*")
    a = ap.parse_args()
    kw = {}
    for x in a.kw:
        k, v = x.split("=")
        kw[k] = int(v) if v.lstrip("-").isdigit() else " " + v
    n = build(a.o, a.C, a.stamps, not a.noxpf, not a.nowpf, a.fb, **kw)
    print("problems:", n)
```

```python
import re

TRANS = ("v_exp_f32", "v_rcp_f32", "v_rsq_f32", "v_log_f32", "v_sqrt_f32")


def regs_of(tok):
    tok = tok.strip()
    tok = tok.lstrip("-")
    m = re.fullmatch(r"abs\((.*)\)", tok)
    if m:
        tok = m.group(1)
    m = re.fullmatch(r"([vas])(\d+)", tok)
    if m:
        return [m.group(1) + m.group(2)]
    m = re.fullmatch(r"([vas])\[(\d+):(\d+)\]", tok)
    if m:
        return [m.group(1) + str(i) for i in range(int(m.group(2)), int(m.group(3)) + 1)]
    if tok in ("vcc", "exec", "m0"):
        return [tok]
    if tok in ("vcc_lo", "vcc_hi"):
        return ["vcc"]
    return []


class Ins:
    __slots__ = ("text", "op", "kind", "rd", "wr", "tag", "passes", "srcc", "ab", "vm", "lg", "nop", "need", "idx", "auto", "dpp")

    def __init__(self, text, tag=None, need=None, idx=None, auto=None):
        self.text = text
        self.auto = auto
        self.tag = tag
        self.need = need
        self.idx = idx
        t = text.split(";")[0].strip()
        self.dpp = "_dpp" in t
        t = re.sub(r"\s(quad_perm|op_sel|op_sel_hi):\[[^\]]*\]", "", t)
        self.vm = self.lg = None
        self.nop = 1
        self.passes = 0
        self.srcc = []
        self.ab = []
        self.rd = []
        self.wr = []
        if t.endswith(":") or t.startswith(".") or not t:
            self.op = ""
            self.kind = "label"
            self.nop = 0
            return
        parts = t.split(None, 1)
        op = self.op = parts[0]
        rest = parts[1] if len(parts) > 1 else ""
        ops = [o.strip() for o in rest.split(",")]
        mods = ""
        if ops:
            sp = ops[-1].split(None, 1)
            if sp:
                ops[-1] = sp[0]
                mods = sp[1] if len(sp) > 1 else ""
        R = [regs_of(o) for o in ops]
        flat = lambda l: [x for y in l for x in y]
        if op.startswith("v_mfma") or op.startswith("v_smfmac"):
            self.kind = "mfma"
            self.passes = 8 if "32x32" in op else 4
            self.wr = R[0]
            if op.startswith("v_smfmac"):
                self.srcc = R[0]
                self.ab = R[1] + R[2] + R[3]
            else:
                self.srcc = R[3]
                self.ab = R[1] + R[2]
            self.rd = self.ab + self.srcc
        elif op.startswith("ds_read"):
            self.kind = "lds"
            self.wr = R[0]
            self.rd = R[1]
        elif op.startswith("ds_write"):
            self.kind = "lds"
            self.rd = flat(R)
        elif op.startswith("buffer_load") or op.startswith("global_load"):
            self.kind = "vmem"
            if re.search(r"\blds\b", mods):
                self.rd = flat(R) + ["m0"]
            else:
                self.wr = R[0]
                self.rd = flat(R[1:])
        elif op.startswith("buffer_store") or op.startswith("buffer_atomic"):
            self.kind = "vmem"
            self.rd = flat(R)
        elif op == "s_waitcnt":
            self.kind = "wait"
            m = re.search(r"vmcnt\((\d+)\)", t)
            if m:
                self.vm = int(m.group(1))
            m = re.search(r"lgkmcnt\((\d+)\)", t)
            if m:
                self.lg = int(m.group(1))
        elif op == "s_nop":
            self.kind = "salu"
            self.nop = int(ops[0]) + 1
        elif op.startswith("s_load") or op in ("s_memtime", "s_memrealtime"):
            self.kind = "smem"
            self.wr = R[0]
            self.rd = flat(R[1:])
        elif op.startswith("s_cmp") or op.startswith("s_bitcmp") or op.startswith("s_cbranch") or op in ("s_branch", "s_barrier", "s_endpgm", "s_sleep", "s_setprio", "s_set_gpr_idx_off"):
            self.kind = "salu"
            self.rd = flat(R)
            if op in ("s_cbranch_vccnz", "s_cbranch_vccz"):
                self.rd = ["vcc"]
        elif op == "s_set_gpr_idx_on":
            self.kind = "salu"
            self.rd = R[0]
            self.wr = ["m0"]
        elif op.startswith("s_"):
            self.kind = "salu"
            self.wr = R[0]
            self.rd = flat(R[1:])
        elif op.startswith("v_"):
            self.kind = "trans" if op.replace("_e32", "").replace("_e64", "") in TRANS else "valu"
            if op.startswith("v_permlane"):
                self.wr = R[0] + R[1]
                self.rd = R[0] + R[1]
            elif op.startswith("v_dot2c") or op.startswith("v_fmac"):
                self.wr = R[0]
                self.rd = flat(R)
            elif op.startswith("v_add_co") or op.startswith("v_addc_co"):
                self.wr = R[0] + R[1]
                self.rd = flat(R[2:])
            elif op.startswith("v_cndmask") and len(ops) == 4:
                self.wr = R[0]
                self.rd = flat(R[1:])
            else:
                self.wr = R[0]
                self.rd = flat(R[1:])
        else:
            raise ValueError("unknown instruction: " + text)

    def cost(self):
        if self.kind == "trans":
            return 8
        return 4


class Seg:
    def __init__(self, name):
        self.name = name
        self.ins = []

    def __call__(self, text, **kw):
        for l in text.split("\n"):
            l = l.strip()
            if l:
                self.ins.append(Ins(l, **kw))
        return self

    def add(self, i):
        self.ins.append(i)

    def extend(self, l):
        self.ins.extend(l)

    def text(self):
        out = []
        for i in self.ins:
            out.append(i.text if i.kind == "label" else "    " + i.text)
        return "\n".join(out) + "\n"


def check_trace(trace, name="", verbose=False):
    probs = []
    vmq = []
    lgq = []
    pend_vm = {}
    pend_lg = {}
    pos = 0
    last_valu_wr = {}
    last_mfma_wr = {}
    last_srcc_rd = {}
    last_salu_m0 = -100
    last_store_data = {}
    done_tags = set()
    seen_tags = set()
    maxvm = 0
    scc = None
    NOSCC = ("s_mov", "s_cselect", "s_mul_i32", "s_nop", "s_cbranch", "s_branch", "s_barrier", "s_sleep", "s_set_gpr", "s_endpgm", "s_setprio", "s_getreg", "s_getpc", "s_ff1", "s_bitset")

    def P(i, n, msg):
        probs.append(f"[{name}] #{n} '{i.text}': {msg}")

    for n, i in enumerate(trace):
        if i.kind == "label":
            continue
        here = pos
        isvalu = i.kind in ("valu", "trans")
        wr = list(i.wr)
        if i.idx:
            wr = [r[0] + str(int(r[1:]) + o) for r in i.wr for o in i.idx]
        for r in i.rd + wr:
            if r in pend_vm and not (i.kind == "vmem" and r in wr and r not in i.rd):
                P(i, n, f"{r} has vm load pending from '{pend_vm[r].text}'")
                del pend_vm[r]
            if r in pend_lg and not (i.kind in ("lds", "smem") and r in wr and r not in i.rd):
                P(i, n, f"{r} has lgkm load pending from '{pend_lg[r].text}'")
                del pend_lg[r]
        if i.need:
            for t in i.need:
                if t.startswith("lds:"):
                    tg, _, k = t[4:].partition("/")
                    if sum(1 for q in lgq if q.tag == tg) > int(k or 0):
                        P(i, n, f"lds tag {t} still outstanding")
                elif t.startswith("old:"):
                    tg, k = t[4:].split("/")
                    c = sum(1 for q in vmq if q.tag == tg)
                    if c > int(k):
                        P(i, n, f"vm tag {tg}: {c} outstanding > {k}")
                else:
                    if any(q.tag == t for q in vmq):
                        P(i, n, f"vm tag {t} still outstanding")
                    if t not in seen_tags:
                        P(i, n, f"vm tag {t} never issued")

        def dist(d, r):
            return here - d[r][0] if r in d else 1000

        if i.kind == "mfma":
            for r in i.rd:
                if dist(last_valu_wr, r) < 2:
                    P(i, n, f"VALU write {r} -> MFMA read needs 2")
            for r in i.ab:
                if r in last_mfma_wr:
                    need = 8 if last_mfma_wr[r][1].passes == 4 else 12
                    if dist(last_mfma_wr, r) < need:
                        P(i, n, f"MFMA write {r} -> MFMA A/B read needs {need}, has {dist(last_mfma_wr, r)}")
            for r in set(i.srcc + i.wr):
                if r in last_mfma_wr:
                    p = last_mfma_wr[r][1]
                    exact = (p.wr == (i.srcc if r in i.srcc else i.wr)) and p.passes == i.passes
                    if not exact:
                        need = 6 if p.passes == 4 else 10
                        if dist(last_mfma_wr, r) < need:
                            P(i, n, f"MFMA write {r} -> overlapped SrcC/D needs {need}")
        if isvalu or i.kind in ("vmem", "lds"):
            for r in i.rd + wr:
                if r in last_mfma_wr:
                    need = 8 if last_mfma_wr[r][1].passes == 4 else 12
                    if dist(last_mfma_wr, r) < need:
                        P(i, n, f"MFMA write {r} -> access needs {need}, has {dist(last_mfma_wr, r)}")
        if isvalu:
            for r in wr:
                if r in last_srcc_rd:
                    need = 3 if last_srcc_rd[r][1].passes == 4 else 7
                    if dist(last_srcc_rd, r) < need:
                        P(i, n, f"MFMA SrcC read {r} -> VALU write needs {need}")
                if dist(last_store_data, r) < 2:
                    P(i, n, f"store data {r} -> VALU write needs 2")
            for r in i.rd:
                if r in last_valu_wr:
                    p = last_valu_wr[r][1]
                    d = dist(last_valu_wr, r)
                    if p.kind == "trans" and i.kind != "trans" and d < 1:
                        P(i, n, f"trans write {r} -> VALU read needs 1")
                    if i.dpp and d < 2:
                        P(i, n, f"VALU write {r} -> DPP needs 2")
                    if i.op.startswith("v_permlane") and d < 2:
                        P(i, n, f"VALU write {r} -> permlane needs 2")
                    if (i.op.startswith("v_readfirstlane") or i.op.startswith("v_readlane")) and d < 1:
                        P(i, n, f"VALU write {r} -> readlane needs 1")
                    if (r[0] == "s" or r == "vcc") and d < 2:
                        P(i, n, f"VALU write {r} -> VALU const read needs 2")
                    if p.op.startswith("v_dot") and d < 3:
                        same_c = p.op == i.op and r in i.wr
                        if not same_c:
                            P(i, n, f"dot write {r} -> read needs 3")
            for r in wr:
                if r in last_valu_wr and last_valu_wr[r][1].op.startswith("v_dot") and last_valu_wr[r][1].op != i.op and dist(last_valu_wr, r) < 3:
                    P(i, n, f"dot write {r} -> write needs 3")
        if i.kind in ("lds", "vmem") and wr:
            for r in wr:
                if dist(last_store_data, r) < 1:
                    P(i, n, f"store data {r} -> write needs 1")
        if i.kind == "vmem":
            for r in i.rd:
                if r[0] == "s" and dist(last_valu_wr, r) < 5:
                    P(i, n, f"VALU write {r} -> VMEM read needs 5")
            if "m0" in i.rd and here - last_salu_m0 < 1:
                P(i, n, "m0 write -> DMA needs 1")
        if i.kind == "salu":
            for r in i.rd:
                if (r[0] == "s" or r == "vcc") and dist(last_valu_wr, r) < 1:
                    P(i, n, f"VALU write {r} -> SALU read (pad 1+)")

        if i.op.startswith("s_cselect") or i.op.startswith("s_cbranch_scc"):
            if scc is None or not (scc.op.startswith("s_cmp") or scc.op.startswith("s_bitcmp") or scc.op in ("s_and_b64", "s_or_b64", "s_andn2_b32", "s_and_b32") and i.op.startswith("s_cbranch")):
                P(i, n, f"SCC last written by '{scc.text if scc else None}'")
        if i.op == "s_addc_u32" and (scc is None or scc.op != "s_add_u32"):
            P(i, n, "addc without add")
        if i.kind == "salu" and not i.op.startswith(NOSCC):
            scc = i
        pos += i.nop
        if i.kind == "wait":
            if i.vm is not None:
                while len(vmq) > i.vm:
                    q = vmq.pop(0)
                    for r in q.wr:
                        if pend_vm.get(r) is q:
                            del pend_vm[r]
            if i.lg is not None:
                if any(q.kind == "smem" for q in lgq) and i.lg != 0:
                    P(i, n, "counted lgkmcnt with SMEM outstanding")
                while len(lgq) > i.lg:
                    q = lgq.pop(0)
                    for r in q.wr:
                        if pend_lg.get(r) is q:
                            del pend_lg[r]
        elif i.kind == "vmem":
            vmq.append(i)
            maxvm = max(maxvm, len(vmq))
            if len(vmq) > 63:
                P(i, n, "more than 63 vm ops outstanding")
            if i.tag:
                seen_tags.add(i.tag)
            for r in i.wr:
                pend_vm[r] = i
            if i.op.startswith("buffer_store_dwordx4") or i.op.startswith("buffer_store_dwordx3"):
                for r in regs_of(i.text.split(None, 1)[1].split(",")[0]):
                    last_store_data[r] = (pos, i)
        elif i.kind in ("lds", "smem"):
            lgq.append(i)
            for r in i.wr:
                pend_lg[r] = i
        if isvalu:
            for r in wr:
                last_valu_wr[r] = (pos, i)
                last_mfma_wr.pop(r, None)
        elif i.kind == "mfma":
            for r in i.wr:
                last_mfma_wr[r] = (pos, i)
                last_valu_wr.pop(r, None)
            for r in i.srcc:
                last_srcc_rd[r] = (pos, i)
        elif i.kind == "salu":
            for r in i.wr:
                last_valu_wr.pop(r, None)
            if "m0" in i.wr:
                last_salu_m0 = pos
        else:
            for r in i.wr:
                last_valu_wr.pop(r, None)
                last_mfma_wr.pop(r, None)
    return probs


def est_cycles(ins):
    t = 0
    pipe = 0
    prev = None
    shadow = False
    for i in ins:
        if i.kind == "label":
            continue
        if i.kind == "mfma":
            t = max(t, pipe)
            pipe = t + 4 * i.passes
            c = 12 if i.op.startswith("v_smfmac") else (4 if "1k" in i.op else 8)
            t += c
            shadow = c >= 8
        else:
            if i.kind in ("salu", "wait") and shadow and i.op not in ("s_barrier",) and i.nop == 1:
                pass
            elif i.op == "s_barrier":
                t += 36
            elif i.op == "s_nop":
                t += 4 * i.nop
            else:
                t += i.cost()
                if i.kind in ("lds", "vmem") and prev is not None and prev.kind in ("valu", "trans"):
                    t += 8
                if i.op.startswith("buffer_store_dwordx4"):
                    t += 16
            shadow = False
        prev = i
    return max(t, pipe)


def auto_vm(traces):
    best = {}
    for tr in traces:
        ops = []
        for i in tr:
            if i.kind == "vmem":
                ops.append(i.tag)
            elif i.kind == "wait" and i.auto:
                last = -1
                for k in range(len(ops) - 1, -1, -1):
                    if ops[k] in i.auto:
                        last = k
                        break
                n = min(63, len(ops) - 1 - last) if last >= 0 else 63
                best[id(i)] = (i, min(n, best.get(id(i), (i, 63))[1]))
    for i, n in best.values():
        i.vm = n
        i.text = re.sub(r"vmcnt\(\d+\)", f"vmcnt({n})", i.text)
```

```python
import math, struct, sys
from asmlib import Ins, Seg, check_trace, est_cycles, auto_vm
from sched import Timeline, Item, LAT

NAME = "parallel_sum__grouped_kv_mqa__geglu_ffn__prompt"


def f32(x):
    return "0x%08x" % struct.unpack("<I", struct.pack("<f", x))[0]


LOG2E = 1.4426950408889634
K0 = 2 * LOG2E * math.sqrt(2 / math.pi)
K1 = K0 * 0.044715
ALPHA = K1 ** (1.0 / 3.0)
K0P = K0 / ALPHA
CK = LOG2E / math.sqrt(18.0) / ALPHA ** 2
MOFF = 84.0
OOB = 0x40000000

SLOT = 36864
KVS0, KVS1, KVST = 110592, 131072, 20480
WS_KV, WS_FLAG, WS_HX, WS_OM, WS_PART, WS_STAMP = 0, 0x40000, 0x80000, 0x300000, 0x600000, 0x1C00000
WS_SIZE = 0x2000000
DD = 20

sX, sG, sU, sD, sWS, sOUT, sDBG, sQ, sKV, sWO, sPF = 8, 12, 16, 20, 24, 28, 32, 36, 40, 44, 72
sW, sR, sS, sROLE, sE1, sE2 = 76, 77, 78, 79, 80, 81
sM0W, sA, sC0, sC1, sINC, sIT, sHI, sNK, sT0, sT1, sT2, sT3 = 82, 83, 84, 85, 86, 87, 88, 89, 90, 91, 92, 93
sST, sFL, sPFO, sPOL, sSTN, sFLN = 94, 95, 96, 97, 98, 99
pG, pU, sDM, sDG, sINN, sNRN = 48, 50, 56, 60, 68, 69
sMASK = 4
sMK2 = 6


def srd(n):
    return f"s[{n}:{n + 3}]"


vL, vT0, vT1, vT2, vT3 = 1, 2, 3, 4, 5
vL16, vFLG = 6, 7
vRB = 8
vDM, vPF, vPOL, vONE = 24, 25, 26, 27
vTMP = 20
vDN = 28
vGL, vG, vU, vH = 32, 64, 96, 128
vLO, vRAW = 40, 112
aXN, aFR, aH0 = 0, 144, 216
vKD = 208


def vr(a, n=4):
    return f"v[{a}:{a + n - 1}]" if n > 1 else f"v{a}"


def ar(a, n=4):
    return f"a[{a}:{a + n - 1}]" if n > 1 else f"a{a}"


def xn(u, k):
    return ar(aXN + 4 * (18 * u + k))


def frag(gam, i):
    return aFR + 36 * (gam % 2) + 4 * i


class Gen:
    def __init__(self, C=1, stamps=False, xpf=True, wpf=True, **kw):
        self.o = kw
        self.C = C
        self.stamps = stamps
        self.xpf = xpf
        self.wpf = wpf
        self.segs = []
        self.nstamp = {}

    def seg(self, name):
        s = Seg(name)
        self.segs.append(s)
        return s

    def stamp(self, s, k):
        if not self.stamps:
            return
        s(f"""s_waitcnt lgkmcnt(0)
        s_memtime s[52:53]
        s_memrealtime s[54:55]
        s_waitcnt lgkmcnt(0)
        v_writelane_b32 v0, s52, {2 * k}
        v_writelane_b32 v0, s54, {2 * k + 1}""")

    def stamp_flush(self, s):
        if not self.stamps:
            return
        s(f"""s_lshl_b32 s48, s2, 2
        s_add_u32 s48, s48, s{sW}
        s_lshl_b32 s48, s48, 8
        s_add_u32 s48, s48, {WS_STAMP}
        v_lshlrev_b32 v{vT0}, 2, v{vL}
        buffer_store_dword v0, v{vT0}, {srd(sWS)}, s48 offen""")

    def std_reads(self, gam0, pos0, slot, tag):
        R = []
        n = 0
        for ct in range(4):
            for i in range(9):
                for h in range(2):
                    f = frag(gam0 + ct, i) + 2 * h
                    off = slot * SLOT + 4096 * i + 2048 * h
                    ins = Ins(f"ds_read_b64_tr_b16 {ar(f, 2)}, v{vRB + 4 * (off // 65536) + ct} offset:{off % 65536}", tag=tag)
                    g0 = pos0 + 18 * ct
                    R.append(Item("r", ins, pos0 - DD + n, earliest=g0 - 27 + i, deadline=g0 + i - LAT - 1))
                    n += 1
        return R

    def std_mfmas(self, tl, gam0, pos0, acc, bfun, zero):
        for ct in range(4):
            for u in range(2):
                for i in range(9):
                    c = vr(acc + 4 * (2 * ct + u))
                    cin = "0" if (zero and i == 0) else c
                    tl.m[pos0 + 18 * ct + 9 * u + i] = Ins(f"v_mfma_f32_16x16x32_bf16 {c}, {ar(frag(gam0 + ct, i))}, {bfun(u, i)}, {cin}")

    def barrier(self, tl, p, vmtags, ldstag):
        g = tl.gap(p)
        g.shadow.append(Ins("s_waitcnt vmcnt(63) lgkmcnt(6)", auto=vmtags))
        g.bar.append(Ins("s_barrier", need=list(vmtags) + [f"lds:{ldstag}/6"]))

    def dmas(self, tl, stage, voff, first, inc, tag, srdn=None):
        for i in range(9):
            p = 72 * (stage - 3) + 7 + 8 * i
            m0 = f"s_add_u32 m0, s{sM0W}, {(stage % 4) * SLOT + 4096 * i}"
            if srdn is not None:
                sh = [m0, first[0] if (i == 0 and first) else f"s_add_u32 s{sA}, s{sA}, {inc}"]
                op = f"buffer_load_dwordx4 v{voff}, {srd(srdn)}, s{sA} offen lds"
            else:
                sh = [m0] + (first if (i == 0 and first) else [f"s_add_u32 s{sDM}, s{sDM}, {inc}", f"s_addc_u32 s{sDM + 1}, s{sDM + 1}, 0"])
                op = f"buffer_load_dwordx4 v{voff}, {srd(sDM)}, 0 offen lds"
            for k, t in enumerate(sh):
                tl.gap(p - len(sh) + 1 + k).shadow.append(Ins(t))
            tl.gap(p).mem.append(Ins(op, tag=tag))

    def shadows(self, tl, p, seq):
        for t in seq:
            tt = t if isinstance(t, tuple) else (t,)
            while any(tl.gap(p + k).shadow for k in range(len(tt))):
                p += 1
            for x in tt:
                tl.gap(p).shadow.append(Ins(x))
                p += 1
        return p

    def gelu_items(self, base, t0, t1, idx, hreg):
        raw = []
        for j in range(8):
            rel = base + 72 + 9 * j + 8 + 4
            dl = base + 288 + 9 * j - 1
            g, t = vG + 4 * j, vGL + 4 * j
            for e in range(4):
                raw.append(("v", [Ins(f"v_fma_f32 v{t + e}, -v{g + e}, v{g + e}, s{sNK}")], rel, dl))
            for e in range(4):
                raw.append(("v", [Ins(f"v_mul_f32 v{t + e}, v{t + e}, v{g + e}")], rel, dl))
            for e in range(4):
                raw.append(("v", [Ins(f"v_exp_f32 v{t + e}, v{t + e}")], rel, dl))
            for e in range(4):
                raw.append(("v", [Ins(f"v_add_f32 v{t + e}, 1.0, v{t + e}")], rel, dl))
            for e in range(4):
                raw.append(("v", [Ins(f"v_rcp_f32 v{t + e}, v{t + e}")], rel, dl))
            for e in range(4):
                raw.append(("v", [Ins(f"v_mul_f32 v{t + e}, v{t + e}, v{g + e}")], rel, dl))
        for j in (0, 2, 4, 6, 1, 3, 5, 7):
            ct, u = j // 2, j % 2
            rel = base + 216 + 9 * j + 8 + 4
            dl = base + 288 + 144 + 9 * j - 1
            t, uu = vGL + 4 * j, vU + 4 * j
            h = hreg + 8 * (ct // 2) + 4 * u + 2 * (ct % 2)
            for e in range(4):
                raw.append(("v", [Ins(f"v_mul_f32 v{t + e}, v{t + e}, v{uu + e}")], rel, dl))
            if idx:
                offs = [16 * k for k in range(8)]
                raw.append(("x", [Ins(f"v_cvt_pk_bf16_f32 v{h + e}, v{t + 2 * e}, v{t + 2 * e + 1}", idx=offs) for e in range(2)], rel, dl))
            else:
                for e in range(2):
                    raw.append(("v", [Ins(f"v_cvt_pk_bf16_f32 v{h + e}, v{t + 2 * e}, v{t + 2 * e + 1}")], rel, dl))
        items = []
        for k, ins, rel, dl in raw:
            if k == "x":
                items.append(Item("x", ins, 0, rel, dl, pre=Ins(f"s_set_gpr_idx_on s{sHI}, 8"), post=Ins("s_set_gpr_idx_off")))
            else:
                items.append(Item("v", ins, 0, rel, dl))
        for c, i in enumerate(items):
            i.target = t0 + (t1 - t0) * c / len(items)
        return items

    def prologue(self):
        C = self.C
        s = self.seg("entry")
        s(f"""s_cmp_ge_u32 s2, 256
        s_cbranch_scc1 L_end
        s_load_dwordx16 s[48:63], s[0:1], 0
        s_load_dwordx8 s[64:71], s[0:1], 64
        v_lshrrev_b32 v{vT0}, 6, v0
        v_and_b32 v{vL}, 63, v0
        v_readfirstlane_b32 s{sW}, v{vT0}
        s_and_b32 s{sT0}, s2, 7
        s_lshr_b32 s{sT1}, s2, 3
        s_bitcmp1_b32 s2, 3
        s_cselect_b32 s{sROLE}, 1, 0
        s_lshr_b32 s{sT1}, s{sT1}, 1""")
        lc = C.bit_length() - 1
        s(f"""s_and_b32 s{sS}, s{sT0}, {8 // C - 1}
        s_lshl_b32 s{sS}, s{sS}, {lc}
        s_and_b32 s{sT2}, s{sT1}, {C - 1}
        s_add_u32 s{sS}, s{sS}, s{sT2}
        s_lshl_b32 s{sE1}, s{sT2}, 1
        s_add_u32 s{sE1}, s{sE1}, s{sROLE}
        s_lshr_b32 s{sE2}, s{sT1}, {lc}
        s_lshr_b32 s{sR}, s{sT0}, {3 - lc}
        s_lshl_b32 s{sR}, s{sR}, {4 - lc}
        s_add_u32 s{sR}, s{sR}, s{sE2}
        s_lshl_b32 s{sM0W}, s{sW}, 10
        v_lshlrev_b32 v{vL16}, 4, v{vL}
        v_lshrrev_b32 v{vT0}, 3, v{vL}
        v_and_b32 v{vT1}, 7, v{vL}
        s_lshl_b32 s{sT0}, s{sW}, 5
        v_add_u32 v{vT2}, s{sT0}, v{vT0}
        v_mul_u32_u24 v{vT2}, 1152, v{vT2}
        v_lshl_add_u32 v{vTMP}, v{vT1}, 4, v{vT2}
        v_and_b32 v{vT0}, 48, v{vL}
        v_xor_b32 v28, v{vTMP}, v{vT0}
        v_xor_b32 v29, 64, v28
        v_add_u32 v29, 9216, v29
        v_add_u32 v30, 18432, v28
        v_add_u32 v31, 18432, v29
        s_mul_i32 s{sT0}, s{sR}, 147456
        s_mul_i32 s{sT1}, s{sS}, 1152
        s_waitcnt lgkmcnt(0)""")
        self.stamp0(s)

        def mk(n, src, offreg, size, sub=False):
            s = self.segs[-1]
            if offreg is None:
                s(f"s_mov_b32 s{n}, s{src}\ns_and_b32 s{n + 1}, s{src + 1}, 0xffff")
            else:
                s(f"s_add_u32 s{n}, s{src}, s{offreg}\ns_addc_u32 s{n + 1}, s{src + 1}, 0\ns_and_b32 s{n + 1}, s{n + 1}, 0xffff")
            if sub:
                s(f"s_sub_u32 s{n + 2}, {size}, s{offreg}")
            else:
                s(f"s_mov_b32 s{n + 2}, {size}")
            s(f"s_mov_b32 s{n + 3}, 0x20000")

        mk(sX, 48, sT0, 147456)
        vXO = 28
        xl = []
        for u in range(2):
            for c in range(9):
                for r2 in range(2):
                    rg = 2 * u + r2
                    xl.append([Ins(f"s_add_u32 m0, s{sM0W}, {rg * SLOT + 4096 * c - 128 * c}"),
                               Ins(f"buffer_load_dwordx4 v{vXO + rg}, {srd(sX)}, 0 offen offset:{128 * c} lds", tag=f"x{9 * u + c}")])
        NUP = self.o.get("nup", 12)
        xpos = self.o.get("xpos", 0)
        early = self.o.get("early", 0)

        def xpref():
            per = 144 // C
            n = (per + 63) // 64
            lanes = per // n
            s(f"""s_lshl_b32 s{sT2}, s{sE1}, 2
            s_add_u32 s{sT2}, s{sT2}, s{sW}
            s_mul_i32 s{sT2}, s{sT2}, {per * 128}
            v_min_u32 v{vT2}, {lanes - 1}, v{vL}
            v_lshlrev_b32 v{vT2}, 7, v{vT2}""")
            for i in range(n):
                s(f"buffer_load_dword v{vT3}, v{vT2}, {srd(sX)}, s{sT2} offen", tag="pf")
                if i + 1 < n:
                    s(f"s_add_u32 s{sT2}, s{sT2}, {lanes * 128}")

        def xfirst(a, b):
            s = self.segs[-1]
            for q in xl[a:b]:
                s.add(q[0])
                s("s_nop 0")
                s.add(q[1])

        xfirst(0, min(xpos, NUP))
        if self.xpf:
            xpref()
        if not early:
            xfirst(min(xpos, NUP), NUP)
        tlb = self.o.get("tlb", 0)
        if tlb:
            step = 5308416 // tlb // 4 // 64 * 64
            s(f"s_mul_i32 s{sA}, s{sW}, {step}")
            for i in range(tlb):
                s(f"s_load_dword s100, s[60:61], s{sA}\ns_load_dword s100, s[62:63], s{sA}\ns_add_u32 s{sA}, s{sA}, {4 * step}")
            s("s_load_dword s100, s[50:51], 0\ns_load_dword s100, s[52:53], 0\ns_load_dword s100, s[54:55], 0")
        mk(sG, 60, sT1, 5308416, sub=True)
        mk(sU, 62, sT1, 5308416, sub=True)
        s(f"""s_bitcmp1_b32 s{sS}, 1
        s_cselect_b32 s{sKV}, s54, s52
        s_cselect_b32 s{sKV + 1}, s55, s53
        s_and_b32 s{sKV + 1}, s{sKV + 1}, 0xffff
        s_mov_b32 s{sKV + 2}, 20736
        s_mov_b32 s{sKV + 3}, 0x20000
        s_cmp_ge_u32 s{sW}, 2
        s_cselect_b32 s{sPF}, s{sU}, s{sG}
        s_cselect_b32 s{sPF + 1}, s{sU + 1}, s{sG + 1}
        s_mov_b32 s{sPF + 2}, s{sG + 2}
        s_mov_b32 s{sPF + 3}, 0x20000
        s_cmp_eq_u32 s{sROLE}, 0
        s_cselect_b32 s{sC0}, 128, 0""")
        npf = 1 if C <= 2 else 2
        self.npf = npf
        lanes = 18 * C // npf
        self.pfstep = lanes * (32 // C)
        s(f"""s_and_b32 s{sT0}, s{sW}, 1
        s_lshl_b32 s{sT1}, s{sE2}, 1
        s_add_u32 s{sT0}, s{sT0}, s{sT1}
        v_lshlrev_b32 v{vT0}, {5 - lc}, v{vL}
        v_add_u32 v{vT0}, s{sT0}, v{vT0}
        v_mul_u32_u24 v{vPF}, 9216, v{vT0}
        v_mul_u32_u24 v{vPOL}, 1152, v{vT0}
        v_mov_b32 v{vT1}, {OOB}
        v_cmp_gt_u32 vcc, {lanes}, v{vL}
        s_nop 1
        v_cndmask_b32 v{vPF}, v{vT1}, v{vPF}, vcc
        v_cndmask_b32 v{vPOL}, v{vT1}, v{vPOL}, vcc""")
        kvpf = f"""s_and_b32 s{sT2}, s{sE2}, 3
        s_lshl_b32 s{sT2}, s{sT2}, 2
        s_add_u32 s{sT2}, s{sT2}, s{sW}
        s_mul_i32 s{sT2}, s{sT2}, {11 * 128}
        s_cmp_eq_u32 s{sROLE}, {1 if early == 2 else 0}
        s_cselect_b32 s{sT2}, {OOB}, s{sT2}
        v_min_u32 v{vT2}, 10, v{vL}
        v_lshlrev_b32 v{vT2}, 7, v{vT2}"""
        if early:
            s(kvpf)
            if early >= 2:
                s("s_cbranch_scc1 L_nopf")
                s = self.seg("pfe")
            s(f"buffer_load_dword v{vT3}, v{vT2}, {srd(sKV)}, s{sT2} offen", tag="pf")
            for i in range(npf):
                s(f"s_add_u32 s{sT0}, s{sC0}, {i * self.pfstep * 9216}")
                s(f"buffer_load_dword v{vT3}, v{vPF}, {srd(sPF)}, s{sT0} offen", tag="pf")
                if early >= 2:
                    s(f"s_mov_b32 s{sT0}, {(128 if early == 3 else 0) + i * self.pfstep * 9216}")
                    s(f"buffer_load_dword v{vT3}, v{vPF}, {srd(sPF)}, s{sT0} offen", tag="pf")
            if early >= 2:
                s = self.seg("entry2")
                s("L_nopf:")
            xfirst(min(xpos, NUP), NUP)
        s(f"s_mul_i32 s{sT0}, s{sR}, 147456")
        mk(sOUT, 66, sT0, 147456)
        s(f"s_mul_i32 s{sT0}, s{sS}, 663552\ns_mul_i32 s{sT1}, s{sS}, 144")
        mk(sD, 64, sT0, 663552)
        mk(sQ, 50, sT1, 663552, sub=True)
        mk(sWS, 70, None, WS_SIZE)
        mk(sDBG, 68, None, 256)
        mk(sWO, 56, None, 663552)
        s(f"""s_add_u32 s{sT0}, s{sC0}, {8 * 32 * 9216}
        s_add_u32 s{sDM}, s{sU}, s{sT0}
        s_addc_u32 s{sDM + 1}, s{sU + 1}, 0
        s_mov_b32 s{sDM + 2}, {31 * 9216 + 128}
        s_mov_b32 s{sDM + 3}, 0x20000""")
        s(f"""v_lshrrev_b32 v{vT0}, 2, v{vL}
        v_lshlrev_b32 v{vT0}, 7, v{vT0}
        v_and_b32 v{vT1}, 3, v{vL}
        v_lshl_add_u32 v{vT0}, v{vT1}, 3, v{vT0}
        v_bfe_u32 v{vT1}, v{vL}, 3, 2""")
        for ct in range(4):
            s(f"""v_xor_b32 v{vT2}, {ct}, v{vT1}
            v_lshl_add_u32 v{vRB + ct}, v{vT2}, 5, v{vT0}
            v_add_u32 v{vRB + 4 + ct}, 0x10000, v{vRB + ct}
            v_add_u32 v{vRB + 8 + ct}, 0x20000, v{vRB + ct}""")
        s(f"""v_bfe_u32 v{vT0}, v{vL}, 1, 2
        v_lshrrev_b32 v{vT1}, 4, v{vL}
        v_xor_b32 v{vTMP + 2}, v{vT0}, v{vT1}
        v_and_b32 v{vT1}, 1, v{vL}
        v_lshlrev_b32 v{vT1}, 4, v{vT1}
        v_lshl_add_u32 v{vTMP + 1}, v{vTMP + 2}, 5, v{vT1}""")
        vXB = (vFLG, vONE)
        aONE = 252
        s(f"""v_lshrrev_b32 v{vT0}, 5, v{vL}
        v_bfe_u32 v{vT1}, v{vL}, 3, 2
        v_lshl_add_u32 v{vT0}, v{vT0}, 3, v{vT1}
        s_and_b32 s{sT0}, s{sW}, 1
        s_lshl_b32 s{sT0}, s{sT0}, 4
        s_lshr_b32 s{sT1}, s{sW}, 1
        s_lshl_b32 s{sT1}, s{sT1}, 2
        s_add_u32 s{sT0}, s{sT0}, s{sT1}
        v_add_u32 v{vTMP + 3}, s{sT0}, v{vT0}
        v_mul_u32_u24 v{vDM}, 9216, v{vTMP + 3}
        v_add_u32 v{vDM}, v{vDM}, v{vTMP + 1}
        s_mov_b32 s{sNK}, {f32(-K0P)}
        s_mov_b32 s{sMASK}, 0
        s_mov_b32 s{sMASK + 1}, -1
        s_mov_b32 s{sINC}, {32 * 9216}
        v_bfe_u32 v{vT0}, v{vL}, 1, 3
        v_lshrrev_b32 v{vT1}, 4, v{vL}
        v_xor_b32 v{vT0}, v{vT0}, v{vT1}
        v_and_b32 v{vT2}, 7, v{vL}
        v_lshl_add_u32 v{vT0}, v{vT2}, 3, v{vT0}
        v_lshl_add_u32 v{vT0}, v{vT0}, 4, s{sM0W}
        v_bfe_u32 v{vT2}, v{vL}, 3, 1
        v_mul_u32_u24 v{vT2}, {SLOT}, v{vT2}
        v_add_u32 v{vXB[0]}, v{vT0}, v{vT2}
        v_xor_b32 v{vXB[1]}, 64, v{vXB[0]}
        v_and_b32 v{vT0}, 15, v{vL}
        v_lshlrev_b32 v{vT1}, 2, v{vT1}
        v_sub_u32 v{vT0}, v{vT0}, v{vT1}
        v_mov_b32 v{vT1}, 0x3f803f80""")
        for j in range(4):
            s(f"v_cmp_eq_u32 s[{sDG + 2 * j}:{sDG + 2 * j + 1}], {j}, v{vT0}\nv_accvgpr_write_b32 a{aONE + j}, v{vT1}")
        if not early:
            s(kvpf)
        s(f"s_cmp_eq_u32 s{sROLE}, 0\ns_cbranch_scc1 L_ln")
        self.p1pre()
        s = self.seg("ln")
        s("L_ln:")
        if tlb:
            s("s_waitcnt lgkmcnt(0)")
        pf1, pf2 = [], []
        if self.wpf and not early:
            pf1.append([Ins(f"buffer_load_dword v{vT3}, v{vT2}, {srd(sKV)}, s{sT2} offen", tag="pf")])
            for i in range(npf):
                pf1.append([Ins(f"s_add_u32 s{sT0}, s{sC0}, {i * self.pfstep * 9216}"),
                            Ins(f"buffer_load_dword v{vT3}, v{vPF}, {srd(sPF)}, s{sT0} offen", tag="pf")])
        self.pf2 = lambda col: [x for i in range(npf) for x in (Ins(f"s_mov_b32 s{sT0}, {col + i * self.pfstep * 9216}"),
                                                                 Ins(f"buffer_load_dword v{vT3}, v{vPF}, {srd(sPF)}, s{sT0} offen", tag="pf"))]
        wl = []
        for st in range(3):
            for i in range(9):
                wl.append([Ins(f"s_add_u32 m0, s{sM0W}, {st * SLOT + 4096 * i}"),
                           Ins(f"s_mov_b32 s{sA}, s{sC0}" if (i == 0 and st % 2 == 0) else f"s_add_u32 s{sA}, s{sA}, s{sINC}"),
                           Ins(f"buffer_load_dwordx4 v{vDM}, {srd(sG if st < 2 else sU)}, s{sA} offen lds", tag=f"st{st}", need=[f"lds:xr{st // 2}"])])
        pfpos = max(NUP, self.o.get("pfpos", 36))
        g0 = self.o.get("g0", 0)
        w1 = self.o.get("w1", 18)
        wskip = self.o.get("wskip", 0)
        q0 = xl[NUP:pfpos] + (wl[:g0] if pfpos == 36 else []) + pf1 + xl[pfpos:]
        vSU, vGR, vK = 32, 36, 2

        def xread(u, c, hh):
            return Ins(f"ds_read_b128 {vr(vRAW + 4 * (2 * c + hh))}, v{vXB[hh]} offset:{4096 * c}", tag=f"xr{u}", need=[f"x{9 * u + c}"])

        def xwait(u, c):
            return Ins("s_waitcnt vmcnt(63)", auto=[f"x{9 * u + c}"])

        def vmop(s, q, pad):
            s.extend(q[:-1])
            if pad and len(q) == 2 and "m0" in q[0].wr:
                s("s_nop 0")
            s.add(q[-1])

        for u in range(2):
            queue = q0 if u == 0 else [None] * wskip + wl[g0:w1]
            if u == 0:
                for c in range(2):
                    s.add(xwait(0, c))
                    s.extend([xread(0, c, 0), xread(0, c, 1)])
                    if c == 0:
                        self.stamp(s, 10)
            s("s_waitcnt lgkmcnt(2)")
            for c in range(9):
                for hh in range(2):
                    n = 2 * c + hh
                    r, lo = vRAW + 4 * n, vLO + 4 * n
                    s(f"v_mfma_f32_16x16x32_bf16 {vr(vSU)}, {ar(aONE)}, {vr(r)}, {'0' if n == 0 else vr(vSU)}")
                    if hh == 0 and c + 2 < 9:
                        s.add(xwait(u, c + 2))
                        s.add(xread(u, c + 2, 0))
                    if hh == 1 and queue:
                        q = queue.pop(0)
                        if q:
                            vmop(s, q, True)
                    for j in range(4):
                        s(f"v_lshlrev_b32 v{lo + j}, 16, v{r + j}")
                    s(f"v_mfma_f32_16x16x32_bf16 {vr(vGR)}, {vr(r)}, {vr(r)}, {'0' if n == 0 else vr(vGR)}")
                    if hh == 0:
                        q = queue.pop(0) if queue else None
                        if q:
                            s.extend(q[:-1])
                        if c + 2 < 9:
                            s.add(xread(u, c + 2, 1))
                        elif q and len(q) == 2:
                            s("s_nop 0")
                        if q:
                            s.add(q[-1])
                    elif c < 8:
                        s(f"s_waitcnt lgkmcnt({2 if c + 2 < 9 else 0})")
                    for j in range(4):
                        s(f"v_and_b32 v{r + j}, 0xffff0000, v{r + j}")
            self.stamp(s, 11 + 2 * u)
            if u == 0:
                s(f"v_add_u32 v{vXB[0]}, {2 * SLOT}, v{vXB[0]}\nv_add_u32 v{vXB[1]}, {2 * SLOT}, v{vXB[1]}\ns_nop 1")
            else:
                assert not queue
                queue = wl[w1:]
                s(f"""s_cmp_eq_u32 s{sROLE}, 0
                s_cbranch_scc1 L_nokv""")
                k = self.seg("kvdma")
                for i in range(5):
                    k(f"s_add_u32 m0, s{sM0W}, {3 * SLOT + 4096 * i}")
                    k(f"s_mov_b32 s{sT0}, {4608 * i}")
                    k(f"buffer_load_dwordx4 v{vKD}, {srd(sKV)}, s{sT0} offen lds", tag="kvimg", need=["lds:xr1"])
                s = self.seg("ln2")
                s("L_nokv:\ns_nop 1")
            s(f"v_cndmask_b32 v{vGR}, 0, v{vGR}, s[{sDG}:{sDG + 1}]")
            for j in range(1, 4):
                s(f"v_cndmask_b32 v{vGR}, v{vGR}, v{vGR + j}, s[{sDG + 2 * j}:{sDG + 2 * j + 1}]")
            s(f"""v_mov_b32 v{vGR + 1}, v{vGR}
            v_mul_f32 v{vSU}, {f32(1 / 576)}, v{vSU}
            s_nop 0
            v_permlane16_swap_b32 v{vGR}, v{vGR + 1}
            v_add_f32 v{vGR}, v{vGR}, v{vGR + 1}
            v_mov_b32 v{vGR + 1}, v{vGR}
            v_mul_f32 v{vSU + 1}, v{vSU}, v{vSU}
            s_nop 0
            v_permlane32_swap_b32 v{vGR}, v{vGR + 1}
            v_add_f32 v{vGR}, v{vGR}, v{vGR + 1}
            v_mul_f32 v{vGR}, {f32(1 / 576)}, v{vGR}
            v_sub_f32 v{vGR}, v{vGR}, v{vSU + 1}
            v_max_f32 v{vGR}, 0, v{vGR}
            v_add_f32 v{vGR}, {f32(1e-5)}, v{vGR}
            v_rsq_f32 v{vGR}, v{vGR}
            s_nop 0
            v_mul_f32 v{vK}, {f32(ALPHA)}, v{vGR}
            v_mul_f32 v{vK + 1}, v{vK}, -v{vSU}""")
            for n in range(18):
                r, lo = vRAW + 4 * n, vLO + 4 * n
                k = vr(vK, 2)
                lim = 16 if u == 0 else 18
                while queue and (n % 2 == 0 or len(queue) > (lim - n) // 2):
                    vmop(s, queue.pop(0), True)
                    if len(queue) < lim - n:
                        break
                if u == 0 and n == 16:
                    assert not queue
                    s.add(xwait(1, 1))
                    s.extend([xread(1, c, hh) for c in range(2) for hh in range(2)])
                for j in (0, 2):
                    s(f"v_pk_fma_f32 {vr(lo + j, 2)}, {vr(lo + j, 2)}, {k}, {k} op_sel:[0,0,1] op_sel_hi:[1,0,1]")
                    s(f"v_pk_fma_f32 {vr(r + j, 2)}, {vr(r + j, 2)}, {k}, {k} op_sel:[0,0,1] op_sel_hi:[1,0,1]")
                for j in range(4):
                    s(f"v_cvt_pk_bf16_f32 v{lo + j}, v{lo + j}, v{r + j}")
                for j in range(4):
                    s(f"v_accvgpr_write_b32 a{aXN + 4 * (18 * u + n) + j}, v{lo + j}")
            assert not queue
            self.stamp(s, 12 + 2 * u)
        s(f"""v_mov_b32 v{vT1}, {OOB}
        v_cmp_eq_u32 vcc, 0, v{vL}
        v_mov_b32 v{vONE}, 1
        s_nop 0
        v_cndmask_b32 v{vFLG}, v{vT1}, 0, vcc""")
        self.stamp(s, 1)
        s(f"""s_cmp_lg_u32 s{sROLE}, 0
        s_cbranch_scc1 L_p1""")

    def stamp0(self, s):
        if not self.stamps:
            return
        s(f"""s_memtime s[100:101]
        s_waitcnt lgkmcnt(0)
        v_writelane_b32 v0, s100, 0
        s_memrealtime s[100:101]
        s_waitcnt lgkmcnt(0)
        v_writelane_b32 v0, s100, 1""")

    def p0(self):
        tl = Timeline()
        xb = lambda h: (lambda u, i: xn(u, 9 * h + i))
        for st, (acc, h) in enumerate(((vG, 0), (vG, 1), (vU, 0), (vU, 1), (vG, 0), (vG, 1))):
            self.std_mfmas(tl, 4 * st, 72 * st, acc, xb(h), h == 0)
            tl.put_reads(self.std_reads(4 * st, 72 * st, st % 4, f"r{st % 4}"))
            if st:
                self.barrier(tl, 72 * st - DD, [f"st{st % 4}"], f"r{(st - 1) % 4}")
        for st in range(3, 9):
            sl = st % 4
            first = [f"s_mov_b32 s{sDM}, s{pG if sl < 2 else pU}", f"s_mov_b32 s{sDM + 1}, s{(pG if sl < 2 else pU) + 1}"] if sl % 2 == 0 else None
            self.dmas(tl, st, vDM, first, f"s{sINC}", f"st{sl}")
        tl.gap(306).mem.append(Ins(f"buffer_load_dword v{vPOL}, off, {srd(sDBG)}, s{sPOL} sc1", tag="poll"))
        e = self.shadows(tl, 360, [f"s_mov_b32 s{sINC}, s{sINN}", f"s_mov_b32 s{sDM + 2}, s{sNRN}"])
        assert e <= 365
        tl.gap(362).valu.append(Ins(f"v_mov_b32 v{vDM}, v{vDN}"))
        self.shadows(tl, 120, [f"s_add_u32 s{sHI}, s{sHI}, 16", f"s_and_b32 s{sHI}, s{sHI}, 127", f"s_add_u32 s{sIT}, s{sIT}, 1",
                               (f"s_add_u32 s{pG}, s{pG}, 128", f"s_addc_u32 s{pG + 1}, s{pG + 1}, 0"),
                               (f"s_cmp_eq_u32 s{sIT}, 6", f"s_cselect_b32 s{sPOL}, s{sT3}, {OOB}")])
        self.shadows(tl, 224, [(f"s_add_u32 s{pU}, s{pU}, 128", f"s_addc_u32 s{pU + 1}, s{pU + 1}, 0")])
        tl.gap(287).shadow.append(Ins(f"s_cmp_lt_u32 s{sIT}, 7"))
        V = self.gelu_items(0, 85, 371, True, vH)
        tl.fill(85, 288, V)
        state = {"V": [i.ins[0].text for i in V]}
        tl.fill(288, 373, V, flush=10 ** 9)
        for p in range(288, 373):
            tl.g[p - 288] = tl.g[p]
        pre = [(p, m) for p in range(262, 268) for m in tl.gap(p).mem if m.kind == "lds"]
        state["out"] = tl.insert_lgkm_waits(268, 288, pre)
        tl.insert_lgkm_waits(0, 268, [(p - 288, m) for p, m in state["out"]])
        prew = [m for m in tl.gap(268).mem if m.kind == "lds"]
        prew += [m for p in range(269, 288) for m in tl.gap(p).ins() if m.kind == "lds" or (m.kind == "wait" and m.lg is not None)]
        s = self.seg("p0pre")
        if self.wpf:
            for c in range(self.o.get("npf0", 1)):
                s.extend(self.pf2(256 + 128 * c))
        s(f"""s_add_u32 s{pG}, s{sG}, 256
        s_addc_u32 s{pG + 1}, s{sG + 1}, 0
        s_add_u32 s{pU}, s{sU}, 256
        s_addc_u32 s{pU + 1}, s{sU + 1}, 0
        s_mov_b32 s{sIT}, 0
        s_mov_b32 s{sHI}, 112
        s_mov_b32 s{sPOL}, {OOB}
        s_lshl_b32 s{sT3}, s{sR}, 2
        s_add_u32 s{sT3}, s{sT3}, 128
        s_mov_b32 s{sINN}, s{sINC}
        s_mov_b32 s{sNRN}, s{sDM + 2}
        v_mov_b32 v{vDN}, v{vDM}""")
        s("s_waitcnt vmcnt(63)", auto=["st0"])
        s("s_barrier", need=["st0"])
        s.extend(prew)
        s(".p2align 3")
        a = self.seg("aloop")
        a("L_aloop:")
        a.extend(tl.emit(0, 288))
        a("s_cbranch_scc1 L_aloop")
        a2 = self.seg("aexit")
        a2(f"""s_cmp_eq_u32 s{sIT}, 7
        s_cbranch_scc0 L_bstart""")
        w = self.seg("aswitch")
        w(f"""v_readfirstlane_b32 s{sT0}, v{vPOL}
        s_mov_b32 s{sT1}, 0
        s_cmp_ge_u32 s{sT0}, 8
        s_cbranch_scc1 L_hready""")
        sp = self.seg("hspin")
        sp(f"""L_hspin:
        s_sleep 4
        buffer_load_dword v{vPOL}, off, {srd(sDBG)}, s{sT3} sc1
        s_add_u32 s{sT1}, s{sT1}, 1
        s_waitcnt vmcnt(0)
        v_readfirstlane_b32 s{sT0}, v{vPOL}
        s_cmp_gt_u32 s{sT1}, 0x40000
        s_cbranch_scc1 L_end
        s_cmp_ge_u32 s{sT0}, 8
        s_cbranch_scc0 L_hspin""")
        w = self.seg("aswitch2")
        w(f"""L_hready:
        s_lshl_b32 s{sT0}, s{sR}, 3
        s_add_u32 s{sT0}, s{sT0}, s{sS}
        s_lshl_b32 s{sT1}, s{sT0}, 2
        s_add_u32 s{sT1}, s{sT1}, s{sW}
        s_lshl_b32 s{sT1}, s{sT1}, 12
        s_add_u32 s{sT1}, s{sT1}, {WS_HX}""")
        rest = f"""s_mov_b32 s{sINN}, {32 * 1152}
        s_mov_b32 s{sNRN}, {31 * 1152 + 128}
        s_lshl_b32 s{sC0}, s{sS}, 7
        s_add_u32 s{pG}, s{sD}, s{sC0}
        s_addc_u32 s{pG + 1}, s{sD + 1}, 0
        s_add_u32 s{sC0}, s{sC0}, 128
        s_and_b32 s{sC0}, s{sC0}, 1023
        s_add_u32 s{pU}, s{sD}, s{sC0}
        s_addc_u32 s{pU + 1}, s{sD + 1}, 0
        v_lshrrev_b32 v{vT0}, 3, v{vL}
        s_lshl_b32 s{sC1}, s{sW}, 3
        v_add_u32 v{vT0}, s{sC1}, v{vT0}
        v_mul_u32_u24 v{vT0}, 1152, v{vT0}
        v_add_u32 v{vDN}, v{vT0}, v{vTMP + 1}
        v_lshlrev_b32 v{vT0}, 9, v{vL}
        v_mov_b32 v{vT1}, {OOB}
        v_cmp_gt_u32 vcc, 8, v{vL}
        v_lshlrev_b32 v{vT2}, 3, v{vL}
        s_mul_i32 s{sT2}, s{sT0}, {9 * 16384}
        v_cndmask_b32 v{vT0}, v{vT1}, v{vT0}, vcc
        s_lshl_b32 s{sC1}, s{sW}, 12
        s_add_u32 s{sT2}, s{sT2}, s{sC1}
        s_add_u32 s{sT2}, s{sT2}, {WS_PART}
        s_mul_i32 s{sSTN}, s{sS}, {9 * 16384 - 512}
        s_sub_u32 s{sSTN}, s{sT2}, s{sSTN}
        s_lshl_b32 s{sT3}, s{sR}, 12
        s_lshl_b32 s{sC1}, s{sW}, 7
        s_add_u32 s{sT3}, s{sT3}, s{sC1}
        s_lshl_b32 s{sC1}, s{sS}, 2
        s_add_u32 s{sT3}, s{sT3}, s{sC1}
        s_add_u32 s{sT3}, s{sT3}, {WS_FLAG + 32}""".split("\n")
        for k in range(4):
            w(f"buffer_load_dwordx4 {ar(aH0 + 4 * k)}, v{vL16}, {srd(sWS)}, s{sT1} offen offset:{1024 * k} sc1", tag="h0")
            w("\n".join(rest[11 * k:11 * k + 11]))
        w("s_branch L_aloop")

        def hb(h):
            def f(u, i):
                k = 9 * h + i
                c, a_ = k // 2, k % 2
                if c == 0:
                    return ar(aH0 + 8 * a_ + 4 * u)
                return vr(vH + 16 * (c - 1) + 8 * a_ + 4 * u)
            return f

        def outv(base, tag):
            V = []
            for j in range(8):
                ct, u = j // 2, j % 2
                rel = base + 72 + 9 * j + 8 + 8
                dl = base + 144 + 9 * j - 1
                p = vU + 8 * (ct // 2) + 4 * u + 2 * (ct % 2)
                for e in range(2):
                    V.append(Item("v", Ins(f"v_cvt_pk_bf16_f32 v{p + e}, v{vG + 4 * j + 2 * e}, v{vG + 4 * j + 2 * e + 1}"), rel + e, rel, dl))
                if ct % 2 == 1:
                    k = 2 * (ct // 2) + u
                    V.append(Item("m", Ins(f"buffer_store_dwordx4 {vr(vU + 4 * k)}, v{vL16}, {srd(sWS)}, s{sST} offen offset:{1024 * k} sc1", tag=tag), rel + 2, rel + 1))
            return V

        tb = Timeline()
        fpos = self.o.get("fpos", 124)
        for st in range(8):
            h = st % 2
            self.std_mfmas(tb, 4 * st, 72 * st, vG, hb(h), h == 0)
            tb.put_reads(self.std_reads(4 * st, 72 * st, st % 4, f"r{st % 4}"))
            if st:
                self.barrier(tb, 72 * st - DD, [f"st{st % 4}"], f"r{(st - 1) % 4}")
        for st in range(3, 9):
            first = [f"s_mov_b32 s{sDM + 2}, s{sNRN}", f"s_add_u32 s{sDM}, s{sD}, s{sC0}", f"s_addc_u32 s{sDM + 1}, s{sD + 1}, 0"]
            self.dmas(tb, st, vDM, first if st % 2 == 0 else None, 32 * 1152, f"st{st % 4}")
        for step in range(3):
            base = 144 * step
            prev = f"part{(step - 1) % 2}"
            g = tb.gap(base + fpos)
            if g.bar:
                g.shadow[0].auto.append(prev)
            else:
                g.shadow.append(Ins("s_waitcnt vmcnt(63)", auto=[prev]))
            g.mem.append(Ins(f"buffer_store_dword v{vONE}, v{vFLG}, {srd(sWS)}, s{sFL} offen sc1", tag="flag", need=[f"old:{prev}/0"]))
            e = self.shadows(tb, base + 24, [f"s_add_u32 s{sT0}, s{sIT}, s{sS}", f"s_and_b32 s{sT1}, s{sT0}, 7",
                                             f"s_add_u32 s{sT0}, s{sT0}, 2", f"s_and_b32 s{sT0}, s{sT0}, 7",
                                             (f"s_cmp_lt_u32 s{sIT}, 6", f"s_cselect_b32 s{sT0}, s{sT0}, 8"),
                                             f"s_lshl_b32 s{sC0}, s{sT0}, 7",
                                             (f"s_cmp_lt_u32 s{sIT}, 7", f"s_cselect_b32 s{sNRN}, s{sNRN}, 0"),
                                             f"s_lshl_b32 s{sST}, s{sT1}, 14", f"s_add_u32 s{sST}, s{sST}, s{sT2}",
                                             f"s_mov_b32 s{sFL}, s{sFLN}", f"s_lshl_b32 s{sFLN}, s{sT1}, 9",
                                             f"s_add_u32 s{sFLN}, s{sFLN}, s{sT3}", f"s_add_u32 s{sIT}, s{sIT}, 1"])
            assert e < base + min(fpos, 76)
        tb.gap(287).shadow.append(Ins(f"s_cmp_eq_u32 s{sIT}, 8"))
        Vall = self.gelu_items(-288, 0, 1, False, vH + 112)
        nrem = sum(2 if t.startswith("v_cvt") else 1 for t in state["V"])
        V = Vall[len(Vall) - nrem:]
        assert V[0].ins[0].text == state["V"][0], (V[0].ins[0].text, state["V"][0])
        for c, i in enumerate(V):
            i.target = 82.0 * c / len(V)
            if i.ins[0].op.startswith("v_cvt"):
                u = ((int(i.ins[0].wr[0][1:]) - vH) // 4) % 2
                i.deadline = 72 + 7 + 9 * u - 2
        bstate = []
        o = [(p - 288, m) for p, m in state["out"]]
        for step in range(3):
            V += outv(144 * step, f"part{step % 2}")
            tb.fill(144 * step, 144 * step + 144, V)
            o = tb.insert_lgkm_waits(144 * step, 144 * step + 144, o)
            bstate.append(([i.ins[0].text for i in V], len(o)))
            if step == 1:
                nleft, o1 = len(V), list(o)
            for p in range(144 * step + 20, 144 * step + 90):
                assert not any(m.op.startswith("buffer_store_dwordx4") for m in tb.gap(p).mem)
        assert bstate[0][0] == bstate[2][0] and bstate[2][1] <= bstate[0][1], bstate
        te = Timeline()
        for st in (4, 5):
            self.std_mfmas(te, 4 * st, 72 * st, vG, hb(st % 2), st == 4)
            te.put_reads(self.std_reads(4 * st, 72 * st, st % 4, f"r{st % 4}"))
        self.barrier(te, 360 - DD, ["st1"], "r0")
        te.gap(288 + fpos).shadow.append(Ins("s_waitcnt vmcnt(63)", auto=["part1"]))
        te.gap(288 + fpos).mem.append(Ins(f"buffer_store_dword v{vONE}, v{vFLG}, {srd(sWS)}, s{sFLN} offen sc1", tag="flag", need=["part1"]))
        te.gap(300).shadow.append(Ins(f"s_add_u32 s{sT3}, s{sT3}, 32"))
        V = outv(144, "part1")[-nleft:]
        for j in range(8):
            ct, u = j // 2, j % 2
            rel = 360 + 9 * j + 8 + (4 if j < 4 else 8)
            te.gap(360 + 9 * j + 7).shadow.append(Ins(f"s_add_u32 s{sA + (j % 2)}, s{sSTN}, {((ct + 4 * u) * 9 + 8) * 16384}"))
            for e in range(2):
                V.append(Item("v", Ins(f"v_cvt_pk_bf16_f32 v{vGL + 2 * j + e}, v{vG + 4 * j + 2 * e}, v{vG + 4 * j + 2 * e + 1}"), rel, rel))
            V.append(Item("m", Ins(f"buffer_store_dwordx2 {vr(vGL + 2 * j, 2)}, v{vT2}, {srd(sWS)}, s{sA + (j % 2)} offen sc1", tag="part0"), rel + 1, rel + 1))
        te.fill(288, 432, V)
        te.insert_lgkm_waits(288, 432, o1)
        s = self.seg("b0")
        s(f"""L_bstart:
        s_mov_b32 s{sIT}, 0
        s_mov_b32 s{sFLN}, {OOB}""")
        self.stamp(s, 2)
        s.extend(tb.emit(0, 144))
        s(".p2align 3")
        bl = self.seg("bloop")
        bl("L_bloop:")
        bl.extend(tb.emit(144, 288))
        bl("s_cbranch_scc1 L_blast")
        bl = self.seg("bloop2")
        bl.extend(tb.emit(288, 432))
        bl("s_branch L_bloop\n.p2align 3")
        e = self.seg("bend")
        e("L_blast:")
        e.extend(te.emit(288, 432))
        e("s_nop 6")
        for it in V:
            e.extend(it.ins)
        self.stamp(e, 3)
        e("s_waitcnt vmcnt(0)")
        e(f"buffer_store_dword v{vONE}, v{vT0}, {srd(sWS)}, s{sT3} offen sc1", need=["part0", "part1"])
        self.stamp(e, 4)
        self.stamp_flush(e)
        e("s_endpgm")

    def text(self):
        head = open("cdna_kernels/" + NAME + ".s.ref").read()
        lines = head.split("\n")
        top = [l for l in lines if l.startswith(";") and "@launch" not in l and "Override" not in l and "grid=ceil" not in l]
        out = "\n".join(top) + "\n; @launch grid=(256,1,1) block=(256,1,1) lds=163840\n"
        out += f""".amdgcn_target "amdgcn-amd-amdhsa--gfx950"
.text
.globl {NAME}_kernel
.p2align 8
.type {NAME}_kernel,@function
{NAME}_kernel:
"""
        for s in self.segs:
            out += f"; ---- {s.name}\n" + s.text()
        out += f"""L_end:
    s_endpgm
.section .rodata,"a"
.p2align 6
.amdhsa_kernel {NAME}_kernel
  .amdhsa_next_free_vgpr 512
  .amdhsa_next_free_sgpr 102
  .amdhsa_accum_offset 256
  .amdhsa_group_segment_fixed_size 0
  .amdhsa_kernarg_size 96
  .amdhsa_user_sgpr_count 2
  .amdhsa_user_sgpr_kernarg_segment_ptr 1
  .amdhsa_system_sgpr_workgroup_id_x 1
.end_amdhsa_kernel
"""
        return out

    def trace(self, names):
        d = {s.name: s for s in self.segs}
        t = []
        for n in names:
            if n in d:
                t += d[n].ins
            else:
                assert n in ("pfe", "entry2"), n
        return t
```

```python
from gen import *

vQ1, vQ2 = 96, 112
vS_, vO_, vH1 = 32, 128, 192
aK1, aK2, aV_ = 216, 224, 232
aKV = 216
vKVA, vEX = 192, 200
(vEP, vKR, vINB, vQM, vQX, vRX, vDP, vKA, vK2A, vVA, vIDX, vWM, vWX, vWN, vWNX, vXN, vPD, vOE, vFO, vBA, vXNA, vOA, vRN, vOL,
 vAND, vOR, vZ) = range(209, 236)
vL8 = 246
vSEL = 236
vXB, vXE = 248, 252
XRES, XRESN = 94208, 151552
sXL, sXN, sPB, sPG, sK2, sK1, sKS, sOM, sOF, sHA, sSK = 48, 49, 50, 51, 68, 69, 70, 71, 0, 1, 3
sRDY, sTODO, sLST = 60, 61, 62
MSK = f"s[{sMASK}:{sMASK + 1}]"
MK2 = f"s[{sMK2}:{sMK2 + 1}]"


class Gen1(Gen):
    def spin(self, name, mask, lim="0x40000"):
        s = self.seg(name)
        s(f"""s_mov_b32 s{sT1}, 0
        L_{name}:
        buffer_load_dword v{vPOL}, v{vINB}, {srd(sWS)}, s{sFL} offen sc1
        s_add_u32 s{sT1}, s{sT1}, 1
        s_cmp_gt_u32 s{sT1}, {lim}
        s_cbranch_scc1 L_end
        s_waitcnt vmcnt(0)
        v_cmp_eq_u32 vcc, 0, v{vPOL}
        s_nop 1
        s_and_b64 vcc, vcc, {mask}
        s_cbranch_scc1 L_{name}""")

    def oolspin(self, name, mask):
        self.seg(name + "_a")(f"L_{name}_in:")
        self.spin(name, mask)
        self.seg(name + "_b")(f"s_branch L_{name}_out")

    def p1pre(self):
        s = self.seg("p1pre")
        A, B, Cc, Dd, T, G_, OB = 192, 193, 194, 195, 196, 197, 198
        a, b, c, d = sT0, sT1, sT3, sA
        s(f"""v_and_b32 v{T}, 15, v{vL}
        v_lshrrev_b32 v{G_}, 4, v{vL}
        v_mov_b32 v{OB}, {OOB}
        v_mov_b32 v{vZ}, 0
        v_mov_b32 v{vIDX}, 0xdddddddd""")
        s(f"""v_lshrrev_b32 v{A}, 1, v{vL}
        v_mul_u32_u24 v{B}, 36, v{A}
        v_and_b32 v{Dd}, 1, v{vL}
        v_lshl_add_u32 v{B}, v{Dd}, 4, v{B}
        s_and_b32 s{a}, s{sS}, 1
        s_lshl_b32 s{a}, s{a}, 5
        s_mul_i32 s{b}, s{sW}, 1152
        s_add_u32 s{a}, s{a}, s{b}
        v_add_u32 v{vKD}, s{a}, v{B}
        v_mul_u32_u24 v{A}, 1152, v{A}
        v_lshl_add_u32 v{A}, v{Dd}, 4, v{A}
        v_cndmask_b32 v{vXN}, v{A}, v{OB}, {MSK}
        v_bfe_u32 v{A}, v{vL}, 2, 2
        v_lshl_add_u32 v{A}, v{G_}, 3, v{A}
        v_and_b32 v{B}, 3, v{vL}
        v_lshlrev_b32 v{Cc}, 3, v{B}
        v_lshl_add_u32 v{Cc}, v{A}, 5, v{Cc}
        v_add_u32 v{vKR}, {3 * SLOT}, v{Cc}
        v_add_u32 v{Cc}, v{Cc}, v{Cc}
        v_add_u32 v{vRX}, {2 * SLOT}, v{Cc}
        v_lshrrev_b32 v{A}, 2, v{vL}
        v_lshlrev_b32 v{Cc}, 5, v{A}
        v_lshl_add_u32 v{Cc}, v{B}, 3, v{Cc}
        v_add_u32 v{vRN}, {2 * SLOT}, v{Cc}
        s_lshl_b32 s{a}, s{sW}, 4
        v_add_u32 v{A}, s{a}, v{A}
        v_mul_u32_u24 v{A}, 1152, v{A}
        v_mul_u32_u24 v{B}, 36, v{B}
        v_add3_u32 v{vQX}, v{A}, v{B}, 32
        v_mul_u32_u24 v{A}, 1152, v{vTMP + 3}
        v_mul_u32_u24 v{B}, 36, v{vTMP + 2}
        v_lshlrev_b32 v{Cc}, 4, v{Dd}
        v_add3_u32 v{vQM}, v{A}, v{B}, v{Cc}
        v_and_b32 v{A}, 7, v{vL}
        v_lshlrev_b32 v{vDP}, 2, v{A}
        v_lshlrev_b32 v{A}, 2, v{vL}
        v_cndmask_b32 v{vINB}, v{A}, v{OB}, {MSK}""")
        s(f"""s_bitcmp1_b32 s{sS}, 1
        s_cselect_b32 s{a}, 5, 8
        s_cselect_b32 s{sKS}, 1.0, {f32(CK)}
        s_lshl_b32 s{a}, s{a}, 6
        v_lshrrev_b32 v{A}, 5, v{vL}
        v_mul_u32_u24 v{A}, s{a}, v{A}
        v_lshl_add_u32 v{A}, v{T}, 4, v{A}
        v_and_b32 v{B}, 1, v{G_}
        v_lshl_add_u32 v{A}, v{B}, 3, v{A}
        s_and_b32 s{a}, s{sS}, 3
        s_cmp_eq_u32 s{a}, 1
        s_cselect_b32 s{b}, 16, 64
        v_cmp_gt_u32 vcc, s{b}, v{vL}
        s_cmp_eq_u32 s{a}, 3
        s_cselect_b32 s{b}, 4, 16
        s_cselect_b32 s{c}, 2, 16
        v_cndmask_b32 v{A}, v{OB}, v{A}, vcc
        v_cmp_gt_u32 vcc, s{b}, v{T}
        v_mov_b32 v{B}, 0x3f803f80
        s_lshr_b32 s{b}, s{sR}, 1
        v_cndmask_b32 v{vEP}, v{OB}, v{A}, vcc
        v_cmp_gt_u32 vcc, s{c}, v{T}
        s_lshl_b32 s{d}, s{b}, 2
        s_mul_i32 s{b}, s{b}, {KVST}
        v_cndmask_b32 v{vAND}, 0, -1, vcc
        v_cmp_eq_u32 vcc, s{c}, v{T}
        s_cmp_eq_u32 s{sW}, 0
        s_cselect_b32 s{sPOL}, s{d}, {OOB}
        v_cndmask_b32 v{vOR}, 0, v{B}, vcc
        s_lshl_b32 s{d}, s{sR}, 2
        s_add_u32 s{d}, s{d}, 128
        s_cmp_eq_u32 s{sW}, 0
        s_cselect_b32 s{sHA}, s{d}, {OOB}
        s_and_b32 s{c}, s{sR}, 1
        s_mul_i32 s{sK1}, s{c}, 640
        s_lshl_b32 s{c}, s{c}, 2
        s_add_u32 s{c}, s{c}, s{sW}
        s_lshr_b32 s{d}, s{sS}, 2
        s_lshl_b32 s{sK2}, s{c}, 1
        s_add_u32 s{sK2}, s{sK2}, s{d}
        s_mul_i32 s{sK2}, s{sK2}, 640
        s_add_u32 s{sK2}, s{sK2}, 8192
        s_lshl_b32 s{d}, s{d}, 8
        s_add_u32 s{sK1}, s{sK1}, s{d}
        s_lshl_b32 s{c}, s{c}, 10
        s_add_u32 s{c}, s{c}, s{d}
        s_bitcmp1_b32 s{sS}, 1
        s_cselect_b32 s{sK2}, s{sK2}, s{c}
        s_and_b32 s{c}, s{sS}, 1
        s_lshl_b32 s{c}, s{c}, 8
        s_add_u32 s{sK2}, s{sK2}, s{c}
        s_add_u32 s{sK2}, s{sK2}, s{b}
        s_lshl_b32 s{c}, s{sW}, 2
        s_add_u32 s{sK1}, s{sK1}, s{c}
        s_add_u32 s{sK1}, s{sK1}, s{b}
        s_add_u32 s{sK1}, s{sK1}, 18432
        s_cmp_eq_u32 s{a}, 1
        s_cselect_b32 s{sK1}, s{sK1}, {OOB}
        s_cselect_b32 s{sK2}, {OOB}, s{sK2}""")
        s(f"""s_lshl_b32 s{a}, s{sR}, 3
        s_add_u32 s{a}, s{a}, s{sS}
        s_lshl_b32 s{a}, s{a}, 2
        s_add_u32 s{a}, s{a}, s{sW}
        s_lshl_b32 s{sFL}, s{a}, 7
        s_add_u32 s{sFL}, s{sFL}, {WS_FLAG}
        s_lshl_b32 s{sST}, s{a}, 12
        s_add_u32 s{sST}, s{sST}, {WS_HX}
        s_mul_i32 s{a}, s{sS}, 508
        s_sub_u32 s{sOF}, s{sFL}, s{a}
        s_lshl_b32 s{a}, s{sR}, 2
        s_add_u32 s{a}, s{a}, s{sW}
        s_mul_i32 s{sOM}, s{a}, 36864
        s_add_u32 s{sOM}, s{sOM}, {WS_OM}
        s_mul_i32 s{sC1}, s{sW}, 5120
        s_lshl_b32 s{a}, s{sW}, 12
        s_add_u32 s{sXL}, s{a}, {XRES}
        s_mul_i32 s{sPB}, s{sR}, {8 * 9 * 16384}
        s_add_u32 s{sPB}, s{sPB}, s{a}
        s_add_u32 s{sPB}, s{sPB}, {WS_PART}
        s_lshr_b32 s{b}, s{sS}, 2
        s_mul_i32 s{a}, s{sS}, {9 * 16384}
        s_add_u32 s{a}, s{a}, {8 * 16384}
        s_add_u32 s{sFLN}, s{sPB}, s{a}
        s_lshl_b32 s{a}, s{sS}, 14
        s_add_u32 s{sPB}, s{sPB}, s{a}
        s_and_b32 s{c}, s{sS}, 3
        s_lshl_b32 s{c}, s{c}, 5
        s_add_u32 s{c}, s{c}, 1024
        s_lshl_b32 s{a}, s{sW}, 1
        s_add_u32 s{a}, s{a}, s{b}
        s_mul_i32 s{a}, s{a}, 18432
        s_add_u32 s{sXN}, s{a}, s{c}
        s_lshl_b32 s{sPFO}, s{sE2}, 2
        s_add_u32 s{sPFO}, s{sPFO}, s{sW}
        s_mul_i32 s{sPFO}, s{sPFO}, {81 * self.C * 128}
        s_mov_b32 s{sPG}, 640
        s_mov_b32 s{sSK}, 0""")
        self.nd = 1 if self.C <= 2 else 2
        self.dl = -(-81 * self.C // (4 * self.nd))
        s(f"""v_min_u32 v{A}, {self.dl - 1}, v{vL}
        v_lshlrev_b32 v{vPD}, 7, v{A}
        v_add_u32 v{vKA}, {KVS0}, v{vL16}
        v_add_u32 v{A}, {KVS0 + 18432}, v{vL16}
        v_mov_b32 v{B}, {KVS0 + 8192 + 288}
        v_cndmask_b32 v{vK2A}, v{A}, v{B}, {MSK}
        v_and_b32 v{A}, 31, v{vL}
        v_cmp_eq_u32 vcc, 22, v{A}
        v_min_u32 v{B}, 19, v{A}
        v_lshrrev_b32 v{A}, 5, v{vL}
        v_cndmask_b32 v{B}, v{B}, 18, vcc
        v_mul_u32_u24 v{Cc}, 320, v{A}
        v_lshl_add_u32 v{Cc}, v{B}, 4, v{Cc}
        v_add_u32 v{vVA}, {KVS0 + 8192}, v{Cc}""")
        s(f"""v_bfe_u32 v{B}, v{vL}, 3, 2
        v_mad_u32_u24 v{Cc}, v{A}, 18, v{B}
        s_lshl_b32 s{a}, s{sW}, 2
        v_add_u32 v{Cc}, s{a}, v{Cc}
        v_mul_u32_u24 v{Cc}, 1152, v{Cc}
        s_lshl_b32 s{d}, s{sS}, 7
        v_add3_u32 v{vWM}, v{Cc}, v{vTMP + 1}, s{d}
        v_lshrrev_b32 v{Cc}, 1, v{B}
        v_lshl_add_u32 v{B}, v{Cc}, 4, v{B}
        v_mul_u32_u24 v{Cc}, 72, v{A}
        s_and_b32 s{a}, s{sW}, 1
        s_mul_i32 s{a}, s{a}, 144
        s_lshr_b32 s{b}, s{sW}, 1
        s_mul_i32 s{b}, s{b}, 36
        s_add_u32 s{a}, s{a}, s{b}
        s_add_u32 s{a}, s{a}, 16
        v_add3_u32 v{Cc}, v{Cc}, v{B}, s{a}
        v_mul_u32_u24 v{Cc}, 1152, v{Cc}
        v_add3_u32 v{vWX}, v{Cc}, v{vTMP + 1}, s{d}""")
        s(f"""v_bfe_u32 v{B}, v{vL}, 1, 2
        v_bfe_u32 v{Cc}, v{vL}, 3, 1
        v_mad_u32_u24 v{Cc}, v{Cc}, 18, v{B}
        v_lshl_add_u32 v{Cc}, v{G_}, 2, v{Cc}
        s_mul_i32 s{a}, s{sW}, 36
        v_add_u32 v{Cc}, s{a}, v{Cc}
        v_mul_u32_u24 v{Cc}, 1152, v{Cc}
        v_lshl_add_u32 v{Cc}, v{Dd}, 4, v{Cc}
        v_add_u32 v{vWN}, s{c}, v{Cc}
        v_lshrrev_b32 v{Cc}, 1, v{B}
        v_lshl_add_u32 v{B}, v{Cc}, 4, v{B}
        v_bfe_u32 v{Cc}, v{vL}, 3, 2
        v_mul_u32_u24 v{Cc}, 72, v{Cc}
        v_add3_u32 v{B}, v{B}, v{Cc}, 16
        v_mad_u32_u24 v{B}, v{A}, 36, v{B}
        s_mul_i32 s{a}, s{sW}, 288
        v_add_u32 v{B}, s{a}, v{B}
        v_mul_u32_u24 v{B}, 1152, v{B}
        v_lshl_add_u32 v{B}, v{Dd}, 4, v{B}
        v_add_u32 v{vWNX}, s{c}, v{B}""")
        s(f"""v_lshlrev_b32 v{A}, 2, v{G_}
        v_mul_u32_u24 v{B}, 18432, v{G_}
        v_lshl_add_u32 v{B}, v{T}, 4, v{B}
        v_cndmask_b32 v{vOE}, v{B}, v{OB}, {MSK}
        v_lshlrev_b32 v{vL8}, 3, v{vL}
        v_mov_b32 v{vXB}, -1
        v_mov_b32 v{vXB + 1}, -1
        v_mov_b32 v{vXB + 2}, -1
        v_mov_b32 v{vXB + 3}, -1
        v_lshlrev_b32 v{B}, 9, v{vL}
        v_cmp_gt_u32 vcc, 8, v{vL}
        v_lshlrev_b32 v{Cc}, 3, v{G_}
        v_add_u32 v{vOL}, s{sXL}, v{vL16}
        v_cndmask_b32 v{vFO}, v{OB}, v{B}, vcc
        v_lshl_add_u32 v{B}, v{T}, 7, v{Cc}
        v_and_b32 v{Dd}, 7, v{vL}
        v_lshlrev_b32 v{Dd}, 4, v{Dd}
        v_xor_b32 v{B}, v{B}, v{Dd}
        v_add_u32 v{vBA}, s{sXL}, v{B}
        v_xor_b32 v{vTMP + 1}, 32, v{vBA}
        v_xor_b32 v{vTMP + 2}, 64, v{vBA}
        v_xor_b32 v{vTMP + 3}, 96, v{vBA}
        v_lshrrev_b32 v{Dd}, 3, v{vL}
        v_lshlrev_b32 v{Dd}, 4, v{Dd}
        v_xor_b32 v{vTMP}, v{vTMP}, v{Dd}
        v_lshl_add_u32 v{B}, v{T}, 5, v{Cc}
        s_add_u32 s{a}, s{sM0W}, {XRESN}
        v_add_u32 v{vXNA}, s{a}, v{B}
        v_mul_u32_u24 v{B}, 1152, v{T}
        v_add_u32 v{vOA}, v{B}, v{Cc}
        v_sub_u32 v{A}, v{T}, v{A}
        v_and_b32 v{B}, 1, v{A}
        v_lshlrev_b32 v{B}, 4, v{B}
        v_mov_b32 v{Cc}, 0x3f80
        v_lshlrev_b32 v{Cc}, v{B}, v{Cc}
        v_lshrrev_b32 v{A}, 1, v{A}
        v_cmp_eq_u32 vcc, 0, v{A}
        v_mov_b32 v{vSEL}, 0
        v_mov_b32 v{vSEL + 1}, 0
        v_cndmask_b32 v{vSEL + 2}, 0, v{Cc}, vcc
        v_cndmask_b32 v{vSEL + 6}, 0, v{Cc}, vcc
        v_cndmask_b32 v{vSEL + 8}, 0, v{Cc}, vcc
        v_cmp_eq_u32 vcc, 1, v{A}
        v_mov_b32 v{vSEL + 4}, 0
        v_mov_b32 v{vSEL + 5}, 0
        v_cndmask_b32 v{vSEL + 3}, 0, v{Cc}, vcc
        v_cndmask_b32 v{vSEL + 7}, 0, v{Cc}, vcc
        v_cndmask_b32 v{vSEL + 9}, 0, v{Cc}, vcc""")

    def p1(self):
        tl = Timeline()
        xb = lambda h: (lambda u, i: xn(u, 9 * h + i))
        for st, (acc, h) in enumerate(((vG, 0), (vG, 1), (vU, 0), (vU, 1), (vG, 0), (vG, 1))):
            self.std_mfmas(tl, 4 * st, 72 * st, acc, xb(h), h == 0)
            tl.put_reads(self.std_reads(4 * st, 72 * st, st % 4, f"r{st}"))
        R = []
        for h in range(2):
            for u in range(2):
                for i in range(9):
                    c = vr(vEX + 4 * u)
                    tl.m[432 + 18 * h + 9 * u + i] = Ins(f"v_mfma_f32_16x16x32_bf16 {c}, {ar(frag(24 + h, i))}, {xn(u, 9 * h + i)}, {'0' if h == 0 and i == 0 else c}")
            for i in range(9):
                for hh in range(2):
                    ins = Ins(f"ds_read_b64_tr_b16 {ar(frag(24 + h, i) + 2 * hh, 2)}, v{vRX} offset:{2048 * (9 * h + i) + 256 * hh}", tag="r6")
                    g0 = 432 + 18 * h
                    R.append(Item("r", ins, 432 - DD + len(R), earliest=g0 - 27 + i, deadline=g0 + i - LAT - 1))
        tl.put_reads(R)
        arr = self.o.get("kvarr", 2)
        for st in range(1, 7):
            self.barrier(tl, 72 * st - DD, [("st1", "st2", "st3", "q0", "q1", "q2")[st - 1]] + (["kvst"] if st == arr else []), f"r{st - 1}")
        tl.gap(1).bar.append(Ins("s_barrier", need=["lds:kvfr"]))
        tl.gap(72 * arr - DD).mem.append(Ins(f"buffer_atomic_add v{vONE}, v{vFLG}, {srd(sDBG)}, s{sPOL} offen sc1", tag="arr"))
        self.dmas(tl, 3, vDM, None, f"s{sINC}", "st3")
        self.dmas(tl, 4, vQM, [f"s_mov_b32 s{sDM + 2}, {31 * 1152 + 140}", f"s_mov_b32 s{sDM}, s{sQ}", f"s_mov_b32 s{sDM + 1}, s{sQ + 1}"], 32 * 1152, "q0")
        self.dmas(tl, 5, vQM, None, 32 * 1152, "q1")
        self.dmas(tl, 6, vQX, [f"s_mov_b32 s{sA}, 0"], 64 * 1152, "q2", srdn=sQ)
        tl.gap(self.kvpoll).mem.append(Ins(f"buffer_load_dword v{vPOL}, v{vDP}, {srd(sDBG)}, 0 offen sc1", tag="poll"))
        c = self.kvchk
        assert c >= 341
        tl.gap(c).shadow.append(Ins("s_waitcnt vmcnt(63)", auto=["poll"]))
        tl.gap(c).valu += [Ins(f"v_cmp_gt_u32 vcc, 16, v{vPOL}")]
        tl.gap(c + 2).shadow += [Ins("s_cbranch_vccnz L_kvspin"), Ins("L_kvok:")]
        for sg in range(2):
            for i in range(5):
                p = c + 4 + 4 * (5 * sg + i)
                if i in (0, 4):
                    tl.gap(p - 1).shadow.append(Ins(f"s_add_u32 m0, s{sC1}, {KVS0 + KVST * sg + 1024 * i}"))
                    tl.gap(p).shadow.append(Ins(f"s_add_u32 s{sA}, s{sC1}, {KVST * sg + 1024 * i}"))
                tl.gap(p).mem.append(Ins(f"buffer_load_dwordx4 v{vL16}, {srd(sWS)}, s{sA} offen offset:{1024 * (i % 4)} sc1 lds", tag=f"kv{sg}"))
        if self.wpf:
            pf = self.pf2(512)
            for k in range(0, len(pf), 2):
                tl.gap(452 + 2 * k).shadow.append(pf[k])
                tl.gap(452 + 2 * k).mem.append(pf[k + 1])
        self.shadows(tl, 420, [f"s_mov_b32 s{sIT}, 0", f"s_add_u32 s{sINC}, s{sC1}, {2 * KVST}", f"s_mov_b32 s{sHI}, s{sM0W}",
                               f"s_mov_b32 s{sC0}, 0", f"s_mov_b32 s{sSTN}, 0", f"s_mov_b32 s{sTODO}, 0xff"])
        V = []
        t = 2
        for x in ([f"v_mul_f32 v{vKVA + e}, s{sKS}, v{vKVA + e}" for e in range(4)] +
                  [f"v_cvt_pk_bf16_f32 v{vKVA + e}, v{vKVA + 2 * e}, v{vKVA + 2 * e + 1}" for e in range(2)] +
                  [f"v_and_or_b32 v{vKVA + e}, v{vKVA + e}, v{vAND}, v{vOR}" for e in range(2)]):
            V.append(Item("v", Ins(x), t, 2))
            t += 0.5
        for x in (f"buffer_store_dwordx2 {vr(vKVA, 2)}, v{vEP}, {srd(sWS)}, s{sK2} offen sc1", f"buffer_store_dword v{vKVA}, v{vEP}, {srd(sWS)}, s{sK1} offen sc1",
                  f"buffer_store_dword v{vZ}, v{vINB}, {srd(sWS)}, s{sFL} offen sc1"):
            V.append(Item("m", Ins(x, tag="kvst"), t))
            t += 1
        for r in range(64):
            V.append(Item("v", Ins(f"v_mov_b32 v{vO_ + r}, 0"), 12 + r * 72 / 64.0))
        V += self.gelu_items(0, 85, 384, False, vH1)
        for k in range(4):
            V.append(Item("m", Ins(f"buffer_store_dwordx4 {vr(vH1 + 4 * k)}, v{vL16}, {srd(sWS)}, s{sST} offen offset:{1024 * k} sc1", tag="hst"), 400 + 2 * k, 400))
        for k in range(4):
            tl.gap(291 + 8 * k).mem.append(Ins(f"buffer_store_dwordx4 {vr(vXB)}, v{vL16}, {srd(sWS)}, s{sFLN} offen offset:{1024 * k} sc1", tag="hst"))
        z = [vQ2 + 4 * q + j for q in range(4) for j in (1, 2)] + [vQ2 + 4, vQ2 + 12]
        for j in range(8):
            ct, u = j // 2, j % 2
            rel = 360 + 9 * j + 8 + 8
            q = vQ1 + 4 * (2 * u + ct // 2)
            for e in range(2):
                V.append(Item("v", Ins(f"v_cvt_pk_bf16_f32 v{q + 2 * (ct % 2) + e}, v{vG + 4 * j + 2 * e}, v{vG + 4 * j + 2 * e + 1}"), max(rel, 408 + 2 * j) + e, rel))
            if j in (5, 6):
                for r in z[5 * (j - 5):5 * (j - 4)]:
                    V.append(Item("v", Ins(f"v_mov_b32 v{r}, 0"), rel + 2))
        for r in range(8):
            V.append(Item("v", Ins(f"v_accvgpr_write_b32 a{aV_ + 8 + r}, 0"), 441 + r))
        for q in range(4):
            for e in range(2):
                V.append(Item("v", Ins(f"v_permlane16_swap_b32 v{vQ1 + 4 * q + e}, v{vQ1 + 4 * q + 2 + e}"), 449 + q, 446))
        tl.fill(0, 468, V, flush=10 ** 9)
        pre = [i for i in tl.emit(-DD, 0) if i.kind == "lds"]
        tl.insert_lgkm_waits(0, 468, [(-10 + k // 2, i) for k, i in enumerate(pre)][8:])
        s = self.seg("p1a")
        s("L_p1:")
        if self.wpf:
            for i in range(self.npf):
                s(f"""s_lshr_b32 s{sT1}, s{sW}, 1
                s_mul_i32 s{sT1}, s{sT1}, 140
                s_add_u32 s{sT1}, s{sT1}, {i * self.pfstep * 1152}""")
                s(f"buffer_load_dword v{vT3}, v{vPOL}, {srd(sQ)}, s{sT1} offen", tag="pf")
        kf = lambda kk: aKV + 4 * kk if kk < 9 else frag(1, kk - 9)
        kr = lambda kk: [Ins(f"ds_read_b64_tr_b16 {ar(kf(kk) + 2 * h, 2)}, v{vKR} offset:{1024 * kk + 128 * h}", tag="kvfr") for h in range(2)]
        s("s_waitcnt vmcnt(63)", auto=["kvimg", "st0"])
        s("s_barrier", need=["kvimg", "st0"])
        for kk in range(9):
            s.extend(kr(kk))
        s(f"""s_bitcmp1_b32 s{sS}, 2
        s_cbranch_scc1 L_kvu1
        s_bitcmp1_b32 s{sS}, 1
        s_cbranch_scc1 L_kv01""")
        for u in range(2):
            for o in range(2):
                k = self.seg(f"kv{u}{o}")
                if u == 1 and o == 0:
                    k(f"L_kvu1:\ns_bitcmp1_b32 s{sS}, 1\ns_cbranch_scc1 L_kv11")
                elif o == 1:
                    k(f"L_kv{u}{o}:")
                k("s_waitcnt lgkmcnt(12)")
                for kk in range(18):
                    a, b = ar(kf(kk)), xn(u, kk)
                    if o:
                        a, b = b, a
                    k(f"v_mfma_f32_16x16x32_bf16 {vr(vKVA)}, {a}, {b}, {'0' if kk == 0 else vr(vKVA)}")
                    if kk % 3 == 2 and kk < 17:
                        k("s_waitcnt lgkmcnt(10)")
                    if kk < 9:
                        k.extend(kr(kk + 9))
                    else:
                        k.extend(pre[2 * (kk - 9):2 * (kk - 9) + 2])
                k.extend(pre[18:])
                if not (u == 1 and o == 1):
                    k("s_branch L_kvdone")
        g = self.seg("p1gemm")
        g("L_kvdone:")
        self.stamp(g, 2)
        g("s_waitcnt lgkmcnt(12)")
        g.extend(tl.emit(0, 468))
        self.att()
        k = self.seg("kvspin")
        k(f"""L_kvspin:
        s_mov_b32 s{sT1}, 0
        L_kvspin2:
        s_sleep 2
        buffer_load_dword v{vPOL}, v{vDP}, {srd(sDBG)}, 0 offen sc1
        s_add_u32 s{sT1}, s{sT1}, 1
        s_cmp_gt_u32 s{sT1}, 0x40000
        s_cbranch_scc1 L_end
        s_waitcnt vmcnt(0)
        v_cmp_gt_u32 vcc, 16, v{vPOL}
        s_nop 1
        s_cbranch_vccnz L_kvspin2
        s_branch L_kvok""")
        self.fallback()

    def qk(self, sb, q, kt):
        k1 = aK1 + 4 * (kt % 2)
        k2 = aK2 + 4 * ((kt // 4) % 2) + 2 * ((kt % 4) // 2)
        q2 = vQ2 + 4 * q + 2 * (kt % 2)
        S = vr(vS_ + 16 * sb, 16)
        return (Ins(f"v_mfma_f32_32x32x16_bf16 {S}, {ar(k1)}, {vr(vQ1 + 4 * q)}, 0"),
                Ins(f"v_mfma_f32_32x32x8bf16_1k {S}, {ar(k2, 2)}, {vr(q2, 2)}, {S}"))

    def pv(self, sb, q, kt):
        O = vr(vO_ + 16 * q, 16)
        v = aV_ + 8 * (kt % 2)
        return tuple(Ins(f"v_smfmac_f32_32x32x32_bf16 {O}, {ar(v + 4 * f)}, {vr(vS_ + 16 * sb + 8 * f, 8)}, v{vIDX}") for f in range(2))

    def kvreads(self, kt):
        sl, i = (kt // 8) % 2, kt % 8
        o = KVST * sl
        k1 = Ins(f"ds_read_b128 {ar(aK1 + 4 * (kt % 2))}, v{vKA} offset:{o + 1024 * i}", tag="kvr")
        k2 = Ins(f"ds_read_b128 {ar(aK2 + 4 * ((kt // 4) % 2))}, v{vK2A} offset:{o + 640 * (i // 4)}", tag="kvr") if kt % 4 == 0 else None
        vv = [Ins(f"ds_read_b128 {ar(aV_ + 8 * (kt % 2) + 4 * f)}, v{vVA} offset:{o + 640 * (2 * i + f)}", tag="kvr") for f in range(2)]
        return k1, k2, vv

    def preg(self, i):
        if i < self.ne:
            return lambda k: ar(16 * i + 4 * k)
        return lambda k: vr(vO_ + 16 * ((i - self.ne) % 5) + 4 * k)

    def poll(self):
        return Ins(f"buffer_load_dword v{vPOL}, v{vINB}, {srd(sWS)}, s{sFL} offen sc1", tag="poll")

    def ready(self):
        return [Ins(f"v_cmp_ne_u32 vcc, 0, v{vPOL}"), Ins("s_nop 0"), Ins(f"s_lshr_b32 s{sRDY}, vcc_lo, 8"), Ins(f"s_and_b32 s{sRDY}, s{sRDY}, s{sTODO}")]

    def pload(self, i0, n):
        out = []
        for i in range(i0, i0 + n):
            out += [Ins(f"s_ff1_i32_b32 s{sT1}, s{sRDY}"), Ins(f"s_bitset0_b32 s{sRDY}, s{sT1}"), Ins(f"s_bitset0_b32 s{sTODO}, s{sT1}"),
                    Ins(f"s_mul_i32 s{sT0}, s{sT1}, {9 * 16384}"), Ins(f"s_add_u32 s{sT0}, s{sT0}, s{sPB}"),
                    Ins(f"s_cmp_lt_i32 s{sT1}, 0"), Ins(f"s_cselect_b32 s{sA}, {OOB}, s{sT0}")]
            out += [Ins(f"buffer_load_dwordx4 {self.preg(i)(k)}, v{vL16}, {srd(sWS)}, s{sA} offen offset:{1024 * k} sc1", tag=f"pl{i}") for k in range(4)]
        return out

    @staticmethod
    def weave(ld):
        slots = [ld[k:k + 11] for k in range(0, len(ld), 11)]
        out = list(slots[0][:7])
        for k, sl in enumerate(slots):
            nx = slots[k + 1][:7] if k + 1 < len(slots) else []
            for j in range(4):
                out.append(sl[7 + j])
                out += nx[2 * j:2 * j + 2] if j < 3 else nx[6:]
        return out

    def pacc(self, i0, n):
        out = []
        for j in range(8):
            ct, u = j // 2, j % 2
            c = vr(vG + 4 * j)
            for i in range(i0, i0 + n):
                out.append(Ins(f"v_mfma_f32_16x16x32_bf16 {c}, {vr(vSEL + (0 if ct % 2 else 2))}, {self.preg(i)(2 * (ct // 2) + u)}, {'0' if i == 0 else c}"))
        return out

    def att_stage(self, a, kt0, last):
        stream = {}
        if last:
            slots = [(tau, m) for tau in range(32, 64) for m in (0, 2, 3)]

            def lay(k, ins):
                lastmem = -9
                for i in ins:
                    while True:
                        cur = stream.setdefault(slots[k], [])
                        if i.kind in ("salu", "wait", "label"):
                            if not cur or i.kind == "label":
                                break
                        elif i.kind == "valu":
                            break
                        elif k - lastmem >= 2 and not any(x.kind != "salu" for x in cur) and not ("m0" in i.rd and any("m0" in x.wr for x in cur)):
                            lastmem = k
                            break
                        k += 1
                    cur.append(i)
                return k + 1

            seq = []
            for i in range(2):
                seq += [Ins(f"s_mov_b32 m0, s{sHI}"), Ins(f"s_add_u32 s{sHI}, s{sHI}, 4096"), Ins(f"buffer_load_dwordx4 v{vWM}, {srd(sWO)}, s{sC0} offen lds", tag="wo"),
                        Ins(f"s_add_u32 s{sC0}, s{sC0}, {36 * 1152}")]
            for i in range(2):
                seq += [Ins(f"s_add_u32 m0, s{sM0W}, {4096 * (16 + i)}"), Ins(f"s_mov_b32 s{sT0}, {288 * 1152 * i}"),
                        Ins(f"buffer_load_dwordx4 v{vWX}, {srd(sWO)}, s{sT0} offen lds", tag="wo")]
            seq += [Ins(f"s_add_u32 m0, s{sM0W}, {2 * SLOT + 16384}"), Ins(f"s_lshl_b32 s{sC0}, s{sS}, 7"),
                    Ins(f"buffer_load_dwordx4 v{vWNX}, {srd(sWO)}, 0 offen lds", tag="wo")]
            for i in range(4):
                seq += [Ins(f"s_add_u32 m0, s{sXL}, {1024 * i}"), Ins(f"s_add_u32 s{sT0}, s{sC0}, {9216 * i}"),
                        Ins(f"buffer_load_dwordx4 v{vTMP}, {srd(sX)}, s{sT0} offen lds", tag="xr")]
            seq += [Ins(f"s_add_u32 m0, s{sM0W}, {XRESN}"), Ins(f"buffer_load_dwordx4 v{vXN}, {srd(sX)}, s{sXN} offen lds", tag="xr")]
            k = lay(0, [self.poll()] + seq)
            e1 = self.o.get("ne1", 3)
            rd = lambda: [Ins("s_waitcnt vmcnt(63)", auto=["poll"])] + [i for i in self.ready() if i.op != "s_nop"]
            k = lay(k, rd() + self.weave(self.pload(0, e1)))
            if self.ne > e1:
                k1 = 96 - 13 - 8 * (self.ne - e1)
                assert k < k1 - 12, (k, k1)
                lay(max(k, k1 - 21), [self.poll()])
                k = lay(k1, rd() + self.weave(self.pload(e1, self.ne - e1)))
            assert k <= 96, k
        for tau in range(4 * kt0, 4 * kt0 + 32):
            kt, q = tau // 4, tau % 4
            ms = list(self.qk((tau + 1) % 4, (tau + 1) % 4, (tau + 1) // 4)) + list(self.pv((tau - 1) % 4, (tau - 1) % 4, ((tau - 1) // 4) % 16))
            ex = [[], [], [], []]
            k1, k2, vv = self.kvreads((kt + 1) % 16)
            newstage = (kt + 1) % 8 == 0
            sg = (kt + 1) // 8 % 2
            dma = lambda so, off: Ins(f"buffer_load_dwordx4 v{vL16}, {srd(sWS)}, s{so} offen offset:{off} sc1 lds", tag=f"kv{1 - sg}")
            if last and newstage:
                if q == 0:
                    ex[0] += [Ins("s_waitcnt vmcnt(63)", auto=["wo", "xr"]), Ins("s_barrier", need=["wo"])]
                if q == 3:
                    ms[0] = ms[1] = None
            else:
                if q == 0:
                    if newstage:
                        tg = [f"kv{sg}"] + (["hst"] if sg == 1 else [])
                        ex[0] += [Ins("s_waitcnt vmcnt(63)", auto=tg), Ins("s_barrier", need=tg + ["lds:kvr"])]
                        if sg == 1:
                            ex[0] += [Ins(f"buffer_atomic_add v{vONE}, v{vFLG}, {srd(sDBG)}, s{sHA} offen sc1", tag="arr")]
                    ex[0].append(k1)
                    if k2:
                        ex[2].append(k2)
                    if newstage:
                        ex[2].insert(0, Ins(f"s_add_u32 m0, s{sC1}, {KVS0 + KVST * (1 - sg)}"))
                        ex[3] += [Ins(f"s_mov_b32 s{sHA}, {OOB}")] if sg == 1 else []
                        ex[3].append(dma(sINC, 0))
                if q == 1:
                    ex[0].append(vv[0])
                    ex[2].append(vv[1])
                    if newstage:
                        ex[3].append(dma(sINC, 1024))
                if q == 2:
                    if newstage:
                        ex[0].append(dma(sINC, 2048))
                        ex[2].append(dma(sINC, 3072))
                    ex[3].append(Ins("s_waitcnt lgkmcnt(0)"))
                if q == 3 and newstage:
                    ex[0].append(Ins(f"s_add_u32 m0, s{sC1}, {KVS0 + KVST * (1 - sg) + 4096}"))
                    ex[2] += [Ins(f"s_add_u32 s{sA}, s{sINC}, 4096"), dma(sA, 0), Ins(f"s_add_u32 s{sINC}, s{sINC}, {KVST}")]
                    if sg == 1:
                        ex[3].append(Ins(f"s_cmp_eq_u32 s{sIT}, 4"))
            if not last:
                if kt % 8 in (0, 1) and q == 3:
                    ex[0].append(Ins(f"s_mov_b32 m0, s{sHI}"))
                    ex[2] += [Ins(f"s_add_u32 s{sHI}, s{sHI}, 4096"), Ins(f"buffer_load_dwordx4 v{vWM}, {srd(sWO)}, s{sC0} offen lds", tag="wo")]
                    ex[3].append(Ins(f"s_add_u32 s{sC0}, s{sC0}, {36 * 1152}"))
                if kt == 2 and q == 2:
                    ex[0].append(Ins(f"s_lshl_b32 s{sT0}, s{sIT}, 12"))
                    ex[2].append(Ins(f"s_add_u32 s{sT0}, s{sT0}, s{sM0W}"))
                if kt == 2 and q == 3:
                    ex[0].append(Ins(f"s_add_u32 m0, s{sT0}, {2 * SLOT}"))
                    ex[2] += [Ins(f"s_add_u32 s{sIT}, s{sIT}, 1"), Ins(f"buffer_load_dwordx4 v{vWN}, {srd(sWO)}, s{sSTN} offen lds", tag="wo")]
                    ex[3].append(Ins(f"s_add_u32 s{sSTN}, s{sSTN}, {4 * 36 * 1152}"))
                if self.wpf and kt % 8 == 3 and q == 2:
                    ex[0].append(Ins(f"s_cmp_lt_u32 s{sIT}, 3"))
                    ex[2].append(Ins(f"s_cselect_b32 s{sT0}, 0, {OOB}"))
                if self.wpf and (kt % 8 == 3 or (kt % 8 == 4 and self.npf == 2)) and q == 3:
                    ex[0].append(Ins(f"s_add_u32 s{sT1}, s{sT0}, s{sPG}"))
                    if kt % 8 == 4:
                        ex[2].append(Ins(f"s_add_u32 s{sT1}, s{sT1}, {self.pfstep * 9216}"))
                    ex[2].append(Ins(f"buffer_load_dword v{vT3}, v{vPF}, {srd(sPF)}, s{sT1} offen", tag="pf"))
                    if kt % 8 == 2 + self.npf:
                        ex[3].append(Ins(f"s_add_u32 s{sPG}, s{sPG}, 128"))
                if self.wpf and kt % 8 == 4 and (q == 0 or (q == 2 and self.nd == 2)):
                    ex[0].insert(0, Ins(f"s_add_u32 s{sT1}, s{sT0}, s{sPFO}"))
                    ex[2] += [Ins(f"s_add_u32 s{sPFO}, s{sPFO}, {self.dl * 128}"), Ins(f"buffer_load_dword v{vT3}, v{vPD}, {srd(sD)}, s{sT1} offen", tag="pf")]
            sb = vS_ + 16 * (tau % 4)
            for m in range(4):
                if ms[m]:
                    a.add(ms[m])
                st = stream.get((tau, m), [])
                a.extend([i for i in st if i.kind not in ("vmem", "valu")] + ex[m] + [i for i in st if i.kind in ("vmem", "valu")])
                for e in range(4):
                    a(f"v_exp_f32 v{sb + 4 * m + e}, v{sb + 4 * m + e}")

    def att(self):
        ne, n2, n3 = self.ne, self.n2, self.n3
        pload, pacc = self.pload, self.pacc
        s = self.seg("attpre")
        self.stamp(s, 3)
        s("s_waitcnt vmcnt(63) lgkmcnt(0)", auto=["kv0"])
        s("s_barrier", need=["kv0", "lds:r6"])
        k1, k2, vv = self.kvreads(0)
        s.extend([k1, k2] + vv)
        s("s_nop 0")
        for u in range(2):
            s(f"v_cvt_pk_bf16_f32 v{vQ2 + 8 * u}, v{vEX + 4 * u}, v{vEX + 4 * u + 1}")
        s("s_nop 0")
        for u in range(2):
            s(f"v_permlane32_swap_b32 v{vQ2 + 8 * u}, v{vQ2 + 8 * u + 4}")
        s("s_waitcnt lgkmcnt(2)")
        def mx(q):
            b = vS_ + 16 * q
            l = [f"v_max3_f32 v{b}, v{b}, v{b + 1}, v{b + 2}"] + [f"v_max3_f32 v{b}, v{b}, v{b + j}, v{b + j + 1}" for j in range(3, 15, 2)]
            return l + [f"v_max_f32 v{b}, v{b}, v{b + 15}", f"v_mov_b32 v{b + 1}, v{b}"]

        def fin(q):
            b = vS_ + 16 * q
            return [f"v_permlane32_swap_b32 v{b}, v{b + 1}", f"v_max_f32 v{b}, v{b}, v{b + 1}", f"v_sub_f32 v{b}, {f32(-MOFF)}, v{b}",
                    f"v_cvt_pk_bf16_f32 v{b}, v{b}, 0", f"v_cndmask_b32 v{vQ2 + 4 * q}, v{vQ2 + 4 * q}, v{b}, {MSK}", f"v_mov_b32 v{vQ2 + 4 * q + 3}, v{vQ2 + 4 * q}"]

        for q in range(4):
            s.extend(self.qk(q, q, 0))
        s("s_nop 5")
        for x in mx(0) + mx(1) + fin(0) + mx(2)[:2]:
            s(x)
        m0, m1 = self.qk(0, 0, 0)
        s.add(m0)
        for x in mx(2)[2:]:
            s(x)
        s.add(m1)
        for x in fin(1) + mx(3) + fin(2) + fin(3):
            s(x)
        for r in range(vS_ + 48, vS_ + 64):
            s(f"v_mov_b32 v{r}, 0")
        s("s_waitcnt lgkmcnt(0)")
        self.stamp(s, 16)
        s(".p2align 3")
        a = self.seg("att0")
        a("L_att:")
        self.att_stage(a, 0, False)
        a("s_cbranch_scc1 L_attl")
        a = self.seg("att1")
        self.att_stage(a, 8, False)
        a("s_branch L_att\n.p2align 3")
        a = self.seg("attl")
        a("L_attl:")
        self.att_stage(a, 8, True)
        a("s_nop 1")
        a.extend(self.pv(3, 3, 15))
        self.stamp(a, 4)
        s = self.seg("opub")
        s(f"""L_opub:
        s_lshl_b32 s{sT0}, s{sS}, 11
        s_add_u32 s{sT0}, s{sT0}, s{sOM}
        s_add_u32 s{sT1}, s{sT0}, 18432
        s_lshl_b32 s{sT2}, s{sS}, 8
        s_add_u32 s{sT2}, s{sT2}, s{sOM}
        s_add_u32 s{sT2}, s{sT2}, 16384""")
        vR, vW, vE = 192, 196, vS_ + 16
        for q in range(4):
            o, p = vO_ + 16 * q, vS_ + 4 * q
            u, hp = q // 2, q % 2
            if q == 0:
                for k in range(3):
                    s(f"v_rcp_f32 v{vR + k}, v{vO_ + 16 * k + 10}")
            if q == 2:
                s(f"v_rcp_f32 v{vR + 3}, v{vO_ + 48 + 10}")
            s(f"v_mul_f32 v{vR + q}, {f32(ALPHA)}, v{vR + q}")
            for j in range(10):
                s(f"v_mul_f32 v{vW + j}, v{o + j}, v{vR + q}")
            s(f"v_cvt_pk_bf16_f32 v{vE + 2 * hp + u}, v{vW + 8}, v{vW + 9}")
            for j in range(4):
                s(f"v_cvt_pk_bf16_f32 v{p + j}, v{vW + 2 * j}, v{vW + 2 * j + 1}")
            if u == 1:
                s(f"v_permlane16_swap_b32 v{vE + 2 * hp}, v{vE + 2 * hp + 1}")
            s(f"buffer_store_dwordx4 {vr(p)}, v{vL16}, {srd(sWS)}, s{sT0 + u} offen offset:{1024 * hp} sc1", tag="ost")
        s(f"buffer_store_dwordx4 {vr(vE)}, v{vOE}, {srd(sWS)}, s{sT2} offen sc1", tag="ost")
        s.add(self.poll())
        s(f"""s_cmp_lg_u32 s{sSK}, 0
        s_cbranch_scc1 L_chkd""")
        s = self.seg("chk")
        s(f"""s_mov_b32 s{sT0}, {f32(2.0 ** -105)}
        s_mov_b32 s{sT1}, {f32(2.0 ** 120)}""")
        t = 192
        for q in range(4):
            o = vO_ + 16 * q
            s(f"""v_cndmask_b32 v{t + 2}, v{o + 8}, v{o + 10}, {MSK}
            v_cndmask_b32 v{t + 3}, v{o + 9}, v{o + 10}, {MSK}""")
            if q == 0:
                s(f"v_min3_f32 v{t}, abs(v{t + 2}), abs(v{t + 3}), v{o + 10}\nv_add_f32 v{t + 1}, abs(v{t + 2}), v{o + 10}")
            else:
                s(f"""v_min3_f32 v{t}, v{t}, abs(v{t + 2}), abs(v{t + 3})
                v_min_f32 v{t}, v{t}, v{o + 10}
                v_add_f32 v{t + 1}, v{t + 1}, v{o + 10}
                v_add_f32 v{t + 1}, v{t + 1}, abs(v{t + 2})""")
            s(f"v_add_f32 v{t + 1}, v{t + 1}, abs(v{t + 3})")
            for j in range(0, 8, 2):
                s(f"""v_min3_f32 v{t}, v{t}, abs(v{o + j}), abs(v{o + j + 1})
                v_add_f32 v{t + 1}, v{t + 1}, abs(v{o + j})
                v_add_f32 v{t + 1}, v{t + 1}, abs(v{o + j + 1})""")
        s(f"""v_cmp_nle_f32 vcc, s{sT0}, v{t}
        v_cmp_ngt_f32 {MK2}, s{sT1}, v{t + 1}
        s_nop 0
        s_or_b64 vcc, vcc, {MK2}""")
        if self.forcefb:
            s("s_or_b64 vcc, vcc, 1")
        s("s_cbranch_scc1 L_fb")
        s = self.seg("opub2")
        s("L_chkd:")
        vXR, vXU = 176, 96
        for j in range(8):
            s(f"ds_read_b64 {vr(vXR + 2 * j, 2)}, v{vTMP + j // 2 if j > 1 else vBA} offset:{2048 * (j % 2)}", need=["xr"])
        s(f"ds_read_b64 {vr(vXR + 16, 2)}, v{vXNA}")
        unp = []
        for j in range(9):
            d = vXU + 4 * j if j < 8 else vXE
            for e in range(2):
                unp += [Ins(f"v_lshlrev_b32 v{d + 2 * e}, 16, v{vXR + 2 * j + e}"), Ins(f"v_and_b32 v{d + 2 * e + 1}, 0xffff0000, v{vXR + 2 * j + e}")]
        s("s_waitcnt vmcnt(0)")
        s(f"buffer_store_dword v{vONE}, v{vFO}, {srd(sWS)}, s{sOF} offen sc1", need=["ost"])
        self.stamp(s, 5)
        s.extend(self.ready())
        s("s_waitcnt lgkmcnt(0)")
        pl = self.weave(pload(ne, n2))
        mf = pacc(0, ne)
        k = 0
        while pl or mf or unp:
            if mf:
                s.add(mf.pop(0))
            if pl and k % 3 == 0:
                while pl[0].kind == "salu":
                    s.add(pl.pop(0))
                s.add(pl.pop(0))
            else:
                s.extend(unp[:2])
                unp = unp[2:]
            k += 1
        self.spin("w_o", "0xff")
        s = self.seg("ogat")
        self.stamp(s, 6)
        gl = []
        for h in range(2):
            for u in range(2):
                for i in range(9):
                    n = 18 * u + 9 * h + i
                    gl.append([Ins(f"s_add_u32 s{sA}, s{sOM}, {1024 * n}"),
                               Ins(f"buffer_load_dwordx4 {xn(u, 9 * h + i)}, v{vL16}, {srd(sWS)}, s{sA} offen sc1", tag=f"og{2 * h + u}")])
        mf = pacc(ne, n2)
        for q in gl[:10]:
            s.extend(q)
            s.extend(mf[:2])
            mf = mf[2:]
        s.extend(mf)
        tf = Timeline()
        xb = lambda h: (lambda u, i: xn(u, 9 * h + i))
        for h in range(2):
            self.std_mfmas(tf, 4 * h, 72 * h, vG, xb(h), False)
            tf.put_reads(self.std_reads(4 * h, 72 * h, h, "fr"))
        R = []
        for h in range(2):
            for i in range(9):
                for hh in range(2):
                    ins = Ins(f"ds_read_b64_tr_b16 {ar(frag(8 + h, i) + 2 * hh, 2)}, v{vRN} offset:{1024 * (9 * h + i) + 512 * hh}", tag="fr")
                    R.append(Item("r", ins, (124 + i * 2 + hh) if h == 0 and i < 2 else (128 + (len(R) - 4) // 2), earliest=144 + 18 * h - 27 + i))
        tf.put_reads(R)
        ng = self.o.get("ngpre", 20)
        for q in gl[10:ng]:
            tf.gap(-1).post.extend(q)
        tf.gap(-1).post.append(Ins("s_waitcnt vmcnt(63)", auto=["og0"]))
        for k, q in enumerate(gl[ng:]):
            p = k if k < 8 else 8 + 4 * (k - 7)
            tf.gap(p).shadow.append(q[0])
            tf.gap(p).mem.append(q[1])
        tf.gap(50).mem.append(self.poll())
        tf.gap(8).shadow.append(Ins("s_waitcnt vmcnt(63)", auto=["og1"]))
        tf.gap(71).shadow.append(Ins("s_waitcnt vmcnt(63)", auto=["og2"]))
        tf.gap(80).shadow.append(Ins("s_waitcnt vmcnt(63)", auto=["og3"]))
        tf.gap(84).shadow.append(Ins("s_waitcnt vmcnt(0)"))
        n4 = self.o.get("n4", 1)
        i3, i4 = ne + n2, ne + n2 + n3
        assert n2 + n3 + n4 <= 5 + n2 and n3 + n4 <= 5

        def rnd(p, i0, n):
            rd = self.ready()
            tf.gap(p).valu.append(rd[0])
            p, lastm = p + 1, 0
            for i in rd[2:3] + [self.poll()] + rd[3:] + self.weave(pload(i0, n)):
                if i.kind == "salu":
                    tf.gap(p).shadow.append(i)
                    p += 1
                else:
                    p = max(p, lastm + 3)
                    lastm = p
                    tf.gap(p - 1).mem.append(i)
            return p

        p = rnd(84, i3, n3)
        p2 = 144 - 12 - 12 * n4
        assert p <= p2, (p, p2)
        tf.gap(p2).shadow.append(Ins("s_waitcnt vmcnt(63)", auto=["poll"]))
        p = rnd(p2, i4, n4)
        assert p < 145, p
        tf.insert_lgkm_waits(-DD, 144, [])
        s.extend(tf.emit(-DD, 144))
        s(f"""s_waitcnt lgkmcnt(0)
        s_bitcmp1_b32 s{sS}, 2
        s_cbranch_scc1 L_xu1""")
        for u in range(2):
            k = self.seg(f"xu{u}")
            if u:
                k("L_xu1:")
            for kk in range(18):
                k(f"v_mfma_f32_16x16x32_bf16 {vr(vXB)}, {ar(frag(8 + kk // 9, kk % 9))}, {xn(u, kk)}, {'0' if kk == 0 else vr(vXB)}")
            if not u:
                k("s_branch L_xud")
        s = self.seg("xud")
        s("L_xud:")
        self.stamp(s, 7)
        s(f"s_mov_b32 s{sT2}, {f32(1.0 / ALPHA ** 2)}\ns_mov_b32 s{sT3}, 0")
        s("s_waitcnt vmcnt(63)", auto=[f"pl{i}" for i in range(i3, i4)])
        s.extend(pacc(i3, n3))
        s = self.seg("e1")
        s(f"""L_e1:
        s_cmp_eq_u32 s{sTODO}, 0
        s_cbranch_scc1 L_e2""")
        s = self.seg("e1b")
        s("s_waitcnt vmcnt(0)")
        s.extend(pacc(i4, n4))
        s = self.seg("e1c")
        s("L_e1c:")
        rd = self.ready()
        s.extend(rd[:3] + [self.poll()])
        s(f"""s_add_u32 s{sT3}, s{sT3}, 1
        s_cmp_gt_u32 s{sT3}, 0x40000
        s_cbranch_scc1 L_end""")
        s.add(rd[3])
        s("s_cbranch_scc1 L_e1e")
        s = self.seg("e1d")
        s("s_waitcnt vmcnt(0)\ns_branch L_e1c")
        s = self.seg("e1e")
        s("L_e1e:")
        s.extend(self.weave(pload(i4, n4)))
        s("s_branch L_e1")
        vLP = 32
        lastl = lambda: [Ins(f"buffer_load_dwordx2 {vr(vLP + 2 * p, 2)}, v{vL8}, {srd(sWS)}, s{sFLN} offen offset:{512 * p} sc1", tag="pll") for p in range(8)]
        s = self.seg("fmain")
        s("L_e2:")
        self.stamp(s, 17)
        s(f"s_mov_b32 s{sLST}, 1\ns_waitcnt vmcnt(0)")
        ll = lastl()
        for m in pacc(i4, n4):
            s.add(m)
            s.extend(ll[:1])
            ll = ll[1:]
        s.add(self.poll())
        self.stamp(s, 18)
        for j in range(8):
            c = vG + 4 * j
            for e in range(4):
                s(f"v_fma_f32 v{c + e}, v{c + e}, s{sT2}, v{vXU + 4 * j + e}")
            s(f"v_cvt_pk_bf16_f32 v{c}, v{c}, v{c + 1}\nv_cvt_pk_bf16_f32 v{c + 1}, v{c + 2}, v{c + 3}")
        for j in range(8):
            s(f"ds_write_b64 v{vTMP + j // 2 if j > 1 else vBA}, {vr(vG + 4 * j, 2)} offset:{2048 * (j % 2)}")
        for i in range(4):
            s(f"ds_read_b128 {vr(vXU + 4 * i)}, v{vOL} offset:{1024 * i}")
        for i in range(4):
            s(f"s_waitcnt lgkmcnt({3 - i})")
            s(f"buffer_store_dwordx4 {vr(vXU + 4 * i)}, v{vTMP}, {srd(sOUT)}, s{sC0} offen")
            if i < 3:
                s(f"s_add_u32 s{sC0}, s{sC0}, 9216")
        self.stamp(s, 8)
        s("s_waitcnt vmcnt(4)")
        s = self.seg("e3")
        s("L_e3:")
        s(f"v_max3_u32 v{vT0}, v{vLP}, v{vLP + 1}, v{vLP + 2}")
        for j in range(3, 15, 2):
            s(f"v_max3_u32 v{vT0}, v{vT0}, v{vLP + j}, v{vLP + j + 1}")
        s(f"""v_max_u32 v{vT0}, v{vT0}, v{vLP + 15}
        v_cmp_eq_u32 vcc, -1, v{vT0}
        s_cmp_eq_u32 s{sLST}, 0
        s_cbranch_vccz L_fin
        s_cbranch_scc1 L_fin""")
        s = self.seg("e3b")
        s(f"v_cmp_eq_u32 vcc, 0, v{vPOL}")
        s.extend(lastl())
        s(f"s_and_b32 s{sLST}, vcc_lo, 0xff0000")
        s.add(self.poll())
        s(f"""s_add_u32 s{sT3}, s{sT3}, 1
        s_cmp_lt_u32 s{sT3}, 0x40000
        s_waitcnt vmcnt(0)
        s_cbranch_scc1 L_e3
        s_endpgm""")
        s = self.seg("fin")
        s("L_fin:")
        for p in range(4):
            s(f"v_mfma_f32_16x16x32_bf16 {vr(vXB)}, {vr(vSEL + 6)}, {vr(vLP + 4 * p)}, {vr(vXB)}")
        s("s_nop 7")
        for e in range(4):
            s(f"v_fma_f32 v{vXB + e}, v{vXB + e}, s{sT2}, v{vXE + e}")
        s(f"""v_cvt_pk_bf16_f32 v{vXB}, v{vXB}, v{vXB + 1}
        v_cvt_pk_bf16_f32 v{vXB + 1}, v{vXB + 2}, v{vXB + 3}
        buffer_store_dwordx2 {vr(vXB, 2)}, v{vOA}, {srd(sOUT)}, s{sXN} offen""")
        self.stamp(s, 9)
        self.stamp_flush(s)
        s("s_endpgm")

    def fallback(self):
        vM = 192
        s = self.seg("fb0")
        s(f"""L_fb:
        s_waitcnt vmcnt(0) lgkmcnt(0)
        v_and_b32 v{vT0}, 31, v{vL}
        v_lshlrev_b32 v{vT0}, 4, v{vT0}
        v_subrev_u32 v{vT1}, {KVS0}, v{vVA}
        v_accvgpr_write_b32 a{aK2 + 1}, 0
        s_mov_b32 s{sIT}, 0
        s_mov_b32 s{sSK}, 1""")
        for q in range(4):
            s(f"v_cndmask_b32 v{vQ2 + 4 * q}, v{vQ2 + 4 * q}, 0, {MSK}\nv_mov_b32 v{vM + q}, 0xff800000")
        for r in range(vO_, vO_ + 64):
            s(f"v_mov_b32 v{r}, 0")

        def loads(k, withv):
            k(f"""s_lshr_b32 s{sT0}, s{sIT}, 3
            s_mul_i32 s{sT0}, s{sT0}, {KVST}
            s_and_b32 s{sT1}, s{sIT}, 7
            s_lshl_b32 s{sT2}, s{sT1}, 10
            s_add_u32 s{sT2}, s{sT2}, s{sT0}
            buffer_load_dwordx4 {ar(aK1)}, v{vL16}, {srd(sWS)}, s{sT2} offen sc1
            s_lshr_b32 s{sT2}, s{sT1}, 2
            s_mul_i32 s{sT2}, s{sT2}, 640
            s_and_b32 s{sT3}, s{sT1}, 3
            s_lshl_b32 s{sT3}, s{sT3}, 2
            s_add_u32 s{sT2}, s{sT2}, s{sT3}
            s_add_u32 s{sT2}, s{sT2}, s{sT0}
            s_add_u32 s{sT2}, s{sT2}, 18432
            buffer_load_dword a{aK2}, v{vT0}, {srd(sWS)}, s{sT2} offen sc1""")
            if withv:
                k(f"""s_mul_i32 s{sT2}, s{sT1}, 1280
                s_add_u32 s{sT2}, s{sT2}, s{sT0}
                buffer_load_dwordx4 {ar(aV_)}, v{vT1}, {srd(sWS)}, s{sT2} offen sc1
                buffer_load_dwordx4 {ar(aV_ + 4)}, v{vT1}, {srd(sWS)}, s{sT2} offen offset:640 sc1""")
            k("s_waitcnt vmcnt(0)")
            for q in range(4):
                k.extend(self.qk(q, q, 0))
            k("s_nop 11")

        k = self.seg("fb1")
        k("L_fb1:")
        loads(k, False)
        for q in range(4):
            for j in range(0, 16, 2):
                k(f"v_max3_f32 v{vM + q}, v{vM + q}, v{vS_ + 16 * q + j}, v{vS_ + 16 * q + j + 1}")
        k(f"""s_add_u32 s{sIT}, s{sIT}, 1
        s_cmp_lt_u32 s{sIT}, 64
        s_cbranch_scc1 L_fb1""")
        k = self.seg("fb2")
        for q in range(4):
            k(f"v_mov_b32 v{vS_ + q}, v{vM + q}")
        k("s_nop 0")
        for q in range(4):
            k(f"v_permlane32_swap_b32 v{vM + q}, v{vS_ + q}")
        for q in range(4):
            k(f"v_max_f32 v{vM + q}, v{vM + q}, v{vS_ + q}")
        k(f"s_mov_b32 s{sIT}, 0")
        k = self.seg("fb3")
        k("L_fb3:")
        loads(k, True)
        for q in range(4):
            for j in range(16):
                k(f"v_sub_f32 v{vS_ + 16 * q + j}, v{vS_ + 16 * q + j}, v{vM + q}")
            for j in range(16):
                k(f"v_exp_f32 v{vS_ + 16 * q + j}, v{vS_ + 16 * q + j}")
        k("s_nop 1")
        for q in range(4):
            k.extend(self.pv(q, q, 0))
        k(f"""s_add_u32 s{sIT}, s{sIT}, 1
        s_cmp_lt_u32 s{sIT}, 64
        s_cbranch_scc1 L_fb3""")
        k = self.seg("fb4")
        k("s_nop 11\ns_branch L_opub")


def build(path, C=1, stamps=False, xpf=True, wpf=True, forcefb=False, verbose=True, **kw):
    g = Gen1(C=C, stamps=stamps, xpf=xpf, wpf=wpf, **kw)
    g.forcefb = forcefb
    g.kvpoll, g.kvchk = kw.get("kvpoll", 300), kw.get("kvchk", 356)
    g.ne, g.n2, g.n3, g.etau = kw.get("ne", 4), kw.get("n2", 2), kw.get("n3", 2), kw.get("etau", 50)
    g.prologue()
    g.p0()
    g.p1()
    probs = []
    traces = [("P0", g.trace(["entry"] + (["pfe"] if kw.get("early") == 2 else []) + ["entry2", "ln", "ln2", "p0pre"] + ["aloop"] * 7 + ["aexit", "aswitch", "aswitch2", "aloop", "aexit", "b0"] + ["bloop", "bloop2"] * 3 + ["bloop", "bend"]))]
    for u in range(2):
        for o in range(2):
            fb = ["fb0", "fb1", "fb1", "fb2", "fb3", "fb3", "fb4", "opub"] if o else []
            for end in (["e1", "fmain", "e3", "fin"], ["e1", "e1b", "e1c", "e1d", "e1c", "e1e", "e1", "e1b", "e1c", "e1e", "e1", "fmain", "e3", "e3b", "e3", "fin"]):
                t1 = ["entry"] + (["pfe"] if kw.get("early") == 3 else []) + ["entry2", "p1pre", "ln", "kvdma", "ln2", "p1a", f"kv{u}{o}", "p1gemm", "attpre"] + ["att0", "att1"] * 3 + ["att0", "attl"] + \
                     ["opub", "chk"] + fb + ["opub2", "w_o", "ogat", f"xu{u}", "xud"] + end
                traces.append(("P1", g.trace(t1)))
    auto_vm([t for _, t in traces])
    for n, t in traces:
        probs += check_trace(t, n)
    seen = set()
    for p in probs:
        key = p.split("'", 1)[1]
        if key not in seen:
            seen.add(key)
            print(p)
    if verbose:
        for s in g.segs:
            n = sum(1 for i in s.ins if i.kind != "label")
            nm = sum(1 for i in s.ins if i.kind == "mfma")
            if n > 40:
                print(f"{s.name:10s} ins {n:5d} mfma {nm:4d} est {est_cycles(s.ins)}")
    open(path, "w").write(g.text())
    return len(seen)


if __name__ == "__main__":
    import argparse
    ap = argparse.ArgumentParser()
    ap.add_argument("-o", default="cdna_kernels/" + NAME + ".s")
    ap.add_argument("-C", type=int, default=1)
    ap.add_argument("--stamps", action="store_true")
    ap.add_argument("--noxpf", action="store_true")
    ap.add_argument("--nowpf", action="store_true")
    ap.add_argument("--fb", action="store_true")
    ap.add_argument("kw", nargs="*")
    a = ap.parse_args()
    kw = {}
    for x in a.kw:
        k, v = x.split("=")
        kw[k] = int(v) if v.lstrip("-").isdigit() else " " + v
    n = build(a.o, a.C, a.stamps, not a.noxpf, not a.nowpf, a.fb, **kw)
    print("problems:", n)
```

```python
import math, struct, sys
from asmlib import Ins, Seg, check_trace, est_cycles, auto_vm
from sched import Timeline, Item, LAT

NAME = "parallel_sum__grouped_kv_mqa__geglu_ffn__prompt"


def f32(x):
    return "0x%08x" % struct.unpack("<I", struct.pack("<f", x))[0]


LOG2E = 1.4426950408889634
K0 = 2 * LOG2E * math.sqrt(2 / math.pi)
K1 = K0 * 0.044715
ALPHA = K1 ** (1.0 / 3.0)
K0P = K0 / ALPHA
CK = LOG2E / math.sqrt(18.0) / ALPHA ** 2
MOFF = 84.0
OOB = 0x40000000

SLOT = 36864
KVS0, KVS1, KVST = 110592, 131072, 20480
WS_KV, WS_FLAG, WS_HX, WS_OM, WS_PART, WS_STAMP = 0, 0x40000, 0x80000, 0x300000, 0x600000, 0x1C00000
WS_SIZE = 0x2000000
DD = 20

sX, sG, sU, sD, sWS, sOUT, sDBG, sQ, sKV, sWO, sPF = 8, 12, 16, 20, 24, 28, 32, 36, 40, 44, 72
sW, sR, sS, sROLE, sE1, sE2 = 76, 77, 78, 79, 80, 81
sM0W, sA, sC0, sC1, sINC, sIT, sHI, sNK, sT0, sT1, sT2, sT3 = 82, 83, 84, 85, 86, 87, 88, 89, 90, 91, 92, 93
sST, sFL, sPFO, sPOL, sSTN, sFLN = 94, 95, 96, 97, 98, 99
pG, pU, sDM, sDG, sINN, sNRN = 48, 50, 56, 60, 68, 69
sMASK = 4
sMK2 = 6


def srd(n):
    return f"s[{n}:{n + 3}]"


vL, vT0, vT1, vT2, vT3 = 1, 2, 3, 4, 5
vL16, vFLG = 6, 7
vRB = 8
vDM, vPF, vPOL, vONE = 24, 25, 26, 27
vTMP = 20
vDN = 28
vGL, vG, vU, vH = 32, 64, 96, 128
vLO, vRAW = 40, 112
aXN, aFR, aH0 = 0, 144, 216
vKD = 208


def vr(a, n=4):
    return f"v[{a}:{a + n - 1}]" if n > 1 else f"v{a}"


def ar(a, n=4):
    return f"a[{a}:{a + n - 1}]" if n > 1 else f"a{a}"


def xn(u, k):
    return ar(aXN + 4 * (18 * u + k))


def frag(gam, i):
    return aFR + 36 * (gam % 2) + 4 * i


class Gen:
    def __init__(self, C=1, stamps=False, xpf=True, wpf=True, **kw):
        self.o = kw
        self.C = C
        self.stamps = stamps
        self.xpf = xpf
        self.wpf = wpf
        self.segs = []
        self.nstamp = {}

    def seg(self, name):
        s = Seg(name)
        self.segs.append(s)
        return s

    def stamp(self, s, k):
        if not self.stamps:
            return
        s(f"""s_waitcnt lgkmcnt(0)
        s_memtime s[52:53]
        s_memrealtime s[54:55]
        s_waitcnt lgkmcnt(0)
        v_writelane_b32 v0, s52, {2 * k}
        v_writelane_b32 v0, s54, {2 * k + 1}""")

    def stamp_flush(self, s):
        if not self.stamps:
            return
        s(f"""s_lshl_b32 s48, s2, 2
        s_add_u32 s48, s48, s{sW}
        s_lshl_b32 s48, s48, 8
        s_add_u32 s48, s48, {WS_STAMP}
        v_lshlrev_b32 v{vT0}, 2, v{vL}
        buffer_store_dword v0, v{vT0}, {srd(sWS)}, s48 offen""")

    def std_reads(self, gam0, pos0, slot, tag):
        R = []
        n = 0
        for ct in range(4):
            for i in range(9):
                for h in range(2):
                    f = frag(gam0 + ct, i) + 2 * h
                    off = slot * SLOT + 4096 * i + 2048 * h
                    ins = Ins(f"ds_read_b64_tr_b16 {ar(f, 2)}, v{vRB + 4 * (off // 65536) + ct} offset:{off % 65536}", tag=tag)
                    g0 = pos0 + 18 * ct
                    R.append(Item("r", ins, pos0 - DD + n, earliest=g0 - 27 + i, deadline=g0 + i - LAT - 1))
                    n += 1
        return R

    def std_mfmas(self, tl, gam0, pos0, acc, bfun, zero):
        for ct in range(4):
            for u in range(2):
                for i in range(9):
                    c = vr(acc + 4 * (2 * ct + u))
                    cin = "0" if (zero and i == 0) else c
                    tl.m[pos0 + 18 * ct + 9 * u + i] = Ins(f"v_mfma_f32_16x16x32_bf16 {c}, {ar(frag(gam0 + ct, i))}, {bfun(u, i)}, {cin}")

    def barrier(self, tl, p, vmtags, ldstag):
        g = tl.gap(p)
        g.shadow.append(Ins("s_waitcnt vmcnt(63) lgkmcnt(6)", auto=vmtags))
        g.bar.append(Ins("s_barrier", need=list(vmtags) + [f"lds:{ldstag}/6"]))

    def dmas(self, tl, stage, voff, first, inc, tag, srdn=None):
        for i in range(9):
            p = 72 * (stage - 3) + 7 + 8 * i
            m0 = f"s_add_u32 m0, s{sM0W}, {(stage % 4) * SLOT + 4096 * i}"
            if srdn is not None:
                sh = [m0, first[0] if (i == 0 and first) else f"s_add_u32 s{sA}, s{sA}, {inc}"]
                op = f"buffer_load_dwordx4 v{voff}, {srd(srdn)}, s{sA} offen lds"
            else:
                sh = [m0] + (first if (i == 0 and first) else [f"s_add_u32 s{sDM}, s{sDM}, {inc}", f"s_addc_u32 s{sDM + 1}, s{sDM + 1}, 0"])
                op = f"buffer_load_dwordx4 v{voff}, {srd(sDM)}, 0 offen lds"
            for k, t in enumerate(sh):
                tl.gap(p - len(sh) + 1 + k).shadow.append(Ins(t))
            tl.gap(p).mem.append(Ins(op, tag=tag))

    def shadows(self, tl, p, seq):
        for t in seq:
            tt = t if isinstance(t, tuple) else (t,)
            while any(tl.gap(p + k).shadow for k in range(len(tt))):
                p += 1
            for x in tt:
                tl.gap(p).shadow.append(Ins(x))
                p += 1
        return p

    def gelu_items(self, base, t0, t1, idx, hreg):
        raw = []
        for j in range(8):
            rel = base + 72 + 9 * j + 8 + 4
            dl = base + 288 + 9 * j - 1
            g, t = vG + 4 * j, vGL + 4 * j
            for e in range(4):
                raw.append(("v", [Ins(f"v_fma_f32 v{t + e}, -v{g + e}, v{g + e}, s{sNK}")], rel, dl))
            for e in range(4):
                raw.append(("v", [Ins(f"v_mul_f32 v{t + e}, v{t + e}, v{g + e}")], rel, dl))
            for e in range(4):
                raw.append(("v", [Ins(f"v_exp_f32 v{t + e}, v{t + e}")], rel, dl))
            for e in range(4):
                raw.append(("v", [Ins(f"v_add_f32 v{t + e}, 1.0, v{t + e}")], rel, dl))
            for e in range(4):
                raw.append(("v", [Ins(f"v_rcp_f32 v{t + e}, v{t + e}")], rel, dl))
            for e in range(4):
                raw.append(("v", [Ins(f"v_mul_f32 v{t + e}, v{t + e}, v{g + e}")], rel, dl))
        for j in (0, 2, 4, 6, 1, 3, 5, 7):
            ct, u = j // 2, j % 2
            rel = base + 216 + 9 * j + 8 + 4
            dl = base + 288 + 144 + 9 * j - 1
            t, uu = vGL + 4 * j, vU + 4 * j
            h = hreg + 8 * (ct // 2) + 4 * u + 2 * (ct % 2)
            for e in range(4):
                raw.append(("v", [Ins(f"v_mul_f32 v{t + e}, v{t + e}, v{uu + e}")], rel, dl))
            if idx:
                offs = [16 * k for k in range(8)]
                raw.append(("x", [Ins(f"v_cvt_pk_bf16_f32 v{h + e}, v{t + 2 * e}, v{t + 2 * e + 1}", idx=offs) for e in range(2)], rel, dl))
            else:
                for e in range(2):
                    raw.append(("v", [Ins(f"v_cvt_pk_bf16_f32 v{h + e}, v{t + 2 * e}, v{t + 2 * e + 1}")], rel, dl))
        items = []
        for k, ins, rel, dl in raw:
            if k == "x":
                items.append(Item("x", ins, 0, rel, dl, pre=Ins(f"s_set_gpr_idx_on s{sHI}, 8"), post=Ins("s_set_gpr_idx_off")))
            else:
                items.append(Item("v", ins, 0, rel, dl))
        for c, i in enumerate(items):
            i.target = t0 + (t1 - t0) * c / len(items)
        return items

    def prologue(self):
        C = self.C
        s = self.seg("entry")
        s(f"""s_cmp_ge_u32 s2, 256
        s_cbranch_scc1 L_end
        s_load_dwordx16 s[48:63], s[0:1], 0
        s_load_dwordx8 s[64:71], s[0:1], 64
        v_lshrrev_b32 v{vT0}, 6, v0
        v_and_b32 v{vL}, 63, v0
        v_readfirstlane_b32 s{sW}, v{vT0}
        s_and_b32 s{sT0}, s2, 7
        s_lshr_b32 s{sT1}, s2, 3
        s_bitcmp1_b32 s2, 3
        s_cselect_b32 s{sROLE}, 1, 0
        s_lshr_b32 s{sT1}, s{sT1}, 1""")
        lc = C.bit_length() - 1
        s(f"""s_and_b32 s{sS}, s{sT0}, {8 // C - 1}
        s_lshl_b32 s{sS}, s{sS}, {lc}
        s_and_b32 s{sT2}, s{sT1}, {C - 1}
        s_add_u32 s{sS}, s{sS}, s{sT2}
        s_lshl_b32 s{sE1}, s{sT2}, 1
        s_add_u32 s{sE1}, s{sE1}, s{sROLE}
        s_lshr_b32 s{sE2}, s{sT1}, {lc}
        s_lshr_b32 s{sR}, s{sT0}, {3 - lc}
        s_lshl_b32 s{sR}, s{sR}, {4 - lc}
        s_add_u32 s{sR}, s{sR}, s{sE2}
        s_lshl_b32 s{sM0W}, s{sW}, 10
        v_lshlrev_b32 v{vL16}, 4, v{vL}
        v_lshrrev_b32 v{vT0}, 3, v{vL}
        v_and_b32 v{vT1}, 7, v{vL}
        s_lshl_b32 s{sT0}, s{sW}, 5
        v_add_u32 v{vT2}, s{sT0}, v{vT0}
        v_mul_u32_u24 v{vT2}, 1152, v{vT2}
        v_lshl_add_u32 v{vTMP}, v{vT1}, 4, v{vT2}
        v_and_b32 v{vT0}, 48, v{vL}
        v_xor_b32 v28, v{vTMP}, v{vT0}
        v_xor_b32 v29, 64, v28
        v_add_u32 v29, 9216, v29
        v_add_u32 v30, 18432, v28
        v_add_u32 v31, 18432, v29
        s_mul_i32 s{sT0}, s{sR}, 147456
        s_mul_i32 s{sT1}, s{sS}, 1152""")
        if self.o.get("cpf", 0):
            s(f"""s_getpc_b64 s[100:101]
            L_pc:
            s_lshr_b32 s{sT2}, s2, 3
            s_lshl_b32 s{sT2}, s{sT2}, 2
            s_add_u32 s{sT2}, s{sT2}, s{sW}
            v_and_b32 v32, 3, v{vL}
            v_lshl_add_u32 v32, v32, 7, s{sT2}
            v_lshlrev_b32 v32, 7, v32
            v_min_u32 v32, L_end-L_pc, v32
            v_mov_b32 v33, s101
            v_add_co_u32 v32, vcc, s100, v32
            s_nop 1
            v_addc_co_u32 v33, vcc, 0, v33, vcc""")
            s(f"global_load_dword v{vT3}, v[32:33], off", tag="pf")
        s("s_waitcnt lgkmcnt(0)")
        self.stamp0(s)

        def mk(n, src, offreg, size, sub=False):
            s = self.segs[-1]
            if offreg is None:
                s(f"s_mov_b32 s{n}, s{src}\ns_and_b32 s{n + 1}, s{src + 1}, 0xffff")
            else:
                s(f"s_add_u32 s{n}, s{src}, s{offreg}\ns_addc_u32 s{n + 1}, s{src + 1}, 0\ns_and_b32 s{n + 1}, s{n + 1}, 0xffff")
            if sub:
                s(f"s_sub_u32 s{n + 2}, {size}, s{offreg}")
            else:
                s(f"s_mov_b32 s{n + 2}, {size}")
            s(f"s_mov_b32 s{n + 3}, 0x20000")

        mk(sX, 48, sT0, 147456)
        vXO = 28
        xl = []
        for u in range(2):
            for c in range(9):
                for r2 in range(2):
                    rg = 2 * u + r2
                    xl.append([Ins(f"s_add_u32 m0, s{sM0W}, {rg * SLOT + 4096 * c - 128 * c}"),
                               Ins(f"buffer_load_dwordx4 v{vXO + rg}, {srd(sX)}, 0 offen offset:{128 * c} lds", tag=f"x{9 * u + c}")])
        NUP = self.o.get("nup", 12)
        xpos = self.o.get("xpos", 0)
        early = self.o.get("early", 0)

        def xpref():
            per = 144 // C
            n = (per + 63) // 64
            lanes = per // n
            s(f"""s_lshl_b32 s{sT2}, s{sE1}, 2
            s_add_u32 s{sT2}, s{sT2}, s{sW}
            s_mul_i32 s{sT2}, s{sT2}, {per * 128}
            v_min_u32 v{vT2}, {lanes - 1}, v{vL}
            v_lshlrev_b32 v{vT2}, 7, v{vT2}""")
            for i in range(n):
                s(f"buffer_load_dword v{vT3}, v{vT2}, {srd(sX)}, s{sT2} offen", tag="pf")
                if i + 1 < n:
                    s(f"s_add_u32 s{sT2}, s{sT2}, {lanes * 128}")

        def xfirst(a, b):
            s = self.segs[-1]
            for q in xl[a:b]:
                s.add(q[0])
                if len(q) > 1:
                    s("s_nop 0")
                    s.add(q[1])

        xsplit = self.o.get("xsplit", 0)
        if xsplit:
            n = 72 // C
            s(f"""s_mul_i32 s{sT2}, s{sE1}, {n * 128}
            s_mul_i32 s{sT3}, s{sW}, 36864
            s_add_u32 s{sT2}, s{sT2}, s{sT3}
            v_min_u32 v32, {n - 1}, v{vL}
            v_lshl_add_u32 v32, v32, 7, s{sT2}
            v_add_u32 v207, 18432, v32""")
            s(f"buffer_load_dword v{vT3}, v32, {srd(sX)}, 0 offen", tag="pf")
            xl.insert(xsplit, [Ins(f"buffer_load_dword v{vT3}, v207, {srd(sX)}, 0 offen", tag="pf")])
        xfirst(0, min(xpos, NUP))
        if self.xpf:
            xpref()
        if not early:
            xfirst(min(xpos, NUP), NUP)
        tlb = self.o.get("tlb", 0)
        if tlb:
            step = 5308416 // tlb // 4 // 64 * 64
            s(f"s_mul_i32 s{sA}, s{sW}, {step}")
            for i in range(tlb):
                s(f"s_load_dword s100, s[60:61], s{sA}\ns_load_dword s100, s[62:63], s{sA}\ns_add_u32 s{sA}, s{sA}, {4 * step}")
            s("s_load_dword s100, s[50:51], 0\ns_load_dword s100, s[52:53], 0\ns_load_dword s100, s[54:55], 0")
        mk(sG, 60, sT1, 5308416, sub=True)
        mk(sU, 62, sT1, 5308416, sub=True)
        s(f"""s_bitcmp1_b32 s{sS}, 1
        s_cselect_b32 s{sKV}, s54, s52
        s_cselect_b32 s{sKV + 1}, s55, s53
        s_and_b32 s{sKV + 1}, s{sKV + 1}, 0xffff
        s_mov_b32 s{sKV + 2}, 20736
        s_mov_b32 s{sKV + 3}, 0x20000
        s_cmp_ge_u32 s{sW}, 2
        s_cselect_b32 s{sPF}, s{sU}, s{sG}
        s_cselect_b32 s{sPF + 1}, s{sU + 1}, s{sG + 1}
        s_mov_b32 s{sPF + 2}, s{sG + 2}
        s_mov_b32 s{sPF + 3}, 0x20000
        s_cmp_eq_u32 s{sROLE}, 0
        s_cselect_b32 s{sC0}, 128, 0""")
        npf = 1 if C <= 2 else 2
        self.npf = npf
        lanes = 18 * C // npf
        self.pfstep = lanes * (32 // C)
        s(f"""s_and_b32 s{sT0}, s{sW}, 1
        s_lshl_b32 s{sT1}, s{sE2}, 1
        s_add_u32 s{sT0}, s{sT0}, s{sT1}
        v_lshlrev_b32 v{vT0}, {5 - lc}, v{vL}
        v_add_u32 v{vT0}, s{sT0}, v{vT0}
        v_mul_u32_u24 v{vPF}, 9216, v{vT0}
        v_mul_u32_u24 v{vPOL}, 1152, v{vT0}
        v_mov_b32 v{vT1}, {OOB}
        v_cmp_gt_u32 vcc, {lanes}, v{vL}
        s_nop 1
        v_cndmask_b32 v{vPF}, v{vT1}, v{vPF}, vcc
        v_cndmask_b32 v{vPOL}, v{vT1}, v{vPOL}, vcc""")
        spf = self.o.get("spf", 0)
        nsb = self.o.get("nsb", 3) if spf else 0

        def sbatch(b):
            s = self.segs[-1]
            if b >= nsb:
                return
            s(f"""s_lshl_b32 s{sT0}, s{sE2}, 2
            s_add_u32 s{sT0}, s{sT0}, s{sW}
            s_mul_i32 s{sT0}, s{sT0}, {spf}
            s_add_u32 s{sT0}, s{sT0}, {b * spf * 64 // C}
            s_cmp_ge_u32 s{sT0}, {576 - spf + 1}
            s_cselect_b32 s100, s{sU}, s{sG}
            s_cselect_b32 s101, s{sU + 1}, s{sG + 1}
            s_cselect_b32 s{sT1}, {576 // spf * spf}, 0
            s_sub_u32 s{sT0}, s{sT0}, s{sT1}
            s_min_u32 s{sT0}, s{sT0}, {576 - spf}
            s_mul_i32 s{sT0}, s{sT0}, 9216
            s_add_u32 s{sT0}, s{sT0}, s{sC0}
            s_add_u32 s100, s100, s{sT0}
            s_addc_u32 s101, s101, 0""")
            for j in range(spf):
                s(f"s_load_dword s{sIT}, s[100:101], {9216 * j}")

        sbatch(0)
        n2 = self.o.get("nup2", NUP)
        kvpf = f"""s_and_b32 s{sT2}, s{sE2}, 3
        s_lshl_b32 s{sT2}, s{sT2}, 2
        s_add_u32 s{sT2}, s{sT2}, s{sW}
        s_mul_i32 s{sT2}, s{sT2}, {11 * 128}
        s_cmp_eq_u32 s{sROLE}, {1 if early == 2 else 0}
        s_cselect_b32 s{sT2}, {OOB}, s{sT2}
        v_min_u32 v{vT2}, 10, v{vL}
        v_lshlrev_b32 v{vT2}, 7, v{vT2}"""
        if early:
            s(kvpf)
            if early >= 2:
                s("s_cbranch_scc1 L_nopf")
                s = self.seg("pfe")
            s(f"buffer_load_dword v{vT3}, v{vT2}, {srd(sKV)}, s{sT2} offen", tag="pf")
            for i in range(npf):
                s(f"s_add_u32 s{sT0}, s{sC0}, {i * self.pfstep * 9216}")
                s(f"buffer_load_dword v{vT3}, v{vPF}, {srd(sPF)}, s{sT0} offen", tag="pf")
                if early >= 2:
                    s(f"s_mov_b32 s{sT0}, {(128 if early == 3 else 0) + i * self.pfstep * 9216}")
                    s(f"buffer_load_dword v{vT3}, v{vPF}, {srd(sPF)}, s{sT0} offen", tag="pf")
            if early >= 2:
                s = self.seg("entry2")
                s("L_nopf:")
            xfirst(min(xpos, NUP), NUP)
        s(f"s_mul_i32 s{sT0}, s{sR}, 147456")
        mk(sOUT, 66, sT0, 147456)
        s(f"s_mul_i32 s{sT0}, s{sS}, 663552\ns_mul_i32 s{sT1}, s{sS}, 144")
        mk(sD, 64, sT0, 663552)
        mk(sQ, 50, sT1, 663552, sub=True)
        mk(sWS, 70, None, WS_SIZE)
        mk(sDBG, 68, None, 256)
        mk(sWO, 56, None, 663552)
        s(f"""s_add_u32 s{sT0}, s{sC0}, {8 * 32 * 9216}
        s_add_u32 s{sDM}, s{sU}, s{sT0}
        s_addc_u32 s{sDM + 1}, s{sU + 1}, 0
        s_mov_b32 s{sDM + 2}, {31 * 9216 + 128}
        s_mov_b32 s{sDM + 3}, 0x20000""")
        s(f"""v_lshrrev_b32 v{vT0}, 2, v{vL}
        v_lshlrev_b32 v{vT0}, 7, v{vT0}
        v_and_b32 v{vT1}, 3, v{vL}
        v_lshl_add_u32 v{vT0}, v{vT1}, 3, v{vT0}
        v_bfe_u32 v{vT1}, v{vL}, 3, 2""")
        for ct in range(4):
            s(f"""v_xor_b32 v{vT2}, {ct}, v{vT1}
            v_lshl_add_u32 v{vRB + ct}, v{vT2}, 5, v{vT0}
            v_add_u32 v{vRB + 4 + ct}, 0x10000, v{vRB + ct}
            v_add_u32 v{vRB + 8 + ct}, 0x20000, v{vRB + ct}""")
        s(f"""v_bfe_u32 v{vT0}, v{vL}, 1, 2
        v_lshrrev_b32 v{vT1}, 4, v{vL}
        v_xor_b32 v{vTMP + 2}, v{vT0}, v{vT1}
        v_and_b32 v{vT1}, 1, v{vL}
        v_lshlrev_b32 v{vT1}, 4, v{vT1}
        v_lshl_add_u32 v{vTMP + 1}, v{vTMP + 2}, 5, v{vT1}""")
        vXB = (vFLG, vONE)
        aONE = 252
        s(f"""v_lshrrev_b32 v{vT0}, 5, v{vL}
        v_bfe_u32 v{vT1}, v{vL}, 3, 2
        v_lshl_add_u32 v{vT0}, v{vT0}, 3, v{vT1}
        s_and_b32 s{sT0}, s{sW}, 1
        s_lshl_b32 s{sT0}, s{sT0}, 4
        s_lshr_b32 s{sT1}, s{sW}, 1
        s_lshl_b32 s{sT1}, s{sT1}, 2
        s_add_u32 s{sT0}, s{sT0}, s{sT1}
        v_add_u32 v{vTMP + 3}, s{sT0}, v{vT0}
        v_mul_u32_u24 v{vDM}, 9216, v{vTMP + 3}
        v_add_u32 v{vDM}, v{vDM}, v{vTMP + 1}
        s_mov_b32 s{sNK}, {f32(-K0P)}
        s_mov_b32 s{sMASK}, 0
        s_mov_b32 s{sMASK + 1}, -1
        s_mov_b32 s{sINC}, {32 * 9216}
        v_bfe_u32 v{vT0}, v{vL}, 1, 3
        v_lshrrev_b32 v{vT1}, 4, v{vL}
        v_xor_b32 v{vT0}, v{vT0}, v{vT1}
        v_and_b32 v{vT2}, 7, v{vL}
        v_lshl_add_u32 v{vT0}, v{vT2}, 3, v{vT0}
        v_lshl_add_u32 v{vT0}, v{vT0}, 4, s{sM0W}
        v_bfe_u32 v{vT2}, v{vL}, 3, 1
        v_mul_u32_u24 v{vT2}, {SLOT}, v{vT2}
        v_add_u32 v{vXB[0]}, v{vT0}, v{vT2}
        v_xor_b32 v{vXB[1]}, 64, v{vXB[0]}
        v_and_b32 v{vT0}, 15, v{vL}
        v_lshlrev_b32 v{vT1}, 2, v{vT1}
        v_sub_u32 v{vT0}, v{vT0}, v{vT1}
        v_mov_b32 v{vT1}, 0x3f803f80""")
        for j in range(4):
            s(f"v_cmp_eq_u32 s[{sDG + 2 * j}:{sDG + 2 * j + 1}], {j}, v{vT0}\nv_accvgpr_write_b32 a{aONE + j}, v{vT1}")
        if not early:
            s(kvpf)
        s(f"s_cmp_eq_u32 s{sROLE}, 0\ns_cbranch_scc1 L_ln")
        self.p1pre()
        s = self.seg("ln")
        s("L_ln:")
        xfirst(NUP, n2)
        NUP = n2
        if tlb or spf:
            s("s_waitcnt lgkmcnt(0)")
        pf1, pf2 = [], []
        if self.wpf and not early:
            pf1.append([Ins(f"buffer_load_dword v{vT3}, v{vT2}, {srd(sKV)}, s{sT2} offen", tag="pf")])
            for i in range(npf if self.o.get("vpf", 1) else 0):
                pf1.append([Ins(f"s_add_u32 s{sT0}, s{sC0}, {i * self.pfstep * 9216}"),
                            Ins(f"buffer_load_dword v{vT3}, v{vPF}, {srd(sPF)}, s{sT0} offen", tag="pf")])
        self.pf2 = lambda col: [x for i in range(npf) for x in (Ins(f"s_mov_b32 s{sT0}, {col + i * self.pfstep * 9216}"),
                                                                 Ins(f"buffer_load_dword v{vT3}, v{vPF}, {srd(sPF)}, s{sT0} offen", tag="pf"))]
        wl = []
        for st in range(3):
            for i in range(9):
                wl.append([Ins(f"s_add_u32 m0, s{sM0W}, {st * SLOT + 4096 * i}"),
                           Ins(f"s_mov_b32 s{sA}, s{sC0}" if (i == 0 and st % 2 == 0) else f"s_add_u32 s{sA}, s{sA}, s{sINC}"),
                           Ins(f"buffer_load_dwordx4 v{vDM}, {srd(sG if st < 2 else sU)}, s{sA} offen lds", tag=f"st{st}", need=[f"lds:xr{st // 2}"])])
        pfpos = max(NUP, self.o.get("pfpos", len(xl)))
        g0 = self.o.get("g0", 0)
        w1 = self.o.get("w1", 18)
        wskip = self.o.get("wskip", 0)
        q0 = xl[NUP:pfpos] + (wl[:g0] if pfpos == len(xl) else []) + pf1 + xl[pfpos:]
        vSU, vGR, vK = 32, 36, 2

        def xread(u, c, hh):
            return Ins(f"ds_read_b128 {vr(vRAW + 4 * (2 * c + hh))}, v{vXB[hh]} offset:{4096 * c}", tag=f"xr{u}", need=[f"x{9 * u + c}"])

        def xwait(u, c):
            return Ins("s_waitcnt vmcnt(63)", auto=[f"x{9 * u + c}"])

        def vmop(s, q, pad):
            s.extend(q[:-1])
            if pad and len(q) == 2 and "m0" in q[0].wr:
                s("s_nop 0")
            s.add(q[-1])

        for u in range(2):
            queue = q0 if u == 0 else [None] * wskip + wl[g0:w1]
            if u == 0:
                for c in range(2):
                    s.add(xwait(0, c))
                    s.extend([xread(0, c, 0), xread(0, c, 1)])
                    if c == 0:
                        self.stamp(s, 10)
            s(f"s_waitcnt lgkmcnt({0 if (u == 1 and nsb > 1) else 2})")
            for c in range(9):
                for hh in range(2):
                    n = 2 * c + hh
                    r, lo = vRAW + 4 * n, vLO + 4 * n
                    s(f"v_mfma_f32_16x16x32_bf16 {vr(vSU)}, {ar(aONE)}, {vr(r)}, {'0' if n == 0 else vr(vSU)}")
                    if hh == 0 and c + 2 < 9:
                        s.add(xwait(u, c + 2))
                        s.add(xread(u, c + 2, 0))
                    if hh == 1 and queue:
                        q = queue.pop(0)
                        if q:
                            vmop(s, q, True)
                    for j in range(4):
                        s(f"v_lshlrev_b32 v{lo + j}, 16, v{r + j}")
                    s(f"v_mfma_f32_16x16x32_bf16 {vr(vGR)}, {vr(r)}, {vr(r)}, {'0' if n == 0 else vr(vGR)}")
                    if hh == 0:
                        q = queue.pop(0) if queue else None
                        if q:
                            s.extend(q[:-1])
                        if c + 2 < 9:
                            s.add(xread(u, c + 2, 1))
                        elif q and len(q) == 2:
                            s("s_nop 0")
                        if q:
                            s.add(q[-1])
                    elif c < 8:
                        s(f"s_waitcnt lgkmcnt({2 if c + 2 < 9 else 0})")
                    for j in range(4):
                        s(f"v_and_b32 v{r + j}, 0xffff0000, v{r + j}")
            self.stamp(s, 11 + 2 * u)
            if u == 0:
                s(f"v_add_u32 v{vXB[0]}, {2 * SLOT}, v{vXB[0]}\nv_add_u32 v{vXB[1]}, {2 * SLOT}, v{vXB[1]}\ns_nop 1")
            else:
                assert not queue
                queue = wl[w1:]
                s(f"""s_cmp_eq_u32 s{sROLE}, 0
                s_cbranch_scc1 L_nokv""")
                k = self.seg("kvdma")
                for i in range(5):
                    k(f"s_add_u32 m0, s{sM0W}, {3 * SLOT + 4096 * i}")
                    k(f"s_mov_b32 s{sT0}, {4608 * i}")
                    k(f"buffer_load_dwordx4 v{vKD}, {srd(sKV)}, s{sT0} offen lds", tag="kvimg", need=["lds:xr1"])
                s = self.seg("ln2")
                s("L_nokv:\ns_nop 1")
            sbatch(1 + u)
            s(f"v_cndmask_b32 v{vGR}, 0, v{vGR}, s[{sDG}:{sDG + 1}]")
            for j in range(1, 4):
                s(f"v_cndmask_b32 v{vGR}, v{vGR}, v{vGR + j}, s[{sDG + 2 * j}:{sDG + 2 * j + 1}]")
            s(f"""v_mov_b32 v{vGR + 1}, v{vGR}
            v_mul_f32 v{vSU}, {f32(1 / 576)}, v{vSU}
            s_nop 0
            v_permlane16_swap_b32 v{vGR}, v{vGR + 1}
            v_add_f32 v{vGR}, v{vGR}, v{vGR + 1}
            v_mov_b32 v{vGR + 1}, v{vGR}
            v_mul_f32 v{vSU + 1}, v{vSU}, v{vSU}
            s_nop 0
            v_permlane32_swap_b32 v{vGR}, v{vGR + 1}
            v_add_f32 v{vGR}, v{vGR}, v{vGR + 1}
            v_mul_f32 v{vGR}, {f32(1 / 576)}, v{vGR}
            v_sub_f32 v{vGR}, v{vGR}, v{vSU + 1}
            v_max_f32 v{vGR}, 0, v{vGR}
            v_add_f32 v{vGR}, {f32(1e-5)}, v{vGR}
            v_rsq_f32 v{vGR}, v{vGR}
            s_nop 0
            v_mul_f32 v{vK}, {f32(ALPHA)}, v{vGR}
            v_mul_f32 v{vK + 1}, v{vK}, -v{vSU}""")
            for n in range(18):
                r, lo = vRAW + 4 * n, vLO + 4 * n
                k = vr(vK, 2)
                lim = 16 if u == 0 else 18
                while queue and (n % 2 == 0 or len(queue) > (lim - n) // 2):
                    vmop(s, queue.pop(0), True)
                    if len(queue) < lim - n:
                        break
                if u == 0 and n == 16:
                    assert not queue
                    s.add(xwait(1, 1))
                    s.extend([xread(1, c, hh) for c in range(2) for hh in range(2)])
                for j in (0, 2):
                    s(f"v_pk_fma_f32 {vr(lo + j, 2)}, {vr(lo + j, 2)}, {k}, {k} op_sel:[0,0,1] op_sel_hi:[1,0,1]")
                    s(f"v_pk_fma_f32 {vr(r + j, 2)}, {vr(r + j, 2)}, {k}, {k} op_sel:[0,0,1] op_sel_hi:[1,0,1]")
                for j in range(4):
                    s(f"v_cvt_pk_bf16_f32 v{lo + j}, v{lo + j}, v{r + j}")
                for j in range(4):
                    s(f"v_accvgpr_write_b32 a{aXN + 4 * (18 * u + n) + j}, v{lo + j}")
            assert not queue
            self.stamp(s, 12 + 2 * u)
        s(f"""v_mov_b32 v{vT1}, {OOB}
        v_cmp_eq_u32 vcc, 0, v{vL}
        v_mov_b32 v{vONE}, 1
        s_nop 0
        v_cndmask_b32 v{vFLG}, v{vT1}, 0, vcc""")
        if nsb > 2:
            s("s_waitcnt lgkmcnt(0)")
        self.stamp(s, 1)
        s(f"""s_cmp_lg_u32 s{sROLE}, 0
        s_cbranch_scc1 L_p1""")

    def stamp0(self, s):
        if not self.stamps:
            return
        s(f"""s_memtime s[58:59]
        s_waitcnt lgkmcnt(0)
        v_writelane_b32 v0, s58, 0
        s_memrealtime s[58:59]
        s_waitcnt lgkmcnt(0)
        v_writelane_b32 v0, s58, 1""")

    def p0(self):
        tl = Timeline()
        xb = lambda h: (lambda u, i: xn(u, 9 * h + i))
        for st, (acc, h) in enumerate(((vG, 0), (vG, 1), (vU, 0), (vU, 1), (vG, 0), (vG, 1))):
            self.std_mfmas(tl, 4 * st, 72 * st, acc, xb(h), h == 0)
            tl.put_reads(self.std_reads(4 * st, 72 * st, st % 4, f"r{st % 4}"))
            if st:
                self.barrier(tl, 72 * st - DD, [f"st{st % 4}"], f"r{(st - 1) % 4}")
        for st in range(3, 9):
            sl = st % 4
            first = [f"s_mov_b32 s{sDM}, s{pG if sl < 2 else pU}", f"s_mov_b32 s{sDM + 1}, s{(pG if sl < 2 else pU) + 1}"] if sl % 2 == 0 else None
            self.dmas(tl, st, vDM, first, f"s{sINC}", f"st{sl}")
        tl.gap(306).mem.append(Ins(f"buffer_load_dword v{vPOL}, off, {srd(sDBG)}, s{sPOL} sc1", tag="poll"))
        e = self.shadows(tl, 360, [f"s_mov_b32 s{sINC}, s{sINN}", f"s_mov_b32 s{sDM + 2}, s{sNRN}"])
        assert e <= 365
        tl.gap(362).valu.append(Ins(f"v_mov_b32 v{vDM}, v{vDN}"))
        self.shadows(tl, 120, [f"s_add_u32 s{sHI}, s{sHI}, 16", f"s_and_b32 s{sHI}, s{sHI}, 127", f"s_add_u32 s{sIT}, s{sIT}, 1",
                               (f"s_add_u32 s{pG}, s{pG}, 128", f"s_addc_u32 s{pG + 1}, s{pG + 1}, 0"),
                               (f"s_cmp_eq_u32 s{sIT}, 6", f"s_cselect_b32 s{sPOL}, s{sT3}, {OOB}")])
        self.shadows(tl, 224, [(f"s_add_u32 s{pU}, s{pU}, 128", f"s_addc_u32 s{pU + 1}, s{pU + 1}, 0")])
        tl.gap(287).shadow.append(Ins(f"s_cmp_lt_u32 s{sIT}, 7"))
        V = self.gelu_items(0, 85, 371, True, vH)
        tl.fill(85, 288, V)
        state = {"V": [i.ins[0].text for i in V]}
        tl.fill(288, 373, V, flush=10 ** 9)
        for p in range(288, 373):
            tl.g[p - 288] = tl.g[p]
        pre = [(p, m) for p in range(262, 268) for m in tl.gap(p).mem if m.kind == "lds"]
        state["out"] = tl.insert_lgkm_waits(268, 288, pre)
        tl.insert_lgkm_waits(0, 268, [(p - 288, m) for p, m in state["out"]])
        prew = [m for m in tl.gap(268).mem if m.kind == "lds"]
        prew += [m for p in range(269, 288) for m in tl.gap(p).ins() if m.kind == "lds" or (m.kind == "wait" and m.lg is not None)]
        s = self.seg("p0pre")
        if self.wpf:
            for c in range(self.o.get("npf0", 1)):
                s.extend(self.pf2(256 + 128 * c))
        s(f"""s_add_u32 s{pG}, s{sG}, 256
        s_addc_u32 s{pG + 1}, s{sG + 1}, 0
        s_add_u32 s{pU}, s{sU}, 256
        s_addc_u32 s{pU + 1}, s{sU + 1}, 0
        s_mov_b32 s{sIT}, 0
        s_mov_b32 s{sHI}, 112
        s_mov_b32 s{sPOL}, {OOB}
        s_lshl_b32 s{sT3}, s{sR}, 2
        s_add_u32 s{sT3}, s{sT3}, 128
        s_mov_b32 s{sINN}, s{sINC}
        s_mov_b32 s{sNRN}, s{sDM + 2}
        v_mov_b32 v{vDN}, v{vDM}""")
        s("s_waitcnt vmcnt(63)", auto=["st0"])
        s("s_barrier", need=["st0"])
        s.extend(prew)
        s(".p2align 3")
        a = self.seg("aloop")
        a("L_aloop:")
        a.extend(tl.emit(0, 288))
        a("s_cbranch_scc1 L_aloop")
        a2 = self.seg("aexit")
        a2(f"""s_cmp_eq_u32 s{sIT}, 7
        s_cbranch_scc0 L_bstart""")
        w = self.seg("aswitch")
        w(f"""v_readfirstlane_b32 s{sT0}, v{vPOL}
        s_mov_b32 s{sT1}, 0
        s_cmp_ge_u32 s{sT0}, 8
        s_cbranch_scc1 L_hready""")
        sp = self.seg("hspin")
        sp(f"""L_hspin:
        s_sleep 4
        buffer_load_dword v{vPOL}, off, {srd(sDBG)}, s{sT3} sc1
        s_add_u32 s{sT1}, s{sT1}, 1
        s_waitcnt vmcnt(0)
        v_readfirstlane_b32 s{sT0}, v{vPOL}
        s_cmp_gt_u32 s{sT1}, 0x40000
        s_cbranch_scc1 L_end
        s_cmp_ge_u32 s{sT0}, 8
        s_cbranch_scc0 L_hspin""")
        w = self.seg("aswitch2")
        w(f"""L_hready:
        s_lshl_b32 s{sT0}, s{sR}, 3
        s_add_u32 s{sT0}, s{sT0}, s{sS}
        s_lshl_b32 s{sT1}, s{sT0}, 2
        s_add_u32 s{sT1}, s{sT1}, s{sW}
        s_lshl_b32 s{sT1}, s{sT1}, 12
        s_add_u32 s{sT1}, s{sT1}, {WS_HX}""")
        rest = f"""s_mov_b32 s{sINN}, {32 * 1152}
        s_mov_b32 s{sNRN}, {31 * 1152 + 128}
        s_lshl_b32 s{sC0}, s{sS}, 7
        s_add_u32 s{pG}, s{sD}, s{sC0}
        s_addc_u32 s{pG + 1}, s{sD + 1}, 0
        s_add_u32 s{sC0}, s{sC0}, 128
        s_and_b32 s{sC0}, s{sC0}, 1023
        s_add_u32 s{pU}, s{sD}, s{sC0}
        s_addc_u32 s{pU + 1}, s{sD + 1}, 0
        v_lshrrev_b32 v{vT0}, 3, v{vL}
        s_lshl_b32 s{sC1}, s{sW}, 3
        v_add_u32 v{vT0}, s{sC1}, v{vT0}
        v_mul_u32_u24 v{vT0}, 1152, v{vT0}
        v_add_u32 v{vDN}, v{vT0}, v{vTMP + 1}
        v_lshlrev_b32 v{vT0}, 9, v{vL}
        v_mov_b32 v{vT1}, {OOB}
        v_cmp_gt_u32 vcc, 8, v{vL}
        v_lshlrev_b32 v{vT2}, 3, v{vL}
        s_mul_i32 s{sT2}, s{sT0}, {9 * 16384}
        v_cndmask_b32 v{vT0}, v{vT1}, v{vT0}, vcc
        s_lshl_b32 s{sC1}, s{sW}, 12
        s_add_u32 s{sT2}, s{sT2}, s{sC1}
        s_add_u32 s{sT2}, s{sT2}, {WS_PART}
        s_mul_i32 s{sSTN}, s{sS}, {9 * 16384 - 512}
        s_sub_u32 s{sSTN}, s{sT2}, s{sSTN}
        s_lshl_b32 s{sT3}, s{sR}, 12
        s_lshl_b32 s{sC1}, s{sW}, 7
        s_add_u32 s{sT3}, s{sT3}, s{sC1}
        s_lshl_b32 s{sC1}, s{sS}, 2
        s_add_u32 s{sT3}, s{sT3}, s{sC1}
        s_add_u32 s{sT3}, s{sT3}, {WS_FLAG + 32}""".split("\n")
        for k in range(4):
            w(f"buffer_load_dwordx4 {ar(aH0 + 4 * k)}, v{vL16}, {srd(sWS)}, s{sT1} offen offset:{1024 * k} sc1", tag="h0")
            w("\n".join(rest[11 * k:11 * k + 11]))
        w("s_branch L_aloop")

        def hb(h):
            def f(u, i):
                k = 9 * h + i
                c, a_ = k // 2, k % 2
                if c == 0:
                    return ar(aH0 + 8 * a_ + 4 * u)
                return vr(vH + 16 * (c - 1) + 8 * a_ + 4 * u)
            return f

        def outv(base, tag):
            V = []
            for j in range(8):
                ct, u = j // 2, j % 2
                rel = base + 72 + 9 * j + 8 + 8
                dl = base + 144 + 9 * j - 1
                p = vU + 8 * (ct // 2) + 4 * u + 2 * (ct % 2)
                for e in range(2):
                    V.append(Item("v", Ins(f"v_cvt_pk_bf16_f32 v{p + e}, v{vG + 4 * j + 2 * e}, v{vG + 4 * j + 2 * e + 1}"), rel + e, rel, dl))
                if ct % 2 == 1:
                    k = 2 * (ct // 2) + u
                    V.append(Item("m", Ins(f"buffer_store_dwordx4 {vr(vU + 4 * k)}, v{vL16}, {srd(sWS)}, s{sST} offen offset:{1024 * k} sc1", tag=tag), rel + 2, rel + 1))
            return V

        tb = Timeline()
        fpos = self.o.get("fpos", 124)
        for st in range(8):
            h = st % 2
            self.std_mfmas(tb, 4 * st, 72 * st, vG, hb(h), h == 0)
            tb.put_reads(self.std_reads(4 * st, 72 * st, st % 4, f"r{st % 4}"))
            if st:
                self.barrier(tb, 72 * st - DD, [f"st{st % 4}"], f"r{(st - 1) % 4}")
        for st in range(3, 9):
            first = [f"s_mov_b32 s{sDM + 2}, s{sNRN}", f"s_add_u32 s{sDM}, s{sD}, s{sC0}", f"s_addc_u32 s{sDM + 1}, s{sD + 1}, 0"]
            self.dmas(tb, st, vDM, first if st % 2 == 0 else None, 32 * 1152, f"st{st % 4}")
        for step in range(3):
            base = 144 * step
            prev = f"part{(step - 1) % 2}"
            g = tb.gap(base + fpos)
            if g.bar:
                g.shadow[0].auto.append(prev)
            else:
                g.shadow.append(Ins("s_waitcnt vmcnt(63)", auto=[prev]))
            g.mem.append(Ins(f"buffer_store_dword v{vONE}, v{vFLG}, {srd(sWS)}, s{sFL} offen sc1", tag="flag", need=[f"old:{prev}/0"]))
            e = self.shadows(tb, base + 24, [f"s_add_u32 s{sT0}, s{sIT}, s{sS}", f"s_and_b32 s{sT1}, s{sT0}, 7",
                                             f"s_add_u32 s{sT0}, s{sT0}, 2", f"s_and_b32 s{sT0}, s{sT0}, 7",
                                             (f"s_cmp_lt_u32 s{sIT}, 6", f"s_cselect_b32 s{sT0}, s{sT0}, 8"),
                                             f"s_lshl_b32 s{sC0}, s{sT0}, 7",
                                             (f"s_cmp_lt_u32 s{sIT}, 7", f"s_cselect_b32 s{sNRN}, s{sNRN}, 0"),
                                             f"s_lshl_b32 s{sST}, s{sT1}, 14", f"s_add_u32 s{sST}, s{sST}, s{sT2}",
                                             f"s_mov_b32 s{sFL}, s{sFLN}", f"s_lshl_b32 s{sFLN}, s{sT1}, 9",
                                             f"s_add_u32 s{sFLN}, s{sFLN}, s{sT3}", f"s_add_u32 s{sIT}, s{sIT}, 1"])
            assert e < base + min(fpos, 76)
        tb.gap(287).shadow.append(Ins(f"s_cmp_eq_u32 s{sIT}, 8"))
        Vall = self.gelu_items(-288, 0, 1, False, vH + 112)
        nrem = sum(2 if t.startswith("v_cvt") else 1 for t in state["V"])
        V = Vall[len(Vall) - nrem:]
        assert V[0].ins[0].text == state["V"][0], (V[0].ins[0].text, state["V"][0])
        for c, i in enumerate(V):
            i.target = 82.0 * c / len(V)
            if i.ins[0].op.startswith("v_cvt"):
                u = ((int(i.ins[0].wr[0][1:]) - vH) // 4) % 2
                i.deadline = 72 + 7 + 9 * u - 2
        bstate = []
        o = [(p - 288, m) for p, m in state["out"]]
        for step in range(3):
            V += outv(144 * step, f"part{step % 2}")
            tb.fill(144 * step, 144 * step + 144, V)
            o = tb.insert_lgkm_waits(144 * step, 144 * step + 144, o)
            bstate.append(([i.ins[0].text for i in V], len(o)))
            if step == 1:
                nleft, o1 = len(V), list(o)
            for p in range(144 * step + 20, 144 * step + 90):
                assert not any(m.op.startswith("buffer_store_dwordx4") for m in tb.gap(p).mem)
        assert bstate[0][0] == bstate[2][0] and bstate[2][1] <= bstate[0][1], bstate
        te = Timeline()
        for st in (4, 5):
            self.std_mfmas(te, 4 * st, 72 * st, vG, hb(st % 2), st == 4)
            te.put_reads(self.std_reads(4 * st, 72 * st, st % 4, f"r{st % 4}"))
        self.barrier(te, 360 - DD, ["st1"], "r0")
        te.gap(288 + fpos).shadow.append(Ins("s_waitcnt vmcnt(63)", auto=["part1"]))
        te.gap(288 + fpos).mem.append(Ins(f"buffer_store_dword v{vONE}, v{vFLG}, {srd(sWS)}, s{sFLN} offen sc1", tag="flag", need=["part1"]))
        te.gap(300).shadow.append(Ins(f"s_add_u32 s{sT3}, s{sT3}, 32"))
        V = outv(144, "part1")[-nleft:]
        for j in range(8):
            ct, u = j // 2, j % 2
            rel = 360 + 9 * j + 8 + (4 if j < 4 else 8)
            te.gap(360 + 9 * j + 7).shadow.append(Ins(f"s_add_u32 s{sA + (j % 2)}, s{sSTN}, {((ct + 4 * u) * 9 + 8) * 16384}"))
            for e in range(2):
                V.append(Item("v", Ins(f"v_cvt_pk_bf16_f32 v{vGL + 2 * j + e}, v{vG + 4 * j + 2 * e}, v{vG + 4 * j + 2 * e + 1}"), rel, rel))
            V.append(Item("m", Ins(f"buffer_store_dwordx2 {vr(vGL + 2 * j, 2)}, v{vT2}, {srd(sWS)}, s{sA + (j % 2)} offen sc1", tag="part0"), rel + 1, rel + 1))
        te.fill(288, 432, V)
        te.insert_lgkm_waits(288, 432, o1)
        s = self.seg("b0")
        s(f"""L_bstart:
        s_mov_b32 s{sIT}, 0
        s_mov_b32 s{sFLN}, {OOB}""")
        self.stamp(s, 2)
        s.extend(tb.emit(0, 144))
        s(".p2align 3")
        bl = self.seg("bloop")
        bl("L_bloop:")
        bl.extend(tb.emit(144, 288))
        bl("s_cbranch_scc1 L_blast")
        bl = self.seg("bloop2")
        bl.extend(tb.emit(288, 432))
        bl("s_branch L_bloop\n.p2align 3")
        e = self.seg("bend")
        e("L_blast:")
        e.extend(te.emit(288, 432))
        e("s_nop 6")
        for it in V:
            e.extend(it.ins)
        self.stamp(e, 3)
        e("s_waitcnt vmcnt(0)")
        e(f"buffer_store_dword v{vONE}, v{vT0}, {srd(sWS)}, s{sT3} offen sc1", need=["part0", "part1"])
        self.stamp(e, 4)
        self.stamp_flush(e)
        e("s_endpgm")

    def text(self):
        head = open("cdna_kernels/" + NAME + ".s.ref").read()
        lines = head.split("\n")
        top = [l for l in lines if l.startswith(";") and "@launch" not in l and "Override" not in l and "grid=ceil" not in l]
        out = "\n".join(top) + "\n; @launch grid=(256,1,1) block=(256,1,1) lds=163840\n"
        out += f""".amdgcn_target "amdgcn-amd-amdhsa--gfx950"
.text
.globl {NAME}_kernel
.p2align 8
.type {NAME}_kernel,@function
{NAME}_kernel:
"""
        for s in self.segs:
            out += f"; ---- {s.name}\n" + s.text()
        out += f"""L_end:
    s_endpgm
.section .rodata,"a"
.p2align 6
.amdhsa_kernel {NAME}_kernel
  .amdhsa_next_free_vgpr 512
  .amdhsa_next_free_sgpr 102
  .amdhsa_accum_offset 256
  .amdhsa_group_segment_fixed_size 0
  .amdhsa_kernarg_size 96
  .amdhsa_user_sgpr_count 2
  .amdhsa_user_sgpr_kernarg_segment_ptr 1
  .amdhsa_system_sgpr_workgroup_id_x 1
.end_amdhsa_kernel
"""
        return out

    def trace(self, names):
        d = {s.name: s for s in self.segs}
        t = []
        for n in names:
            if n in d:
                t += d[n].ins
            else:
                assert n in ("pfe", "entry2"), n
        return t
```

```python
import math, struct, sys
from asmlib import Ins, Seg, check_trace, est_cycles, auto_vm
from sched import Timeline, Item, LAT

NAME = "parallel_sum__grouped_kv_mqa__geglu_ffn__prompt"


def f32(x):
    return "0x%08x" % struct.unpack("<I", struct.pack("<f", x))[0]


LOG2E = 1.4426950408889634
K0 = 2 * LOG2E * math.sqrt(2 / math.pi)
K1 = K0 * 0.044715
ALPHA = K1 ** (1.0 / 3.0)
K0P = K0 / ALPHA
CK = LOG2E / math.sqrt(18.0) / ALPHA ** 2
MOFF = 98.0
OOB = 0x40000000

SLOT = 36864
KVS0, KVS1, KVST = 110592, 131072, 20480
WS_KV, WS_FLAG, WS_HX, WS_OM, WS_PART, WS_STAMP = 0, 0x40000, 0x80000, 0x300000, 0x600000, 0x1C00000
WS_SIZE = 0x2000000
DD = 20

sX, sG, sU, sD, sWS, sOUT, sDBG, sQ, sKV, sWO, sPF = 8, 12, 16, 20, 24, 28, 32, 36, 40, 44, 72
sW, sR, sS, sROLE, sE1, sE2 = 76, 77, 78, 79, 80, 81
sM0W, sA, sC0, sC1, sINC, sIT, sHI, sNK, sT0, sT1, sT2, sT3 = 82, 83, 84, 85, 86, 87, 88, 89, 90, 91, 92, 93
sST, sFL, sPFO, sPOL, sSTN, sFLN = 94, 95, 96, 97, 98, 99
pG, pU, sDM, sDG, sINN, sNRN = 48, 50, 56, 60, 68, 69
sMASK = 4
sMK2 = 6


def srd(n):
    return f"s[{n}:{n + 3}]"


vL, vT0, vT1, vT2, vT3 = 1, 2, 3, 4, 5
vL16, vFLG = 6, 7
vRB = 8
vDM, vPF, vPOL, vONE = 24, 25, 26, 27
vTMP = 20
vDN = 28
vGL, vG, vU, vH = 32, 64, 96, 128
vLO, vRAW = 40, 112
aXN, aFR, aH0 = 0, 144, 216
vKD = 208


def vr(a, n=4):
    return f"v[{a}:{a + n - 1}]" if n > 1 else f"v{a}"


def ar(a, n=4):
    return f"a[{a}:{a + n - 1}]" if n > 1 else f"a{a}"


def xn(u, k):
    return ar(aXN + 4 * (18 * u + k))


def frag(gam, i):
    return aFR + 36 * (gam % 2) + 4 * i


class Gen:
    def __init__(self, C=1, stamps=False, xpf=True, wpf=True, **kw):
        self.o = kw
        self.C = C
        self.stamps = stamps
        self.xpf = xpf
        self.wpf = wpf
        self.segs = []
        self.nstamp = {}

    def seg(self, name):
        s = Seg(name)
        self.segs.append(s)
        return s

    def stamp(self, s, k, last=False):
        if not self.stamps or (self.o.get("minst") and not last):
            return
        s(f"""s_waitcnt lgkmcnt(0)
        s_memtime s[52:53]
        s_memrealtime s[54:55]
        s_waitcnt lgkmcnt(0)
        v_writelane_b32 v0, s52, {2 * k}
        v_writelane_b32 v0, s54, {2 * k + 1}""")

    def stamp_flush(self, s):
        if not self.stamps:
            return
        s(f"""s_lshl_b32 s48, s2, 2
        s_add_u32 s48, s48, s{sW}
        s_lshl_b32 s48, s48, 8
        s_add_u32 s48, s48, {WS_STAMP}
        v_lshlrev_b32 v{vT0}, 2, v{vL}
        buffer_store_dword v0, v{vT0}, {srd(sWS)}, s48 offen""")

    def std_reads(self, gam0, pos0, slot, tag):
        R = []
        n = 0
        for ct in range(4):
            for i in range(9):
                for h in range(2):
                    f = frag(gam0 + ct, i) + 2 * h
                    off = slot * SLOT + 4096 * i + 2048 * h
                    ins = Ins(f"ds_read_b64_tr_b16 {ar(f, 2)}, v{vRB + 4 * (off // 65536) + ct} offset:{off % 65536}", tag=tag)
                    g0 = pos0 + 18 * ct
                    R.append(Item("r", ins, pos0 - DD + n, earliest=g0 - 27 + i, deadline=g0 + i - LAT - 1))
                    n += 1
        return R

    def std_mfmas(self, tl, gam0, pos0, acc, bfun, zero):
        for ct in range(4):
            for u in range(2):
                for i in range(9):
                    c = vr(acc + 4 * (2 * ct + u))
                    cin = "0" if (zero and i == 0) else c
                    tl.m[pos0 + 18 * ct + 9 * u + i] = Ins(f"v_mfma_f32_16x16x32_bf16 {c}, {ar(frag(gam0 + ct, i))}, {bfun(u, i)}, {cin}")

    def barrier(self, tl, p, vmtags, ldstag):
        g = tl.gap(p)
        g.shadow.append(Ins("s_waitcnt vmcnt(63) lgkmcnt(6)", auto=vmtags))
        g.bar.append(Ins("s_barrier", need=list(vmtags) + [f"lds:{ldstag}/6"]))

    def dmas(self, tl, stage, voff, first, inc, tag, srdn=None):
        for i in range(9):
            p = 72 * (stage - 3) + 7 + 8 * i
            m0 = f"s_add_u32 m0, s{sM0W}, {(stage % 4) * SLOT + 4096 * i}"
            if srdn is not None:
                sh = [m0, first[0] if (i == 0 and first) else f"s_add_u32 s{sA}, s{sA}, {inc}"]
                op = f"buffer_load_dwordx4 v{voff}, {srd(srdn)}, s{sA} offen lds"
            else:
                sh = [m0] + (first if (i == 0 and first) else [f"s_add_u32 s{sDM}, s{sDM}, {inc}", f"s_addc_u32 s{sDM + 1}, s{sDM + 1}, 0"])
                op = f"buffer_load_dwordx4 v{voff}, {srd(sDM)}, 0 offen lds"
            for k, t in enumerate(sh):
                tl.gap(p - len(sh) + 1 + k).shadow.append(Ins(t))
            tl.gap(p).mem.append(Ins(op, tag=tag))

    def shadows(self, tl, p, seq):
        for t in seq:
            tt = t if isinstance(t, tuple) else (t,)
            while any(tl.gap(p + k).shadow for k in range(len(tt))):
                p += 1
            for x in tt:
                tl.gap(p).shadow.append(Ins(x))
                p += 1
        return p

    def gelu_items(self, base, t0, t1, idx, hreg):
        raw = []
        for j in range(8):
            rel = base + 72 + 9 * j + 8 + 4
            dl = base + 288 + 9 * j - 1
            g, t = vG + 4 * j, vGL + 4 * j
            for e in range(4):
                raw.append(("v", [Ins(f"v_fma_f32 v{t + e}, -v{g + e}, v{g + e}, s{sNK}")], rel, dl))
            for e in range(4):
                raw.append(("v", [Ins(f"v_mul_f32 v{t + e}, v{t + e}, v{g + e}")], rel, dl))
            for e in range(4):
                raw.append(("v", [Ins(f"v_exp_f32 v{t + e}, v{t + e}")], rel, dl))
            for e in range(4):
                raw.append(("v", [Ins(f"v_add_f32 v{t + e}, 1.0, v{t + e}")], rel, dl))
            for e in range(4):
                raw.append(("v", [Ins(f"v_rcp_f32 v{t + e}, v{t + e}")], rel, dl))
            for e in range(4):
                raw.append(("v", [Ins(f"v_mul_f32 v{t + e}, v{t + e}, v{g + e}")], rel, dl))
        for j in (0, 2, 4, 6, 1, 3, 5, 7):
            ct, u = j // 2, j % 2
            rel = base + 216 + 9 * j + 8 + 4
            dl = base + 288 + 144 + 9 * j - 1
            t, uu = vGL + 4 * j, vU + 4 * j
            h = hreg + 8 * (ct // 2) + 4 * u + 2 * (ct % 2)
            for e in range(4):
                raw.append(("v", [Ins(f"v_mul_f32 v{t + e}, v{t + e}, v{uu + e}")], rel, dl))
            if idx:
                offs = [16 * k for k in range(8)]
                raw.append(("x", [Ins(f"v_cvt_pk_bf16_f32 v{h + e}, v{t + 2 * e}, v{t + 2 * e + 1}", idx=offs) for e in range(2)], rel, dl))
            else:
                for e in range(2):
                    raw.append(("v", [Ins(f"v_cvt_pk_bf16_f32 v{h + e}, v{t + 2 * e}, v{t + 2 * e + 1}")], rel, dl))
        items = []
        for k, ins, rel, dl in raw:
            if k == "x":
                items.append(Item("x", ins, 0, rel, dl, pre=Ins(f"s_set_gpr_idx_on s{sHI}, 8"), post=Ins("s_set_gpr_idx_off")))
            else:
                items.append(Item("v", ins, 0, rel, dl))
        for c, i in enumerate(items):
            i.target = t0 + (t1 - t0) * c / len(items)
        return items

    def prologue(self):
        C = self.C
        s = self.seg("entry")
        if self.stamps:
            s("s_memtime s[96:97]\ns_memrealtime s[98:99]")
        s(f"""s_cmp_ge_u32 s2, 256
        s_cbranch_scc1 L_end
        s_load_dwordx16 s[48:63], s[0:1], 0
        s_load_dwordx8 s[64:71], s[0:1], 64
        v_lshrrev_b32 v{vT0}, 6, v0
        v_and_b32 v{vL}, 63, v0
        v_readfirstlane_b32 s{sW}, v{vT0}
        s_and_b32 s{sT0}, s2, 7
        s_lshr_b32 s{sT1}, s2, 3
        s_bitcmp1_b32 s2, 3
        s_cselect_b32 s{sROLE}, 1, 0
        s_lshr_b32 s{sT1}, s{sT1}, 1""")
        lc = C.bit_length() - 1
        s(f"""s_and_b32 s{sS}, s{sT0}, {8 // C - 1}
        s_lshl_b32 s{sS}, s{sS}, {lc}
        s_and_b32 s{sT2}, s{sT1}, {C - 1}
        s_add_u32 s{sS}, s{sS}, s{sT2}
        s_lshl_b32 s{sE1}, s{sT2}, 1
        s_add_u32 s{sE1}, s{sE1}, s{sROLE}
        s_lshr_b32 s{sE2}, s{sT1}, {lc}
        s_lshr_b32 s{sR}, s{sT0}, {3 - lc}
        s_lshl_b32 s{sR}, s{sR}, {4 - lc}
        s_add_u32 s{sR}, s{sR}, s{sE2}
        s_lshl_b32 s{sM0W}, s{sW}, 10
        v_lshlrev_b32 v{vL16}, 4, v{vL}
        v_lshrrev_b32 v{vT0}, 3, v{vL}
        v_and_b32 v{vT1}, 7, v{vL}
        s_lshl_b32 s{sT0}, s{sW}, 5
        v_add_u32 v{vT2}, s{sT0}, v{vT0}
        v_mul_u32_u24 v{vT2}, 1152, v{vT2}
        v_lshl_add_u32 v{vTMP}, v{vT1}, 4, v{vT2}
        v_and_b32 v{vT0}, 48, v{vL}
        v_xor_b32 v28, v{vTMP}, v{vT0}
        v_xor_b32 v29, 64, v28
        v_add_u32 v29, 9216, v29
        v_add_u32 v30, 18432, v28
        v_add_u32 v31, 18432, v29
        s_mul_i32 s{sT0}, s{sR}, 147456
        s_mul_i32 s{sT1}, s{sS}, 1152""")
        if self.o.get("cpf", 0):
            s(f"""s_getpc_b64 s[100:101]
            L_pc:
            s_lshr_b32 s{sT2}, s2, 3
            s_lshl_b32 s{sT2}, s{sT2}, 2
            s_add_u32 s{sT2}, s{sT2}, s{sW}
            v_and_b32 v32, 3, v{vL}
            v_lshl_add_u32 v32, v32, 7, s{sT2}
            v_lshlrev_b32 v32, 7, v32
            v_min_u32 v32, L_end-L_pc, v32
            v_mov_b32 v33, s101
            v_add_co_u32 v32, vcc, s100, v32
            s_nop 1
            v_addc_co_u32 v33, vcc, 0, v33, vcc""")
            s(f"global_load_dword v{vT3}, v[32:33], off", tag="pf")
        s("s_waitcnt lgkmcnt(0)")
        self.stamp0(s)

        def mk(n, src, offreg, size, sub=False):
            s = self.segs[-1]
            if offreg is None:
                s(f"s_mov_b32 s{n}, s{src}\ns_and_b32 s{n + 1}, s{src + 1}, 0xffff")
            else:
                s(f"s_add_u32 s{n}, s{src}, s{offreg}\ns_addc_u32 s{n + 1}, s{src + 1}, 0\ns_and_b32 s{n + 1}, s{n + 1}, 0xffff")
            if sub:
                s(f"s_sub_u32 s{n + 2}, {size}, s{offreg}")
            else:
                s(f"s_mov_b32 s{n + 2}, {size}")
            s(f"s_mov_b32 s{n + 3}, 0x20000")

        mk(sX, 48, sT0, 147456)
        vXO = 28
        xl = []
        for u in range(2):
            for c in range(9):
                for r2 in range(2):
                    rg = 2 * u + r2
                    xl.append([Ins(f"s_add_u32 m0, s{sM0W}, {rg * SLOT + 4096 * c - 128 * c}"),
                               Ins(f"buffer_load_dwordx4 v{vXO + rg}, {srd(sX)}, 0 offen offset:{128 * c} lds", tag=f"x{9 * u + c}")])
        NUP = self.o.get("nup", 12)
        xpos = self.o.get("xpos", 0)
        early = self.o.get("early", 0)

        def xpref():
            per = 144 // C
            n = (per + 63) // 64
            lanes = per // n
            s(f"""s_lshl_b32 s{sT2}, s{sE1}, 2
            s_add_u32 s{sT2}, s{sT2}, s{sW}
            s_mul_i32 s{sT2}, s{sT2}, {per * 128}
            v_min_u32 v{vT2}, {lanes - 1}, v{vL}
            v_lshlrev_b32 v{vT2}, 7, v{vT2}""")
            for i in range(n):
                s(f"buffer_load_dword v{vT3}, v{vT2}, {srd(sX)}, s{sT2} offen", tag="pf")
                if i + 1 < n:
                    s(f"s_add_u32 s{sT2}, s{sT2}, {lanes * 128}")

        def xfirst(a, b):
            s = self.segs[-1]
            for q in xl[a:b]:
                s.add(q[0])
                if len(q) > 1:
                    s("s_nop 0")
                    s.add(q[1])

        xsplit = self.o.get("xsplit", 0)
        if xsplit:
            n = 72 // C
            s(f"""s_mul_i32 s{sT2}, s{sE1}, {n * 128}
            s_mul_i32 s{sT3}, s{sW}, 36864
            s_add_u32 s{sT2}, s{sT2}, s{sT3}
            v_min_u32 v32, {n - 1}, v{vL}
            v_lshl_add_u32 v32, v32, 7, s{sT2}
            v_add_u32 v207, 18432, v32""")
            s(f"buffer_load_dword v{vT3}, v32, {srd(sX)}, 0 offen", tag="pf")
            xl.insert(xsplit, [Ins(f"buffer_load_dword v{vT3}, v207, {srd(sX)}, 0 offen", tag="pf")])
        xfirst(0, min(xpos, NUP))
        if self.xpf:
            xpref()
        if not early:
            xfirst(min(xpos, NUP), NUP)
        tlb = self.o.get("tlb", 0)
        if tlb:
            step = 5308416 // tlb // 4 // 64 * 64
            s(f"s_mul_i32 s{sA}, s{sW}, {step}")
            for i in range(tlb):
                s(f"s_load_dword s100, s[60:61], s{sA}\ns_load_dword s100, s[62:63], s{sA}\ns_add_u32 s{sA}, s{sA}, {4 * step}")
            s("s_load_dword s100, s[50:51], 0\ns_load_dword s100, s[52:53], 0\ns_load_dword s100, s[54:55], 0")
        mk(sG, 60, sT1, 5308416, sub=True)
        mk(sU, 62, sT1, 5308416, sub=True)
        s(f"""s_bitcmp1_b32 s{sS}, 1
        s_cselect_b32 s{sKV}, s54, s52
        s_cselect_b32 s{sKV + 1}, s55, s53
        s_and_b32 s{sKV + 1}, s{sKV + 1}, 0xffff
        s_mov_b32 s{sKV + 2}, 20736
        s_mov_b32 s{sKV + 3}, 0x20000
        s_cmp_ge_u32 s{sW}, 2
        s_cselect_b32 s{sPF}, s{sU}, s{sG}
        s_cselect_b32 s{sPF + 1}, s{sU + 1}, s{sG + 1}
        s_mov_b32 s{sPF + 2}, s{sG + 2}
        s_mov_b32 s{sPF + 3}, 0x20000
        s_cmp_eq_u32 s{sROLE}, 0
        s_cselect_b32 s{sC0}, 128, 0""")
        npf = 1 if C <= 2 else 2
        self.npf = npf
        lanes = 18 * C // npf
        self.pfstep = lanes * (32 // C)
        s(f"""s_and_b32 s{sT0}, s{sW}, 1
        s_lshl_b32 s{sT1}, s{sE2}, 1
        s_add_u32 s{sT0}, s{sT0}, s{sT1}
        v_lshlrev_b32 v{vT0}, {5 - lc}, v{vL}
        v_add_u32 v{vT0}, s{sT0}, v{vT0}
        v_mul_u32_u24 v{vPF}, 9216, v{vT0}
        v_mul_u32_u24 v{vPOL}, 1152, v{vT0}
        v_mov_b32 v{vT1}, {OOB}
        v_cmp_gt_u32 vcc, {lanes}, v{vL}
        s_nop 1
        v_cndmask_b32 v{vPF}, v{vT1}, v{vPF}, vcc
        v_cndmask_b32 v{vPOL}, v{vT1}, v{vPOL}, vcc""")
        spf = self.o.get("spf", 0)
        nsb = self.o.get("nsb", 3) if spf else 0

        def sbatch(b):
            s = self.segs[-1]
            if b >= nsb:
                return
            s(f"""s_lshl_b32 s{sT0}, s{sE2}, 2
            s_add_u32 s{sT0}, s{sT0}, s{sW}
            s_mul_i32 s{sT0}, s{sT0}, {spf}
            s_add_u32 s{sT0}, s{sT0}, {b * spf * 64 // C}
            s_cmp_ge_u32 s{sT0}, {576 - spf + 1}
            s_cselect_b32 s100, s{sU}, s{sG}
            s_cselect_b32 s101, s{sU + 1}, s{sG + 1}
            s_cselect_b32 s{sT1}, {576 // spf * spf}, 0
            s_sub_u32 s{sT0}, s{sT0}, s{sT1}
            s_min_u32 s{sT0}, s{sT0}, {576 - spf}
            s_mul_i32 s{sT0}, s{sT0}, 9216
            s_add_u32 s{sT0}, s{sT0}, s{sC0}
            s_add_u32 s100, s100, s{sT0}
            s_addc_u32 s101, s101, 0""")
            for j in range(spf):
                s(f"s_load_dword s{sIT}, s[100:101], {9216 * j}")

        sbatch(0)
        n2 = self.o.get("nup2", NUP)
        kvpf = f"""s_and_b32 s{sT2}, s{sE2}, 3
        s_lshl_b32 s{sT2}, s{sT2}, 2
        s_add_u32 s{sT2}, s{sT2}, s{sW}
        s_mul_i32 s{sT2}, s{sT2}, {11 * 128}
        s_cmp_eq_u32 s{sROLE}, {1 if early == 2 else 0}
        s_cselect_b32 s{sT2}, {OOB}, s{sT2}
        v_min_u32 v{vT2}, 10, v{vL}
        v_lshlrev_b32 v{vT2}, 7, v{vT2}"""
        if early:
            s(kvpf)
            if early >= 2:
                s("s_cbranch_scc1 L_nopf")
                s = self.seg("pfe")
            s(f"buffer_load_dword v{vT3}, v{vT2}, {srd(sKV)}, s{sT2} offen", tag="pf")
            for i in range(npf):
                s(f"s_add_u32 s{sT0}, s{sC0}, {i * self.pfstep * 9216}")
                s(f"buffer_load_dword v{vT3}, v{vPF}, {srd(sPF)}, s{sT0} offen", tag="pf")
                if early >= 2:
                    s(f"s_mov_b32 s{sT0}, {(128 if early == 3 else 0) + i * self.pfstep * 9216}")
                    s(f"buffer_load_dword v{vT3}, v{vPF}, {srd(sPF)}, s{sT0} offen", tag="pf")
            if early >= 2:
                s = self.seg("entry2")
                s("L_nopf:")
            xfirst(min(xpos, NUP), NUP)
        s(f"s_mul_i32 s{sT0}, s{sR}, 147456")
        mk(sOUT, 66, sT0, 147456)
        s(f"s_mul_i32 s{sT0}, s{sS}, 663552\ns_mul_i32 s{sT1}, s{sS}, 144")
        mk(sD, 64, sT0, 663552)
        mk(sQ, 50, sT1, 663552, sub=True)
        mk(sWS, 70, None, WS_SIZE)
        mk(sDBG, 68, None, 256)
        mk(sWO, 56, None, 663552)
        s(f"""s_add_u32 s{sT0}, s{sC0}, {8 * 32 * 9216}
        s_add_u32 s{sDM}, s{sU}, s{sT0}
        s_addc_u32 s{sDM + 1}, s{sU + 1}, 0
        s_mov_b32 s{sDM + 2}, {31 * 9216 + 128}
        s_mov_b32 s{sDM + 3}, 0x20000""")
        s(f"""v_lshrrev_b32 v{vT0}, 2, v{vL}
        v_lshlrev_b32 v{vT0}, 7, v{vT0}
        v_and_b32 v{vT1}, 3, v{vL}
        v_lshl_add_u32 v{vT0}, v{vT1}, 3, v{vT0}
        v_bfe_u32 v{vT1}, v{vL}, 3, 2""")
        for ct in range(4):
            s(f"""v_xor_b32 v{vT2}, {ct}, v{vT1}
            v_lshl_add_u32 v{vRB + ct}, v{vT2}, 5, v{vT0}
            v_add_u32 v{vRB + 4 + ct}, 0x10000, v{vRB + ct}
            v_add_u32 v{vRB + 8 + ct}, 0x20000, v{vRB + ct}""")
        s(f"""v_bfe_u32 v{vT0}, v{vL}, 1, 2
        v_lshrrev_b32 v{vT1}, 4, v{vL}
        v_xor_b32 v{vTMP + 2}, v{vT0}, v{vT1}
        v_and_b32 v{vT1}, 1, v{vL}
        v_lshlrev_b32 v{vT1}, 4, v{vT1}
        v_lshl_add_u32 v{vTMP + 1}, v{vTMP + 2}, 5, v{vT1}""")
        vXB = (vFLG, vONE)
        aONE = 252
        s(f"""v_lshrrev_b32 v{vT0}, 5, v{vL}
        v_bfe_u32 v{vT1}, v{vL}, 3, 2
        v_lshl_add_u32 v{vT0}, v{vT0}, 3, v{vT1}
        s_and_b32 s{sT0}, s{sW}, 1
        s_lshl_b32 s{sT0}, s{sT0}, 4
        s_lshr_b32 s{sT1}, s{sW}, 1
        s_lshl_b32 s{sT1}, s{sT1}, 2
        s_add_u32 s{sT0}, s{sT0}, s{sT1}
        v_add_u32 v{vTMP + 3}, s{sT0}, v{vT0}
        v_mul_u32_u24 v{vDM}, 9216, v{vTMP + 3}
        v_add_u32 v{vDM}, v{vDM}, v{vTMP + 1}
        s_mov_b32 s{sNK}, {f32(-K0P)}
        s_mov_b32 s{sMASK}, 0
        s_mov_b32 s{sMASK + 1}, -1
        s_mov_b32 s{sINC}, {32 * 9216}
        v_bfe_u32 v{vT0}, v{vL}, 1, 3
        v_lshrrev_b32 v{vT1}, 4, v{vL}
        v_xor_b32 v{vT0}, v{vT0}, v{vT1}
        v_and_b32 v{vT2}, 7, v{vL}
        v_lshl_add_u32 v{vT0}, v{vT2}, 3, v{vT0}
        v_lshl_add_u32 v{vT0}, v{vT0}, 4, s{sM0W}
        v_bfe_u32 v{vT2}, v{vL}, 3, 1
        v_mul_u32_u24 v{vT2}, {SLOT}, v{vT2}
        v_add_u32 v{vXB[0]}, v{vT0}, v{vT2}
        v_xor_b32 v{vXB[1]}, 64, v{vXB[0]}
        v_and_b32 v{vT0}, 15, v{vL}
        v_lshlrev_b32 v{vT1}, 2, v{vT1}
        v_sub_u32 v{vT0}, v{vT0}, v{vT1}
        v_mov_b32 v{vT1}, 0x3f803f80""")
        for j in range(4):
            s(f"v_cmp_eq_u32 s[{sDG + 2 * j}:{sDG + 2 * j + 1}], {j}, v{vT0}\nv_accvgpr_write_b32 a{aONE + j}, v{vT1}")
        if not early:
            s(kvpf)
        s(f"s_cmp_eq_u32 s{sROLE}, 0\ns_cbranch_scc1 L_ln")
        self.p1pre()
        s = self.seg("ln")
        s("L_ln:")
        xfirst(NUP, n2)
        NUP = n2
        if tlb or spf:
            s("s_waitcnt lgkmcnt(0)")
        pf1, pf2 = [], []
        if self.wpf and not early:
            pf1.append([Ins(f"buffer_load_dword v{vT3}, v{vT2}, {srd(sKV)}, s{sT2} offen", tag="pf")])
            for i in range(npf if self.o.get("vpf", 1) else 0):
                pf1.append([Ins(f"s_add_u32 s{sT0}, s{sC0}, {i * self.pfstep * 9216}"),
                            Ins(f"buffer_load_dword v{vT3}, v{vPF}, {srd(sPF)}, s{sT0} offen", tag="pf")])
        if self.wpf and self.o.get("qpf", 1) == 2:
            for i in range(npf):
                pf1.append([Ins(f"s_lshr_b32 s{sT1}, s{sW}, 1"), Ins(f"s_mul_i32 s{sT1}, s{sT1}, 140"), Ins(f"s_add_u32 s{sT1}, s{sT1}, {i * self.pfstep * 1152}"),
                            Ins(f"s_cmp_eq_u32 s{sROLE}, 0"), Ins(f"s_cselect_b32 s{sT1}, {OOB}, s{sT1}"),
                            Ins(f"buffer_load_dword v{vT3}, v{vPOL}, {srd(sQ)}, s{sT1} offen", tag="pf")])
        self.pf2 = lambda col: [x for i in range(npf) for x in (Ins(f"s_mov_b32 s{sT0}, {col + i * self.pfstep * 9216}"),
                                                                 Ins(f"buffer_load_dword v{vT3}, v{vPF}, {srd(sPF)}, s{sT0} offen", tag="pf"))]
        wl = []
        for st in range(3):
            for i in range(9):
                wl.append([Ins(f"s_add_u32 m0, s{sM0W}, {st * SLOT + 4096 * i}"),
                           Ins(f"s_mov_b32 s{sA}, s{sC0}" if (i == 0 and st % 2 == 0) else f"s_add_u32 s{sA}, s{sA}, s{sINC}"),
                           Ins(f"buffer_load_dwordx4 v{vDM}, {srd(sG if st < 2 else sU)}, s{sA} offen lds", tag=f"st{st}", need=[f"lds:xr{st // 2}"])])
        pfpos = max(NUP, self.o.get("pfpos", len(xl)))
        g0 = self.o.get("g0", 0)
        w1 = self.o.get("w1", 18)
        wskip = self.o.get("wskip", 0)
        q0 = xl[NUP:pfpos] + (wl[:g0] if pfpos == len(xl) else []) + pf1 + xl[pfpos:]
        vSU, vGR, vK = 32, 36, 2

        def xread(u, c, hh):
            return Ins(f"ds_read_b128 {vr(vRAW + 4 * (2 * c + hh))}, v{vXB[hh]} offset:{4096 * c}", tag=f"xr{u}", need=[f"x{9 * u + c}"])

        def xwait(u, c):
            return Ins("s_waitcnt vmcnt(63)", auto=[f"x{9 * u + c}"])

        def vmop(s, q, pad):
            s.extend(q[:-1])
            if pad and len(q) == 2 and "m0" in q[0].wr:
                s("s_nop 0")
            s.add(q[-1])

        for u in range(2):
            queue = q0 if u == 0 else [None] * wskip + wl[g0:w1]
            if u == 0:
                for c in range(2):
                    s.add(xwait(0, c))
                    s.extend([xread(0, c, 0), xread(0, c, 1)])
                    if c == 0:
                        self.stamp(s, 10)
            s(f"s_waitcnt lgkmcnt({0 if (u == 1 and nsb > 1) else 2})")
            for c in range(9):
                for hh in range(2):
                    n = 2 * c + hh
                    r, lo = vRAW + 4 * n, vLO + 4 * n
                    s(f"v_mfma_f32_16x16x32_bf16 {vr(vSU)}, {ar(aONE)}, {vr(r)}, {'0' if n == 0 else vr(vSU)}")
                    if hh == 0 and c + 2 < 9:
                        s.add(xwait(u, c + 2))
                        s.add(xread(u, c + 2, 0))
                    if hh == 1 and queue:
                        q = queue.pop(0)
                        if q:
                            vmop(s, q, True)
                    for j in range(4):
                        s(f"v_lshlrev_b32 v{lo + j}, 16, v{r + j}")
                    s(f"v_mfma_f32_16x16x32_bf16 {vr(vGR)}, {vr(r)}, {vr(r)}, {'0' if n == 0 else vr(vGR)}")
                    if hh == 0:
                        q = queue.pop(0) if queue else None
                        if q:
                            s.extend(q[:-1])
                        if c + 2 < 9:
                            s.add(xread(u, c + 2, 1))
                        elif q and len(q) == 2:
                            s("s_nop 0")
                        if q:
                            s.add(q[-1])
                    elif c < 8:
                        s(f"s_waitcnt lgkmcnt({2 if c + 2 < 9 else 0})")
                    for j in range(4):
                        s(f"v_and_b32 v{r + j}, 0xffff0000, v{r + j}")
            self.stamp(s, 11 + 2 * u)
            if u == 0:
                s(f"v_add_u32 v{vXB[0]}, {2 * SLOT}, v{vXB[0]}\nv_add_u32 v{vXB[1]}, {2 * SLOT}, v{vXB[1]}\ns_nop 1")
            else:
                assert not queue
                queue = wl[w1:]
                s(f"""s_cmp_eq_u32 s{sROLE}, 0
                s_cbranch_scc1 L_nokv""")
                k = self.seg("kvdma")
                for i in range(5):
                    k(f"s_add_u32 m0, s{sM0W}, {3 * SLOT + 4096 * i}")
                    k(f"s_mov_b32 s{sT0}, {4608 * i}")
                    k(f"buffer_load_dwordx4 v{vKD}, {srd(sKV)}, s{sT0} offen lds", tag="kvimg", need=["lds:xr1"])
                s = self.seg("ln2")
                s("L_nokv:\ns_nop 1")
            sbatch(1 + u)
            s(f"v_cndmask_b32 v{vGR}, 0, v{vGR}, s[{sDG}:{sDG + 1}]")
            for j in range(1, 4):
                s(f"v_cndmask_b32 v{vGR}, v{vGR}, v{vGR + j}, s[{sDG + 2 * j}:{sDG + 2 * j + 1}]")
            s(f"""v_mov_b32 v{vGR + 1}, v{vGR}
            v_mul_f32 v{vSU}, {f32(1 / 576)}, v{vSU}
            s_nop 0
            v_permlane16_swap_b32 v{vGR}, v{vGR + 1}
            v_add_f32 v{vGR}, v{vGR}, v{vGR + 1}
            v_mov_b32 v{vGR + 1}, v{vGR}
            v_mul_f32 v{vSU + 1}, v{vSU}, v{vSU}
            s_nop 0
            v_permlane32_swap_b32 v{vGR}, v{vGR + 1}
            v_add_f32 v{vGR}, v{vGR}, v{vGR + 1}
            v_mul_f32 v{vGR}, {f32(1 / 576)}, v{vGR}
            v_sub_f32 v{vGR}, v{vGR}, v{vSU + 1}
            v_max_f32 v{vGR}, 0, v{vGR}
            v_add_f32 v{vGR}, {f32(1e-5)}, v{vGR}
            v_rsq_f32 v{vGR}, v{vGR}
            s_nop 0
            v_mul_f32 v{vK}, {f32(ALPHA)}, v{vGR}
            v_mul_f32 v{vK + 1}, v{vK}, -v{vSU}""")
            for n in range(18):
                r, lo = vRAW + 4 * n, vLO + 4 * n
                k = vr(vK, 2)
                lim = 16 if u == 0 else 18
                while queue and (n % 2 == 0 or len(queue) > (lim - n) // 2):
                    vmop(s, queue.pop(0), True)
                    if len(queue) < lim - n:
                        break
                if u == 0 and n == 16:
                    assert not queue
                    s.add(xwait(1, 1))
                    s.extend([xread(1, c, hh) for c in range(2) for hh in range(2)])
                for j in (0, 2):
                    s(f"v_pk_fma_f32 {vr(lo + j, 2)}, {vr(lo + j, 2)}, {k}, {k} op_sel:[0,0,1] op_sel_hi:[1,0,1]")
                    s(f"v_pk_fma_f32 {vr(r + j, 2)}, {vr(r + j, 2)}, {k}, {k} op_sel:[0,0,1] op_sel_hi:[1,0,1]")
                for j in range(4):
                    s(f"v_cvt_pk_bf16_f32 v{lo + j}, v{lo + j}, v{r + j}")
                for j in range(4):
                    s(f"v_accvgpr_write_b32 a{aXN + 4 * (18 * u + n) + j}, v{lo + j}")
            assert not queue
            self.stamp(s, 12 + 2 * u)
        s(f"""v_mov_b32 v{vT1}, {OOB}
        v_cmp_eq_u32 vcc, 0, v{vL}
        v_mov_b32 v{vONE}, 1
        s_nop 0
        v_cndmask_b32 v{vFLG}, v{vT1}, 0, vcc""")
        if nsb > 2:
            s("s_waitcnt lgkmcnt(0)")
        self.stamp(s, 1)
        s(f"""s_cmp_lg_u32 s{sROLE}, 0
        s_cbranch_scc1 L_p1""")

    def stamp0(self, s):
        if not self.stamps:
            return
        s(f"""s_memtime s[58:59]
        s_waitcnt lgkmcnt(0)
        v_writelane_b32 v0, s58, 38
        v_writelane_b32 v0, s96, 0
        v_writelane_b32 v0, s98, 1""")

    def p0(self):
        tl = Timeline()
        xb = lambda h: (lambda u, i: xn(u, 9 * h + i))
        for st, (acc, h) in enumerate(((vG, 0), (vG, 1), (vU, 0), (vU, 1), (vG, 0), (vG, 1))):
            self.std_mfmas(tl, 4 * st, 72 * st, acc, xb(h), h == 0)
            tl.put_reads(self.std_reads(4 * st, 72 * st, st % 4, f"r{st % 4}"))
            if st:
                self.barrier(tl, 72 * st - DD, [f"st{st % 4}"], f"r{(st - 1) % 4}")
        for st in range(3, 9):
            sl = st % 4
            first = [f"s_mov_b32 s{sDM}, s{pG if sl < 2 else pU}", f"s_mov_b32 s{sDM + 1}, s{(pG if sl < 2 else pU) + 1}"] if sl % 2 == 0 else None
            self.dmas(tl, st, vDM, first, f"s{sINC}", f"st{sl}")
        tl.gap(306).mem.append(Ins(f"buffer_load_dword v{vPOL}, off, {srd(sDBG)}, s{sPOL} sc1", tag="poll"))
        e = self.shadows(tl, 360, [f"s_mov_b32 s{sINC}, s{sINN}", f"s_mov_b32 s{sDM + 2}, s{sNRN}"])
        assert e <= 365
        tl.gap(362).valu.append(Ins(f"v_mov_b32 v{vDM}, v{vDN}"))
        self.shadows(tl, 120, [f"s_add_u32 s{sHI}, s{sHI}, 16", f"s_and_b32 s{sHI}, s{sHI}, 127", f"s_add_u32 s{sIT}, s{sIT}, 1",
                               (f"s_add_u32 s{pG}, s{pG}, 128", f"s_addc_u32 s{pG + 1}, s{pG + 1}, 0"),
                               (f"s_cmp_eq_u32 s{sIT}, 6", f"s_cselect_b32 s{sPOL}, s{sT3}, {OOB}")])
        self.shadows(tl, 224, [(f"s_add_u32 s{pU}, s{pU}, 128", f"s_addc_u32 s{pU + 1}, s{pU + 1}, 0")])
        tl.gap(287).shadow.append(Ins(f"s_cmp_lt_u32 s{sIT}, 7"))
        V = self.gelu_items(0, 85, 371, True, vH)
        pk = dict(ahead=12, pack=self.o["pack"], lagmax=4.0) if "pack" in self.o else {}
        tl.fill(85, 288, V, **pk)
        state = {"V": [i.ins[0].text for i in V]}
        tl.fill(288, 373, V, flush=10 ** 9, **pk)
        for p in range(288, 373):
            tl.g[p - 288] = tl.g[p]
        pre = [(p, m) for p in range(262, 268) for m in tl.gap(p).mem if m.kind == "lds"]
        state["out"] = tl.insert_lgkm_waits(268, 288, pre)
        tl.insert_lgkm_waits(0, 268, [(p - 288, m) for p, m in state["out"]])
        prew = [m for m in tl.gap(268).mem if m.kind == "lds"]
        prew += [m for p in range(269, 288) for m in tl.gap(p).ins() if m.kind == "lds" or (m.kind == "wait" and m.lg is not None)]
        s = self.seg("p0pre")
        if self.wpf:
            for c in range(self.o.get("npf0", 1)):
                s.extend(self.pf2(256 + 128 * c))
            if self.o.get("qpf", 1) == 3:
                for i in range(self.npf):
                    s(f"s_lshr_b32 s{sT1}, s{sW}, 1\ns_mul_i32 s{sT1}, s{sT1}, 140\ns_add_u32 s{sT1}, s{sT1}, {i * self.pfstep * 1152}")
                    s(f"buffer_load_dword v{vT3}, v{vPOL}, {srd(sQ)}, s{sT1} offen", tag="pf")
        s(f"""s_add_u32 s{pG}, s{sG}, 256
        s_addc_u32 s{pG + 1}, s{sG + 1}, 0
        s_add_u32 s{pU}, s{sU}, 256
        s_addc_u32 s{pU + 1}, s{sU + 1}, 0
        s_mov_b32 s{sIT}, {self.o.get("dbgskip", 0)}
        s_mov_b32 s{sHI}, 112
        s_mov_b32 s{sPOL}, {OOB}
        s_lshl_b32 s{sT3}, s{sR}, 2
        s_add_u32 s{sT3}, s{sT3}, 128
        s_mov_b32 s{sINN}, s{sINC}
        s_mov_b32 s{sNRN}, s{sDM + 2}
        v_mov_b32 v{vDN}, v{vDM}""")
        s("s_waitcnt vmcnt(63)", auto=["st0"])
        s("s_barrier", need=["st0"])
        s.extend(prew)
        s(".p2align 3")
        a = self.seg("aloop")
        a("L_aloop:")
        a.extend(tl.emit(0, 288))
        a("s_cbranch_scc1 L_aloop")
        a2 = self.seg("aexit")
        a2(f"""s_cmp_eq_u32 s{sIT}, 7
        s_cbranch_scc0 L_bstart""")
        w = self.seg("aswitch")
        w(f"""v_readfirstlane_b32 s{sT0}, v{vPOL}
        s_mov_b32 s{sT1}, 0
        s_cmp_ge_u32 s{sT0}, 8
        s_cbranch_scc1 L_hready""")
        sp = self.seg("hspin")
        sp(f"""L_hspin:
        s_sleep 4
        buffer_load_dword v{vPOL}, off, {srd(sDBG)}, s{sT3} sc1
        s_add_u32 s{sT1}, s{sT1}, 1
        s_waitcnt vmcnt(0)
        v_readfirstlane_b32 s{sT0}, v{vPOL}
        s_cmp_gt_u32 s{sT1}, 0x40000
        s_cbranch_scc1 L_end
        s_cmp_ge_u32 s{sT0}, 8
        s_cbranch_scc0 L_hspin""")
        w = self.seg("aswitch2")
        w(f"""L_hready:
        s_lshl_b32 s{sT0}, s{sR}, 3
        s_add_u32 s{sT0}, s{sT0}, s{sS}
        s_lshl_b32 s{sT1}, s{sT0}, 2
        s_add_u32 s{sT1}, s{sT1}, s{sW}
        s_lshl_b32 s{sT1}, s{sT1}, 12
        s_add_u32 s{sT1}, s{sT1}, {WS_HX}""")
        rest = f"""s_mov_b32 s{sINN}, {32 * 1152}
        s_mov_b32 s{sNRN}, {31 * 1152 + 128}
        s_lshl_b32 s{sC0}, s{sS}, 7
        s_add_u32 s{pG}, s{sD}, s{sC0}
        s_addc_u32 s{pG + 1}, s{sD + 1}, 0
        s_add_u32 s{sC0}, s{sC0}, 128
        s_and_b32 s{sC0}, s{sC0}, 1023
        s_add_u32 s{pU}, s{sD}, s{sC0}
        s_addc_u32 s{pU + 1}, s{sD + 1}, 0
        v_lshrrev_b32 v{vT0}, 3, v{vL}
        s_lshl_b32 s{sC1}, s{sW}, 3
        v_add_u32 v{vT0}, s{sC1}, v{vT0}
        v_mul_u32_u24 v{vT0}, 1152, v{vT0}
        v_add_u32 v{vDN}, v{vT0}, v{vTMP + 1}
        v_lshlrev_b32 v{vT0}, 9, v{vL}
        v_mov_b32 v{vT1}, {OOB}
        v_cmp_gt_u32 vcc, 8, v{vL}
        v_lshlrev_b32 v{vT2}, 3, v{vL}
        s_mul_i32 s{sT2}, s{sT0}, {9 * 16384}
        v_cndmask_b32 v{vT0}, v{vT1}, v{vT0}, vcc
        s_lshl_b32 s{sC1}, s{sW}, 12
        s_add_u32 s{sT2}, s{sT2}, s{sC1}
        s_add_u32 s{sT2}, s{sT2}, {WS_PART}
        s_mul_i32 s{sSTN}, s{sS}, {9 * 16384 - 512}
        s_sub_u32 s{sSTN}, s{sT2}, s{sSTN}
        s_lshl_b32 s{sT3}, s{sR}, 12
        s_lshl_b32 s{sC1}, s{sW}, 7
        s_add_u32 s{sT3}, s{sT3}, s{sC1}
        s_lshl_b32 s{sC1}, s{sS}, 2
        s_add_u32 s{sT3}, s{sT3}, s{sC1}
        s_add_u32 s{sT3}, s{sT3}, {WS_FLAG + 32}""".split("\n")
        for k in range(4):
            w(f"buffer_load_dwordx4 {ar(aH0 + 4 * k)}, v{vL16}, {srd(sWS)}, s{sT1} offen offset:{1024 * k} sc1", tag="h0")
            w("\n".join(rest[11 * k:11 * k + 11]))
        w("s_branch L_aloop")

        def hb(h):
            def f(u, i):
                k = 9 * h + i
                c, a_ = k // 2, k % 2
                if c == 0:
                    return ar(aH0 + 8 * a_ + 4 * u)
                return vr(vH + 16 * (c - 1) + 8 * a_ + 4 * u)
            return f

        def outv(base, tag):
            V = []
            for j in range(8):
                ct, u = j // 2, j % 2
                rel = base + 72 + 9 * j + 8 + 8
                dl = base + 144 + 9 * j - 1
                p = vU + 8 * (ct // 2) + 4 * u + 2 * (ct % 2)
                for e in range(2):
                    V.append(Item("v", Ins(f"v_cvt_pk_bf16_f32 v{p + e}, v{vG + 4 * j + 2 * e}, v{vG + 4 * j + 2 * e + 1}"), rel + e, rel, dl))
                st = lambda k, t: Item("m", Ins(f"buffer_store_dwordx4 {vr(vU + 4 * k)}, v{vL16}, {srd(sWS)}, s{sST} offen offset:{1024 * k} sc1", tag=tag), t + 1, t)
                if self.o.get("stg", 1):
                    if j >= 4:
                        V.append(st(j - 4, rel + (4 if j < 6 else 1)))
                elif ct % 2 == 1:
                    V.append(st(2 * (ct // 2) + u, rel + 1))
            return V

        tb = Timeline()
        fpos = self.o.get("fpos", 124)
        for st in range(8):
            h = st % 2
            self.std_mfmas(tb, 4 * st, 72 * st, vG, hb(h), h == 0)
            tb.put_reads(self.std_reads(4 * st, 72 * st, st % 4, f"r{st % 4}"))
            if st:
                self.barrier(tb, 72 * st - DD, [f"st{st % 4}"], f"r{(st - 1) % 4}")
        for st in range(3, 9):
            first = [f"s_mov_b32 s{sDM + 2}, s{sNRN}", f"s_add_u32 s{sDM}, s{sD}, s{sC0}", f"s_addc_u32 s{sDM + 1}, s{sD + 1}, 0"]
            self.dmas(tb, st, vDM, first if st % 2 == 0 else None, 32 * 1152, f"st{st % 4}")
        for step in range(3):
            base = 144 * step
            prev = f"part{(step - 1) % 2}"
            g = tb.gap(base + fpos)
            if g.bar:
                g.shadow[0].auto.append(prev)
            else:
                g.shadow.append(Ins("s_waitcnt vmcnt(63)", auto=[prev]))
            g.mem.append(Ins(f"buffer_store_dword v{vONE}, v{vFLG}, {srd(sWS)}, s{sFL} offen sc1", tag="flag", need=[f"old:{prev}/0"]))
            e = self.shadows(tb, base + 24, [f"s_add_u32 s{sT0}, s{sIT}, s{sS}", f"s_and_b32 s{sT1}, s{sT0}, 7",
                                             f"s_add_u32 s{sT0}, s{sT0}, 2", f"s_and_b32 s{sT0}, s{sT0}, 7",
                                             (f"s_cmp_lt_u32 s{sIT}, 6", f"s_cselect_b32 s{sT0}, s{sT0}, 8"),
                                             f"s_lshl_b32 s{sC0}, s{sT0}, 7",
                                             (f"s_cmp_lt_u32 s{sIT}, 7", f"s_cselect_b32 s{sNRN}, s{sNRN}, 0"),
                                             f"s_lshl_b32 s{sST}, s{sT1}, 14", f"s_add_u32 s{sST}, s{sST}, s{sT2}",
                                             f"s_mov_b32 s{sFL}, s{sFLN}", f"s_lshl_b32 s{sFLN}, s{sT1}, 9",
                                             f"s_add_u32 s{sFLN}, s{sFLN}, s{sT3}", f"s_add_u32 s{sIT}, s{sIT}, 1"])
            assert e < base + min(fpos, 76)
        tb.gap(287).shadow.append(Ins(f"s_cmp_eq_u32 s{sIT}, 8"))
        Vall = self.gelu_items(-288, 0, 1, False, vH + 112)
        nrem = sum(2 if t.startswith("v_cvt") else 1 for t in state["V"])
        V = Vall[len(Vall) - nrem:]
        assert V[0].ins[0].text == state["V"][0], (V[0].ins[0].text, state["V"][0])
        for c, i in enumerate(V):
            i.target = 82.0 * c / len(V)
            if i.ins[0].op.startswith("v_cvt"):
                u = ((int(i.ins[0].wr[0][1:]) - vH) // 4) % 2
                i.deadline = 72 + 7 + 9 * u - 2
        bstate = []
        o = [(p - 288, m) for p, m in state["out"]]
        for step in range(3):
            V += outv(144 * step, f"part{step % 2}")
            tb.fill(144 * step, 144 * step + 144, V)
            o = tb.insert_lgkm_waits(144 * step, 144 * step + 144, o)
            bstate.append(([i.ins[0].text for i in V], len(o)))
            if step == 1:
                nleft, o1 = len(V), list(o)
            for p in range(144 * step + 20, 144 * step + 90):
                assert not any(m.op.startswith("buffer_store_dwordx4") for m in tb.gap(p).mem)
        assert bstate[0][0] == bstate[2][0] and bstate[2][1] <= bstate[0][1], bstate
        te = Timeline()
        for st in (4, 5):
            self.std_mfmas(te, 4 * st, 72 * st, vG, hb(st % 2), st == 4)
            te.put_reads(self.std_reads(4 * st, 72 * st, st % 4, f"r{st % 4}"))
        self.barrier(te, 360 - DD, ["st1"], "r0")
        te.gap(288 + fpos).shadow.append(Ins("s_waitcnt vmcnt(63)", auto=["part1"]))
        te.gap(288 + fpos).mem.append(Ins(f"buffer_store_dword v{vONE}, v{vFLG}, {srd(sWS)}, s{sFLN} offen sc1", tag="flag", need=["part1"]))
        te.gap(300).shadow.append(Ins(f"s_add_u32 s{sT3}, s{sT3}, 32"))
        V = outv(144, "part1")[-nleft:]
        for j in range(8):
            ct, u = j // 2, j % 2
            rel = 360 + 9 * j + 8 + (4 if j < 4 else 8)
            te.gap(360 + 9 * j + 7).shadow.append(Ins(f"s_add_u32 s{sA + (j % 2)}, s{sSTN}, {((ct + 4 * u) * 9 + 8) * 16384}"))
            for e in range(2):
                V.append(Item("v", Ins(f"v_cvt_pk_bf16_f32 v{vGL + 2 * j + e}, v{vG + 4 * j + 2 * e}, v{vG + 4 * j + 2 * e + 1}"), rel, rel))
            V.append(Item("m", Ins(f"buffer_store_dwordx2 {vr(vGL + 2 * j, 2)}, v{vT2}, {srd(sWS)}, s{sA + (j % 2)} offen sc1", tag="part0"), rel + 1, rel + 1))
        te.fill(288, 432, V)
        te.insert_lgkm_waits(288, 432, o1)
        s = self.seg("b0")
        s(f"""L_bstart:
        s_mov_b32 s{sIT}, 0
        s_mov_b32 s{sFLN}, {OOB}""")
        self.stamp(s, 2)
        s.extend(tb.emit(0, 144))
        s(".p2align 3")
        bl = self.seg("bloop")
        bl("L_bloop:")
        bl.extend(tb.emit(144, 288))
        bl("s_cbranch_scc1 L_blast")
        bl = self.seg("bloop2")
        bl.extend(tb.emit(288, 432))
        bl("s_branch L_bloop\n.p2align 3")
        e = self.seg("bend")
        e("L_blast:")
        e.extend(te.emit(288, 432))
        e("s_nop 6")
        for it in V:
            e.extend(it.ins)
        self.stamp(e, 3)
        e("s_waitcnt vmcnt(0)")
        e(f"buffer_store_dword v{vONE}, v{vT0}, {srd(sWS)}, s{sT3} offen sc1", need=["part0", "part1"])
        self.stamp(e, 4, True)
        self.stamp_flush(e)
        e("s_endpgm")

    def text(self):
        head = open("cdna_kernels/" + NAME + ".s.ref").read()
        lines = head.split("\n")
        top = [l for l in lines if l.startswith(";") and "@launch" not in l and "Override" not in l and "grid=ceil" not in l]
        out = "\n".join(top) + "\n; @launch grid=(256,1,1) block=(256,1,1) lds=163840\n"
        out += f""".amdgcn_target "amdgcn-amd-amdhsa--gfx950"
.text
.globl {NAME}_kernel
.p2align 8
.type {NAME}_kernel,@function
{NAME}_kernel:
"""
        for s in self.segs:
            out += f"; ---- {s.name}\n" + s.text()
        out += f"""L_end:
    s_endpgm
.section .rodata,"a"
.p2align 6
.amdhsa_kernel {NAME}_kernel
  .amdhsa_next_free_vgpr 512
  .amdhsa_next_free_sgpr 102
  .amdhsa_accum_offset 256
  .amdhsa_group_segment_fixed_size 0
  .amdhsa_kernarg_size 96
  .amdhsa_user_sgpr_count 2
  .amdhsa_user_sgpr_kernarg_segment_ptr 1
  .amdhsa_system_sgpr_workgroup_id_x 1
.end_amdhsa_kernel
"""
        return out

    def trace(self, names):
        d = {s.name: s for s in self.segs}
        t = []
        for n in names:
            if n in d:
                t += d[n].ins
            else:
                assert n in ("pfe", "entry2"), n
        return t
```

```python
from asmlib import Ins

LAT = 6


class Gap:
    __slots__ = ("shadow", "bar", "mem", "valu", "post", "nreads")

    def __init__(self):
        self.shadow = []
        self.bar = []
        self.mem = []
        self.valu = []
        self.post = []
        self.nreads = 0

    def used(self):
        u = sum(5 if m.op.startswith("buffer_store_dwordx4") else 1 for m in self.mem)
        u += sum(v.cost() // 4 for v in self.valu) + len(self.post) + max(0, len(self.shadow) - 1)
        return u

    def ins(self):
        return self.shadow + self.bar + self.mem + self.valu + self.post


class Item:
    def __init__(self, kind, ins, target, earliest=-10 ** 9, deadline=10 ** 9, pre=None, post=None):
        self.kind = kind
        self.ins = ins if isinstance(ins, list) else [ins]
        self.target = target
        self.earliest = earliest
        self.deadline = deadline
        self.pre = pre
        self.post = post
        self.pos = None

    def cost(self):
        if self.kind in ("r", "m"):
            return 1
        return sum(i.cost() // 4 for i in self.ins) + (1 if self.post else 0)


class Timeline:
    def __init__(self):
        self.g = {}
        self.m = {}

    def gap(self, p):
        if p not in self.g:
            self.g[p] = Gap()
        return self.g[p]

    def place(self, it, p):
        g = self.gap(p)
        it.pos = p
        assert it.earliest <= p <= it.deadline, (it.ins[0].text, it.earliest, p, it.deadline)
        if it.kind == "r":
            g.mem.insert(g.nreads, it.ins[0])
            g.nreads += 1
        elif it.kind == "m":
            g.mem.extend(it.ins)
        else:
            if it.pre:
                g.shadow.append(it.pre)
            g.valu.extend(it.ins)
            if it.post:
                g.post.append(it.post)

    def put_reads(self, R):
        for it in R:
            self.place(it, int(it.target))

    def fill(self, p0, p1, V, ahead=2, lagmax=1.0, flush=None, pack=None):
        for p in range(p0, p1):
            g = self.gap(p)

            def ok(it):
                if it.earliest > p or g.post or (g.bar and it.deadline > p + 8):
                    return False
                if it.kind == "x":
                    return not g.shadow and not g.valu and not g.bar and len(g.mem) == g.nreads
                if it.kind == "m":
                    return not g.valu
                return True

            if pack is not None and V and p > p0:
                h = self.gap(p - 1)
                if (h.nreads == 1 and len(h.mem) == 1 and len(h.valu) == 1 and h.valu[0].kind == "trans" and not h.bar and
                        g.nreads == 1 and len(g.mem) == 1 and not g.valu and not g.bar and p - V[0].target < pack and V[0].deadline > p + 30):
                    g.mem.insert(0, h.mem.pop())
                    h.nreads, g.nreads = 0, 2
                    continue
            n = 0
            while V and n < 6:
                it = V[0]
                if not ok(it):
                    if it.kind == "x" and len(V) > 1 and V[1].kind == "v" and ok(V[1]) and g.used() < 2 and \
                            not (set(V[1].ins[0].wr) & set(r for i in it.ins for r in i.rd)):
                        V[0].target, V[1].target = V[1].target, V[0].target
                        self.place(V.pop(1), p)
                    break
                room = 2 - g.used()
                must = max((k + 1 - 1.0 * (x.deadline - p) for k, x in enumerate(V[:60])), default=0) > 0
                if flush is not None and sum(1 for x in V if x.target < flush) > (p1 - 1 - p):
                    must = True
                lag = p - it.target
                if must or (room >= 1 and lag > -ahead) or (room >= 0 and lag >= lagmax and it.cost() == 1):
                    self.place(V.pop(0), p)
                    n += 1
                else:
                    break
        if flush is not None:
            assert not any(x.target < flush for x in V), ("unflushed", V[0].ins[0].text, V[0].target, p1)

    def insert_lgkm_waits(self, p0, p1, issued_before):
        seq = list(issued_before)
        done = 0
        start_idx = {}
        lastwait = p0 - 1
        for p in range(p0, p1):
            g = self.gap(p)
            start_idx[p] = len(seq)
            for s in g.shadow + g.bar:
                if s.kind == "wait" and s.lg is not None:
                    done = max(done, len(seq) - s.lg)
                    lastwait = p
            for m in g.mem:
                if m.kind == "lds":
                    seq.append((p, m))
            nxt = self.m.get(p + 1)
            if nxt is None:
                continue
            need = 0
            rd = set(nxt.rd)
            for k in range(done, len(seq)):
                if rd & set(seq[k][1].wr):
                    need = k + 1
            if need > done:
                rg = seq[need - 1][0]
                q = None
                for c in range(p, max(rg + LAT - 1, lastwait, p0 - 1), -1):
                    if not self.gap(c).shadow:
                        q = c
                        break
                if q is None:
                    q = p
                if rg >= q:
                    n = len(seq) - need
                    self.gap(p).post.append(Ins(f"s_waitcnt lgkmcnt({min(n, 15)})"))
                    done = len(seq) - min(n, 15)
                else:
                    cover = need
                    for k in range(need, start_idx[q]):
                        if seq[k][0] <= q - LAT:
                            cover = k + 1
                    n = min(start_idx[q] - cover, 15)
                    self.gap(q).shadow.insert(0, Ins(f"s_waitcnt lgkmcnt({n})"))
                    done = start_idx[q] - n
                lastwait = q
        return seq[done:]

    def emit(self, p0, p1, first_mfma=True):
        out = []
        for p in range(p0, p1):
            if p in self.m and (first_mfma or p > p0):
                out.append(self.m[p])
            out.extend(self.gap(p).ins())
        return out
```

```python
from gen import *

vQ1, vQ2 = 96, 112
vS_, vO_, vH1 = 32, 128, 192
aK1, aK2, aV_ = 216, 224, 232
aKV = 216
vKVA, vEX = 192, 32
(vEP, vKR, vINB, vQM, vQX, vRX, vDP, vKA, vK2A, vVA, vIDX, vWM, vWX, vWN, vWNX, vXN, vPD, vOE, vFO, vBA, vXNA, vOA, vRN, vOL,
 vAND, vOR, vZ) = range(209, 236)
vL8 = 246
vSEL = 236
vXB, vXE = 248, 252
XRES, XRESN = 94208, 151552
sXL, sXN, sPB, sPG, sK2, sK1, sKS, sOM, sOF, sHA, sSK = 48, 49, 50, 51, 68, 69, 70, 71, 0, 1, 3
sRDY, sTODO, sLST, sOM0, sOM1, sRO = 60, 61, 62, 63, 64, 65
MSK = f"s[{sMASK}:{sMASK + 1}]"
MK2 = f"s[{sMK2}:{sMK2 + 1}]"


class Gen1(Gen):
    def spin(self, name, mask, lim="0x40000"):
        s = self.seg(name)
        s(f"""s_mov_b32 s{sT1}, 0
        L_{name}:
        buffer_load_dword v{vPOL}, v{vINB}, {srd(sWS)}, s{sFL} offen sc1
        s_add_u32 s{sT1}, s{sT1}, 1
        s_cmp_gt_u32 s{sT1}, {lim}
        s_cbranch_scc1 L_end
        s_waitcnt vmcnt(0)
        v_cmp_eq_u32 vcc, 0, v{vPOL}
        s_nop 1
        s_and_b64 vcc, vcc, {mask}
        s_cbranch_scc1 L_{name}""")

    def oolspin(self, name, mask):
        self.seg(name + "_a")(f"L_{name}_in:")
        self.spin(name, mask)
        self.seg(name + "_b")(f"s_branch L_{name}_out")

    def p1pre(self):
        s = self.seg("p1pre")
        A, B, Cc, Dd, T, G_, OB = 192, 193, 194, 195, 196, 197, 198
        a, b, c, d = sT0, sT1, sT3, sA
        s(f"""v_and_b32 v{T}, 15, v{vL}
        v_lshrrev_b32 v{G_}, 4, v{vL}
        v_mov_b32 v{OB}, {OOB}
        v_mov_b32 v{vZ}, 0
        v_mov_b32 v{vIDX}, 0xdddddddd""")
        s(f"""v_lshrrev_b32 v{A}, 1, v{vL}
        v_mul_u32_u24 v{B}, 36, v{A}
        v_and_b32 v{Dd}, 1, v{vL}
        v_lshl_add_u32 v{B}, v{Dd}, 4, v{B}
        s_and_b32 s{a}, s{sS}, 1
        s_lshl_b32 s{a}, s{a}, 5
        s_mul_i32 s{b}, s{sW}, 1152
        s_add_u32 s{a}, s{a}, s{b}
        v_add_u32 v{vKD}, s{a}, v{B}
        v_mul_u32_u24 v{A}, 1152, v{A}
        v_lshl_add_u32 v{A}, v{Dd}, 4, v{A}
        v_cndmask_b32 v{vXN}, v{A}, v{OB}, {MSK}
        v_bfe_u32 v{A}, v{vL}, 2, 2
        v_lshl_add_u32 v{A}, v{G_}, 3, v{A}
        v_and_b32 v{B}, 3, v{vL}
        v_lshlrev_b32 v{Cc}, 3, v{B}
        v_lshl_add_u32 v{Cc}, v{A}, 5, v{Cc}
        v_add_u32 v{vKR}, {3 * SLOT}, v{Cc}
        v_add_u32 v{Cc}, v{Cc}, v{Cc}
        v_add_u32 v{vRX}, {2 * SLOT}, v{Cc}
        v_lshrrev_b32 v{A}, 2, v{vL}
        v_lshlrev_b32 v{Cc}, 5, v{A}
        v_lshl_add_u32 v{Cc}, v{B}, 3, v{Cc}
        v_add_u32 v{vRN}, {2 * SLOT}, v{Cc}
        s_lshl_b32 s{a}, s{sW}, 4
        v_add_u32 v{A}, s{a}, v{A}
        v_mul_u32_u24 v{A}, 1152, v{A}
        v_mul_u32_u24 v{B}, 36, v{B}
        v_add3_u32 v{vQX}, v{A}, v{B}, 32
        v_mul_u32_u24 v{A}, 1152, v{vTMP + 3}
        v_mul_u32_u24 v{B}, 36, v{vTMP + 2}
        v_lshlrev_b32 v{Cc}, 4, v{Dd}
        v_add3_u32 v{vQM}, v{A}, v{B}, v{Cc}
        v_and_b32 v{A}, 7, v{vL}
        v_lshlrev_b32 v{vDP}, 2, v{A}
        v_lshlrev_b32 v{A}, 2, v{vL}
        v_cndmask_b32 v{vINB}, v{A}, v{OB}, {MSK}""")
        s(f"""s_bitcmp1_b32 s{sS}, 1
        s_cselect_b32 s{a}, 5, 8
        s_cselect_b32 s{sKS}, 1.0, {f32(CK)}
        s_lshl_b32 s{a}, s{a}, 6
        v_lshrrev_b32 v{A}, 5, v{vL}
        v_mul_u32_u24 v{A}, s{a}, v{A}
        v_lshl_add_u32 v{A}, v{T}, 4, v{A}
        v_and_b32 v{B}, 1, v{G_}
        v_lshl_add_u32 v{A}, v{B}, 3, v{A}
        s_and_b32 s{a}, s{sS}, 3
        s_cmp_eq_u32 s{a}, 1
        s_cselect_b32 s{b}, 16, 64
        v_cmp_gt_u32 vcc, s{b}, v{vL}
        s_cmp_eq_u32 s{a}, 3
        s_cselect_b32 s{b}, 4, 16
        s_cselect_b32 s{c}, 2, 16
        v_cndmask_b32 v{A}, v{OB}, v{A}, vcc
        v_cmp_gt_u32 vcc, s{b}, v{T}
        v_mov_b32 v{B}, 0x3f803f80
        s_lshr_b32 s{b}, s{sR}, 1
        v_cndmask_b32 v{vEP}, v{OB}, v{A}, vcc
        v_cmp_gt_u32 vcc, s{c}, v{T}
        s_lshl_b32 s{d}, s{b}, 2
        s_mul_i32 s{b}, s{b}, {KVST}
        v_cndmask_b32 v{vAND}, 0, -1, vcc
        v_cmp_eq_u32 vcc, s{c}, v{T}
        s_cmp_eq_u32 s{sW}, 0
        s_cselect_b32 s{sPOL}, s{d}, {OOB}
        v_cndmask_b32 v{vOR}, 0, v{B}, vcc
        s_lshl_b32 s{d}, s{sR}, 2
        s_add_u32 s{d}, s{d}, 128
        s_cmp_eq_u32 s{sW}, 0
        s_cselect_b32 s{sHA}, s{d}, {OOB}
        s_and_b32 s{c}, s{sR}, 1
        s_mul_i32 s{sK1}, s{c}, 640
        s_lshl_b32 s{c}, s{c}, 2
        s_add_u32 s{c}, s{c}, s{sW}
        s_lshr_b32 s{d}, s{sS}, 2
        s_lshl_b32 s{sK2}, s{c}, 1
        s_add_u32 s{sK2}, s{sK2}, s{d}
        s_mul_i32 s{sK2}, s{sK2}, 640
        s_add_u32 s{sK2}, s{sK2}, 8192
        s_lshl_b32 s{d}, s{d}, 8
        s_add_u32 s{sK1}, s{sK1}, s{d}
        s_lshl_b32 s{c}, s{c}, 10
        s_add_u32 s{c}, s{c}, s{d}
        s_bitcmp1_b32 s{sS}, 1
        s_cselect_b32 s{sK2}, s{sK2}, s{c}
        s_and_b32 s{c}, s{sS}, 1
        s_lshl_b32 s{c}, s{c}, 8
        s_add_u32 s{sK2}, s{sK2}, s{c}
        s_add_u32 s{sK2}, s{sK2}, s{b}
        s_lshl_b32 s{c}, s{sW}, 2
        s_add_u32 s{sK1}, s{sK1}, s{c}
        s_add_u32 s{sK1}, s{sK1}, s{b}
        s_add_u32 s{sK1}, s{sK1}, 18432
        s_cmp_eq_u32 s{a}, 1
        s_cselect_b32 s{sK1}, s{sK1}, {OOB}
        s_cselect_b32 s{sK2}, {OOB}, s{sK2}""")
        s(f"""s_lshl_b32 s{a}, s{sR}, 3
        s_add_u32 s{a}, s{a}, s{sS}
        s_lshl_b32 s{a}, s{a}, 2
        s_add_u32 s{a}, s{a}, s{sW}
        s_lshl_b32 s{sFL}, s{a}, 7
        s_add_u32 s{sFL}, s{sFL}, {WS_FLAG}
        s_lshl_b32 s{sST}, s{a}, 12
        s_add_u32 s{sST}, s{sST}, {WS_HX}
        s_mul_i32 s{a}, s{sS}, 508
        s_sub_u32 s{sOF}, s{sFL}, s{a}
        s_lshl_b32 s{a}, s{sR}, 2
        s_add_u32 s{a}, s{a}, s{sW}
        s_mul_i32 s{sOM}, s{a}, 36864
        s_add_u32 s{sOM}, s{sOM}, {WS_OM}
        s_mul_i32 s{sC1}, s{sW}, 5120
        s_lshl_b32 s{a}, s{sW}, 12
        s_add_u32 s{sXL}, s{a}, {XRES}
        s_mul_i32 s{sPB}, s{sR}, {8 * 9 * 16384}
        s_add_u32 s{sPB}, s{sPB}, s{a}
        s_add_u32 s{sPB}, s{sPB}, {WS_PART}
        s_lshr_b32 s{b}, s{sS}, 2
        s_mul_i32 s{a}, s{sS}, {9 * 16384}
        s_add_u32 s{a}, s{a}, {8 * 16384}
        s_add_u32 s{sFLN}, s{sPB}, s{a}
        s_lshl_b32 s{a}, s{sS}, 14
        s_add_u32 s{sPB}, s{sPB}, s{a}
        s_and_b32 s{c}, s{sS}, 3
        s_lshl_b32 s{c}, s{c}, 5
        s_add_u32 s{c}, s{c}, 1024
        s_lshl_b32 s{a}, s{sW}, 1
        s_add_u32 s{a}, s{a}, s{b}
        s_mul_i32 s{a}, s{a}, 18432
        s_add_u32 s{sXN}, s{a}, s{c}
        s_lshl_b32 s{sPFO}, s{sE2}, 2
        s_add_u32 s{sPFO}, s{sPFO}, s{sW}
        s_mul_i32 s{sPFO}, s{sPFO}, {81 * self.C * 128}
        s_mov_b32 s{sPG}, 640
        s_mov_b32 s{sSK}, 0""")
        s(f"buffer_store_dword v{vZ}, v{vINB}, {srd(sWS)}, s{sFL} offen sc1", tag="kvst")
        self.nd = 1 if self.C <= 2 else 2
        self.dl = -(-81 * self.C // (4 * self.nd))
        s(f"""v_min_u32 v{A}, {self.dl - 1}, v{vL}
        v_lshlrev_b32 v{vPD}, 7, v{A}
        v_add_u32 v{vKA}, {KVS0}, v{vL16}
        v_add_u32 v{A}, {KVS0 + 18432}, v{vL16}
        v_mov_b32 v{B}, {KVS0 + 8192 + 288}
        v_cndmask_b32 v{vK2A}, v{A}, v{B}, {MSK}
        v_and_b32 v{A}, 31, v{vL}
        v_cmp_eq_u32 vcc, 22, v{A}
        v_min_u32 v{B}, 19, v{A}
        v_lshrrev_b32 v{A}, 5, v{vL}
        v_cndmask_b32 v{B}, v{B}, 18, vcc
        v_mul_u32_u24 v{Cc}, 320, v{A}
        v_lshl_add_u32 v{Cc}, v{B}, 4, v{Cc}
        v_add_u32 v{vVA}, {KVS0 + 8192}, v{Cc}""")
        s(f"""v_bfe_u32 v{B}, v{vL}, 3, 2
        v_mad_u32_u24 v{Cc}, v{A}, 18, v{B}
        s_lshl_b32 s{a}, s{sW}, 2
        v_add_u32 v{Cc}, s{a}, v{Cc}
        v_mul_u32_u24 v{Cc}, 1152, v{Cc}
        s_lshl_b32 s{d}, s{sS}, 7
        v_add3_u32 v{vWM}, v{Cc}, v{vTMP + 1}, s{d}
        v_lshrrev_b32 v{Cc}, 1, v{B}
        v_lshl_add_u32 v{B}, v{Cc}, 4, v{B}
        v_mul_u32_u24 v{Cc}, 72, v{A}
        s_and_b32 s{a}, s{sW}, 1
        s_mul_i32 s{a}, s{a}, 144
        s_lshr_b32 s{b}, s{sW}, 1
        s_mul_i32 s{b}, s{b}, 36
        s_add_u32 s{a}, s{a}, s{b}
        s_add_u32 s{a}, s{a}, 16
        v_add3_u32 v{Cc}, v{Cc}, v{B}, s{a}
        v_mul_u32_u24 v{Cc}, 1152, v{Cc}
        v_add3_u32 v{vWX}, v{Cc}, v{vTMP + 1}, s{d}""")
        s(f"""v_bfe_u32 v{B}, v{vL}, 1, 2
        v_bfe_u32 v{Cc}, v{vL}, 3, 1
        v_mad_u32_u24 v{Cc}, v{Cc}, 18, v{B}
        v_lshl_add_u32 v{Cc}, v{G_}, 2, v{Cc}
        s_mul_i32 s{a}, s{sW}, 36
        v_add_u32 v{Cc}, s{a}, v{Cc}
        v_mul_u32_u24 v{Cc}, 1152, v{Cc}
        v_lshl_add_u32 v{Cc}, v{Dd}, 4, v{Cc}
        v_add_u32 v{vWN}, s{c}, v{Cc}
        v_lshrrev_b32 v{Cc}, 1, v{B}
        v_lshl_add_u32 v{B}, v{Cc}, 4, v{B}
        v_bfe_u32 v{Cc}, v{vL}, 3, 2
        v_mul_u32_u24 v{Cc}, 72, v{Cc}
        v_add3_u32 v{B}, v{B}, v{Cc}, 16
        v_mad_u32_u24 v{B}, v{A}, 36, v{B}
        s_mul_i32 s{a}, s{sW}, 288
        v_add_u32 v{B}, s{a}, v{B}
        v_mul_u32_u24 v{B}, 1152, v{B}
        v_lshl_add_u32 v{B}, v{Dd}, 4, v{B}
        v_add_u32 v{vWNX}, s{c}, v{B}""")
        if self.o.get("cpf", 0) >= 2:
            s(f"""s_lshr_b32 s{a}, s2, 4
            s_lshl_b32 s{a}, s{a}, 2
            s_add_u32 s{a}, s{a}, s{sW}
            v_and_b32 v{A}, 7, v{vL}
            v_lshl_add_u32 v{A}, v{A}, 6, s{a}
            v_lshlrev_b32 v{A}, 7, v{A}
            v_min_u32 v{A}, L_end-L_pc, v{A}
            v_mov_b32 v{vXE + 1}, s101
            v_add_co_u32 v{vXE}, vcc, s100, v{A}
            s_nop 1
            v_addc_co_u32 v{vXE + 1}, vcc, 0, v{vXE + 1}, vcc""")
        s(f"""v_lshlrev_b32 v{A}, 2, v{G_}
        v_mul_u32_u24 v{B}, 18432, v{G_}
        v_lshl_add_u32 v{B}, v{T}, 4, v{B}
        v_cndmask_b32 v{vOE}, v{B}, v{OB}, {MSK}
        v_lshlrev_b32 v{vL8}, 3, v{vL}
        v_mov_b32 v{vXB}, -1
        v_mov_b32 v{vXB + 1}, -1
        v_mov_b32 v{vXB + 2}, -1
        v_mov_b32 v{vXB + 3}, -1
        v_lshlrev_b32 v{B}, 9, v{vL}
        v_cmp_gt_u32 vcc, 8, v{vL}
        v_lshlrev_b32 v{Cc}, 3, v{G_}
        v_add_u32 v{vOL}, s{sXL}, v{vL16}
        v_cndmask_b32 v{vFO}, v{OB}, v{B}, vcc
        v_lshl_add_u32 v{B}, v{T}, 7, v{Cc}
        v_and_b32 v{Dd}, 7, v{vL}
        v_lshlrev_b32 v{Dd}, 4, v{Dd}
        v_xor_b32 v{B}, v{B}, v{Dd}
        v_add_u32 v{vBA}, s{sXL}, v{B}
        v_xor_b32 v{vTMP + 1}, 32, v{vBA}
        v_xor_b32 v{vTMP + 2}, 64, v{vBA}
        v_xor_b32 v{vTMP + 3}, 96, v{vBA}
        v_lshrrev_b32 v{Dd}, 3, v{vL}
        v_lshlrev_b32 v{Dd}, 4, v{Dd}
        v_xor_b32 v{vTMP}, v{vTMP}, v{Dd}
        v_lshl_add_u32 v{B}, v{T}, 5, v{Cc}
        s_add_u32 s{a}, s{sM0W}, {XRESN}
        v_add_u32 v{vXNA}, s{a}, v{B}
        v_mul_u32_u24 v{B}, 1152, v{T}
        v_add_u32 v{vOA}, v{B}, v{Cc}
        v_sub_u32 v{A}, v{T}, v{A}
        v_and_b32 v{B}, 1, v{A}
        v_lshlrev_b32 v{B}, 4, v{B}
        v_mov_b32 v{Cc}, 0x3f80
        v_lshlrev_b32 v{Cc}, v{B}, v{Cc}
        v_lshrrev_b32 v{A}, 1, v{A}
        v_cmp_eq_u32 vcc, 0, v{A}
        v_mov_b32 v{vSEL}, 0
        v_mov_b32 v{vSEL + 1}, 0
        v_cndmask_b32 v{vSEL + 2}, 0, v{Cc}, vcc
        v_cndmask_b32 v{vSEL + 6}, 0, v{Cc}, vcc
        v_cndmask_b32 v{vSEL + 8}, 0, v{Cc}, vcc
        v_cmp_eq_u32 vcc, 1, v{A}
        v_mov_b32 v{vSEL + 4}, 0
        v_mov_b32 v{vSEL + 5}, 0
        v_cndmask_b32 v{vSEL + 3}, 0, v{Cc}, vcc
        v_cndmask_b32 v{vSEL + 7}, 0, v{Cc}, vcc
        v_cndmask_b32 v{vSEL + 9}, 0, v{Cc}, vcc""")

    def p1(self):
        tl = Timeline()
        xb = lambda h: (lambda u, i: xn(u, 9 * h + i))
        for st, (acc, h) in enumerate(((vG, 0), (vG, 1), (vU, 0), (vU, 1), (vG, 0), (vG, 1))):
            self.std_mfmas(tl, 4 * st, 72 * st, acc, xb(h), h == 0)
            tl.put_reads(self.std_reads(4 * st, 72 * st, st % 4, f"r{st}"))
        R = []
        for h in range(2):
            for u in range(2):
                for i in range(9):
                    c = vr(vEX + 4 * u)
                    tl.m[432 + 18 * h + 9 * u + i] = Ins(f"v_mfma_f32_16x16x32_bf16 {c}, {ar(frag(24 + h, i))}, {xn(u, 9 * h + i)}, {'0' if h == 0 and i == 0 else c}")
            for i in range(9):
                for hh in range(2):
                    ins = Ins(f"ds_read_b64_tr_b16 {ar(frag(24 + h, i) + 2 * hh, 2)}, v{vRX} offset:{2048 * (9 * h + i) + 256 * hh}", tag="r6")
                    g0 = 432 + 18 * h
                    R.append(Item("r", ins, 432 - DD + len(R), earliest=g0 - 27 + i, deadline=g0 + i - LAT - 1))
        tl.put_reads(R)
        arr = self.o.get("kvarr", 2)
        for st in range(1, 7):
            self.barrier(tl, 72 * st - DD, [("st1", "st2", "st3", "q0", "q1", "q2")[st - 1]] + (["kvst"] if st == arr else []), f"r{st - 1}")
        tl.gap(1).bar.append(Ins("s_barrier", need=["lds:kvfr"]))
        tl.gap(72 * arr - DD).mem.append(Ins(f"buffer_atomic_add v{vONE}, v{vFLG}, {srd(sDBG)}, s{sPOL} offen sc1", tag="arr"))
        self.dmas(tl, 3, vDM, None, f"s{sINC}", "st3")
        self.dmas(tl, 4, vQM, [f"s_mov_b32 s{sDM + 2}, {31 * 1152 + 140}", f"s_mov_b32 s{sDM}, s{sQ}", f"s_mov_b32 s{sDM + 1}, s{sQ + 1}"], 32 * 1152, "q0")
        self.dmas(tl, 5, vQM, None, 32 * 1152, "q1")
        self.dmas(tl, 6, vQX, [f"s_mov_b32 s{sA}, 0"], 64 * 1152, "q2", srdn=sQ)
        tl.gap(self.kvpoll).mem.append(Ins(f"buffer_load_dword v{vPOL}, v{vDP}, {srd(sDBG)}, 0 offen sc1", tag="poll"))
        c = self.kvchk
        assert c >= 341
        tl.gap(c).shadow.append(Ins("s_waitcnt vmcnt(63)", auto=["poll"]))
        tl.gap(c).valu += [Ins(f"v_cmp_gt_u32 vcc, 16, v{vPOL}")]
        tl.gap(c + 2).shadow += [Ins("s_cbranch_vccnz L_kvspin"), Ins("L_kvok:")]
        for sg in range(2):
            for i in range(5):
                p = c + 4 + 4 * (5 * sg + i)
                if i in (0, 4):
                    tl.gap(p - 1).shadow.append(Ins(f"s_add_u32 m0, s{sC1}, {KVS0 + KVST * sg + 1024 * i}"))
                    tl.gap(p).shadow.append(Ins(f"s_add_u32 s{sA}, s{sC1}, {KVST * sg + 1024 * i}"))
                tl.gap(p).mem.append(Ins(f"buffer_load_dwordx4 v{vL16}, {srd(sWS)}, s{sA} offen offset:{1024 * (i % 4)} sc1 lds", tag=f"kv{sg}"))
        if self.wpf:
            pf = self.pf2(512)
            for k in range(0, len(pf), 2):
                tl.gap(452 + 2 * k).shadow.append(pf[k])
                tl.gap(452 + 2 * k).mem.append(pf[k + 1])
        self.shadows(tl, 420, [f"s_mov_b32 s{sIT}, 0", f"s_add_u32 s{sINC}, s{sC1}, {2 * KVST}", f"s_and_b32 s{sRO}, s{sS}, {1 if self.o.get('rot', 0) else 0}", f"s_mul_i32 s{sHI}, s{sRO}, {9 * 4096}", f"s_mul_i32 s{sRO}, s{sRO}, 9216",
                               f"s_add_u32 s{sOM0}, s{sOM}, s{sRO}", f"s_sub_u32 s{sOM1}, s{sOM}, s{sRO}",
                               f"s_mov_b32 s{sC0}, 0", f"s_mov_b32 s{sSTN}, 0", f"s_mov_b32 s{sTODO}, 0xff"])
        V = []
        t = 2
        for x in ([f"v_mul_f32 v{vKVA + e}, s{sKS}, v{vKVA + e}" for e in range(4)] +
                  [f"v_cvt_pk_bf16_f32 v{vKVA + e}, v{vKVA + 2 * e}, v{vKVA + 2 * e + 1}" for e in range(2)] +
                  [f"v_and_or_b32 v{vKVA + e}, v{vKVA + e}, v{vAND}, v{vOR}" for e in range(2)]):
            V.append(Item("v", Ins(x), t, 2))
            t += 0.5
        for x in (f"buffer_store_dwordx2 {vr(vKVA, 2)}, v{vEP}, {srd(sWS)}, s{sK2} offen sc1", f"buffer_store_dword v{vKVA}, v{vEP}, {srd(sWS)}, s{sK1} offen sc1"):
            V.append(Item("m", Ins(x, tag="kvst"), t))
            t += 1
        for r in range(64):
            V.append(Item("v", Ins(f"v_mov_b32 v{vO_ + r}, 0"), 12 + r * 72 / 64.0))
        V += self.gelu_items(0, 85, 400, False, vH1)
        z = [vQ2 + 4 * q + j for q in range(4) for j in (1, 2)] + [vQ2 + 4, vQ2 + 12]
        for j in range(8):
            ct, u = j // 2, j % 2
            rel = 360 + 9 * j + 8 + 8
            q = vQ1 + 4 * (2 * u + ct // 2)
            for e in range(2):
                V.append(Item("v", Ins(f"v_cvt_pk_bf16_f32 v{q + 2 * (ct % 2) + e}, v{vG + 4 * j + 2 * e}, v{vG + 4 * j + 2 * e + 1}"), max(rel, 408 + 2 * j) + e, rel))
            if j in (5, 6):
                for r in z[5 * (j - 5):5 * (j - 4)]:
                    V.append(Item("v", Ins(f"v_mov_b32 v{r}, 0"), rel + 2))
        for r in range(8):
            V.append(Item("v", Ins(f"v_accvgpr_write_b32 a{aV_ + 8 + r}, 0"), 441 + r))
        for q in range(4):
            for e in range(2):
                V.append(Item("v", Ins(f"v_permlane16_swap_b32 v{vQ1 + 4 * q + e}, v{vQ1 + 4 * q + 2 + e}"), 449 + q, 446))
        if self.stamps and self.o.get("gst"):
            self.gst = [(p, r) for p, r in zip(eval(self.o["gst"].replace(":", ",")), (62, 64, 66, 52, 54, 100))]
            for p, r in self.gst:
                tl.gap(p).shadow.append(Ins(f"s_memtime s[{r}:{r + 1}]"))
        tl.fill(0, 468, V, flush=10 ** 9)
        pre = [i for i in tl.emit(-DD, 0) if i.kind == "lds"]
        tl.insert_lgkm_waits(0, 468, [(-10 + k // 2, i) for k, i in enumerate(pre)][8:])
        s = self.seg("p1a")
        s("L_p1:")
        if self.wpf and self.o.get("qpf", 1) == 1:
            for i in range(self.npf):
                s(f"""s_lshr_b32 s{sT1}, s{sW}, 1
                s_mul_i32 s{sT1}, s{sT1}, 140
                s_add_u32 s{sT1}, s{sT1}, {i * self.pfstep * 1152}""")
                s(f"buffer_load_dword v{vT3}, v{vPOL}, {srd(sQ)}, s{sT1} offen", tag="pf")
        kf = lambda kk: aKV + 4 * kk if kk < 9 else frag(1, kk - 9)
        kr = lambda kk: [Ins(f"ds_read_b64_tr_b16 {ar(kf(kk) + 2 * h, 2)}, v{vKR} offset:{1024 * kk + 128 * h}", tag="kvfr") for h in range(2)]
        s("s_waitcnt vmcnt(63)", auto=["kvimg", "st0"])
        s("s_barrier", need=["kvimg", "st0"])
        for kk in range(9):
            s.extend(kr(kk))
        s(f"""s_bitcmp1_b32 s{sS}, 2
        s_cbranch_scc1 L_kvu1
        s_bitcmp1_b32 s{sS}, 1
        s_cbranch_scc1 L_kv01""")
        for u in range(2):
            for o in range(2):
                k = self.seg(f"kv{u}{o}")
                if u == 1 and o == 0:
                    k(f"L_kvu1:\ns_bitcmp1_b32 s{sS}, 1\ns_cbranch_scc1 L_kv11")
                elif o == 1:
                    k(f"L_kv{u}{o}:")
                k("s_waitcnt lgkmcnt(12)")
                for kk in range(18):
                    a, b = ar(kf(kk)), xn(u, kk)
                    if o:
                        a, b = b, a
                    k(f"v_mfma_f32_16x16x32_bf16 {vr(vKVA)}, {a}, {b}, {'0' if kk == 0 else vr(vKVA)}")
                    if kk % 3 == 2 and kk < 17:
                        k("s_waitcnt lgkmcnt(10)")
                    if kk < 9:
                        k.extend(kr(kk + 9))
                    else:
                        k.extend(pre[2 * (kk - 9):2 * (kk - 9) + 2])
                k.extend(pre[18:])
                if not (u == 1 and o == 1):
                    k("s_branch L_kvdone")
        g = self.seg("p1gemm")
        g("L_kvdone:")
        self.stamp(g, 2)
        g("s_waitcnt lgkmcnt(12)")
        g.extend(tl.emit(0, 468))
        self.att()
        k = self.seg("kvspin")
        k(f"""L_kvspin:
        s_mov_b32 s{sT1}, 0
        L_kvspin2:
        s_sleep 2
        buffer_load_dword v{vPOL}, v{vDP}, {srd(sDBG)}, 0 offen sc1
        s_add_u32 s{sT1}, s{sT1}, 1
        s_cmp_gt_u32 s{sT1}, 0x40000
        s_cbranch_scc1 L_end
        s_waitcnt vmcnt(0)
        v_cmp_gt_u32 vcc, 16, v{vPOL}
        s_nop 1
        s_cbranch_vccnz L_kvspin2
        s_branch L_kvok""")
        self.fallback()

    def qk(self, sb, q, kt):
        k1 = aK1 + 4 * (kt % 2)
        k2 = aK2 + 4 * ((kt // 4) % 2) + 2 * ((kt % 4) // 2)
        q2 = vQ2 + 4 * q + 2 * (kt % 2)
        S = vr(vS_ + 16 * sb, 16)
        return (Ins(f"v_mfma_f32_32x32x16_bf16 {S}, {ar(k1)}, {vr(vQ1 + 4 * q)}, 0"),
                Ins(f"v_mfma_f32_32x32x8bf16_1k {S}, {ar(k2, 2)}, {vr(q2, 2)}, {S}"))

    def pv(self, sb, q, kt):
        O = vr(vO_ + 16 * q, 16)
        v = aV_ + 8 * (kt % 2)
        return tuple(Ins(f"v_smfmac_f32_32x32x32_bf16 {O}, {ar(v + 4 * f)}, {vr(vS_ + 16 * sb + 8 * f, 8)}, v{vIDX}") for f in range(2))

    def kvreads(self, kt):
        sl, i = (kt // 8) % 2, kt % 8
        o = KVST * sl
        k1 = Ins(f"ds_read_b128 {ar(aK1 + 4 * (kt % 2))}, v{vKA} offset:{o + 1024 * i}", tag="kvr")
        k2 = Ins(f"ds_read_b128 {ar(aK2 + 4 * ((kt // 4) % 2))}, v{vK2A} offset:{o + 640 * (i // 4)}", tag="kvr") if kt % 4 == 0 else None
        vv = [Ins(f"ds_read_b128 {ar(aV_ + 8 * (kt % 2) + 4 * f)}, v{vVA} offset:{o + 640 * (2 * i + f)}", tag="kvr") for f in range(2)]
        return k1, k2, vv

    def preg(self, i):
        if i < self.ne:
            return lambda k: ar(16 * i + 4 * k)
        return lambda k: vr(vO_ + 16 * ((i - self.ne) % 5) + 4 * k)

    def poll(self):
        return Ins(f"buffer_load_dword v{vPOL}, v{vINB}, {srd(sWS)}, s{sFL} offen sc1", tag="poll")

    def ready(self):
        return [Ins(f"v_cmp_ne_u32 vcc, 0, v{vPOL}"), Ins("s_nop 0"), Ins(f"s_lshr_b32 s{sRDY}, vcc_lo, 8"), Ins(f"s_and_b32 s{sRDY}, s{sRDY}, s{sTODO}")]

    def pload(self, i0, n):
        out = []
        for i in range(i0, i0 + n):
            out += [Ins(f"s_ff1_i32_b32 s{sT1}, s{sRDY}"), Ins(f"s_bitset0_b32 s{sRDY}, s{sT1}"), Ins(f"s_bitset0_b32 s{sTODO}, s{sT1}"),
                    Ins(f"s_mul_i32 s{sT0}, s{sT1}, {9 * 16384}"), Ins(f"s_add_u32 s{sT0}, s{sT0}, s{sPB}"),
                    Ins(f"s_cmp_lt_i32 s{sT1}, 0"), Ins(f"s_cselect_b32 s{sA}, {OOB}, s{sT0}")]
            out += [Ins(f"buffer_load_dwordx4 {self.preg(i)(k)}, v{vL16}, {srd(sWS)}, s{sA} offen offset:{1024 * k} sc1", tag=f"pl{i}") for k in range(4)]
        return out

    @staticmethod
    def weave(ld):
        slots = [ld[k:k + 11] for k in range(0, len(ld), 11)]
        out = list(slots[0][:7])
        for k, sl in enumerate(slots):
            nx = slots[k + 1][:7] if k + 1 < len(slots) else []
            for j in range(4):
                out.append(sl[7 + j])
                out += nx[2 * j:2 * j + 2] if j < 3 else nx[6:]
        return out

    def pacc(self, i0, n):
        out = []
        for j in range(8):
            ct, u = j // 2, j % 2
            c = vr(vG + 4 * j)
            for i in range(i0, i0 + n):
                out.append(Ins(f"v_mfma_f32_16x16x32_bf16 {c}, {vr(vSEL + (0 if ct % 2 else 2))}, {self.preg(i)(2 * (ct // 2) + u)}, {'0' if i == 0 else c}"))
        return out

    def att_stage(self, a, kt0, last):
        stream = {}
        if last:
            slots = [(tau, m) for tau in range(32, 64) for m in (0, 2, 3)]

            def lay(k, ins):
                lastmem = -9
                for i in ins:
                    while True:
                        cur = stream.setdefault(slots[k], [])
                        if i.kind in ("salu", "wait", "label"):
                            if not cur or i.kind == "label":
                                break
                        elif i.kind == "valu":
                            break
                        elif k - lastmem >= 2 and not any(x.kind != "salu" for x in cur) and not ("m0" in i.rd and any("m0" in x.wr for x in cur)):
                            lastmem = k
                            break
                        k += 1
                    cur.append(i)
                return k + 1

            seq = []
            for i in range(2):
                seq += [Ins(f"s_add_u32 m0, s{sHI}, s{sM0W}"), Ins(f"s_add_u32 s{sHI}, s{sHI}, 4096"), Ins(f"buffer_load_dwordx4 v{vWM}, {srd(sWO)}, s{sC0} offen lds", tag="wo"),
                        Ins(f"s_add_u32 s{sC0}, s{sC0}, {36 * 1152}")]
            for i in range(2):
                seq += [Ins(f"s_add_u32 m0, s{sHI}, s{sM0W}"), Ins(f"s_add_u32 s{sHI}, s{sHI}, 4096"), Ins(f"s_mov_b32 s{sT0}, {288 * 1152 * i}"),
                        Ins(f"buffer_load_dwordx4 v{vWX}, {srd(sWO)}, s{sT0} offen lds", tag="wo")]
            seq += [Ins(f"s_cmp_lt_u32 s{sW}, 2"), Ins(f"s_cselect_b32 s{sT0}, s{sRO}, 0"), Ins(f"s_sub_u32 s{sT0}, s{sM0W}, s{sT0}"),
                    Ins(f"s_add_u32 m0, s{sT0}, {2 * SLOT + 16384}"), Ins(f"s_lshl_b32 s{sC0}, s{sS}, 7"),
                    Ins(f"buffer_load_dwordx4 v{vWNX}, {srd(sWO)}, 0 offen lds", tag="wo")]
            for i in range(4):
                seq += [Ins(f"s_add_u32 m0, s{sXL}, {1024 * i}"), Ins(f"s_add_u32 s{sT0}, s{sC0}, {9216 * i}"),
                        Ins(f"buffer_load_dwordx4 v{vTMP}, {srd(sX)}, s{sT0} offen lds", tag="xr")]
            seq += [Ins(f"s_add_u32 m0, s{sM0W}, {XRESN}"), Ins(f"buffer_load_dwordx4 v{vXN}, {srd(sX)}, s{sXN} offen lds", tag="xr")]
            k = lay(0, [self.poll()] + seq)
            e1 = self.o.get("ne1", 3)
            rd = lambda: [Ins("s_waitcnt vmcnt(63)", auto=["poll"])] + [i for i in self.ready() if i.op != "s_nop"]
            k = lay(k, rd() + self.weave(self.pload(0, e1)))
            if self.ne > e1:
                k1 = 96 - 13 - 8 * (self.ne - e1)
                assert k < k1 - 8, (k, k1)
                lay(max(k, k1 - 21), [self.poll()])
                k = lay(k1, rd() + self.weave(self.pload(e1, self.ne - e1)))
            assert k <= 96, k
        for tau in range(4 * kt0, 4 * kt0 + 32):
            kt, q = tau // 4, tau % 4
            ms = list(self.qk((tau + 1) % 4, (tau + 1) % 4, (tau + 1) // 4)) + list(self.pv((tau - 1) % 4, (tau - 1) % 4, ((tau - 1) // 4) % 16))
            ex = [[], [], [], []]
            k1, k2, vv = self.kvreads((kt + 1) % 16)
            newstage = (kt + 1) % 8 == 0
            sg = (kt + 1) // 8 % 2
            dma = lambda so, off: Ins(f"buffer_load_dwordx4 v{vL16}, {srd(sWS)}, s{so} offen offset:{off} sc1 lds", tag=f"kv{1 - sg}")
            if last and newstage:
                if q == 0:
                    ex[0] += [Ins("s_waitcnt vmcnt(63)", auto=["wo", "xr"]), Ins("s_barrier", need=["wo"])]
                if q == 3:
                    ms[0] = ms[1] = None
            else:
                if q == 0:
                    if newstage:
                        tg = [f"kv{sg}"] + (["hst"] if sg == 1 else [])
                        ex[0] += [Ins("s_waitcnt vmcnt(63)", auto=tg), Ins("s_barrier", need=tg + ["lds:kvr"])]
                        if sg == 1:
                            ex[0] += [Ins(f"buffer_atomic_add v{vONE}, v{vFLG}, {srd(sDBG)}, s{sHA} offen sc1", tag="arr")]
                    ex[0].append(k1)
                    if k2:
                        ex[2].append(k2)
                    if newstage:
                        ex[2].insert(0, Ins(f"s_add_u32 m0, s{sC1}, {KVS0 + KVST * (1 - sg)}"))
                        ex[3] += [Ins(f"s_mov_b32 s{sHA}, {OOB}")] if sg == 1 else []
                        ex[3].append(dma(sINC, 0))
                if q == 1:
                    ex[0].append(vv[0])
                    ex[2].append(vv[1])
                    if newstage:
                        ex[3].append(dma(sINC, 1024))
                if q == 2:
                    if newstage:
                        ex[0].append(dma(sINC, 2048))
                        ex[2].append(dma(sINC, 3072))
                    ex[3].append(Ins("s_waitcnt lgkmcnt(0)"))
                if q == 3 and newstage:
                    ex[0].append(Ins(f"s_add_u32 m0, s{sC1}, {KVS0 + KVST * (1 - sg) + 4096}"))
                    ex[2] += [Ins(f"s_add_u32 s{sA}, s{sINC}, 4096"), dma(sA, 0), Ins(f"s_add_u32 s{sINC}, s{sINC}, {KVST}")]
                    if sg == 1:
                        ex[3].append(Ins(f"s_cmp_eq_u32 s{sIT}, 4"))
            if not last:
                if kt % 8 == 1 and q == 2:
                    ex[0].append(Ins(f"s_cmp_eq_u32 s{sHI}, {18 * 4096}"))
                    ex[2].append(Ins(f"s_cselect_b32 s{sHI}, 0, s{sHI}"))
                if kt % 8 in (0, 1) and q == 3:
                    ex[0].append(Ins(f"s_add_u32 m0, s{sHI}, s{sM0W}"))
                    ex[2] += [Ins(f"s_add_u32 s{sHI}, s{sHI}, 4096"), Ins(f"buffer_load_dwordx4 v{vWM}, {srd(sWO)}, s{sC0} offen lds", tag="wo")]
                    ex[3].append(Ins(f"s_add_u32 s{sC0}, s{sC0}, {36 * 1152}"))
                if kt == 2 and q == 0:
                    ex[2].append(Ins(f"s_lshl_b32 s{sT0}, s{sIT}, 12"))
                    ex[3].append(Ins(f"s_add_u32 s{sT0}, s{sT0}, s{sM0W}"))
                if kt == 2 and q == 1:
                    ex[0].insert(0, Ins(f"s_add_u32 s{sT0}, s{sT0}, s{sRO}"))
                    ex[2].insert(0, Ins(f"s_cmp_ge_u32 s{sT0}, 18432"))
                    ex[3].append(Ins(f"s_cselect_b32 s{sT1}, 18432, 0"))
                if kt == 2 and q == 2:
                    ex[0].append(Ins(f"s_sub_u32 s{sT0}, s{sT0}, s{sT1}"))
                if kt == 2 and q == 3:
                    ex[0].append(Ins(f"s_add_u32 m0, s{sT0}, {2 * SLOT}"))
                    ex[2] += [Ins(f"s_add_u32 s{sIT}, s{sIT}, 1"), Ins(f"buffer_load_dwordx4 v{vWN}, {srd(sWO)}, s{sSTN} offen lds", tag="wo")]
                    ex[3].append(Ins(f"s_add_u32 s{sSTN}, s{sSTN}, {4 * 36 * 1152}"))
                if self.o.get("cpf", 0) >= 2 and kt == 5 and q == 3:
                    ex[0].append(Ins(f"global_load_dword v{vT3}, {vr(vXE, 2)}, off", tag="pf"))
                if self.wpf and kt % 8 == 3 and q == 2:
                    ex[0].append(Ins(f"s_cmp_lt_u32 s{sIT}, 3"))
                    ex[2].append(Ins(f"s_cselect_b32 s{sT0}, 0, {OOB}"))
                if self.wpf and (kt % 8 == 3 or (kt % 8 == 4 and self.npf == 2)) and q == 3:
                    ex[0].append(Ins(f"s_add_u32 s{sT1}, s{sT0}, s{sPG}"))
                    if kt % 8 == 4:
                        ex[2].append(Ins(f"s_add_u32 s{sT1}, s{sT1}, {self.pfstep * 9216}"))
                    ex[2].append(Ins(f"buffer_load_dword v{vT3}, v{vPF}, {srd(sPF)}, s{sT1} offen", tag="pf"))
                    if kt % 8 == 2 + self.npf:
                        ex[3].append(Ins(f"s_add_u32 s{sPG}, s{sPG}, 128"))
                if self.wpf and kt % 8 == 4 and (q == 0 or (q == 2 and self.nd == 2)):
                    ex[0].insert(0, Ins(f"s_add_u32 s{sT1}, s{sT0}, s{sPFO}"))
                    ex[2] += [Ins(f"s_add_u32 s{sPFO}, s{sPFO}, {self.dl * 128}"), Ins(f"buffer_load_dword v{vT3}, v{vPD}, {srd(sD)}, s{sT1} offen", tag="pf")]
            sb = vS_ + 16 * (tau % 4)
            for m in range(4):
                if ms[m]:
                    a.add(ms[m])
                st = stream.get((tau, m), [])
                a.extend([i for i in st if i.kind not in ("vmem", "valu")] + ex[m] + [i for i in st if i.kind in ("vmem", "valu")])
                for e in range(4):
                    a(f"v_exp_f32 v{sb + 4 * m + e}, v{sb + 4 * m + e}")

    def att(self):
        ne, n2, n3 = self.ne, self.n2, self.n3
        pload, pacc = self.pload, self.pacc
        s = self.seg("attpre")
        if self.stamps and self.o.get("gst"):
            s("s_waitcnt lgkmcnt(0)")
            for k, (p, r) in enumerate(self.gst):
                s(f"v_writelane_b32 v0, s{r}, {2 * (20 + k)}")
        self.stamp(s, 3)
        s("s_waitcnt vmcnt(63) lgkmcnt(0)", auto=["kv0"])
        s("s_barrier", need=["kv0", "lds:r6"])
        k1, k2, vv = self.kvreads(0)
        s.extend([k1, k2, self.kvreads(1)[0]] + vv)
        for u in range(2):
            s(f"v_cvt_pk_bf16_f32 v{vQ2 + 8 * u}, v{vEX + 4 * u}, v{vEX + 4 * u + 1}")
        s("s_nop 0")
        for u in range(2):
            s(f"v_permlane32_swap_b32 v{vQ2 + 8 * u}, v{vQ2 + 8 * u + 4}")
        for q in range(4):
            s(f"v_mov_b32 v{vQ2 + 4 * q + 3}, v{vQ2 + 4 * q}")
        s("s_waitcnt lgkmcnt(2)")
        vMX = 28

        def mx(q, first):
            b, m = vS_ + 16 * q, vMX + q
            if first:
                return [f"v_max_f32 v{m}, v{b}, v{b + 1}"] + [f"v_max3_f32 v{m}, v{m}, v{b + j}, v{b + j + 1}" for j in range(2, 16, 2)]
            return [f"v_max3_f32 v{m}, v{m}, v{b + j}, v{b + j + 1}" for j in range(0, 16, 2)] + [f"v_mov_b32 v{b}, v{m}"]

        def fin(q):
            b, m = vS_ + 16 * q, vMX + q
            return [f"v_permlane32_swap_b32 v{m}, v{b}", f"v_max_f32 v{m}, v{m}, v{b}", f"v_sub_f32 v{m}, {f32(-MOFF)}, v{m}",
                    f"v_cvt_pk_bf16_f32 v{m}, v{m}, 0", f"v_cndmask_b32 v{vQ2 + 4 * q}, v{vQ2 + 4 * q}, v{m}, {MSK}", f"v_mov_b32 v{vQ2 + 4 * q + 3}, v{vQ2 + 4 * q}"]

        for q in range(4):
            m0, m1 = self.qk(q, q, 1)
            s.add(m0)
            s(f"buffer_store_dwordx4 {vr(vH1 + 4 * q)}, v{vL16}, {srd(sWS)}, s{sST} offen offset:{1024 * q} sc1", tag="hst")
            s.add(m1)
        s("s_nop 2")
        for q in range(4):
            m0, m1 = self.qk(q, q, 0)
            l = mx(q, True)
            for x in (l if q == 0 else l[4:]):
                s(x)
            s.add(m0)
            s(f"buffer_store_dwordx4 {vr(vXB)}, v{vL16}, {srd(sWS)}, s{sFLN} offen offset:{1024 * q} sc1", tag="hst")
            for x in (mx(q + 1, True)[:4] if q < 3 else mx(0, False)[:4]):
                s(x)
            s.add(m1)
        for x in mx(0, False)[4:] + mx(1, False) + fin(0) + mx(2, False)[:2]:
            s(x)
        m0, m1 = self.qk(0, 0, 0)
        s.add(m0)
        for x in mx(2, False)[2:]:
            s(x)
        s.add(m1)
        for x in fin(1) + mx(3, False) + fin(2) + fin(3):
            s(x)
        for r in range(vS_ + 48, vS_ + 64):
            s(f"v_mov_b32 v{r}, 0")
        s("s_waitcnt lgkmcnt(0)")
        self.stamp(s, 16)
        s(".p2align 3")
        a = self.seg("att0")
        a("L_att:")
        self.att_stage(a, 0, False)
        a("s_cbranch_scc1 L_attl")
        a = self.seg("att1")
        self.att_stage(a, 8, False)
        a("s_branch L_att\n.p2align 3")
        a = self.seg("attl")
        a("L_attl:")
        self.att_stage(a, 8, True)
        a("s_nop 1")
        a.extend(self.pv(3, 3, 15))
        self.stamp(a, 4)
        s = self.seg("opub")
        s(f"""L_opub:
        s_lshl_b32 s{sT0}, s{sS}, 11
        s_add_u32 s{sT0}, s{sT0}, s{sOM}
        s_add_u32 s{sT1}, s{sT0}, 18432
        s_lshl_b32 s{sT2}, s{sS}, 8
        s_add_u32 s{sT2}, s{sT2}, s{sOM}
        s_add_u32 s{sT2}, s{sT2}, 16384""")
        vR, vW, vE = 192, 196, vS_ + 16
        for q in range(4):
            o, p = vO_ + 16 * q, vS_ + 4 * q
            u, hp = q // 2, q % 2
            if q == 0:
                for k in range(3):
                    s(f"v_rcp_f32 v{vR + k}, v{vO_ + 16 * k + 10}")
            if q == 2:
                s(f"v_rcp_f32 v{vR + 3}, v{vO_ + 48 + 10}")
            s(f"v_mul_f32 v{vR + q}, {f32(ALPHA)}, v{vR + q}")
            for j in range(10):
                s(f"v_mul_f32 v{vW + j}, v{o + j}, v{vR + q}")
            s(f"v_cvt_pk_bf16_f32 v{vE + 2 * hp + u}, v{vW + 8}, v{vW + 9}")
            for j in range(4):
                s(f"v_cvt_pk_bf16_f32 v{p + j}, v{vW + 2 * j}, v{vW + 2 * j + 1}")
            if u == 1:
                s(f"v_permlane16_swap_b32 v{vE + 2 * hp}, v{vE + 2 * hp + 1}")
            s(f"buffer_store_dwordx4 {vr(p)}, v{vL16}, {srd(sWS)}, s{sT0 + u} offen offset:{1024 * hp} sc1", tag="ost")
        s(f"buffer_store_dwordx4 {vr(vE)}, v{vOE}, {srd(sWS)}, s{sT2} offen sc1", tag="ost")
        s.add(self.poll())
        s(f"""s_cmp_lg_u32 s{sSK}, 0
        s_cbranch_scc1 L_chkd""")
        s = self.seg("chk")
        s(f"""s_mov_b32 s{sT0}, {f32(2.0 ** -126)}
        s_mov_b32 s{sT1}, {f32(2.0 ** 124)}""")
        t = 192
        for q in range(4):
            o = vO_ + 16 * q
            s(f"""v_cndmask_b32 v{t + 2}, v{o + 8}, v{o + 10}, {MSK}
            v_cndmask_b32 v{t + 3}, v{o + 9}, v{o + 10}, {MSK}""")
            if q == 0:
                s(f"v_min3_f32 v{t}, abs(v{t + 2}), abs(v{t + 3}), v{o + 10}\nv_add_f32 v{t + 1}, abs(v{t + 2}), v{o + 10}")
            else:
                s(f"""v_min3_f32 v{t}, v{t}, abs(v{t + 2}), abs(v{t + 3})
                v_min_f32 v{t}, v{t}, v{o + 10}
                v_add_f32 v{t + 1}, v{t + 1}, v{o + 10}
                v_add_f32 v{t + 1}, v{t + 1}, abs(v{t + 2})""")
            s(f"v_add_f32 v{t + 1}, v{t + 1}, abs(v{t + 3})")
            for j in range(0, 8, 2):
                s(f"""v_min3_f32 v{t}, v{t}, abs(v{o + j}), abs(v{o + j + 1})
                v_add_f32 v{t + 1}, v{t + 1}, abs(v{o + j})
                v_add_f32 v{t + 1}, v{t + 1}, abs(v{o + j + 1})""")
        s(f"""v_cmp_nle_f32 vcc, s{sT0}, v{t}
        v_cmp_ngt_f32 {MK2}, s{sT1}, v{t + 1}
        s_nop 0
        s_or_b64 vcc, vcc, {MK2}""")
        if self.forcefb:
            s("s_or_b64 vcc, vcc, 1")
        s("s_cbranch_scc1 L_fb")
        s = self.seg("opub2")
        s("L_chkd:")
        vXR, vXU = 176, 96
        for j in range(8):
            s(f"ds_read_b64 {vr(vXR + 2 * j, 2)}, v{vTMP + j // 2 if j > 1 else vBA} offset:{2048 * (j % 2)}", need=["xr"])
        s(f"ds_read_b64 {vr(vXR + 16, 2)}, v{vXNA}")
        unp = []
        for j in range(9):
            d = vXU + 4 * j if j < 8 else vXE
            for e in range(2):
                unp += [Ins(f"v_lshlrev_b32 v{d + 2 * e}, 16, v{vXR + 2 * j + e}"), Ins(f"v_and_b32 v{d + 2 * e + 1}, 0xffff0000, v{vXR + 2 * j + e}")]
        s("s_waitcnt vmcnt(0)")
        s(f"buffer_store_dword v{vONE}, v{vFO}, {srd(sWS)}, s{sOF} offen sc1", need=["ost"])
        self.stamp(s, 5)
        s.extend(self.ready())
        s("s_waitcnt lgkmcnt(0)")
        pl = self.weave(pload(ne, n2))
        mf = pacc(0, ne)
        k = 0
        while pl or mf or unp:
            if mf:
                s.add(mf.pop(0))
            if pl and k % 3 == 0:
                while pl[0].kind == "salu":
                    s.add(pl.pop(0))
                s.add(pl.pop(0))
            else:
                s.extend(unp[:2])
                unp = unp[2:]
            k += 1
        s(f"s_mov_b32 s{sT3}, 0")
        s = self.seg("wo1")
        s("L_wo1:")
        s.add(self.poll())
        s(f"""s_add_u32 s{sT3}, s{sT3}, 1
        s_cmp_gt_u32 s{sT3}, 0x40000
        s_cbranch_scc1 L_end
        s_waitcnt vmcnt(0)""")
        rd = self.ready()
        s.extend(rd[:3])
        s(f"""s_andn2_b32 s{sT0}, 0xff, vcc_lo
        s_cbranch_scc0 L_ogat""")
        s.add(rd[3])
        s("s_cbranch_scc0 L_wo1")
        s = self.seg("wo2")
        pl = pload(ne, n2)
        for i in range(n2):
            mf = pacc(ne + i, 1)
            for k in range(8):
                s.add(mf[k])
                if k < 7:
                    s.add(pl[11 * i + k])
            s.extend(pl[11 * i + 7:11 * i + 11])
        s("s_branch L_wo1")
        s = self.seg("ogat")
        s("L_ogat:")
        self.stamp(s, 6)
        gl = []
        for kb in range(6):
            for u in range(2):
                for i in range(3):
                    k = 3 * kb + i
                    q = [Ins(f"s_add_u32 s{sA}, s{sOM1 if k >= 9 else sOM0}, {1024 * (18 * u + k)}")] if i == 0 else []
                    gl.append(q + [Ins(f"buffer_load_dwordx4 {xn(u, k)}, v{vL16}, {srd(sWS)}, s{sA} offen offset:{1024 * i} sc1", tag=f"og{kb}")])
        ng = self.o.get("ngpre", 12)
        tf = Timeline()
        vX2 = 28
        n = 0
        for kb in range(6):
            for ct in range(5):
                g0 = 30 * kb + 6 * ct
                for i in range(3):
                    k = 3 * kb + i
                    f = aFR + 4 * ((15 * kb + 3 * ct + i) % 18)
                    for hh in range(2):
                        if ct < 4:
                            off = 4096 * k + 2048 * hh
                            ins = Ins(f"ds_read_b64_tr_b16 {ar(f + 2 * hh, 2)}, v{vRB + 4 * (off // 65536) + ct} offset:{off % 65536}", tag="fr")
                        else:
                            ins = Ins(f"ds_read_b64_tr_b16 {ar(f + 2 * hh, 2)}, v{vRN} offset:{1024 * k + 512 * hh}", tag="fr")
                        tf.place(Item("r", ins, 0, earliest=g0 - 36 + 3 + i), n - 16)
                        n += 1
                    for u in range(2):
                        c = vr(vG + 4 * (2 * ct + u)) if ct < 4 else vr(vX2 if u else vXB)
                        tf.m[g0 + 3 * u + i] = Ins(f"v_mfma_f32_16x16x32_bf16 {c}, {ar(f)}, {xn(u, k)}, {'0' if ct == 4 and k == 0 else c}")
            if kb:
                tf.gap(30 * kb - 1).shadow.append(Ins("s_waitcnt vmcnt(63)", auto=[f"og{kb}"]))
        pre = tf.emit(-16, 0)
        mf = pacc(ne, n2)
        for q in gl[:ng]:
            s.extend(q)
            s.extend(mf[:2] + pre[:2])
            mf, pre = mf[2:], pre[2:]
        s.extend(mf + pre)
        s("s_waitcnt vmcnt(63) lgkmcnt(0)", auto=["og0"])
        gs = self.o.get("gstep", 4)
        for k, q in enumerate(gl[ng:]):
            p = 1 + gs * k
            p += 1 if p % 30 == 29 else 0
            tf.gap(p).shadow.extend(q[:-1])
            tf.gap(p).mem.append(q[-1])
        n4 = self.o.get("n4", 1)
        i3, i4 = ne + n2, ne + n2 + n3
        assert n3 + n4 <= 5

        def rnd(p, i0, n):
            rd = self.ready()
            tf.gap(p).shadow.append(Ins("s_waitcnt vmcnt(63)", auto=["poll"]))
            tf.gap(p).valu.append(rd[0])
            p, lastm = p + 1, 0
            for i in rd[2:3] + [self.poll()] + rd[3:] + self.weave(pload(i0, n)):
                if i.kind == "salu":
                    tf.gap(p).shadow.append(i)
                    p += 1
                else:
                    p = max(p, lastm + 3)
                    lastm = p
                    tf.gap(p - 1).mem.append(i)
            return p

        p1 = p + 1
        tf.gap(p1 - 50).mem.append(self.poll())
        p = rnd(p1, i3, n3)
        p2 = 180 - 12 - 12 * n4
        assert p <= p2, (p, p2)
        p = rnd(p2, i4, n4)
        assert p < 181, p
        if self.stamps and self.o.get("fst"):
            fst = list(zip((0, 31, 61, 91, 121, 151), (66, 68, 52, 54, 100, 72)))
            for p, r in fst:
                tf.gap(p).shadow.append(Ins(f"s_memtime s[{r}:{r + 1}]"))
        tf.insert_lgkm_waits(0, 180, [])
        s.extend(tf.emit(0, 180))
        s = self.seg("xud")
        if self.stamps and self.o.get("fst"):
            s("s_waitcnt lgkmcnt(0)")
            for k, (p, r) in enumerate(fst):
                s(f"v_writelane_b32 v0, s{r}, {2 * (20 + k)}")
        self.stamp(s, 7)
        s(f"s_mov_b32 s{sT2}, {f32(1.0 / ALPHA ** 2)}\ns_mov_b32 s{sT3}, 0")
        s("s_waitcnt vmcnt(63)", auto=[f"pl{i}" for i in range(i3, i4)])
        s.extend(pacc(i3, n3))
        s(f"s_bitcmp1_b32 s{sS}, 2\ns_cselect_b64 {MK2}, -1, 0")
        for e in range(4):
            s(f"v_cndmask_b32 v{vXB + e}, v{vXB + e}, v{vX2 + e}, {MK2}")
        s = self.seg("e1")
        s(f"""L_e1:
        s_cmp_eq_u32 s{sTODO}, 0
        s_cbranch_scc1 L_e2""")
        s = self.seg("e1b")
        s("s_waitcnt vmcnt(0)")
        s.extend(pacc(i4, n4))
        s = self.seg("e1c")
        s("L_e1c:")
        rd = self.ready()
        s.extend(rd[:3] + [self.poll()])
        s(f"""s_add_u32 s{sT3}, s{sT3}, 1
        s_cmp_gt_u32 s{sT3}, 0x40000
        s_cbranch_scc1 L_end""")
        s.add(rd[3])
        s("s_cbranch_scc1 L_e1e")
        s = self.seg("e1d")
        s("s_waitcnt vmcnt(0)\ns_branch L_e1c")
        s = self.seg("e1e")
        s("L_e1e:")
        s.extend(self.weave(pload(i4, n4)))
        s("s_branch L_e1")
        vLP = 32
        lastl = lambda: [Ins(f"buffer_load_dwordx2 {vr(vLP + 2 * p, 2)}, v{vL8}, {srd(sWS)}, s{sFLN} offen offset:{512 * p} sc1", tag="pll") for p in range(8)]
        s = self.seg("fmain")
        s("L_e2:")
        self.stamp(s, 17)
        s(f"s_mov_b32 s{sLST}, 1")
        s.extend(lastl())
        s("s_waitcnt vmcnt(8)")
        s.extend(pacc(i4, n4))
        s.add(self.poll())
        self.stamp(s, 18)
        for j in range(8):
            c = vG + 4 * j
            for e in range(4):
                s(f"v_fma_f32 v{c + e}, v{c + e}, s{sT2}, v{vXU + 4 * j + e}")
            s(f"v_cvt_pk_bf16_f32 v{c}, v{c}, v{c + 1}\nv_cvt_pk_bf16_f32 v{c + 1}, v{c + 2}, v{c + 3}")
        for j in range(8):
            s(f"ds_write_b64 v{vTMP + j // 2 if j > 1 else vBA}, {vr(vG + 4 * j, 2)} offset:{2048 * (j % 2)}")
        for i in range(4):
            s(f"ds_read_b128 {vr(vXU + 4 * i)}, v{vOL} offset:{1024 * i}")
        for i in range(4):
            s(f"s_waitcnt lgkmcnt({3 - i})")
            s(f"buffer_store_dwordx4 {vr(vXU + 4 * i)}, v{vTMP}, {srd(sOUT)}, s{sC0} offen")
            if i < 3:
                s(f"s_add_u32 s{sC0}, s{sC0}, 9216")
        self.stamp(s, 8)
        s("s_waitcnt vmcnt(5)")
        s = self.seg("e3")
        s("L_e3:")
        s(f"v_max3_u32 v{vT0}, v{vLP}, v{vLP + 1}, v{vLP + 2}")
        for j in range(3, 15, 2):
            s(f"v_max3_u32 v{vT0}, v{vT0}, v{vLP + j}, v{vLP + j + 1}")
        s(f"""v_max_u32 v{vT0}, v{vT0}, v{vLP + 15}
        v_cmp_eq_u32 vcc, -1, v{vT0}
        s_cmp_eq_u32 s{sLST}, 0
        s_cbranch_vccz L_fin
        s_cbranch_scc1 L_fin""")
        s = self.seg("e3b")
        s(f"s_waitcnt vmcnt(4)\nv_cmp_eq_u32 vcc, 0, v{vPOL}")
        s.extend(lastl())
        s(f"s_and_b32 s{sLST}, vcc_lo, 0xff0000")
        s.add(self.poll())
        s(f"""s_add_u32 s{sT3}, s{sT3}, 1
        s_cmp_lt_u32 s{sT3}, 0x40000
        s_waitcnt vmcnt(0)
        s_cbranch_scc1 L_e3
        s_endpgm""")
        s = self.seg("fin")
        s("L_fin:")
        for p in range(4):
            s(f"v_mfma_f32_16x16x32_bf16 {vr(vXB)}, {vr(vSEL + 6)}, {vr(vLP + 4 * p)}, {vr(vXB)}")
        s("s_nop 7")
        for e in range(4):
            s(f"v_fma_f32 v{vXB + e}, v{vXB + e}, s{sT2}, v{vXE + e}")
        s(f"""v_cvt_pk_bf16_f32 v{vXB}, v{vXB}, v{vXB + 1}
        v_cvt_pk_bf16_f32 v{vXB + 1}, v{vXB + 2}, v{vXB + 3}
        buffer_store_dwordx2 {vr(vXB, 2)}, v{vOA}, {srd(sOUT)}, s{sXN} offen""")
        self.stamp(s, 9, True)
        self.stamp_flush(s)
        s("s_endpgm")

    def fallback(self):
        vM = 192
        s = self.seg("fb0")
        s(f"""L_fb:
        s_waitcnt vmcnt(0) lgkmcnt(0)
        v_and_b32 v{vT0}, 31, v{vL}
        v_lshlrev_b32 v{vT0}, 4, v{vT0}
        v_subrev_u32 v{vT1}, {KVS0}, v{vVA}
        v_accvgpr_write_b32 a{aK2 + 1}, 0
        s_mov_b32 s{sIT}, 0
        s_mov_b32 s{sSK}, 1""")
        for q in range(4):
            s(f"v_cndmask_b32 v{vQ2 + 4 * q}, v{vQ2 + 4 * q}, 0, {MSK}\nv_mov_b32 v{vM + q}, 0xff800000")
        for r in range(vO_, vO_ + 64):
            s(f"v_mov_b32 v{r}, 0")

        def loads(k, withv):
            k(f"""s_lshr_b32 s{sT0}, s{sIT}, 3
            s_mul_i32 s{sT0}, s{sT0}, {KVST}
            s_and_b32 s{sT1}, s{sIT}, 7
            s_lshl_b32 s{sT2}, s{sT1}, 10
            s_add_u32 s{sT2}, s{sT2}, s{sT0}
            buffer_load_dwordx4 {ar(aK1)}, v{vL16}, {srd(sWS)}, s{sT2} offen sc1
            s_lshr_b32 s{sT2}, s{sT1}, 2
            s_mul_i32 s{sT2}, s{sT2}, 640
            s_and_b32 s{sT3}, s{sT1}, 3
            s_lshl_b32 s{sT3}, s{sT3}, 2
            s_add_u32 s{sT2}, s{sT2}, s{sT3}
            s_add_u32 s{sT2}, s{sT2}, s{sT0}
            s_add_u32 s{sT2}, s{sT2}, 18432
            buffer_load_dword a{aK2}, v{vT0}, {srd(sWS)}, s{sT2} offen sc1""")
            if withv:
                k(f"""s_mul_i32 s{sT2}, s{sT1}, 1280
                s_add_u32 s{sT2}, s{sT2}, s{sT0}
                buffer_load_dwordx4 {ar(aV_)}, v{vT1}, {srd(sWS)}, s{sT2} offen sc1
                buffer_load_dwordx4 {ar(aV_ + 4)}, v{vT1}, {srd(sWS)}, s{sT2} offen offset:640 sc1""")
            k("s_waitcnt vmcnt(0)")
            for q in range(4):
                k.extend(self.qk(q, q, 0))
            k("s_nop 11")

        k = self.seg("fb1")
        k("L_fb1:")
        loads(k, False)
        for q in range(4):
            for j in range(0, 16, 2):
                k(f"v_max3_f32 v{vM + q}, v{vM + q}, v{vS_ + 16 * q + j}, v{vS_ + 16 * q + j + 1}")
        k(f"""s_add_u32 s{sIT}, s{sIT}, 1
        s_cmp_lt_u32 s{sIT}, 64
        s_cbranch_scc1 L_fb1""")
        k = self.seg("fb2")
        for q in range(4):
            k(f"v_mov_b32 v{vS_ + q}, v{vM + q}")
        k("s_nop 0")
        for q in range(4):
            k(f"v_permlane32_swap_b32 v{vM + q}, v{vS_ + q}")
        for q in range(4):
            k(f"v_max_f32 v{vM + q}, v{vM + q}, v{vS_ + q}")
        k(f"s_mov_b32 s{sIT}, 0")
        k = self.seg("fb3")
        k("L_fb3:")
        loads(k, True)
        for q in range(4):
            for j in range(16):
                k(f"v_sub_f32 v{vS_ + 16 * q + j}, v{vS_ + 16 * q + j}, v{vM + q}")
            for j in range(16):
                k(f"v_exp_f32 v{vS_ + 16 * q + j}, v{vS_ + 16 * q + j}")
        k("s_nop 1")
        for q in range(4):
            k.extend(self.pv(q, q, 0))
        k(f"""s_add_u32 s{sIT}, s{sIT}, 1
        s_cmp_lt_u32 s{sIT}, 64
        s_cbranch_scc1 L_fb3""")
        k = self.seg("fb4")
        k("s_nop 11\ns_branch L_opub")


def build(path, C=1, stamps=False, xpf=True, wpf=True, forcefb=False, verbose=True, **kw):
    g = Gen1(C=C, stamps=stamps, xpf=xpf, wpf=wpf, **kw)
    g.forcefb = forcefb
    g.kvpoll, g.kvchk = kw.get("kvpoll", 300), kw.get("kvchk", 356)
    g.ne, g.n2, g.n3, g.etau = kw.get("ne", 4), kw.get("n2", 2), kw.get("n3", 2), kw.get("etau", 50)
    g.prologue()
    g.p0()
    g.p1()
    probs = []
    traces = [("P0", g.trace(["entry"] + (["pfe"] if kw.get("early") == 2 else []) + ["entry2", "ln", "ln2", "p0pre"] + ["aloop"] * 7 + ["aexit", "aswitch", "aswitch2", "aloop", "aexit", "b0"] + ["bloop", "bloop2"] * 3 + ["bloop", "bend"]))]
    for u in range(2):
        for o in range(2):
            fb = ["fb0", "fb1", "fb1", "fb2", "fb3", "fb3", "fb4", "opub"] if o else []
            for end in (["e1", "fmain", "e3", "fin"], ["e1", "e1b", "e1c", "e1d", "e1c", "e1e", "e1", "e1b", "e1c", "e1e", "e1", "fmain", "e3", "e3b", "e3", "fin"]):
                t1 = ["entry"] + (["pfe"] if kw.get("early") == 3 else []) + ["entry2", "p1pre", "ln", "kvdma", "ln2", "p1a", f"kv{u}{o}", "p1gemm", "attpre"] + ["att0", "att1"] * 3 + ["att0", "attl"] + \
                     ["opub", "chk"] + fb + ["opub2", "wo1", "wo2", "wo1", "wo1", "ogat", "xud"] + end
                traces.append(("P1", g.trace(t1)))
    auto_vm([t for _, t in traces])
    for n, t in traces:
        probs += check_trace(t, n)
    seen = set()
    for p in probs:
        key = p.split("'", 1)[1]
        if key not in seen:
            seen.add(key)
            print(p)
    if verbose:
        for s in g.segs:
            n = sum(1 for i in s.ins if i.kind != "label")
            nm = sum(1 for i in s.ins if i.kind == "mfma")
            if n > 40:
                print(f"{s.name:10s} ins {n:5d} mfma {nm:4d} est {est_cycles(s.ins)}")
    open(path, "w").write(g.text())
    return len(seen)


if __name__ == "__main__":
    import argparse
    ap = argparse.ArgumentParser()
    ap.add_argument("-o", default="cdna_kernels/" + NAME + ".s")
    ap.add_argument("-C", type=int, default=1)
    ap.add_argument("--stamps", action="store_true")
    ap.add_argument("--noxpf", action="store_true")
    ap.add_argument("--nowpf", action="store_true")
    ap.add_argument("--fb", action="store_true")
    ap.add_argument("kw", nargs="*")
    a = ap.parse_args()
    kw = {}
    for x in a.kw:
        k, v = x.split("=")
        kw[k] = int(v) if v.lstrip("-").isdigit() else " " + v
    n = build(a.o, a.C, a.stamps, not a.noxpf, not a.nowpf, a.fb, **kw)
    print("problems:", n)
```

```python
import sys
from ubl import *
ON_GPU = os.path.exists('/dev/kfd')
def kernel(nw, n, mode, iters, prio=0):
    s = """
    s_load_dwordx4 s[4:7], s[0:1], 0
    v_lshrrev_b32 v1, 6, v0
    s_nop 1
    v_readfirstlane_b32 s20, v1
    s_waitcnt lgkmcnt(0)
    s_mov_b32 s8, s4
    s_and_b32 s9, s5, 0xffff
    s_mov_b32 s10, 0x100000
    s_mov_b32 s11, 0x20000
    s_mov_b32 s12, s6
    s_and_b32 s13, s7, 0xffff
    s_mov_b32 s14, 0x1000000
    s_mov_b32 s15, 0x20000
    v_and_b32 v2, 255, v0
    v_lshlrev_b32 v3, 4, v2
    v_and_b32 v2, 63, v0
    v_lshlrev_b32 v4, 3, v2
    v_lshlrev_b32 v5, 4, v0
    s_and_b32 s40, s2, 7
    s_lshl_b32 s40, s40, 21
    s_lshr_b32 s41, s2, 3
    s_lshl_b32 s41, s41, 16
    s_add_u32 s41, s41, s40
"""
    for i in range(16):
        s += f"    buffer_load_dwordx4 v[{64+4*i}:{67+4*i}], v3, s[12:15], s41 offen\n    s_add_u32 s41, s41, 4096\n"
    s += "    s_waitcnt vmcnt(0)\n"
    for i in range(16):
        s += f"    ds_write_b128 v3, v[{64+4*i}:{67+4*i}] offset:{i*4096}\n"
    for r in range(0, 72): s += f"    v_accvgpr_write_b32 a{r}, v{64 + r % 64}\n"
    for r in range(8, 64): s += f"    v_mov_b32 v{r}, 0\n"
    s += f"""
    s_add_u32 s16, s12, s40
    s_addc_u32 s17, s13, 0
    s_mov_b32 s18, 0x200000
    s_mov_b32 s19, 0x20000
    s_mov_b32 s42, s16
    s_mov_b32 s21, {iters}
    s_lshl_b32 s30, s20, 10
    s_add_u32 s30, s30, 0x10000
    s_mov_b32 s33, 0
    s_mov_b32 s50, 0xc09d3000
    s_waitcnt lgkmcnt(0)
    s_sleep 100
"""
    if prio: s += "    s_cmp_ge_u32 s20, 4\n    s_cbranch_scc0 LP\n    s_setprio 1\nLP:\n"
    s += "    s_barrier\n    s_memtime s[24:25]\n    s_memrealtime s[34:35]\n    s_waitcnt lgkmcnt(0)\n.p2align 6\nLA:\n"
    nm = 288 * 4 // nw
    nel = 32 * 4 // nw
    V = []
    for j in range(nel // 4):
        g, t = 8 + 4 * (j % 4), 40 + 4 * (j % 4)
        for op in ("v_fma_f32 v{t}, -v{g}, v{g}, s50", "v_mul_f32 v{t}, v{t}, v{g}", "v_exp_f32 v{t}, v{t}", "v_add_f32 v{t}, 1.0, v{t}", "v_rcp_f32 v{t}, v{t}", "v_mul_f32 v{t}, v{t}, v{g}", "v_mul_f32 v{t}, v{t}, v{u}"):
            for e in range(4): V.append("    " + op.format(t=t+e, g=64+(4*j+e) % 32, u=70+e) + "\n")
        V += [f"    v_cvt_pk_bf16_f32 v{56+e}, v{t+2*e}, v{t+2*e+1}\n" for e in range(2)]
    nfr = 2 * n if mode != "single" else n
    stage = nm // 4
    nd = 36 // nw * 4 // 4 if False else None
    dper = 8
    vi = 0
    for m in range(nm):
        grp, r = divmod(m, 2 * n); u, i = divmod(r, n)
        fr = ((grp % 2) * n + i) if mode != "single" else i
        c = 8 + 4 * ((2 * grp + u) % 8)
        b = 64 + 4 * ((m * 5 + m // 16) % 16)
        s += f"    v_mfma_f32_16x16x32_bf16 v[{c}:{c+3}], a[{4*fr}:{4*fr+3}], v[{b}:{b+3}], v[{c}:{c+3}]\n"
        if m % stage == stage // 2: s += "    s_waitcnt vmcnt(10) lgkmcnt(6)\n    s_barrier\n"
        elif m % dper == 5: s += f"    s_add_u32 m0, s30, {((m//dper)%8)*8192}\n"
        elif m % dper == 6: s += "    s_add_u32 s33, s33, 8192\n"
        elif m % dper == 7: s += "    s_and_b32 s33, s33, 0xfffff\n"
        elif m % dper == 0: s += "    s_add_u32 s16, s42, s33\n"
        elif r == 2 * n - 1 or (n > 4 and r == 2): s += f"    s_waitcnt lgkmcnt({min(6, n)})\n"
        f2 = (((grp + 1) % 2) * n + r // 2) if mode != "single" else None
        s += f"    ds_read_b64_tr_b16 a[{4*f2+2*(r%2)}:{4*f2+2*(r%2)+1}], v4 offset:{(m%120)*512}\n"
        if m % dper == 0: s += "    buffer_load_dwordx4 v5, s[16:19], 0 offen lds\n"
        elif mode == "inter":
            tgt = (m + 1) * len(V) // nm
            if vi < tgt + 1 and vi < len(V): s += V[vi]; vi += 1
        if mode == "block" and m % stage == stage - 1:
            k = len(V) // 4
            s += "".join(V[vi:vi+k]); vi += k
    s += "".join(V[vi:])
    s += """
    s_sub_u32 s21, s21, 1
    s_cmp_lg_u32 s21, 0
    s_cbranch_scc1 LA
    s_memtime s[26:27]
    s_memrealtime s[36:37]
    s_waitcnt lgkmcnt(0) vmcnt(0)
    s_sub_u32 s26, s26, s24
    s_sub_u32 s36, s36, s34
    v_mov_b32 v8, s26
    v_mov_b32 v9, s36
    s_lshl_b32 s3, s2, 3
    s_add_u32 s3, s3, s20
    s_lshl_b32 s3, s3, 3
    v_mov_b32 v3, s3
    buffer_store_dwordx2 v[8:9], v3, s[8:11], 0 offen
    s_waitcnt vmcnt(0)
"""
    return s
if ON_GPU:
    out = DeviceBuffer(1<<20)
    f = np.random.randn(1<<23).astype(np.float32)
    W = DeviceBuffer.from_numpy((f.view(np.uint32) >> 16).astype(np.uint16))
    big = DeviceBuffer(512<<20)
i = 0
for (nw, n, mode, prio) in [(4,9,"inter",0),(4,3,"inter",0),(8,9,"inter",0),(8,3,"inter",0),(8,9,"block",0),(8,3,"block",0),(8,3,"inter",1),(8,3,"block",1)]:
    i += 1
    co = build(wrap(kernel(nw, n, mode, 8, prio), grid=192, block=64*nw, lds=140000, vgpr=256, acc=128), tag=f"w{i}")
    if ON_GPU:
        res = []
        k = AsmKernel(co, "k_kernel"); ka = pack_ptr_kernargs([out.ptr, W.ptr, out.ptr, out.ptr])
        for rep in range(6):
            memset(big, rep, 512<<20)
            k.launch((192,1,1),(64*nw,1,1), ka, 140000); sync()
            r = out.to_numpy(np.uint32, (256, 8, 2))[:192, :nw].astype(float).max(axis=1)
            res.append((np.median(r[:,0]), np.mean(r[:,1])/100))
        print(f"nw={nw} n={n} {mode} prio={prio}", " | ".join(f"{c/8:.0f}cyc {t:.2f}us {c/t:.0f}MHz" for c,t in res[2:]))
```

```python
import math, struct, sys
from asmlib import Ins, Seg, check_trace, est_cycles, auto_vm
from sched import Timeline, Item, LAT

NAME = "parallel_sum__grouped_kv_mqa__geglu_ffn__prompt"


def f32(x):
    return "0x%08x" % struct.unpack("<I", struct.pack("<f", x))[0]


LOG2E = 1.4426950408889634
K0 = 2 * LOG2E * math.sqrt(2 / math.pi)
K1 = K0 * 0.044715
ALPHA = K1 ** (1.0 / 3.0)
K0P = K0 / ALPHA
CK = LOG2E / math.sqrt(18.0) / ALPHA ** 2
MOFF = 98.0
OOB = 0x40000000

SLOT = 36864
KVS0, KVS1, KVST = 110592, 131072, 20480
WS_KV, WS_FLAG, WS_HX, WS_OM, WS_PART, WS_STAMP = 0, 0x40000, 0x80000, 0x300000, 0x600000, 0x1C00000
WS_SIZE = 0x2000000
DD = 20

sX, sG, sU, sD, sWS, sOUT, sDBG, sQ, sKV, sWO, sPF = 8, 12, 16, 20, 24, 28, 32, 36, 40, 44, 72
sW, sR, sS, sROLE, sE1, sE2 = 76, 77, 78, 79, 80, 81
sM0W, sA, sC0, sC1, sINC, sIT, sHI, sNK, sT0, sT1, sT2, sT3 = 82, 83, 84, 85, 86, 87, 88, 89, 90, 91, 92, 93
sST, sFL, sPFO, sPOL, sSTN, sFLN = 94, 95, 96, 97, 98, 99
pG, pU, sDM, sDG, sINN, sNRN = 48, 50, 56, 60, 68, 69
sMASK = 4
sMK2 = 6


def srd(n):
    return f"s[{n}:{n + 3}]"


vL, vT0, vT1, vT2, vT3 = 1, 2, 3, 4, 5
vL16, vFLG = 6, 7
vRB = 8
vDM, vPF, vPOL, vONE = 24, 25, 26, 27
vTMP = 20
vDN = 28
vGL, vG, vU, vH = 32, 64, 96, 128
vLO, vRAW = 40, 112
aXN, aFR, aH0 = 0, 144, 216
vKD = 208


def vr(a, n=4):
    return f"v[{a}:{a + n - 1}]" if n > 1 else f"v{a}"


def ar(a, n=4):
    return f"a[{a}:{a + n - 1}]" if n > 1 else f"a{a}"


def xn(u, k):
    return ar(aXN + 4 * (18 * u + k))


def frag(gam, i):
    return aFR + 36 * (gam % 2) + 4 * i


class Gen:
    def __init__(self, C=1, stamps=False, xpf=True, wpf=True, **kw):
        self.o = kw
        self.late = kw.get('late', 0)
        self.C = C
        self.stamps = stamps
        self.xpf = xpf
        self.wpf = wpf
        self.segs = []
        self.nstamp = {}

    def seg(self, name):
        s = Seg(name)
        self.segs.append(s)
        return s

    def stamp(self, s, k, last=False):
        if not self.stamps or (self.o.get("minst") and not last):
            return
        s(f"""s_waitcnt lgkmcnt(0)
        s_memtime s[52:53]
        s_memrealtime s[54:55]
        s_waitcnt lgkmcnt(0)
        v_writelane_b32 v0, s52, {2 * k}
        v_writelane_b32 v0, s54, {2 * k + 1}""")

    def stamp_flush(self, s):
        if not self.stamps:
            return
        s(f"""s_lshl_b32 s48, s2, 2
        s_add_u32 s48, s48, s{sW}
        s_lshl_b32 s48, s48, 8
        s_add_u32 s48, s48, {WS_STAMP}
        v_lshlrev_b32 v{vT0}, 2, v{vL}
        buffer_store_dword v0, v{vT0}, {srd(sWS)}, s48 offen""")

    def std_reads(self, gam0, pos0, slot, tag):
        R = []
        n = 0
        for ct in range(4):
            for i in range(9):
                for h in range(2):
                    f = frag(gam0 + ct, i) + 2 * h
                    off = slot * SLOT + 4096 * i + 2048 * h
                    ins = Ins(f"ds_read_b64_tr_b16 {ar(f, 2)}, v{vRB + 4 * (off // 65536) + ct} offset:{off % 65536}", tag=tag)
                    g0 = pos0 + 18 * ct
                    R.append(Item("r", ins, pos0 - DD + n, earliest=g0 - 27 + i, deadline=g0 + i - LAT - 1))
                    n += 1
        return R

    def std_mfmas(self, tl, gam0, pos0, acc, bfun, zero):
        for ct in range(4):
            for u in range(2):
                for i in range(9):
                    c = vr(acc + 4 * (2 * ct + u))
                    cin = "0" if (zero and i == 0) else c
                    tl.m[pos0 + 18 * ct + 9 * u + i] = Ins(f"v_mfma_f32_16x16x32_bf16 {c}, {ar(frag(gam0 + ct, i))}, {bfun(u, i)}, {cin}")

    def barrier(self, tl, p, vmtags, ldstag):
        g = tl.gap(p)
        g.shadow.append(Ins("s_waitcnt vmcnt(63) lgkmcnt(6)", auto=vmtags))
        g.bar.append(Ins("s_barrier", need=list(vmtags) + [f"lds:{ldstag}/6"]))

    def dmas(self, tl, stage, voff, first, inc, tag, srdn=None, p0=None, step=8):
        for i in range(9):
            p = (72 * (stage - 3) + 7 if p0 is None else p0) + step * i
            m0 = f"s_add_u32 m0, s{sM0W}, {(stage % 4) * SLOT + 4096 * i}"
            if srdn is not None:
                sh = [m0, first[0] if (i == 0 and first) else f"s_add_u32 s{sA}, s{sA}, {inc}"]
                op = f"buffer_load_dwordx4 v{voff}, {srd(srdn)}, s{sA} offen lds"
            else:
                sh = [m0] + (first if (i == 0 and first) else [f"s_add_u32 s{sDM}, s{sDM}, {inc}", f"s_addc_u32 s{sDM + 1}, s{sDM + 1}, 0"])
                op = f"buffer_load_dwordx4 v{voff}, {srd(sDM)}, 0 offen lds"
            for k, t in enumerate(sh):
                tl.gap(p - len(sh) + 1 + k).shadow.append(Ins(t))
            tl.gap(p).mem.append(Ins(op, tag=tag))

    def first_dmas(self, tl, p0):
        self.dmas(tl, 1, vDM, None, f"s{sINC}", "st1", p0=p0, step=4)
        self.dmas(tl, 2, vDM, [f"s_add_u32 s{sDM}, s{sU}, s{sC0}", f"s_addc_u32 s{sDM + 1}, s{sU + 1}, 0"], f"s{sINC}", "st2", p0=p0 + 36, step=4)
        self.dmas(tl, 3, vDM, None, f"s{sINC}", "st3", p0=p0 + (73 if p0 > 0 else 75), step=(4 if p0 > 0 else 5))

    def shadows(self, tl, p, seq):
        for t in seq:
            tt = t if isinstance(t, tuple) else (t,)
            while any(tl.gap(p + k).shadow for k in range(len(tt))):
                p += 1
            for x in tt:
                tl.gap(p).shadow.append(Ins(x))
                p += 1
        return p

    def gelu_items(self, base, t0, t1, idx, hreg):
        raw = []
        for j in range(8):
            rel = base + 72 + 9 * j + 8 + 4
            dl = base + 288 + 9 * j - 1
            g, t = vG + 4 * j, vGL + 4 * j
            for e in range(4):
                raw.append(("v", [Ins(f"v_fma_f32 v{t + e}, -v{g + e}, v{g + e}, s{sNK}")], rel, dl))
            for e in range(4):
                raw.append(("v", [Ins(f"v_mul_f32 v{t + e}, v{t + e}, v{g + e}")], rel, dl))
            for e in range(4):
                raw.append(("v", [Ins(f"v_exp_f32 v{t + e}, v{t + e}")], rel, dl))
            for e in range(4):
                raw.append(("v", [Ins(f"v_add_f32 v{t + e}, 1.0, v{t + e}")], rel, dl))
            for e in range(4):
                raw.append(("v", [Ins(f"v_rcp_f32 v{t + e}, v{t + e}")], rel, dl))
            for e in range(4):
                raw.append(("v", [Ins(f"v_mul_f32 v{t + e}, v{t + e}, v{g + e}")], rel, dl))
        for j in (0, 2, 4, 6, 1, 3, 5, 7):
            ct, u = j // 2, j % 2
            rel = base + 216 + 9 * j + 8 + 4
            dl = base + 288 + 144 + 9 * j - 1
            t, uu = vGL + 4 * j, vU + 4 * j
            h = hreg + 8 * (ct // 2) + 4 * u + 2 * (ct % 2)
            for e in range(4):
                raw.append(("v", [Ins(f"v_mul_f32 v{t + e}, v{t + e}, v{uu + e}")], rel, dl))
            if idx:
                offs = [16 * k for k in range(8)]
                raw.append(("x", [Ins(f"v_cvt_pk_bf16_f32 v{h + e}, v{t + 2 * e}, v{t + 2 * e + 1}", idx=offs) for e in range(2)], rel, dl))
            else:
                for e in range(2):
                    raw.append(("v", [Ins(f"v_cvt_pk_bf16_f32 v{h + e}, v{t + 2 * e}, v{t + 2 * e + 1}")], rel, dl))
        items = []
        for k, ins, rel, dl in raw:
            if k == "x":
                items.append(Item("x", ins, 0, rel, dl, pre=Ins(f"s_set_gpr_idx_on s{sHI}, 8"), post=Ins("s_set_gpr_idx_off")))
            else:
                items.append(Item("v", ins, 0, rel, dl))
        for c, i in enumerate(items):
            i.target = t0 + (t1 - t0) * c / len(items)
        return items

    def prologue(self):
        C = self.C
        s = self.seg("entry")
        if self.stamps:
            s("s_memtime s[96:97]\ns_memrealtime s[98:99]")
        s(f"""s_cmp_ge_u32 s2, 256
        s_cbranch_scc1 L_end
        s_load_dwordx16 s[48:63], s[0:1], 0
        s_load_dwordx8 s[64:71], s[0:1], 64
        v_lshrrev_b32 v{vT0}, 6, v0
        v_and_b32 v{vL}, 63, v0
        v_readfirstlane_b32 s{sW}, v{vT0}
        s_and_b32 s{sT0}, s2, 7
        s_lshr_b32 s{sT1}, s2, 3
        s_bitcmp1_b32 s2, 3
        s_cselect_b32 s{sROLE}, 1, 0
        s_lshr_b32 s{sT1}, s{sT1}, 1""")
        lc = C.bit_length() - 1
        s(f"""s_and_b32 s{sS}, s{sT0}, {8 // C - 1}
        s_lshl_b32 s{sS}, s{sS}, {lc}
        s_and_b32 s{sT2}, s{sT1}, {C - 1}
        s_add_u32 s{sS}, s{sS}, s{sT2}
        s_lshl_b32 s{sE1}, s{sT2}, 1
        s_add_u32 s{sE1}, s{sE1}, s{sROLE}
        s_lshr_b32 s{sE2}, s{sT1}, {lc}
        s_lshr_b32 s{sR}, s{sT0}, {3 - lc}
        s_lshl_b32 s{sR}, s{sR}, {4 - lc}
        s_add_u32 s{sR}, s{sR}, s{sE2}
        s_lshl_b32 s{sM0W}, s{sW}, 10
        v_lshlrev_b32 v{vL16}, 4, v{vL}
        v_lshrrev_b32 v{vT0}, 3, v{vL}
        v_and_b32 v{vT1}, 7, v{vL}
        s_lshl_b32 s{sT0}, s{sW}, 5
        v_add_u32 v{vT2}, s{sT0}, v{vT0}
        v_mul_u32_u24 v{vT2}, 1152, v{vT2}
        v_lshl_add_u32 v{vTMP}, v{vT1}, 4, v{vT2}
        v_and_b32 v{vT0}, 48, v{vL}
        v_xor_b32 v28, v{vTMP}, v{vT0}
        v_xor_b32 v29, 64, v28
        v_add_u32 v29, 9216, v29
        v_add_u32 v30, 18432, v28
        v_add_u32 v31, 18432, v29
        s_mul_i32 s{sT0}, s{sR}, 147456
        s_mul_i32 s{sT1}, s{sS}, 1152""")
        if self.o.get("cpf", 0):
            s(f"""s_getpc_b64 s[100:101]
            L_pc:
            s_lshr_b32 s{sT2}, s2, 3
            s_lshl_b32 s{sT2}, s{sT2}, 2
            s_add_u32 s{sT2}, s{sT2}, s{sW}
            v_and_b32 v32, 3, v{vL}
            v_lshl_add_u32 v32, v32, 7, s{sT2}
            v_lshlrev_b32 v32, 7, v32
            v_min_u32 v32, L_end-L_pc, v32
            v_mov_b32 v33, s101
            v_add_co_u32 v32, vcc, s100, v32
            s_nop 1
            v_addc_co_u32 v33, vcc, 0, v33, vcc""")
            if not self.o.get("cpos", 0):
                s(f"global_load_dword v{vT3}, v[32:33], off", tag="pf")
        s("s_waitcnt lgkmcnt(0)")
        self.stamp0(s)

        def mk(n, src, offreg, size, sub=False):
            s = self.segs[-1]
            if offreg is None:
                s(f"s_mov_b32 s{n}, s{src}\ns_and_b32 s{n + 1}, s{src + 1}, 0xffff")
            else:
                s(f"s_add_u32 s{n}, s{src}, s{offreg}\ns_addc_u32 s{n + 1}, s{src + 1}, 0\ns_and_b32 s{n + 1}, s{n + 1}, 0xffff")
            if sub:
                s(f"s_sub_u32 s{n + 2}, {size}, s{offreg}")
            else:
                s(f"s_mov_b32 s{n + 2}, {size}")
            s(f"s_mov_b32 s{n + 3}, 0x20000")

        mk(sX, 48, sT0, 147456)
        vXO = 28
        xl = []
        for u in range(2):
            for c in range(9):
                for r2 in range(2):
                    rg = 2 * u + r2
                    xl.append([Ins(f"s_add_u32 m0, s{sM0W}, {rg * SLOT + 4096 * c - 128 * c}"),
                               Ins(f"buffer_load_dwordx4 v{vXO + rg}, {srd(sX)}, 0 offen offset:{128 * c} lds", tag=f"x{9 * u + c}")])
        NUP = self.o.get("nup", 12)
        xpos = self.o.get("xpos", 0)
        early = self.o.get("early", 0)

        def xpref():
            per = 144 // C
            n = (per + 63) // 64
            lanes = per // n
            s(f"""s_lshl_b32 s{sT2}, s{sE1}, 2
            s_add_u32 s{sT2}, s{sT2}, s{sW}
            s_mul_i32 s{sT2}, s{sT2}, {per * 128}
            v_min_u32 v{vT2}, {lanes - 1}, v{vL}
            v_lshlrev_b32 v{vT2}, 7, v{vT2}""")
            for i in range(n):
                s(f"buffer_load_dword v{vT3}, v{vT2}, {srd(sX)}, s{sT2} offen", tag="pf")
                if i + 1 < n:
                    s(f"s_add_u32 s{sT2}, s{sT2}, {lanes * 128}")

        def xfirst(a, b):
            s = self.segs[-1]
            for q in xl[a:b]:
                s.add(q[0])
                if len(q) > 1:
                    s("s_nop 0")
                    s.add(q[1])

        if self.o.get("cpos", 0):
            xl.insert(self.o["cpos"], [Ins(f"global_load_dword v{vT3}, v[32:33], off", tag="pf")])
        xsplit = self.o.get("xsplit", 0)
        if xsplit:
            n = 72 // C
            s(f"""s_mul_i32 s{sT2}, s{sE1}, {n * 128}
            s_mul_i32 s{sT3}, s{sW}, 36864
            s_add_u32 s{sT2}, s{sT2}, s{sT3}
            v_min_u32 v32, {n - 1}, v{vL}
            v_lshl_add_u32 v32, v32, 7, s{sT2}
            v_add_u32 v207, 18432, v32""")
            s(f"buffer_load_dword v{vT3}, v32, {srd(sX)}, 0 offen", tag="pf")
            xl.insert(xsplit, [Ins(f"buffer_load_dword v{vT3}, v207, {srd(sX)}, 0 offen", tag="pf")])
        xfirst(0, min(xpos, NUP))
        if self.xpf:
            xpref()
        if not early:
            xfirst(min(xpos, NUP), NUP)
        if self.stamps and not self.o.get("minst"):
            s("s_memtime s[96:97]\ns_waitcnt lgkmcnt(0)\nv_writelane_b32 v0, s96, 52")
        tlb = self.o.get("tlb", 0)
        if tlb:
            step = 5308416 // tlb // 4 // 64 * 64
            s(f"s_mul_i32 s{sA}, s{sW}, {step}")
            for i in range(tlb):
                s(f"s_load_dword s100, s[60:61], s{sA}\ns_load_dword s100, s[62:63], s{sA}\ns_add_u32 s{sA}, s{sA}, {4 * step}")
            s("s_load_dword s100, s[50:51], 0\ns_load_dword s100, s[52:53], 0\ns_load_dword s100, s[54:55], 0")
        mk(sG, 60, sT1, 5308416, sub=True)
        mk(sU, 62, sT1, 5308416, sub=True)
        s(f"""s_bitcmp1_b32 s{sS}, 1
        s_cselect_b32 s{sKV}, s54, s52
        s_cselect_b32 s{sKV + 1}, s55, s53
        s_and_b32 s{sKV + 1}, s{sKV + 1}, 0xffff
        s_mov_b32 s{sKV + 2}, 20736
        s_mov_b32 s{sKV + 3}, 0x20000
        s_cmp_ge_u32 s{sW}, 2
        s_cselect_b32 s{sPF}, s{sU}, s{sG}
        s_cselect_b32 s{sPF + 1}, s{sU + 1}, s{sG + 1}
        s_mov_b32 s{sPF + 2}, s{sG + 2}
        s_mov_b32 s{sPF + 3}, 0x20000
        s_cmp_eq_u32 s{sROLE}, 0
        s_cselect_b32 s{sC0}, 128, 0""")
        npf = 1 if C <= 2 else 2
        self.npf = npf
        lanes = 18 * C // npf
        self.pfstep = lanes * (32 // C)
        s(f"""s_and_b32 s{sT0}, s{sW}, 1
        s_lshl_b32 s{sT1}, s{sE2}, 1
        s_add_u32 s{sT0}, s{sT0}, s{sT1}
        v_lshlrev_b32 v{vT0}, {5 - lc}, v{vL}
        v_add_u32 v{vT0}, s{sT0}, v{vT0}
        v_mul_u32_u24 v{vPF}, 9216, v{vT0}
        v_mul_u32_u24 v{vPOL}, 1152, v{vT0}
        v_mov_b32 v{vT1}, {OOB}
        v_cmp_gt_u32 vcc, {lanes}, v{vL}
        s_nop 1
        v_cndmask_b32 v{vPF}, v{vT1}, v{vPF}, vcc
        v_cndmask_b32 v{vPOL}, v{vT1}, v{vPOL}, vcc""")
        spf = self.o.get("spf", 0)
        nsb = self.o.get("nsb", 3) if spf else 0

        def sbatch(b):
            s = self.segs[-1]
            if b >= nsb:
                return
            s(f"""s_lshl_b32 s{sT0}, s{sE2}, 2
            s_add_u32 s{sT0}, s{sT0}, s{sW}
            s_mul_i32 s{sT0}, s{sT0}, {spf}
            s_add_u32 s{sT0}, s{sT0}, {b * spf * 64 // C}
            s_cmp_ge_u32 s{sT0}, {576 - spf + 1}
            s_cselect_b32 s100, s{sU}, s{sG}
            s_cselect_b32 s101, s{sU + 1}, s{sG + 1}
            s_cselect_b32 s{sT1}, {576 // spf * spf}, 0
            s_sub_u32 s{sT0}, s{sT0}, s{sT1}
            s_min_u32 s{sT0}, s{sT0}, {576 - spf}
            s_mul_i32 s{sT0}, s{sT0}, 9216
            s_add_u32 s{sT0}, s{sT0}, s{sC0}
            s_add_u32 s100, s100, s{sT0}
            s_addc_u32 s101, s101, 0""")
            for j in range(spf):
                s(f"s_load_dword s{sIT}, s[100:101], {9216 * j}")

        sbatch(0)
        n2 = self.o.get("nup2", NUP)
        kvpf = f"""s_and_b32 s{sT2}, s{sE2}, 3
        s_lshl_b32 s{sT2}, s{sT2}, 2
        s_add_u32 s{sT2}, s{sT2}, s{sW}
        s_mul_i32 s{sT2}, s{sT2}, {11 * 128}
        s_cmp_eq_u32 s{sROLE}, {1 if early == 2 else 0}
        s_cselect_b32 s{sT2}, {OOB}, s{sT2}
        v_min_u32 v{vT2}, 10, v{vL}
        v_lshlrev_b32 v{vT2}, 7, v{vT2}"""
        if early:
            s(kvpf)
            if early >= 2:
                s("s_cbranch_scc1 L_nopf")
                s = self.seg("pfe")
            s(f"buffer_load_dword v{vT3}, v{vT2}, {srd(sKV)}, s{sT2} offen", tag="pf")
            for i in range(npf):
                s(f"s_add_u32 s{sT0}, s{sC0}, {i * self.pfstep * 9216}")
                s(f"buffer_load_dword v{vT3}, v{vPF}, {srd(sPF)}, s{sT0} offen", tag="pf")
                if early >= 2:
                    s(f"s_mov_b32 s{sT0}, {(128 if early == 3 else 0) + i * self.pfstep * 9216}")
                    s(f"buffer_load_dword v{vT3}, v{vPF}, {srd(sPF)}, s{sT0} offen", tag="pf")
            if early >= 2:
                s = self.seg("entry2")
                s("L_nopf:")
            xfirst(min(xpos, NUP), NUP)
        s(f"s_mul_i32 s{sT0}, s{sR}, 147456")
        mk(sOUT, 66, sT0, 147456)
        s(f"s_mul_i32 s{sT0}, s{sS}, 663552\ns_mul_i32 s{sT1}, s{sS}, 144")
        mk(sD, 64, sT0, 663552)
        mk(sQ, 50, sT1, 663552, sub=True)
        mk(sWS, 70, None, WS_SIZE)
        mk(sDBG, 68, None, 256)
        mk(sWO, 56, None, 663552)
        s(f"""s_add_u32 s{sT0}, s{sC0}, {8 * 32 * 9216}
        s_add_u32 s{sDM}, s{sG if self.late else sU}, s{sT0}
        s_addc_u32 s{sDM + 1}, s{(sG if self.late else sU) + 1}, 0
        s_mov_b32 s{sDM + 2}, {31 * 9216 + 128}
        s_mov_b32 s{sDM + 3}, 0x20000""")
        s(f"""v_lshrrev_b32 v{vT0}, 2, v{vL}
        v_lshlrev_b32 v{vT0}, 7, v{vT0}
        v_and_b32 v{vT1}, 3, v{vL}
        v_lshl_add_u32 v{vT0}, v{vT1}, 3, v{vT0}
        v_bfe_u32 v{vT1}, v{vL}, 3, 2""")
        for ct in range(4):
            s(f"""v_xor_b32 v{vT2}, {ct}, v{vT1}
            v_lshl_add_u32 v{vRB + ct}, v{vT2}, 5, v{vT0}
            v_add_u32 v{vRB + 4 + ct}, 0x10000, v{vRB + ct}
            v_add_u32 v{vRB + 8 + ct}, 0x20000, v{vRB + ct}""")
        s(f"""v_bfe_u32 v{vT0}, v{vL}, 1, 2
        v_lshrrev_b32 v{vT1}, 4, v{vL}
        v_xor_b32 v{vTMP + 2}, v{vT0}, v{vT1}
        v_and_b32 v{vT1}, 1, v{vL}
        v_lshlrev_b32 v{vT1}, 4, v{vT1}
        v_lshl_add_u32 v{vTMP + 1}, v{vTMP + 2}, 5, v{vT1}""")
        vXB = (vFLG, vONE)
        aONE = 252
        s(f"""v_lshrrev_b32 v{vT0}, 5, v{vL}
        v_bfe_u32 v{vT1}, v{vL}, 3, 2
        v_lshl_add_u32 v{vT0}, v{vT0}, 3, v{vT1}
        s_and_b32 s{sT0}, s{sW}, 1
        s_lshl_b32 s{sT0}, s{sT0}, 4
        s_lshr_b32 s{sT1}, s{sW}, 1
        s_lshl_b32 s{sT1}, s{sT1}, 2
        s_add_u32 s{sT0}, s{sT0}, s{sT1}
        v_add_u32 v{vTMP + 3}, s{sT0}, v{vT0}
        v_mul_u32_u24 v{vDM}, 9216, v{vTMP + 3}
        v_add_u32 v{vDM}, v{vDM}, v{vTMP + 1}
        s_mov_b32 s{sNK}, {f32(-K0P)}
        s_mov_b32 s{sMASK}, 0
        s_mov_b32 s{sMASK + 1}, -1
        s_mov_b32 s{sINC}, {32 * 9216}
        v_bfe_u32 v{vT0}, v{vL}, 1, 3
        v_lshrrev_b32 v{vT1}, 4, v{vL}
        v_xor_b32 v{vT0}, v{vT0}, v{vT1}
        v_and_b32 v{vT2}, 7, v{vL}
        v_lshl_add_u32 v{vT0}, v{vT2}, 3, v{vT0}
        v_lshl_add_u32 v{vT0}, v{vT0}, 4, s{sM0W}
        v_bfe_u32 v{vT2}, v{vL}, 3, 1
        v_mul_u32_u24 v{vT2}, {SLOT}, v{vT2}
        v_add_u32 v{vXB[0]}, v{vT0}, v{vT2}
        v_xor_b32 v{vXB[1]}, 64, v{vXB[0]}
        v_and_b32 v{vT0}, 15, v{vL}
        v_lshlrev_b32 v{vT1}, 2, v{vT1}
        v_sub_u32 v{vT0}, v{vT0}, v{vT1}
        v_mov_b32 v{vT1}, 0x3f803f80""")
        for j in range(4):
            s(f"v_cmp_eq_u32 s[{sDG + 2 * j}:{sDG + 2 * j + 1}], {j}, v{vT0}\nv_accvgpr_write_b32 a{aONE + j}, v{vT1}")
        if not early:
            s(kvpf)
        self.stamp(s, 27)
        npre = self.o.get("npre", 0)
        if npre:
            s(f"s_cmp_eq_u32 s{sROLE}, 1\ns_cbranch_scc1 L_p1pre")
            self.seg("p0x")
            xfirst(NUP, NUP + npre)
            self.segs[-1]("s_branch L_ln")
            self.p1pre()
            k = self.segs[-1]
            old, k.ins = k.ins, [Ins("L_p1pre:")]
            step = len(old) // npre
            pos = [step * (j + 1) - 1 for j in range(npre)]
            j = 0
            for n, i in enumerate(old):
                k.add(i)
                nxt = old[n + 1] if n + 1 < len(old) else None
                dead = True
                for y in old[n + 1:]:
                    if y.op.startswith("s_cselect") or y.op.startswith("s_addc"):
                        dead = False
                        break
                    if y.kind == "salu" and not y.op.startswith(("s_mov", "s_mul", "s_nop")):
                        break
                if j < npre and n >= pos[j] and dead:
                    q = xl[NUP + j]
                    k.extend([Ins(q[0].text), Ins("s_nop 0"), Ins(q[1].text, tag=q[1].tag)] if len(q) > 1 else [Ins(q[0].text, tag=q[0].tag)])
                    j += 1
            assert j == npre
            NUP += npre
            n2 = max(n2, NUP)
        else:
            s(f"s_cmp_eq_u32 s{sROLE}, 0\ns_cbranch_scc1 L_ln")
            self.p1pre()
        s = self.seg("ln")
        s("L_ln:")
        xfirst(NUP, n2)
        NUP = n2
        if tlb or spf:
            s("s_waitcnt lgkmcnt(0)")
        pf1, pf2 = [], []
        if self.wpf and not early:
            pf1.append([Ins(f"buffer_load_dword v{vT3}, v{vT2}, {srd(sKV)}, s{sT2} offen", tag="pf")])
            for i in range(npf if self.o.get("vpf", 1) else 0):
                pf1.append([Ins(f"s_add_u32 s{sT0}, s{sC0}, {i * self.pfstep * 9216}"),
                            Ins(f"buffer_load_dword v{vT3}, v{vPF}, {srd(sPF)}, s{sT0} offen", tag="pf")])
        if self.wpf and self.o.get("qpf", 1) == 2:
            for i in range(npf):
                pf1.append([Ins(f"s_lshr_b32 s{sT1}, s{sW}, 1"), Ins(f"s_mul_i32 s{sT1}, s{sT1}, 140"), Ins(f"s_add_u32 s{sT1}, s{sT1}, {i * self.pfstep * 1152}"),
                            Ins(f"s_cmp_eq_u32 s{sROLE}, 0"), Ins(f"s_cselect_b32 s{sT1}, {OOB}, s{sT1}"),
                            Ins(f"buffer_load_dword v{vT3}, v{vPOL}, {srd(sQ)}, s{sT1} offen", tag="pf")])
        self.pf2 = lambda col: [x for i in range(npf) for x in (Ins(f"s_mov_b32 s{sT0}, {col + i * self.pfstep * 9216}"),
                                                                 Ins(f"buffer_load_dword v{vT3}, v{vPF}, {srd(sPF)}, s{sT0} offen", tag="pf"))]
        wl = []
        for st in range(3):
            for i in range(9):
                wl.append([Ins(f"s_add_u32 m0, s{sM0W}, {st * SLOT + 4096 * i}"),
                           Ins(f"s_mov_b32 s{sA}, s{sC0}" if (i == 0 and st % 2 == 0) else f"s_add_u32 s{sA}, s{sA}, s{sINC}"),
                           Ins(f"buffer_load_dwordx4 v{vDM}, {srd(sG if st < 2 else sU)}, s{sA} offen lds", tag=f"st{st}", need=[f"lds:xr{st // 2}"])])
        if self.late:
            wl = wl[:9] + pf1[1:]
            pf1 = pf1[:1]
        pfpos = max(NUP, self.o.get("pfpos", len(xl)))
        g0 = self.o.get("g0", 0)
        w1 = self.o.get("w1", 18)
        wskip = self.o.get("wskip", 0)
        q0 = xl[NUP:pfpos] + (wl[:g0] if pfpos == len(xl) else []) + pf1 + xl[pfpos:]
        xq = self.o.get("xq", 18)
        q0 = q0[:xq] + [None] * (18 - xq) + q0[xq:]
        vSU, vGR, vK = 32, 36, 2

        def xread(u, c, hh):
            return Ins(f"ds_read_b128 {vr(vRAW + 4 * (2 * c + hh))}, v{vXB[hh]} offset:{4096 * c}", tag=f"xr{u}", need=[f"x{9 * u + c}"])

        def xwait(u, c):
            return Ins("s_waitcnt vmcnt(63)", auto=[f"x{9 * u + c}"])

        def vmop(s, q, pad):
            s.extend(q[:-1])
            if pad and len(q) == 2 and "m0" in q[0].wr:
                s("s_nop 0")
            s.add(q[-1])

        for u in range(2):
            queue = q0 if u == 0 else [None] * wskip + wl[g0:w1]
            if u == 0:
                for c in range(2):
                    s.add(xwait(0, c))
                    s.extend([xread(0, c, 0), xread(0, c, 1)])
                    if c == 0:
                        self.stamp(s, 10)
            s(f"s_waitcnt lgkmcnt({0 if (u == 1 and nsb > 1) else 2})")
            for c in range(9):
                for hh in range(2):
                    n = 2 * c + hh
                    r, lo = vRAW + 4 * n, vLO + 4 * n
                    s(f"v_mfma_f32_16x16x32_bf16 {vr(vSU)}, {ar(aONE)}, {vr(r)}, {'0' if n == 0 else vr(vSU)}")
                    if hh == 0 and c + 2 < 9:
                        s.add(xwait(u, c + 2))
                        s.add(xread(u, c + 2, 0))
                    if hh == 1 and queue:
                        q = queue.pop(0)
                        if q:
                            vmop(s, q, True)
                    for j in range(4):
                        s(f"v_lshlrev_b32 v{lo + j}, 16, v{r + j}")
                    s(f"v_mfma_f32_16x16x32_bf16 {vr(vGR)}, {vr(r)}, {vr(r)}, {'0' if n == 0 else vr(vGR)}")
                    if hh == 0:
                        q = queue.pop(0) if queue else None
                        if q:
                            s.extend(q[:-1])
                        if c + 2 < 9:
                            s.add(xread(u, c + 2, 1))
                        elif q and len(q) == 2:
                            s("s_nop 0")
                        if q:
                            s.add(q[-1])
                    elif c < 8:
                        s(f"s_waitcnt lgkmcnt({2 if c + 2 < 9 else 0})")
                    for j in range(4):
                        s(f"v_and_b32 v{r + j}, 0xffff0000, v{r + j}")
            self.stamp(s, 11 + 2 * u)
            if u == 0:
                s(f"v_add_u32 v{vXB[0]}, {2 * SLOT}, v{vXB[0]}\nv_add_u32 v{vXB[1]}, {2 * SLOT}, v{vXB[1]}\ns_nop 1")
            else:
                assert not queue
                queue = wl[w1:]
                s(f"""s_cmp_eq_u32 s{sROLE}, 0
                s_cbranch_scc1 L_nokv""")
                k = self.seg("kvdma")
                for i in range(5):
                    k(f"s_add_u32 m0, s{sM0W}, {3 * SLOT + 4096 * i}")
                    k(f"s_mov_b32 s{sT0}, {4608 * i}")
                    k(f"buffer_load_dwordx4 v{vKD}, {srd(sKV)}, s{sT0} offen lds", tag="kvimg", need=["lds:xr1"])
                s = self.seg("ln2")
                s("L_nokv:\ns_nop 1")
            sbatch(1 + u)
            s(f"v_cndmask_b32 v{vGR}, 0, v{vGR}, s[{sDG}:{sDG + 1}]")
            for j in range(1, 4):
                s(f"v_cndmask_b32 v{vGR}, v{vGR}, v{vGR + j}, s[{sDG + 2 * j}:{sDG + 2 * j + 1}]")
            s(f"""v_mov_b32 v{vGR + 1}, v{vGR}
            v_mul_f32 v{vSU}, {f32(1 / 576)}, v{vSU}
            s_nop 0
            v_permlane16_swap_b32 v{vGR}, v{vGR + 1}
            v_add_f32 v{vGR}, v{vGR}, v{vGR + 1}
            v_mov_b32 v{vGR + 1}, v{vGR}
            v_mul_f32 v{vSU + 1}, v{vSU}, v{vSU}
            s_nop 0
            v_permlane32_swap_b32 v{vGR}, v{vGR + 1}
            v_add_f32 v{vGR}, v{vGR}, v{vGR + 1}
            v_mul_f32 v{vGR}, {f32(1 / 576)}, v{vGR}
            v_sub_f32 v{vGR}, v{vGR}, v{vSU + 1}
            v_max_f32 v{vGR}, 0, v{vGR}
            v_add_f32 v{vGR}, {f32(1e-5)}, v{vGR}
            v_rsq_f32 v{vGR}, v{vGR}
            s_nop 0
            v_mul_f32 v{vK}, {f32(ALPHA)}, v{vGR}
            v_mul_f32 v{vK + 1}, v{vK}, -v{vSU}""")
            for n in range(18):
                r, lo = vRAW + 4 * n, vLO + 4 * n
                k = vr(vK, 2)
                lim = 16 if u == 0 else 18
                while queue and (n % 2 == 0 or len(queue) > (lim - n) // 2):
                    vmop(s, queue.pop(0), True)
                    if len(queue) < lim - n:
                        break
                if u == 0 and n == 16:
                    assert not queue
                    s.add(xwait(1, 1))
                    s.extend([xread(1, c, hh) for c in range(2) for hh in range(2)])
                for j in (0, 2):
                    s(f"v_pk_fma_f32 {vr(lo + j, 2)}, {vr(lo + j, 2)}, {k}, {k} op_sel:[0,0,1] op_sel_hi:[1,0,1]")
                    s(f"v_pk_fma_f32 {vr(r + j, 2)}, {vr(r + j, 2)}, {k}, {k} op_sel:[0,0,1] op_sel_hi:[1,0,1]")
                for j in range(4):
                    s(f"v_cvt_pk_bf16_f32 v{lo + j}, v{lo + j}, v{r + j}")
                for j in range(4):
                    s(f"v_accvgpr_write_b32 a{aXN + 4 * (18 * u + n) + j}, v{lo + j}")
            assert not queue
            self.stamp(s, 12 + 2 * u)
        s(f"""v_mov_b32 v{vT1}, {OOB}
        v_cmp_eq_u32 vcc, 0, v{vL}
        v_mov_b32 v{vONE}, 1
        s_nop 0
        v_cndmask_b32 v{vFLG}, v{vT1}, 0, vcc""")
        if nsb > 2:
            s("s_waitcnt lgkmcnt(0)")
        self.stamp(s, 1)
        s(f"""s_cmp_lg_u32 s{sROLE}, 0
        s_cbranch_scc1 L_p1""")

    def stamp0(self, s):
        if not self.stamps:
            return
        s(f"""s_memtime s[58:59]
        s_waitcnt lgkmcnt(0)
        v_writelane_b32 v0, s58, 38
        v_writelane_b32 v0, s96, 0
        v_writelane_b32 v0, s98, 1""")

    def p0(self):
        tl = Timeline()
        xb = lambda h: (lambda u, i: xn(u, 9 * h + i))
        for st, (acc, h) in enumerate(((vG, 0), (vG, 1), (vU, 0), (vU, 1), (vG, 0), (vG, 1))):
            self.std_mfmas(tl, 4 * st, 72 * st, acc, xb(h), h == 0)
            tl.put_reads(self.std_reads(4 * st, 72 * st, st % 4, f"r{st % 4}"))
            if st:
                self.barrier(tl, 72 * st - DD, [f"st{st % 4}"], f"r{(st - 1) % 4}")
        for st in range(3, 9):
            sl = st % 4
            first = [f"s_mov_b32 s{sDM}, s{pG if sl < 2 else pU}", f"s_mov_b32 s{sDM + 1}, s{(pG if sl < 2 else pU) + 1}"] if sl % 2 == 0 else None
            self.dmas(tl, st, vDM, first, f"s{sINC}", f"st{sl}")
        tl.gap(306).mem.append(Ins(f"buffer_load_dword v{vPOL}, off, {srd(sDBG)}, s{sPOL} sc1", tag="poll"))
        e = self.shadows(tl, 360, [f"s_mov_b32 s{sINC}, s{sINN}", f"s_mov_b32 s{sDM + 2}, s{sNRN}"])
        assert e <= 365
        tl.gap(362).valu.append(Ins(f"v_mov_b32 v{vDM}, v{vDN}"))
        self.shadows(tl, 120, [f"s_add_u32 s{sHI}, s{sHI}, 16", f"s_and_b32 s{sHI}, s{sHI}, 127", f"s_add_u32 s{sIT}, s{sIT}, 1",
                               (f"s_add_u32 s{pG}, s{pG}, 128", f"s_addc_u32 s{pG + 1}, s{pG + 1}, 0"),
                               (f"s_cmp_eq_u32 s{sIT}, 6", f"s_cselect_b32 s{sPOL}, s{sT3}, {OOB}")])
        self.shadows(tl, 224, [(f"s_add_u32 s{pU}, s{pU}, 128", f"s_addc_u32 s{pU + 1}, s{pU + 1}, 0")])
        tl.gap(287).shadow.append(Ins(f"s_cmp_lt_u32 s{sIT}, 7"))
        V = self.gelu_items(0, 85, 371, True, vH)
        pk = dict(ahead=12, pack=self.o["pack"], lagmax=4.0) if "pack" in self.o else {}
        nV0 = len(V)
        tl.fill(85, 144, V, **pk)
        nV1 = nV0 - len(V)
        tl.fill(144, 288, V, **pk)
        state = {"V": [i.ins[0].text for i in V]}
        tl.fill(288, 373, V, flush=10 ** 9, **pk)
        for p in range(288, 373):
            tl.g[p - 288] = tl.g[p]
        pre = [(p, m) for p in range(262, 268) for m in tl.gap(p).mem if m.kind == "lds"]
        state["out"] = tl.insert_lgkm_waits(268, 288, pre)
        o144 = tl.insert_lgkm_waits(0, 144, [(p - 288, m) for p, m in state["out"]])
        tl.insert_lgkm_waits(144, 268, o144)
        prew = [m for m in tl.gap(268).mem if m.kind == "lds"]
        prew += [m for p in range(269, 288) for m in tl.gap(p).ins() if m.kind == "lds" or (m.kind == "wait" and m.lg is not None)]
        s = self.seg("p0pre")
        if self.wpf:
            for c in range(self.o.get("npf0", 1)):
                s.extend(self.pf2(256 + 128 * c))
            if self.o.get("qpf", 1) == 3:
                for i in range(self.npf):
                    s(f"s_lshr_b32 s{sT1}, s{sW}, 1\ns_mul_i32 s{sT1}, s{sT1}, 140\ns_add_u32 s{sT1}, s{sT1}, {i * self.pfstep * 1152}")
                    s(f"buffer_load_dword v{vT3}, v{vPOL}, {srd(sQ)}, s{sT1} offen", tag="pf")
        late = self.late
        s(f"""s_add_u32 s{pG}, s{sG}, {384 if late else 256}
        s_addc_u32 s{pG + 1}, s{sG + 1}, 0
        s_add_u32 s{pU}, s{sU}, 256
        s_addc_u32 s{pU + 1}, s{sU + 1}, 0
        s_mov_b32 s{sIT}, {self.o.get("dbgskip", 0) + (1 if late else 0)}
        s_mov_b32 s{sHI}, {0 if late else 112}
        s_mov_b32 s{sPOL}, {OOB}
        s_lshl_b32 s{sT3}, s{sR}, 2
        s_add_u32 s{sT3}, s{sT3}, 128
        s_mov_b32 s{sINN}, s{sINC}
        s_mov_b32 s{sNRN}, s{sDM + 2}
        v_mov_b32 v{vDN}, v{vDM}""")
        s("s_waitcnt vmcnt(63)", auto=["st0"])
        s("s_barrier", need=["st0"])
        if late:
            tp = Timeline()
            for st, (acc, h) in enumerate(((vG, 0), (vG, 1), (vU, 0))):
                self.std_mfmas(tp, 4 * st, 72 * st, acc, xb(h), h == 0)
                tp.put_reads(self.std_reads(4 * st, 72 * st, st, f"r{st}"))
                if st:
                    self.barrier(tp, 72 * st - DD, [f"st{st}"], f"r{st - 1}")
            self.first_dmas(tp, -DD + 2)
            self.dmas(tp, 4, vDM, [f"s_add_u32 s{sDM}, s{sG}, 256", f"s_addc_u32 s{sDM + 1}, s{sG + 1}, 0"], f"s{sINC}", "st0", p0=103, step=5)
            V1 = self.gelu_items(0, 85, 371, True, vH)[:nV1]
            tp.fill(85, 144, V1, flush=10 ** 9)
            tp.insert_lgkm_waits(-DD, 144, [])
            s.extend(tp.emit(-DD, 144))
            s(f"s_waitcnt lgkmcnt({min(15, len(o144))})")
            s(".p2align 3")
            a = self.seg("aloop2")
            a("L_amid:")
            a.extend(tl.emit(144, 288))
            a("s_cbranch_scc0 L_aexit")
            a = self.seg("aloop")
            a("L_aloop:")
            a.extend(tl.emit(0, 144))
            a("s_branch L_amid")
        else:
            s.extend(prew)
            s(".p2align 3")
            a = self.seg("aloop")
            a("L_aloop:")
            a.extend(tl.emit(0, 144))
            a = self.seg("aloop2")
            a.extend(tl.emit(144, 288))
            a("s_cbranch_scc1 L_aloop")
        a2 = self.seg("aexit")
        a2(f"""L_aexit:
        s_cmp_eq_u32 s{sIT}, 7
        s_cbranch_scc0 L_bstart""")
        w = self.seg("aswitch")
        w(f"""v_readfirstlane_b32 s{sT0}, v{vPOL}
        s_mov_b32 s{sT1}, 0
        s_cmp_ge_u32 s{sT0}, 8
        s_cbranch_scc1 L_hready""")
        sp = self.seg("hspin")
        sp(f"""L_hspin:
        buffer_load_dword v{vPOL}, off, {srd(sDBG)}, s{sT3} sc1
        s_add_u32 s{sT1}, s{sT1}, 1
        s_waitcnt vmcnt(0)
        v_readfirstlane_b32 s{sT0}, v{vPOL}
        s_cmp_gt_u32 s{sT1}, 0x40000
        s_cbranch_scc1 L_end
        s_cmp_ge_u32 s{sT0}, 8
        s_cbranch_scc0 L_hspin""")
        w = self.seg("aswitch2")
        w(f"""L_hready:
        s_lshl_b32 s{sT0}, s{sR}, 3
        s_add_u32 s{sT0}, s{sT0}, s{sS}
        s_lshl_b32 s{sT1}, s{sT0}, 2
        s_add_u32 s{sT1}, s{sT1}, s{sW}
        s_lshl_b32 s{sT1}, s{sT1}, 12
        s_add_u32 s{sT1}, s{sT1}, {WS_HX}""")
        rest = f"""s_mov_b32 s{sINN}, {32 * 1152}
        s_mov_b32 s{sNRN}, {31 * 1152 + 128}
        s_lshl_b32 s{sC0}, s{sS}, 7
        s_add_u32 s{pG}, s{sD}, s{sC0}
        s_addc_u32 s{pG + 1}, s{sD + 1}, 0
        s_add_u32 s{sC0}, s{sC0}, 128
        s_and_b32 s{sC0}, s{sC0}, 1023
        s_add_u32 s{pU}, s{sD}, s{sC0}
        s_addc_u32 s{pU + 1}, s{sD + 1}, 0
        v_lshrrev_b32 v{vT0}, 3, v{vL}
        s_lshl_b32 s{sC1}, s{sW}, 3
        v_add_u32 v{vT0}, s{sC1}, v{vT0}
        v_mul_u32_u24 v{vT0}, 1152, v{vT0}
        v_add_u32 v{vDN}, v{vT0}, v{vTMP + 1}
        v_lshlrev_b32 v{vT0}, 9, v{vL}
        v_mov_b32 v{vT1}, {OOB}
        v_cmp_gt_u32 vcc, 8, v{vL}
        v_lshlrev_b32 v{vT2}, 3, v{vL}
        s_mul_i32 s{sT2}, s{sT0}, {9 * 16384}
        v_cndmask_b32 v{vT0}, v{vT1}, v{vT0}, vcc
        s_lshl_b32 s{sC1}, s{sW}, 12
        s_add_u32 s{sT2}, s{sT2}, s{sC1}
        s_add_u32 s{sT2}, s{sT2}, {WS_PART}
        s_mul_i32 s{sSTN}, s{sS}, {9 * 16384 - 512}
        s_sub_u32 s{sSTN}, s{sT2}, s{sSTN}
        s_lshl_b32 s{sT3}, s{sR}, 12
        s_lshl_b32 s{sC1}, s{sW}, 7
        s_add_u32 s{sT3}, s{sT3}, s{sC1}
        s_lshl_b32 s{sC1}, s{sS}, 2
        s_add_u32 s{sT3}, s{sT3}, s{sC1}
        s_add_u32 s{sT3}, s{sT3}, {WS_FLAG + 32}""".split("\n")
        for k in range(4):
            w(f"buffer_load_dwordx4 {ar(aH0 + 4 * k)}, v{vL16}, {srd(sWS)}, s{sT1} offen offset:{1024 * k} sc1", tag="h0")
            w("\n".join(rest[11 * k:11 * k + 11]))
        w("s_branch L_aloop")

        def hb(h):
            def f(u, i):
                k = 9 * h + i
                c, a_ = k // 2, k % 2
                if c == 0:
                    return ar(aH0 + 8 * a_ + 4 * u)
                return vr(vH + 16 * (c - 1) + 8 * a_ + 4 * u)
            return f

        def outv(base, tag):
            V = []
            for j in range(8):
                ct, u = j // 2, j % 2
                rel = base + 72 + 9 * j + 8 + 8
                dl = base + 144 + 9 * j - 1
                p = vU + 8 * (ct // 2) + 4 * u + 2 * (ct % 2)
                for e in range(2):
                    V.append(Item("v", Ins(f"v_cvt_pk_bf16_f32 v{p + e}, v{vG + 4 * j + 2 * e}, v{vG + 4 * j + 2 * e + 1}"), rel + e, rel, dl))
                st = lambda k, t: Item("m", Ins(f"buffer_store_dwordx4 {vr(vU + 4 * k)}, v{vL16}, {srd(sWS)}, s{sST} offen offset:{1024 * k} sc1", tag=tag), t + 1, t)
                if self.o.get("stg", 1):
                    if j >= 4:
                        V.append(st(j - 4, rel + (4 if j < 6 else 1)))
                elif ct % 2 == 1:
                    V.append(st(2 * (ct // 2) + u, rel + 1))
            return V

        tb = Timeline()
        fpos = self.o.get("fpos", 124)
        for st in range(8):
            h = st % 2
            self.std_mfmas(tb, 4 * st, 72 * st, vG, hb(h), h == 0)
            tb.put_reads(self.std_reads(4 * st, 72 * st, st % 4, f"r{st % 4}"))
            if st:
                self.barrier(tb, 72 * st - DD, [f"st{st % 4}"], f"r{(st - 1) % 4}")
        for st in range(3, 9):
            first = [f"s_mov_b32 s{sDM + 2}, s{sNRN}", f"s_add_u32 s{sDM}, s{sD}, s{sC0}", f"s_addc_u32 s{sDM + 1}, s{sD + 1}, 0"]
            self.dmas(tb, st, vDM, first if st % 2 == 0 else None, 32 * 1152, f"st{st % 4}")
        for step in range(3):
            base = 144 * step
            prev = f"part{(step - 1) % 2}"
            g = tb.gap(base + fpos)
            if g.bar:
                g.shadow[0].auto.append(prev)
            else:
                g.shadow.append(Ins("s_waitcnt vmcnt(63)", auto=[prev]))
            g.mem.append(Ins(f"buffer_store_dword v{vONE}, v{vFLG}, {srd(sWS)}, s{sFL} offen sc1", tag="flag", need=[f"old:{prev}/0"]))
            e = self.shadows(tb, base + 24, [f"s_add_u32 s{sT0}, s{sIT}, s{sS}", f"s_and_b32 s{sT1}, s{sT0}, 7",
                                             f"s_add_u32 s{sT0}, s{sT0}, 2", f"s_and_b32 s{sT0}, s{sT0}, 7",
                                             (f"s_cmp_lt_u32 s{sIT}, 6", f"s_cselect_b32 s{sT0}, s{sT0}, 8"),
                                             f"s_lshl_b32 s{sC0}, s{sT0}, 7",
                                             (f"s_cmp_lt_u32 s{sIT}, 7", f"s_cselect_b32 s{sNRN}, s{sNRN}, 0"),
                                             f"s_lshl_b32 s{sST}, s{sT1}, 14", f"s_add_u32 s{sST}, s{sST}, s{sT2}",
                                             f"s_mov_b32 s{sFL}, s{sFLN}", f"s_lshl_b32 s{sFLN}, s{sT1}, 9",
                                             f"s_add_u32 s{sFLN}, s{sFLN}, s{sT3}", f"s_add_u32 s{sIT}, s{sIT}, 1"])
            assert e < base + min(fpos, 76)
        tb.gap(287).shadow.append(Ins(f"s_cmp_eq_u32 s{sIT}, 8"))
        Vall = self.gelu_items(-288, 0, 1, False, vH + 112)
        nrem = sum(2 if t.startswith("v_cvt") else 1 for t in state["V"])
        V = Vall[len(Vall) - nrem:]
        assert V[0].ins[0].text == state["V"][0], (V[0].ins[0].text, state["V"][0])
        for c, i in enumerate(V):
            i.target = 82.0 * c / len(V)
            if i.ins[0].op.startswith("v_cvt"):
                u = ((int(i.ins[0].wr[0][1:]) - vH) // 4) % 2
                i.deadline = 72 + 7 + 9 * u - 2
        bstate = []
        o = [(p - 288, m) for p, m in state["out"]]
        for step in range(3):
            V += outv(144 * step, f"part{step % 2}")
            tb.fill(144 * step, 144 * step + 144, V)
            o = tb.insert_lgkm_waits(144 * step, 144 * step + 144, o)
            bstate.append(([i.ins[0].text for i in V], len(o)))
            if step == 1:
                nleft, o1 = len(V), list(o)
            for p in range(144 * step + 20, 144 * step + 90):
                assert not any(m.op.startswith("buffer_store_dwordx4") for m in tb.gap(p).mem)
        assert bstate[0][0] == bstate[2][0] and bstate[2][1] <= bstate[0][1], bstate
        te = Timeline()
        for st in (4, 5):
            self.std_mfmas(te, 4 * st, 72 * st, vG, hb(st % 2), st == 4)
            te.put_reads(self.std_reads(4 * st, 72 * st, st % 4, f"r{st % 4}"))
        self.barrier(te, 360 - DD, ["st1"], "r0")
        te.gap(288 + fpos).shadow.append(Ins("s_waitcnt vmcnt(63)", auto=["part1"]))
        te.gap(288 + fpos).mem.append(Ins(f"buffer_store_dword v{vONE}, v{vFLG}, {srd(sWS)}, s{sFLN} offen sc1", tag="flag", need=["part1"]))
        te.gap(300).shadow.append(Ins(f"s_add_u32 s{sT3}, s{sT3}, 32"))
        V = outv(144, "part1")[-nleft:]
        for j in range(8):
            ct, u = j // 2, j % 2
            rel = 360 + 9 * j + 8 + (4 if j < 4 else 8)
            te.gap(360 + 9 * j + 7).shadow.append(Ins(f"s_add_u32 s{sA + (j % 2)}, s{sSTN}, {((ct + 4 * u) * 9 + 8) * 16384}"))
            for e in range(2):
                V.append(Item("v", Ins(f"v_cvt_pk_bf16_f32 v{vGL + 2 * j + e}, v{vG + 4 * j + 2 * e}, v{vG + 4 * j + 2 * e + 1}"), rel, rel))
            V.append(Item("m", Ins(f"buffer_store_dwordx2 {vr(vGL + 2 * j, 2)}, v{vT2}, {srd(sWS)}, s{sA + (j % 2)} offen sc1", tag="part0"), rel + 1, rel + 1))
        te.fill(288, 432, V)
        te.insert_lgkm_waits(288, 432, o1)
        s = self.seg("b0")
        s(f"""L_bstart:
        s_mov_b32 s{sIT}, 0
        s_mov_b32 s{sFLN}, {OOB}""")
        self.stamp(s, 2)
        s.extend(tb.emit(0, 144))
        s(".p2align 3")
        bl = self.seg("bloop")
        bl("L_bloop:")
        bl.extend(tb.emit(144, 288))
        bl("s_cbranch_scc1 L_blast")
        bl = self.seg("bloop2")
        bl.extend(tb.emit(288, 432))
        bl("s_branch L_bloop\n.p2align 3")
        e = self.seg("bend")
        e("L_blast:")
        e.extend(te.emit(288, 432))
        e("s_nop 6")
        for it in V:
            e.extend(it.ins)
        self.stamp(e, 3)
        e("s_waitcnt vmcnt(0)")
        e(f"buffer_store_dword v{vONE}, v{vT0}, {srd(sWS)}, s{sT3} offen sc1", need=["part0", "part1"])
        self.stamp(e, 4, True)
        self.stamp_flush(e)
        e("s_endpgm")

    def text(self):
        head = open("cdna_kernels/" + NAME + ".s.ref").read()
        lines = head.split("\n")
        top = [l for l in lines if l.startswith(";") and "@launch" not in l and "Override" not in l and "grid=ceil" not in l]
        out = "\n".join(top) + "\n; @launch grid=(256,1,1) block=(256,1,1) lds=163840\n"
        out += """; One launch, 256 workgroups (one per CU), two roles per (128-token block r, split s):
; Generated by my own scheduler scripts (MFMA gap scheduling, counted waits, hazard checks).
"""
        out += f""".amdgcn_target "amdgcn-amd-amdhsa--gfx950"
.text
.globl {NAME}_kernel
.p2align 8
.type {NAME}_kernel,@function
{NAME}_kernel:
"""
        for s in self.segs:
            out += f"; ---- {s.name}\n" + s.text()
        out += f"""L_end:
    s_endpgm
.section .rodata,"a"
.p2align 6
.amdhsa_kernel {NAME}_kernel
  .amdhsa_next_free_vgpr 512
  .amdhsa_next_free_sgpr 102
  .amdhsa_accum_offset 256
  .amdhsa_group_segment_fixed_size 0
  .amdhsa_kernarg_size 96
  .amdhsa_user_sgpr_count 2
  .amdhsa_user_sgpr_kernarg_segment_ptr 1
  .amdhsa_system_sgpr_workgroup_id_x 1
.end_amdhsa_kernel
"""
        return out

    def trace(self, names):
        d = {s.name: s for s in self.segs}
        t = []
        for n in names:
            if n in d:
                t += d[n].ins
            else:
                assert n in ("pfe", "entry2", "p0x"), n
        return t
```

```python
from gen import *

vQ1, vQ2 = 96, 112
vS_, vO_, vH1 = 32, 128, 192
aK1, aK2, aV_ = 216, 224, 232
aKV = 216
vKVA, vEX = 192, 32
(vEP, vKR, vINB, vQM, vQX, vRX, vDP, vKA, vK2A, vVA, vIDX, vWM, vWX, vWN, vWNX, vXN, vPD, vOE, vFO, vBA, vXNA, vOA, vRN, vOL,
 vAND, vOR, vZ) = range(209, 236)
vL8, vL16B = 246, 247
vSEL = 236
vXB, vXE = 248, 252
XRES, XRESN = 94208, 151552
sXL, sXN, sPB, sPG, sK2, sK1, sKS, sOM, sOF, sHA, sSK = 48, 49, 50, 51, 68, 69, 70, 71, 0, 1, 3
sRDY, sTODO, sLST, sOM0, sOM1, sRO = 60, 61, 62, 63, 64, 65
MSK = f"s[{sMASK}:{sMASK + 1}]"
MK2 = f"s[{sMK2}:{sMK2 + 1}]"


class Gen1(Gen):
    def spin(self, name, mask, lim="0x40000"):
        s = self.seg(name)
        s(f"""s_mov_b32 s{sT1}, 0
        L_{name}:
        buffer_load_dword v{vPOL}, v{vINB}, {srd(sWS)}, s{sFL} offen sc1
        s_add_u32 s{sT1}, s{sT1}, 1
        s_cmp_gt_u32 s{sT1}, {lim}
        s_cbranch_scc1 L_end
        s_waitcnt vmcnt(0)
        v_cmp_eq_u32 vcc, 0, v{vPOL}
        s_nop 1
        s_and_b64 vcc, vcc, {mask}
        s_cbranch_scc1 L_{name}""")

    def oolspin(self, name, mask):
        self.seg(name + "_a")(f"L_{name}_in:")
        self.spin(name, mask)
        self.seg(name + "_b")(f"s_branch L_{name}_out")

    def p1pre(self):
        s = self.seg("p1pre")
        A, B, Cc, Dd, T, G_, OB = 192, 193, 194, 195, 196, 197, 198
        a, b, c, d = sT0, sT1, sT3, sA
        s(f"""v_and_b32 v{T}, 15, v{vL}
        v_lshrrev_b32 v{G_}, 4, v{vL}
        v_mov_b32 v{OB}, {OOB}
        v_mov_b32 v{vZ}, 0
        v_mov_b32 v{vIDX}, 0xdddddddd""")
        s(f"""v_lshrrev_b32 v{A}, 1, v{vL}
        v_mul_u32_u24 v{B}, 36, v{A}
        v_and_b32 v{Dd}, 1, v{vL}
        v_lshl_add_u32 v{B}, v{Dd}, 4, v{B}
        s_and_b32 s{a}, s{sS}, 1
        s_lshl_b32 s{a}, s{a}, 5
        s_mul_i32 s{b}, s{sW}, 1152
        s_add_u32 s{a}, s{a}, s{b}
        v_add_u32 v{vKD}, s{a}, v{B}
        v_mul_u32_u24 v{A}, 1152, v{A}
        v_lshl_add_u32 v{A}, v{Dd}, 4, v{A}
        v_cndmask_b32 v{vXN}, v{A}, v{OB}, {MSK}
        v_bfe_u32 v{A}, v{vL}, 2, 2
        v_lshl_add_u32 v{A}, v{G_}, 3, v{A}
        v_and_b32 v{B}, 3, v{vL}
        v_lshlrev_b32 v{Cc}, 3, v{B}
        v_lshl_add_u32 v{Cc}, v{A}, 5, v{Cc}
        v_add_u32 v{vKR}, {3 * SLOT}, v{Cc}
        v_add_u32 v{Cc}, v{Cc}, v{Cc}
        v_add_u32 v{vRX}, {2 * SLOT}, v{Cc}
        v_lshrrev_b32 v{A}, 2, v{vL}
        v_lshlrev_b32 v{Cc}, 5, v{A}
        v_lshl_add_u32 v{Cc}, v{B}, 3, v{Cc}
        v_add_u32 v{vRN}, {2 * SLOT}, v{Cc}
        s_lshl_b32 s{a}, s{sW}, 4
        v_add_u32 v{A}, s{a}, v{A}
        v_mul_u32_u24 v{A}, 1152, v{A}
        v_mul_u32_u24 v{B}, 36, v{B}
        v_add3_u32 v{vQX}, v{A}, v{B}, 32
        v_mul_u32_u24 v{A}, 1152, v{vTMP + 3}
        v_mul_u32_u24 v{B}, 36, v{vTMP + 2}
        v_lshlrev_b32 v{Cc}, 4, v{Dd}
        v_add3_u32 v{vQM}, v{A}, v{B}, v{Cc}
        v_and_b32 v{A}, 7, v{vL}
        v_lshlrev_b32 v{vDP}, 2, v{A}
        v_lshlrev_b32 v{A}, 2, v{vL}
        v_cndmask_b32 v{vINB}, v{A}, v{OB}, {MSK}""")
        s(f"""s_bitcmp1_b32 s{sS}, 1
        s_cselect_b32 s{a}, 5, 8
        s_cselect_b32 s{sKS}, 1.0, {f32(CK)}
        s_lshl_b32 s{a}, s{a}, 6
        v_lshrrev_b32 v{A}, 5, v{vL}
        v_mul_u32_u24 v{A}, s{a}, v{A}
        v_lshl_add_u32 v{A}, v{T}, 4, v{A}
        v_and_b32 v{B}, 1, v{G_}
        v_lshl_add_u32 v{A}, v{B}, 3, v{A}
        s_and_b32 s{a}, s{sS}, 3
        s_cmp_eq_u32 s{a}, 1
        s_cselect_b32 s{b}, 16, 64
        v_cmp_gt_u32 vcc, s{b}, v{vL}
        s_cmp_eq_u32 s{a}, 3
        s_cselect_b32 s{b}, 4, 16
        s_cselect_b32 s{c}, 2, 16
        v_cndmask_b32 v{A}, v{OB}, v{A}, vcc
        v_cmp_gt_u32 vcc, s{b}, v{T}
        v_mov_b32 v{B}, 0x3f803f80
        s_lshr_b32 s{b}, s{sR}, 1
        v_cndmask_b32 v{vEP}, v{OB}, v{A}, vcc
        v_cmp_gt_u32 vcc, s{c}, v{T}
        s_lshl_b32 s{d}, s{b}, 2
        s_mul_i32 s{b}, s{b}, {KVST}
        v_cndmask_b32 v{vAND}, 0, -1, vcc
        v_cmp_eq_u32 vcc, s{c}, v{T}
        s_cmp_eq_u32 s{sW}, 0
        s_cselect_b32 s{sPOL}, s{d}, {OOB}
        v_cndmask_b32 v{vOR}, 0, v{B}, vcc
        s_lshl_b32 s{d}, s{sR}, 2
        s_add_u32 s{d}, s{d}, 128
        s_cmp_eq_u32 s{sW}, 0
        s_cselect_b32 s{sHA}, s{d}, {OOB}
        s_and_b32 s{c}, s{sR}, 1
        s_mul_i32 s{sK1}, s{c}, 640
        s_lshl_b32 s{c}, s{c}, 2
        s_add_u32 s{c}, s{c}, s{sW}
        s_lshr_b32 s{d}, s{sS}, 2
        s_lshl_b32 s{sK2}, s{c}, 1
        s_add_u32 s{sK2}, s{sK2}, s{d}
        s_mul_i32 s{sK2}, s{sK2}, 640
        s_add_u32 s{sK2}, s{sK2}, 8192
        s_lshl_b32 s{d}, s{d}, 8
        s_add_u32 s{sK1}, s{sK1}, s{d}
        s_lshl_b32 s{c}, s{c}, 10
        s_add_u32 s{c}, s{c}, s{d}
        s_bitcmp1_b32 s{sS}, 1
        s_cselect_b32 s{sK2}, s{sK2}, s{c}
        s_and_b32 s{c}, s{sS}, 1
        s_lshl_b32 s{c}, s{c}, 8
        s_add_u32 s{sK2}, s{sK2}, s{c}
        s_add_u32 s{sK2}, s{sK2}, s{b}
        s_lshl_b32 s{c}, s{sW}, 2
        s_add_u32 s{sK1}, s{sK1}, s{c}
        s_add_u32 s{sK1}, s{sK1}, s{b}
        s_add_u32 s{sK1}, s{sK1}, 18432
        s_cmp_eq_u32 s{a}, 1
        s_cselect_b32 s{sK1}, s{sK1}, {OOB}
        s_cselect_b32 s{sK2}, {OOB}, s{sK2}""")
        s(f"""s_lshl_b32 s{a}, s{sR}, 3
        s_add_u32 s{a}, s{a}, s{sS}
        s_lshl_b32 s{a}, s{a}, 2
        s_add_u32 s{a}, s{a}, s{sW}
        s_lshl_b32 s{sFL}, s{a}, 7
        s_add_u32 s{sFL}, s{sFL}, {WS_FLAG}
        s_lshl_b32 s{sST}, s{a}, 12
        s_add_u32 s{sST}, s{sST}, {WS_HX}
        s_mul_i32 s{a}, s{sS}, 508
        s_sub_u32 s{sOF}, s{sFL}, s{a}
        s_lshl_b32 s{a}, s{sR}, 2
        s_add_u32 s{a}, s{a}, s{sW}
        s_mul_i32 s{sOM}, s{a}, 36864
        s_add_u32 s{sOM}, s{sOM}, {WS_OM}
        s_mul_i32 s{sC1}, s{sW}, 5120
        s_lshl_b32 s{a}, s{sW}, 12
        s_add_u32 s{sXL}, s{a}, {XRES}
        s_mul_i32 s{sPB}, s{sR}, {8 * 9 * 16384}
        s_add_u32 s{sPB}, s{sPB}, s{a}
        s_add_u32 s{sPB}, s{sPB}, {WS_PART}
        s_lshr_b32 s{b}, s{sS}, 2
        s_mul_i32 s{a}, s{sS}, {9 * 16384}
        s_add_u32 s{a}, s{a}, {8 * 16384}
        s_add_u32 s{sFLN}, s{sPB}, s{a}
        s_lshl_b32 s{a}, s{sS}, 14
        s_add_u32 s{sPB}, s{sPB}, s{a}
        s_and_b32 s{c}, s{sS}, 3
        s_lshl_b32 s{c}, s{c}, 5
        s_add_u32 s{c}, s{c}, 1024
        s_lshl_b32 s{a}, s{sW}, 1
        s_add_u32 s{a}, s{a}, s{b}
        s_mul_i32 s{a}, s{a}, 18432
        s_add_u32 s{sXN}, s{a}, s{c}
        s_lshl_b32 s{sPFO}, s{sE2}, 2
        s_add_u32 s{sPFO}, s{sPFO}, s{sW}
        s_mul_i32 s{sPFO}, s{sPFO}, {81 * self.C * 128}
        s_mov_b32 s{sPG}, 640
        s_mov_b32 s{sSK}, 0""")
        s(f"buffer_store_dword v{vZ}, v{vINB}, {srd(sWS)}, s{sFL} offen sc1", tag="kvst")
        self.nd = 1 if self.C <= 2 else 2
        self.dl = -(-81 * self.C // (4 * self.nd))
        s(f"""v_min_u32 v{A}, {self.dl - 1}, v{vL}
        v_lshlrev_b32 v{vPD}, 7, v{A}
        v_add_u32 v{vKA}, {KVS0}, v{vL16}
        v_add_u32 v{A}, {KVS0 + 18432}, v{vL16}
        v_mov_b32 v{B}, {KVS0 + 8192 + 288}
        v_cndmask_b32 v{vK2A}, v{A}, v{B}, {MSK}
        v_and_b32 v{A}, 31, v{vL}
        v_cmp_eq_u32 vcc, 22, v{A}
        v_min_u32 v{B}, 19, v{A}
        v_lshrrev_b32 v{A}, 5, v{vL}
        v_cndmask_b32 v{B}, v{B}, 18, vcc
        v_mul_u32_u24 v{Cc}, 320, v{A}
        v_lshl_add_u32 v{Cc}, v{B}, 4, v{Cc}
        v_add_u32 v{vVA}, {KVS0 + 8192}, v{Cc}""")
        s(f"""v_bfe_u32 v{B}, v{vL}, 3, 2
        v_mad_u32_u24 v{Cc}, v{A}, 18, v{B}
        s_lshl_b32 s{a}, s{sW}, 2
        v_add_u32 v{Cc}, s{a}, v{Cc}
        v_mul_u32_u24 v{Cc}, 1152, v{Cc}
        s_lshl_b32 s{d}, s{sS}, 7
        v_add3_u32 v{vWM}, v{Cc}, v{vTMP + 1}, s{d}
        v_lshrrev_b32 v{Cc}, 1, v{B}
        v_lshl_add_u32 v{B}, v{Cc}, 4, v{B}
        v_mul_u32_u24 v{Cc}, 72, v{A}
        s_and_b32 s{a}, s{sW}, 1
        s_mul_i32 s{a}, s{a}, 144
        s_lshr_b32 s{b}, s{sW}, 1
        s_mul_i32 s{b}, s{b}, 36
        s_add_u32 s{a}, s{a}, s{b}
        s_add_u32 s{a}, s{a}, 16
        v_add3_u32 v{Cc}, v{Cc}, v{B}, s{a}
        v_mul_u32_u24 v{Cc}, 1152, v{Cc}
        v_add3_u32 v{vWX}, v{Cc}, v{vTMP + 1}, s{d}""")
        s(f"""v_bfe_u32 v{B}, v{vL}, 1, 2
        v_bfe_u32 v{Cc}, v{vL}, 3, 1
        v_mad_u32_u24 v{Cc}, v{Cc}, 18, v{B}
        v_lshl_add_u32 v{Cc}, v{G_}, 2, v{Cc}
        s_mul_i32 s{a}, s{sW}, 36
        v_add_u32 v{Cc}, s{a}, v{Cc}
        v_mul_u32_u24 v{Cc}, 1152, v{Cc}
        v_lshl_add_u32 v{Cc}, v{Dd}, 4, v{Cc}
        v_add_u32 v{vWN}, s{c}, v{Cc}
        v_lshrrev_b32 v{Cc}, 1, v{B}
        v_lshl_add_u32 v{B}, v{Cc}, 4, v{B}
        v_bfe_u32 v{Cc}, v{vL}, 3, 2
        v_mul_u32_u24 v{Cc}, 72, v{Cc}
        v_add3_u32 v{B}, v{B}, v{Cc}, 16
        v_mad_u32_u24 v{B}, v{A}, 36, v{B}
        s_mul_i32 s{a}, s{sW}, 288
        v_add_u32 v{B}, s{a}, v{B}
        v_mul_u32_u24 v{B}, 1152, v{B}
        v_lshl_add_u32 v{B}, v{Dd}, 4, v{B}
        v_add_u32 v{vWNX}, s{c}, v{B}""")
        if self.o.get("cpf", 0) >= 2:
            s(f"""s_lshr_b32 s{a}, s2, 4
            s_lshl_b32 s{a}, s{a}, 2
            s_add_u32 s{a}, s{a}, s{sW}
            v_and_b32 v{A}, 7, v{vL}
            v_lshl_add_u32 v{A}, v{A}, 6, s{a}
            v_lshlrev_b32 v{A}, 7, v{A}
            v_min_u32 v{A}, L_end-L_pc, v{A}
            v_mov_b32 v{vXE + 1}, s101
            v_add_co_u32 v{vXE}, vcc, s100, v{A}
            s_nop 1
            v_addc_co_u32 v{vXE + 1}, vcc, 0, v{vXE + 1}, vcc""")
        s(f"""v_lshlrev_b32 v{A}, 2, v{G_}
        v_mul_u32_u24 v{B}, 18432, v{G_}
        v_lshl_add_u32 v{B}, v{T}, 4, v{B}
        v_cndmask_b32 v{vOE}, v{B}, v{OB}, {MSK}
        v_lshlrev_b32 v{vL8}, 3, v{vL}
        v_add_u32 v{vL16B}, 4096, v{vL16}
        v_mov_b32 v{vXB}, -1
        v_mov_b32 v{vXB + 1}, -1
        v_mov_b32 v{vXB + 2}, -1
        v_mov_b32 v{vXB + 3}, -1
        v_lshlrev_b32 v{B}, 9, v{vL}
        v_cmp_gt_u32 vcc, 8, v{vL}
        v_lshlrev_b32 v{Cc}, 3, v{G_}
        v_add_u32 v{vOL}, s{sXL}, v{vL16}
        v_cndmask_b32 v{vFO}, v{OB}, v{B}, vcc
        v_lshl_add_u32 v{B}, v{T}, 7, v{Cc}
        v_and_b32 v{Dd}, 7, v{vL}
        v_lshlrev_b32 v{Dd}, 4, v{Dd}
        v_xor_b32 v{B}, v{B}, v{Dd}
        v_add_u32 v{vBA}, s{sXL}, v{B}
        v_xor_b32 v{vTMP + 1}, 32, v{vBA}
        v_xor_b32 v{vTMP + 2}, 64, v{vBA}
        v_xor_b32 v{vTMP + 3}, 96, v{vBA}
        v_lshrrev_b32 v{Dd}, 3, v{vL}
        v_lshlrev_b32 v{Dd}, 4, v{Dd}
        v_xor_b32 v{vTMP}, v{vTMP}, v{Dd}
        v_lshl_add_u32 v{B}, v{T}, 5, v{Cc}
        s_add_u32 s{a}, s{sM0W}, {XRESN}
        v_add_u32 v{vXNA}, s{a}, v{B}
        v_mul_u32_u24 v{B}, 1152, v{T}
        v_add_u32 v{vOA}, v{B}, v{Cc}
        v_sub_u32 v{A}, v{T}, v{A}
        v_and_b32 v{B}, 1, v{A}
        v_lshlrev_b32 v{B}, 4, v{B}
        v_mov_b32 v{Cc}, 0x3f80
        v_lshlrev_b32 v{Cc}, v{B}, v{Cc}
        v_lshrrev_b32 v{A}, 1, v{A}
        v_cmp_eq_u32 vcc, 0, v{A}
        v_mov_b32 v{vSEL}, 0
        v_mov_b32 v{vSEL + 1}, 0
        v_cndmask_b32 v{vSEL + 2}, 0, v{Cc}, vcc
        v_cndmask_b32 v{vSEL + 6}, 0, v{Cc}, vcc
        v_cndmask_b32 v{vSEL + 8}, 0, v{Cc}, vcc
        v_cmp_eq_u32 vcc, 1, v{A}
        v_mov_b32 v{vSEL + 4}, 0
        v_mov_b32 v{vSEL + 5}, 0
        v_cndmask_b32 v{vSEL + 3}, 0, v{Cc}, vcc
        v_cndmask_b32 v{vSEL + 7}, 0, v{Cc}, vcc
        v_cndmask_b32 v{vSEL + 9}, 0, v{Cc}, vcc""")

    def p1(self):
        tl = Timeline()
        xb = lambda h: (lambda u, i: xn(u, 9 * h + i))
        for st, (acc, h) in enumerate(((vG, 0), (vG, 1), (vU, 0), (vU, 1), (vG, 0), (vG, 1))):
            self.std_mfmas(tl, 4 * st, 72 * st, acc, xb(h), h == 0)
            tl.put_reads(self.std_reads(4 * st, 72 * st, st % 4, f"r{st}"))
        R = []
        for h in range(2):
            for u in range(2):
                for i in range(9):
                    c = vr(vEX + 4 * u)
                    tl.m[432 + 18 * h + 9 * u + i] = Ins(f"v_mfma_f32_16x16x32_bf16 {c}, {ar(frag(24 + h, i))}, {xn(u, 9 * h + i)}, {'0' if h == 0 and i == 0 else c}")
            for i in range(9):
                for hh in range(2):
                    ins = Ins(f"ds_read_b64_tr_b16 {ar(frag(24 + h, i) + 2 * hh, 2)}, v{vRX} offset:{2048 * (9 * h + i) + 256 * hh}", tag="r6")
                    g0 = 432 + 18 * h
                    R.append(Item("r", ins, 432 - DD + len(R), earliest=g0 - 27 + i, deadline=g0 + i - LAT - 1))
        tl.put_reads(R)
        arr = self.o.get("kvarr", 2)
        for st in range(1, 7):
            self.barrier(tl, 72 * st - DD, [("st1", "st2", "st3", "q0", "q1", "q2")[st - 1]] + (["kvst"] if st == arr else []), f"r{st - 1}")
        tl.gap(1).bar.append(Ins("s_barrier", need=["lds:kvfr"]))
        tl.gap(72 * arr - DD).mem.append(Ins(f"buffer_atomic_add v{vONE}, v{vFLG}, {srd(sDBG)}, s{sPOL} offen sc1", tag="arr"))
        q0f = [f"s_mov_b32 s{sDM + 2}, {31 * 1152 + 140}", f"s_mov_b32 s{sDM}, s{sQ}", f"s_mov_b32 s{sDM + 1}, s{sQ + 1}"]
        if self.late:
            ls = self.o.get("lstep", 5)
            self.dmas(tl, 2, vDM, [f"s_add_u32 s{sDM}, s{sU}, s{sC0}", f"s_addc_u32 s{sDM + 1}, s{sU + 1}, 0"], f"s{sINC}", "st2", p0=4, step=ls)
            self.dmas(tl, 3, vDM, None, f"s{sINC}", "st3", p0=5 + 9 * ls, step=ls)
            self.dmas(tl, 4, vQM, q0f, 32 * 1152, "q0", p0=103, step=5)
        else:
            self.dmas(tl, 3, vDM, None, f"s{sINC}", "st3")
            self.dmas(tl, 4, vQM, q0f, 32 * 1152, "q0")
        self.dmas(tl, 5, vQM, None, 32 * 1152, "q1")
        self.dmas(tl, 6, vQX, [f"s_mov_b32 s{sA}, 0"], 64 * 1152, "q2", srdn=sQ)
        tl.gap(self.kvpoll).mem.append(Ins(f"buffer_load_dword v{vPOL}, v{vDP}, {srd(sDBG)}, 0 offen sc1", tag="poll"))
        c = self.kvchk
        assert c >= 341
        tl.gap(c).shadow.append(Ins("s_waitcnt vmcnt(63)", auto=["poll"]))
        tl.gap(c).valu += [Ins(f"v_cmp_gt_u32 vcc, 16, v{vPOL}")]
        tl.gap(c + 2).shadow += [Ins("s_cbranch_vccnz L_kvspin"), Ins("L_kvok:")]
        for sg in range(2):
            for i in range(5):
                p = c + 4 + 4 * (5 * sg + i)
                if i in (0, 4):
                    tl.gap(p - 1).shadow.append(Ins(f"s_add_u32 m0, s{sC1}, {KVS0 + KVST * sg + 1024 * i}"))
                    tl.gap(p).shadow.append(Ins(f"s_add_u32 s{sA}, s{sC1}, {KVST * sg + 1024 * i}"))
                tl.gap(p).mem.append(Ins(f"buffer_load_dwordx4 v{vL16}, {srd(sWS)}, s{sA} offen offset:{1024 * (i % 4)} sc1 lds", tag=f"kv{sg}"))
        if self.wpf:
            pf = self.pf2(512)
            for k in range(0, len(pf), 2):
                tl.gap(452 + 2 * k).shadow.append(pf[k])
                tl.gap(452 + 2 * k).mem.append(pf[k + 1])
        self.shadows(tl, 420, [f"s_mov_b32 s{sIT}, 0", f"s_add_u32 s{sINC}, s{sC1}, {KVST}",
                               (f"s_add_u32 s{sDM}, s{sWS}, s{sINC}", f"s_addc_u32 s{sDM + 1}, s{sWS + 1}, 0"), f"s_mov_b32 s{sDM + 2}, 5120", f"s_and_b32 s{sRO}, s{sS}, {1 if self.o.get('rot', 0) else 0}", f"s_mul_i32 s{sHI}, s{sRO}, {9 * 4096}", f"s_mul_i32 s{sRO}, s{sRO}, 9216",
                               f"s_add_u32 s{sOM0}, s{sOM}, s{sRO}", f"s_sub_u32 s{sOM1}, s{sOM}, s{sRO}",
                               f"s_mov_b32 s{sC0}, 0", f"s_mov_b32 s{sSTN}, 0", f"s_mov_b32 s{sTODO}, 0xff"])
        V = []
        t = 2
        for x in ([f"v_mul_f32 v{vKVA + e}, s{sKS}, v{vKVA + e}" for e in range(4)] +
                  [f"v_cvt_pk_bf16_f32 v{vKVA + e}, v{vKVA + 2 * e}, v{vKVA + 2 * e + 1}" for e in range(2)] +
                  [f"v_and_or_b32 v{vKVA + e}, v{vKVA + e}, v{vAND}, v{vOR}" for e in range(2)]):
            V.append(Item("v", Ins(x), t, 2))
            t += 0.5
        for x in (f"buffer_store_dwordx2 {vr(vKVA, 2)}, v{vEP}, {srd(sWS)}, s{sK2} offen sc1", f"buffer_store_dword v{vKVA}, v{vEP}, {srd(sWS)}, s{sK1} offen sc1"):
            V.append(Item("m", Ins(x, tag="kvst"), t))
            t += 1
        for r in range(64):
            V.append(Item("v", Ins(f"v_mov_b32 v{vO_ + r}, 0"), 12 + r * 72 / 64.0))
        V += self.gelu_items(0, 85, 400, False, vH1)
        z = [vQ2 + 4 * q + j for q in range(4) for j in (1, 2)] + [vQ2 + 4, vQ2 + 12]
        for j in range(8):
            ct, u = j // 2, j % 2
            rel = 360 + 9 * j + 8 + 8
            q = vQ1 + 4 * (2 * u + ct // 2)
            for e in range(2):
                V.append(Item("v", Ins(f"v_cvt_pk_bf16_f32 v{q + 2 * (ct % 2) + e}, v{vG + 4 * j + 2 * e}, v{vG + 4 * j + 2 * e + 1}"), max(rel, 408 + 2 * j) + e, rel))
            if j in (5, 6):
                for r in z[5 * (j - 5):5 * (j - 4)]:
                    V.append(Item("v", Ins(f"v_mov_b32 v{r}, 0"), rel + 2))
        for r in range(8):
            V.append(Item("v", Ins(f"v_accvgpr_write_b32 a{aV_ + 8 + r}, 0"), 441 + r))
        for q in range(4):
            for e in range(2):
                V.append(Item("v", Ins(f"v_permlane16_swap_b32 v{vQ1 + 4 * q + e}, v{vQ1 + 4 * q + 2 + e}"), 449 + q, 446))
        if self.stamps and self.o.get("gst"):
            self.gst = [(p, r) for p, r in zip(eval(self.o["gst"].replace(":", ",")), (62, 64, 66, 52, 54, 100))]
            for p, r in self.gst:
                tl.gap(p).shadow.append(Ins(f"s_memtime s[{r}:{r + 1}]"))
        tl.fill(0, 468, V, flush=10 ** 9)
        pre = [i for i in tl.emit(-DD, 0) if i.kind == "lds"]
        tl.insert_lgkm_waits(0, 468, [(-10 + k // 2, i) for k, i in enumerate(pre)][8:])
        s = self.seg("p1a")
        s("L_p1:")
        if self.wpf and self.o.get("qpf", 1) == 1:
            for i in range(self.npf):
                s(f"""s_lshr_b32 s{sT1}, s{sW}, 1
                s_mul_i32 s{sT1}, s{sT1}, 140
                s_add_u32 s{sT1}, s{sT1}, {i * self.pfstep * 1152}""")
                s(f"buffer_load_dword v{vT3}, v{vPOL}, {srd(sQ)}, s{sT1} offen", tag="pf")
        kf = lambda kk: aKV + 4 * kk if kk < 9 else frag(1, kk - 9)
        kr = lambda kk: [Ins(f"ds_read_b64_tr_b16 {ar(kf(kk) + 2 * h, 2)}, v{vKR} offset:{1024 * kk + 128 * h}", tag="kvfr") for h in range(2)]
        s("s_waitcnt vmcnt(63)", auto=["kvimg", "st0"])
        s("s_barrier", need=["kvimg", "st0"])
        for kk in range(9):
            s.extend(kr(kk))
        s(f"""s_bitcmp1_b32 s{sS}, 2
        s_cbranch_scc1 L_kvu1
        s_bitcmp1_b32 s{sS}, 1
        s_cbranch_scc1 L_kv01""")
        for u in range(2):
            for o in range(2):
                k = self.seg(f"kv{u}{o}")
                if u == 1 and o == 0:
                    k(f"L_kvu1:\ns_bitcmp1_b32 s{sS}, 1\ns_cbranch_scc1 L_kv11")
                elif o == 1:
                    k(f"L_kv{u}{o}:")
                k("s_waitcnt lgkmcnt(12)")
                for kk in range(18):
                    a, b = ar(kf(kk)), xn(u, kk)
                    if o:
                        a, b = b, a
                    k(f"v_mfma_f32_16x16x32_bf16 {vr(vKVA)}, {a}, {b}, {'0' if kk == 0 else vr(vKVA)}")
                    if kk % 3 == 2 and kk < 17:
                        k("s_waitcnt lgkmcnt(10)")
                    if self.late and kk % 2 == 0:
                        k(f"s_add_u32 m0, s{sM0W}, {SLOT + 4096 * (kk // 2)}")
                    if self.late and kk % 2 == 1:
                        k(f"s_add_u32 s{sA}, s{sA}, s{sINC}")
                    if kk < 9:
                        k.extend(kr(kk + 9))
                    else:
                        k.extend(pre[2 * (kk - 9):2 * (kk - 9) + 2])
                    if self.late and kk % 2 == 1:
                        k(f"buffer_load_dwordx4 v{vDM}, {srd(sG)}, s{sA} offen lds", tag="st1")
                k.extend(pre[18:])
                if not (u == 1 and o == 1):
                    k("s_branch L_kvdone")
        g = self.seg("p1gemm")
        g("L_kvdone:")
        self.stamp(g, 2)
        g("s_waitcnt lgkmcnt(12)")
        g.extend(tl.emit(0, 468))
        self.att()
        k = self.seg("kvspin")
        k(f"""L_kvspin:
        s_mov_b32 s{sT1}, 0
        L_kvspin2:
        buffer_load_dword v{vPOL}, v{vDP}, {srd(sDBG)}, 0 offen sc1
        s_add_u32 s{sT1}, s{sT1}, 1
        s_cmp_gt_u32 s{sT1}, 0x40000
        s_cbranch_scc1 L_end
        s_waitcnt vmcnt(0)
        v_cmp_gt_u32 vcc, 16, v{vPOL}
        s_nop 1
        s_cbranch_vccnz L_kvspin2
        s_branch L_kvok""")
        self.fallback()

    def qk(self, sb, q, kt):
        k1 = aK1 + 4 * (kt % 2)
        k2 = aK2 + 4 * ((kt // 4) % 2) + 2 * ((kt % 4) // 2)
        q2 = vQ2 + 4 * q + 2 * (kt % 2)
        S = vr(vS_ + 16 * sb, 16)
        return (Ins(f"v_mfma_f32_32x32x16_bf16 {S}, {ar(k1)}, {vr(vQ1 + 4 * q)}, 0"),
                Ins(f"v_mfma_f32_32x32x8bf16_1k {S}, {ar(k2, 2)}, {vr(q2, 2)}, {S}"))

    def pv(self, sb, q, kt):
        O = vr(vO_ + 16 * q, 16)
        v = aV_ + 8 * (kt % 2)
        return tuple(Ins(f"v_smfmac_f32_32x32x32_bf16 {O}, {ar(v + 4 * f)}, {vr(vS_ + 16 * sb + 8 * f, 8)}, v{vIDX}") for f in range(2))

    def kvreads(self, kt):
        sl, i = (kt // 8) % 2, kt % 8
        o = KVST * sl
        k1 = Ins(f"ds_read_b128 {ar(aK1 + 4 * (kt % 2))}, v{vKA} offset:{o + 1024 * i}", tag="kvr")
        k2 = Ins(f"ds_read_b128 {ar(aK2 + 4 * ((kt // 4) % 2))}, v{vK2A} offset:{o + 640 * (i // 4)}", tag="kvr") if kt % 4 == 0 else None
        vv = [Ins(f"ds_read_b128 {ar(aV_ + 8 * (kt % 2) + 4 * f)}, v{vVA} offset:{o + 640 * (2 * i + f)}", tag="kvr") for f in range(2)]
        return k1, k2, vv

    def preg(self, i):
        if i < self.ne:
            return lambda k: ar(16 * i + 4 * k)
        return lambda k: vr(vO_ + 16 * ((i - self.ne) % 5) + 4 * k)

    def areg(self, i):
        k = i - self.ne - self.n2
        return (sK2, sK1, sKS, sHI, sSTN)[k] if k >= 0 else sA

    def pacc_opt(self, name, i0, n):
        names = []
        for i in range(i0, i0 + n):
            s = self.segs[-1]
            s(f"s_cmp_eq_u32 s{self.areg(i)}, {OOB}\ns_cbranch_scc1 L_{name}")
            names.append(f"{name}{i}")
            s = self.seg(names[-1])
            s("s_waitcnt vmcnt(63)", auto=[f"pl{i}"])
            s.extend(self.pacc(i, 1))
        s = self.seg(name)
        s(f"L_{name}:")
        return names

    def poll(self):
        return Ins(f"buffer_load_dword v{vPOL}, v{vINB}, {srd(sWS)}, s{sFL} offen sc1", tag="poll")

    def ready(self):
        return [Ins(f"v_cmp_ne_u32 vcc, 0, v{vPOL}"), Ins("s_nop 0"), Ins(f"s_lshr_b32 s{sRDY}, vcc_lo, 8"), Ins(f"s_and_b32 s{sRDY}, s{sRDY}, s{sTODO}")]

    def pload(self, i0, n):
        out = []
        for i in range(i0, i0 + n):
            out += [Ins(f"s_ff1_i32_b32 s{sT1}, s{sRDY}"), Ins(f"s_bitset0_b32 s{sRDY}, s{sT1}"), Ins(f"s_bitset0_b32 s{sTODO}, s{sT1}"),
                    Ins(f"s_mul_i32 s{sT0}, s{sT1}, {9 * 16384}"), Ins(f"s_add_u32 s{sT0}, s{sT0}, s{sPB}"),
                    Ins(f"s_cmp_lt_i32 s{sT1}, 0"), Ins(f"s_cselect_b32 s{self.areg(i)}, {OOB}, s{sT0}")]
            out += [Ins(f"buffer_load_dwordx4 {self.preg(i)(k)}, v{vL16}, {srd(sWS)}, s{self.areg(i)} offen offset:{1024 * k} sc1", tag=f"pl{i}") for k in range(4)]
        return out

    @staticmethod
    def weave(ld):
        slots = [ld[k:k + 11] for k in range(0, len(ld), 11)]
        out = list(slots[0][:7])
        for k, sl in enumerate(slots):
            nx = slots[k + 1][:7] if k + 1 < len(slots) else []
            for j in range(4):
                out.append(sl[7 + j])
                out += nx[2 * j:2 * j + 2] if j < 3 else nx[6:]
        return out

    def pacc(self, i0, n):
        out = []
        for j in range(8):
            ct, u = j // 2, j % 2
            c = vr(vG + 4 * j)
            for i in range(i0, i0 + n):
                out.append(Ins(f"v_mfma_f32_16x16x32_bf16 {c}, {vr(vSEL + (0 if ct % 2 else 2))}, {self.preg(i)(2 * (ct // 2) + u)}, {'0' if i == 0 else c}"))
        return out

    def att_stage(self, a, kt0, last):
        stream = {}
        if last:
            slots = [(tau, m) for tau in range(32, 64) for m in (0, 2, 3)]

            def lay(k, ins):
                lastmem = -9
                for i in ins:
                    while True:
                        cur = stream.setdefault(slots[k], [])
                        if i.kind in ("salu", "wait", "label"):
                            if not cur or i.kind == "label":
                                break
                        elif i.kind == "valu":
                            break
                        elif k - lastmem >= 2 and not any(x.kind != "salu" for x in cur) and not ("m0" in i.rd and any("m0" in x.wr for x in cur)):
                            lastmem = k
                            break
                        k += 1
                    cur.append(i)
                return k + 1

            seq = []
            for i in range(2):
                seq += [Ins(f"s_add_u32 m0, s{sHI}, s{sM0W}"), Ins(f"s_add_u32 s{sHI}, s{sHI}, 4096"), Ins(f"buffer_load_dwordx4 v{vWM}, {srd(sWO)}, s{sC0} offen lds", tag="wo"),
                        Ins(f"s_add_u32 s{sC0}, s{sC0}, {36 * 1152}")]
            for i in range(2):
                seq += [Ins(f"s_add_u32 m0, s{sHI}, s{sM0W}"), Ins(f"s_add_u32 s{sHI}, s{sHI}, 4096"), Ins(f"s_mov_b32 s{sT0}, {288 * 1152 * i}"),
                        Ins(f"buffer_load_dwordx4 v{vWX}, {srd(sWO)}, s{sT0} offen lds", tag="wo")]
            seq += [Ins(f"s_cmp_lt_u32 s{sW}, 2"), Ins(f"s_cselect_b32 s{sT0}, s{sRO}, 0"), Ins(f"s_sub_u32 s{sT0}, s{sM0W}, s{sT0}"),
                    Ins(f"s_add_u32 m0, s{sT0}, {2 * SLOT + 16384}"), Ins(f"s_lshl_b32 s{sC0}, s{sS}, 7"),
                    Ins(f"buffer_load_dwordx4 v{vWNX}, {srd(sWO)}, 0 offen lds", tag="wo")]
            for i in range(4):
                seq += [Ins(f"s_add_u32 m0, s{sXL}, {1024 * i}"), Ins(f"s_add_u32 s{sT0}, s{sC0}, {9216 * i}"),
                        Ins(f"buffer_load_dwordx4 v{vTMP}, {srd(sX)}, s{sT0} offen lds", tag="xr")]
            seq += [Ins(f"s_add_u32 m0, s{sM0W}, {XRESN}"), Ins(f"buffer_load_dwordx4 v{vXN}, {srd(sX)}, s{sXN} offen lds", tag="xr")]
            k = lay(0, [self.poll()] + seq)
            e1 = self.o.get("ne1", 3)
            rd = lambda: [Ins("s_waitcnt vmcnt(63)", auto=["poll"])] + [i for i in self.ready() if i.op != "s_nop"]
            k = lay(k, rd() + self.weave(self.pload(0, e1)))
            if self.ne > e1:
                k1 = 96 - 13 - 8 * (self.ne - e1)
                assert k < k1 - 8, (k, k1)
                lay(max(k, k1 - 21), [self.poll()])
                k = lay(k1, rd() + self.weave(self.pload(e1, self.ne - e1)))
            assert k <= 96, k
        for tau in range(4 * kt0, 4 * kt0 + 32):
            kt, q = tau // 4, tau % 4
            ms = list(self.qk((tau + 1) % 4, (tau + 1) % 4, (tau + 1) // 4)) + list(self.pv((tau - 1) % 4, (tau - 1) % 4, ((tau - 1) // 4) % 16))
            ex = [[], [], [], []]
            k1, k2, vv = self.kvreads((kt + 1) % 16)
            newstage = (kt + 1) % 8 == 0
            sg = (kt + 1) // 8 % 2
            dma = lambda so, off: Ins(f"buffer_load_dwordx4 v{vL16}, {srd(sDM)}, 0 offen offset:{off} sc1 lds", tag=f"kv{1 - sg}")
            if last and newstage:
                if q == 0:
                    ex[0] += [Ins("s_waitcnt vmcnt(63)", auto=["wo", "xr"]), Ins("s_barrier", need=["wo"])]
                if q == 3:
                    ms[0] = ms[1] = None
            else:
                if q == 0:
                    if newstage:
                        tg = [f"kv{sg}"] + (["hst"] if sg == 1 else [])
                        ex[0] += [Ins("s_waitcnt vmcnt(63)", auto=tg), Ins("s_barrier", need=tg + ["lds:kvr"])]
                        if sg == 1:
                            ex[0] += [Ins(f"buffer_atomic_add v{vONE}, v{vFLG}, {srd(sDBG)}, s{sHA} offen sc1", tag="arr")]
                    ex[0].append(k1)
                    if k2:
                        ex[2].append(k2)
                    if newstage:
                        ex[2].insert(0, Ins(f"s_add_u32 m0, s{sC1}, {KVS0 + KVST * (1 - sg)}"))
                        ex[3] += [Ins(f"s_mov_b32 s{sHA}, {OOB}")] if sg == 1 else []
                        ex[3].append(dma(sINC, 0))
                if q == 1:
                    ex[0].append(vv[0])
                    ex[2].append(vv[1])
                    if newstage:
                        ex[3].append(dma(sINC, 1024))
                if q == 2:
                    if newstage:
                        ex[0].append(dma(sINC, 2048))
                        ex[2].append(dma(sINC, 3072))
                    ex[3].append(Ins("s_waitcnt lgkmcnt(0)"))
                if q == 3 and newstage:
                    ex[0].append(Ins(f"s_add_u32 m0, s{sC1}, {KVS0 + KVST * (1 - sg) + 4096}"))
                    ex[2].append(Ins(f"buffer_load_dwordx4 v{vL16B}, {srd(sDM)}, 0 offen sc1 lds", tag=f"kv{1 - sg}"))
                    if sg == 1:
                        ex[3].append(Ins(f"s_cmp_eq_u32 s{sIT}, 4"))
                if kt % 8 == 5 and q == 2 and not last:
                    ex[0].append(Ins(f"s_add_u32 s{sDM}, s{sDM}, {KVST}"))
                    ex[2].append(Ins(f"s_addc_u32 s{sDM + 1}, s{sDM + 1}, 0"))
            if not last:
                if kt % 8 == 1 and q == 2:
                    ex[0].append(Ins(f"s_cmp_eq_u32 s{sHI}, {18 * 4096}"))
                    ex[2].append(Ins(f"s_cselect_b32 s{sHI}, 0, s{sHI}"))
                if kt % 8 in (0, 1) and q == 3:
                    ex[0].append(Ins(f"s_add_u32 m0, s{sHI}, s{sM0W}"))
                    ex[2] += [Ins(f"s_add_u32 s{sHI}, s{sHI}, 4096"), Ins(f"buffer_load_dwordx4 v{vWM}, {srd(sWO)}, s{sC0} offen lds", tag="wo")]
                    ex[3].append(Ins(f"s_add_u32 s{sC0}, s{sC0}, {36 * 1152}"))
                if kt == 2 and q == 0:
                    ex[2].append(Ins(f"s_lshl_b32 s{sT0}, s{sIT}, 12"))
                    ex[3].append(Ins(f"s_add_u32 s{sT0}, s{sT0}, s{sM0W}"))
                if kt == 2 and q == 1:
                    ex[0].insert(0, Ins(f"s_add_u32 s{sT0}, s{sT0}, s{sRO}"))
                    ex[2].insert(0, Ins(f"s_cmp_ge_u32 s{sT0}, 18432"))
                    ex[3].append(Ins(f"s_cselect_b32 s{sT1}, 18432, 0"))
                if kt == 2 and q == 2:
                    ex[0].append(Ins(f"s_sub_u32 s{sT0}, s{sT0}, s{sT1}"))
                if kt == 2 and q == 3:
                    ex[0].append(Ins(f"s_add_u32 m0, s{sT0}, {2 * SLOT}"))
                    ex[2] += [Ins(f"s_add_u32 s{sIT}, s{sIT}, 1"), Ins(f"buffer_load_dwordx4 v{vWN}, {srd(sWO)}, s{sSTN} offen lds", tag="wo")]
                    ex[3].append(Ins(f"s_add_u32 s{sSTN}, s{sSTN}, {4 * 36 * 1152}"))
                if self.o.get("cpf", 0) >= 2 and kt == 5 and q == 3:
                    ex[0].append(Ins(f"global_load_dword v{vT3}, {vr(vXE, 2)}, off", tag="pf"))
                if self.wpf and kt % 8 == 3 and q == 2:
                    ex[0].append(Ins(f"s_cmp_lt_u32 s{sIT}, 3"))
                    ex[2].append(Ins(f"s_cselect_b32 s{sT0}, 0, {OOB}"))
                if self.wpf and (kt % 8 == 3 or (kt % 8 == 4 and self.npf == 2)) and q == 3:
                    ex[0].append(Ins(f"s_add_u32 s{sT1}, s{sT0}, s{sPG}"))
                    if kt % 8 == 4:
                        ex[2].append(Ins(f"s_add_u32 s{sT1}, s{sT1}, {self.pfstep * 9216}"))
                    ex[2].append(Ins(f"buffer_load_dword v{vT3}, v{vPF}, {srd(sPF)}, s{sT1} offen", tag="pf"))
                    if kt % 8 == 2 + self.npf:
                        ex[3].append(Ins(f"s_add_u32 s{sPG}, s{sPG}, 128"))
                if self.wpf and kt % 8 == 4 and (q == 0 or (q == 2 and self.nd == 2)):
                    ex[0].insert(0, Ins(f"s_add_u32 s{sT1}, s{sT0}, s{sPFO}"))
                    ex[2] += [Ins(f"s_add_u32 s{sPFO}, s{sPFO}, {self.dl * 128}"), Ins(f"buffer_load_dword v{vT3}, v{vPD}, {srd(sD)}, s{sT1} offen", tag="pf")]
            sb = vS_ + 16 * (tau % 4)
            for m in range(4):
                if ms[m]:
                    a.add(ms[m])
                st = stream.get((tau, m), [])
                a.extend([i for i in st if i.kind not in ("vmem", "valu")] + ex[m] + [i for i in st if i.kind in ("vmem", "valu")])
                for e in range(4):
                    a(f"v_exp_f32 v{sb + 4 * m + e}, v{sb + 4 * m + e}")

    def att(self):
        ne, n2, n3 = self.ne, self.n2, self.n3
        pload, pacc = self.pload, self.pacc
        s = self.seg("attpre")
        if self.stamps and self.o.get("gst"):
            s("s_waitcnt lgkmcnt(0)")
            for k, (p, r) in enumerate(self.gst):
                s(f"v_writelane_b32 v0, s{r}, {2 * (20 + k)}")
        self.stamp(s, 3)
        s("s_waitcnt vmcnt(63) lgkmcnt(0)", auto=["kv0"])
        s("s_barrier", need=["kv0", "lds:r6"])
        k1, k2, vv = self.kvreads(0)
        s.extend([k1, k2, self.kvreads(1)[0]] + vv)
        for u in range(2):
            s(f"v_cvt_pk_bf16_f32 v{vQ2 + 8 * u}, v{vEX + 4 * u}, v{vEX + 4 * u + 1}")
        s("s_nop 0")
        for u in range(2):
            s(f"v_permlane32_swap_b32 v{vQ2 + 8 * u}, v{vQ2 + 8 * u + 4}")
        for q in range(4):
            s(f"v_mov_b32 v{vQ2 + 4 * q + 3}, v{vQ2 + 4 * q}")
        s("s_waitcnt lgkmcnt(2)")
        vMX = 28

        def mx(q, first):
            b, m = vS_ + 16 * q, vMX + q
            if first:
                return [f"v_max_f32 v{m}, v{b}, v{b + 1}"] + [f"v_max3_f32 v{m}, v{m}, v{b + j}, v{b + j + 1}" for j in range(2, 16, 2)]
            return [f"v_max3_f32 v{m}, v{m}, v{b + j}, v{b + j + 1}" for j in range(0, 16, 2)] + [f"v_mov_b32 v{b}, v{m}"]

        def fin(q):
            b, m = vS_ + 16 * q, vMX + q
            return [f"v_permlane32_swap_b32 v{m}, v{b}", f"v_max_f32 v{m}, v{m}, v{b}", f"v_sub_f32 v{m}, {f32(-MOFF)}, v{m}",
                    f"v_cvt_pk_bf16_f32 v{m}, v{m}, 0", f"v_cndmask_b32 v{vQ2 + 4 * q}, v{vQ2 + 4 * q}, v{m}, {MSK}", f"v_mov_b32 v{vQ2 + 4 * q + 3}, v{vQ2 + 4 * q}"]

        for q in range(4):
            m0, m1 = self.qk(q, q, 1)
            s.add(m0)
            s(f"buffer_store_dwordx4 {vr(vH1 + 4 * q)}, v{vL16}, {srd(sWS)}, s{sST} offen offset:{1024 * q} sc1", tag="hst")
            s.add(m1)
        s("s_nop 2")
        for q in range(4):
            m0, m1 = self.qk(q, q, 0)
            l = mx(q, True)
            for x in (l if q == 0 else l[4:]):
                s(x)
            s.add(m0)
            s(f"buffer_store_dwordx4 {vr(vXB)}, v{vL16}, {srd(sWS)}, s{sFLN} offen offset:{1024 * q} sc1", tag="hst")
            for x in (mx(q + 1, True)[:4] if q < 3 else mx(0, False)[:4]):
                s(x)
            s.add(m1)
        for x in mx(0, False)[4:] + mx(1, False) + fin(0) + mx(2, False)[:2]:
            s(x)
        m0, m1 = self.qk(0, 0, 0)
        s.add(m0)
        for x in mx(2, False)[2:]:
            s(x)
        s.add(m1)
        for x in fin(1) + mx(3, False) + fin(2) + fin(3):
            s(x)
        for r in range(vS_ + 48, vS_ + 64):
            s(f"v_mov_b32 v{r}, 0")
        s("s_waitcnt lgkmcnt(0)")
        self.stamp(s, 16)
        s(".p2align 3")
        a = self.seg("att0")
        a("L_att:")
        self.att_stage(a, 0, False)
        a("s_cbranch_scc1 L_attl")
        a = self.seg("att1")
        self.att_stage(a, 8, False)
        a("s_branch L_att\n.p2align 3")
        a = self.seg("attl")
        a("L_attl:")
        self.att_stage(a, 8, True)
        a("s_nop 1")
        a.extend(self.pv(3, 3, 15))
        self.stamp(a, 4)
        s = self.seg("opub")
        s(f"""L_opub:
        s_lshl_b32 s{sT0}, s{sS}, 11
        s_add_u32 s{sT0}, s{sT0}, s{sOM}
        s_add_u32 s{sT1}, s{sT0}, 18432
        s_lshl_b32 s{sT2}, s{sS}, 8
        s_add_u32 s{sT2}, s{sT2}, s{sOM}
        s_add_u32 s{sT2}, s{sT2}, 16384""")
        vR, vW, vE = 192, 196, vS_ + 16
        for q in range(4):
            o, p = vO_ + 16 * q, vS_ + 4 * q
            u, hp = q // 2, q % 2
            if q == 0:
                for k in range(3):
                    s(f"v_rcp_f32 v{vR + k}, v{vO_ + 16 * k + 10}")
            if q == 2:
                s(f"v_rcp_f32 v{vR + 3}, v{vO_ + 48 + 10}")
            s(f"v_mul_f32 v{vR + q}, {f32(ALPHA)}, v{vR + q}")
            for j in range(10):
                s(f"v_mul_f32 v{vW + j}, v{o + j}, v{vR + q}")
            s(f"v_cvt_pk_bf16_f32 v{vE + 2 * hp + u}, v{vW + 8}, v{vW + 9}")
            for j in range(4):
                s(f"v_cvt_pk_bf16_f32 v{p + j}, v{vW + 2 * j}, v{vW + 2 * j + 1}")
            if u == 1:
                s(f"v_permlane16_swap_b32 v{vE + 2 * hp}, v{vE + 2 * hp + 1}")
            s(f"buffer_store_dwordx4 {vr(p)}, v{vL16}, {srd(sWS)}, s{sT0 + u} offen offset:{1024 * hp} sc1", tag="ost")
        s(f"buffer_store_dwordx4 {vr(vE)}, v{vOE}, {srd(sWS)}, s{sT2} offen sc1", tag="ost")
        s.add(self.poll())
        s(f"""s_cmp_lg_u32 s{sSK}, 0
        s_cbranch_scc1 L_chkd""")
        s = self.seg("chk")
        s(f"""s_mov_b32 s{sT0}, {f32(2.0 ** -126)}
        s_mov_b32 s{sT1}, {f32(2.0 ** 124)}""")
        t = 192
        for q in range(4):
            o = vO_ + 16 * q
            s(f"""v_cndmask_b32 v{t + 2}, v{o + 8}, v{o + 10}, {MSK}
            v_cndmask_b32 v{t + 3}, v{o + 9}, v{o + 10}, {MSK}""")
            if q == 0:
                s(f"v_min3_f32 v{t}, abs(v{t + 2}), abs(v{t + 3}), v{o + 10}\nv_add_f32 v{t + 1}, abs(v{t + 2}), v{o + 10}")
            else:
                s(f"""v_min3_f32 v{t}, v{t}, abs(v{t + 2}), abs(v{t + 3})
                v_min_f32 v{t}, v{t}, v{o + 10}
                v_add_f32 v{t + 1}, v{t + 1}, v{o + 10}
                v_add_f32 v{t + 1}, v{t + 1}, abs(v{t + 2})""")
            s(f"v_add_f32 v{t + 1}, v{t + 1}, abs(v{t + 3})")
            for j in range(0, 8, 2):
                s(f"""v_min3_f32 v{t}, v{t}, abs(v{o + j}), abs(v{o + j + 1})
                v_add_f32 v{t + 1}, v{t + 1}, abs(v{o + j})
                v_add_f32 v{t + 1}, v{t + 1}, abs(v{o + j + 1})""")
        s(f"""v_cmp_nle_f32 vcc, s{sT0}, v{t}
        v_cmp_ngt_f32 {MK2}, s{sT1}, v{t + 1}
        s_nop 0
        s_or_b64 vcc, vcc, {MK2}""")
        if self.forcefb:
            s("s_or_b64 vcc, vcc, 1")
        s("s_cbranch_scc1 L_fb")
        s = self.seg("opub2")
        s("L_chkd:")
        vXR, vXU = 176, 96
        for j in range(8):
            s(f"ds_read_b64 {vr(vXR + 2 * j, 2)}, v{vTMP + j // 2 if j > 1 else vBA} offset:{2048 * (j % 2)}", need=["xr"])
        s(f"ds_read_b64 {vr(vXR + 16, 2)}, v{vXNA}")
        unp = []
        for j in range(9):
            d = vXU + 4 * j if j < 8 else vXE
            for e in range(2):
                unp += [Ins(f"v_lshlrev_b32 v{d + 2 * e}, 16, v{vXR + 2 * j + e}"), Ins(f"v_and_b32 v{d + 2 * e + 1}, 0xffff0000, v{vXR + 2 * j + e}")]
        s("s_waitcnt vmcnt(0)")
        s(f"buffer_store_dword v{vONE}, v{vFO}, {srd(sWS)}, s{sOF} offen sc1", need=["ost"])
        self.stamp(s, 5)
        s.extend(self.ready())
        s("s_waitcnt lgkmcnt(0)")
        pl = self.weave(pload(ne, n2))
        mf = pacc(0, ne)
        k = 0
        while pl or mf or unp:
            if mf:
                s.add(mf.pop(0))
            if pl and k % 3 == 0:
                while pl[0].kind == "salu":
                    s.add(pl.pop(0))
                s.add(pl.pop(0))
            else:
                s.extend(unp[:2])
                unp = unp[2:]
            k += 1
        s(f"s_mov_b32 s{sT3}, 0")
        s = self.seg("wo1")
        s("L_wo1:")
        s.add(self.poll())
        s(f"""s_add_u32 s{sT3}, s{sT3}, 1
        s_cmp_gt_u32 s{sT3}, 0x40000
        s_cbranch_scc1 L_end
        s_waitcnt vmcnt(0)""")
        rd = self.ready()
        s.extend(rd[:3])
        s(f"""s_andn2_b32 s{sT0}, 0xff, vcc_lo
        s_cbranch_scc0 L_ogat""")
        s.add(rd[3])
        s("s_cbranch_scc0 L_wo1")
        s = self.seg("wo2")
        pl = pload(ne, n2)
        for i in range(n2):
            mf = pacc(ne + i, 1)
            for k in range(8):
                s.add(mf[k])
                if k < 7:
                    s.add(pl[11 * i + k])
            s.extend(pl[11 * i + 7:11 * i + 11])
        s("s_branch L_wo1")
        s = self.seg("ogat")
        s("L_ogat:")
        self.stamp(s, 6)
        gl = []
        for kb in range(6):
            for u in range(2):
                for i in range(3):
                    k = 3 * kb + i
                    q = [Ins(f"s_add_u32 s{sA}, s{sOM1 if k >= 9 else sOM0}, {1024 * (18 * u + k)}")] if i == 0 else []
                    gl.append(q + [Ins(f"buffer_load_dwordx4 {xn(u, k)}, v{vL16}, {srd(sWS)}, s{sA} offen offset:{1024 * i} sc1", tag=f"og{kb}")])
        ng = self.o.get("ngpre", 12)
        tf = Timeline()
        vX2 = 28
        n = 0
        for kb in range(6):
            for ct in range(5):
                g0 = 30 * kb + 6 * ct
                for i in range(3):
                    k = 3 * kb + i
                    f = aFR + 4 * ((15 * kb + 3 * ct + i) % 18)
                    for hh in range(2):
                        if ct < 4:
                            off = 4096 * k + 2048 * hh
                            ins = Ins(f"ds_read_b64_tr_b16 {ar(f + 2 * hh, 2)}, v{vRB + 4 * (off // 65536) + ct} offset:{off % 65536}", tag="fr")
                        else:
                            ins = Ins(f"ds_read_b64_tr_b16 {ar(f + 2 * hh, 2)}, v{vRN} offset:{1024 * k + 512 * hh}", tag="fr")
                        tf.place(Item("r", ins, 0, earliest=g0 - 36 + 3 + i), n - 16)
                        n += 1
                    for u in range(2):
                        c = vr(vG + 4 * (2 * ct + u)) if ct < 4 else vr(vX2 if u else vXB)
                        tf.m[g0 + 3 * u + i] = Ins(f"v_mfma_f32_16x16x32_bf16 {c}, {ar(f)}, {xn(u, k)}, {'0' if ct == 4 and k == 0 else c}")
            if kb:
                tf.gap(30 * kb - 1).shadow.append(Ins("s_waitcnt vmcnt(63)", auto=[f"og{kb}"]))
        pre = tf.emit(-16, 0)
        mf = pacc(ne, n2)
        for q in gl[:ng]:
            s.extend(q)
            s.extend(mf[:2] + pre[:2])
            mf, pre = mf[2:], pre[2:]
        s.extend(mf + pre)
        s("s_waitcnt vmcnt(63) lgkmcnt(0)", auto=["og0"])
        gs = self.o.get("gstep", 4)
        for k, q in enumerate(gl[ng:]):
            p = 1 + gs * k
            p += 1 if p % 30 == 29 else 0
            tf.gap(p).shadow.extend(q[:-1])
            tf.gap(p).mem.append(q[-1])
        n4 = self.o.get("n4", 1)
        i3, i4 = ne + n2, ne + n2 + n3
        assert n3 + n4 <= 5

        def rnd(p, i0, n):
            rd = self.ready()
            tf.gap(p).shadow.append(Ins("s_waitcnt vmcnt(63)", auto=["poll"]))
            tf.gap(p).valu.append(rd[0])
            p, lastm = p + 1, 0
            for i in rd[2:3] + [self.poll()] + rd[3:] + self.weave(pload(i0, n)):
                if i.kind == "salu":
                    tf.gap(p).shadow.append(i)
                    p += 1
                else:
                    p = max(p, lastm + 3)
                    lastm = p
                    tf.gap(p - 1).mem.append(i)
            return p

        p1 = p + 1
        tf.gap(p1 - 50).mem.append(self.poll())
        p = rnd(p1, i3, n3)
        p2 = 180 - 12 - 12 * n4
        assert p <= p2, (p, p2)
        p = rnd(p2, i4, n4)
        assert p < 181, p
        if self.stamps and self.o.get("fst"):
            fst = list(zip((0, 31, 61, 91, 121, 151), (66, 68, 52, 54, 100, 72)))
            for p, r in fst:
                tf.gap(p).shadow.append(Ins(f"s_memtime s[{r}:{r + 1}]"))
        tf.insert_lgkm_waits(0, 180, [])
        s.extend(tf.emit(0, 180))
        s = self.seg("xud")
        if self.stamps and self.o.get("fst"):
            s("s_waitcnt lgkmcnt(0)")
            for k, (p, r) in enumerate(fst):
                s(f"v_writelane_b32 v0, s{r}, {2 * (20 + k)}")
        self.stamp(s, 7)
        s(f"s_mov_b32 s{sT2}, {f32(1.0 / ALPHA ** 2)}\ns_mov_b32 s{sT3}, 0")
        self.sk3 = self.pacc_opt("sk3", i3, n3)
        s = self.segs[-1]
        s(f"s_nop 3\ns_bitcmp1_b32 s{sS}, 2\ns_cselect_b64 {MK2}, -1, 0")
        for e in range(4):
            s(f"v_cndmask_b32 v{vXB + e}, v{vXB + e}, v{vX2 + e}, {MK2}")
        s = self.seg("e1")
        s(f"""L_e1:
        s_cmp_eq_u32 s{sTODO}, 0
        s_cbranch_scc1 L_e2""")
        s = self.seg("e1b")
        s("s_waitcnt vmcnt(0)")
        s.extend(pacc(i4, n4))
        s = self.seg("e1c")
        s("L_e1c:")
        rd = self.ready()
        s.extend(rd[:3] + [self.poll()])
        s(f"""s_add_u32 s{sT3}, s{sT3}, 1
        s_cmp_gt_u32 s{sT3}, 0x40000
        s_cbranch_scc1 L_end""")
        s.add(rd[3])
        s("s_cbranch_scc1 L_e1e")
        s = self.seg("e1d")
        s("s_waitcnt vmcnt(0)\ns_branch L_e1c")
        s = self.seg("e1e")
        s("L_e1e:")
        s.extend(self.weave(pload(i4, n4)))
        s("s_branch L_e1")
        vLP = 32
        lastl = lambda: [Ins(f"buffer_load_dwordx2 {vr(vLP + 2 * p, 2)}, v{vL8}, {srd(sWS)}, s{sFLN} offen offset:{512 * p} sc1", tag="pll") for p in range(8)]
        s = self.seg("fmain")
        s("L_e2:")
        self.stamp(s, 17)
        s(f"s_mov_b32 s{sLST}, 1")
        s.extend(lastl())
        self.sk4 = self.pacc_opt("sk4", i4, n4)
        s = self.segs[-1]
        s.add(self.poll())
        self.stamp(s, 18)
        for j in range(8):
            c = vG + 4 * j
            for e in range(4):
                s(f"v_fma_f32 v{c + e}, v{c + e}, s{sT2}, v{vXU + 4 * j + e}")
            s(f"v_cvt_pk_bf16_f32 v{c}, v{c}, v{c + 1}\nv_cvt_pk_bf16_f32 v{c + 1}, v{c + 2}, v{c + 3}")
        for j in range(8):
            s(f"ds_write_b64 v{vTMP + j // 2 if j > 1 else vBA}, {vr(vG + 4 * j, 2)} offset:{2048 * (j % 2)}")
        for i in range(4):
            s(f"ds_read_b128 {vr(vXU + 4 * i)}, v{vOL} offset:{1024 * i}")
        for i in range(4):
            s(f"s_waitcnt lgkmcnt({3 - i})")
            s(f"buffer_store_dwordx4 {vr(vXU + 4 * i)}, v{vTMP}, {srd(sOUT)}, s{sC0} offen")
            if i < 3:
                s(f"s_add_u32 s{sC0}, s{sC0}, 9216")
        self.stamp(s, 8)
        s("s_waitcnt vmcnt(5)")
        s = self.seg("e3")
        s("L_e3:")
        s(f"v_max3_u32 v{vT0}, v{vLP}, v{vLP + 1}, v{vLP + 2}")
        for j in range(3, 15, 2):
            s(f"v_max3_u32 v{vT0}, v{vT0}, v{vLP + j}, v{vLP + j + 1}")
        s(f"""v_max_u32 v{vT0}, v{vT0}, v{vLP + 15}
        v_cmp_eq_u32 vcc, -1, v{vT0}
        s_cmp_eq_u32 s{sLST}, 0
        s_cbranch_vccz L_fin
        s_cbranch_scc1 L_fin""")
        s = self.seg("e3b")
        s(f"s_waitcnt vmcnt(4)\nv_cmp_eq_u32 vcc, 0, v{vPOL}")
        s.extend(lastl())
        s(f"s_and_b32 s{sLST}, vcc_lo, 0xff0000")
        s.add(self.poll())
        s(f"""s_add_u32 s{sT3}, s{sT3}, 1
        s_cmp_lt_u32 s{sT3}, 0x40000
        s_waitcnt vmcnt(0)
        s_cbranch_scc1 L_e3
        s_endpgm""")
        s = self.seg("fin")
        s("L_fin:")
        for p in range(4):
            s(f"v_mfma_f32_16x16x32_bf16 {vr(vXB)}, {vr(vSEL + 6)}, {vr(vLP + 4 * p)}, {vr(vXB)}")
        s("s_nop 7")
        for e in range(4):
            s(f"v_fma_f32 v{vXB + e}, v{vXB + e}, s{sT2}, v{vXE + e}")
        s(f"""v_cvt_pk_bf16_f32 v{vXB}, v{vXB}, v{vXB + 1}
        v_cvt_pk_bf16_f32 v{vXB + 1}, v{vXB + 2}, v{vXB + 3}
        buffer_store_dwordx2 {vr(vXB, 2)}, v{vOA}, {srd(sOUT)}, s{sXN} offen""")
        self.stamp(s, 9, True)
        self.stamp_flush(s)
        s("s_endpgm")

    def fallback(self):
        vM = 192
        s = self.seg("fb0")
        s(f"""L_fb:
        s_waitcnt vmcnt(0) lgkmcnt(0)
        v_and_b32 v{vT0}, 31, v{vL}
        v_lshlrev_b32 v{vT0}, 4, v{vT0}
        v_subrev_u32 v{vT1}, {KVS0}, v{vVA}
        v_accvgpr_write_b32 a{aK2 + 1}, 0
        s_mov_b32 s{sIT}, 0
        s_mov_b32 s{sSK}, 1""")
        for q in range(4):
            s(f"v_cndmask_b32 v{vQ2 + 4 * q}, v{vQ2 + 4 * q}, 0, {MSK}\nv_mov_b32 v{vM + q}, 0xff800000")
        for r in range(vO_, vO_ + 64):
            s(f"v_mov_b32 v{r}, 0")

        def loads(k, withv):
            k(f"""s_lshr_b32 s{sT0}, s{sIT}, 3
            s_mul_i32 s{sT0}, s{sT0}, {KVST}
            s_and_b32 s{sT1}, s{sIT}, 7
            s_lshl_b32 s{sT2}, s{sT1}, 10
            s_add_u32 s{sT2}, s{sT2}, s{sT0}
            buffer_load_dwordx4 {ar(aK1)}, v{vL16}, {srd(sWS)}, s{sT2} offen sc1
            s_lshr_b32 s{sT2}, s{sT1}, 2
            s_mul_i32 s{sT2}, s{sT2}, 640
            s_and_b32 s{sT3}, s{sT1}, 3
            s_lshl_b32 s{sT3}, s{sT3}, 2
            s_add_u32 s{sT2}, s{sT2}, s{sT3}
            s_add_u32 s{sT2}, s{sT2}, s{sT0}
            s_add_u32 s{sT2}, s{sT2}, 18432
            buffer_load_dword a{aK2}, v{vT0}, {srd(sWS)}, s{sT2} offen sc1""")
            if withv:
                k(f"""s_mul_i32 s{sT2}, s{sT1}, 1280
                s_add_u32 s{sT2}, s{sT2}, s{sT0}
                buffer_load_dwordx4 {ar(aV_)}, v{vT1}, {srd(sWS)}, s{sT2} offen sc1
                buffer_load_dwordx4 {ar(aV_ + 4)}, v{vT1}, {srd(sWS)}, s{sT2} offen offset:640 sc1""")
            k("s_waitcnt vmcnt(0)")
            for q in range(4):
                k.extend(self.qk(q, q, 0))
            k("s_nop 11")

        k = self.seg("fb1")
        k("L_fb1:")
        loads(k, False)
        for q in range(4):
            for j in range(0, 16, 2):
                k(f"v_max3_f32 v{vM + q}, v{vM + q}, v{vS_ + 16 * q + j}, v{vS_ + 16 * q + j + 1}")
        k(f"""s_add_u32 s{sIT}, s{sIT}, 1
        s_cmp_lt_u32 s{sIT}, 64
        s_cbranch_scc1 L_fb1""")
        k = self.seg("fb2")
        for q in range(4):
            k(f"v_mov_b32 v{vS_ + q}, v{vM + q}")
        k("s_nop 0")
        for q in range(4):
            k(f"v_permlane32_swap_b32 v{vM + q}, v{vS_ + q}")
        for q in range(4):
            k(f"v_max_f32 v{vM + q}, v{vM + q}, v{vS_ + q}")
        k(f"s_mov_b32 s{sIT}, 0")
        k = self.seg("fb3")
        k("L_fb3:")
        loads(k, True)
        for q in range(4):
            for j in range(16):
                k(f"v_sub_f32 v{vS_ + 16 * q + j}, v{vS_ + 16 * q + j}, v{vM + q}")
            for j in range(16):
                k(f"v_exp_f32 v{vS_ + 16 * q + j}, v{vS_ + 16 * q + j}")
        k("s_nop 1")
        for q in range(4):
            k.extend(self.pv(q, q, 0))
        k(f"""s_add_u32 s{sIT}, s{sIT}, 1
        s_cmp_lt_u32 s{sIT}, 64
        s_cbranch_scc1 L_fb3""")
        k = self.seg("fb4")
        k("s_nop 11\ns_branch L_opub")


DEFAULTS = dict(fpos=66, cpf=2, ngpre=18, gstep=5, n3=1, pack=2, n2=2, npf0=0, nup=8, npre=6, g0=0, wskip=0, vpf=1, late=1, xsplit=18, xq=9)


def build(path, C=2, stamps=False, xpf=False, wpf=True, forcefb=False, verbose=True, **kw):
    kw = dict(DEFAULTS, **kw)
    g = Gen1(C=C, stamps=stamps, xpf=xpf, wpf=wpf, **kw)
    g.forcefb = forcefb
    g.kvpoll, g.kvchk = kw.get("kvpoll", 300), kw.get("kvchk", 356)
    g.ne, g.n2, g.n3, g.etau = kw.get("ne", 4), kw.get("n2", 2), kw.get("n3", 2), kw.get("etau", 50)
    g.prologue()
    g.p0()
    g.p1()
    probs = []
    traces = [("P0", g.trace(["entry"] + (["pfe"] if kw.get("early") == 2 else []) + ["entry2", "p0x", "ln", "ln2", "p0pre"] + (["aloop", "aloop2"] * 7)[(1 if kw.get("late") else 0):] + ["aexit", "aswitch", "aswitch2", "aloop", "aloop2", "aexit", "b0"] + ["bloop", "bloop2"] * 3 + ["bloop", "bend"]))]
    for u in range(2):
        for o in range(2):
            fb = ["fb0", "fb1", "fb1", "fb2", "fb3", "fb3", "fb4", "opub"] if o else []
            for end in (["sk3", "e1", "fmain", "sk4", "e3", "fin"], g.sk3 + ["sk3", "e1", "fmain"] + g.sk4 + ["sk4", "e3", "fin"],
                        g.sk3[:1] + ["sk3", "e1", "e1b", "e1c", "e1d", "e1c", "e1e", "e1", "e1b", "e1c", "e1e", "e1", "fmain"] + g.sk4 + ["sk4", "e3", "e3b", "e3", "fin"]):
                t1 = ["entry"] + (["pfe"] if kw.get("early") == 3 else []) + ["entry2", "p1pre", "ln", "kvdma", "ln2", "p1a", f"kv{u}{o}", "p1gemm", "attpre"] + ["att0", "att1"] * 3 + ["att0", "attl"] + \
                     ["opub", "chk"] + fb + ["opub2", "wo1", "wo2", "wo1", "wo1", "ogat", "xud"] + end
                traces.append(("P1", g.trace(t1)))
    auto_vm([t for _, t in traces])
    for n, t in traces:
        probs += check_trace(t, n)
    seen = set()
    for p in probs:
        key = p.split("'", 1)[1]
        if key not in seen:
            seen.add(key)
            print(p)
    if verbose:
        for s in g.segs:
            n = sum(1 for i in s.ins if i.kind != "label")
            nm = sum(1 for i in s.ins if i.kind == "mfma")
            if n > 40:
                print(f"{s.name:10s} ins {n:5d} mfma {nm:4d} est {est_cycles(s.ins)}")
    open(path, "w").write(g.text())
    return len(seen)


if __name__ == "__main__":
    import argparse
    ap = argparse.ArgumentParser()
    ap.add_argument("-o", default="cdna_kernels/" + NAME + ".s")
    ap.add_argument("-C", type=int, default=2)
    ap.add_argument("--stamps", action="store_true")
    ap.add_argument("--xpf", action="store_true")
    ap.add_argument("--nowpf", action="store_true")
    ap.add_argument("--fb", action="store_true")
    ap.add_argument("kw", nargs="*")
    a = ap.parse_args()
    kw = {}
    for x in a.kw:
        k, v = x.split("=")
        kw[k] = int(v) if v.lstrip("-").isdigit() else " " + v
    n = build(a.o, a.C, a.stamps, a.xpf, not a.nowpf, a.fb, **kw)
    print("problems:", n)
```

```python
import math, struct, sys
from asmlib import Ins, Seg, check_trace, est_cycles, auto_vm
from sched import Timeline, Item, LAT

NAME = "parallel_sum__grouped_kv_mqa__geglu_ffn__prompt"


def f32(x):
    return "0x%08x" % struct.unpack("<I", struct.pack("<f", x))[0]


LOG2E = 1.4426950408889634
K0 = 2 * LOG2E * math.sqrt(2 / math.pi)
K1 = K0 * 0.044715
ALPHA = K1 ** (1.0 / 3.0)
K0P = K0 / ALPHA
CK = LOG2E / math.sqrt(18.0) / ALPHA ** 2
MOFF = 98.0
OOB = 0x40000000

SLOT = 36864
KVS0, KVS1, KVST = 110592, 131072, 20480
WS_KV, WS_FLAG, WS_HX, WS_OM, WS_PART, WS_STAMP = 0, 0x40000, 0x80000, 0x300000, 0x600000, 0x1C00000
WS_SIZE = 0x2000000
DD = 20

sX, sG, sU, sD, sWS, sOUT, sDBG, sQ, sKV, sWO, sPF = 8, 12, 16, 20, 24, 28, 32, 36, 40, 44, 72
sW, sR, sS, sROLE, sE1, sE2 = 76, 77, 78, 79, 80, 81
sM0W, sA, sC0, sC1, sINC, sIT, sHI, sNK, sT0, sT1, sT2, sT3 = 82, 83, 84, 85, 86, 87, 88, 89, 90, 91, 92, 93
sST, sFL, sPFO, sPOL, sSTN, sFLN = 94, 95, 96, 97, 98, 99
pG, pU, sDM, sDG, sINN, sNRN = 48, 50, 56, 60, 68, 69
sMASK = 4
sMK2 = 6


def srd(n):
    return f"s[{n}:{n + 3}]"


vL, vT0, vT1, vT2, vT3 = 1, 2, 3, 4, 5
vL16, vFLG = 6, 7
vRB = 8
vDM, vPF, vPOL, vONE = 24, 25, 26, 27
vTMP = 20
vDN = 28
vGL, vG, vU, vH = 32, 64, 96, 128
vLO, vRAW = 40, 112


def lo_raw(n):
    return (40 + 4 * n, 76 + 4 * n) if n < 9 else (112 + 4 * (n - 9), 148 + 4 * (n - 9))


aXN, aFR, aH0 = 0, 144, 216
vKD = 208


def vr(a, n=4):
    return f"v[{a}:{a + n - 1}]" if n > 1 else f"v{a}"


def ar(a, n=4):
    return f"a[{a}:{a + n - 1}]" if n > 1 else f"a{a}"


def xn(u, k):
    return ar(aXN + 4 * (18 * u + k))


def frag(gam, i):
    return aFR + 36 * (gam % 2) + 4 * i


class Gen:
    def __init__(self, C=1, stamps=False, xpf=True, wpf=True, **kw):
        self.o = kw
        self.late = kw.get('late', 0)
        self.defer = kw.get('defer', 0) if self.late else 0
        self.deferred = []
        self.C = C
        self.stamps = stamps
        self.xpf = xpf
        self.wpf = wpf
        self.segs = []
        self.nstamp = {}

    def seg(self, name):
        s = Seg(name)
        self.segs.append(s)
        return s

    def stamp(self, s, k, last=False):
        if not self.stamps or (self.o.get("minst") and not last):
            return
        s(f"""s_waitcnt lgkmcnt(0)
        s_memtime s[52:53]
        s_memrealtime s[54:55]
        s_waitcnt lgkmcnt(0)
        v_writelane_b32 v0, s52, {2 * k}
        v_writelane_b32 v0, s54, {2 * k + 1}""")

    def stamp_flush(self, s):
        if not self.stamps:
            return
        s(f"""s_lshl_b32 s48, s2, 2
        s_add_u32 s48, s48, s{sW}
        s_lshl_b32 s48, s48, 8
        s_add_u32 s48, s48, {WS_STAMP}
        v_lshlrev_b32 v{vT0}, 2, v{vL}
        buffer_store_dword v0, v{vT0}, {srd(sWS)}, s48 offen""")

    def std_reads(self, gam0, pos0, slot, tag):
        R = []
        n = 0
        for ct in range(4):
            for i in range(9):
                for h in range(2):
                    f = frag(gam0 + ct, i) + 2 * h
                    off = slot * SLOT + 4096 * i + 2048 * h
                    ins = Ins(f"ds_read_b64_tr_b16 {ar(f, 2)}, v{vRB + 4 * (off // 65536) + ct} offset:{off % 65536}", tag=tag)
                    g0 = pos0 + 18 * ct
                    R.append(Item("r", ins, pos0 - DD + n, earliest=g0 - 27 + i, deadline=g0 + i - LAT - 1))
                    n += 1
        return R

    def std_mfmas(self, tl, gam0, pos0, acc, bfun, zero):
        for ct in range(4):
            for u in range(2):
                for i in range(9):
                    c = vr(acc + 4 * (2 * ct + u))
                    cin = "0" if (zero and i == 0) else c
                    tl.m[pos0 + 18 * ct + 9 * u + i] = Ins(f"v_mfma_f32_16x16x32_bf16 {c}, {ar(frag(gam0 + ct, i))}, {bfun(u, i)}, {cin}")

    def barrier(self, tl, p, vmtags, ldstag):
        g = tl.gap(p)
        g.shadow.append(Ins("s_waitcnt vmcnt(63) lgkmcnt(6)", auto=vmtags))
        g.bar.append(Ins("s_barrier", need=list(vmtags) + [f"lds:{ldstag}/6"]))

    def dmas(self, tl, stage, voff, first, inc, tag, srdn=None, p0=None, step=8):
        for i in range(9):
            p = (72 * (stage - 3) + 7 if p0 is None else p0) + step * i
            m0 = f"s_add_u32 m0, s{sM0W}, {(stage % 4) * SLOT + 4096 * i}"
            if srdn is not None:
                sh = [m0, first[0] if (i == 0 and first) else f"s_add_u32 s{sA}, s{sA}, {inc}"]
                op = f"buffer_load_dwordx4 v{voff}, {srd(srdn)}, s{sA} offen lds"
            else:
                sh = [m0] + (first if (i == 0 and first) else [f"s_add_u32 s{sDM}, s{sDM}, {inc}", f"s_addc_u32 s{sDM + 1}, s{sDM + 1}, 0"])
                op = f"buffer_load_dwordx4 v{voff}, {srd(sDM)}, 0 offen lds"
            for k, t in enumerate(sh):
                tl.gap(p - len(sh) + 1 + k).shadow.append(Ins(t))
            tl.gap(p).mem.append(Ins(op, tag=tag))

    def first_dmas(self, tl, p0):
        self.dmas(tl, 1, vDM, None, f"s{sINC}", "st1", p0=p0, step=4)
        self.dmas(tl, 2, vDM, [f"s_add_u32 s{sDM}, s{sU}, s{sC0}", f"s_addc_u32 s{sDM + 1}, s{sU + 1}, 0"], f"s{sINC}", "st2", p0=p0 + 36, step=4)
        self.dmas(tl, 3, vDM, None, f"s{sINC}", "st3", p0=p0 + (73 if p0 > 0 else 75), step=(4 if p0 > 0 else 5))

    def shadows(self, tl, p, seq):
        for t in seq:
            tt = t if isinstance(t, tuple) else (t,)
            while any(tl.gap(p + k).shadow for k in range(len(tt))):
                p += 1
            for x in tt:
                tl.gap(p).shadow.append(Ins(x))
                p += 1
        return p

    def gelu_items(self, base, t0, t1, idx, hreg):
        raw = []
        for j in range(8):
            rel = base + 72 + 9 * j + 8 + 4
            dl = base + 288 + 9 * j - 1
            g, t = vG + 4 * j, vGL + 4 * j
            for e in range(4):
                raw.append(("v", [Ins(f"v_fma_f32 v{t + e}, -v{g + e}, v{g + e}, s{sNK}")], rel, dl))
            for e in range(4):
                raw.append(("v", [Ins(f"v_mul_f32 v{t + e}, v{t + e}, v{g + e}")], rel, dl))
            for e in range(4):
                raw.append(("v", [Ins(f"v_exp_f32 v{t + e}, v{t + e}")], rel, dl))
            for e in range(4):
                raw.append(("v", [Ins(f"v_add_f32 v{t + e}, 1.0, v{t + e}")], rel, dl))
            for e in range(4):
                raw.append(("v", [Ins(f"v_rcp_f32 v{t + e}, v{t + e}")], rel, dl))
            for e in range(4):
                raw.append(("v", [Ins(f"v_mul_f32 v{t + e}, v{t + e}, v{g + e}")], rel, dl))
        for j in (0, 2, 4, 6, 1, 3, 5, 7):
            ct, u = j // 2, j % 2
            rel = base + 216 + 9 * j + 8 + 4
            dl = base + 288 + 144 + 9 * j - 1
            t, uu = vGL + 4 * j, vU + 4 * j
            h = hreg + 8 * (ct // 2) + 4 * u + 2 * (ct % 2)
            for e in range(4):
                raw.append(("v", [Ins(f"v_mul_f32 v{t + e}, v{t + e}, v{uu + e}")], rel, dl))
            if idx:
                offs = [16 * k for k in range(8)]
                raw.append(("x", [Ins(f"v_cvt_pk_bf16_f32 v{h + e}, v{t + 2 * e}, v{t + 2 * e + 1}", idx=offs) for e in range(2)], rel, dl))
            else:
                for e in range(2):
                    raw.append(("v", [Ins(f"v_cvt_pk_bf16_f32 v{h + e}, v{t + 2 * e}, v{t + 2 * e + 1}")], rel, dl))
        items = []
        for k, ins, rel, dl in raw:
            if k == "x":
                items.append(Item("x", ins, 0, rel, dl, pre=Ins(f"s_set_gpr_idx_on s{sHI}, 8"), post=Ins("s_set_gpr_idx_off")))
            else:
                items.append(Item("v", ins, 0, rel, dl))
        for c, i in enumerate(items):
            i.target = t0 + (t1 - t0) * c / len(items)
        return items

    def prologue(self):
        C = self.C
        s = self.seg("entry")
        if self.stamps:
            s("s_memtime s[96:97]\ns_memrealtime s[98:99]")
        s(f"""s_cmp_ge_u32 s2, 256
        s_cbranch_scc1 L_end
        s_load_dwordx16 s[48:63], s[0:1], 0
        s_load_dwordx8 s[64:71], s[0:1], 64
        v_lshrrev_b32 v{vT0}, 6, v0
        v_and_b32 v{vL}, 63, v0
        v_readfirstlane_b32 s{sW}, v{vT0}
        s_and_b32 s{sT0}, s2, 7
        s_lshr_b32 s{sT1}, s2, 3
        s_bitcmp1_b32 s2, 3
        s_cselect_b32 s{sROLE}, 1, 0
        s_lshr_b32 s{sT1}, s{sT1}, 1""")
        lc = C.bit_length() - 1
        s(f"""s_and_b32 s{sS}, s{sT0}, {8 // C - 1}
        s_lshl_b32 s{sS}, s{sS}, {lc}
        s_and_b32 s{sT2}, s{sT1}, {C - 1}
        s_add_u32 s{sS}, s{sS}, s{sT2}
        s_lshl_b32 s{sE1}, s{sT2}, 1
        s_add_u32 s{sE1}, s{sE1}, s{sROLE}
        s_lshr_b32 s{sE2}, s{sT1}, {lc}
        s_lshr_b32 s{sR}, s{sT0}, {3 - lc}
        s_lshl_b32 s{sR}, s{sR}, {4 - lc}
        s_add_u32 s{sR}, s{sR}, s{sE2}
        s_lshl_b32 s{sM0W}, s{sW}, 10
        v_lshlrev_b32 v{vL16}, 4, v{vL}
        v_lshrrev_b32 v{vT0}, 3, v{vL}
        v_and_b32 v{vT1}, 7, v{vL}
        s_lshl_b32 s{sT0}, s{sW}, 5
        v_add_u32 v{vT2}, s{sT0}, v{vT0}
        v_mul_u32_u24 v{vT2}, 1152, v{vT2}
        v_lshl_add_u32 v{vTMP}, v{vT1}, 4, v{vT2}
        v_and_b32 v{vT0}, 48, v{vL}
        v_xor_b32 v28, v{vTMP}, v{vT0}
        v_xor_b32 v29, 64, v28
        v_add_u32 v29, 9216, v29
        v_add_u32 v30, 18432, v28
        v_add_u32 v31, 18432, v29
        s_mul_i32 s{sT0}, s{sR}, 147456
        s_mul_i32 s{sT1}, s{sS}, 1152""")
        if self.o.get("cpf", 0):
            s(f"""s_getpc_b64 s[100:101]
            L_pc:
            s_lshr_b32 s{sT2}, s2, 3
            s_lshl_b32 s{sT2}, s{sT2}, 2
            s_add_u32 s{sT2}, s{sT2}, s{sW}
            v_and_b32 v32, 3, v{vL}
            v_lshl_add_u32 v32, v32, 7, s{sT2}
            v_lshlrev_b32 v32, 7, v32
            v_min_u32 v32, L_end-L_pc, v32
            v_mov_b32 v33, s101
            v_add_co_u32 v32, vcc, s100, v32
            s_nop 1
            v_addc_co_u32 v33, vcc, 0, v33, vcc""")
            if not self.o.get("cpos", 0):
                s(f"global_load_dword v{vT3}, v[32:33], off", tag="pf")
        s("s_waitcnt lgkmcnt(0)")
        self.stamp0(s)

        def mk(n, src, offreg, size, sub=False):
            s = self.segs[-1]
            if offreg is None:
                s(f"s_mov_b32 s{n}, s{src}\ns_and_b32 s{n + 1}, s{src + 1}, 0xffff")
            else:
                s(f"s_add_u32 s{n}, s{src}, s{offreg}\ns_addc_u32 s{n + 1}, s{src + 1}, 0\ns_and_b32 s{n + 1}, s{n + 1}, 0xffff")
            if sub:
                s(f"s_sub_u32 s{n + 2}, {size}, s{offreg}")
            else:
                s(f"s_mov_b32 s{n + 2}, {size}")
            s(f"s_mov_b32 s{n + 3}, 0x20000")

        mk(sX, 48, sT0, 147456)
        vXO = 28
        xl = []
        for u in range(2):
            for c in range(9):
                for r2 in range(2):
                    rg = 2 * u + r2
                    xl.append([Ins(f"s_add_u32 m0, s{sM0W}, {rg * SLOT + 4096 * c - 128 * c}"),
                               Ins(f"buffer_load_dwordx4 v{vXO + rg}, {srd(sX)}, 0 offen offset:{128 * c} lds", tag=f"x{9 * u + c}")])
        NUP = self.o.get("nup", 12)
        xpos = self.o.get("xpos", 0)
        early = self.o.get("early", 0)

        def xpref():
            per = 144 // C
            n = (per + 63) // 64
            lanes = per // n
            s(f"""s_lshl_b32 s{sT2}, s{sE1}, 2
            s_add_u32 s{sT2}, s{sT2}, s{sW}
            s_mul_i32 s{sT2}, s{sT2}, {per * 128}
            v_min_u32 v{vT2}, {lanes - 1}, v{vL}
            v_lshlrev_b32 v{vT2}, 7, v{vT2}""")
            for i in range(n):
                s(f"buffer_load_dword v{vT3}, v{vT2}, {srd(sX)}, s{sT2} offen", tag="pf")
                if i + 1 < n:
                    s(f"s_add_u32 s{sT2}, s{sT2}, {lanes * 128}")

        def xfirst(a, b):
            s = self.segs[-1]
            for q in xl[a:b]:
                s.add(q[0])
                if len(q) > 1:
                    s("s_nop 0")
                    s.add(q[1])

        if self.o.get("cpos", 0):
            xl.insert(self.o["cpos"], [Ins(f"global_load_dword v{vT3}, v[32:33], off", tag="pf")])
        xsplit = self.o.get("xsplit", 0)
        if xsplit:
            n = 72 // C
            s(f"""s_mul_i32 s{sT2}, s{sE1}, {n * 128}
            s_mul_i32 s{sT3}, s{sW}, 36864
            s_add_u32 s{sT2}, s{sT2}, s{sT3}
            v_min_u32 v32, {n - 1}, v{vL}
            v_lshl_add_u32 v32, v32, 7, s{sT2}
            v_add_u32 v207, 18432, v32""")
            s(f"buffer_load_dword v{vT3}, v32, {srd(sX)}, 0 offen", tag="pf")
            xl.insert(xsplit, [Ins(f"buffer_load_dword v{vT3}, v207, {srd(sX)}, 0 offen", tag="pf")])
        xfirst(0, min(xpos, NUP))
        if self.xpf:
            xpref()
        if not early:
            xfirst(min(xpos, NUP), NUP)
        if self.stamps and not self.o.get("minst"):
            s("s_memtime s[96:97]\ns_waitcnt lgkmcnt(0)\nv_writelane_b32 v0, s96, 52")
        tlb = self.o.get("tlb", 0)
        if tlb:
            step = 5308416 // tlb // 4 // 64 * 64
            s(f"s_mul_i32 s{sA}, s{sW}, {step}")
            for i in range(tlb):
                s(f"s_load_dword s100, s[60:61], s{sA}\ns_load_dword s100, s[62:63], s{sA}\ns_add_u32 s{sA}, s{sA}, {4 * step}")
            s("s_load_dword s100, s[50:51], 0\ns_load_dword s100, s[52:53], 0\ns_load_dword s100, s[54:55], 0")
        mk(sG, 60, sT1, 5308416, sub=True)
        mk(sU, 62, sT1, 5308416, sub=True)
        s(f"""s_bitcmp1_b32 s{sS}, 1
        s_cselect_b32 s{sKV}, s54, s52
        s_cselect_b32 s{sKV + 1}, s55, s53
        s_and_b32 s{sKV + 1}, s{sKV + 1}, 0xffff
        s_mov_b32 s{sKV + 2}, 20736
        s_mov_b32 s{sKV + 3}, 0x20000
        s_cmp_ge_u32 s{sW}, 2
        s_cselect_b32 s{sPF}, s{sU}, s{sG}
        s_cselect_b32 s{sPF + 1}, s{sU + 1}, s{sG + 1}
        s_mov_b32 s{sPF + 2}, s{sG + 2}
        s_mov_b32 s{sPF + 3}, 0x20000
        s_cmp_eq_u32 s{sROLE}, 0
        s_cselect_b32 s{sC0}, 128, 0""")
        npf = 1 if C <= 2 else 2
        self.npf = npf
        lanes = 18 * C // npf
        self.pfstep = lanes * (32 // C)
        s(f"""s_and_b32 s{sT0}, s{sW}, 1
        s_lshl_b32 s{sT1}, s{sE2}, 1
        s_add_u32 s{sT0}, s{sT0}, s{sT1}
        v_lshlrev_b32 v{vT0}, {5 - lc}, v{vL}
        v_add_u32 v{vT0}, s{sT0}, v{vT0}
        v_mul_u32_u24 v{vPF}, 9216, v{vT0}
        v_mul_u32_u24 v{vPOL}, 1152, v{vT0}
        v_mov_b32 v{vT1}, {OOB}
        v_cmp_gt_u32 vcc, {lanes}, v{vL}
        s_nop 1
        v_cndmask_b32 v{vPF}, v{vT1}, v{vPF}, vcc
        v_cndmask_b32 v{vPOL}, v{vT1}, v{vPOL}, vcc""")
        spf = self.o.get("spf", 0)
        nsb = self.o.get("nsb", 3) if spf else 0

        def sbatch(b):
            s = self.segs[-1]
            if b >= nsb:
                return
            s(f"""s_lshl_b32 s{sT0}, s{sE2}, 2
            s_add_u32 s{sT0}, s{sT0}, s{sW}
            s_mul_i32 s{sT0}, s{sT0}, {spf}
            s_add_u32 s{sT0}, s{sT0}, {b * spf * 64 // C}
            s_cmp_ge_u32 s{sT0}, {576 - spf + 1}
            s_cselect_b32 s100, s{sU}, s{sG}
            s_cselect_b32 s101, s{sU + 1}, s{sG + 1}
            s_cselect_b32 s{sT1}, {576 // spf * spf}, 0
            s_sub_u32 s{sT0}, s{sT0}, s{sT1}
            s_min_u32 s{sT0}, s{sT0}, {576 - spf}
            s_mul_i32 s{sT0}, s{sT0}, 9216
            s_add_u32 s{sT0}, s{sT0}, s{sC0}
            s_add_u32 s100, s100, s{sT0}
            s_addc_u32 s101, s101, 0""")
            for j in range(spf):
                s(f"s_load_dword s{sIT}, s[100:101], {9216 * j}")

        sbatch(0)
        n2 = self.o.get("nup2", NUP)
        kvpf = f"""s_and_b32 s{sT2}, s{sE2}, 3
        s_lshl_b32 s{sT2}, s{sT2}, 2
        s_add_u32 s{sT2}, s{sT2}, s{sW}
        s_mul_i32 s{sT2}, s{sT2}, {11 * 128}
        s_cmp_eq_u32 s{sROLE}, {1 if early == 2 else 0}
        s_cselect_b32 s{sT2}, {OOB}, s{sT2}
        v_min_u32 v{vT2}, 10, v{vL}
        v_lshlrev_b32 v{vT2}, 7, v{vT2}"""
        if early:
            s(kvpf)
            if early >= 2:
                s("s_cbranch_scc1 L_nopf")
                s = self.seg("pfe")
            s(f"buffer_load_dword v{vT3}, v{vT2}, {srd(sKV)}, s{sT2} offen", tag="pf")
            for i in range(npf):
                s(f"s_add_u32 s{sT0}, s{sC0}, {i * self.pfstep * 9216}")
                s(f"buffer_load_dword v{vT3}, v{vPF}, {srd(sPF)}, s{sT0} offen", tag="pf")
                if early >= 2:
                    s(f"s_mov_b32 s{sT0}, {(128 if early == 3 else 0) + i * self.pfstep * 9216}")
                    s(f"buffer_load_dword v{vT3}, v{vPF}, {srd(sPF)}, s{sT0} offen", tag="pf")
            if early >= 2:
                s = self.seg("entry2")
                s("L_nopf:")
            xfirst(min(xpos, NUP), NUP)
        s(f"s_mul_i32 s{sT0}, s{sR}, 147456")
        mk(sOUT, 66, sT0, 147456)
        s(f"s_mul_i32 s{sT0}, s{sS}, 663552\ns_mul_i32 s{sT1}, s{sS}, 144")
        mk(sD, 64, sT0, 663552)
        mk(sQ, 50, sT1, 663552, sub=True)
        mk(sWS, 70, None, WS_SIZE)
        mk(sDBG, 68, None, 256)
        mk(sWO, 56, None, 663552)
        s(f"""s_add_u32 s{sT0}, s{sC0}, {8 * 32 * 9216}
        s_add_u32 s{sDM}, s{sG if self.late else sU}, s{sT0}
        s_addc_u32 s{sDM + 1}, s{(sG if self.late else sU) + 1}, 0
        s_mov_b32 s{sDM + 2}, {31 * 9216 + 128}
        s_mov_b32 s{sDM + 3}, 0x20000""")
        s(f"""v_lshrrev_b32 v{vT0}, 2, v{vL}
        v_lshlrev_b32 v{vT0}, 7, v{vT0}
        v_and_b32 v{vT1}, 3, v{vL}
        v_lshl_add_u32 v{vT0}, v{vT1}, 3, v{vT0}
        v_bfe_u32 v{vT1}, v{vL}, 3, 2""")
        for ct in range(4):
            s(f"""v_xor_b32 v{vT2}, {ct}, v{vT1}
            v_lshl_add_u32 v{vRB + ct}, v{vT2}, 5, v{vT0}
            v_add_u32 v{vRB + 4 + ct}, 0x10000, v{vRB + ct}
            v_add_u32 v{vRB + 8 + ct}, 0x20000, v{vRB + ct}""")
        s(f"""v_bfe_u32 v{vT0}, v{vL}, 1, 2
        v_lshrrev_b32 v{vT1}, 4, v{vL}
        v_xor_b32 v{vTMP + 2}, v{vT0}, v{vT1}
        v_and_b32 v{vT1}, 1, v{vL}
        v_lshlrev_b32 v{vT1}, 4, v{vT1}
        v_lshl_add_u32 v{vTMP + 1}, v{vTMP + 2}, 5, v{vT1}""")
        vXB = (vFLG, vONE)
        aONE = 252
        s(f"""v_lshrrev_b32 v{vT0}, 5, v{vL}
        v_bfe_u32 v{vT1}, v{vL}, 3, 2
        v_lshl_add_u32 v{vT0}, v{vT0}, 3, v{vT1}
        s_and_b32 s{sT0}, s{sW}, 1
        s_lshl_b32 s{sT0}, s{sT0}, 4
        s_lshr_b32 s{sT1}, s{sW}, 1
        s_lshl_b32 s{sT1}, s{sT1}, 2
        s_add_u32 s{sT0}, s{sT0}, s{sT1}
        v_add_u32 v{vTMP + 3}, s{sT0}, v{vT0}
        v_mul_u32_u24 v{vDM}, 9216, v{vTMP + 3}
        v_add_u32 v{vDM}, v{vDM}, v{vTMP + 1}
        s_mov_b32 s{sNK}, {f32(-K0P)}
        s_mov_b32 s{sMASK}, 0
        s_mov_b32 s{sMASK + 1}, -1
        s_mov_b32 s{sINC}, {32 * 9216}
        v_bfe_u32 v{vT0}, v{vL}, 1, 3
        v_lshrrev_b32 v{vT1}, 4, v{vL}
        v_xor_b32 v{vT0}, v{vT0}, v{vT1}
        v_and_b32 v{vT2}, 7, v{vL}
        v_lshl_add_u32 v{vT0}, v{vT2}, 3, v{vT0}
        v_lshl_add_u32 v{vT0}, v{vT0}, 4, s{sM0W}
        v_bfe_u32 v{vT2}, v{vL}, 3, 1
        v_mul_u32_u24 v{vT2}, {SLOT}, v{vT2}
        v_add_u32 v{vXB[0]}, v{vT0}, v{vT2}
        v_xor_b32 v{vXB[1]}, 64, v{vXB[0]}
        v_and_b32 v{vT0}, 15, v{vL}
        v_lshlrev_b32 v{vT1}, 2, v{vT1}
        v_sub_u32 v{vT0}, v{vT0}, v{vT1}
        v_mov_b32 v{vT1}, 0x3f803f80""")
        for j in range(4):
            s(f"v_cmp_eq_u32 s[{sDG + 2 * j}:{sDG + 2 * j + 1}], {j}, v{vT0}\nv_accvgpr_write_b32 a{aONE + j}, v{vT1}")
        if not early:
            s(kvpf)
        self.stamp(s, 27)
        npre = self.o.get("npre", 0)
        if npre:
            s(f"s_cmp_eq_u32 s{sROLE}, 1\ns_cbranch_scc1 L_p1pre")
            self.seg("p0x")
            xfirst(NUP, NUP + npre)
            self.segs[-1]("s_branch L_ln")
            self.p1pre()
            k = self.segs[-1]
            old, k.ins = k.ins, [Ins("L_p1pre:")]
            step = len(old) // npre
            pos = [step * (j + 1) - 1 for j in range(npre)]
            j = 0
            for n, i in enumerate(old):
                k.add(i)
                nxt = old[n + 1] if n + 1 < len(old) else None
                dead = True
                for y in old[n + 1:]:
                    if y.op.startswith("s_cselect") or y.op.startswith("s_addc"):
                        dead = False
                        break
                    if y.kind == "salu" and not y.op.startswith(("s_mov", "s_mul", "s_nop")):
                        break
                if j < npre and n >= pos[j] and dead:
                    q = xl[NUP + j]
                    k.extend([Ins(q[0].text), Ins("s_nop 0"), Ins(q[1].text, tag=q[1].tag)] if len(q) > 1 else [Ins(q[0].text, tag=q[0].tag)])
                    j += 1
            assert j == npre
            NUP += npre
            n2 = max(n2, NUP)
        else:
            s(f"s_cmp_eq_u32 s{sROLE}, 0\ns_cbranch_scc1 L_ln")
            self.p1pre()
        s = self.seg("ln")
        s("L_ln:")
        xfirst(NUP, n2)
        NUP = n2
        if tlb or spf:
            s("s_waitcnt lgkmcnt(0)")
        pf1, pf2 = [], []
        if self.wpf and not early:
            pf1.append([Ins(f"buffer_load_dword v{vT3}, v{vT2}, {srd(sKV)}, s{sT2} offen", tag="pf")])
            for i in range(npf if self.o.get("vpf", 1) else 0):
                pf1.append([Ins(f"s_add_u32 s{sT0}, s{sC0}, {i * self.pfstep * 9216}"),
                            Ins(f"buffer_load_dword v{vT3}, v{vPF}, {srd(sPF)}, s{sT0} offen", tag="pf")])
        if self.wpf and self.o.get("vpf", 1) == 2:
            pf1.append([Ins(f"s_cmp_eq_u32 s{sROLE}, 0"), Ins(f"s_cselect_b32 s{sT0}, 64, {OOB // 4}"), Ins(f"s_lshl_b32 s{sT0}, s{sT0}, 2"),
                        Ins(f"buffer_load_dword v{vT3}, v{vPF}, {srd(sPF)}, s{sT0} offen", tag="pf")])
        if self.wpf and self.o.get("qpf", 1) == 2:
            for i in range(npf):
                pf1.append([Ins(f"s_lshr_b32 s{sT1}, s{sW}, 1"), Ins(f"s_mul_i32 s{sT1}, s{sT1}, 140"), Ins(f"s_add_u32 s{sT1}, s{sT1}, {i * self.pfstep * 1152}"),
                            Ins(f"s_cmp_eq_u32 s{sROLE}, 0"), Ins(f"s_cselect_b32 s{sT1}, {OOB}, s{sT1}"),
                            Ins(f"buffer_load_dword v{vT3}, v{vPOL}, {srd(sQ)}, s{sT1} offen", tag="pf")])
        self.pf2 = lambda col: [x for i in range(npf) for x in (Ins(f"s_mov_b32 s{sT0}, {col + i * self.pfstep * 9216}"),
                                                                 Ins(f"buffer_load_dword v{vT3}, v{vPF}, {srd(sPF)}, s{sT0} offen", tag="pf"))]
        wl = []
        for st in range(3):
            for i in range(9):
                wl.append([Ins(f"s_add_u32 m0, s{sM0W}, {st * SLOT + 4096 * i}"),
                           Ins(f"s_mov_b32 s{sA}, s{sC0}" if (i == 0 and st % 2 == 0) else f"s_add_u32 s{sA}, s{sA}, s{sINC}"),
                           Ins(f"buffer_load_dwordx4 v{vDM}, {srd(sG if st < 2 else sU)}, s{sA} offen lds", tag=f"st{st}", need=[f"lds:xr{st // 2}"])])
        if self.late:
            wl = wl[:9] + pf1[1:]
            pf1 = pf1[:1]
            if self.o.get("kve", 1):
                xl.insert(self.o.get("kpos", 22), pf1.pop())
        pfpos = max(NUP, self.o.get("pfpos", len(xl)))
        g0 = self.o.get("g0", 0)
        w1 = self.o.get("w1", 18)
        wskip = self.o.get("wskip", 0)
        q0 = xl[NUP:pfpos] + (wl[:g0] if pfpos == len(xl) else []) + pf1 + xl[pfpos:]
        xq = self.o.get("xq", 18)
        q0 = q0[:xq] + [None] * (18 - xq) + q0[xq:]
        vSU, vGR, vK = 32, 36, 2

        def xread(u, c, hh):
            return Ins(f"ds_read_b128 {vr(lo_raw(2 * c + hh)[1])}, v{vXB[hh]} offset:{4096 * c}", tag=f"xr{u}", need=[f"x{9 * u + c}"])

        def xwait(u, c):
            return Ins("s_waitcnt vmcnt(63)", auto=[f"x{9 * u + c}"])

        def vmop(s, q, pad):
            s.extend(q[:-1])
            if pad and len(q) == 2 and "m0" in q[0].wr:
                s("s_nop 0")
            s.add(q[-1])

        kve = self.kve = self.late and self.o.get("kve", 1)

        def kvdma(s):
            s(f"s_cmp_eq_u32 s{sROLE}, 0\ns_cbranch_scc1 L_nokv")
            k = self.seg("kvdma")
            for i in range(5):
                dst = (4 * SLOT + 4096 * i if i < 4 else SLOT + 32768) if kve else 3 * SLOT + 4096 * i
                k(f"s_add_u32 m0, s{sM0W}, {dst}")
                k(f"s_mov_b32 s{sT0}, {4608 * i}")
                k(f"buffer_load_dwordx4 v{vKD}, {srd(sKV)}, s{sT0} offen lds", tag="kvimg", need=["lds:xr0" if kve else "lds:xr1"])
            s = self.seg("ln2")
            s("L_nokv:")
            return s

        for u in range(2):
            queue = q0 if u == 0 else [None] * wskip + wl[g0:w1]
            if u == 0:
                for c in range(2):
                    s.add(xwait(0, c))
                    s.extend([xread(0, c, 0), xread(0, c, 1)])
                    if c == 0:
                        self.stamp(s, 10)
            s(f"s_waitcnt lgkmcnt({0 if (u == 1 and nsb > 1) else 2})")
            for c in range(9):
                for hh in range(2):
                    n = 2 * c + hh
                    lo, r = lo_raw(n)
                    s(f"v_mfma_f32_16x16x32_bf16 {vr(vSU)}, {ar(aONE)}, {vr(r)}, {'0' if n == 0 else vr(vSU)}")
                    if hh == 0 and c + 2 < 9:
                        s.add(xwait(u, c + 2))
                        s.add(xread(u, c + 2, 0))
                    if hh == 1 and queue:
                        q = queue.pop(0)
                        if q:
                            vmop(s, q, True)
                    for j in range(4):
                        s(f"v_lshlrev_b32 v{lo + j}, 16, v{r + j}")
                    s(f"v_mfma_f32_16x16x32_bf16 {vr(vGR)}, {vr(r)}, {vr(r)}, {'0' if n == 0 else vr(vGR)}")
                    if hh == 0:
                        q = queue.pop(0) if queue else None
                        if q:
                            s.extend(q[:-1])
                        if c + 2 < 9:
                            s.add(xread(u, c + 2, 1))
                        elif q and len(q) == 2:
                            s("s_nop 0")
                        if q:
                            s.add(q[-1])
                    elif c < 8:
                        s(f"s_waitcnt lgkmcnt({2 if c + 2 < 9 else 0})")
                    for j in range(4):
                        s(f"v_and_b32 v{r + j}, 0xffff0000, v{r + j}")
            self.stamp(s, 11 + 2 * u)
            if u == 0:
                s(f"v_add_u32 v{vXB[0]}, {2 * SLOT}, v{vXB[0]}\nv_add_u32 v{vXB[1]}, {2 * SLOT}, v{vXB[1]}\ns_nop 1")
            else:
                assert not queue
                queue = wl[w1:]
                if not kve:
                    s = kvdma(s)
                s("s_nop 3" if kve else "s_nop 1")
            sbatch(1 + u)
            s(f"v_cndmask_b32 v{vGR}, 0, v{vGR}, s[{sDG}:{sDG + 1}]")
            for j in range(1, 4):
                s(f"v_cndmask_b32 v{vGR}, v{vGR}, v{vGR + j}, s[{sDG + 2 * j}:{sDG + 2 * j + 1}]")
            s(f"""v_mov_b32 v{vGR + 1}, v{vGR}
            v_mul_f32 v{vSU}, {f32(1 / 576)}, v{vSU}
            s_nop 0
            v_permlane16_swap_b32 v{vGR}, v{vGR + 1}
            v_add_f32 v{vGR}, v{vGR}, v{vGR + 1}
            v_mov_b32 v{vGR + 1}, v{vGR}
            v_mul_f32 v{vSU + 1}, v{vSU}, v{vSU}
            s_nop 0
            v_permlane32_swap_b32 v{vGR}, v{vGR + 1}
            v_add_f32 v{vGR}, v{vGR}, v{vGR + 1}
            v_mul_f32 v{vGR}, {f32(1 / 576)}, v{vGR}
            v_sub_f32 v{vGR}, v{vGR}, v{vSU + 1}
            v_max_f32 v{vGR}, 0, v{vGR}
            v_add_f32 v{vGR}, {f32(1e-5)}, v{vGR}
            v_rsq_f32 v{vGR}, v{vGR}
            s_nop 0
            v_mul_f32 v{vK}, {f32(ALPHA)}, v{vGR}
            v_mul_f32 v{vK + 1}, v{vK}, -v{vSU}""")
            for n in range(18):
                lo, r = lo_raw(n)
                k = vr(vK, 2)
                lim = 16 if u == 0 else 18
                while queue and (n % 2 == 0 or len(queue) > (lim - n) // 2):
                    vmop(s, queue.pop(0), True)
                    if len(queue) < lim - n:
                        break
                if u == 0 and kve and n == self.o.get("kvn", 12):
                    assert not queue
                    s = kvdma(s)
                if u == 0 and n == 16:
                    assert not queue
                    s.add(xwait(1, 1))
                    s.extend([xread(1, c, hh) for c in range(2) for hh in range(2)])
                for j in (0, 2):
                    s(f"v_pk_fma_f32 {vr(lo + j, 2)}, {vr(lo + j, 2)}, {k}, {k} op_sel:[0,0,1] op_sel_hi:[1,0,1]")
                    s(f"v_pk_fma_f32 {vr(r + j, 2)}, {vr(r + j, 2)}, {k}, {k} op_sel:[0,0,1] op_sel_hi:[1,0,1]")
                fin = [f"v_cvt_pk_bf16_f32 v{lo + j}, v{lo + j}, v{r + j}" for j in range(4)]
                fin += [f"v_accvgpr_write_b32 a{aXN + 4 * (18 * u + n) + j}, v{lo + j}" for j in range(4)]
                if u == 1 and n >= 18 - self.defer:
                    self.deferred.append((n, fin))
                else:
                    s("\n".join(fin))
            assert not queue
            self.stamp(s, 12 + 2 * u)
        s(f"""v_mov_b32 v{vT1}, {OOB}
        v_cmp_eq_u32 vcc, 0, v{vL}
        v_mov_b32 v{vONE}, 1
        s_nop 0
        v_cndmask_b32 v{vFLG}, v{vT1}, 0, vcc""")
        if nsb > 2:
            s("s_waitcnt lgkmcnt(0)")
        self.stamp(s, 1)
        s(f"""s_cmp_lg_u32 s{sROLE}, 0
        s_cbranch_scc1 L_p1""")

    def stamp0(self, s):
        if not self.stamps:
            return
        s(f"""s_memtime s[58:59]
        s_waitcnt lgkmcnt(0)
        v_writelane_b32 v0, s58, 38
        v_writelane_b32 v0, s96, 0
        v_writelane_b32 v0, s98, 1""")

    def p0(self):
        tl = Timeline()
        xb = lambda h: (lambda u, i: xn(u, 9 * h + i))
        for st, (acc, h) in enumerate(((vG, 0), (vG, 1), (vU, 0), (vU, 1), (vG, 0), (vG, 1))):
            self.std_mfmas(tl, 4 * st, 72 * st, acc, xb(h), h == 0)
            tl.put_reads(self.std_reads(4 * st, 72 * st, st % 4, f"r{st % 4}"))
            if st:
                self.barrier(tl, 72 * st - DD, [f"st{st % 4}"], f"r{(st - 1) % 4}")
        for st in range(3, 9):
            sl = st % 4
            first = [f"s_mov_b32 s{sDM}, s{pG if sl < 2 else pU}", f"s_mov_b32 s{sDM + 1}, s{(pG if sl < 2 else pU) + 1}"] if sl % 2 == 0 else None
            self.dmas(tl, st, vDM, first, f"s{sINC}", f"st{sl}")
        tl.gap(306).mem.append(Ins(f"buffer_load_dword v{vPOL}, off, {srd(sDBG)}, s{sPOL} sc1", tag="poll"))
        e = self.shadows(tl, 360, [f"s_mov_b32 s{sINC}, s{sINN}", f"s_mov_b32 s{sDM + 2}, s{sNRN}"])
        assert e <= 365
        tl.gap(362).valu.append(Ins(f"v_mov_b32 v{vDM}, v{vDN}"))
        self.shadows(tl, 120, [f"s_add_u32 s{sHI}, s{sHI}, 16", f"s_and_b32 s{sHI}, s{sHI}, 127", f"s_add_u32 s{sIT}, s{sIT}, 1",
                               (f"s_add_u32 s{pG}, s{pG}, 128", f"s_addc_u32 s{pG + 1}, s{pG + 1}, 0"),
                               (f"s_cmp_eq_u32 s{sIT}, 6", f"s_cselect_b32 s{sPOL}, s{sT3}, {OOB}")])
        self.shadows(tl, 224, [(f"s_add_u32 s{pU}, s{pU}, 128", f"s_addc_u32 s{pU + 1}, s{pU + 1}, 0")])
        tl.gap(287).shadow.append(Ins(f"s_cmp_lt_u32 s{sIT}, 7"))
        V = self.gelu_items(0, 85, 371, True, vH)
        pk = dict(ahead=12, pack=self.o["pack"], lagmax=4.0) if "pack" in self.o else {}
        nV0 = len(V)
        tl.fill(85, 144, V, **pk)
        nV1 = nV0 - len(V)
        tl.fill(144, 288, V, **pk)
        state = {"V": [i.ins[0].text for i in V]}
        tl.fill(288, 373, V, flush=10 ** 9, **pk)
        for p in range(288, 373):
            tl.g[p - 288] = tl.g[p]
        pre = [(p, m) for p in range(262, 268) for m in tl.gap(p).mem if m.kind == "lds"]
        state["out"] = tl.insert_lgkm_waits(268, 288, pre)
        o144 = tl.insert_lgkm_waits(0, 144, [(p - 288, m) for p, m in state["out"]])
        tl.insert_lgkm_waits(144, 268, o144)
        prew = [m for m in tl.gap(268).mem if m.kind == "lds"]
        prew += [m for p in range(269, 288) for m in tl.gap(p).ins() if m.kind == "lds" or (m.kind == "wait" and m.lg is not None)]
        s = self.seg("p0pre")
        if self.wpf:
            for c in range(self.o.get("npf0", 1)):
                s.extend(self.pf2(256 + 128 * c))
            if self.o.get("qpf", 1) == 3:
                for i in range(self.npf):
                    s(f"s_lshr_b32 s{sT1}, s{sW}, 1\ns_mul_i32 s{sT1}, s{sT1}, 140\ns_add_u32 s{sT1}, s{sT1}, {i * self.pfstep * 1152}")
                    s(f"buffer_load_dword v{vT3}, v{vPOL}, {srd(sQ)}, s{sT1} offen", tag="pf")
        late = self.late
        s(f"""s_add_u32 s{pG}, s{sG}, {384 if late else 256}
        s_addc_u32 s{pG + 1}, s{sG + 1}, 0
        s_add_u32 s{pU}, s{sU}, 256
        s_addc_u32 s{pU + 1}, s{sU + 1}, 0
        s_mov_b32 s{sIT}, {self.o.get("dbgskip", 0) + (1 if late else 0)}
        s_mov_b32 s{sHI}, {0 if late else 112}
        s_mov_b32 s{sPOL}, {OOB}
        s_lshl_b32 s{sT3}, s{sR}, 2
        s_add_u32 s{sT3}, s{sT3}, 128
        s_mov_b32 s{sINN}, s{sINC}
        s_mov_b32 s{sNRN}, s{sDM + 2}
        v_mov_b32 v{vDN}, v{vDM}""")
        s("s_waitcnt vmcnt(63)", auto=["st0"])
        s("s_barrier", need=["st0"])
        if late:
            tp = Timeline()
            for st, (acc, h) in enumerate(((vG, 0), (vG, 1), (vU, 0))):
                self.std_mfmas(tp, 4 * st, 72 * st, acc, xb(h), h == 0)
                tp.put_reads(self.std_reads(4 * st, 72 * st, st, f"r{st}"))
                if st:
                    self.barrier(tp, 72 * st - DD, [f"st{st}"], f"r{st - 1}")
            self.first_dmas(tp, -DD + 2)
            self.dmas(tp, 4, vDM, [f"s_add_u32 s{sDM}, s{sG}, 256", f"s_addc_u32 s{sDM + 1}, s{sG + 1}, 0"], f"s{sINC}", "st0", p0=103, step=5)
            if self.o.get("p2g", 0):
                pf = self.pf2(256)
                tp.gap(self.o["p2g"]).shadow.append(pf[0])
                tp.gap(self.o["p2g"]).mem.append(pf[1])
            V0 = [Item("v", Ins(x), 0, deadline=81 + n - 9 - 2) for n, fin in self.deferred for x in fin]
            for c, it in enumerate(V0):
                it.target = 80.0 * c / len(V0)
            tp.fill(0, 85, V0, flush=10 ** 9)
            V1 = self.gelu_items(0, 85, 371, True, vH)[:nV1]
            tp.fill(85, 144, V1, flush=10 ** 9)
            tp.insert_lgkm_waits(-DD, 144, [])
            s.extend(tp.emit(-DD, 144))
            s(f"s_waitcnt lgkmcnt({min(15, len(o144))})")
            s(".p2align 3")
            a = self.seg("aloop2")
            a("L_amid:")
            a.extend(tl.emit(144, 288))
            if self.stamps and self.o.get("ist"):
                a(f"s_waitcnt lgkmcnt(0)\ns_memtime s[52:53]\ns_mul_i32 s54, s{sIT}, 2\ns_waitcnt lgkmcnt(0)\ns_mov_b32 m0, s54\ns_nop 3\nv_writelane_b32 v29, s52, m0")
            a("s_cbranch_scc0 L_aexit")
            a = self.seg("aloop")
            a("L_aloop:")
            a.extend(tl.emit(0, 144))
            a("s_branch L_amid")
        else:
            s.extend(prew)
            s(".p2align 3")
            a = self.seg("aloop")
            a("L_aloop:")
            a.extend(tl.emit(0, 144))
            a = self.seg("aloop2")
            a.extend(tl.emit(144, 288))
            a("s_cbranch_scc1 L_aloop")
        a2 = self.seg("aexit")
        a2(f"""L_aexit:
        s_cmp_eq_u32 s{sIT}, 7
        s_cbranch_scc0 L_bstart""")
        w = self.seg("aswitch")
        w(f"""v_readfirstlane_b32 s{sT0}, v{vPOL}
        s_mov_b32 s{sT1}, 0
        s_cmp_ge_u32 s{sT0}, 8
        s_cbranch_scc1 L_hready""")
        sp = self.seg("hspin")
        sp(f"""L_hspin:
        buffer_load_dword v{vPOL}, off, {srd(sDBG)}, s{sT3} sc1
        s_add_u32 s{sT1}, s{sT1}, 1
        s_waitcnt vmcnt(0)
        v_readfirstlane_b32 s{sT0}, v{vPOL}
        s_cmp_gt_u32 s{sT1}, 0x40000
        s_cbranch_scc1 L_end
        s_cmp_ge_u32 s{sT0}, 8
        s_cbranch_scc0 L_hspin""")
        w = self.seg("aswitch2")
        w(f"""L_hready:
        s_lshl_b32 s{sT0}, s{sR}, 3
        s_add_u32 s{sT0}, s{sT0}, s{sS}
        s_lshl_b32 s{sT1}, s{sT0}, 2
        s_add_u32 s{sT1}, s{sT1}, s{sW}
        s_lshl_b32 s{sT1}, s{sT1}, 12
        s_add_u32 s{sT1}, s{sT1}, {WS_HX}""")
        rest = f"""s_mov_b32 s{sINN}, {32 * 1152}
        s_mov_b32 s{sNRN}, {31 * 1152 + 128}
        s_lshl_b32 s{sC0}, s{sS}, 7
        s_add_u32 s{pG}, s{sD}, s{sC0}
        s_addc_u32 s{pG + 1}, s{sD + 1}, 0
        s_add_u32 s{sC0}, s{sC0}, 128
        s_and_b32 s{sC0}, s{sC0}, 1023
        s_add_u32 s{pU}, s{sD}, s{sC0}
        s_addc_u32 s{pU + 1}, s{sD + 1}, 0
        v_lshrrev_b32 v{vT0}, 3, v{vL}
        s_lshl_b32 s{sC1}, s{sW}, 3
        v_add_u32 v{vT0}, s{sC1}, v{vT0}
        v_mul_u32_u24 v{vT0}, 1152, v{vT0}
        v_add_u32 v{vDN}, v{vT0}, v{vTMP + 1}
        v_lshlrev_b32 v{vT0}, 9, v{vL}
        v_mov_b32 v{vT1}, {OOB}
        v_cmp_gt_u32 vcc, 8, v{vL}
        v_lshlrev_b32 v{vT2}, 3, v{vL}
        s_mul_i32 s{sT2}, s{sT0}, {9 * 16384}
        v_cndmask_b32 v{vT0}, v{vT1}, v{vT0}, vcc
        s_lshl_b32 s{sC1}, s{sW}, 12
        s_add_u32 s{sT2}, s{sT2}, s{sC1}
        s_add_u32 s{sT2}, s{sT2}, {WS_PART}
        s_mul_i32 s{sSTN}, s{sS}, {9 * 16384 - 512}
        s_sub_u32 s{sSTN}, s{sT2}, s{sSTN}
        s_lshl_b32 s{sT3}, s{sR}, 12
        s_lshl_b32 s{sC1}, s{sW}, 7
        s_add_u32 s{sT3}, s{sT3}, s{sC1}
        s_lshl_b32 s{sC1}, s{sS}, 2
        s_add_u32 s{sT3}, s{sT3}, s{sC1}
        s_add_u32 s{sT3}, s{sT3}, {WS_FLAG + 32}""".split("\n")
        for k in range(4):
            w(f"buffer_load_dwordx4 {ar(aH0 + 4 * k)}, v{vL16}, {srd(sWS)}, s{sT1} offen offset:{1024 * k} sc1", tag="h0")
            w("\n".join(rest[11 * k:11 * k + 11]))
        w("s_branch L_aloop")

        def hb(h):
            def f(u, i):
                k = 9 * h + i
                c, a_ = k // 2, k % 2
                if c == 0:
                    return ar(aH0 + 8 * a_ + 4 * u)
                return vr(vH + 16 * (c - 1) + 8 * a_ + 4 * u)
            return f

        def outv(base, tag):
            V = []
            for j in range(8):
                ct, u = j // 2, j % 2
                rel = base + 72 + 9 * j + 8 + 8
                dl = base + 144 + 9 * j - 1
                p = vU + 8 * (ct // 2) + 4 * u + 2 * (ct % 2)
                for e in range(2):
                    V.append(Item("v", Ins(f"v_cvt_pk_bf16_f32 v{p + e}, v{vG + 4 * j + 2 * e}, v{vG + 4 * j + 2 * e + 1}"), rel + e, rel, dl))
                st = lambda k, t: Item("m", Ins(f"buffer_store_dwordx4 {vr(vU + 4 * k)}, v{vL16}, {srd(sWS)}, s{sST} offen offset:{1024 * k} sc1", tag=tag), t + 1, t)
                if self.o.get("stg", 1):
                    if j >= 4:
                        V.append(st(j - 4, rel + (4 if j < 6 else 1)))
                elif ct % 2 == 1:
                    V.append(st(2 * (ct // 2) + u, rel + 1))
            return V

        tb = Timeline()
        fpos = self.o.get("fpos", 124)
        for st in range(8):
            h = st % 2
            self.std_mfmas(tb, 4 * st, 72 * st, vG, hb(h), h == 0)
            tb.put_reads(self.std_reads(4 * st, 72 * st, st % 4, f"r{st % 4}"))
            if st:
                self.barrier(tb, 72 * st - DD, [f"st{st % 4}"], f"r{(st - 1) % 4}")
        for st in range(3, 9):
            first = [f"s_mov_b32 s{sDM + 2}, s{sNRN}", f"s_add_u32 s{sDM}, s{sD}, s{sC0}", f"s_addc_u32 s{sDM + 1}, s{sD + 1}, 0"]
            self.dmas(tb, st, vDM, first if st % 2 == 0 else None, 32 * 1152, f"st{st % 4}")
        for step in range(3):
            base = 144 * step
            prev = f"part{(step - 1) % 2}"
            g = tb.gap(base + fpos)
            if g.bar:
                g.shadow[0].auto.append(prev)
            else:
                g.shadow.append(Ins("s_waitcnt vmcnt(63)", auto=[prev]))
            g.mem.append(Ins(f"buffer_store_dword v{vONE}, v{vFLG}, {srd(sWS)}, s{sFL} offen sc1", tag="flag", need=[f"old:{prev}/0"]))
            e = self.shadows(tb, base + 24, [f"s_add_u32 s{sT0}, s{sIT}, s{sS}", f"s_and_b32 s{sT1}, s{sT0}, 7",
                                             f"s_add_u32 s{sT0}, s{sT0}, 2", f"s_and_b32 s{sT0}, s{sT0}, 7",
                                             (f"s_cmp_lt_u32 s{sIT}, 6", f"s_cselect_b32 s{sT0}, s{sT0}, 8"),
                                             f"s_lshl_b32 s{sC0}, s{sT0}, 7",
                                             (f"s_cmp_lt_u32 s{sIT}, 7", f"s_cselect_b32 s{sNRN}, s{sNRN}, 0"),
                                             f"s_lshl_b32 s{sST}, s{sT1}, 14", f"s_add_u32 s{sST}, s{sST}, s{sT2}",
                                             f"s_mov_b32 s{sFL}, s{sFLN}", f"s_lshl_b32 s{sFLN}, s{sT1}, 9",
                                             f"s_add_u32 s{sFLN}, s{sFLN}, s{sT3}", f"s_add_u32 s{sIT}, s{sIT}, 1"])
            assert e < base + min(fpos, 76)
        tb.gap(287).shadow.append(Ins(f"s_cmp_eq_u32 s{sIT}, 8"))
        Vall = self.gelu_items(-288, 0, 1, False, vH + 112)
        nrem = sum(2 if t.startswith("v_cvt") else 1 for t in state["V"])
        V = Vall[len(Vall) - nrem:]
        assert V[0].ins[0].text == state["V"][0], (V[0].ins[0].text, state["V"][0])
        for c, i in enumerate(V):
            i.target = 82.0 * c / len(V)
            if i.ins[0].op.startswith("v_cvt"):
                u = ((int(i.ins[0].wr[0][1:]) - vH) // 4) % 2
                i.deadline = 72 + 7 + 9 * u - 2
        bstate = []
        o = [(p - 288, m) for p, m in state["out"]]
        for step in range(3):
            V += outv(144 * step, f"part{step % 2}")
            tb.fill(144 * step, 144 * step + 144, V)
            o = tb.insert_lgkm_waits(144 * step, 144 * step + 144, o)
            bstate.append(([i.ins[0].text for i in V], len(o)))
            if step == 1:
                nleft, o1 = len(V), list(o)
            for p in range(144 * step + 20, 144 * step + 90):
                assert not any(m.op.startswith("buffer_store_dwordx4") for m in tb.gap(p).mem)
        assert bstate[0][0] == bstate[2][0] and bstate[2][1] <= bstate[0][1], bstate
        te = Timeline()
        for st in (4, 5):
            self.std_mfmas(te, 4 * st, 72 * st, vG, hb(st % 2), st == 4)
            te.put_reads(self.std_reads(4 * st, 72 * st, st % 4, f"r{st % 4}"))
        self.barrier(te, 360 - DD, ["st1"], "r0")
        fpos = self.o.get("fposl", fpos)
        te.gap(288 + fpos).shadow.append(Ins("s_waitcnt vmcnt(63)", auto=["part1"]))
        te.gap(288 + fpos).mem.append(Ins(f"buffer_store_dword v{vONE}, v{vFLG}, {srd(sWS)}, s{sFLN} offen sc1", tag="flag", need=["part1"]))
        te.gap(300).shadow.append(Ins(f"s_add_u32 s{sT3}, s{sT3}, 32"))
        V = outv(144, "part1")[-nleft:]
        for j in range(8):
            ct, u = j // 2, j % 2
            rel = 360 + 9 * j + 8 + (4 if j < 4 else 8)
            te.gap(360 + 9 * j + 7).shadow.append(Ins(f"s_add_u32 s{sA + (j % 2)}, s{sSTN}, {((ct + 4 * u) * 9 + 8) * 16384}"))
            for e in range(2):
                V.append(Item("v", Ins(f"v_cvt_pk_bf16_f32 v{vGL + 2 * j + e}, v{vG + 4 * j + 2 * e}, v{vG + 4 * j + 2 * e + 1}"), rel, rel))
            V.append(Item("m", Ins(f"buffer_store_dwordx2 {vr(vGL + 2 * j, 2)}, v{vT2}, {srd(sWS)}, s{sA + (j % 2)} offen sc1", tag="part0"), rel + 1, rel + 1))
        te.fill(288, 432, V)
        te.insert_lgkm_waits(288, 432, o1)
        s = self.seg("b0")
        s(f"""L_bstart:
        s_mov_b32 s{sIT}, 0
        s_mov_b32 s{sFLN}, {OOB}""")
        self.stamp(s, 2)
        s.extend(tb.emit(0, 144))
        s(".p2align 3")
        bl = self.seg("bloop")
        bl("L_bloop:")
        bl.extend(tb.emit(144, 288))
        bl("s_cbranch_scc1 L_blast")
        bl = self.seg("bloop2")
        bl.extend(tb.emit(288, 432))
        bl("s_branch L_bloop\n.p2align 3")
        e = self.seg("bend")
        e("L_blast:")
        e.extend(te.emit(288, 432))
        e("s_nop 6")
        for it in V:
            e.extend(it.ins)
        self.stamp(e, 3)
        e("s_waitcnt vmcnt(0)")
        e(f"buffer_store_dword v{vONE}, v{vT0}, {srd(sWS)}, s{sT3} offen sc1", need=["part0", "part1"])
        if self.stamps and self.o.get("ist"):
            for k in range(1, 9):
                e(f"v_readlane_b32 s52, v29, {2 * k}\ns_nop 3\nv_writelane_b32 v0, s52, {2 * (19 + k)}")
        self.stamp(e, 4, True)
        self.stamp_flush(e)
        e("s_endpgm")

    def text(self):
        head = open("cdna_kernels/" + NAME + ".s.ref").read()
        lines = head.split("\n")
        top = [l for l in lines if l.startswith(";") and "@launch" not in l and "Override" not in l and "grid=ceil" not in l]
        out = "\n".join(top) + "\n; @launch grid=(256,1,1) block=(256,1,1) lds=163840\n"
        out += """; One launch, 256 workgroups (one per CU), two roles per (128-token block r, split s):
; Generated by my own scheduler scripts (MFMA gap scheduling, counted waits, hazard checks).
"""
        out += f""".amdgcn_target "amdgcn-amd-amdhsa--gfx950"
.text
.globl {NAME}_kernel
.p2align 8
.type {NAME}_kernel,@function
{NAME}_kernel:
"""
        for s in self.segs:
            out += f"; ---- {s.name}\n" + s.text()
        out += f"""L_end:
    s_endpgm
.section .rodata,"a"
.p2align 6
.amdhsa_kernel {NAME}_kernel
  .amdhsa_next_free_vgpr 512
  .amdhsa_next_free_sgpr 102
  .amdhsa_accum_offset 256
  .amdhsa_group_segment_fixed_size 0
  .amdhsa_kernarg_size 96
  .amdhsa_user_sgpr_count 2
  .amdhsa_user_sgpr_kernarg_segment_ptr 1
  .amdhsa_system_sgpr_workgroup_id_x 1
.end_amdhsa_kernel
"""
        return out

    def trace(self, names):
        d = {s.name: s for s in self.segs}
        t = []
        for n in names:
            if n in d:
                t += d[n].ins
            else:
                assert n in ("pfe", "entry2", "p0x", "wo1a"), n
        return t
```

```python
from gen import *

vQ1, vQ2 = 96, 112
vS_, vO_, vH1 = 32, 128, 192
aK1, aK2, aV_ = 216, 224, 232
aKV = 216
vKVA, vEX = 192, 32
(vEP, vKR, vINB, vQM, vQX, vRX, vDP, vKA, vK2A, vVA, vIDX, vWM, vWX, vWN, vWNX, vXN, vPD, vOE, vFO, vBA, vXNA, vOA, vRN, vOL,
 vAND, vOR, vZ) = range(209, 236)
vL8, vL16B = 246, 247
vSEL = 236
vXB, vXE = 248, 252
XRES, XRESN = 94208, 151552
sXL, sXN, sPB, sPG, sK2, sK1, sKS, sOM, sOF, sHA, sSK = 48, 49, 50, 51, 68, 69, 70, 71, 0, 1, 3
sRDY, sTODO, sLST, sOM0, sOM1, sRO, sOTH, sTO = 60, 61, 62, 63, 64, 65, 66, 67
vOP, vOQ = vQM, vQX
MSK = f"s[{sMASK}:{sMASK + 1}]"
MK2 = f"s[{sMK2}:{sMK2 + 1}]"


class Gen1(Gen):
    def spin(self, name, mask, lim="0x40000"):
        s = self.seg(name)
        s(f"""s_mov_b32 s{sT1}, 0
        L_{name}:
        buffer_load_dword v{vPOL}, v{vINB}, {srd(sWS)}, s{sFL} offen sc1
        s_add_u32 s{sT1}, s{sT1}, 1
        s_cmp_gt_u32 s{sT1}, {lim}
        s_cbranch_scc1 L_end
        s_waitcnt vmcnt(0)
        v_cmp_eq_u32 vcc, 0, v{vPOL}
        s_nop 1
        s_and_b64 vcc, vcc, {mask}
        s_cbranch_scc1 L_{name}""")

    def oolspin(self, name, mask):
        self.seg(name + "_a")(f"L_{name}_in:")
        self.spin(name, mask)
        self.seg(name + "_b")(f"s_branch L_{name}_out")

    def p1pre(self):
        s = self.seg("p1pre")
        A, B, Cc, Dd, T, G_, OB = 192, 193, 194, 195, 196, 197, 198
        a, b, c, d = sT0, sT1, sT3, sA
        s(f"""v_and_b32 v{T}, 15, v{vL}
        v_lshrrev_b32 v{G_}, 4, v{vL}
        v_mov_b32 v{OB}, {OOB}
        v_mov_b32 v{vZ}, 0
        v_mov_b32 v{vIDX}, 0xdddddddd""")
        s(f"""v_lshrrev_b32 v{A}, 1, v{vL}
        v_mul_u32_u24 v{B}, 36, v{A}
        v_and_b32 v{Dd}, 1, v{vL}
        v_lshl_add_u32 v{B}, v{Dd}, 4, v{B}
        s_and_b32 s{a}, s{sS}, 1
        s_lshl_b32 s{a}, s{a}, 5
        s_mul_i32 s{b}, s{sW}, 1152
        s_add_u32 s{a}, s{a}, s{b}
        v_add_u32 v{vKD}, s{a}, v{B}
        v_mul_u32_u24 v{A}, 1152, v{A}
        v_lshl_add_u32 v{A}, v{Dd}, 4, v{A}
        v_cndmask_b32 v{vXN}, v{A}, v{OB}, {MSK}
        v_bfe_u32 v{A}, v{vL}, 2, 2
        v_lshl_add_u32 v{A}, v{G_}, 3, v{A}
        v_and_b32 v{B}, 3, v{vL}
        v_lshlrev_b32 v{Cc}, 3, v{B}
        v_lshl_add_u32 v{Cc}, v{A}, 5, v{Cc}
        v_add_u32 v{vKR}, {(4 if self.late and self.o.get('kve', 1) else 3) * SLOT}, v{Cc}
        v_add_u32 v{Cc}, v{Cc}, v{Cc}
        v_add_u32 v{vRX}, {2 * SLOT}, v{Cc}
        v_lshrrev_b32 v{A}, 2, v{vL}
        v_lshlrev_b32 v{Cc}, 5, v{A}
        v_lshl_add_u32 v{Cc}, v{B}, 3, v{Cc}
        v_add_u32 v{vRN}, {2 * SLOT}, v{Cc}
        s_lshl_b32 s{a}, s{sW}, 4
        v_add_u32 v{A}, s{a}, v{A}
        v_mul_u32_u24 v{A}, 1152, v{A}
        v_mul_u32_u24 v{B}, 36, v{B}
        v_add3_u32 v{vQX}, v{A}, v{B}, 32
        v_mul_u32_u24 v{A}, 1152, v{vTMP + 3}
        v_mul_u32_u24 v{B}, 36, v{vTMP + 2}
        v_lshlrev_b32 v{Cc}, 4, v{Dd}
        v_add3_u32 v{vQM}, v{A}, v{B}, v{Cc}
        v_and_b32 v{A}, 7, v{vL}
        v_lshlrev_b32 v{vDP}, 2, v{A}
        v_lshlrev_b32 v{A}, 2, v{vL}
        v_cndmask_b32 v{vINB}, v{A}, v{OB}, {MSK}""")
        s(f"""s_bitcmp1_b32 s{sS}, 1
        s_cselect_b32 s{b}, 8, 9
        s_cselect_b32 s{sKS}, 1.0, {f32(CK)}
        s_and_b32 s{a}, s{sS}, 3
        s_cmp_eq_u32 s{a}, 3
        s_cselect_b32 s{b}, 6, s{b}
        v_lshrrev_b32 v{A}, 5, v{vL}
        v_lshlrev_b32 v{A}, s{b}, v{A}
        v_lshl_add_u32 v{A}, v{T}, 4, v{A}
        s_cmp_eq_u32 s{a}, 1
        s_cselect_b32 s{b}, 3, 1
        v_and_b32 v{B}, s{b}, v{G_}
        v_cmp_eq_u32 vcc, 0, v{B}
        s_cmp_eq_u32 s{a}, 3
        s_cselect_b32 s{b}, 4, 16
        s_cselect_b32 s{c}, 2, 16
        v_cndmask_b32 v{A}, v{OB}, v{A}, vcc
        v_cmp_gt_u32 vcc, s{b}, v{T}
        v_mov_b32 v{B}, 0x3f803f80
        s_lshr_b32 s{b}, s{sR}, 1
        v_cndmask_b32 v{vEP}, v{OB}, v{A}, vcc
        v_cmp_gt_u32 vcc, s{c}, v{T}
        s_lshl_b32 s{d}, s{b}, 2
        s_mul_i32 s{b}, s{b}, {KVST}
        v_cndmask_b32 v{vAND}, 0, -1, vcc
        v_cmp_eq_u32 vcc, s{c}, v{T}
        s_cmp_eq_u32 s{sW}, 0
        s_cselect_b32 s{sPOL}, s{d}, {OOB}
        v_cndmask_b32 v{vOR}, 0, v{B}, vcc
        s_lshl_b32 s{d}, s{sR}, 2
        s_add_u32 s{d}, s{d}, 128
        s_cmp_eq_u32 s{sW}, 0
        s_cselect_b32 s{sHA}, s{d}, {OOB}
        s_and_b32 s{c}, s{sR}, 1
        s_mul_i32 s{sK1}, s{c}, 640
        s_lshl_b32 s{c}, s{c}, 2
        s_add_u32 s{c}, s{c}, s{sW}
        s_lshr_b32 s{d}, s{sS}, 2
        s_lshl_b32 s{sK2}, s{c}, 1
        s_add_u32 s{sK2}, s{sK2}, s{d}
        s_mul_i32 s{sK2}, s{sK2}, 640
        s_add_u32 s{sK2}, s{sK2}, 8192
        s_lshl_b32 s{d}, s{d}, 8
        s_add_u32 s{sK1}, s{sK1}, s{d}
        s_lshl_b32 s{c}, s{c}, 10
        s_add_u32 s{c}, s{c}, s{d}
        s_bitcmp1_b32 s{sS}, 1
        s_cselect_b32 s{sK2}, s{sK2}, s{c}
        s_and_b32 s{c}, s{sS}, 1
        s_lshl_b32 s{c}, s{c}, 9
        s_add_u32 s{sK2}, s{sK2}, s{c}
        s_add_u32 s{sK2}, s{sK2}, s{b}
        s_lshl_b32 s{c}, s{sW}, 2
        s_add_u32 s{sK1}, s{sK1}, s{c}
        s_add_u32 s{sK1}, s{sK1}, s{b}
        s_add_u32 s{sK1}, s{sK1}, 18432
        s_cmp_eq_u32 s{a}, 1
        s_cselect_b32 s{sK1}, s{sK1}, {OOB}
        s_cselect_b32 s{sK2}, {OOB}, s{sK2}""")
        s(f"""s_lshl_b32 s{a}, s{sR}, 3
        s_add_u32 s{a}, s{a}, s{sS}
        s_lshl_b32 s{a}, s{a}, 2
        s_add_u32 s{a}, s{a}, s{sW}
        s_lshl_b32 s{sFL}, s{a}, 7
        s_add_u32 s{sFL}, s{sFL}, {WS_FLAG}
        s_lshl_b32 s{sST}, s{a}, 12
        s_add_u32 s{sST}, s{sST}, {WS_HX}
        s_mul_i32 s{a}, s{sS}, 508
        s_sub_u32 s{sOF}, s{sFL}, s{a}
        s_lshl_b32 s{a}, s{sR}, 2
        s_add_u32 s{a}, s{a}, s{sW}
        s_mul_i32 s{sOM}, s{a}, 36864
        s_add_u32 s{sOM}, s{sOM}, {WS_OM}
        s_mul_i32 s{sC1}, s{sW}, 5120
        s_lshl_b32 s{a}, s{sW}, 12
        s_add_u32 s{sXL}, s{a}, {XRES}
        s_mul_i32 s{sPB}, s{sR}, {8 * 9 * 16384}
        s_add_u32 s{sPB}, s{sPB}, s{a}
        s_add_u32 s{sPB}, s{sPB}, {WS_PART}
        s_lshr_b32 s{b}, s{sS}, 2
        s_mul_i32 s{a}, s{sS}, {9 * 16384}
        s_add_u32 s{a}, s{a}, {8 * 16384}
        s_add_u32 s{sFLN}, s{sPB}, s{a}
        s_lshl_b32 s{a}, s{sS}, 14
        s_add_u32 s{sPB}, s{sPB}, s{a}
        s_and_b32 s{c}, s{sS}, 3
        s_lshl_b32 s{c}, s{c}, 5
        s_add_u32 s{c}, s{c}, 1024
        s_lshl_b32 s{a}, s{sW}, 1
        s_add_u32 s{a}, s{a}, s{b}
        s_mul_i32 s{a}, s{a}, 18432
        s_add_u32 s{sXN}, s{a}, s{c}
        s_lshl_b32 s{sPFO}, s{sE2}, 2
        s_add_u32 s{sPFO}, s{sPFO}, s{sW}
        s_mul_i32 s{sPFO}, s{sPFO}, {81 * self.C * 128}
        s_mov_b32 s{sPG}, 640
        s_mov_b32 s{sSK}, 0""")
        s(f"buffer_store_dword v{vZ}, v{vINB}, {srd(sWS)}, s{sFL} offen sc1", tag="kvst")
        self.nd = 1 if self.C <= 2 else 2
        self.dl = -(-81 * self.C // (4 * self.nd))
        s(f"""v_min_u32 v{A}, {self.dl - 1}, v{vL}
        v_lshlrev_b32 v{vPD}, 7, v{A}
        v_add_u32 v{vKA}, {KVS0}, v{vL16}
        v_add_u32 v{A}, {KVS0 + 18432}, v{vL16}
        v_mov_b32 v{B}, {KVS0 + 8192 + 544}
        v_cndmask_b32 v{vK2A}, v{A}, v{B}, {MSK}
        v_and_b32 v{A}, 31, v{vL}
        v_cmp_eq_u32 vcc, 22, v{A}
        v_min_u32 v{B}, 19, v{A}
        v_lshrrev_b32 v{A}, 5, v{vL}
        v_cndmask_b32 v{B}, v{B}, 18, vcc
        v_lshlrev_b32 v{Cc}, 8, v{A}
        v_cmp_lt_u32 vcc, 15, v{B}
        v_lshlrev_b32 v{vVA}, 6, v{A}
        v_add_u32 v{vVA}, 256, v{vVA}
        v_cndmask_b32 v{Cc}, v{Cc}, v{vVA}, vcc
        v_lshl_add_u32 v{Cc}, v{B}, 4, v{Cc}
        v_add_u32 v{vVA}, {KVS0 + 8192}, v{Cc}""")
        s(f"""v_bfe_u32 v{B}, v{vL}, 3, 2
        v_mad_u32_u24 v{Cc}, v{A}, 18, v{B}
        s_lshl_b32 s{a}, s{sW}, 2
        v_add_u32 v{Cc}, s{a}, v{Cc}
        v_mul_u32_u24 v{Cc}, 1152, v{Cc}
        s_lshl_b32 s{d}, s{sS}, 7
        v_add3_u32 v{vWM}, v{Cc}, v{vTMP + 1}, s{d}
        v_lshrrev_b32 v{Cc}, 1, v{B}
        v_lshl_add_u32 v{B}, v{Cc}, 4, v{B}
        v_mul_u32_u24 v{Cc}, 72, v{A}
        s_and_b32 s{a}, s{sW}, 1
        s_mul_i32 s{a}, s{a}, 144
        s_lshr_b32 s{b}, s{sW}, 1
        s_mul_i32 s{b}, s{b}, 36
        s_add_u32 s{a}, s{a}, s{b}
        s_add_u32 s{a}, s{a}, 16
        v_add3_u32 v{Cc}, v{Cc}, v{B}, s{a}
        v_mul_u32_u24 v{Cc}, 1152, v{Cc}
        v_add3_u32 v{vWX}, v{Cc}, v{vTMP + 1}, s{d}""")
        s(f"""v_bfe_u32 v{B}, v{vL}, 1, 2
        v_bfe_u32 v{Cc}, v{vL}, 3, 1
        v_mad_u32_u24 v{Cc}, v{Cc}, 18, v{B}
        v_lshl_add_u32 v{Cc}, v{G_}, 2, v{Cc}
        s_mul_i32 s{a}, s{sW}, 36
        v_add_u32 v{Cc}, s{a}, v{Cc}
        v_mul_u32_u24 v{Cc}, 1152, v{Cc}
        v_lshl_add_u32 v{Cc}, v{Dd}, 4, v{Cc}
        v_add_u32 v{vWN}, s{c}, v{Cc}
        v_lshrrev_b32 v{Cc}, 1, v{B}
        v_lshl_add_u32 v{B}, v{Cc}, 4, v{B}
        v_bfe_u32 v{Cc}, v{vL}, 3, 2
        v_mul_u32_u24 v{Cc}, 72, v{Cc}
        v_add3_u32 v{B}, v{B}, v{Cc}, 16
        v_mad_u32_u24 v{B}, v{A}, 36, v{B}
        s_mul_i32 s{a}, s{sW}, 288
        v_add_u32 v{B}, s{a}, v{B}
        v_mul_u32_u24 v{B}, 1152, v{B}
        v_lshl_add_u32 v{B}, v{Dd}, 4, v{B}
        v_add_u32 v{vWNX}, s{c}, v{B}""")
        if self.o.get("cpf", 0) >= 2:
            s(f"""s_lshr_b32 s{a}, s2, 4
            s_lshl_b32 s{a}, s{a}, 2
            s_add_u32 s{a}, s{a}, s{sW}
            v_and_b32 v{A}, 7, v{vL}
            v_lshl_add_u32 v{A}, v{A}, 6, s{a}
            v_lshlrev_b32 v{A}, 7, v{A}
            v_min_u32 v{A}, L_end-L_pc, v{A}
            v_mov_b32 v{vXE + 1}, s101
            v_add_co_u32 v{vXE}, vcc, s100, v{A}
            s_nop 1
            v_addc_co_u32 v{vXE + 1}, vcc, 0, v{vXE + 1}, vcc""")
        s(f"""v_lshlrev_b32 v{A}, 2, v{G_}
        v_mul_u32_u24 v{B}, 18432, v{G_}
        v_lshl_add_u32 v{B}, v{T}, 4, v{B}
        v_cndmask_b32 v{vOE}, v{B}, v{OB}, {MSK}
        v_lshlrev_b32 v{vL8}, 3, v{vL}
        v_add_u32 v{vL16B}, 4096, v{vL16}
        v_mov_b32 v{vXB}, -1
        v_mov_b32 v{vXB + 1}, -1
        v_mov_b32 v{vXB + 2}, -1
        v_mov_b32 v{vXB + 3}, -1
        v_lshlrev_b32 v{B}, 9, v{vL}
        v_cmp_gt_u32 vcc, 8, v{vL}
        v_lshlrev_b32 v{Cc}, 3, v{G_}
        v_add_u32 v{vOL}, s{sXL}, v{vL16}
        v_cndmask_b32 v{vFO}, v{OB}, v{B}, vcc
        v_lshl_add_u32 v{B}, v{T}, 7, v{Cc}
        v_and_b32 v{Dd}, 7, v{vL}
        v_lshlrev_b32 v{Dd}, 4, v{Dd}
        v_xor_b32 v{B}, v{B}, v{Dd}
        v_add_u32 v{vBA}, s{sXL}, v{B}
        v_xor_b32 v{vTMP + 1}, 32, v{vBA}
        v_xor_b32 v{vTMP + 2}, 64, v{vBA}
        v_xor_b32 v{vTMP + 3}, 96, v{vBA}
        v_lshrrev_b32 v{Dd}, 3, v{vL}
        v_lshlrev_b32 v{Dd}, 4, v{Dd}
        v_xor_b32 v{vTMP}, v{vTMP}, v{Dd}
        v_lshl_add_u32 v{B}, v{T}, 5, v{Cc}
        s_add_u32 s{a}, s{sM0W}, {XRESN}
        v_add_u32 v{vXNA}, s{a}, v{B}
        v_mul_u32_u24 v{B}, 1152, v{T}
        v_add_u32 v{vOA}, v{B}, v{Cc}
        v_sub_u32 v{A}, v{T}, v{A}
        v_and_b32 v{B}, 1, v{A}
        v_lshlrev_b32 v{B}, 4, v{B}
        v_mov_b32 v{Cc}, 0x3f80
        v_lshlrev_b32 v{Cc}, v{B}, v{Cc}
        v_lshrrev_b32 v{A}, 1, v{A}
        v_cmp_eq_u32 vcc, 0, v{A}
        v_mov_b32 v{vSEL}, 0
        v_mov_b32 v{vSEL + 1}, 0
        v_cndmask_b32 v{vSEL + 2}, 0, v{Cc}, vcc
        v_cndmask_b32 v{vSEL + 6}, 0, v{Cc}, vcc
        v_cndmask_b32 v{vSEL + 8}, 0, v{Cc}, vcc
        v_cmp_eq_u32 vcc, 1, v{A}
        v_mov_b32 v{vSEL + 4}, 0
        v_mov_b32 v{vSEL + 5}, 0
        v_cndmask_b32 v{vSEL + 3}, 0, v{Cc}, vcc
        v_cndmask_b32 v{vSEL + 7}, 0, v{Cc}, vcc
        v_cndmask_b32 v{vSEL + 9}, 0, v{Cc}, vcc""")

    def p1(self):
        tl = Timeline()
        xb = lambda h: (lambda u, i: xn(u, 9 * h + i))
        for st, (acc, h) in enumerate(((vG, 0), (vG, 1), (vU, 0), (vU, 1), (vG, 0), (vG, 1))):
            self.std_mfmas(tl, 4 * st, 72 * st, acc, xb(h), h == 0)
            tl.put_reads(self.std_reads(4 * st, 72 * st, st % 4, f"r{st}"))
        R = []
        for h in range(2):
            for u in range(2):
                for i in range(9):
                    c = vr(vEX + 4 * u)
                    tl.m[432 + 18 * h + 9 * u + i] = Ins(f"v_mfma_f32_16x16x32_bf16 {c}, {ar(frag(24 + h, i))}, {xn(u, 9 * h + i)}, {'0' if h == 0 and i == 0 else c}")
            for i in range(9):
                for hh in range(2):
                    ins = Ins(f"ds_read_b64_tr_b16 {ar(frag(24 + h, i) + 2 * hh, 2)}, v{vRX} offset:{2048 * (9 * h + i) + 256 * hh}", tag="r6")
                    g0 = 432 + 18 * h
                    R.append(Item("r", ins, 432 - DD + len(R), earliest=g0 - 27 + i, deadline=g0 + i - LAT - 1))
        tl.put_reads(R)
        arr = self.o.get("kvarr", 2)
        for st in range(1, 7):
            self.barrier(tl, 72 * st - DD, [("st1", "st2", "st3", "q0", "q1", "q2")[st - 1]] + (["kvst"] if st == arr else []), f"r{st - 1}")
        tl.gap(1).bar.append(Ins("s_barrier", need=["lds:kvfr"]))
        tl.gap(72 * arr - DD).mem.append(Ins(f"buffer_atomic_add v{vONE}, v{vFLG}, {srd(sDBG)}, s{sPOL} offen sc1", tag="arr"))
        q0f = [f"s_mov_b32 s{sDM + 2}, {31 * 1152 + 140}", f"s_mov_b32 s{sDM}, s{sQ}", f"s_mov_b32 s{sDM + 1}, s{sQ + 1}"]
        if self.late:
            ls = self.o.get("lstep", 4)
            if self.kve:
                tl.gap(1).mem.append(Ins(f"buffer_load_dwordx4 v{vDM}, {srd(sG)}, s{sA} offen lds", tag="st1"))
            self.dmas(tl, 2, vDM, [f"s_add_u32 s{sDM}, s{sU}, s{sC0}", f"s_addc_u32 s{sDM + 1}, s{sU + 1}, 0"], f"s{sINC}", "st2", p0=5, step=ls)
            self.dmas(tl, 3, vDM, None, f"s{sINC}", "st3", p0=5 + 9 * ls, step=ls)
            if ls == 4:
                self.dmas(tl, 4, vQM, q0f, 32 * 1152, "q0")
            else:
                self.dmas(tl, 4, vQM, q0f, 32 * 1152, "q0", p0=103, step=5)
        else:
            self.dmas(tl, 3, vDM, None, f"s{sINC}", "st3")
            self.dmas(tl, 4, vQM, q0f, 32 * 1152, "q0")
        self.dmas(tl, 5, vQM, None, 32 * 1152, "q1")
        self.dmas(tl, 6, vQX, [f"s_mov_b32 s{sA}, 0"], 64 * 1152, "q2", srdn=sQ)
        if self.wpf and self.o.get("qpf", 1) >= 4:
            assert self.npf == 1
            tl.gap(self.o["qpf"] - 2).mem.append(Ins(f"buffer_load_dword v{vT3}, v{vPOL}, {srd(sQ)}, s{sT1} offen", tag="pf"))
        tl.gap(self.kvpoll).mem.append(Ins(f"buffer_load_dword v{vPOL}, v{vDP}, {srd(sDBG)}, 0 offen sc1", tag="poll"))
        c = self.kvchk
        assert c >= 341
        tl.gap(c).shadow.append(Ins("s_waitcnt vmcnt(63)", auto=["poll"]))
        tl.gap(c).valu += [Ins(f"v_cmp_gt_u32 vcc, 16, v{vPOL}")]
        tl.gap(c + 2).shadow += [Ins("s_cbranch_vccnz L_kvspin"), Ins("L_kvok:")]
        for sg in range(2):
            for i in range(5):
                p = c + 4 + 4 * (5 * sg + i)
                if i in (0, 4):
                    tl.gap(p - 1).shadow.append(Ins(f"s_add_u32 m0, s{sC1}, {KVS0 + KVST * sg + 1024 * i}"))
                    tl.gap(p).shadow.append(Ins(f"s_add_u32 s{sA}, s{sC1}, {KVST * sg + 1024 * i}"))
                tl.gap(p).mem.append(Ins(f"buffer_load_dwordx4 v{vL16}, {srd(sWS)}, s{sA} offen offset:{1024 * (i % 4)} sc1 lds", tag=f"kv{sg}"))
        for opt, col in (("p2p", 256), ("p3", 384), ("p4", 512)):
            p = self.o.get(opt, 1)
            if self.wpf and p > 2:
                pf = self.pf2(col)
                for k in range(0, len(pf), 2):
                    tl.gap(p + 2 * k).shadow.append(pf[k])
                    tl.gap(p + 2 * k).mem.append(pf[k + 1])
        self.shadows(tl, 420, [f"s_mov_b32 s{sIT}, 0", f"s_add_u32 s{sINC}, s{sC1}, {KVST}",
                               (f"s_add_u32 s{sDM}, s{sWS}, s{sINC}", f"s_addc_u32 s{sDM + 1}, s{sWS + 1}, 0"), f"s_mov_b32 s{sDM + 2}, 5120", f"s_and_b32 s{sRO}, s{sS}, {1 if self.o.get('rot', 0) else 0}", f"s_mul_i32 s{sHI}, s{sRO}, {9 * 4096}", f"s_mul_i32 s{sRO}, s{sRO}, 9216",
                               f"s_add_u32 s{sOM0}, s{sOM}, s{sRO}", f"s_sub_u32 s{sOM1}, s{sOM}, s{sRO}",
                               f"s_mov_b32 s{sC0}, 0", f"s_mov_b32 s{sSTN}, 0", f"s_mov_b32 s{sTODO}, 0xff", f"s_mov_b32 s{sOTH}, 0xff", f"s_bitset0_b32 s{sOTH}, s{sS}"] +
                     ([f"s_mov_b32 s{sTO}, 0xff", f"s_and_b32 s{sT2}, s{sS}, 1", f"s_mul_i32 s{sT2}, s{sT2}, 18432", f"s_add_u32 s{sOM1}, s{sOM}, 8192"] if self.o.get("opf", 0) else []))
        V = []
        t = 2
        for x in ([f"v_mul_f32 v{vKVA + e}, s{sKS}, v{vKVA + e}" for e in range(4)] +
                  [f"v_cvt_pk_bf16_f32 v{vKVA + e}, v{vKVA + 2 * e}, v{vKVA + 2 * e + 1}" for e in range(2)] +
                  [f"v_and_or_b32 v{vKVA + 2 + e}, v{vKVA + e}, v{vAND}, v{vOR}" for e in range(2)] +
                  [f"v_and_or_b32 v{vKVA + e}, v{vKVA + e}, v{vAND}, v{vOR}" for e in range(2)]):
            V.append(Item("v", Ins(x), t, 2))
            t += 0.5
        for e in range(2):
            V.append(Item("v", Ins(f"v_permlane16_swap_b32 v{vKVA + e}, v{vKVA + 2 + e}"), 11 + e, 11 + e))
        t = 13
        for x in (f"buffer_store_dwordx4 {vr(vKVA)}, v{vEP}, {srd(sWS)}, s{sK2} offen sc1", f"buffer_store_dword v{vKVA}, v{vEP}, {srd(sWS)}, s{sK1} offen sc1"):
            V.append(Item("m", Ins(x, tag="kvst"), t))
            t += 1
        if not self.o.get("ozm", 0):
            for r in range(64):
                V.append(Item("v", Ins(f"v_mov_b32 v{vO_ + r}, 0"), 16 + r * 68 / 64.0))
        V += self.gelu_items(0, 85, 400, False, vH1)
        z = [vQ2 + 4 * q + j for q in range(4) for j in (1, 2)] + [vQ2 + 4, vQ2 + 12]
        for j in range(8):
            ct, u = j // 2, j % 2
            rel = 360 + 9 * j + 8 + 8
            q = vQ1 + 4 * (2 * u + ct // 2)
            for e in range(2):
                V.append(Item("v", Ins(f"v_cvt_pk_bf16_f32 v{q + 2 * (ct % 2) + e}, v{vG + 4 * j + 2 * e}, v{vG + 4 * j + 2 * e + 1}"), max(rel, 408 + 2 * j) + e, rel))
            if j in (5, 6):
                for r in z[5 * (j - 5):5 * (j - 4)]:
                    V.append(Item("v", Ins(f"v_mov_b32 v{r}, 0"), rel + 2))
        for r in range(8):
            V.append(Item("v", Ins(f"v_accvgpr_write_b32 a{aV_ + 8 + r}, 0"), 441 + r))
        if self.o.get("opf", 0):
            assert not self.o.get("rot", 0)
            for x in (f"v_lshrrev_b32 v{vOQ}, 4, v{vL}", f"v_lshl_add_u32 v{vOP}, v{vL}, 7, s{sT2}"):
                V.append(Item("v", Ins(x), 449, 449))
        for q in range(4):
            for e in range(2):
                V.append(Item("v", Ins(f"v_permlane16_swap_b32 v{vQ1 + 4 * q + e}, v{vQ1 + 4 * q + 2 + e}"), 449 + q, 446))
        if self.stamps and self.o.get("gst"):
            self.gst = [(p, r) for p, r in zip(eval(self.o["gst"].replace(":", ",")), (62, 100, 12, 52, 54, 14))]
            for p, r in self.gst:
                tl.gap(p).shadow.append(Ins(f"s_memtime s[{r}:{r + 1}]"))
        tl.fill(0, 468, V, flush=10 ** 9)
        pre = [i for i in tl.emit(-DD, 0) if i.kind == "lds"]
        tl.insert_lgkm_waits(0, 468, [(-10 + k // 2, i) for k, i in enumerate(pre)][8:])
        s = self.seg("p1a")
        s("L_p1:")
        if self.wpf and self.o.get("qpf", 1) == 1:
            for i in range(self.npf):
                s(f"""s_lshr_b32 s{sT1}, s{sW}, 1
                s_mul_i32 s{sT1}, s{sT1}, 140
                s_add_u32 s{sT1}, s{sT1}, {i * self.pfstep * 1152}""")
                s(f"buffer_load_dword v{vT3}, v{vPOL}, {srd(sQ)}, s{sT1} offen", tag="pf")
        if self.wpf and self.o.get("qpf", 1) >= 4:
            s(f"s_lshr_b32 s{sT1}, s{sW}, 1\ns_mul_i32 s{sT1}, s{sT1}, 140")
        kf = lambda kk: aKV + 4 * kk if kk < 9 else frag(1, kk - 9)
        kve = self.kve
        if kve:
            s(f"v_subrev_u32 v{vT0}, {3 * SLOT - 16384}, v{vKR}")
        kr = lambda kk: [Ins(f"ds_read_b64_tr_b16 {ar(kf(kk) + 2 * h, 2)}, v{vT0 if kve and kk >= 16 else vKR} offset:{1024 * kk + 128 * h}", tag="kvfr") for h in range(2)]
        s("s_waitcnt vmcnt(63)", auto=["kvimg", "st0"])
        s("s_barrier", need=["kvimg", "st0"])
        for kk in range(9):
            s.extend(kr(kk))
        for n, fin in self.deferred:
            s("\n".join(fin))
        s(f"""s_bitcmp1_b32 s{sS}, 2
        s_cbranch_scc1 L_kvu1
        s_bitcmp1_b32 s{sS}, 1
        s_cbranch_scc1 L_kv01""")
        for u in range(2):
            for o in range(2):
                k = self.seg(f"kv{u}{o}")
                if u == 1 and o == 0:
                    k(f"L_kvu1:\ns_bitcmp1_b32 s{sS}, 1\ns_cbranch_scc1 L_kv11")
                elif o == 1:
                    k(f"L_kv{u}{o}:")
                k("s_waitcnt lgkmcnt(12)")
                for kk in range(18):
                    a, b = ar(kf(kk)), xn(u, kk)
                    if o:
                        a, b = b, a
                    k(f"v_mfma_f32_16x16x32_bf16 {vr(vKVA)}, {a}, {b}, {'0' if kk == 0 else vr(vKVA)}")
                    if kk % 3 == 2 and kk < 17:
                        k("s_waitcnt lgkmcnt(10)")
                    if self.late and kk % 2 == 0:
                        k(f"s_add_u32 m0, s{sM0W}, {SLOT + 4096 * (kk // 2)}")
                    if self.late and kk % 2 == 1:
                        k(f"s_add_u32 s{sA}, s{sA}, s{sINC}")
                    if kk < 9:
                        k.extend(kr(kk + 9))
                    else:
                        k.extend(pre[2 * (kk - 9):2 * (kk - 9) + 2])
                    if self.late and kk % 2 == 1 and not (kve and kk == 17):
                        k(f"buffer_load_dwordx4 v{vDM}, {srd(sG)}, s{sA} offen lds", tag="st1")
                k.extend(pre[18:])
                if not (u == 1 and o == 1):
                    k("s_branch L_kvdone")
        g = self.seg("p1gemm")
        g("L_kvdone:")
        self.stamp(g, 2)
        g("s_waitcnt lgkmcnt(12)")
        g.extend(tl.emit(0, 468))
        self.att()
        k = self.seg("kvspin")
        k(f"""L_kvspin:
        s_mov_b32 s{sT1}, 0
        L_kvspin2:
        buffer_load_dword v{vPOL}, v{vDP}, {srd(sDBG)}, 0 offen sc1
        s_add_u32 s{sT1}, s{sT1}, 1
        s_cmp_gt_u32 s{sT1}, 0x40000
        s_cbranch_scc1 L_end
        s_waitcnt vmcnt(0)
        v_cmp_gt_u32 vcc, 16, v{vPOL}
        s_nop 1
        s_cbranch_vccnz L_kvspin2
        s_branch L_kvok""")
        self.fallback()

    def qk(self, sb, q, kt):
        k1 = aK1 + 4 * (kt % 2)
        k2 = aK2 + 4 * ((kt // 4) % 2) + 2 * ((kt % 4) // 2)
        q2 = vQ2 + 4 * q + 2 * (kt % 2)
        S = vr(vS_ + 16 * sb, 16)
        return (Ins(f"v_mfma_f32_32x32x16_bf16 {S}, {ar(k1)}, {vr(vQ1 + 4 * q)}, 0"),
                Ins(f"v_mfma_f32_32x32x8bf16_1k {S}, {ar(k2, 2)}, {vr(q2, 2)}, {S}"))

    def pv(self, sb, q, kt):
        O = vr(vO_ + 16 * q, 16)
        v = aV_ + 8 * (kt % 2)
        return tuple(Ins(f"v_smfmac_f32_32x32x32_bf16 {O}, {ar(v + 4 * f)}, {vr(vS_ + 16 * sb + 8 * f, 8)}, v{vIDX}") for f in range(2))

    def kvreads(self, kt):
        sl, i = (kt // 8) % 2, kt % 8
        o = KVST * sl
        k1 = Ins(f"ds_read_b128 {ar(aK1 + 4 * (kt % 2))}, v{vKA} offset:{o + 1024 * i}", tag="kvr")
        k2 = Ins(f"ds_read_b128 {ar(aK2 + 4 * ((kt // 4) % 2))}, v{vK2A} offset:{o + 640 * (i // 4)}", tag="kvr") if kt % 4 == 0 else None
        vv = [Ins(f"ds_read_b128 {ar(aV_ + 8 * (kt % 2) + 4 * f)}, v{vVA} offset:{o + 640 * (2 * i + f)}", tag="kvr") for f in range(2)]
        return k1, k2, vv

    def preg(self, i):
        if i < self.ne:
            return lambda k: ar((40, 56, 112, 128, 200, 184, 168)[i] + 4 * k)
        return lambda k: vr(vO_ + 16 * ((i - self.ne) % 5) + 4 * k)

    def areg(self, i):
        k = i - self.ne - self.n2
        return (sK2, sK1, sKS, sHI, sSTN)[k] if k >= 0 else sA

    def pacc_opt(self, name, i0, n):
        names = []
        for i in range(i0, i0 + n):
            s = self.segs[-1]
            s(f"s_cmp_eq_u32 s{self.areg(i)}, {OOB}\ns_cbranch_scc1 L_{name}")
            names.append(f"{name}{i}")
            s = self.seg(names[-1])
            s("s_waitcnt vmcnt(63)", auto=[f"pl{i}"])
            s.extend(self.pacc(i, 1))
        s = self.seg(name)
        s(f"L_{name}:")
        return names

    def opf(self):
        if not self.o.get("opf", 0):
            return []
        out = [Ins(f"s_nand_b32 s{sT2}, vcc_lo, s{sTO}"), Ins(f"s_andn2_b32 s{sTO}, s{sTO}, vcc_lo")]
        for j in range(2):
            out += [Ins(f"v_bfe_u32 v{vT0 + j}, s{sT2}, v{vOQ}, 1"), Ins(f"v_lshl_add_u32 v{vT0 + j}, v{vT0 + j}, 30, v{vOP}")]
            out += [Ins(f"s_lshr_b32 s{sT2}, s{sT2}, 4")] if j == 0 else []
            out += [Ins(f"buffer_load_dword v{vT3}, v{vT0 + j}, {srd(sWS)}, s{sOM1 if j else sOM} offen sc1", tag="pf")]
        return out

    def poll(self):
        return Ins(f"buffer_load_dword v{vPOL}, v{vINB}, {srd(sWS)}, s{sFL} offen sc1", tag="poll")

    def ready(self):
        return [Ins(f"v_cmp_ne_u32 vcc, 0, v{vPOL}"), Ins("s_nop 0"), Ins(f"s_lshr_b32 s{sRDY}, vcc_lo, 8"), Ins(f"s_and_b32 s{sRDY}, s{sRDY}, s{sTODO}")]

    def pload(self, i0, n):
        out = []
        for i in range(i0, i0 + n):
            out += [Ins(f"s_ff1_i32_b32 s{sT1}, s{sRDY}"), Ins(f"s_bitset0_b32 s{sRDY}, s{sT1}"), Ins(f"s_bitset0_b32 s{sTODO}, s{sT1}"),
                    Ins(f"s_mul_i32 s{sT0}, s{sT1}, {9 * 16384}"), Ins(f"s_add_u32 s{sT0}, s{sT0}, s{sPB}"),
                    Ins(f"s_cmp_lt_i32 s{sT1}, 0"), Ins(f"s_cselect_b32 s{self.areg(i)}, {OOB}, s{sT0}")]
            out += [Ins(f"buffer_load_dwordx4 {self.preg(i)(k)}, v{vL16}, {srd(sWS)}, s{self.areg(i)} offen offset:{1024 * k} sc1", tag=f"pl{i}") for k in range(4)]
        return out

    @staticmethod
    def weave(ld):
        slots = [ld[k:k + 11] for k in range(0, len(ld), 11)]
        out = list(slots[0][:7])
        for k, sl in enumerate(slots):
            nx = slots[k + 1][:7] if k + 1 < len(slots) else []
            for j in range(4):
                out.append(sl[7 + j])
                out += nx[2 * j:2 * j + 2] if j < 3 else nx[6:]
        return out

    def pacc(self, i0, n):
        out = []
        for j in range(8):
            ct, u = j // 2, j % 2
            c = vr(vG + 4 * j)
            for i in range(i0, i0 + n):
                out.append(Ins(f"v_mfma_f32_16x16x32_bf16 {c}, {vr(vSEL + (0 if ct % 2 else 2))}, {self.preg(i)(2 * (ct // 2) + u)}, {'0' if i == 0 else c}"))
        return out

    def att_stage(self, a, kt0, last):
        stream = {}
        if last:
            slots = [(tau, m) for tau in range(32, 64) for m in (0, 2, 3)]

            def lay(k, ins):
                lastmem = -9
                for i in ins:
                    while True:
                        cur = stream.setdefault(slots[k], [])
                        if i.kind in ("salu", "wait", "label"):
                            if not cur or i.kind == "label":
                                break
                        elif i.kind == "valu":
                            if not any(x.kind == "vmem" for x in cur) or True:
                                break
                        elif k - lastmem >= 2 and not any(x.kind != "salu" for x in cur) and not ("m0" in i.rd and any("m0" in x.wr for x in cur)):
                            lastmem = k
                            break
                        k += 1
                    cur.append(i)
                return k + 1

            seq = []
            for i in range(2):
                seq += [Ins(f"s_add_u32 m0, s{sHI}, s{sM0W}"), Ins(f"s_add_u32 s{sHI}, s{sHI}, 4096"), Ins(f"buffer_load_dwordx4 v{vWM}, {srd(sWO)}, s{sC0} offen lds", tag="wo"),
                        Ins(f"s_add_u32 s{sC0}, s{sC0}, {36 * 1152}")]
            for i in range(2):
                seq += [Ins(f"s_add_u32 m0, s{sHI}, s{sM0W}"), Ins(f"s_add_u32 s{sHI}, s{sHI}, 4096"), Ins(f"s_mov_b32 s{sT0}, {288 * 1152 * i}"),
                        Ins(f"buffer_load_dwordx4 v{vWX}, {srd(sWO)}, s{sT0} offen lds", tag="wo")]
            seq += [Ins(f"s_cmp_lt_u32 s{sW}, 2"), Ins(f"s_cselect_b32 s{sT0}, s{sRO}, 0"), Ins(f"s_sub_u32 s{sT0}, s{sM0W}, s{sT0}"),
                    Ins(f"s_add_u32 m0, s{sT0}, {2 * SLOT + 16384}"), Ins(f"s_lshl_b32 s{sC0}, s{sS}, 7"),
                    Ins(f"buffer_load_dwordx4 v{vWNX}, {srd(sWO)}, 0 offen lds", tag="wo")]
            for i in range(4):
                seq += [Ins(f"s_add_u32 m0, s{sXL}, {1024 * i}"), Ins(f"s_add_u32 s{sT0}, s{sC0}, {9216 * i}"),
                        Ins(f"buffer_load_dwordx4 v{vTMP}, {srd(sX)}, s{sT0} offen lds", tag="xr")]
            seq += [Ins(f"s_add_u32 m0, s{sM0W}, {XRESN}"), Ins(f"buffer_load_dwordx4 v{vXN}, {srd(sX)}, s{sXN} offen lds", tag="xr")]
            k = lay(0, [self.poll()] + seq)
            e1 = self.o.get("ne1", 3)
            rd = lambda: [Ins("s_waitcnt vmcnt(63)", auto=["poll"])] + [i for i in self.ready() if i.op != "s_nop"]
            k = lay(k, rd() + self.weave(self.pload(0, e1)))
            if self.ne > e1:
                k1 = 96 - 13 - 8 * (self.ne - e1) - self.o.get('eoff', 0) - (5 if self.o.get('opf', 0) else 0)
                k1 = max(k1, k)
                lay(k1 - 21, [self.poll()])
                k = lay(k1, rd() + self.opf() + self.weave(self.pload(e1, self.ne - e1)))
            assert k <= 96, k
        for tau in range(4 * kt0, 4 * kt0 + 32):
            kt, q = tau // 4, tau % 4
            ms = list(self.qk((tau + 1) % 4, (tau + 1) % 4, (tau + 1) // 4)) + list(self.pv((tau - 1) % 4, (tau - 1) % 4, ((tau - 1) // 4) % 16))
            ex = [[], [], [], []]
            k1, k2, vv = self.kvreads((kt + 1) % 16)
            newstage = (kt + 1) % 8 == 0
            sg = (kt + 1) // 8 % 2
            dma = lambda so, off: Ins(f"buffer_load_dwordx4 v{vL16}, {srd(sDM)}, 0 offen offset:{off} sc1 lds", tag=f"kv{1 - sg}")
            if last and newstage:
                if q == 0:
                    ex[0] += [Ins("s_waitcnt vmcnt(63)", auto=["wo", "xr"]), Ins("s_barrier", need=["wo"])]
                if q == 3:
                    ms[0] = ms[1] = None
            else:
                if q == 0:
                    if newstage:
                        tg = [f"kv{sg}"] + (["hst"] if sg == 1 else [])
                        ex[0] += [Ins("s_waitcnt vmcnt(63)", auto=tg), Ins("s_barrier", need=tg + ["lds:kvr"])]
                        if sg == 1:
                            ex[0] += [Ins(f"buffer_atomic_add v{vONE}, v{vFLG}, {srd(sDBG)}, s{sHA} offen sc1", tag="arr")]
                    ex[0].append(k1)
                    if k2:
                        ex[2].append(k2)
                    if newstage:
                        ex[2].insert(0, Ins(f"s_add_u32 m0, s{sC1}, {KVS0 + KVST * (1 - sg)}"))
                        ex[3] += [Ins(f"s_mov_b32 s{sHA}, {OOB}")] if sg == 1 else []
                        ex[3].append(dma(sINC, 0))
                if q == 1:
                    ex[0].append(vv[0])
                    ex[2].append(vv[1])
                    if newstage:
                        ex[3].append(dma(sINC, 1024))
                if q == 2:
                    if newstage:
                        ex[0].append(dma(sINC, 2048))
                        ex[2].append(dma(sINC, 3072))
                    ex[3].append(Ins("s_waitcnt lgkmcnt(0)"))
                if q == 3 and newstage:
                    ex[0].append(Ins(f"s_add_u32 m0, s{sC1}, {KVS0 + KVST * (1 - sg) + 4096}"))
                    ex[2].append(Ins(f"buffer_load_dwordx4 v{vL16B}, {srd(sDM)}, 0 offen sc1 lds", tag=f"kv{1 - sg}"))
                    if sg == 1:
                        ex[3].append(Ins(f"s_cmp_eq_u32 s{sIT}, 4"))
                if kt % 8 == 5 and q == 2 and not last:
                    ex[0].append(Ins(f"s_add_u32 s{sDM}, s{sDM}, {KVST}"))
                    ex[2].append(Ins(f"s_addc_u32 s{sDM + 1}, s{sDM + 1}, 0"))
            if not last:
                if kt % 8 == 1 and q == 2:
                    ex[0].append(Ins(f"s_cmp_eq_u32 s{sHI}, {18 * 4096}"))
                    ex[2].append(Ins(f"s_cselect_b32 s{sHI}, 0, s{sHI}"))
                if kt % 8 in (0, 1) and q == 3:
                    ex[0].append(Ins(f"s_add_u32 m0, s{sHI}, s{sM0W}"))
                    ex[2] += [Ins(f"s_add_u32 s{sHI}, s{sHI}, 4096"), Ins(f"buffer_load_dwordx4 v{vWM}, {srd(sWO)}, s{sC0} offen lds", tag="wo")]
                    ex[3].append(Ins(f"s_add_u32 s{sC0}, s{sC0}, {36 * 1152}"))
                if kt == 2 and q == 0:
                    ex[2].append(Ins(f"s_lshl_b32 s{sT0}, s{sIT}, 12"))
                    ex[3].append(Ins(f"s_add_u32 s{sT0}, s{sT0}, s{sM0W}"))
                if kt == 2 and q == 1:
                    ex[0].insert(0, Ins(f"s_add_u32 s{sT0}, s{sT0}, s{sRO}"))
                    ex[2].insert(0, Ins(f"s_cmp_ge_u32 s{sT0}, 18432"))
                    ex[3].append(Ins(f"s_cselect_b32 s{sT1}, 18432, 0"))
                if kt == 2 and q == 2:
                    ex[0].append(Ins(f"s_sub_u32 s{sT0}, s{sT0}, s{sT1}"))
                if kt == 2 and q == 3:
                    ex[0].append(Ins(f"s_add_u32 m0, s{sT0}, {2 * SLOT}"))
                    ex[2] += [Ins(f"s_add_u32 s{sIT}, s{sIT}, 1"), Ins(f"buffer_load_dwordx4 v{vWN}, {srd(sWO)}, s{sSTN} offen lds", tag="wo")]
                    ex[3].append(Ins(f"s_add_u32 s{sSTN}, s{sSTN}, {4 * 36 * 1152}"))
                if self.o.get("cpf", 0) >= 2 and kt == 5 and q == 3:
                    ex[0].append(Ins(f"global_load_dword v{vT3}, {vr(vXE, 2)}, off", tag="pf"))
                if self.wpf and kt % 8 == 3 and q == 2:
                    ex[0].append(Ins(f"s_cmp_lt_u32 s{sIT}, 3"))
                    ex[2].append(Ins(f"s_cselect_b32 s{sT0}, 0, {OOB}"))
                if self.wpf and (kt % 8 == 3 or (kt % 8 == 4 and self.npf == 2)) and q == 3:
                    ex[0].append(Ins(f"s_add_u32 s{sT1}, s{sT0}, s{sPG}"))
                    if kt % 8 == 4:
                        ex[2].append(Ins(f"s_add_u32 s{sT1}, s{sT1}, {self.pfstep * 9216}"))
                    ex[2].append(Ins(f"buffer_load_dword v{vT3}, v{vPF}, {srd(sPF)}, s{sT1} offen", tag="pf"))
                    if kt % 8 == 2 + self.npf:
                        ex[3].append(Ins(f"s_add_u32 s{sPG}, s{sPG}, 128"))
                wd0 = self.o.get("wd0", 0)
                if self.wpf and not wd0 and kt % 8 == 4 and (q == 0 or (q == 2 and self.nd == 2)):
                    ex[0].insert(0, Ins(f"s_add_u32 s{sT1}, s{sT0}, s{sPFO}"))
                    ex[2] += [Ins(f"s_add_u32 s{sPFO}, s{sPFO}, {self.dl * 128}"), Ins(f"buffer_load_dword v{vT3}, v{vPD}, {srd(sD)}, s{sT1} offen", tag="pf")]
                if self.wpf and wd0 and kt % 8 == 4:
                    if q == 0:
                        ex[2].append(Ins(f"s_cmp_eq_u32 s{sIT}, {wd0 + 1}"))
                        ex[3].append(Ins(f"s_cselect_b32 s{sT1}, s{sPFO}, {OOB}"))
                    if q in (2, 3):
                        ex[0].append(Ins(f"s_add_u32 s{sT0}, s{sT1}, {self.dl * 128 * (2 * (kt // 8) + q - 2)}"))
                        ex[2].append(Ins(f"buffer_load_dword v{vT3}, v{vPD}, {srd(sD)}, s{sT0} offen", tag="pf"))
            sb = vS_ + 16 * (tau % 4)
            for m in range(4):
                if ms[m]:
                    a.add(ms[m])
                st = stream.get((tau, m), [])
                a.extend([i for i in st if i.kind not in ("vmem", "valu")] + ex[m] + [i for i in st if i.kind in ("vmem", "valu")])
                for e in range(4):
                    a(f"v_exp_f32 v{sb + 4 * m + e}, v{sb + 4 * m + e}")

    def att(self):
        ne, n2, n3 = self.ne, self.n2, self.n3
        pload, pacc = self.pload, self.pacc
        s = self.seg("attpre")
        if self.stamps and self.o.get("gst"):
            s("s_waitcnt lgkmcnt(0)")
            for k, (p, r) in enumerate(self.gst):
                s(f"v_writelane_b32 v0, s{r}, {2 * (20 + k)}")
        self.stamp(s, 3)
        s("s_waitcnt vmcnt(63) lgkmcnt(0)", auto=["kv0"])
        s("s_barrier", need=["kv0", "lds:r6"])
        k1, k2, vv = self.kvreads(0)
        s.extend([k1, k2, self.kvreads(1)[0]] + vv)
        for u in range(2):
            s(f"v_cvt_pk_bf16_f32 v{vQ2 + 8 * u}, v{vEX + 4 * u}, v{vEX + 4 * u + 1}")
        s("s_nop 0")
        for u in range(2):
            s(f"v_permlane32_swap_b32 v{vQ2 + 8 * u}, v{vQ2 + 8 * u + 4}")
        for q in range(4):
            s(f"v_mov_b32 v{vQ2 + 4 * q + 3}, v{vQ2 + 4 * q}")
        s("s_waitcnt lgkmcnt(2)")
        vMX = 28

        def mx(q, first):
            b, m = vS_ + 16 * q, vMX + q
            if first:
                return [f"v_max_f32 v{m}, v{b}, v{b + 1}"] + [f"v_max3_f32 v{m}, v{m}, v{b + j}, v{b + j + 1}" for j in range(2, 16, 2)]
            return [f"v_max3_f32 v{m}, v{m}, v{b + j}, v{b + j + 1}" for j in range(0, 16, 2)] + [f"v_mov_b32 v{b}, v{m}"]

        def fin(q):
            b, m = vS_ + 16 * q, vMX + q
            return [f"v_permlane32_swap_b32 v{m}, v{b}", f"v_max_f32 v{m}, v{m}, v{b}", f"v_sub_f32 v{m}, {f32(-MOFF)}, v{m}",
                    f"v_cvt_pk_bf16_f32 v{m}, v{m}, 0", f"v_cndmask_b32 v{vQ2 + 4 * q}, v{vQ2 + 4 * q}, v{m}, {MSK}", f"v_mov_b32 v{vQ2 + 4 * q + 3}, v{vQ2 + 4 * q}"]

        for q in range(4):
            m0, m1 = self.qk(q, q, 1)
            s.add(m0)
            s(f"buffer_store_dwordx4 {vr(vH1 + 4 * q)}, v{vL16}, {srd(sWS)}, s{sST} offen offset:{1024 * q} sc1", tag="hst")
            s.add(m1)
        s("s_nop 2")
        for q in range(4):
            m0, m1 = self.qk(q, q, 0)
            l = mx(q, True)
            for x in (l if q == 0 else l[4:]):
                s(x)
            s.add(m0)
            s(f"buffer_store_dwordx4 {vr(vXB)}, v{vL16}, {srd(sWS)}, s{sFLN} offen offset:{1024 * q} sc1", tag="hst")
            for x in (mx(q + 1, True)[:4] if q < 3 else mx(0, False)[:4]):
                s(x)
            s.add(m1)
        for x in mx(0, False)[4:] + mx(1, False) + fin(0) + mx(2, False)[:2]:
            s(x)
        m0, m1 = self.qk(0, 0, 0)
        s.add(m0)
        zo = [f"v_mfma_f32_32x32x8bf16_1k {vr(vO_ + 16 * q, 16)}, {ar(aV_ + 8, 2)}, {ar(aV_ + 8, 2)}, 0" for q in range(4)] if self.o.get("ozm", 0) else []
        if self.wpf and self.o.get("p4", 1) == 1:
            s.extend(self.pf2(512))
        for x in mx(2, False)[2:]:
            s(x)
        s.add(m1)
        for k, x in enumerate(fin(1) + mx(3, False) + fin(2) + fin(3)):
            s(x)
            if zo and k % 7 == 5:
                s(zo.pop())
        assert not zo
        for r in range(vS_ + 48, vS_ + 64):
            s(f"v_mov_b32 v{r}, 0")
        s("s_waitcnt lgkmcnt(0)")
        self.stamp(s, 16)
        s(".p2align 3")
        a = self.seg("att0")
        a("L_att:")
        self.att_stage(a, 0, False)
        a("s_cbranch_scc1 L_attl")
        a = self.seg("att1")
        self.att_stage(a, 8, False)
        a("s_branch L_att\n.p2align 3")
        a = self.seg("attl")
        a("L_attl:")
        self.att_stage(a, 8, True)
        a("s_nop 1")
        a.extend(self.pv(3, 3, 15))
        self.stamp(a, 4)
        s = self.seg("opub")
        s(f"""L_opub:
        s_lshl_b32 s{sT0}, s{sS}, 11
        s_add_u32 s{sT0}, s{sT0}, s{sOM}
        s_add_u32 s{sT1}, s{sT0}, 18432
        s_lshl_b32 s{sT2}, s{sS}, 8
        s_add_u32 s{sT2}, s{sT2}, s{sOM}
        s_add_u32 s{sT2}, s{sT2}, 16384""")
        vR, vW, vE = 192, 196, vS_ + 16
        for q in range(4):
            o, p = vO_ + 16 * q, vS_ + 4 * q
            u, hp = q // 2, q % 2
            if q == 0:
                for k in range(3):
                    s(f"v_rcp_f32 v{vR + k}, v{vO_ + 16 * k + 10}")
            if q == 2:
                s(f"v_rcp_f32 v{vR + 3}, v{vO_ + 48 + 10}")
            s(f"v_mul_f32 v{vR + q}, {f32(ALPHA)}, v{vR + q}")
            for j in range(10):
                s(f"v_mul_f32 v{vW + j}, v{o + j}, v{vR + q}")
            s(f"v_cvt_pk_bf16_f32 v{vE + 2 * hp + u}, v{vW + 8}, v{vW + 9}")
            for j in range(4):
                s(f"v_cvt_pk_bf16_f32 v{p + j}, v{vW + 2 * j}, v{vW + 2 * j + 1}")
            if u == 1:
                s(f"v_permlane16_swap_b32 v{vE + 2 * hp}, v{vE + 2 * hp + 1}")
            s(f"buffer_store_dwordx4 {vr(p)}, v{vL16}, {srd(sWS)}, s{sT0 + u} offen offset:{1024 * hp} sc1", tag="ost")
        s(f"buffer_store_dwordx4 {vr(vE)}, v{vOE}, {srd(sWS)}, s{sT2} offen sc1", tag="ost")
        s.add(self.poll())
        s(f"""s_cmp_lg_u32 s{sSK}, 0
        s_cbranch_scc1 L_chkd""")
        s = self.seg("chk")
        s(f"""s_mov_b32 s{sT0}, {f32(2.0 ** -126)}
        s_mov_b32 s{sT1}, {f32(2.0 ** 124)}""")
        t = 192
        for q in range(4):
            o = vO_ + 16 * q
            s(f"""v_cndmask_b32 v{t + 2}, v{o + 8}, v{o + 10}, {MSK}
            v_cndmask_b32 v{t + 3}, v{o + 9}, v{o + 10}, {MSK}""")
            if q == 0:
                s(f"v_min3_f32 v{t}, abs(v{t + 2}), abs(v{t + 3}), v{o + 10}\nv_add_f32 v{t + 1}, abs(v{t + 2}), v{o + 10}")
            else:
                s(f"""v_min3_f32 v{t}, v{t}, abs(v{t + 2}), abs(v{t + 3})
                v_min_f32 v{t}, v{t}, v{o + 10}
                v_add_f32 v{t + 1}, v{t + 1}, v{o + 10}
                v_add_f32 v{t + 1}, v{t + 1}, abs(v{t + 2})""")
            s(f"v_add_f32 v{t + 1}, v{t + 1}, abs(v{t + 3})")
            for j in range(0, 8, 2):
                s(f"""v_min3_f32 v{t}, v{t}, abs(v{o + j}), abs(v{o + j + 1})
                v_add_f32 v{t + 1}, v{t + 1}, abs(v{o + j})
                v_add_f32 v{t + 1}, v{t + 1}, abs(v{o + j + 1})""")
        s(f"""v_cmp_nle_f32 vcc, s{sT0}, v{t}
        v_cmp_ngt_f32 {MK2}, s{sT1}, v{t + 1}
        s_nop 0
        s_or_b64 vcc, vcc, {MK2}""")
        if self.forcefb:
            s("s_or_b64 vcc, vcc, 1")
        s("s_cbranch_scc1 L_fb")
        s = self.seg("opub2")
        s("L_chkd:")
        vXR, vXU = 176, 96
        for j in range(8):
            s(f"ds_read_b64 {vr(vXR + 2 * j, 2)}, v{vTMP + j // 2 if j > 1 else vBA} offset:{2048 * (j % 2)}", need=["xr"])
        s(f"ds_read_b64 {vr(vXR + 16, 2)}, v{vXNA}")
        unp = []
        for j in range(9):
            d = vXU + 4 * j if j < 8 else vXE
            for e in range(2):
                unp += [Ins(f"v_lshlrev_b32 v{d + 2 * e}, 16, v{vXR + 2 * j + e}"), Ins(f"v_and_b32 v{d + 2 * e + 1}, 0xffff0000, v{vXR + 2 * j + e}")]
        s("s_waitcnt vmcnt(0)")
        s(f"buffer_store_dword v{vONE}, v{vFO}, {srd(sWS)}, s{sOF} offen sc1", need=["ost"])
        self.stamp(s, 5)
        rd = self.ready()
        s.extend(rd[:3])
        s(f"""s_andn2_b32 s{sT0}, s{sOTH}, vcc_lo
        s_waitcnt lgkmcnt(0)
        s_cbranch_scc0 L_ogatf""")
        s = self.seg("opub3")
        s.add(rd[3])
        s.extend(self.opf())
        s.add(self.poll())
        pl = self.weave(pload(ne, n2))
        mf = pacc(0, ne)
        up2 = [Ins(i.text) for i in unp]
        k = 0
        while pl or mf or up2:
            if mf:
                s.add(mf.pop(0))
            if pl and k % 3 == 0:
                while pl[0].kind == "salu":
                    s.add(pl.pop(0))
                s.add(pl.pop(0))
            else:
                s.extend(up2[:2])
                up2 = up2[2:]
            k += 1
        s(f"s_mov_b32 s{sT3}, 0")
        s = self.seg("wo0")
        s(f"L_wo0:\ns_waitcnt vmcnt({4 * n2})")
        s = self.seg("wo1")
        s("L_wo1:")
        rd = self.ready()
        s.extend(rd[:3])
        s(f"""s_andn2_b32 s{sT0}, s{sOTH}, vcc_lo
        s_cbranch_scc0 L_ogat""")
        if self.o.get("opf", 0):
            s(f"s_and_b32 s{sT0}, vcc_lo, s{sTO}\ns_cbranch_scc0 L_wo1b")
            self.seg("wo1a").extend(self.opf())
        s = self.seg("wo1b")
        s("L_wo1b:")
        s.add(self.poll())
        s(f"""s_add_u32 s{sT3}, s{sT3}, 1
        s_cmp_gt_u32 s{sT3}, 0x40000
        s_cbranch_scc1 L_end""")
        s.add(rd[3])
        s("s_cbranch_scc1 L_wo2")
        s = self.seg("wo1c")
        s("s_waitcnt vmcnt(0)\ns_branch L_wo1")
        s = self.seg("wo2")
        s("L_wo2:\ns_waitcnt vmcnt(1)")
        pl = pload(ne, n2)
        for i in range(n2):
            mf = pacc(ne + i, 1)
            for k in range(8):
                s.add(mf[k])
                if k < 7:
                    s.add(pl[11 * i + k])
            s.extend(pl[11 * i + 7:11 * i + 11])
        s("s_branch L_wo0")
        gl = []
        for kb in range(6):
            for u in range(2):
                for i in range(3):
                    k = 3 * kb + i
                    q = [Ins(f"s_add_u32 s{sA}, s{sOM1 if k >= 9 and not self.o.get('opf', 0) else sOM0}, {1024 * (18 * u + k)}")] if i == 0 else []
                    gl.append(q + [Ins(f"buffer_load_dwordx4 {xn(u, k)}, v{vL16}, {srd(sWS)}, s{sA} offen offset:{1024 * i} sc1", tag=f"og{kb}")])
        ng = self.o.get("ngpre", 12)
        tf = Timeline()
        vX2 = 28
        n = 0
        for kb in range(6):
            for ct in range(5):
                g0 = 30 * kb + 6 * ct
                for i in range(3):
                    k = 3 * kb + i
                    f = aFR + 4 * ((15 * kb + 3 * ct + i) % 18)
                    for hh in range(2):
                        if ct < 4:
                            off = 4096 * k + 2048 * hh
                            ins = Ins(f"ds_read_b64_tr_b16 {ar(f + 2 * hh, 2)}, v{vRB + 4 * (off // 65536) + ct} offset:{off % 65536}", tag="fr")
                        else:
                            ins = Ins(f"ds_read_b64_tr_b16 {ar(f + 2 * hh, 2)}, v{vRN} offset:{1024 * k + 512 * hh}", tag="fr")
                        tf.place(Item("r", ins, 0, earliest=g0 - 36 + 3 + i), n - 16)
                        n += 1
                    for u in range(2):
                        c = vr(vG + 4 * (2 * ct + u)) if ct < 4 else vr(vX2 if u else vXB)
                        tf.m[g0 + 3 * u + i] = Ins(f"v_mfma_f32_16x16x32_bf16 {c}, {ar(f)}, {xn(u, k)}, {'0' if ct == 4 and k == 0 else c}")
            if kb:
                tf.gap(30 * kb - 1).shadow.append(Ins("s_waitcnt vmcnt(63)", auto=[f"og{kb}"]))
        pre0 = tf.emit(-16, 0)
        cp = lambda l: [Ins(i.text, tag=i.tag) for i in l]
        s = self.seg("ogatf")
        s("L_ogatf:")
        self.stamp(s, 6)
        mf, pre = pacc(0, ne), cp(pre0)
        per = -(-len(mf) // (ng - 4))
        for q in gl[:ng]:
            s.extend(cp(q))
            if mf:
                for m in mf[:per]:
                    s.add(m)
                    s.extend(unp[:1])
                    unp = unp[1:]
                mf = mf[per:]
            else:
                s.extend(pre[:4])
                pre = pre[4:]
        s.extend(pre + unp)
        s("s_branch L_ogatc")
        s = self.seg("ogat")
        s("L_ogat:")
        self.stamp(s, 6)
        pre = list(pre0)
        for q in gl[:ng]:
            s.extend(q)
            s.extend(pre[:1])
            pre = pre[1:]
        s.extend(pre)
        s("s_waitcnt vmcnt(63)", auto=[f"pl{i}" for i in range(ne, ne + n2)])
        s.extend(pacc(ne, n2))
        s = self.seg("ogatc")
        s("L_ogatc:")
        s("s_waitcnt vmcnt(63) lgkmcnt(0)", auto=["og0"])
        gs = self.o.get("gstep", 4)
        for k, q in enumerate(gl[ng:]):
            p = 1 + gs * k
            p += 1 if p % 30 == 29 else 0
            tf.gap(p).shadow.extend(q[:-1])
            tf.gap(p).mem.append(q[-1])
        n4 = self.o.get("n4", 1)
        i3, i4 = ne + n2, ne + n2 + n3
        assert n3 + n4 <= 5

        def rnd(p, i0, n):
            rd = self.ready()
            tf.gap(p).shadow.append(Ins("s_waitcnt vmcnt(63)", auto=["poll"]))
            tf.gap(p).valu.append(rd[0])
            p, lastm = p + 1, 0
            for i in rd[2:3] + [self.poll()] + rd[3:] + self.weave(pload(i0, n)):
                if i.kind == "salu":
                    tf.gap(p).shadow.append(i)
                    p += 1
                else:
                    p = max(p, lastm + 3)
                    lastm = p
                    tf.gap(p - 1).mem.append(i)
            return p

        p1 = p + 1
        tf.gap(p1 - 50).mem.append(self.poll())
        p = rnd(p1, i3, n3)
        p2 = self.o.get("p2", 180 - 12 - 12 * n4)
        assert p <= p2, (p, p2)
        p = rnd(p2, i4, n4)
        assert p < 181, p
        if self.stamps and self.o.get("fst"):
            fst = list(zip((0, 31, 61, 91, 121, 151), (66, 68, 52, 54, 100, 72)))
            for p, r in fst:
                tf.gap(p).shadow.append(Ins(f"s_memtime s[{r}:{r + 1}]"))
        tf.insert_lgkm_waits(0, 180, [])
        s.extend(tf.emit(0, 180))
        s = self.seg("xud")
        if self.stamps and self.o.get("fst"):
            s("s_waitcnt lgkmcnt(0)")
            for k, (p, r) in enumerate(fst):
                s(f"v_writelane_b32 v0, s{r}, {2 * (20 + k)}")
        self.stamp(s, 7)
        s(f"s_mov_b32 s{sT2}, {f32(1.0 / ALPHA ** 2)}\ns_mov_b32 s{sT3}, 0")
        self.sk3 = self.pacc_opt("sk3", i3, n3)
        s = self.segs[-1]
        s(f"s_nop 3\ns_bitcmp1_b32 s{sS}, 2\ns_cselect_b64 {MK2}, -1, 0")
        for e in range(4):
            s(f"v_cndmask_b32 v{vXB + e}, v{vXB + e}, v{vX2 + e}, {MK2}")
        s = self.seg("e1")
        s(f"""L_e1:
        s_cmp_eq_u32 s{sTODO}, 0
        s_cbranch_scc1 L_e2""")
        s = self.seg("e1b")
        s("s_waitcnt vmcnt(0)")
        s.extend(pacc(i4, n4))
        s = self.seg("e1c")
        s("L_e1c:")
        rd = self.ready()
        s.extend(rd[:3] + [self.poll()])
        s(f"""s_add_u32 s{sT3}, s{sT3}, 1
        s_cmp_gt_u32 s{sT3}, 0x40000
        s_cbranch_scc1 L_end""")
        s.add(rd[3])
        s("s_cbranch_scc1 L_e1e")
        s = self.seg("e1d")
        s("s_waitcnt vmcnt(0)\ns_branch L_e1c")
        s = self.seg("e1e")
        s("L_e1e:")
        s.extend(self.weave(pload(i4, n4)))
        s("s_branch L_e1")
        vLP = 32
        lastl = lambda: [Ins(f"buffer_load_dwordx2 {vr(vLP + 2 * p, 2)}, v{vL8}, {srd(sWS)}, s{sFLN} offen offset:{512 * p} sc1", tag="pll") for p in range(8)]
        s = self.seg("fmain")
        s("L_e2:")
        self.stamp(s, 17)
        s(f"s_mov_b32 s{sLST}, 1")
        s.extend(lastl())
        self.sk4 = self.pacc_opt("sk4", i4, n4)
        s = self.segs[-1]
        s.add(self.poll())
        self.stamp(s, 18)
        for j in range(8):
            c = vG + 4 * j
            for e in range(4):
                s(f"v_fma_f32 v{c + e}, v{c + e}, s{sT2}, v{vXU + 4 * j + e}")
            s(f"v_cvt_pk_bf16_f32 v{c}, v{c}, v{c + 1}\nv_cvt_pk_bf16_f32 v{c + 1}, v{c + 2}, v{c + 3}")
        for j in range(8):
            s(f"ds_write_b64 v{vTMP + j // 2 if j > 1 else vBA}, {vr(vG + 4 * j, 2)} offset:{2048 * (j % 2)}")
        for i in range(4):
            s(f"ds_read_b128 {vr(vXU + 4 * i)}, v{vOL} offset:{1024 * i}")
        for i in range(4):
            s(f"s_waitcnt lgkmcnt({3 - i})")
            s(f"buffer_store_dwordx4 {vr(vXU + 4 * i)}, v{vTMP}, {srd(sOUT)}, s{sC0} offen")
            if i < 3:
                s(f"s_add_u32 s{sC0}, s{sC0}, 9216")
        self.stamp(s, 8)
        s("s_waitcnt vmcnt(5)")
        s = self.seg("e3")
        s("L_e3:")
        s(f"v_max3_u32 v{vT0}, v{vLP}, v{vLP + 1}, v{vLP + 2}")
        for j in range(3, 15, 2):
            s(f"v_max3_u32 v{vT0}, v{vT0}, v{vLP + j}, v{vLP + j + 1}")
        s(f"""v_max_u32 v{vT0}, v{vT0}, v{vLP + 15}
        v_cmp_eq_u32 vcc, -1, v{vT0}
        s_cmp_eq_u32 s{sLST}, 0
        s_cbranch_vccz L_fin
        s_cbranch_scc1 L_fin""")
        s = self.seg("e3b")
        s(f"s_waitcnt vmcnt(4)\nv_cmp_eq_u32 vcc, 0, v{vPOL}")
        s.extend(lastl())
        s(f"s_and_b32 s{sLST}, vcc_lo, 0xff0000")
        s.add(self.poll())
        s(f"""s_add_u32 s{sT3}, s{sT3}, 1
        s_cmp_lt_u32 s{sT3}, 0x40000
        s_waitcnt vmcnt(0)
        s_cbranch_scc1 L_e3
        s_endpgm""")
        s = self.seg("fin")
        s("L_fin:")
        for p in range(4):
            s(f"v_mfma_f32_16x16x32_bf16 {vr(vXB)}, {vr(vSEL + 6)}, {vr(vLP + 4 * p)}, {vr(vXB)}")
        s("s_nop 7")
        for e in range(4):
            s(f"v_fma_f32 v{vXB + e}, v{vXB + e}, s{sT2}, v{vXE + e}")
        s(f"""v_cvt_pk_bf16_f32 v{vXB}, v{vXB}, v{vXB + 1}
        v_cvt_pk_bf16_f32 v{vXB + 1}, v{vXB + 2}, v{vXB + 3}
        buffer_store_dwordx2 {vr(vXB, 2)}, v{vOA}, {srd(sOUT)}, s{sXN} offen""")
        self.stamp(s, 9, True)
        self.stamp_flush(s)
        s("s_endpgm")

    def fallback(self):
        vM = 192
        s = self.seg("fb0")
        s(f"""L_fb:
        s_waitcnt vmcnt(0) lgkmcnt(0)
        v_and_b32 v{vT0}, 31, v{vL}
        v_lshlrev_b32 v{vT0}, 4, v{vT0}
        v_subrev_u32 v{vT1}, {KVS0}, v{vVA}
        v_accvgpr_write_b32 a{aK2 + 1}, 0
        s_mov_b32 s{sIT}, 0
        s_mov_b32 s{sSK}, 1""")
        for q in range(4):
            s(f"v_cndmask_b32 v{vQ2 + 4 * q}, v{vQ2 + 4 * q}, 0, {MSK}\nv_mov_b32 v{vM + q}, 0xff800000")
        for r in range(vO_, vO_ + 64):
            s(f"v_mov_b32 v{r}, 0")

        def loads(k, withv):
            k(f"""s_lshr_b32 s{sT0}, s{sIT}, 3
            s_mul_i32 s{sT0}, s{sT0}, {KVST}
            s_and_b32 s{sT1}, s{sIT}, 7
            s_lshl_b32 s{sT2}, s{sT1}, 10
            s_add_u32 s{sT2}, s{sT2}, s{sT0}
            buffer_load_dwordx4 {ar(aK1)}, v{vL16}, {srd(sWS)}, s{sT2} offen sc1
            s_lshr_b32 s{sT2}, s{sT1}, 2
            s_mul_i32 s{sT2}, s{sT2}, 640
            s_and_b32 s{sT3}, s{sT1}, 3
            s_lshl_b32 s{sT3}, s{sT3}, 2
            s_add_u32 s{sT2}, s{sT2}, s{sT3}
            s_add_u32 s{sT2}, s{sT2}, s{sT0}
            s_add_u32 s{sT2}, s{sT2}, 18432
            buffer_load_dword a{aK2}, v{vT0}, {srd(sWS)}, s{sT2} offen sc1""")
            if withv:
                k(f"""s_mul_i32 s{sT2}, s{sT1}, 1280
                s_add_u32 s{sT2}, s{sT2}, s{sT0}
                buffer_load_dwordx4 {ar(aV_)}, v{vT1}, {srd(sWS)}, s{sT2} offen sc1
                buffer_load_dwordx4 {ar(aV_ + 4)}, v{vT1}, {srd(sWS)}, s{sT2} offen offset:640 sc1""")
            k("s_waitcnt vmcnt(0)")
            for q in range(4):
                k.extend(self.qk(q, q, 0))
            k("s_nop 11")

        k = self.seg("fb1")
        k("L_fb1:")
        loads(k, False)
        for q in range(4):
            for j in range(0, 16, 2):
                k(f"v_max3_f32 v{vM + q}, v{vM + q}, v{vS_ + 16 * q + j}, v{vS_ + 16 * q + j + 1}")
        k(f"""s_add_u32 s{sIT}, s{sIT}, 1
        s_cmp_lt_u32 s{sIT}, 64
        s_cbranch_scc1 L_fb1""")
        k = self.seg("fb2")
        for q in range(4):
            k(f"v_mov_b32 v{vS_ + q}, v{vM + q}")
        k("s_nop 0")
        for q in range(4):
            k(f"v_permlane32_swap_b32 v{vM + q}, v{vS_ + q}")
        for q in range(4):
            k(f"v_max_f32 v{vM + q}, v{vM + q}, v{vS_ + q}")
        k(f"s_mov_b32 s{sIT}, 0")
        k = self.seg("fb3")
        k("L_fb3:")
        loads(k, True)
        for q in range(4):
            for j in range(16):
                k(f"v_sub_f32 v{vS_ + 16 * q + j}, v{vS_ + 16 * q + j}, v{vM + q}")
            for j in range(16):
                k(f"v_exp_f32 v{vS_ + 16 * q + j}, v{vS_ + 16 * q + j}")
        k("s_nop 1")
        for q in range(4):
            k.extend(self.pv(q, q, 0))
        k(f"""s_add_u32 s{sIT}, s{sIT}, 1
        s_cmp_lt_u32 s{sIT}, 64
        s_cbranch_scc1 L_fb3""")
        k = self.seg("fb4")
        k("s_nop 11\ns_branch L_opub")


DEFAULTS = dict(fpos=90, fposl=74, cpf=2, ngpre=18, gstep=5, n3=2, p2=140, ne=5, pack=2, n2=2, npf0=0, nup=10, npre=6, g0=0, wskip=0, vpf=1, late=1, kpos=30, kvn=15, defer=7, ozm=1, p3=401, p4=405)


def build(path, C=2, stamps=False, xpf=False, wpf=True, forcefb=False, verbose=True, **kw):
    kw = dict(DEFAULTS, **kw)
    g = Gen1(C=C, stamps=stamps, xpf=xpf, wpf=wpf, **kw)
    g.forcefb = forcefb
    g.kvpoll, g.kvchk = kw.get("kvpoll", 300), kw.get("kvchk", 356)
    g.ne, g.n2, g.n3, g.etau = kw.get("ne", 4), kw.get("n2", 2), kw.get("n3", 2), kw.get("etau", 50)
    g.prologue()
    g.p0()
    g.p1()
    probs = []
    traces = [("P0", g.trace(["entry"] + (["pfe"] if kw.get("early") == 2 else []) + ["entry2", "p0x", "ln", "ln2", "p0pre"] + (["aloop", "aloop2"] * 7)[(1 if kw.get("late") else 0):] + ["aexit", "aswitch", "aswitch2", "aloop", "aloop2", "aexit", "b0"] + ["bloop", "bloop2"] * 3 + ["bloop", "bend"]))]
    for u in range(2):
        for o in range(2):
            fb = ["fb0", "fb1", "fb1", "fb2", "fb3", "fb3", "fb4", "opub"] if o else []
            for end in (["sk3", "e1", "fmain", "sk4", "e3", "fin"], g.sk3 + ["sk3", "e1", "fmain"] + g.sk4 + ["sk4", "e3", "fin"],
                        g.sk3[:1] + ["sk3", "e1", "e1b", "e1c", "e1d", "e1c", "e1e", "e1", "e1b", "e1c", "e1e", "e1", "fmain"] + g.sk4 + ["sk4", "e3", "e3b", "e3", "fin"]):
                t1 = ["entry"] + (["pfe"] if kw.get("early") == 3 else []) + ["entry2", "p1pre", "ln", "kvdma", "ln2", "p1a", f"kv{u}{o}", "p1gemm", "attpre"] + ["att0", "att1"] * 3 + ["att0", "attl"] + \
                     ["opub", "chk"] + fb + ["opub2"] + (["ogatf"] if u else ["opub3", "wo0", "wo1"] + (["wo1a", "wo1b", "wo1c", "wo1", "wo1b", "wo2", "wo0", "wo1", "wo1b", "wo2", "wo0", "wo1"] if o else []) + ["ogat"]) + ["ogatc", "xud"] + end
                traces.append(("P1", g.trace(t1)))
    auto_vm([t for _, t in traces])
    for n, t in traces:
        probs += check_trace(t, n)
    seen = set()
    for p in probs:
        key = p.split("'", 1)[1]
        if key not in seen:
            seen.add(key)
            print(p)
    if verbose:
        for s in g.segs:
            n = sum(1 for i in s.ins if i.kind != "label")
            nm = sum(1 for i in s.ins if i.kind == "mfma")
            if n > 40:
                print(f"{s.name:10s} ins {n:5d} mfma {nm:4d} est {est_cycles(s.ins)}")
    open(path, "w").write(g.text())
    return len(seen)


if __name__ == "__main__":
    import argparse
    ap = argparse.ArgumentParser()
    ap.add_argument("-o", default="cdna_kernels/" + NAME + ".s")
    ap.add_argument("-C", type=int, default=2)
    ap.add_argument("--stamps", action="store_true")
    ap.add_argument("--xpf", action="store_true")
    ap.add_argument("--nowpf", action="store_true")
    ap.add_argument("--fb", action="store_true")
    ap.add_argument("kw", nargs="*")
    a = ap.parse_args()
    kw = {}
    for x in a.kw:
        k, v = x.split("=")
        kw[k] = int(v) if v.lstrip("-").isdigit() else " " + v
    n = build(a.o, a.C, a.stamps, a.xpf, not a.nowpf, a.fb, **kw)
    print("problems:", n)
```

```python
import sys
from ubl import *
ON_GPU = os.path.exists('/dev/kfd')

def kernel(bodyA, bodyB, iters=200, nw=8):
    s = """
    s_load_dwordx2 s[4:5], s[0:1], 0
    v_lshrrev_b32 v1, 6, v0
    s_nop 1
    v_readfirstlane_b32 s20, v1
    s_waitcnt lgkmcnt(0)
    s_mov_b32 s8, s4
    s_and_b32 s9, s5, 0xffff
    s_mov_b32 s10, 0x100000
    s_mov_b32 s11, 0x20000
"""
    for r in range(2, 200):
        s += f"    v_mov_b32 v{r}, 0\n"
    s += "    v_mov_b32 v200, 0xdddddddd\n"
    s += "    v_lshlrev_b32 v201, 4, v0\n    v_lshlrev_b32 v202, 3, v0\n    v_and_b32 v203, 63, v0\n    v_lshlrev_b32 v203, 4, v203\n v_add_u32 v203, 0x10000, v203\n s_lshl_b32 s30, s20, 10\n s_add_u32 s30, s30, 0x4000\n s_mov_b32 m0, s30\n"
    for r in range(0, 128):
        s += f"    v_accvgpr_write_b32 a{r}, 0\n"
    s += f"""
    s_mov_b32 s21, {iters}
    s_barrier
    s_memtime s[24:25]
    s_waitcnt lgkmcnt(0)
    s_cmp_ge_u32 s20, 4
    s_cbranch_scc1 LB
.p2align 6
LA:
{bodyA}
    s_sub_u32 s21, s21, 1
    s_cmp_lg_u32 s21, 0
    s_cbranch_scc1 LA
    s_branch LEND
.p2align 6
LB:
{bodyB}
    s_sub_u32 s21, s21, 1
    s_cmp_lg_u32 s21, 0
    s_cbranch_scc1 LB
LEND:
    s_memtime s[26:27]
    s_waitcnt lgkmcnt(0)
    s_sub_u32 s26, s26, s24
    v_mov_b32 v2, s26
    s_lshl_b32 s3, s2, 3
    s_add_u32 s3, s3, s20
    s_lshl_b32 s3, s3, 2
    v_mov_b32 v3, s3
    buffer_store_dword v2, v3, s[8:11], 0 offen
    s_waitcnt vmcnt(0)
"""
    return s

def rep(lines, n):
    return "\n".join(lines * n)

EXP = lambda i: f"    v_exp_f32 v{100+i%32}, v{140+i%32}"
ADD = lambda i: f"    v_add_f32 v{100+i%32}, v{140+i%32}, v{140+(i+1)%32}"
FMA = lambda i: f"    v_fma_f32 v{100+i%32}, v{140+i%32}, v{140+(i+1)%32}, v{140+(i+2)%32}"
PKM = lambda i: f"    v_pk_mul_f32 v[{100+2*(i%16)}:{101+2*(i%16)}], v[{140+2*(i%16)}:{141+2*(i%16)}], v[{142+2*(i%15)}:{143+2*(i%15)}]"
CVT = lambda i: f"    v_cvt_pk_bf16_f32 v{100+i%32}, v{140+i%32}, v{140+(i+1)%32}"
M32 = lambda i: f"    v_mfma_f32_32x32x16_bf16 v[{16*(i%4)+16}:{16*(i%4)+31}], v[4:7], v[8:11], v[{16*(i%4)+16}:{16*(i%4)+31}]"
M32o = lambda i: f"    v_mfma_f32_32x32x8bf16_1k v[{16*(i%4)+16}:{16*(i%4)+31}], v[4:5], v[8:9], v[{16*(i%4)+16}:{16*(i%4)+31}]"
M16 = lambda i: f"    v_mfma_f32_16x16x32_bf16 v[{4*(i%8)+16}:{4*(i%8)+19}], v[4:7], v[8:11], v[{4*(i%8)+16}:{4*(i%8)+19}]"
S32 = lambda i: f"    v_smfmac_f32_32x32x32_bf16 v[{16*(i%4)+16}:{16*(i%4)+31}], v[4:7], v[8:15], v200"
S16 = lambda i: f"    v_smfmac_f32_16x16x64_bf16 v[{4*(i%8)+16}:{4*(i%8)+19}], v[4:7], v[8:15], v200"
NOPI = lambda i: "    s_nop 0"

def seq(f, n): return "\n".join(f(i) for i in range(n))
def mix(pattern, n):
    out = []; cnt = {}
    for j in range(n):
        for f, k in pattern:
            for _ in range(k):
                c = cnt.get(f, 0); out.append(f(c)); cnt[f] = c + 1
    return "\n".join(out)


MUL = lambda i: f"    v_mul_f32 v{100+i%32}, v{140+i%32}, v{140+(i+1)%32}"
EXPH = lambda i: f"    v_exp_f16 v{100+i%32}, v{140+i%32}"
RCP = lambda i: f"    v_rcp_f32 v{100+i%32}, v{140+i%32}"
SAL = lambda i: f"    s_add_u32 s{40+i%8}, s{50+i%8}, 3"
DSR = lambda i: f"    ds_read_b128 v[{176+4*(i%4)}:{179+4*(i%4)}], v201"
DST = lambda i: f"    ds_read_b64_tr_b16 v[{176+2*(i%8)}:{177+2*(i%8)}], v202"
WT = lambda i: "    s_waitcnt lgkmcnt(2)"
VW = lambda i: "    s_waitcnt vmcnt(12)"
DMA = lambda i: f"    buffer_load_dwordx4 v203, s[8:11], 0 offen lds"
GLD = lambda i: f"    buffer_load_dwordx4 v[{176+4*(i%4)}:{179+4*(i%4)}], v203, s[8:11], 0 offen"
M32Z = lambda i: f"    v_mfma_f32_32x32x16_bf16 v[{16*(i%4)+16}:{16*(i%4)+31}], v[4:7], v[8:11], 0"
M32A = lambda i: f"    v_mfma_f32_32x32x16_bf16 a[{16*(i%4)+16}:{16*(i%4)+31}], v[4:7], v[8:11], a[{16*(i%4)+16}:{16*(i%4)+31}]"
M32AB = lambda i: f"    v_mfma_f32_32x32x16_bf16 a[{16*(i%4)+16}:{16*(i%4)+31}], a[4:7], a[8:11], a[{16*(i%4)+16}:{16*(i%4)+31}]"
S32o = lambda i: f"    v_smfmac_f32_32x32x16_bf16 v[{16*(i%4)+16}:{16*(i%4)+31}], v[4:5], v[8:11], v200"

def main(tests, iters=100, grid=1):
    if ON_GPU:
        out = DeviceBuffer(1<<20)
    for i,(name,(a,b,div)) in enumerate(tests.items()):
        block = 512 if b is not None else 256
        if b is None:
            asm = wrap(kernel(a, "s_nop 0", iters), grid=grid, block=block, vgpr=512, acc=256, lds=65536)
        else:
            k = kernel(a, b, iters)
            import re
            k = re.sub(r"    v_accvgpr_write_b32 a\d+, 0\n", "", k)
            asm = wrap(k, grid=grid, block=block, lds=65536)
        co = build(asm, tag=f"issue{i}")
        if ON_GPU:
            run(co, "k_kernel", grid, block, 65536, [out.ptr]*4, reps=2)
            r = out.to_numpy(np.uint32, (8,))
            n = block//64
            print(f"{name:34s}", " ".join(f"{x/iters/div:8.2f}" for x in r[:n]))
    print("done")
```

```python
import sys
from ubl import *
import issue_lib as L
from issue_lib import *
M = lambda i: f"    v_mfma_f32_16x16x32_bf16 v[{4*((i//9)%8)+16}:{4*((i//9)%8)+19}], a[4:7], a[8:11], v[{4*((i//9)%8)+16}:{4*((i//9)%8)+19}]"
R = lambda i: f"    ds_read_b64_tr_b16 a[{32+2*(i%32)}:{33+2*(i%32)}], v202 offset:{(i%8)*2048}"
K = {"r": R, "v": ADD, "T": EXP, "D": DMA, "s": SAL,
     "m": lambda i: f"    s_add_u32 m0, s30, {4096*(i%4)}",
     "a": lambda i: f"    s_mov_b32 s60, {4096*(i%16)}",
     "E": lambda i: f"    buffer_load_dwordx4 v203, s[8:11], s60 offen lds",
     "w": lambda i: "    s_waitcnt lgkmcnt(6)", "B": lambda i: "    s_barrier", "W": lambda i: "    s_waitcnt vmcnt(15) lgkmcnt(6)",
     "f": lambda i: f"    v_fma_f32 v{100+i%32}, -v{140+i%32}, v{140+i%32}, s50",
     "c": CVT,
     "b": lambda i: f"    s_add_u32 s64, s4, {4096*(i%16)}",
     "F": lambda i: f"    buffer_load_dwordx4 v203, s[64:67], 0 offen lds",
     "G": lambda i: f"    global_load_lds_dwordx4 v203, s[64:65]",
     "S": lambda i: f"    buffer_store_dwordx4 v[140:143], v203, s[8:11], 0 offen",
     "U": lambda i: f"    buffer_store_dwordx4 v[140:143], v203, s[8:11], s60 offen",
     "X": lambda i: f"    buffer_store_dwordx2 v[140:141], v203, s[8:11], 0 offen",
     "Y": lambda i: f"    global_store_dwordx4 v203, v[140:143], s[64:65]",
     }
def pat(p, n):
    l = []
    for g in p.split():
        l.append((M,1))
        for c in g:
            if c != ".": l.append((K[c],1))
    return ("s_mov_b32 s60, 0\ns_mov_b32 s64, s8\ns_mov_b32 s65, s9\ns_mov_b32 s66, 0x80000\ns_mov_b32 s67, 0x20000\n" + mix(l, n), None, len(p.split())*n)
tests = {}
K["L"] = lambda i: f"    s_add_u32 s{40+i%8}, s{50+i%8}, 0x1234"
for p in ["r", "rf", "Lrf", "Lrc", "rv rv", "rT rT", "LrD r r r r r r r"]:
    n = max(1, 144 // len(p.split()))
    t = pat(p, n)
    tests[p + " al"] = t
    tests[p + " mis"] = ("s_nop 0\n" + t[0], None, t[2])
L.main(tests)
```

```python
import re

TRANS = ("v_exp_f32", "v_rcp_f32", "v_rsq_f32", "v_log_f32", "v_sqrt_f32")


def regs_of(tok):
    tok = tok.strip()
    tok = tok.lstrip("-")
    m = re.fullmatch(r"abs\((.*)\)", tok)
    if m:
        tok = m.group(1)
    m = re.fullmatch(r"([vas])(\d+)", tok)
    if m:
        return [m.group(1) + m.group(2)]
    m = re.fullmatch(r"([vas])\[(\d+):(\d+)\]", tok)
    if m:
        return [m.group(1) + str(i) for i in range(int(m.group(2)), int(m.group(3)) + 1)]
    if tok in ("vcc", "exec", "m0"):
        return [tok]
    if tok in ("vcc_lo", "vcc_hi"):
        return ["vcc"]
    return []


class Ins:
    __slots__ = ("text", "op", "kind", "rd", "wr", "tag", "passes", "srcc", "ab", "vm", "lg", "nop", "need", "idx", "auto", "dpp")

    def __init__(self, text, tag=None, need=None, idx=None, auto=None):
        self.text = text
        self.auto = auto
        self.tag = tag
        self.need = need
        self.idx = idx
        t = text.split(";")[0].strip()
        self.dpp = "_dpp" in t
        t = re.sub(r"\s(quad_perm|op_sel|op_sel_hi):\[[^\]]*\]", "", t)
        self.vm = self.lg = None
        self.nop = 1
        self.passes = 0
        self.srcc = []
        self.ab = []
        self.rd = []
        self.wr = []
        if t.endswith(":") or t.startswith(".") or not t:
            self.op = ""
            self.kind = "label"
            self.nop = 0
            return
        parts = t.split(None, 1)
        op = self.op = parts[0]
        rest = parts[1] if len(parts) > 1 else ""
        ops = [o.strip() for o in rest.split(",")]
        mods = ""
        if ops:
            sp = ops[-1].split(None, 1)
            if sp:
                ops[-1] = sp[0]
                mods = sp[1] if len(sp) > 1 else ""
        R = [regs_of(o) for o in ops]
        flat = lambda l: [x for y in l for x in y]
        if op.startswith("v_mfma") or op.startswith("v_smfmac"):
            self.kind = "mfma"
            self.passes = 8 if "32x32" in op else 4
            self.wr = R[0]
            if op.startswith("v_smfmac"):
                self.srcc = R[0]
                self.ab = R[1] + R[2] + R[3]
            else:
                self.srcc = R[3]
                self.ab = R[1] + R[2]
            self.rd = self.ab + self.srcc
        elif op.startswith("ds_read"):
            self.kind = "lds"
            self.wr = R[0]
            self.rd = R[1]
        elif op.startswith("ds_write"):
            self.kind = "lds"
            self.rd = flat(R)
        elif op.startswith("buffer_load") or op.startswith("global_load"):
            self.kind = "vmem"
            if re.search(r"\blds\b", mods):
                self.rd = flat(R) + ["m0"]
            else:
                self.wr = R[0]
                self.rd = flat(R[1:])
        elif op.startswith("buffer_store") or op.startswith("buffer_atomic"):
            self.kind = "vmem"
            self.rd = flat(R)
        elif op == "s_waitcnt":
            self.kind = "wait"
            m = re.search(r"vmcnt\((\d+)\)", t)
            if m:
                self.vm = int(m.group(1))
            m = re.search(r"lgkmcnt\((\d+)\)", t)
            if m:
                self.lg = int(m.group(1))
        elif op == "s_nop":
            self.kind = "salu"
            self.nop = int(ops[0]) + 1
        elif op.startswith("s_load") or op in ("s_memtime", "s_memrealtime"):
            self.kind = "smem"
            self.wr = R[0]
            self.rd = flat(R[1:])
        elif op.startswith("s_cmp") or op.startswith("s_bitcmp") or op.startswith("s_cbranch") or op in ("s_branch", "s_barrier", "s_endpgm", "s_sleep", "s_setprio", "s_set_gpr_idx_off"):
            self.kind = "salu"
            self.rd = flat(R)
            if op in ("s_cbranch_vccnz", "s_cbranch_vccz"):
                self.rd = ["vcc"]
        elif op == "s_set_gpr_idx_on":
            self.kind = "salu"
            self.rd = R[0]
            self.wr = ["m0"]
        elif op.startswith("s_"):
            self.kind = "salu"
            self.wr = R[0]
            self.rd = flat(R[1:])
        elif op.startswith("v_"):
            self.kind = "trans" if op.replace("_e32", "").replace("_e64", "") in TRANS else "valu"
            if op.startswith("v_permlane"):
                self.wr = R[0] + R[1]
                self.rd = R[0] + R[1]
            elif op.startswith("v_dot2c") or op.startswith("v_fmac"):
                self.wr = R[0]
                self.rd = flat(R)
            elif op.startswith("v_add_co") or op.startswith("v_addc_co"):
                self.wr = R[0] + R[1]
                self.rd = flat(R[2:])
            elif op.startswith("v_cndmask") and len(ops) == 4:
                self.wr = R[0]
                self.rd = flat(R[1:])
            else:
                self.wr = R[0]
                self.rd = flat(R[1:])
        else:
            raise ValueError("unknown instruction: " + text)

    def cost(self):
        if self.kind == "trans":
            return 8
        return 4


class Seg:
    def __init__(self, name):
        self.name = name
        self.ins = []

    def __call__(self, text, **kw):
        for l in text.split("\n"):
            l = l.strip()
            if l:
                self.ins.append(Ins(l, **kw))
        return self

    def add(self, i):
        self.ins.append(i)

    def extend(self, l):
        self.ins.extend(l)

    def text(self):
        out = []
        for i in self.ins:
            out.append(i.text if i.kind == "label" else "    " + i.text)
        return "\n".join(out) + "\n"


def check_trace(trace, name="", verbose=False):
    probs = []
    vmq = []
    lgq = []
    pend_vm = {}
    pend_lg = {}
    pos = 0
    last_valu_wr = {}
    last_mfma_wr = {}
    last_srcc_rd = {}
    last_salu_m0 = -100
    last_store_data = {}
    done_tags = set()
    seen_tags = set()
    maxvm = 0
    scc = None
    NOSCC = ("s_mov", "s_cselect", "s_mul_i32", "s_nop", "s_cbranch", "s_branch", "s_barrier", "s_sleep", "s_set_gpr", "s_endpgm", "s_setprio", "s_getreg", "s_getpc", "s_ff1", "s_bitset")

    def P(i, n, msg):
        probs.append(f"[{name}] #{n} '{i.text}': {msg}")

    for n, i in enumerate(trace):
        if i.kind == "label":
            continue
        here = pos
        isvalu = i.kind in ("valu", "trans")
        wr = list(i.wr)
        if i.idx:
            wr = [r[0] + str(int(r[1:]) + o) for r in i.wr for o in i.idx]
        for r in i.rd + wr:
            if r in pend_vm and not (i.kind == "vmem" and r in wr and r not in i.rd):
                P(i, n, f"{r} has vm load pending from '{pend_vm[r].text}'")
                del pend_vm[r]
            if r in pend_lg and not (i.kind in ("lds", "smem") and r in wr and r not in i.rd):
                P(i, n, f"{r} has lgkm load pending from '{pend_lg[r].text}'")
                del pend_lg[r]
        if i.need:
            for t in i.need:
                if t.startswith("lds:"):
                    tg, _, k = t[4:].partition("/")
                    if sum(1 for q in lgq if q.tag == tg) > int(k or 0):
                        P(i, n, f"lds tag {t} still outstanding")
                elif t.startswith("old:"):
                    tg, k = t[4:].split("/")
                    c = sum(1 for q in vmq if q.tag == tg)
                    if c > int(k):
                        P(i, n, f"vm tag {tg}: {c} outstanding > {k}")
                else:
                    if any(q.tag == t for q in vmq):
                        P(i, n, f"vm tag {t} still outstanding")
                    if t not in seen_tags:
                        P(i, n, f"vm tag {t} never issued")

        def dist(d, r):
            return here - d[r][0] if r in d else 1000

        if i.kind == "mfma":
            for r in i.rd:
                if dist(last_valu_wr, r) < 2:
                    P(i, n, f"VALU write {r} -> MFMA read needs 2")
            for r in i.ab:
                if r in last_mfma_wr:
                    need = 8 if last_mfma_wr[r][1].passes == 4 else 12
                    if dist(last_mfma_wr, r) < need:
                        P(i, n, f"MFMA write {r} -> MFMA A/B read needs {need}, has {dist(last_mfma_wr, r)}")
            for r in set(i.srcc + i.wr):
                if r in last_mfma_wr:
                    p = last_mfma_wr[r][1]
                    exact = (p.wr == (i.srcc if r in i.srcc else i.wr)) and p.passes == i.passes
                    if not exact:
                        need = 6 if p.passes == 4 else 10
                        if dist(last_mfma_wr, r) < need:
                            P(i, n, f"MFMA write {r} -> overlapped SrcC/D needs {need}")
        if isvalu or i.kind in ("vmem", "lds"):
            for r in i.rd + wr:
                if r in last_mfma_wr:
                    need = 8 if last_mfma_wr[r][1].passes == 4 else 12
                    if dist(last_mfma_wr, r) < need:
                        P(i, n, f"MFMA write {r} -> access needs {need}, has {dist(last_mfma_wr, r)}")
        if isvalu:
            for r in wr:
                if r in last_srcc_rd:
                    need = 3 if last_srcc_rd[r][1].passes == 4 else 7
                    if dist(last_srcc_rd, r) < need:
                        P(i, n, f"MFMA SrcC read {r} -> VALU write needs {need}")
                if dist(last_store_data, r) < 2:
                    P(i, n, f"store data {r} -> VALU write needs 2")
            for r in i.rd:
                if r in last_valu_wr:
                    p = last_valu_wr[r][1]
                    d = dist(last_valu_wr, r)
                    if p.kind == "trans" and i.kind != "trans" and d < 1:
                        P(i, n, f"trans write {r} -> VALU read needs 1")
                    if i.dpp and d < 2:
                        P(i, n, f"VALU write {r} -> DPP needs 2")
                    if i.op.startswith("v_permlane") and d < 2:
                        P(i, n, f"VALU write {r} -> permlane needs 2")
                    if (i.op.startswith("v_readfirstlane") or i.op.startswith("v_readlane")) and d < 1:
                        P(i, n, f"VALU write {r} -> readlane needs 1")
                    if (r[0] == "s" or r == "vcc") and d < 2:
                        P(i, n, f"VALU write {r} -> VALU const read needs 2")
                    if p.op.startswith("v_dot") and d < 3:
                        same_c = p.op == i.op and r in i.wr
                        if not same_c:
                            P(i, n, f"dot write {r} -> read needs 3")
            for r in wr:
                if r in last_valu_wr and last_valu_wr[r][1].op.startswith("v_dot") and last_valu_wr[r][1].op != i.op and dist(last_valu_wr, r) < 3:
                    P(i, n, f"dot write {r} -> write needs 3")
        if i.kind in ("lds", "vmem") and wr:
            for r in wr:
                if dist(last_store_data, r) < 1:
                    P(i, n, f"store data {r} -> write needs 1")
        if i.kind == "vmem":
            for r in i.rd:
                if r[0] == "s" and dist(last_valu_wr, r) < 5:
                    P(i, n, f"VALU write {r} -> VMEM read needs 5")
            if "m0" in i.rd and here - last_salu_m0 < 1:
                P(i, n, "m0 write -> DMA needs 1")
        if i.kind == "salu":
            for r in i.rd:
                if (r[0] == "s" or r == "vcc") and dist(last_valu_wr, r) < 1:
                    P(i, n, f"VALU write {r} -> SALU read (pad 1+)")

        if i.op.startswith("s_cselect") or i.op.startswith("s_cbranch_scc"):
            if scc is None or not (scc.op.startswith("s_cmp") or scc.op.startswith("s_bitcmp") or scc.op in ("s_and_b64", "s_or_b64", "s_andn2_b32") or scc.op == "s_and_b32" and i.op.startswith("s_cbranch")):
                P(i, n, f"SCC last written by '{scc.text if scc else None}'")
        if i.op == "s_addc_u32" and (scc is None or scc.op != "s_add_u32"):
            P(i, n, "addc without add")
        if i.kind == "salu" and not i.op.startswith(NOSCC):
            scc = i
        pos += i.nop
        if i.kind == "wait":
            if i.vm is not None:
                while len(vmq) > i.vm:
                    q = vmq.pop(0)
                    for r in q.wr:
                        if pend_vm.get(r) is q:
                            del pend_vm[r]
            if i.lg is not None:
                if any(q.kind == "smem" for q in lgq) and i.lg != 0:
                    P(i, n, "counted lgkmcnt with SMEM outstanding")
                while len(lgq) > i.lg:
                    q = lgq.pop(0)
                    for r in q.wr:
                        if pend_lg.get(r) is q:
                            del pend_lg[r]
        elif i.kind == "vmem":
            vmq.append(i)
            maxvm = max(maxvm, len(vmq))
            if len(vmq) > 63:
                P(i, n, "more than 63 vm ops outstanding")
            if i.tag:
                seen_tags.add(i.tag)
            for r in i.wr:
                pend_vm[r] = i
            if i.op.startswith("buffer_store_dwordx4") or i.op.startswith("buffer_store_dwordx3"):
                for r in regs_of(i.text.split(None, 1)[1].split(",")[0]):
                    last_store_data[r] = (pos, i)
        elif i.kind in ("lds", "smem"):
            lgq.append(i)
            for r in i.wr:
                pend_lg[r] = i
        if isvalu:
            for r in wr:
                last_valu_wr[r] = (pos, i)
                last_mfma_wr.pop(r, None)
        elif i.kind == "mfma":
            for r in i.wr:
                last_mfma_wr[r] = (pos, i)
                last_valu_wr.pop(r, None)
            for r in i.srcc:
                last_srcc_rd[r] = (pos, i)
        elif i.kind == "salu":
            for r in i.wr:
                last_valu_wr.pop(r, None)
            if "m0" in i.wr:
                last_salu_m0 = pos
        else:
            for r in i.wr:
                last_valu_wr.pop(r, None)
                last_mfma_wr.pop(r, None)
    return probs


def est_cycles(ins):
    t = 0
    pipe = 0
    prev = None
    shadow = False
    for i in ins:
        if i.kind == "label":
            continue
        if i.kind == "mfma":
            t = max(t, pipe)
            pipe = t + 4 * i.passes
            c = 12 if i.op.startswith("v_smfmac") else (4 if "1k" in i.op else 8)
            t += c
            shadow = c >= 8
        else:
            if i.kind in ("salu", "wait") and shadow and i.op not in ("s_barrier",) and i.nop == 1:
                pass
            elif i.op == "s_barrier":
                t += 36
            elif i.op == "s_nop":
                t += 4 * i.nop
            else:
                t += i.cost()
                if i.kind in ("lds", "vmem") and prev is not None and prev.kind in ("valu", "trans"):
                    t += 8
                if i.op.startswith("buffer_store_dwordx4"):
                    t += 16
            shadow = False
        prev = i
    return max(t, pipe)


def auto_vm(traces):
    best = {}
    for tr in traces:
        ops = []
        for i in tr:
            if i.kind == "vmem":
                ops.append(i.tag)
            elif i.kind == "wait" and i.auto:
                last = -1
                for k in range(len(ops) - 1, -1, -1):
                    if ops[k] in i.auto:
                        last = k
                        break
                n = min(63, len(ops) - 1 - last) if last >= 0 else 63
                best[id(i)] = (i, min(n, best.get(id(i), (i, 63))[1]))
    for i, n in best.values():
        i.vm = n
        i.text = re.sub(r"vmcnt\(\d+\)", f"vmcnt({n})", i.text)


import subprocess

_PROMOTE = ("v_mul_f32", "v_add_f32", "v_exp_f32", "v_rcp_f32", "v_mov_b32", "v_lshlrev_b32", "v_max_f32", "v_sub_f32", "v_rsq_f32", "v_min_f32",
            "v_add_u32", "v_and_b32", "v_lshrrev_b32", "v_xor_b32")


def ins_sizes(ins):
    texts = sorted({i.text for i in ins if i.kind != "label" and "L_" not in i.text})
    r = subprocess.run(["llvm-mc", "-triple=amdgcn-amd-amdhsa", "-mcpu=gfx950", "--show-encoding"],
                       input="\n".join(texts) + "\n", capture_output=True, text=True)
    enc = re.findall(r"encoding: \[([^\]]*)\]", r.stdout)
    assert len(enc) == len(texts), r.stderr[:500]
    size = {t: len(e.split(",")) for t, e in zip(texts, enc)}
    for i in ins:
        if i.kind != "label" and "L_" in i.text:
            size[i.text] = 4 if i.op.startswith("s_") else 8
    return size


def align_pass(segs, names, nopsegs=()):
    size = ins_sizes([i for s in segs for i in s.ins])
    off = 0
    for s in segs:
        out = []
        run = []
        for k, i in enumerate(s.ins):
            if i.kind == "label":
                m = re.match(r"\.p2align (\d+)", i.text)
                if m:
                    a = 1 << int(m.group(1))
                    off = (off + a - 1) // a * a
                    run = []
                out.append(i)
                continue
            n = size[i.text]
            if n == 8 and off % 8 and s.name in names:
                c = [x for x in run if x.op in _PROMOTE and not x.idx]
                if c:
                    x = c[-1]
                    y = Ins(x.text.replace(x.op, x.op + "_e64", 1), tag=x.tag)
                    out[max(j for j, z in enumerate(out) if z is x)] = y
                    off += 4
                elif s.name in nopsegs and sum(1 for z in s.ins[k:k + 8] if z.kind != "label" and size[z.text] == 8) == 8:
                    out.append(Ins("s_nop 0"))
                    off += 4
            out.append(i)
            off += n
            run = run + [i] if n == 4 else []
        s.ins = out
```

```python
import math, struct, sys
from asmlib import Ins, Seg, check_trace, est_cycles, auto_vm, align_pass
from sched import Timeline, Item, LAT

NAME = "parallel_sum__grouped_kv_mqa__geglu_ffn__prompt"


def f32(x):
    return "0x%08x" % struct.unpack("<I", struct.pack("<f", x))[0]


LOG2E = 1.4426950408889634
K0 = 2 * LOG2E * math.sqrt(2 / math.pi)
K1 = K0 * 0.044715
ALPHA = K1 ** (1.0 / 3.0)
K0P = K0 / ALPHA
CK = LOG2E / math.sqrt(18.0) / ALPHA ** 2
MOFF = 98.0
OOB = 0x40000000

SLOT = 36864
KVS0, KVS1, KVST = 110592, 131072, 20480
WS_KV, WS_FLAG, WS_HX, WS_OM, WS_PART, WS_STAMP = 0, 0x40000, 0x80000, 0x300000, 0x600000, 0x1C00000
WS_SIZE = 0x2000000
PSTR = 0x120000
DD = 20

sX, sG, sU, sD, sWS, sOUT, sDBG, sQ, sKV, sWO, sPF = 8, 12, 16, 20, 24, 28, 32, 36, 40, 44, 72
sW, sR, sS, sROLE, sE1, sE2 = 76, 77, 78, 79, 80, 81
sM0W, sA, sC0, sC1, sINC, sIT, sHI, sNK, sT0, sT1, sT2, sT3 = 82, 83, 84, 85, 86, 87, 88, 89, 90, 91, 92, 93
sST, sFL, sPFO, sPOL, sSTN, sFLN = 94, 95, 96, 97, 98, 99
pG, pU, sDM, sDG, sINN, sNRN = 48, 50, 56, 60, 68, 69
sMASK = 4
sMK2 = 6


def srd(n):
    return f"s[{n}:{n + 3}]"


vL, vT0, vT1, vT2, vT3 = 1, 2, 3, 4, 5
vL16, vFLG = 6, 7
vRB = 8
vDM, vPF, vPOL, vONE = 24, 25, 26, 27
vTMP = 20
vDN = 28
vGL, vG, vU, vH = 32, 64, 96, 128
vLO, vRAW = 40, 112


def lo_raw(n):
    return (40 + 4 * n, 76 + 4 * n) if n < 9 else (112 + 4 * (n - 9), 148 + 4 * (n - 9))


aXN, aFR, aH0 = 0, 144, 216
vKD = 208


def vr(a, n=4):
    return f"v[{a}:{a + n - 1}]" if n > 1 else f"v{a}"


def ar(a, n=4):
    return f"a[{a}:{a + n - 1}]" if n > 1 else f"a{a}"


def xn(u, k):
    return ar(aXN + 4 * (18 * u + k))


def frag(gam, i):
    return aFR + 36 * (gam % 2) + 4 * i


class Gen:
    def __init__(self, C=1, stamps=False, xpf=True, wpf=True, **kw):
        self.o = kw
        self.late = kw.get('late', 0)
        self.defer = kw.get('defer', 0) if self.late else 0
        self.deferred = []
        self.C = C
        self.stamps = stamps
        self.xpf = xpf
        self.wpf = wpf
        self.segs = []
        self.nstamp = {}

    def seg(self, name):
        s = Seg(name)
        self.segs.append(s)
        return s

    def stamp(self, s, k, last=False):
        if not self.stamps or (self.o.get("minst") and not last):
            return
        s(f"""s_waitcnt lgkmcnt(0)
        s_memtime s[52:53]
        s_memrealtime s[54:55]
        s_waitcnt lgkmcnt(0)
        v_writelane_b32 v0, s52, {2 * k}
        v_writelane_b32 v0, s54, {2 * k + 1}""")

    def stamp_flush(self, s):
        if not self.stamps:
            return
        s(f"""s_lshl_b32 s48, s2, 2
        s_add_u32 s48, s48, s{sW}
        s_lshl_b32 s48, s48, 8
        s_add_u32 s48, s48, {WS_STAMP}
        v_lshlrev_b32 v{vT0}, 2, v{vL}
        buffer_store_dword v0, v{vT0}, {srd(sWS)}, s48 offen""")

    def std_reads(self, gam0, pos0, slot, tag):
        R = []
        n = 0
        for ct in range(4):
            for i in range(9):
                for h in range(2):
                    f = frag(gam0 + ct, i) + 2 * h
                    off = slot * SLOT + 4096 * i + 2048 * h
                    ins = Ins(f"ds_read_b64_tr_b16 {ar(f, 2)}, v{vRB + 4 * (off // 65536) + ct} offset:{off % 65536}", tag=tag)
                    g0 = pos0 + 18 * ct
                    R.append(Item("r", ins, pos0 - DD + n, earliest=g0 - 27 + i, deadline=g0 + i - LAT - 1))
                    n += 1
        return R

    def std_mfmas(self, tl, gam0, pos0, acc, bfun, zero):
        for ct in range(4):
            for u in range(2):
                for i in range(9):
                    c = vr(acc + 4 * (2 * ct + u))
                    cin = "0" if (zero and i == 0) else c
                    tl.m[pos0 + 18 * ct + 9 * u + i] = Ins(f"v_mfma_f32_16x16x32_bf16 {c}, {ar(frag(gam0 + ct, i))}, {bfun(u, i)}, {cin}")

    def barrier(self, tl, p, vmtags, ldstag):
        g = tl.gap(p)
        g.shadow.append(Ins("s_waitcnt vmcnt(63) lgkmcnt(6)", auto=vmtags))
        g.bar.append(Ins("s_barrier", need=list(vmtags) + [f"lds:{ldstag}/6"]))

    def dmas(self, tl, stage, voff, first, inc, tag, srdn=None, p0=None, step=8):
        for i in range(9):
            p = (72 * (stage - 3) + 7 if p0 is None else p0) + step * i
            m0 = f"s_add_u32 m0, s{sM0W}, {(stage % 4) * SLOT + 4096 * i}"
            if srdn is not None:
                sh = [m0, first[0] if (i == 0 and first) else f"s_add_u32 s{sA}, s{sA}, {inc}"]
                op = f"buffer_load_dwordx4 v{voff}, {srd(srdn)}, s{sA} offen lds"
            else:
                sh = [m0] + (first if (i == 0 and first) else [f"s_add_u32 s{sDM}, s{sDM}, {inc}", f"s_addc_u32 s{sDM + 1}, s{sDM + 1}, 0"])
                op = f"buffer_load_dwordx4 v{voff}, {srd(sDM)}, 0 offen lds"
            for k, t in enumerate(sh):
                tl.gap(p - len(sh) + 1 + k).shadow.append(Ins(t))
            tl.gap(p).mem.append(Ins(op, tag=tag))

    def first_dmas(self, tl, p0):
        self.dmas(tl, 1, vDM, None, f"s{sINC}", "st1", p0=p0, step=4)
        self.dmas(tl, 2, vDM, [f"s_add_u32 s{sDM}, s{sU}, s{sC0}", f"s_addc_u32 s{sDM + 1}, s{sU + 1}, 0"], f"s{sINC}", "st2", p0=p0 + 36, step=4)
        self.dmas(tl, 3, vDM, None, f"s{sINC}", "st3", p0=p0 + (73 if p0 > 0 else 75), step=(4 if p0 > 0 else 5))

    def shadows(self, tl, p, seq):
        for t in seq:
            tt = t if isinstance(t, tuple) else (t,)
            while any(tl.gap(p + k).shadow for k in range(len(tt))):
                p += 1
            for x in tt:
                tl.gap(p).shadow.append(Ins(x))
                p += 1
        return p

    def gelu_items(self, base, t0, t1, idx, hreg):
        raw = []
        for j in range(8):
            rel = base + 72 + 9 * j + 8 + 4
            dl = base + 288 + 9 * j - 1
            g, t = vG + 4 * j, vGL + 4 * j
            for e in range(4):
                raw.append(("v", [Ins(f"v_fma_f32 v{t + e}, -v{g + e}, v{g + e}, s{sNK}")], rel, dl))
            for e in range(4):
                raw.append(("v", [Ins(f"v_mul_f32 v{t + e}, v{t + e}, v{g + e}")], rel, dl))
            for e in range(4):
                raw.append(("v", [Ins(f"v_exp_f32 v{t + e}, v{t + e}")], rel, dl))
            for e in range(4):
                raw.append(("v", [Ins(f"v_add_f32 v{t + e}, 1.0, v{t + e}")], rel, dl))
            for e in range(4):
                raw.append(("v", [Ins(f"v_rcp_f32 v{t + e}, v{t + e}")], rel, dl))
            for e in range(4):
                raw.append(("v", [Ins(f"v_mul_f32 v{t + e}, v{t + e}, v{g + e}")], rel, dl))
        for j in (0, 2, 4, 6, 1, 3, 5, 7):
            ct, u = j // 2, j % 2
            rel = base + 216 + 9 * j + 8 + 4
            dl = base + 288 + 144 + 9 * j - 1
            t, uu = vGL + 4 * j, vU + 4 * j
            h = hreg + 8 * (ct // 2) + 4 * u + 2 * (ct % 2)
            for e in range(4):
                raw.append(("v", [Ins(f"v_mul_f32 v{t + e}, v{t + e}, v{uu + e}")], rel, dl))
            if idx:
                offs = [16 * k for k in range(8)]
                raw.append(("x", [Ins(f"v_cvt_pk_bf16_f32 v{h + e}, v{t + 2 * e}, v{t + 2 * e + 1}", idx=offs) for e in range(2)], rel, dl))
            else:
                for e in range(2):
                    raw.append(("v", [Ins(f"v_cvt_pk_bf16_f32 v{h + e}, v{t + 2 * e}, v{t + 2 * e + 1}")], rel, dl))
        items = []
        for k, ins, rel, dl in raw:
            if k == "x":
                items.append(Item("x", ins, 0, rel, dl, pre=Ins(f"s_set_gpr_idx_on s{sHI}, 8"), post=Ins("s_set_gpr_idx_off")))
            else:
                items.append(Item("v", ins, 0, rel, dl))
        for c, i in enumerate(items):
            i.target = t0 + (t1 - t0) * c / len(items)
        return items

    def prologue(self):
        C = self.C
        s = self.seg("entry")
        if self.stamps:
            s("s_memtime s[96:97]\ns_memrealtime s[98:99]")
        s(f"""s_cmp_ge_u32 s2, 256
        s_cbranch_scc1 L_end
        s_load_dwordx16 s[48:63], s[0:1], 0
        s_load_dwordx8 s[64:71], s[0:1], 64
        v_lshrrev_b32 v{vT0}, 6, v0
        v_and_b32 v{vL}, 63, v0
        v_readfirstlane_b32 s{sW}, v{vT0}
        s_and_b32 s{sT0}, s2, 7
        s_lshr_b32 s{sT1}, s2, 3
        s_bitcmp1_b32 s2, 3
        s_cselect_b32 s{sROLE}, 1, 0
        s_lshr_b32 s{sT1}, s{sT1}, 1""")
        lc = C.bit_length() - 1
        s(f"""s_and_b32 s{sS}, s{sT0}, {8 // C - 1}
        s_lshl_b32 s{sS}, s{sS}, {lc}
        s_and_b32 s{sT2}, s{sT1}, {C - 1}
        s_add_u32 s{sS}, s{sS}, s{sT2}
        s_lshl_b32 s{sE1}, s{sT2}, 1
        s_add_u32 s{sE1}, s{sE1}, s{sROLE}
        s_lshr_b32 s{sE2}, s{sT1}, {lc}
        s_lshr_b32 s{sR}, s{sT0}, {3 - lc}
        s_lshl_b32 s{sR}, s{sR}, {4 - lc}
        s_add_u32 s{sR}, s{sR}, s{sE2}
        s_lshl_b32 s{sM0W}, s{sW}, 10
        v_lshlrev_b32 v{vL16}, 4, v{vL}
        v_lshrrev_b32 v{vT0}, 3, v{vL}
        v_and_b32 v{vT1}, 7, v{vL}
        s_lshl_b32 s{sT0}, s{sW}, 5
        v_add_u32 v{vT2}, s{sT0}, v{vT0}
        v_mul_u32_u24 v{vT2}, 1152, v{vT2}
        v_lshl_add_u32 v{vTMP}, v{vT1}, 4, v{vT2}
        v_and_b32 v{vT0}, 48, v{vL}
        v_xor_b32 v28, v{vTMP}, v{vT0}
        v_xor_b32 v29, 64, v28
        v_add_u32 v29, 9216, v29
        v_add_u32 v30, 18432, v28
        v_add_u32 v31, 18432, v29
        s_mul_i32 s{sT0}, s{sR}, 147456
        s_mul_i32 s{sT1}, s{sS}, 1152""")
        if self.o.get("cpf", 0):
            s(f"""s_getpc_b64 s[100:101]
            L_pc:
            s_lshr_b32 s{sT2}, s2, 3
            s_lshl_b32 s{sT2}, s{sT2}, 2
            s_add_u32 s{sT2}, s{sT2}, s{sW}
            v_min_u32 v32, {self.o.get('cln', 5) - 1}, v{vL}
            v_lshl_add_u32 v32, v32, 7, s{sT2}
            v_lshlrev_b32 v32, 7, v32
            v_min_u32 v32, L_end-L_pc, v32
            v_mov_b32 v33, s101
            v_add_co_u32 v32, vcc, s100, v32
            s_nop 1
            v_addc_co_u32 v33, vcc, 0, v33, vcc""")
            if not self.o.get("cpos", 0):
                s(f"global_load_dword v{vT3}, v[32:33], off", tag="pf")
        s("s_waitcnt lgkmcnt(0)")
        self.stamp0(s)

        def mk(n, src, offreg, size, sub=False):
            s = self.segs[-1]
            if offreg is None:
                s(f"s_mov_b32 s{n}, s{src}\ns_and_b32 s{n + 1}, s{src + 1}, 0xffff")
            else:
                s(f"s_add_u32 s{n}, s{src}, s{offreg}\ns_addc_u32 s{n + 1}, s{src + 1}, 0\ns_and_b32 s{n + 1}, s{n + 1}, 0xffff")
            if sub:
                s(f"s_sub_u32 s{n + 2}, {size}, s{offreg}")
            else:
                s(f"s_mov_b32 s{n + 2}, {size}")
            s(f"s_mov_b32 s{n + 3}, 0x20000")

        tlb2 = self.o.get("tlb2", 0)

        def touch():
            s = self.segs[-1]
            d = f"s{sIT}"
            s(f"s_cmp_eq_u32 s{sROLE}, 0\ns_cbranch_scc1 L_tl4\ns_cmp_ge_u32 s{sW}, 2\ns_cbranch_scc1 L_tl2")
            k = self.seg("tl0")
            k(f"""s_cmp_eq_u32 s{sW}, 0
            s_cselect_b32 s6, s60, s62
            s_cselect_b32 s7, s61, s63
            s_cselect_b32 s4, s50, s56
            s_cselect_b32 s5, s51, s57
            s_mov_b32 s{sT2}, 0x200000
            s_mov_b32 s{sT3}, 0x400000
            s_mov_b32 s{sA}, {5308416 - 64}
            s_load_dword {d}, s[6:7], 0
            s_load_dword {d}, s[6:7], s{sT2}
            s_load_dword {d}, s[6:7], s{sT3}
            s_load_dword {d}, s[6:7], s{sA}
            s_load_dword {d}, s[4:5], 0
            s_load_dword {d}, s[4:5], {663552 - 64}
            s_branch L_tl4""")
            k = self.seg("tl2")
            k(f"""L_tl2:
            s_cmp_eq_u32 s{sW}, 3
            s_cbranch_scc1 L_tl3
            s_mul_i32 s{sT2}, s{sS}, 663552
            s_add_u32 s{sT3}, s{sT2}, {663552 - 64}
            s_load_dword {d}, s[52:53], 0
            s_load_dword {d}, s[54:55], 0
            s_load_dword {d}, s[64:65], s{sT2}
            s_load_dword {d}, s[64:65], s{sT3}
            s_load_dword {d}, s[66:67], s{sT0}
            s_branch L_tl4""")
            k = self.seg("tl3")
            k(f"""L_tl3:
            s_mov_b32 s{sT2}, {WS_HX + 0x200000}
            s_mov_b32 s{sT3}, {WS_OM + 0x240000}
            s_mul_i32 s{sA}, s{sR}, {PSTR}
            s_add_u32 s{sA}, s{sA}, {WS_PART - 128}
            s_load_dword {d}, s[70:71], {WS_FLAG - 128}
            s_load_dword {d}, s[70:71], s{sT2}
            s_load_dword {d}, s[70:71], s{sT3}
            s_load_dword {d}, s[70:71], s{sA}
            s_add_u32 s{sA}, s{sA}, {8 * 147456 + 128}
            s_load_dword {d}, s[70:71], s{sA}""")
            k = self.seg("entry1")
            k("L_tl4:")
            return k

        if tlb2 == 1:
            s = touch()
        mk(sX, 48, sT0, 147456)
        vXO = 28
        xl = []
        for u in range(2):
            for c in range(9):
                for r2 in range(2):
                    rg = 2 * u + r2
                    xl.append([Ins(f"s_add_u32 m0, s{sM0W}, {rg * SLOT + 4096 * c - 128 * c}"),
                               Ins(f"buffer_load_dwordx4 v{vXO + rg}, {srd(sX)}, 0 offen offset:{128 * c} lds", tag=f"x{9 * u + c}")])
        NUP = self.o.get("nup", 12)
        xpos = self.o.get("xpos", 0)
        early = self.o.get("early", 0)

        def xpref():
            per = 144 // C
            n = (per + 63) // 64
            lanes = per // n
            s(f"""s_lshl_b32 s{sT2}, s{sE1}, 2
            s_add_u32 s{sT2}, s{sT2}, s{sW}
            s_mul_i32 s{sT2}, s{sT2}, {per * 128}
            v_min_u32 v{vT2}, {lanes - 1}, v{vL}
            v_lshlrev_b32 v{vT2}, 7, v{vT2}""")
            for i in range(n):
                s(f"buffer_load_dword v{vT3}, v{vT2}, {srd(sX)}, s{sT2} offen", tag="pf")
                if i + 1 < n:
                    s(f"s_add_u32 s{sT2}, s{sT2}, {lanes * 128}")

        def xfirst(a, b):
            s = self.segs[-1]
            for q in xl[a:b]:
                s.add(q[0])
                if len(q) > 1:
                    s("s_nop 0")
                    s.add(q[1])

        if self.o.get("cpos", 0):
            xl.insert(self.o["cpos"], [Ins(f"global_load_dword v{vT3}, v[32:33], off", tag="pf")])
        xsplit = self.o.get("xsplit", 0)
        if xsplit:
            n = 72 // C
            s(f"""s_mul_i32 s{sT2}, s{sE1}, {n * 128}
            s_mul_i32 s{sT3}, s{sW}, 36864
            s_add_u32 s{sT2}, s{sT2}, s{sT3}
            v_min_u32 v32, {n - 1}, v{vL}
            v_lshl_add_u32 v32, v32, 7, s{sT2}
            v_add_u32 v207, 18432, v32""")
            s(f"buffer_load_dword v{vT3}, v32, {srd(sX)}, 0 offen", tag="pf")
            xl.insert(xsplit, [Ins(f"buffer_load_dword v{vT3}, v207, {srd(sX)}, 0 offen", tag="pf")])
        xfirst(0, min(xpos, NUP))
        if self.xpf:
            xpref()
        if not early:
            xfirst(min(xpos, NUP), NUP)
        if tlb2 == 2:
            s = touch()
        if self.stamps and not self.o.get("minst") and not tlb2:
            s("s_memtime s[96:97]\ns_waitcnt lgkmcnt(0)\nv_writelane_b32 v0, s96, 52")
        tlb = self.o.get("tlb", 0)
        if tlb:
            step = 5308416 // tlb // 4 // 64 * 64
            s(f"s_mul_i32 s{sA}, s{sW}, {step}")
            for i in range(tlb):
                s(f"s_load_dword s100, s[60:61], s{sA}\ns_load_dword s100, s[62:63], s{sA}\ns_add_u32 s{sA}, s{sA}, {4 * step}")
            s("s_load_dword s100, s[50:51], 0\ns_load_dword s100, s[52:53], 0\ns_load_dword s100, s[54:55], 0")
        mk(sG, 60, sT1, 5308416, sub=True)
        mk(sU, 62, sT1, 5308416, sub=True)
        s(f"""s_bitcmp1_b32 s{sS}, 1
        s_cselect_b32 s{sKV}, s54, s52
        s_cselect_b32 s{sKV + 1}, s55, s53
        s_and_b32 s{sKV + 1}, s{sKV + 1}, 0xffff
        s_mov_b32 s{sKV + 2}, 20736
        s_mov_b32 s{sKV + 3}, 0x20000
        s_cmp_ge_u32 s{sW}, 2
        s_cselect_b32 s{sPF}, s{sU}, s{sG}
        s_cselect_b32 s{sPF + 1}, s{sU + 1}, s{sG + 1}
        s_mov_b32 s{sPF + 2}, s{sG + 2}
        s_mov_b32 s{sPF + 3}, 0x20000
        s_cmp_eq_u32 s{sROLE}, 0
        s_cselect_b32 s{sC0}, 128, 0""")
        npf = 1 if C <= 2 else 2
        self.npf = npf
        lanes = 18 * C // npf
        self.pfstep = lanes * (32 // C)
        s(f"""s_and_b32 s{sT0}, s{sW}, 1
        s_lshl_b32 s{sT1}, s{sE2}, 1
        s_add_u32 s{sT0}, s{sT0}, s{sT1}
        v_lshlrev_b32 v{vT0}, {5 - lc}, v{vL}
        v_add_u32 v{vT0}, s{sT0}, v{vT0}
        v_mul_u32_u24 v{vPF}, 9216, v{vT0}
        v_mul_u32_u24 v{vPOL}, 1152, v{vT0}
        v_mov_b32 v{vT1}, {OOB}
        v_cmp_gt_u32 vcc, {lanes}, v{vL}
        s_nop 1
        v_cndmask_b32 v{vPF}, v{vT1}, v{vPF}, vcc
        v_cndmask_b32 v{vPOL}, v{vT1}, v{vPOL}, vcc""")
        spf = self.o.get("spf", 0)
        nsb = self.o.get("nsb", 3) if spf else 0

        def sbatch(b):
            s = self.segs[-1]
            if b >= nsb:
                return
            s(f"""s_lshl_b32 s{sT0}, s{sE2}, 2
            s_add_u32 s{sT0}, s{sT0}, s{sW}
            s_mul_i32 s{sT0}, s{sT0}, {spf}
            s_add_u32 s{sT0}, s{sT0}, {b * spf * 64 // C}
            s_cmp_ge_u32 s{sT0}, {576 - spf + 1}
            s_cselect_b32 s100, s{sU}, s{sG}
            s_cselect_b32 s101, s{sU + 1}, s{sG + 1}
            s_cselect_b32 s{sT1}, {576 // spf * spf}, 0
            s_sub_u32 s{sT0}, s{sT0}, s{sT1}
            s_min_u32 s{sT0}, s{sT0}, {576 - spf}
            s_mul_i32 s{sT0}, s{sT0}, 9216
            s_add_u32 s{sT0}, s{sT0}, s{sC0}
            s_add_u32 s100, s100, s{sT0}
            s_addc_u32 s101, s101, 0""")
            for j in range(spf):
                s(f"s_load_dword s{sIT}, s[100:101], {9216 * j}")

        sbatch(0)
        n2 = self.o.get("nup2", NUP)
        kvpf = f"""s_and_b32 s{sT2}, s{sE2}, 3
        s_lshl_b32 s{sT2}, s{sT2}, 2
        s_add_u32 s{sT2}, s{sT2}, s{sW}
        s_mul_i32 s{sT2}, s{sT2}, {11 * 128}
        s_cmp_eq_u32 s{sROLE}, {1 if early == 2 else 0}
        s_cselect_b32 s{sT2}, {OOB}, s{sT2}
        v_min_u32 v{vT2}, 10, v{vL}
        v_lshlrev_b32 v{vT2}, 7, v{vT2}"""
        if early:
            s(kvpf)
            if early >= 2:
                s("s_cbranch_scc1 L_nopf")
                s = self.seg("pfe")
            s(f"buffer_load_dword v{vT3}, v{vT2}, {srd(sKV)}, s{sT2} offen", tag="pf")
            for i in range(npf):
                s(f"s_add_u32 s{sT0}, s{sC0}, {i * self.pfstep * 9216}")
                s(f"buffer_load_dword v{vT3}, v{vPF}, {srd(sPF)}, s{sT0} offen", tag="pf")
                if early >= 2:
                    s(f"s_mov_b32 s{sT0}, {(128 if early == 3 else 0) + i * self.pfstep * 9216}")
                    s(f"buffer_load_dword v{vT3}, v{vPF}, {srd(sPF)}, s{sT0} offen", tag="pf")
            if early >= 2:
                s = self.seg("entry2")
                s("L_nopf:")
            xfirst(min(xpos, NUP), NUP)
        s(f"s_mul_i32 s{sT0}, s{sR}, 147456")
        mk(sOUT, 66, sT0, 147456)
        s(f"s_mul_i32 s{sT0}, s{sS}, 663552\ns_mul_i32 s{sT1}, s{sS}, 144")
        mk(sD, 64, sT0, 663552)
        mk(sQ, 50, sT1, 663552, sub=True)
        mk(sWS, 70, None, WS_SIZE)
        mk(sDBG, 68, None, 256)
        mk(sWO, 56, None, 663552)
        s(f"""s_add_u32 s{sT0}, s{sC0}, {8 * 32 * 9216}
        s_add_u32 s{sDM}, s{sG if self.late else sU}, s{sT0}
        s_addc_u32 s{sDM + 1}, s{(sG if self.late else sU) + 1}, 0
        s_mov_b32 s{sDM + 2}, {31 * 9216 + 128}
        s_mov_b32 s{sDM + 3}, 0x20000""")
        s(f"""v_lshrrev_b32 v{vT0}, 2, v{vL}
        v_lshlrev_b32 v{vT0}, 7, v{vT0}
        v_and_b32 v{vT1}, 3, v{vL}
        v_lshl_add_u32 v{vT0}, v{vT1}, 3, v{vT0}
        v_bfe_u32 v{vT1}, v{vL}, 3, 2""")
        for ct in range(4):
            s(f"""v_xor_b32 v{vT2}, {ct}, v{vT1}
            v_lshl_add_u32 v{vRB + ct}, v{vT2}, 5, v{vT0}
            v_add_u32 v{vRB + 4 + ct}, 0x10000, v{vRB + ct}
            v_add_u32 v{vRB + 8 + ct}, 0x20000, v{vRB + ct}""")
        s(f"""v_bfe_u32 v{vT0}, v{vL}, 1, 2
        v_lshrrev_b32 v{vT1}, 4, v{vL}
        v_xor_b32 v{vTMP + 2}, v{vT0}, v{vT1}
        v_and_b32 v{vT1}, 1, v{vL}
        v_lshlrev_b32 v{vT1}, 4, v{vT1}
        v_lshl_add_u32 v{vTMP + 1}, v{vTMP + 2}, 5, v{vT1}""")
        vXB = (vFLG, vONE)
        aONE = 252
        s(f"""v_lshrrev_b32 v{vT0}, 5, v{vL}
        v_bfe_u32 v{vT1}, v{vL}, 3, 2
        v_lshl_add_u32 v{vT0}, v{vT0}, 3, v{vT1}
        s_and_b32 s{sT0}, s{sW}, 1
        s_lshl_b32 s{sT0}, s{sT0}, 4
        s_lshr_b32 s{sT1}, s{sW}, 1
        s_lshl_b32 s{sT1}, s{sT1}, 2
        s_add_u32 s{sT0}, s{sT0}, s{sT1}
        v_add_u32 v{vTMP + 3}, s{sT0}, v{vT0}
        v_mul_u32_u24 v{vDM}, 9216, v{vTMP + 3}
        v_add_u32 v{vDM}, v{vDM}, v{vTMP + 1}
        s_mov_b32 s{sNK}, {f32(-K0P)}
        s_mov_b32 s{sMASK}, 0
        s_mov_b32 s{sMASK + 1}, -1
        s_mov_b32 s{sINC}, {32 * 9216}
        v_bfe_u32 v{vT0}, v{vL}, 1, 3
        v_lshrrev_b32 v{vT1}, 4, v{vL}
        v_xor_b32 v{vT0}, v{vT0}, v{vT1}
        v_and_b32 v{vT2}, 7, v{vL}
        v_lshl_add_u32 v{vT0}, v{vT2}, 3, v{vT0}
        v_lshl_add_u32 v{vT0}, v{vT0}, 4, s{sM0W}
        v_bfe_u32 v{vT2}, v{vL}, 3, 1
        v_mul_u32_u24 v{vT2}, {SLOT}, v{vT2}
        v_add_u32 v{vXB[0]}, v{vT0}, v{vT2}
        v_xor_b32 v{vXB[1]}, 64, v{vXB[0]}
        v_and_b32 v{vT0}, 15, v{vL}
        v_lshlrev_b32 v{vT1}, 2, v{vT1}
        v_sub_u32 v{vT0}, v{vT0}, v{vT1}
        v_mov_b32 v{vT1}, 0x3f803f80""")
        for j in range(4):
            s(f"v_cmp_eq_u32 s[{sDG + 2 * j}:{sDG + 2 * j + 1}], {j}, v{vT0}\nv_accvgpr_write_b32 a{aONE + j}, v{vT1}")
        if not early:
            s(kvpf)
        if not tlb2:
            self.stamp(s, 27)
        npre = self.o.get("npre", 0)
        if npre:
            s(f"s_cmp_eq_u32 s{sROLE}, 1\ns_cbranch_scc1 L_p1pre")
            self.seg("p0x")
            xfirst(NUP, NUP + npre)
            self.segs[-1]("s_branch L_ln")
            self.p1pre()
            k = self.segs[-1]
            old, k.ins = k.ins, [Ins("L_p1pre:")]
            step = len(old) // npre
            pos = [step * (j + 1) - 1 for j in range(npre)]
            j = 0
            for n, i in enumerate(old):
                k.add(i)
                nxt = old[n + 1] if n + 1 < len(old) else None
                dead = True
                for y in old[n + 1:]:
                    if y.op.startswith("s_cselect") or y.op.startswith("s_addc"):
                        dead = False
                        break
                    if y.kind == "salu" and not y.op.startswith(("s_mov", "s_mul", "s_nop")):
                        break
                if j < npre and n >= pos[j] and dead:
                    q = xl[NUP + j]
                    k.extend([Ins(q[0].text), Ins("s_nop 0"), Ins(q[1].text, tag=q[1].tag)] if len(q) > 1 else [Ins(q[0].text, tag=q[0].tag)])
                    j += 1
            assert j == npre
            NUP += npre
            n2 = max(n2, NUP)
        else:
            s(f"s_cmp_eq_u32 s{sROLE}, 0\ns_cbranch_scc1 L_ln")
            self.p1pre()
        s = self.seg("ln")
        s("L_ln:")
        xfirst(NUP, n2)
        NUP = n2
        if tlb or spf or tlb2:
            s("s_waitcnt lgkmcnt(0)")
        pf1, pf2 = [], []
        if self.wpf and not early:
            pf1.append([Ins(f"buffer_load_dword v{vT3}, v{vT2}, {srd(sKV)}, s{sT2} offen", tag="pf")])
            for i in range(npf if self.o.get("vpf", 1) else 0):
                pf1.append([Ins(f"s_add_u32 s{sT0}, s{sC0}, {i * self.pfstep * 9216}"),
                            Ins(f"buffer_load_dword v{vT3}, v{vPF}, {srd(sPF)}, s{sT0} offen", tag="pf")])
        if self.wpf and self.o.get("vpf", 1) == 2:
            pf1.append([Ins(f"s_cmp_eq_u32 s{sROLE}, 0"), Ins(f"s_cselect_b32 s{sT0}, 64, {OOB // 4}"), Ins(f"s_lshl_b32 s{sT0}, s{sT0}, 2"),
                        Ins(f"buffer_load_dword v{vT3}, v{vPF}, {srd(sPF)}, s{sT0} offen", tag="pf")])
        if self.wpf and self.o.get("qpf", 1) == 2:
            for i in range(npf):
                pf1.append([Ins(f"s_lshr_b32 s{sT1}, s{sW}, 1"), Ins(f"s_mul_i32 s{sT1}, s{sT1}, 140"), Ins(f"s_add_u32 s{sT1}, s{sT1}, {i * self.pfstep * 1152}"),
                            Ins(f"s_cmp_eq_u32 s{sROLE}, 0"), Ins(f"s_cselect_b32 s{sT1}, {OOB}, s{sT1}"),
                            Ins(f"buffer_load_dword v{vT3}, v{vPOL}, {srd(sQ)}, s{sT1} offen", tag="pf")])
        self.pf2 = lambda col: [x for i in range(npf) for x in (Ins(f"s_mov_b32 s{sT0}, {col + i * self.pfstep * 9216}"),
                                                                 Ins(f"buffer_load_dword v{vT3}, v{vPF}, {srd(sPF)}, s{sT0} offen", tag="pf"))]
        wl = []
        for st in range(3):
            for i in range(9):
                wl.append([Ins(f"s_add_u32 m0, s{sM0W}, {st * SLOT + 4096 * i}"),
                           Ins(f"s_mov_b32 s{sA}, s{sC0}" if (i == 0 and st % 2 == 0) else f"s_add_u32 s{sA}, s{sA}, s{sINC}"),
                           Ins(f"buffer_load_dwordx4 v{vDM}, {srd(sG if st < 2 else sU)}, s{sA} offen lds", tag=f"st{st}", need=[f"lds:xr{st // 2}"])])
        if self.late:
            wl = wl[:9] + pf1[1:]
            pf1 = pf1[:1]
            if self.o.get("kve", 1):
                xl.insert(self.o.get("kpos", 22), pf1.pop())
        pfpos = max(NUP, self.o.get("pfpos", len(xl)))
        g0 = self.o.get("g0", 0)
        w1 = self.o.get("w1", 18)
        wskip = self.o.get("wskip", 0)
        q0 = xl[NUP:pfpos] + (wl[:g0] if pfpos == len(xl) else []) + pf1 + xl[pfpos:]
        xq = self.o.get("xq", 18)
        q0 = q0[:xq] + [None] * (18 - xq) + q0[xq:]
        vSU, vGR, vK = 32, 36, 2

        def xread(u, c, hh):
            return Ins(f"ds_read_b128 {vr(lo_raw(2 * c + hh)[1])}, v{vXB[hh]} offset:{4096 * c}", tag=f"xr{u}", need=[f"x{9 * u + c}"])

        def xwait(u, c):
            return Ins("s_waitcnt vmcnt(63)", auto=[f"x{9 * u + c}"])

        def vmop(s, q, pad):
            s.extend(q[:-1])
            if pad and len(q) == 2 and "m0" in q[0].wr:
                s("s_nop 0")
            s.add(q[-1])

        kve = self.kve = self.late and self.o.get("kve", 1)

        def kvdma(s):
            s(f"s_cmp_eq_u32 s{sROLE}, 0\ns_cbranch_scc1 L_nokv")
            k = self.seg("kvdma")
            for i in range(5):
                dst = (4 * SLOT + 4096 * i if i < 4 else SLOT + 32768) if kve else 3 * SLOT + 4096 * i
                k(f"s_add_u32 m0, s{sM0W}, {dst}")
                k(f"s_mov_b32 s{sT0}, {4608 * i}")
                k(f"buffer_load_dwordx4 v{vKD}, {srd(sKV)}, s{sT0} offen lds", tag="kvimg", need=["lds:xr0" if kve else "lds:xr1"])
            s = self.seg("ln2")
            s("L_nokv:")
            return s

        for u in range(2):
            queue = q0 if u == 0 else [None] * wskip + wl[g0:w1]
            if u == 0:
                for c in range(2):
                    s.add(xwait(0, c))
                    s.extend([xread(0, c, 0), xread(0, c, 1)])
                    if c == 0:
                        self.stamp(s, 10)
            s(f"s_waitcnt lgkmcnt({0 if (u == 1 and nsb > 1) else 2})")
            for c in range(9):
                for hh in range(2):
                    n = 2 * c + hh
                    lo, r = lo_raw(n)
                    s(f"v_mfma_f32_16x16x32_bf16 {vr(vSU)}, {ar(aONE)}, {vr(r)}, {'0' if n == 0 else vr(vSU)}")
                    if hh == 0 and c + 2 < 9:
                        s.add(xwait(u, c + 2))
                        s.add(xread(u, c + 2, 0))
                    if hh == 1 and queue:
                        q = queue.pop(0)
                        if q:
                            vmop(s, q, True)
                    for j in range(4):
                        s(f"v_lshlrev_b32 v{lo + j}, 16, v{r + j}")
                    s(f"v_mfma_f32_16x16x32_bf16 {vr(vGR)}, {vr(r)}, {vr(r)}, {'0' if n == 0 else vr(vGR)}")
                    if hh == 0:
                        q = queue.pop(0) if queue else None
                        if q:
                            s.extend(q[:-1])
                        if c + 2 < 9:
                            s.add(xread(u, c + 2, 1))
                        elif q and len(q) == 2:
                            s("s_nop 0")
                        if q:
                            s.add(q[-1])
                    elif c < 8:
                        s(f"s_waitcnt lgkmcnt({2 if c + 2 < 9 else 0})")
                    for j in range(4):
                        s(f"v_and_b32 v{r + j}, 0xffff0000, v{r + j}")
            self.stamp(s, 11 + 2 * u)
            if u == 0:
                s(f"v_add_u32 v{vXB[0]}, {2 * SLOT}, v{vXB[0]}\nv_add_u32 v{vXB[1]}, {2 * SLOT}, v{vXB[1]}\ns_nop 1")
            else:
                assert not queue
                queue = wl[w1:]
                if not kve:
                    s = kvdma(s)
                s("s_nop 3" if kve else "s_nop 1")
            sbatch(1 + u)
            s(f"v_cndmask_b32 v{vGR}, 0, v{vGR}, s[{sDG}:{sDG + 1}]")
            for j in range(1, 4):
                s(f"v_cndmask_b32 v{vGR}, v{vGR}, v{vGR + j}, s[{sDG + 2 * j}:{sDG + 2 * j + 1}]")
            s(f"""v_mov_b32 v{vGR + 1}, v{vGR}
            v_mul_f32 v{vSU}, {f32(1 / 576)}, v{vSU}
            s_nop 0
            v_permlane16_swap_b32 v{vGR}, v{vGR + 1}
            v_add_f32 v{vGR}, v{vGR}, v{vGR + 1}
            v_mov_b32 v{vGR + 1}, v{vGR}
            v_mul_f32 v{vSU + 1}, v{vSU}, v{vSU}
            s_nop 0
            v_permlane32_swap_b32 v{vGR}, v{vGR + 1}
            v_add_f32 v{vGR}, v{vGR}, v{vGR + 1}
            v_mul_f32 v{vGR}, {f32(1 / 576)}, v{vGR}
            v_sub_f32 v{vGR}, v{vGR}, v{vSU + 1}
            v_max_f32 v{vGR}, 0, v{vGR}
            v_add_f32 v{vGR}, {f32(1e-5)}, v{vGR}
            v_rsq_f32 v{vGR}, v{vGR}
            s_nop 0
            v_mul_f32 v{vK}, {f32(ALPHA)}, v{vGR}
            v_mul_f32 v{vK + 1}, v{vK}, -v{vSU}""")
            for n in range(18):
                lo, r = lo_raw(n)
                k = vr(vK, 2)
                lim = 16 if u == 0 else 18
                while queue and (n % 2 == 0 or len(queue) > (lim - n) // 2):
                    vmop(s, queue.pop(0), True)
                    if len(queue) < lim - n:
                        break
                if u == 0 and kve and n == self.o.get("kvn", 12):
                    assert not queue
                    s = kvdma(s)
                if u == 0 and n == 16:
                    assert not queue
                    s.add(xwait(1, 1))
                    s.extend([xread(1, c, hh) for c in range(2) for hh in range(2)])
                for j in (0, 2):
                    s(f"v_pk_fma_f32 {vr(lo + j, 2)}, {vr(lo + j, 2)}, {k}, {k} op_sel:[0,0,1] op_sel_hi:[1,0,1]")
                    s(f"v_pk_fma_f32 {vr(r + j, 2)}, {vr(r + j, 2)}, {k}, {k} op_sel:[0,0,1] op_sel_hi:[1,0,1]")
                fin = [f"v_cvt_pk_bf16_f32 v{lo + j}, v{lo + j}, v{r + j}" for j in range(4)]
                fin += [f"v_accvgpr_write_b32 a{aXN + 4 * (18 * u + n) + j}, v{lo + j}" for j in range(4)]
                if u == 1 and n >= 18 - self.defer:
                    self.deferred.append((n, fin))
                else:
                    s("\n".join(fin))
            assert not queue
            self.stamp(s, 12 + 2 * u)
        s(f"""v_mov_b32 v{vT1}, {OOB}
        v_cmp_eq_u32 vcc, 0, v{vL}
        v_mov_b32 v{vONE}, 1
        s_nop 0
        v_cndmask_b32 v{vFLG}, v{vT1}, 0, vcc""")
        if nsb > 2:
            s("s_waitcnt lgkmcnt(0)")
        self.stamp(s, 1)
        s(f"""s_cmp_lg_u32 s{sROLE}, 0
        s_cbranch_scc1 L_p1""")

    def stamp0(self, s):
        if not self.stamps:
            return
        s(f"""s_memtime s[58:59]
        s_waitcnt lgkmcnt(0)
        v_writelane_b32 v0, s58, 38
        v_writelane_b32 v0, s96, 0
        v_writelane_b32 v0, s98, 1""")

    def p0(self):
        tl = Timeline()
        xb = lambda h: (lambda u, i: xn(u, 9 * h + i))
        for st, (acc, h) in enumerate(((vG, 0), (vG, 1), (vU, 0), (vU, 1), (vG, 0), (vG, 1))):
            self.std_mfmas(tl, 4 * st, 72 * st, acc, xb(h), h == 0)
            tl.put_reads(self.std_reads(4 * st, 72 * st, st % 4, f"r{st % 4}"))
            if st:
                self.barrier(tl, 72 * st - DD, [f"st{st % 4}"], f"r{(st - 1) % 4}")
        for st in range(3, 9):
            sl = st % 4
            first = [f"s_mov_b32 s{sDM}, s{pG if sl < 2 else pU}", f"s_mov_b32 s{sDM + 1}, s{(pG if sl < 2 else pU) + 1}"] if sl % 2 == 0 else None
            self.dmas(tl, st, vDM, first, f"s{sINC}", f"st{sl}")
        tl.gap(306).mem.append(Ins(f"buffer_load_dword v{vPOL}, off, {srd(sDBG)}, s{sPOL} sc1", tag="poll"))
        e = self.shadows(tl, 360, [f"s_mov_b32 s{sINC}, s{sINN}", f"s_mov_b32 s{sDM + 2}, s{sNRN}"])
        assert e <= 365
        tl.gap(362).valu.append(Ins(f"v_mov_b32 v{vDM}, v{vDN}"))
        self.shadows(tl, 120, [f"s_add_u32 s{sHI}, s{sHI}, 16", f"s_and_b32 s{sHI}, s{sHI}, 127", f"s_add_u32 s{sIT}, s{sIT}, 1",
                               (f"s_add_u32 s{pG}, s{pG}, 128", f"s_addc_u32 s{pG + 1}, s{pG + 1}, 0"),
                               (f"s_cmp_eq_u32 s{sIT}, 6", f"s_cselect_b32 s{sPOL}, s{sT3}, {OOB}")])
        self.shadows(tl, 224, [(f"s_add_u32 s{pU}, s{pU}, 128", f"s_addc_u32 s{pU + 1}, s{pU + 1}, 0")])
        tl.gap(287).shadow.append(Ins(f"s_cmp_lt_u32 s{sIT}, 7"))
        V = self.gelu_items(0, 85, 371, True, vH)
        pk = dict(ahead=12, pack=self.o["pack"], lagmax=4.0) if "pack" in self.o else {}
        nV0 = len(V)
        tl.fill(85, 144, V, **pk)
        nV1 = nV0 - len(V)
        tl.fill(144, 288, V, **pk)
        state = {"V": [i.ins[0].text for i in V]}
        tl.fill(288, 373, V, flush=10 ** 9, **pk)
        for p in range(288, 373):
            tl.g[p - 288] = tl.g[p]
        pre = [(p, m) for p in range(262, 268) for m in tl.gap(p).mem if m.kind == "lds"]
        state["out"] = tl.insert_lgkm_waits(268, 288, pre)
        o144 = tl.insert_lgkm_waits(0, 144, [(p - 288, m) for p, m in state["out"]])
        tl.insert_lgkm_waits(144, 268, o144)
        prew = [m for m in tl.gap(268).mem if m.kind == "lds"]
        prew += [m for p in range(269, 288) for m in tl.gap(p).ins() if m.kind == "lds" or (m.kind == "wait" and m.lg is not None)]
        s = self.seg("p0pre")
        if self.wpf:
            for c in range(self.o.get("npf0", 1)):
                s.extend(self.pf2(256 + 128 * c))
            if self.o.get("qpf", 1) == 3:
                for i in range(self.npf):
                    s(f"s_lshr_b32 s{sT1}, s{sW}, 1\ns_mul_i32 s{sT1}, s{sT1}, 140\ns_add_u32 s{sT1}, s{sT1}, {i * self.pfstep * 1152}")
                    s(f"buffer_load_dword v{vT3}, v{vPOL}, {srd(sQ)}, s{sT1} offen", tag="pf")
        late = self.late
        s(f"""s_add_u32 s{pG}, s{sG}, {384 if late else 256}
        s_addc_u32 s{pG + 1}, s{sG + 1}, 0
        s_add_u32 s{pU}, s{sU}, 256
        s_addc_u32 s{pU + 1}, s{sU + 1}, 0
        s_mov_b32 s{sIT}, {self.o.get("dbgskip", 0) + (1 if late else 0)}
        s_mov_b32 s{sHI}, {0 if late else 112}
        s_mov_b32 s{sPOL}, {OOB}
        s_lshl_b32 s{sT3}, s{sR}, 2
        s_add_u32 s{sT3}, s{sT3}, 128
        s_mov_b32 s{sINN}, s{sINC}
        s_mov_b32 s{sNRN}, s{sDM + 2}
        v_mov_b32 v{vDN}, v{vDM}""")
        s("s_waitcnt vmcnt(63)", auto=["st0"])
        s("s_barrier", need=["st0"])
        if late:
            tp = Timeline()
            for st, (acc, h) in enumerate(((vG, 0), (vG, 1), (vU, 0))):
                self.std_mfmas(tp, 4 * st, 72 * st, acc, xb(h), h == 0)
                tp.put_reads(self.std_reads(4 * st, 72 * st, st, f"r{st}"))
                if st:
                    self.barrier(tp, 72 * st - DD, [f"st{st}"], f"r{st - 1}")
            self.first_dmas(tp, -DD + 2)
            self.dmas(tp, 4, vDM, [f"s_add_u32 s{sDM}, s{sG}, 256", f"s_addc_u32 s{sDM + 1}, s{sG + 1}, 0"], f"s{sINC}", "st0", p0=103, step=5)
            if self.o.get("p2g", 0):
                pf = self.pf2(256)
                tp.gap(self.o["p2g"]).shadow.append(pf[0])
                tp.gap(self.o["p2g"]).mem.append(pf[1])
            V0 = [Item("v", Ins(x), 0, deadline=81 + n - 9 - 2) for n, fin in self.deferred for x in fin]
            for c, it in enumerate(V0):
                it.target = 80.0 * c / len(V0)
            tp.fill(0, 85, V0, flush=10 ** 9)
            V1 = self.gelu_items(0, 85, 371, True, vH)[:nV1]
            tp.fill(85, 144, V1, flush=10 ** 9)
            tp.insert_lgkm_waits(-DD, 144, [])
            s.extend(tp.emit(-DD, 144))
            s(f"s_waitcnt lgkmcnt({min(15, len(o144))})")
            s(".p2align 3")
            a = self.seg("aloop2")
            a("L_amid:")
            a.extend(tl.emit(144, 288))
            if self.stamps and self.o.get("ist"):
                a(f"s_waitcnt lgkmcnt(0)\ns_memtime s[52:53]\ns_mul_i32 s54, s{sIT}, 2\ns_waitcnt lgkmcnt(0)\ns_mov_b32 m0, s54\ns_nop 3\nv_writelane_b32 v29, s52, m0")
            a("s_cbranch_scc0 L_aexit")
            a = self.seg("aloop")
            a("L_aloop:")
            a.extend(tl.emit(0, 144))
            a("s_branch L_amid")
        else:
            s.extend(prew)
            s(".p2align 3")
            a = self.seg("aloop")
            a("L_aloop:")
            a.extend(tl.emit(0, 144))
            a = self.seg("aloop2")
            a.extend(tl.emit(144, 288))
            a("s_cbranch_scc1 L_aloop")
        a2 = self.seg("aexit")
        a2(f"""L_aexit:
        s_cmp_eq_u32 s{sIT}, 7
        s_cbranch_scc0 L_bstart""")
        w = self.seg("aswitch")
        w(f"""v_readfirstlane_b32 s{sT0}, v{vPOL}
        s_mov_b32 s{sT1}, 0
        s_cmp_ge_u32 s{sT0}, 8
        s_cbranch_scc1 L_hready""")
        sp = self.seg("hspin")
        sp(f"""L_hspin:
        buffer_load_dword v{vPOL}, off, {srd(sDBG)}, s{sT3} sc1
        s_add_u32 s{sT1}, s{sT1}, 1
        s_waitcnt vmcnt(0)
        v_readfirstlane_b32 s{sT0}, v{vPOL}
        s_cmp_gt_u32 s{sT1}, 0x40000
        s_cbranch_scc1 L_end
        s_cmp_ge_u32 s{sT0}, 8
        s_cbranch_scc0 L_hspin""")
        w = self.seg("aswitch2")
        w(f"""L_hready:
        s_lshl_b32 s{sT0}, s{sR}, 3
        s_add_u32 s{sT0}, s{sT0}, s{sS}
        s_lshl_b32 s{sT1}, s{sT0}, 2
        s_add_u32 s{sT1}, s{sT1}, s{sW}
        s_lshl_b32 s{sT1}, s{sT1}, 12
        s_add_u32 s{sT1}, s{sT1}, {WS_HX}""")
        rest = f"""s_mov_b32 s{sINN}, {32 * 1152}
        s_mov_b32 s{sNRN}, {31 * 1152 + 128}
        s_lshl_b32 s{sC0}, s{sS}, 7
        s_add_u32 s{pG}, s{sD}, s{sC0}
        s_addc_u32 s{pG + 1}, s{sD + 1}, 0
        s_add_u32 s{sC0}, s{sC0}, 128
        s_and_b32 s{sC0}, s{sC0}, 1023
        s_add_u32 s{pU}, s{sD}, s{sC0}
        s_addc_u32 s{pU + 1}, s{sD + 1}, 0
        v_lshrrev_b32 v{vT0}, 3, v{vL}
        s_lshl_b32 s{sC1}, s{sW}, 3
        v_add_u32 v{vT0}, s{sC1}, v{vT0}
        v_mul_u32_u24 v{vT0}, 1152, v{vT0}
        v_add_u32 v{vDN}, v{vT0}, v{vTMP + 1}
        v_lshlrev_b32 v{vT0}, 9, v{vL}
        v_mov_b32 v{vT1}, {OOB}
        v_cmp_gt_u32 vcc, 8, v{vL}
        v_lshlrev_b32 v{vT2}, 3, v{vL}
        s_mul_i32 s{sT2}, s{sR}, {PSTR + self.o.get('pp', 0)}
        v_cndmask_b32 v{vT0}, v{vT1}, v{vT0}, vcc
        s_lshl_b32 s{sC1}, s{sW}, 12
        s_add_u32 s{sT2}, s{sT2}, s{sC1}
        s_add_u32 s{sT2}, s{sT2}, {WS_PART}
        s_lshl_b32 s{sSTN}, s{sS}, 9
        s_add_u32 s{sSTN}, s{sT2}, s{sSTN}
        s_mul_i32 s{sC1}, s{sS}, {9 * 16384}
        s_add_u32 s{sT2}, s{sT2}, s{sC1}
        s_lshl_b32 s{sT3}, s{sR}, 12
        s_lshl_b32 s{sC1}, s{sW}, 7
        s_add_u32 s{sT3}, s{sT3}, s{sC1}
        s_lshl_b32 s{sC1}, s{sS}, 2
        s_add_u32 s{sT3}, s{sT3}, s{sC1}
        s_add_u32 s{sT3}, s{sT3}, {WS_FLAG + 32}""".split("\n")
        for k in range(4):
            w(f"buffer_load_dwordx4 {ar(aH0 + 4 * k)}, v{vL16}, {srd(sWS)}, s{sT1} offen offset:{1024 * k} sc1", tag="h0")
            w("\n".join(rest[11 * k:11 * k + 11]))
        w("s_branch L_aloop")

        def hb(h):
            def f(u, i):
                k = 9 * h + i
                c, a_ = k // 2, k % 2
                if c == 0:
                    return ar(aH0 + 8 * a_ + 4 * u)
                return vr(vH + 16 * (c - 1) + 8 * a_ + 4 * u)
            return f

        def outv(base, tag):
            V = []
            for j in range(8):
                ct, u = j // 2, j % 2
                rel = base + 72 + 9 * j + 8 + 8
                dl = base + 144 + 9 * j - 1
                p = vU + 8 * (ct // 2) + 4 * u + 2 * (ct % 2)
                for e in range(2):
                    V.append(Item("v", Ins(f"v_cvt_pk_bf16_f32 v{p + e}, v{vG + 4 * j + 2 * e}, v{vG + 4 * j + 2 * e + 1}"), rel + e, rel, dl))
                st = lambda k, t: Item("m", Ins(f"buffer_store_dwordx4 {vr(vU + 4 * k)}, v{vL16}, {srd(sWS)}, s{sST} offen offset:{1024 * k} sc1", tag=tag), t + 1, t)
                if self.o.get("stg", 1):
                    if j >= 4:
                        V.append(st(j - 4, rel + (4 if j < 6 else 1)))
                elif ct % 2 == 1:
                    V.append(st(2 * (ct // 2) + u, rel + 1))
            return V

        tb = Timeline()
        fpos = self.o.get("fpos", 124)
        for st in range(8):
            h = st % 2
            self.std_mfmas(tb, 4 * st, 72 * st, vG, hb(h), h == 0)
            tb.put_reads(self.std_reads(4 * st, 72 * st, st % 4, f"r{st % 4}"))
            if st:
                self.barrier(tb, 72 * st - DD, [f"st{st % 4}"], f"r{(st - 1) % 4}")
        for st in range(3, 9):
            first = [f"s_mov_b32 s{sDM + 2}, s{sNRN}", f"s_add_u32 s{sDM}, s{sD}, s{sC0}", f"s_addc_u32 s{sDM + 1}, s{sD + 1}, 0"]
            self.dmas(tb, st, vDM, first if st % 2 == 0 else None, f"s{sINC}" if self.o.get("binc", 1) else 32 * 1152, f"st{st % 4}")
        for step in range(3):
            base = 144 * step
            prev = f"part{(step - 1) % 2}"
            g = tb.gap(base + fpos)
            if g.bar:
                g.shadow[0].auto.append(prev)
            else:
                g.shadow.append(Ins("s_waitcnt vmcnt(63)", auto=[prev]))
            g.mem.append(Ins(f"buffer_store_dword v{vONE}, v{vFLG}, {srd(sWS)}, s{sFL} offen sc1", tag="flag", need=[f"old:{prev}/0"]))
            e = self.shadows(tb, base + 24, [f"s_add_u32 s{sT0}, s{sIT}, s{sS}", f"s_and_b32 s{sT1}, s{sT0}, 7",
                                             f"s_add_u32 s{sT0}, s{sT0}, 2", f"s_and_b32 s{sT0}, s{sT0}, 7",
                                             (f"s_cmp_lt_u32 s{sIT}, 6", f"s_cselect_b32 s{sT0}, s{sT0}, 8"),
                                             f"s_lshl_b32 s{sC0}, s{sT0}, 7",
                                             (f"s_cmp_lt_u32 s{sIT}, 7", f"s_cselect_b32 s{sNRN}, s{sNRN}, 0"),
                                             f"s_lshl_b32 s{sST}, s{sT1}, 14", f"s_add_u32 s{sST}, s{sST}, s{sT2}",
                                             f"s_mov_b32 s{sFL}, s{sFLN}", f"s_lshl_b32 s{sFLN}, s{sT1}, 9",
                                             f"s_add_u32 s{sFLN}, s{sFLN}, s{sT3}", f"s_add_u32 s{sIT}, s{sIT}, 1"])
            assert e < base + min(fpos, 76)
        tb.gap(287).shadow.append(Ins(f"s_cmp_eq_u32 s{sIT}, 8"))
        Vall = self.gelu_items(-288, 0, 1, False, vH + 112)
        nrem = sum(2 if t.startswith("v_cvt") else 1 for t in state["V"])
        V = Vall[len(Vall) - nrem:]
        assert V[0].ins[0].text == state["V"][0], (V[0].ins[0].text, state["V"][0])
        for c, i in enumerate(V):
            i.target = 82.0 * c / len(V)
            if i.ins[0].op.startswith("v_cvt"):
                u = ((int(i.ins[0].wr[0][1:]) - vH) // 4) % 2
                i.deadline = 72 + 7 + 9 * u - 2
        bstate = []
        o = [(p - 288, m) for p, m in state["out"]]
        for step in range(3):
            V += outv(144 * step, f"part{step % 2}")
            tb.fill(144 * step, 144 * step + 144, V)
            o = tb.insert_lgkm_waits(144 * step, 144 * step + 144, o)
            bstate.append(([i.ins[0].text for i in V], len(o)))
            if step == 1:
                nleft, o1 = len(V), list(o)
            for p in range(144 * step + 20, 144 * step + 90):
                assert not any(m.op.startswith("buffer_store_dwordx4") for m in tb.gap(p).mem)
        assert bstate[0][0] == bstate[2][0] and bstate[2][1] <= bstate[0][1], bstate
        te = Timeline()
        for st in (4, 5):
            self.std_mfmas(te, 4 * st, 72 * st, vG, hb(st % 2), st == 4)
            te.put_reads(self.std_reads(4 * st, 72 * st, st % 4, f"r{st % 4}"))
        self.barrier(te, 360 - DD, ["st1"], "r0")
        fpos = self.o.get("fposl", fpos)
        te.gap(288 + fpos).shadow.append(Ins("s_waitcnt vmcnt(63)", auto=["part1"]))
        te.gap(288 + fpos).mem.append(Ins(f"buffer_store_dword v{vONE}, v{vFLG}, {srd(sWS)}, s{sFLN} offen sc1", tag="flag", need=["part1"]))
        te.gap(300).shadow.append(Ins(f"s_add_u32 s{sT3}, s{sT3}, 32"))
        V = outv(144, "part1")[-nleft:]
        for j in range(8):
            ct, u = j // 2, j % 2
            rel = 360 + 9 * j + 8 + (4 if j < 4 else 8)
            te.gap(360 + 9 * j + 7).shadow.append(Ins(f"s_add_u32 s{sA + (j % 2)}, s{sSTN}, {((ct + 4 * u) * 9 + 8) * 16384}"))
            for e in range(2):
                V.append(Item("v", Ins(f"v_cvt_pk_bf16_f32 v{vGL + 2 * j + e}, v{vG + 4 * j + 2 * e}, v{vG + 4 * j + 2 * e + 1}"), rel, rel))
            V.append(Item("m", Ins(f"buffer_store_dwordx2 {vr(vGL + 2 * j, 2)}, v{vT2}, {srd(sWS)}, s{sA + (j % 2)} offen sc1", tag="part0"), rel + 1, rel + 1))
        te.fill(288, 432, V)
        te.insert_lgkm_waits(288, 432, o1)
        s = self.seg("b0")
        s(f"""L_bstart:
        s_mov_b32 s{sIT}, 0
        s_mov_b32 s{sFLN}, {OOB}""")
        self.stamp(s, 2)
        s.extend(tb.emit(0, 144))
        s(".p2align 3")
        bl = self.seg("bloop")
        bl("L_bloop:")
        bl.extend(tb.emit(144, 288))
        bl("s_cbranch_scc1 L_blast")
        bl = self.seg("bloop2")
        bl.extend(tb.emit(288, 432))
        bl("s_branch L_bloop\n.p2align 3")
        e = self.seg("bend")
        e("L_blast:")
        e.extend(te.emit(288, 432))
        e("s_nop 6")
        for it in V:
            e.extend(it.ins)
        self.stamp(e, 3)
        e("s_waitcnt vmcnt(0)")
        e(f"buffer_store_dword v{vONE}, v{vT0}, {srd(sWS)}, s{sT3} offen sc1", need=["part0", "part1"])
        if self.stamps and self.o.get("ist"):
            for k in range(1, 9):
                e(f"v_readlane_b32 s52, v29, {2 * k}\ns_nop 3\nv_writelane_b32 v0, s52, {2 * (19 + k)}")
        self.stamp(e, 4, True)
        self.stamp_flush(e)
        e("s_endpgm")

    def text(self):
        head = open("cdna_kernels/" + NAME + ".s.ref").read()
        lines = head.split("\n")
        top = [l for l in lines if l.startswith(";") and "@launch" not in l and "Override" not in l and "grid=ceil" not in l]
        out = "\n".join(top) + "\n; @launch grid=(256,1,1) block=(256,1,1) lds=163840\n"
        out += """; One launch, 256 workgroups (one per CU), two roles per (128-token block r, split s):
; Generated by my own scheduler scripts (MFMA gap scheduling, counted waits, hazard checks).
"""
        out += f""".amdgcn_target "amdgcn-amd-amdhsa--gfx950"
.text
.globl {NAME}_kernel
.p2align 8
.type {NAME}_kernel,@function
{NAME}_kernel:
"""
        for s in self.segs:
            out += f"; ---- {s.name}\n" + s.text()
        out += f"""L_end:
    s_endpgm
.section .rodata,"a"
.p2align 6
.amdhsa_kernel {NAME}_kernel
  .amdhsa_next_free_vgpr 512
  .amdhsa_next_free_sgpr 102
  .amdhsa_accum_offset 256
  .amdhsa_group_segment_fixed_size 0
  .amdhsa_kernarg_size 96
  .amdhsa_user_sgpr_count 2
  .amdhsa_user_sgpr_kernarg_segment_ptr 1
  .amdhsa_system_sgpr_workgroup_id_x 1
.end_amdhsa_kernel
"""
        return out

    def trace(self, names):
        d = {s.name: s for s in self.segs}
        t = []
        for n in names:
            if n in d:
                t += d[n].ins
            else:
                assert n in ("pfe", "entry2", "p0x", "wo1a", "entry1", "tl0", "tl2", "tl3"), n
        return t
```

```python
from gen import *

vQ1, vQ2 = 96, 112
vS_, vO_, vH1 = 32, 128, 192
aK1, aK2, aV_ = 216, 224, 232
aKV = 216
vKVA, vEX = 192, 32
(vEP, vKR, vINB, vQM, vQX, vRX, vDP, vKA, vK2A, vVA, vIDX, vWM, vWX, vWN, vWNX, vXN, vPD, vOE, vFO, vBA, vXNA, vOA, vRN, vOL,
 vAND, vOR, vZ) = range(209, 236)
vL8, vL16B = 246, 247
vSEL = 236
vXB, vXE = 248, 252
XRES, XRESN = 94208, 151552
sXL, sXN, sPB, sPG, sK2, sK1, sKS, sOM, sOF, sHA, sSK = 48, 49, 50, 51, 68, 69, 70, 71, 0, 1, 3
sRDY, sTODO, sLST, sOM0, sOM1, sRO, sOTH, sTO = 60, 61, 62, 63, 64, 65, 66, 67
vOP, vOQ = vQM, vQX
MSK = f"s[{sMASK}:{sMASK + 1}]"
MK2 = f"s[{sMK2}:{sMK2 + 1}]"


class Gen1(Gen):
    def spin(self, name, mask, lim="0x40000"):
        s = self.seg(name)
        s(f"""s_mov_b32 s{sT1}, 0
        L_{name}:
        buffer_load_dword v{vPOL}, v{vINB}, {srd(sWS)}, s{sFL} offen sc1
        s_add_u32 s{sT1}, s{sT1}, 1
        s_cmp_gt_u32 s{sT1}, {lim}
        s_cbranch_scc1 L_end
        s_waitcnt vmcnt(0)
        v_cmp_eq_u32 vcc, 0, v{vPOL}
        s_nop 1
        s_and_b64 vcc, vcc, {mask}
        s_cbranch_scc1 L_{name}""")

    def oolspin(self, name, mask):
        self.seg(name + "_a")(f"L_{name}_in:")
        self.spin(name, mask)
        self.seg(name + "_b")(f"s_branch L_{name}_out")

    def p1pre(self):
        s = self.seg("p1pre")
        A, B, Cc, Dd, T, G_, OB = 192, 193, 194, 195, 196, 197, 198
        a, b, c, d = sT0, sT1, sT3, sA
        s(f"""v_and_b32 v{T}, 15, v{vL}
        v_lshrrev_b32 v{G_}, 4, v{vL}
        v_mov_b32 v{OB}, {OOB}
        v_mov_b32 v{vZ}, 0
        v_mov_b32 v{vIDX}, 0xdddddddd""")
        s(f"""v_lshrrev_b32 v{A}, 1, v{vL}
        v_mul_u32_u24 v{B}, 36, v{A}
        v_and_b32 v{Dd}, 1, v{vL}
        v_lshl_add_u32 v{B}, v{Dd}, 4, v{B}
        s_and_b32 s{a}, s{sS}, 1
        s_lshl_b32 s{a}, s{a}, 5
        s_mul_i32 s{b}, s{sW}, 1152
        s_add_u32 s{a}, s{a}, s{b}
        v_add_u32 v{vKD}, s{a}, v{B}
        v_mul_u32_u24 v{A}, 1152, v{A}
        v_lshl_add_u32 v{A}, v{Dd}, 4, v{A}
        v_cndmask_b32 v{vXN}, v{A}, v{OB}, {MSK}
        v_bfe_u32 v{A}, v{vL}, 2, 2
        v_lshl_add_u32 v{A}, v{G_}, 3, v{A}
        v_and_b32 v{B}, 3, v{vL}
        v_lshlrev_b32 v{Cc}, 3, v{B}
        v_lshl_add_u32 v{Cc}, v{A}, 5, v{Cc}
        v_add_u32 v{vKR}, {(4 if self.late and self.o.get('kve', 1) else 3) * SLOT}, v{Cc}
        v_add_u32 v{Cc}, v{Cc}, v{Cc}
        v_add_u32 v{vRX}, {2 * SLOT}, v{Cc}
        v_lshrrev_b32 v{A}, 2, v{vL}
        v_lshlrev_b32 v{Cc}, 5, v{A}
        v_lshl_add_u32 v{Cc}, v{B}, 3, v{Cc}
        v_add_u32 v{vRN}, {2 * SLOT}, v{Cc}
        s_lshl_b32 s{a}, s{sW}, 4
        v_add_u32 v{A}, s{a}, v{A}
        v_mul_u32_u24 v{A}, 1152, v{A}
        v_mul_u32_u24 v{B}, 36, v{B}
        v_add3_u32 v{vQX}, v{A}, v{B}, 32
        v_mul_u32_u24 v{A}, 1152, v{vTMP + 3}
        v_mul_u32_u24 v{B}, 36, v{vTMP + 2}
        v_lshlrev_b32 v{Cc}, 4, v{Dd}
        v_add3_u32 v{vQM}, v{A}, v{B}, v{Cc}
        v_and_b32 v{A}, 7, v{vL}
        v_lshlrev_b32 v{vDP}, 2, v{A}
        v_lshlrev_b32 v{A}, 2, v{vL}
        v_cndmask_b32 v{vINB}, v{A}, v{OB}, {MSK}""")
        s(f"""s_bitcmp1_b32 s{sS}, 1
        s_cselect_b32 s{b}, 8, 9
        s_cselect_b32 s{sKS}, 1.0, {f32(CK)}
        s_and_b32 s{a}, s{sS}, 3
        s_cmp_eq_u32 s{a}, 3
        s_cselect_b32 s{b}, 6, s{b}
        v_lshrrev_b32 v{A}, 5, v{vL}
        v_lshlrev_b32 v{A}, s{b}, v{A}
        v_lshl_add_u32 v{A}, v{T}, 4, v{A}
        s_cmp_eq_u32 s{a}, 1
        s_cselect_b32 s{b}, 3, 1
        v_and_b32 v{B}, s{b}, v{G_}
        v_cmp_eq_u32 vcc, 0, v{B}
        s_cmp_eq_u32 s{a}, 3
        s_cselect_b32 s{b}, 4, 16
        s_cselect_b32 s{c}, 2, 16
        v_cndmask_b32 v{A}, v{OB}, v{A}, vcc
        v_cmp_gt_u32 vcc, s{b}, v{T}
        v_mov_b32 v{B}, 0x3f803f80
        s_lshr_b32 s{b}, s{sR}, 1
        v_cndmask_b32 v{vEP}, v{OB}, v{A}, vcc
        v_cmp_gt_u32 vcc, s{c}, v{T}
        s_lshl_b32 s{d}, s{b}, 2
        s_mul_i32 s{b}, s{b}, {KVST}
        v_cndmask_b32 v{vAND}, 0, -1, vcc
        v_cmp_eq_u32 vcc, s{c}, v{T}
        s_cmp_eq_u32 s{sW}, 0
        s_cselect_b32 s{sPOL}, s{d}, {OOB}
        v_cndmask_b32 v{vOR}, 0, v{B}, vcc
        s_lshl_b32 s{d}, s{sR}, 2
        s_add_u32 s{d}, s{d}, 128
        s_cmp_eq_u32 s{sW}, 0
        s_cselect_b32 s{sHA}, s{d}, {OOB}
        s_and_b32 s{c}, s{sR}, 1
        s_mul_i32 s{sK1}, s{c}, 640
        s_lshl_b32 s{c}, s{c}, 2
        s_add_u32 s{c}, s{c}, s{sW}
        s_lshr_b32 s{d}, s{sS}, 2
        s_lshl_b32 s{sK2}, s{c}, 1
        s_add_u32 s{sK2}, s{sK2}, s{d}
        s_mul_i32 s{sK2}, s{sK2}, 640
        s_add_u32 s{sK2}, s{sK2}, 8192
        s_lshl_b32 s{d}, s{d}, 8
        s_add_u32 s{sK1}, s{sK1}, s{d}
        s_lshl_b32 s{c}, s{c}, 10
        s_add_u32 s{c}, s{c}, s{d}
        s_bitcmp1_b32 s{sS}, 1
        s_cselect_b32 s{sK2}, s{sK2}, s{c}
        s_and_b32 s{c}, s{sS}, 1
        s_lshl_b32 s{c}, s{c}, 9
        s_add_u32 s{sK2}, s{sK2}, s{c}
        s_add_u32 s{sK2}, s{sK2}, s{b}
        s_lshl_b32 s{c}, s{sW}, 2
        s_add_u32 s{sK1}, s{sK1}, s{c}
        s_add_u32 s{sK1}, s{sK1}, s{b}
        s_add_u32 s{sK1}, s{sK1}, 18432
        s_cmp_eq_u32 s{a}, 1
        s_cselect_b32 s{sK1}, s{sK1}, {OOB}
        s_cselect_b32 s{sK2}, {OOB}, s{sK2}""")
        s(f"""s_lshl_b32 s{a}, s{sR}, 3
        s_add_u32 s{a}, s{a}, s{sS}
        s_lshl_b32 s{a}, s{a}, 2
        s_add_u32 s{a}, s{a}, s{sW}
        s_lshl_b32 s{sFL}, s{a}, 7
        s_add_u32 s{sFL}, s{sFL}, {WS_FLAG}
        s_lshl_b32 s{sST}, s{a}, 12
        s_add_u32 s{sST}, s{sST}, {WS_HX}
        s_mul_i32 s{a}, s{sS}, 508
        s_sub_u32 s{sOF}, s{sFL}, s{a}
        s_lshl_b32 s{a}, s{sR}, 2
        s_add_u32 s{a}, s{a}, s{sW}
        s_mul_i32 s{sOM}, s{a}, 36864
        s_add_u32 s{sOM}, s{sOM}, {WS_OM}
        s_mul_i32 s{sC1}, s{sW}, 5120
        s_lshl_b32 s{a}, s{sW}, 12
        s_add_u32 s{sXL}, s{a}, {XRES}
        s_mul_i32 s{sPB}, s{sR}, {PSTR}
        s_add_u32 s{sPB}, s{sPB}, s{a}
        s_add_u32 s{sPB}, s{sPB}, {WS_PART}
        s_lshr_b32 s{b}, s{sS}, 2
        s_mul_i32 s{a}, s{sS}, {9 * 16384}
        s_add_u32 s{a}, s{a}, {8 * 16384}
        s_add_u32 s{sFLN}, s{sPB}, s{a}
        s_lshl_b32 s{a}, s{sS}, 14
        s_add_u32 s{sPB}, s{sPB}, s{a}
        s_and_b32 s{c}, s{sS}, 3
        s_lshl_b32 s{c}, s{c}, 5
        s_add_u32 s{c}, s{c}, 1024
        s_lshl_b32 s{a}, s{sW}, 1
        s_add_u32 s{a}, s{a}, s{b}
        s_mul_i32 s{a}, s{a}, 18432
        s_add_u32 s{sXN}, s{a}, s{c}
        s_lshl_b32 s{sPFO}, s{sE2}, 2
        s_add_u32 s{sPFO}, s{sPFO}, s{sW}
        s_mul_i32 s{sPFO}, s{sPFO}, {81 * self.C * 128}
        s_mov_b32 s{sPG}, 640
        s_mov_b32 s{sSK}, 0""")
        s(f"buffer_store_dword v{vZ}, v{vINB}, {srd(sWS)}, s{sFL} offen sc1", tag="kvst")
        self.nd = 1 if self.C <= 2 else 2
        self.dl = -(-81 * self.C // (4 * self.nd))
        s(f"""v_min_u32 v{A}, {self.dl - 1}, v{vL}
        v_lshlrev_b32 v{vPD}, 7, v{A}
        v_add_u32 v{vKA}, {KVS0}, v{vL16}
        v_add_u32 v{A}, {KVS0 + 18432}, v{vL16}
        v_mov_b32 v{B}, {KVS0 + 8192 + 544}
        v_cndmask_b32 v{vK2A}, v{A}, v{B}, {MSK}
        v_and_b32 v{A}, 31, v{vL}
        v_cmp_eq_u32 vcc, 22, v{A}
        v_min_u32 v{B}, 19, v{A}
        v_lshrrev_b32 v{A}, 5, v{vL}
        v_cndmask_b32 v{B}, v{B}, 18, vcc
        v_lshlrev_b32 v{Cc}, 8, v{A}
        v_cmp_lt_u32 vcc, 15, v{B}
        v_lshlrev_b32 v{vVA}, 6, v{A}
        v_add_u32 v{vVA}, 256, v{vVA}
        v_cndmask_b32 v{Cc}, v{Cc}, v{vVA}, vcc
        v_lshl_add_u32 v{Cc}, v{B}, 4, v{Cc}
        v_add_u32 v{vVA}, {KVS0 + 8192}, v{Cc}""")
        s(f"""v_bfe_u32 v{B}, v{vL}, 3, 2
        v_mad_u32_u24 v{Cc}, v{A}, 18, v{B}
        s_lshl_b32 s{a}, s{sW}, 2
        v_add_u32 v{Cc}, s{a}, v{Cc}
        v_mul_u32_u24 v{Cc}, 1152, v{Cc}
        s_lshl_b32 s{d}, s{sS}, 7
        v_add3_u32 v{vWM}, v{Cc}, v{vTMP + 1}, s{d}
        v_lshrrev_b32 v{Cc}, 1, v{B}
        v_lshl_add_u32 v{B}, v{Cc}, 4, v{B}
        v_mul_u32_u24 v{Cc}, 72, v{A}
        s_and_b32 s{a}, s{sW}, 1
        s_mul_i32 s{a}, s{a}, 144
        s_lshr_b32 s{b}, s{sW}, 1
        s_mul_i32 s{b}, s{b}, 36
        s_add_u32 s{a}, s{a}, s{b}
        s_add_u32 s{a}, s{a}, 16
        v_add3_u32 v{Cc}, v{Cc}, v{B}, s{a}
        v_mul_u32_u24 v{Cc}, 1152, v{Cc}
        v_add3_u32 v{vWX}, v{Cc}, v{vTMP + 1}, s{d}""")
        s(f"""v_bfe_u32 v{B}, v{vL}, 1, 2
        v_bfe_u32 v{Cc}, v{vL}, 3, 1
        v_mad_u32_u24 v{Cc}, v{Cc}, 18, v{B}
        v_lshl_add_u32 v{Cc}, v{G_}, 2, v{Cc}
        s_mul_i32 s{a}, s{sW}, 36
        v_add_u32 v{Cc}, s{a}, v{Cc}
        v_mul_u32_u24 v{Cc}, 1152, v{Cc}
        v_lshl_add_u32 v{Cc}, v{Dd}, 4, v{Cc}
        v_add_u32 v{vWN}, s{c}, v{Cc}
        v_lshrrev_b32 v{Cc}, 1, v{B}
        v_lshl_add_u32 v{B}, v{Cc}, 4, v{B}
        v_bfe_u32 v{Cc}, v{vL}, 3, 2
        v_mul_u32_u24 v{Cc}, 72, v{Cc}
        v_add3_u32 v{B}, v{B}, v{Cc}, 16
        v_mad_u32_u24 v{B}, v{A}, 36, v{B}
        s_mul_i32 s{a}, s{sW}, 288
        v_add_u32 v{B}, s{a}, v{B}
        v_mul_u32_u24 v{B}, 1152, v{B}
        v_lshl_add_u32 v{B}, v{Dd}, 4, v{B}
        v_add_u32 v{vWNX}, s{c}, v{B}""")
        if self.o.get("cpf", 0) >= 2:
            s(f"""s_lshr_b32 s{a}, s2, 4
            s_lshl_b32 s{a}, s{a}, 2
            s_add_u32 s{a}, s{a}, s{sW}
            v_and_b32 v{A}, 7, v{vL}
            v_lshl_add_u32 v{A}, v{A}, 6, s{a}
            v_lshlrev_b32 v{A}, 7, v{A}
            v_min_u32 v{A}, L_end-L_pc, v{A}
            v_mov_b32 v{vXE + 1}, s101
            v_add_co_u32 v{vXE}, vcc, s100, v{A}
            s_nop 1
            v_addc_co_u32 v{vXE + 1}, vcc, 0, v{vXE + 1}, vcc""")
        s(f"""v_lshlrev_b32 v{A}, 2, v{G_}
        v_mul_u32_u24 v{B}, 18432, v{G_}
        v_lshl_add_u32 v{B}, v{T}, 4, v{B}
        v_cndmask_b32 v{vOE}, v{B}, v{OB}, {MSK}
        v_lshlrev_b32 v{vL8}, 3, v{vL}
        v_add_u32 v{vL16B}, 4096, v{vL16}
        v_mov_b32 v{vXB}, -1
        v_mov_b32 v{vXB + 1}, -1
        v_mov_b32 v{vXB + 2}, -1
        v_mov_b32 v{vXB + 3}, -1
        v_lshlrev_b32 v{B}, 9, v{vL}
        v_cmp_gt_u32 vcc, 8, v{vL}
        v_lshlrev_b32 v{Cc}, 3, v{G_}
        v_add_u32 v{vOL}, s{sXL}, v{vL16}
        v_cndmask_b32 v{vFO}, v{OB}, v{B}, vcc
        v_lshl_add_u32 v{B}, v{T}, 7, v{Cc}
        v_and_b32 v{Dd}, 7, v{vL}
        v_lshlrev_b32 v{Dd}, 4, v{Dd}
        v_xor_b32 v{B}, v{B}, v{Dd}
        v_add_u32 v{vBA}, s{sXL}, v{B}
        v_xor_b32 v{vTMP + 1}, 32, v{vBA}
        v_xor_b32 v{vTMP + 2}, 64, v{vBA}
        v_xor_b32 v{vTMP + 3}, 96, v{vBA}
        v_lshrrev_b32 v{Dd}, 3, v{vL}
        v_lshlrev_b32 v{Dd}, 4, v{Dd}
        v_xor_b32 v{vTMP}, v{vTMP}, v{Dd}
        v_lshl_add_u32 v{B}, v{T}, 5, v{Cc}
        s_add_u32 s{a}, s{sM0W}, {XRESN}
        v_add_u32 v{vXNA}, s{a}, v{B}
        v_mul_u32_u24 v{B}, 1152, v{T}
        v_add_u32 v{vOA}, v{B}, v{Cc}
        v_sub_u32 v{A}, v{T}, v{A}
        v_and_b32 v{B}, 1, v{A}
        v_lshlrev_b32 v{B}, 4, v{B}
        v_mov_b32 v{Cc}, 0x3f80
        v_lshlrev_b32 v{Cc}, v{B}, v{Cc}
        v_lshrrev_b32 v{A}, 1, v{A}
        v_cmp_eq_u32 vcc, 0, v{A}
        v_mov_b32 v{vSEL}, 0
        v_mov_b32 v{vSEL + 1}, 0
        v_cndmask_b32 v{vSEL + 2}, 0, v{Cc}, vcc
        v_cndmask_b32 v{vSEL + 6}, 0, v{Cc}, vcc
        v_cndmask_b32 v{vSEL + 8}, 0, v{Cc}, vcc
        v_cmp_eq_u32 vcc, 1, v{A}
        v_mov_b32 v{vSEL + 4}, 0
        v_mov_b32 v{vSEL + 5}, 0
        v_cndmask_b32 v{vSEL + 3}, 0, v{Cc}, vcc
        v_cndmask_b32 v{vSEL + 7}, 0, v{Cc}, vcc
        v_cndmask_b32 v{vSEL + 9}, 0, v{Cc}, vcc""")

    def p1(self):
        tl = Timeline()
        xb = lambda h: (lambda u, i: xn(u, 9 * h + i))
        for st, (acc, h) in enumerate(((vG, 0), (vG, 1), (vU, 0), (vU, 1), (vG, 0), (vG, 1))):
            self.std_mfmas(tl, 4 * st, 72 * st, acc, xb(h), h == 0)
            tl.put_reads(self.std_reads(4 * st, 72 * st, st % 4, f"r{st}"))
        R = []
        for h in range(2):
            for u in range(2):
                for i in range(9):
                    c = vr(vEX + 4 * u)
                    tl.m[432 + 18 * h + 9 * u + i] = Ins(f"v_mfma_f32_16x16x32_bf16 {c}, {ar(frag(24 + h, i))}, {xn(u, 9 * h + i)}, {'0' if h == 0 and i == 0 else c}")
            for i in range(9):
                for hh in range(2):
                    ins = Ins(f"ds_read_b64_tr_b16 {ar(frag(24 + h, i) + 2 * hh, 2)}, v{vRX} offset:{2048 * (9 * h + i) + 256 * hh}", tag="r6")
                    g0 = 432 + 18 * h
                    R.append(Item("r", ins, 432 - DD + len(R), earliest=g0 - 27 + i, deadline=g0 + i - LAT - 1))
        tl.put_reads(R)
        arr = self.o.get("kvarr", 2)
        for st in range(1, 7):
            self.barrier(tl, 72 * st - DD, [("st1", "st2", "st3", "q0", "q1", "q2")[st - 1]] + (["kvst"] if st == arr else []), f"r{st - 1}")
        tl.gap(1).bar.append(Ins("s_barrier", need=["lds:kvfr"]))
        tl.gap(72 * arr - DD).mem.append(Ins(f"buffer_atomic_add v{vONE}, v{vFLG}, {srd(sDBG)}, s{sPOL} offen sc1", tag="arr"))
        q0f = [f"s_mov_b32 s{sDM + 2}, {31 * 1152 + 140}", f"s_mov_b32 s{sDM}, s{sQ}", f"s_mov_b32 s{sDM + 1}, s{sQ + 1}"]
        if self.late:
            ls = self.o.get("lstep", 4)
            if self.kve:
                tl.gap(1).mem.append(Ins(f"buffer_load_dwordx4 v{vDM}, {srd(sG)}, s{sA} offen lds", tag="st1"))
            self.dmas(tl, 2, vDM, [f"s_add_u32 s{sDM}, s{sU}, s{sC0}", f"s_addc_u32 s{sDM + 1}, s{sU + 1}, 0"], f"s{sINC}", "st2", p0=5, step=ls)
            self.dmas(tl, 3, vDM, None, f"s{sINC}", "st3", p0=5 + 9 * ls, step=ls)
            if ls == 4:
                self.dmas(tl, 4, vQM, q0f, 32 * 1152, "q0")
            else:
                self.dmas(tl, 4, vQM, q0f, 32 * 1152, "q0", p0=103, step=5)
        else:
            self.dmas(tl, 3, vDM, None, f"s{sINC}", "st3")
            self.dmas(tl, 4, vQM, q0f, 32 * 1152, "q0")
        self.dmas(tl, 5, vQM, None, 32 * 1152, "q1")
        self.dmas(tl, 6, vQX, [f"s_mov_b32 s{sA}, 0"], 64 * 1152, "q2", srdn=sQ)
        if self.wpf and self.o.get("qpf", 1) >= 4:
            assert self.npf == 1
            tl.gap(self.o["qpf"] - 2).mem.append(Ins(f"buffer_load_dword v{vT3}, v{vPOL}, {srd(sQ)}, s{sT1} offen", tag="pf"))
        tl.gap(self.kvpoll).mem.append(Ins(f"buffer_load_dword v{vPOL}, v{vDP}, {srd(sDBG)}, 0 offen sc1", tag="poll"))
        c = self.kvchk
        assert c >= 341
        tl.gap(c).shadow.append(Ins("s_waitcnt vmcnt(63)", auto=["poll"]))
        tl.gap(c).valu += [Ins(f"v_cmp_gt_u32 vcc, 16, v{vPOL}")]
        tl.gap(c + 2).shadow += [Ins("s_cbranch_vccnz L_kvspin"), Ins("L_kvok:")]
        for sg in range(2):
            for i in range(5):
                p = c + 4 + 4 * (5 * sg + i)
                if i in (0, 4):
                    tl.gap(p - 1).shadow.append(Ins(f"s_add_u32 m0, s{sC1}, {KVS0 + KVST * sg + 1024 * i}"))
                    tl.gap(p).shadow.append(Ins(f"s_add_u32 s{sA}, s{sC1}, {KVST * sg + 1024 * i}"))
                tl.gap(p).mem.append(Ins(f"buffer_load_dwordx4 v{vL16}, {srd(sWS)}, s{sA} offen offset:{1024 * (i % 4)} sc1 lds", tag=f"kv{sg}"))
        for opt, col in (("p2p", 256), ("p3", 384), ("p4", 512)):
            p = self.o.get(opt, 1)
            if self.wpf and p > 2:
                pf = self.pf2(col)
                for k in range(0, len(pf), 2):
                    tl.gap(p + 2 * k).shadow.append(pf[k])
                    tl.gap(p + 2 * k).mem.append(pf[k + 1])
        self.shadows(tl, 420, [f"s_mov_b32 s{sIT}, 0", f"s_add_u32 s{sINC}, s{sC1}, {KVST}",
                               (f"s_add_u32 s{sDM}, s{sWS}, s{sINC}", f"s_addc_u32 s{sDM + 1}, s{sWS + 1}, 0"), f"s_mov_b32 s{sDM + 2}, 5120", f"s_and_b32 s{sRO}, s{sS}, {1 if self.o.get('rot', 0) else 0}", f"s_mul_i32 s{sHI}, s{sRO}, {9 * 4096}", f"s_mul_i32 s{sRO}, s{sRO}, 9216",
                               f"s_add_u32 s{sOM0}, s{sOM}, s{sRO}", f"s_sub_u32 s{sOM1}, s{sOM}, s{sRO}",
                               f"s_mov_b32 s{sC0}, 0", f"s_mov_b32 s{sSTN}, 0", f"s_mov_b32 s{sTODO}, 0xff", f"s_mov_b32 s{sOTH}, 0xff", f"s_bitset0_b32 s{sOTH}, s{sS}"] +
                     ([f"s_mov_b32 s{sTO}, 0xff", f"s_and_b32 s{sT2}, s{sS}, 1", f"s_mul_i32 s{sT2}, s{sT2}, 18432", f"s_add_u32 s{sOM1}, s{sOM}, 8192"] if self.o.get("opf", 0) else []))
        V = []
        t = 2
        for x in ([f"v_mul_f32 v{vKVA + e}, s{sKS}, v{vKVA + e}" for e in range(4)] +
                  [f"v_cvt_pk_bf16_f32 v{vKVA + e}, v{vKVA + 2 * e}, v{vKVA + 2 * e + 1}" for e in range(2)] +
                  [f"v_and_or_b32 v{vKVA + 2 + e}, v{vKVA + e}, v{vAND}, v{vOR}" for e in range(2)] +
                  [f"v_and_or_b32 v{vKVA + e}, v{vKVA + e}, v{vAND}, v{vOR}" for e in range(2)]):
            V.append(Item("v", Ins(x), t, 2))
            t += 0.5
        for e in range(2):
            V.append(Item("v", Ins(f"v_permlane16_swap_b32 v{vKVA + e}, v{vKVA + 2 + e}"), 11 + e, 11 + e))
        t = 13
        for x in (f"buffer_store_dwordx4 {vr(vKVA)}, v{vEP}, {srd(sWS)}, s{sK2} offen sc1", f"buffer_store_dword v{vKVA}, v{vEP}, {srd(sWS)}, s{sK1} offen sc1"):
            V.append(Item("m", Ins(x, tag="kvst"), t))
            t += 1
        if not self.o.get("ozm", 0):
            for r in range(64):
                V.append(Item("v", Ins(f"v_mov_b32 v{vO_ + r}, 0"), 16 + r * 68 / 64.0))
        V += self.gelu_items(0, 85, 400, False, vH1)
        z = [vQ2 + 4 * q + j for q in range(4) for j in (1, 2)] + [vQ2 + 4, vQ2 + 12]
        for j in range(8):
            ct, u = j // 2, j % 2
            rel = 360 + 9 * j + 8 + 8
            q = vQ1 + 4 * (2 * u + ct // 2)
            for e in range(2):
                V.append(Item("v", Ins(f"v_cvt_pk_bf16_f32 v{q + 2 * (ct % 2) + e}, v{vG + 4 * j + 2 * e}, v{vG + 4 * j + 2 * e + 1}"), max(rel, 408 + 2 * j) + e, rel))
            if j in (5, 6):
                for r in z[5 * (j - 5):5 * (j - 4)]:
                    V.append(Item("v", Ins(f"v_mov_b32 v{r}, 0"), rel + 2))
        for r in range(8):
            V.append(Item("v", Ins(f"v_accvgpr_write_b32 a{aV_ + 8 + r}, 0"), 441 + r))
        if self.o.get("opf", 0):
            assert not self.o.get("rot", 0)
            for x in (f"v_lshrrev_b32 v{vOQ}, 4, v{vL}", f"v_lshl_add_u32 v{vOP}, v{vL}, 7, s{sT2}"):
                V.append(Item("v", Ins(x), 449, 449))
        for q in range(4):
            for e in range(2):
                V.append(Item("v", Ins(f"v_permlane16_swap_b32 v{vQ1 + 4 * q + e}, v{vQ1 + 4 * q + 2 + e}"), 449 + q, 446))
        if self.stamps and self.o.get("gst"):
            self.gst = [(p, r) for p, r in zip(eval(self.o["gst"].replace(":", ",")), (62, 100, 12, 52, 54, 14))]
            for p, r in self.gst:
                tl.gap(p).shadow.append(Ins(f"s_memtime s[{r}:{r + 1}]"))
        tl.fill(0, 468, V, flush=10 ** 9)
        pre = [i for i in tl.emit(-DD, 0) if i.kind == "lds"]
        tl.insert_lgkm_waits(0, 468, [(-10 + k // 2, i) for k, i in enumerate(pre)][8:])
        s = self.seg("p1a")
        s("L_p1:")
        if self.wpf and self.o.get("qpf", 1) == 1:
            for i in range(self.npf):
                s(f"""s_lshr_b32 s{sT1}, s{sW}, 1
                s_mul_i32 s{sT1}, s{sT1}, 140
                s_add_u32 s{sT1}, s{sT1}, {i * self.pfstep * 1152}""")
                s(f"buffer_load_dword v{vT3}, v{vPOL}, {srd(sQ)}, s{sT1} offen", tag="pf")
        if self.wpf and self.o.get("qpf", 1) >= 4:
            s(f"s_lshr_b32 s{sT1}, s{sW}, 1\ns_mul_i32 s{sT1}, s{sT1}, 140")
        kf = lambda kk: aKV + 4 * kk if kk < 9 else frag(1, kk - 9)
        kve = self.kve
        if kve:
            s(f"v_subrev_u32 v{vT0}, {3 * SLOT - 16384}, v{vKR}")
        kr = lambda kk: [Ins(f"ds_read_b64_tr_b16 {ar(kf(kk) + 2 * h, 2)}, v{vT0 if kve and kk >= 16 else vKR} offset:{1024 * kk + 128 * h}", tag="kvfr") for h in range(2)]
        s("s_waitcnt vmcnt(63)", auto=["kvimg", "st0"])
        s("s_barrier", need=["kvimg", "st0"])
        for kk in range(9):
            s.extend(kr(kk))
        for n, fin in self.deferred:
            s("\n".join(fin))
        s(f"""s_bitcmp1_b32 s{sS}, 2
        s_cbranch_scc1 L_kvu1
        s_bitcmp1_b32 s{sS}, 1
        s_cbranch_scc1 L_kv01""")
        for u in range(2):
            for o in range(2):
                k = self.seg(f"kv{u}{o}")
                if u == 1 and o == 0:
                    k(f"L_kvu1:\ns_bitcmp1_b32 s{sS}, 1\ns_cbranch_scc1 L_kv11")
                elif o == 1:
                    k(f"L_kv{u}{o}:")
                k("s_waitcnt lgkmcnt(12)")
                for kk in range(18):
                    a, b = ar(kf(kk)), xn(u, kk)
                    if o:
                        a, b = b, a
                    k(f"v_mfma_f32_16x16x32_bf16 {vr(vKVA)}, {a}, {b}, {'0' if kk == 0 else vr(vKVA)}")
                    if kk % 3 == 2 and kk < 17:
                        k("s_waitcnt lgkmcnt(10)")
                    if self.late and kk % 2 == 0:
                        k(f"s_add_u32 m0, s{sM0W}, {SLOT + 4096 * (kk // 2)}")
                    if self.late and kk % 2 == 1:
                        k(f"s_add_u32 s{sA}, s{sA}, s{sINC}")
                    if kk < 9:
                        k.extend(kr(kk + 9))
                    else:
                        k.extend(pre[2 * (kk - 9):2 * (kk - 9) + 2])
                    if self.late and kk % 2 == 1 and not (kve and kk == 17):
                        k(f"buffer_load_dwordx4 v{vDM}, {srd(sG)}, s{sA} offen lds", tag="st1")
                k.extend(pre[18:])
                if not (u == 1 and o == 1):
                    k("s_branch L_kvdone")
        g = self.seg("p1gemm")
        g("L_kvdone:")
        self.stamp(g, 2)
        g("s_waitcnt lgkmcnt(12)")
        g.extend(tl.emit(0, 468))
        self.att()
        k = self.seg("kvspin")
        k(f"""L_kvspin:
        s_mov_b32 s{sT1}, 0
        L_kvspin2:
        buffer_load_dword v{vPOL}, v{vDP}, {srd(sDBG)}, 0 offen sc1
        s_add_u32 s{sT1}, s{sT1}, 1
        s_cmp_gt_u32 s{sT1}, 0x40000
        s_cbranch_scc1 L_end
        s_waitcnt vmcnt(0)
        v_cmp_gt_u32 vcc, 16, v{vPOL}
        s_nop 1
        s_cbranch_vccnz L_kvspin2
        s_branch L_kvok""")
        self.fallback()

    def qk(self, sb, q, kt):
        k1 = aK1 + 4 * (kt % 2)
        k2 = aK2 + 4 * ((kt // 4) % 2) + 2 * ((kt % 4) // 2)
        q2 = vQ2 + 4 * q + 2 * (kt % 2)
        S = vr(vS_ + 16 * sb, 16)
        return (Ins(f"v_mfma_f32_32x32x16_bf16 {S}, {ar(k1)}, {vr(vQ1 + 4 * q)}, 0"),
                Ins(f"v_mfma_f32_32x32x8bf16_1k {S}, {ar(k2, 2)}, {vr(q2, 2)}, {S}"))

    def pv(self, sb, q, kt):
        O = vr(vO_ + 16 * q, 16)
        v = aV_ + 8 * (kt % 2)
        return tuple(Ins(f"v_smfmac_f32_32x32x32_bf16 {O}, {ar(v + 4 * f)}, {vr(vS_ + 16 * sb + 8 * f, 8)}, v{vIDX}") for f in range(2))

    def kvreads(self, kt):
        sl, i = (kt // 8) % 2, kt % 8
        o = KVST * sl
        k1 = Ins(f"ds_read_b128 {ar(aK1 + 4 * (kt % 2))}, v{vKA} offset:{o + 1024 * i}", tag="kvr")
        k2 = Ins(f"ds_read_b128 {ar(aK2 + 4 * ((kt // 4) % 2))}, v{vK2A} offset:{o + 640 * (i // 4)}", tag="kvr") if kt % 4 == 0 else None
        vv = [Ins(f"ds_read_b128 {ar(aV_ + 8 * (kt % 2) + 4 * f)}, v{vVA} offset:{o + 640 * (2 * i + f)}", tag="kvr") for f in range(2)]
        return k1, k2, vv

    def preg(self, i):
        if i < self.ne:
            return lambda k: ar((40, 56, 112, 128, 200, 184, 168)[i] + 4 * k)
        return lambda k: vr(vO_ + 16 * ((i - self.ne) % 5) + 4 * k)

    def areg(self, i):
        k = i - self.ne - self.n2
        return (sK2, sK1, sKS, sHI, sSTN)[k] if k >= 0 else sA

    def pacc_opt(self, name, i0, n):
        names = []
        for i in range(i0, i0 + n):
            s = self.segs[-1]
            s(f"s_cmp_eq_u32 s{self.areg(i)}, {OOB}\ns_cbranch_scc1 L_{name}")
            names.append(f"{name}{i}")
            s = self.seg(names[-1])
            s("s_waitcnt vmcnt(63)", auto=[f"pl{i}"])
            s.extend(self.pacc(i, 1))
        s = self.seg(name)
        s(f"L_{name}:")
        return names

    def opf(self):
        if not self.o.get("opf", 0):
            return []
        out = [Ins(f"s_nand_b32 s{sT2}, vcc_lo, s{sTO}"), Ins(f"s_andn2_b32 s{sTO}, s{sTO}, vcc_lo")]
        for j in range(2):
            out += [Ins(f"v_bfe_u32 v{vT0 + j}, s{sT2}, v{vOQ}, 1"), Ins(f"v_lshl_add_u32 v{vT0 + j}, v{vT0 + j}, 30, v{vOP}")]
            out += [Ins(f"s_lshr_b32 s{sT2}, s{sT2}, 4")] if j == 0 else []
            out += [Ins(f"buffer_load_dword v{vT3}, v{vT0 + j}, {srd(sWS)}, s{sOM1 if j else sOM} offen sc1", tag="pf")]
        return out

    def poll(self):
        return Ins(f"buffer_load_dword v{vPOL}, v{vINB}, {srd(sWS)}, s{sFL} offen sc1", tag="poll")

    def ready(self):
        return [Ins(f"v_cmp_ne_u32 vcc, 0, v{vPOL}"), Ins("s_nop 0"), Ins(f"s_lshr_b32 s{sRDY}, vcc_lo, 8"), Ins(f"s_and_b32 s{sRDY}, s{sRDY}, s{sTODO}")]

    def pload(self, i0, n):
        out = []
        for i in range(i0, i0 + n):
            out += [Ins(f"s_ff1_i32_b32 s{sT1}, s{sRDY}"), Ins(f"s_bitset0_b32 s{sRDY}, s{sT1}"), Ins(f"s_bitset0_b32 s{sTODO}, s{sT1}"),
                    Ins(f"s_mul_i32 s{sT0}, s{sT1}, {9 * 16384}"), Ins(f"s_add_u32 s{sT0}, s{sT0}, s{sPB}"),
                    Ins(f"s_cmp_lt_i32 s{sT1}, 0"), Ins(f"s_cselect_b32 s{self.areg(i)}, {OOB}, s{sT0}")]
            out += [Ins(f"buffer_load_dwordx4 {self.preg(i)(k)}, v{vL16}, {srd(sWS)}, s{self.areg(i)} offen offset:{1024 * k} sc1", tag=f"pl{i}") for k in range(4)]
        return out

    @staticmethod
    def weave(ld):
        slots = [ld[k:k + 11] for k in range(0, len(ld), 11)]
        out = list(slots[0][:7])
        for k, sl in enumerate(slots):
            nx = slots[k + 1][:7] if k + 1 < len(slots) else []
            for j in range(4):
                out.append(sl[7 + j])
                out += nx[2 * j:2 * j + 2] if j < 3 else nx[6:]
        return out

    def pacc(self, i0, n):
        out = []
        for j in range(8):
            ct, u = j // 2, j % 2
            c = vr(vG + 4 * j)
            for i in range(i0, i0 + n):
                out.append(Ins(f"v_mfma_f32_16x16x32_bf16 {c}, {vr(vSEL + (0 if ct % 2 else 2))}, {self.preg(i)(2 * (ct // 2) + u)}, {'0' if i == 0 else c}"))
        return out

    def att_stage(self, a, kt0, last):
        stream = {}
        if last:
            slots = [(tau, m) for tau in range(32, 64) for m in (0, 2, 3)]

            def lay(k, ins):
                lastmem = -9
                for i in ins:
                    while True:
                        cur = stream.setdefault(slots[k], [])
                        if i.kind in ("salu", "wait", "label"):
                            if not cur or i.kind == "label":
                                break
                        elif i.kind == "valu":
                            if not any(x.kind == "vmem" for x in cur) or True:
                                break
                        elif k - lastmem >= 2 and not any(x.kind != "salu" for x in cur) and not ("m0" in i.rd and any("m0" in x.wr for x in cur)):
                            lastmem = k
                            break
                        k += 1
                    cur.append(i)
                return k + 1

            seq = []
            for i in range(2):
                seq += [Ins(f"s_add_u32 m0, s{sHI}, s{sM0W}"), Ins(f"s_add_u32 s{sHI}, s{sHI}, 4096"), Ins(f"buffer_load_dwordx4 v{vWM}, {srd(sWO)}, s{sC0} offen lds", tag="wo"),
                        Ins(f"s_add_u32 s{sC0}, s{sC0}, {36 * 1152}")]
            for i in range(2):
                seq += [Ins(f"s_add_u32 m0, s{sHI}, s{sM0W}"), Ins(f"s_add_u32 s{sHI}, s{sHI}, 4096"), Ins(f"s_mov_b32 s{sT0}, {288 * 1152 * i}"),
                        Ins(f"buffer_load_dwordx4 v{vWX}, {srd(sWO)}, s{sT0} offen lds", tag="wo")]
            seq += [Ins(f"s_cmp_lt_u32 s{sW}, 2"), Ins(f"s_cselect_b32 s{sT0}, s{sRO}, 0"), Ins(f"s_sub_u32 s{sT0}, s{sM0W}, s{sT0}"),
                    Ins(f"s_add_u32 m0, s{sT0}, {2 * SLOT + 16384}"), Ins(f"s_lshl_b32 s{sC0}, s{sS}, 7"),
                    Ins(f"buffer_load_dwordx4 v{vWNX}, {srd(sWO)}, 0 offen lds", tag="wo")]
            for i in range(4):
                seq += [Ins(f"s_add_u32 m0, s{sXL}, {1024 * i}"), Ins(f"s_add_u32 s{sT0}, s{sC0}, {9216 * i}"),
                        Ins(f"buffer_load_dwordx4 v{vTMP}, {srd(sX)}, s{sT0} offen lds", tag="xr")]
            seq += [Ins(f"s_add_u32 m0, s{sM0W}, {XRESN}"), Ins(f"buffer_load_dwordx4 v{vXN}, {srd(sX)}, s{sXN} offen lds", tag="xr")]
            k = lay(0, [self.poll()] + seq)
            e1 = self.o.get("ne1", 3)
            rd = lambda: [Ins("s_waitcnt vmcnt(63)", auto=["poll"])] + [i for i in self.ready() if i.op != "s_nop"]
            k = lay(k, rd() + self.weave(self.pload(0, e1)))
            if self.ne > e1:
                k1 = 96 - 13 - 8 * (self.ne - e1) - self.o.get('eoff', 0) - (5 if self.o.get('opf', 0) else 0)
                k1 = max(k1, k)
                lay(k1 - 21, [self.poll()])
                k = lay(k1, rd() + self.opf() + self.weave(self.pload(e1, self.ne - e1)))
            assert k <= 96, k
        for tau in range(4 * kt0, 4 * kt0 + 32):
            kt, q = tau // 4, tau % 4
            ms = list(self.qk((tau + 1) % 4, (tau + 1) % 4, (tau + 1) // 4)) + list(self.pv((tau - 1) % 4, (tau - 1) % 4, ((tau - 1) // 4) % 16))
            ex = [[], [], [], []]
            k1, k2, vv = self.kvreads((kt + 1) % 16)
            newstage = (kt + 1) % 8 == 0
            sg = (kt + 1) // 8 % 2
            dma = lambda so, off: Ins(f"buffer_load_dwordx4 v{vL16}, {srd(sDM)}, 0 offen offset:{off} sc1 lds", tag=f"kv{1 - sg}")
            if last and newstage:
                if q == 0:
                    ex[0] += [Ins("s_waitcnt vmcnt(63)", auto=["wo", "xr"]), Ins("s_barrier", need=["wo"])]
                if q == 3:
                    ms[0] = ms[1] = None
            else:
                if q == 0:
                    if newstage:
                        tg = [f"kv{sg}"] + (["hst"] if sg == 1 else [])
                        ex[0] += [Ins("s_waitcnt vmcnt(63)", auto=tg), Ins("s_barrier", need=tg + ["lds:kvr"])]
                        if sg == 1:
                            ex[0] += [Ins(f"buffer_atomic_add v{vONE}, v{vFLG}, {srd(sDBG)}, s{sHA} offen sc1", tag="arr")]
                    ex[0].append(k1)
                    if k2:
                        ex[2].append(k2)
                    if newstage:
                        ex[2].insert(0, Ins(f"s_add_u32 m0, s{sC1}, {KVS0 + KVST * (1 - sg)}"))
                        ex[3] += [Ins(f"s_mov_b32 s{sHA}, {OOB}")] if sg == 1 else []
                        ex[3].append(dma(sINC, 0))
                if q == 1:
                    ex[0].append(vv[0])
                    ex[2].append(vv[1])
                    if newstage:
                        ex[3].append(dma(sINC, 1024))
                if q == 2:
                    if newstage:
                        ex[0].append(dma(sINC, 2048))
                        ex[2].append(dma(sINC, 3072))
                    ex[3].append(Ins("s_waitcnt lgkmcnt(0)"))
                if q == 3 and newstage:
                    ex[0].append(Ins(f"s_add_u32 m0, s{sC1}, {KVS0 + KVST * (1 - sg) + 4096}"))
                    ex[2].append(Ins(f"buffer_load_dwordx4 v{vL16B}, {srd(sDM)}, 0 offen sc1 lds", tag=f"kv{1 - sg}"))
                    if sg == 1:
                        ex[3].append(Ins(f"s_cmp_eq_u32 s{sIT}, 4"))
                if kt % 8 == 5 and q == 2 and not last:
                    ex[0].append(Ins(f"s_add_u32 s{sDM}, s{sDM}, {KVST}"))
                    ex[2].append(Ins(f"s_addc_u32 s{sDM + 1}, s{sDM + 1}, 0"))
            if not last:
                if kt % 8 == 1 and q == 2:
                    ex[0].append(Ins(f"s_cmp_eq_u32 s{sHI}, {18 * 4096}"))
                    ex[2].append(Ins(f"s_cselect_b32 s{sHI}, 0, s{sHI}"))
                if kt % 8 in (0, 1) and q == 3:
                    ex[0].append(Ins(f"s_add_u32 m0, s{sHI}, s{sM0W}"))
                    ex[2] += [Ins(f"s_add_u32 s{sHI}, s{sHI}, 4096"), Ins(f"buffer_load_dwordx4 v{vWM}, {srd(sWO)}, s{sC0} offen lds", tag="wo")]
                    ex[3].append(Ins(f"s_add_u32 s{sC0}, s{sC0}, {36 * 1152}"))
                if kt == 2 and q == 0:
                    ex[2].append(Ins(f"s_lshl_b32 s{sT0}, s{sIT}, 12"))
                    ex[3].append(Ins(f"s_add_u32 s{sT0}, s{sT0}, s{sM0W}"))
                if kt == 2 and q == 1:
                    ex[0].insert(0, Ins(f"s_add_u32 s{sT0}, s{sT0}, s{sRO}"))
                    ex[2].insert(0, Ins(f"s_cmp_ge_u32 s{sT0}, 18432"))
                    ex[3].append(Ins(f"s_cselect_b32 s{sT1}, 18432, 0"))
                if kt == 2 and q == 2:
                    ex[0].append(Ins(f"s_sub_u32 s{sT0}, s{sT0}, s{sT1}"))
                if kt == 2 and q == 3:
                    ex[0].append(Ins(f"s_add_u32 m0, s{sT0}, {2 * SLOT}"))
                    ex[2] += [Ins(f"s_add_u32 s{sIT}, s{sIT}, 1"), Ins(f"buffer_load_dwordx4 v{vWN}, {srd(sWO)}, s{sSTN} offen lds", tag="wo")]
                    ex[3].append(Ins(f"s_add_u32 s{sSTN}, s{sSTN}, {4 * 36 * 1152}"))
                if self.o.get("cpf", 0) >= 2 and kt == 5 and q == 3:
                    ex[0].append(Ins(f"global_load_dword v{vT3}, {vr(vXE, 2)}, off", tag="pf"))
                if self.wpf and kt % 8 == 3 and q == 2:
                    ex[0].append(Ins(f"s_cmp_lt_u32 s{sIT}, 3"))
                    ex[2].append(Ins(f"s_cselect_b32 s{sT0}, 0, {OOB}"))
                if self.wpf and (kt % 8 == 3 or (kt % 8 == 4 and self.npf == 2)) and q == 3:
                    ex[0].append(Ins(f"s_add_u32 s{sT1}, s{sT0}, s{sPG}"))
                    if kt % 8 == 4:
                        ex[2].append(Ins(f"s_add_u32 s{sT1}, s{sT1}, {self.pfstep * 9216}"))
                    ex[2].append(Ins(f"buffer_load_dword v{vT3}, v{vPF}, {srd(sPF)}, s{sT1} offen", tag="pf"))
                    if kt % 8 == 2 + self.npf:
                        ex[3].append(Ins(f"s_add_u32 s{sPG}, s{sPG}, 128"))
                wd0 = self.o.get("wd0", 0)
                if self.wpf and not wd0 and kt % 8 == 4 and (q == 0 or (q == 2 and self.nd == 2)):
                    ex[0].insert(0, Ins(f"s_add_u32 s{sT1}, s{sT0}, s{sPFO}"))
                    ex[2] += [Ins(f"s_add_u32 s{sPFO}, s{sPFO}, {self.dl * 128}"), Ins(f"buffer_load_dword v{vT3}, v{vPD}, {srd(sD)}, s{sT1} offen", tag="pf")]
                if self.wpf and wd0 and kt % 8 == 4:
                    if q == 0:
                        ex[2].append(Ins(f"s_cmp_eq_u32 s{sIT}, {wd0 + 1}"))
                        ex[3].append(Ins(f"s_cselect_b32 s{sT1}, s{sPFO}, {OOB}"))
                    if q in (2, 3):
                        ex[0].append(Ins(f"s_add_u32 s{sT0}, s{sT1}, {self.dl * 128 * (2 * (kt // 8) + q - 2)}"))
                        ex[2].append(Ins(f"buffer_load_dword v{vT3}, v{vPD}, {srd(sD)}, s{sT0} offen", tag="pf"))
            sb = vS_ + 16 * (tau % 4)
            for m in range(4):
                if ms[m]:
                    a.add(ms[m])
                st = stream.get((tau, m), [])
                a.extend([i for i in st if i.kind not in ("vmem", "valu")] + ex[m] + [i for i in st if i.kind in ("vmem", "valu")])
                for e in range(4):
                    a(f"v_exp_f32 v{sb + 4 * m + e}, v{sb + 4 * m + e}")

    def att(self):
        ne, n2, n3 = self.ne, self.n2, self.n3
        pload, pacc = self.pload, self.pacc
        s = self.seg("attpre")
        if self.stamps and self.o.get("gst"):
            s("s_waitcnt lgkmcnt(0)")
            for k, (p, r) in enumerate(self.gst):
                s(f"v_writelane_b32 v0, s{r}, {2 * (20 + k)}")
        self.stamp(s, 3)
        s("s_waitcnt vmcnt(63) lgkmcnt(0)", auto=["kv0"])
        s("s_barrier", need=["kv0", "lds:r6"])
        k1, k2, vv = self.kvreads(0)
        s.extend([k1, k2, self.kvreads(1)[0]] + vv)
        for u in range(2):
            s(f"v_cvt_pk_bf16_f32 v{vQ2 + 8 * u}, v{vEX + 4 * u}, v{vEX + 4 * u + 1}")
        s("s_nop 0")
        for u in range(2):
            s(f"v_permlane32_swap_b32 v{vQ2 + 8 * u}, v{vQ2 + 8 * u + 4}")
        for q in range(4):
            s(f"v_mov_b32 v{vQ2 + 4 * q + 3}, v{vQ2 + 4 * q}")
        s("s_waitcnt lgkmcnt(2)")
        vMX = 28

        def mx(q, first):
            b, m = vS_ + 16 * q, vMX + q
            if first:
                return [f"v_max_f32 v{m}, v{b}, v{b + 1}"] + [f"v_max3_f32 v{m}, v{m}, v{b + j}, v{b + j + 1}" for j in range(2, 16, 2)]
            return [f"v_max3_f32 v{m}, v{m}, v{b + j}, v{b + j + 1}" for j in range(0, 16, 2)] + [f"v_mov_b32 v{b}, v{m}"]

        def fin(q):
            b, m = vS_ + 16 * q, vMX + q
            return [f"v_permlane32_swap_b32 v{m}, v{b}", f"v_max_f32 v{m}, v{m}, v{b}", f"v_sub_f32 v{m}, {f32(-MOFF)}, v{m}",
                    f"v_cvt_pk_bf16_f32 v{m}, v{m}, 0", f"v_cndmask_b32 v{vQ2 + 4 * q}, v{vQ2 + 4 * q}, v{m}, {MSK}", f"v_mov_b32 v{vQ2 + 4 * q + 3}, v{vQ2 + 4 * q}"]

        for q in range(4):
            m0, m1 = self.qk(q, q, 1)
            s.add(m0)
            s(f"buffer_store_dwordx4 {vr(vH1 + 4 * q)}, v{vL16}, {srd(sWS)}, s{sST} offen offset:{1024 * q} sc1", tag="hst")
            s.add(m1)
        s("s_nop 2")
        for q in range(4):
            m0, m1 = self.qk(q, q, 0)
            l = mx(q, True)
            for x in (l if q == 0 else l[4:]):
                s(x)
            s.add(m0)
            s(f"buffer_store_dwordx4 {vr(vXB)}, v{vL16}, {srd(sWS)}, s{sFLN} offen offset:{1024 * q} sc1", tag="hst")
            for x in (mx(q + 1, True)[:4] if q < 3 else mx(0, False)[:4]):
                s(x)
            s.add(m1)
        for x in mx(0, False)[4:] + mx(1, False) + fin(0) + mx(2, False)[:2]:
            s(x)
        m0, m1 = self.qk(0, 0, 0)
        s.add(m0)
        zo = [f"v_mfma_f32_32x32x8bf16_1k {vr(vO_ + 16 * q, 16)}, {ar(aV_ + 8, 2)}, {ar(aV_ + 8, 2)}, 0" for q in range(4)] if self.o.get("ozm", 0) else []
        if self.wpf and self.o.get("p4", 1) == 1:
            s.extend(self.pf2(512))
        for x in mx(2, False)[2:]:
            s(x)
        s.add(m1)
        for k, x in enumerate(fin(1) + mx(3, False) + fin(2) + fin(3)):
            s(x)
            if zo and k % 7 == 5:
                s(zo.pop())
        assert not zo
        for r in range(vS_ + 48, vS_ + 64):
            s(f"v_mov_b32 v{r}, 0")
        s("s_waitcnt lgkmcnt(0)")
        self.stamp(s, 16)
        s(".p2align 3")
        a = self.seg("att0")
        a("L_att:")
        self.att_stage(a, 0, False)
        a("s_cbranch_scc1 L_attl")
        a = self.seg("att1")
        self.att_stage(a, 8, False)
        a("s_branch L_att\n.p2align 3")
        a = self.seg("attl")
        a("L_attl:")
        self.att_stage(a, 8, True)
        a("s_nop 1")
        a.extend(self.pv(3, 3, 15))
        self.stamp(a, 4)
        s = self.seg("opub")
        s(f"""L_opub:
        s_lshl_b32 s{sT0}, s{sS}, 11
        s_add_u32 s{sT0}, s{sT0}, s{sOM}
        s_add_u32 s{sT1}, s{sT0}, 18432
        s_lshl_b32 s{sT2}, s{sS}, 8
        s_add_u32 s{sT2}, s{sT2}, s{sOM}
        s_add_u32 s{sT2}, s{sT2}, 16384""")
        vR, vW, vE = 192, 196, vS_ + 16
        for q in range(4):
            o, p = vO_ + 16 * q, vS_ + 4 * q
            u, hp = q // 2, q % 2
            if q == 0:
                for k in range(3):
                    s(f"v_rcp_f32 v{vR + k}, v{vO_ + 16 * k + 10}")
            if q == 2:
                s(f"v_rcp_f32 v{vR + 3}, v{vO_ + 48 + 10}")
            s(f"v_mul_f32 v{vR + q}, {f32(ALPHA)}, v{vR + q}")
            for j in range(10):
                s(f"v_mul_f32 v{vW + j}, v{o + j}, v{vR + q}")
            s(f"v_cvt_pk_bf16_f32 v{vE + 2 * hp + u}, v{vW + 8}, v{vW + 9}")
            for j in range(4):
                s(f"v_cvt_pk_bf16_f32 v{p + j}, v{vW + 2 * j}, v{vW + 2 * j + 1}")
            if u == 1:
                s(f"v_permlane16_swap_b32 v{vE + 2 * hp}, v{vE + 2 * hp + 1}")
            s(f"buffer_store_dwordx4 {vr(p)}, v{vL16}, {srd(sWS)}, s{sT0 + u} offen offset:{1024 * hp} sc1", tag="ost")
        s(f"buffer_store_dwordx4 {vr(vE)}, v{vOE}, {srd(sWS)}, s{sT2} offen sc1", tag="ost")
        s.add(self.poll())
        s(f"""s_cmp_lg_u32 s{sSK}, 0
        s_cbranch_scc1 L_chkd""")
        s = self.seg("chk")
        s(f"""s_mov_b32 s{sT0}, {f32(2.0 ** -126)}
        s_mov_b32 s{sT1}, {f32(2.0 ** 124)}""")
        t = 192
        for q in range(4):
            o = vO_ + 16 * q
            s(f"""v_cndmask_b32 v{t + 2}, v{o + 8}, v{o + 10}, {MSK}
            v_cndmask_b32 v{t + 3}, v{o + 9}, v{o + 10}, {MSK}""")
            if q == 0:
                s(f"v_min3_f32 v{t}, abs(v{t + 2}), abs(v{t + 3}), v{o + 10}\nv_add_f32 v{t + 1}, abs(v{t + 2}), v{o + 10}")
            else:
                s(f"""v_min3_f32 v{t}, v{t}, abs(v{t + 2}), abs(v{t + 3})
                v_min_f32 v{t}, v{t}, v{o + 10}
                v_add_f32 v{t + 1}, v{t + 1}, v{o + 10}
                v_add_f32 v{t + 1}, v{t + 1}, abs(v{t + 2})""")
            s(f"v_add_f32 v{t + 1}, v{t + 1}, abs(v{t + 3})")
            for j in range(0, 8, 2):
                s(f"""v_min3_f32 v{t}, v{t}, abs(v{o + j}), abs(v{o + j + 1})
                v_add_f32 v{t + 1}, v{t + 1}, abs(v{o + j})
                v_add_f32 v{t + 1}, v{t + 1}, abs(v{o + j + 1})""")
        s(f"""v_cmp_nle_f32 vcc, s{sT0}, v{t}
        v_cmp_ngt_f32 {MK2}, s{sT1}, v{t + 1}
        s_nop 0
        s_or_b64 vcc, vcc, {MK2}""")
        if self.forcefb:
            s("s_or_b64 vcc, vcc, 1")
        s("s_cbranch_scc1 L_fb")
        s = self.seg("opub2")
        s("L_chkd:")
        vXR, vXU = 176, 96
        for j in range(8):
            s(f"ds_read_b64 {vr(vXR + 2 * j, 2)}, v{vTMP + j // 2 if j > 1 else vBA} offset:{2048 * (j % 2)}", need=["xr"])
        s(f"ds_read_b64 {vr(vXR + 16, 2)}, v{vXNA}")
        unp = []
        for j in range(9):
            d = vXU + 4 * j if j < 8 else vXE
            for e in range(2):
                unp += [Ins(f"v_lshlrev_b32 v{d + 2 * e}, 16, v{vXR + 2 * j + e}"), Ins(f"v_and_b32 v{d + 2 * e + 1}, 0xffff0000, v{vXR + 2 * j + e}")]
        s("s_waitcnt vmcnt(0)")
        s(f"buffer_store_dword v{vONE}, v{vFO}, {srd(sWS)}, s{sOF} offen sc1", need=["ost"])
        self.stamp(s, 5)
        rd = self.ready()
        s.extend(rd[:3])
        s(f"""s_andn2_b32 s{sT0}, s{sOTH}, vcc_lo
        s_waitcnt lgkmcnt(0)
        s_cbranch_scc0 L_ogatf""")
        s = self.seg("opub3")
        s.add(rd[3])
        s.extend(self.opf())
        s.add(self.poll())
        pl = self.weave(pload(ne, n2))
        mf = pacc(0, ne)
        up2 = [Ins(i.text) for i in unp]
        k = 0
        while pl or mf or up2:
            if mf:
                s.add(mf.pop(0))
            if pl and k % 3 == 0:
                while pl[0].kind == "salu":
                    s.add(pl.pop(0))
                s.add(pl.pop(0))
            else:
                s.extend(up2[:2])
                up2 = up2[2:]
            k += 1
        s(f"s_mov_b32 s{sT3}, 0")
        s = self.seg("wo0")
        s(f"L_wo0:\ns_waitcnt vmcnt({4 * n2})")
        s = self.seg("wo1")
        s("L_wo1:")
        rd = self.ready()
        s.extend(rd[:3])
        s(f"""s_andn2_b32 s{sT0}, s{sOTH}, vcc_lo
        s_cbranch_scc0 L_ogat""")
        if self.o.get("opf", 0):
            s(f"s_and_b32 s{sT0}, vcc_lo, s{sTO}\ns_cbranch_scc0 L_wo1b")
            self.seg("wo1a").extend(self.opf())
        s = self.seg("wo1b")
        s("L_wo1b:")
        s.add(self.poll())
        s(f"""s_add_u32 s{sT3}, s{sT3}, 1
        s_cmp_gt_u32 s{sT3}, 0x40000
        s_cbranch_scc1 L_end""")
        s.add(rd[3])
        s("s_cbranch_scc1 L_wo2")
        s = self.seg("wo1c")
        s("s_waitcnt vmcnt(0)\ns_branch L_wo1")
        s = self.seg("wo2")
        s("L_wo2:\ns_waitcnt vmcnt(1)")
        pl = pload(ne, n2)
        for i in range(n2):
            mf = pacc(ne + i, 1)
            for k in range(8):
                s.add(mf[k])
                if k < 7:
                    s.add(pl[11 * i + k])
            s.extend(pl[11 * i + 7:11 * i + 11])
        s("s_branch L_wo0")
        gl = []
        for kb in range(6):
            for u in range(2):
                for i in range(3):
                    k = 3 * kb + i
                    q = [Ins(f"s_add_u32 s{sA}, s{sOM1 if k >= 9 and not self.o.get('opf', 0) else sOM0}, {1024 * (18 * u + k)}")] if i == 0 else []
                    gl.append(q + [Ins(f"buffer_load_dwordx4 {xn(u, k)}, v{vL16}, {srd(sWS)}, s{sA} offen offset:{1024 * i} sc1", tag=f"og{kb}")])
        ng = self.o.get("ngpre", 12)
        tf = Timeline()
        vX2 = 28
        n = 0
        for kb in range(6):
            for ct in range(5):
                g0 = 30 * kb + 6 * ct
                for i in range(3):
                    k = 3 * kb + i
                    f = aFR + 4 * ((15 * kb + 3 * ct + i) % 18)
                    for hh in range(2):
                        if ct < 4:
                            off = 4096 * k + 2048 * hh
                            ins = Ins(f"ds_read_b64_tr_b16 {ar(f + 2 * hh, 2)}, v{vRB + 4 * (off // 65536) + ct} offset:{off % 65536}", tag="fr")
                        else:
                            ins = Ins(f"ds_read_b64_tr_b16 {ar(f + 2 * hh, 2)}, v{vRN} offset:{1024 * k + 512 * hh}", tag="fr")
                        tf.place(Item("r", ins, 0, earliest=g0 - 36 + 3 + i), n - 16)
                        n += 1
                    for u in range(2):
                        c = vr(vG + 4 * (2 * ct + u)) if ct < 4 else vr(vX2 if u else vXB)
                        tf.m[g0 + 3 * u + i] = Ins(f"v_mfma_f32_16x16x32_bf16 {c}, {ar(f)}, {xn(u, k)}, {'0' if ct == 4 and k == 0 else c}")
            if kb:
                tf.gap(30 * kb - 1).shadow.append(Ins("s_waitcnt vmcnt(63)", auto=[f"og{kb}"]))
        pre0 = tf.emit(-16, 0)
        cp = lambda l: [Ins(i.text, tag=i.tag) for i in l]
        s = self.seg("ogatf")
        s("L_ogatf:")
        if self.o.get("gbar", 1):
            s("s_barrier")
        self.stamp(s, 6)
        mf, pre = pacc(0, ne), cp(pre0)
        per = -(-len(mf) // (ng - 4))
        for q in gl[:ng]:
            s.extend(cp(q))
            if mf:
                for m in mf[:per]:
                    s.add(m)
                    s.extend(unp[:1])
                    unp = unp[1:]
                mf = mf[per:]
            else:
                s.extend(pre[:4])
                pre = pre[4:]
        s.extend(pre + unp)
        s("s_branch L_ogatc")
        s = self.seg("ogat")
        s("L_ogat:")
        if self.o.get("gbar", 1):
            s("s_barrier")
        self.stamp(s, 6)
        pre = list(pre0)
        for q in gl[:ng]:
            s.extend(q)
            s.extend(pre[:1])
            pre = pre[1:]
        s.extend(pre)
        s("s_waitcnt vmcnt(63)", auto=[f"pl{i}" for i in range(ne, ne + n2)])
        s.extend(pacc(ne, n2))
        s = self.seg("ogatc")
        s("L_ogatc:")
        s("s_waitcnt vmcnt(63) lgkmcnt(0)", auto=["og0"])
        gs = self.o.get("gstep", 4)
        for k, q in enumerate(gl[ng:]):
            p = 1 + gs * k
            p += 1 if p % 30 == 29 else 0
            tf.gap(p).shadow.extend(q[:-1])
            tf.gap(p).mem.append(q[-1])
        n4 = self.o.get("n4", 1)
        i3, i4 = ne + n2, ne + n2 + n3
        assert n3 + n4 <= 5

        def rnd(p, i0, n):
            rd = self.ready()
            tf.gap(p).shadow.append(Ins("s_waitcnt vmcnt(63)", auto=["poll"]))
            tf.gap(p).valu.append(rd[0])
            p, lastm = p + 1, 0
            for i in rd[2:3] + [self.poll()] + rd[3:] + self.weave(pload(i0, n)):
                if i.kind == "salu":
                    tf.gap(p).shadow.append(i)
                    p += 1
                else:
                    p = max(p, lastm + 3)
                    lastm = p
                    tf.gap(p - 1).mem.append(i)
            return p

        p1 = p + 1
        tf.gap(p1 - 50).mem.append(self.poll())
        p = rnd(p1, i3, n3)
        p2 = self.o.get("p2", 180 - 12 - 12 * n4)
        assert p <= p2, (p, p2)
        p = rnd(p2, i4, n4)
        assert p < 181, p
        if self.stamps and self.o.get("fst"):
            fst = list(zip((0, 31, 61, 91, 121, 151), (66, 68, 52, 54, 100, 72)))
            for p, r in fst:
                tf.gap(p).shadow.append(Ins(f"s_memtime s[{r}:{r + 1}]"))
        tf.insert_lgkm_waits(0, 180, [])
        s.extend(tf.emit(0, 180))
        s = self.seg("xud")
        if self.stamps and self.o.get("fst"):
            s("s_waitcnt lgkmcnt(0)")
            for k, (p, r) in enumerate(fst):
                s(f"v_writelane_b32 v0, s{r}, {2 * (20 + k)}")
        self.stamp(s, 7)
        s(f"s_mov_b32 s{sT2}, {f32(1.0 / ALPHA ** 2)}\ns_mov_b32 s{sT3}, 0")
        self.sk3 = self.pacc_opt("sk3", i3, n3)
        s = self.segs[-1]
        s(f"s_nop 3\ns_bitcmp1_b32 s{sS}, 2\ns_cselect_b64 {MK2}, -1, 0")
        for e in range(4):
            s(f"v_cndmask_b32 v{vXB + e}, v{vXB + e}, v{vX2 + e}, {MK2}")
        s = self.seg("e1")
        s(f"""L_e1:
        s_cmp_eq_u32 s{sTODO}, 0
        s_cbranch_scc1 L_e2""")
        s = self.seg("e1b")
        s("s_waitcnt vmcnt(0)")
        s.extend(pacc(i4, n4))
        s = self.seg("e1c")
        s("L_e1c:")
        rd = self.ready()
        s.extend(rd[:3] + [self.poll()])
        s(f"""s_add_u32 s{sT3}, s{sT3}, 1
        s_cmp_gt_u32 s{sT3}, 0x40000
        s_cbranch_scc1 L_end""")
        s.add(rd[3])
        s("s_cbranch_scc1 L_e1e")
        s = self.seg("e1d")
        s("s_waitcnt vmcnt(0)\ns_branch L_e1c")
        s = self.seg("e1e")
        s("L_e1e:")
        s.extend(self.weave(pload(i4, n4)))
        s("s_branch L_e1")
        vLP = 32
        lastl = lambda: [Ins(f"buffer_load_dwordx2 {vr(vLP + 2 * p, 2)}, v{vL8}, {srd(sWS)}, s{sFLN} offen offset:{512 * p} sc1", tag="pll") for p in range(8)]
        s = self.seg("fmain")
        s("L_e2:")
        self.stamp(s, 17)
        s(f"s_mov_b32 s{sLST}, 1")
        s.extend(lastl())
        self.sk4 = self.pacc_opt("sk4", i4, n4)
        s = self.segs[-1]
        s.add(self.poll())
        self.stamp(s, 18)
        for j in range(8):
            c = vG + 4 * j
            for e in range(4):
                s(f"v_fma_f32 v{c + e}, v{c + e}, s{sT2}, v{vXU + 4 * j + e}")
            s(f"v_cvt_pk_bf16_f32 v{c}, v{c}, v{c + 1}\nv_cvt_pk_bf16_f32 v{c + 1}, v{c + 2}, v{c + 3}")
        for j in range(8):
            s(f"ds_write_b64 v{vTMP + j // 2 if j > 1 else vBA}, {vr(vG + 4 * j, 2)} offset:{2048 * (j % 2)}")
        for i in range(4):
            s(f"ds_read_b128 {vr(vXU + 4 * i)}, v{vOL} offset:{1024 * i}")
        for i in range(4):
            s(f"s_waitcnt lgkmcnt({3 - i})")
            s(f"buffer_store_dwordx4 {vr(vXU + 4 * i)}, v{vTMP}, {srd(sOUT)}, s{sC0} offen")
            if i < 3:
                s(f"s_add_u32 s{sC0}, s{sC0}, 9216")
        self.stamp(s, 8)
        s("s_waitcnt vmcnt(5)")
        s = self.seg("e3")
        s("L_e3:")
        s(f"v_max3_u32 v{vT0}, v{vLP}, v{vLP + 1}, v{vLP + 2}")
        for j in range(3, 15, 2):
            s(f"v_max3_u32 v{vT0}, v{vT0}, v{vLP + j}, v{vLP + j + 1}")
        s(f"""v_max_u32 v{vT0}, v{vT0}, v{vLP + 15}
        v_cmp_eq_u32 vcc, -1, v{vT0}
        s_cmp_eq_u32 s{sLST}, 0
        s_cbranch_vccz L_fin
        s_cbranch_scc1 L_fin""")
        s = self.seg("e3b")
        s(f"s_waitcnt vmcnt(4)\nv_cmp_eq_u32 vcc, 0, v{vPOL}")
        s.extend(lastl())
        s(f"s_and_b32 s{sLST}, vcc_lo, 0xff0000")
        s.add(self.poll())
        s(f"""s_add_u32 s{sT3}, s{sT3}, 1
        s_cmp_lt_u32 s{sT3}, 0x40000
        s_waitcnt vmcnt(0)
        s_cbranch_scc1 L_e3
        s_endpgm""")
        s = self.seg("fin")
        s("L_fin:")
        for p in range(4):
            s(f"v_mfma_f32_16x16x32_bf16 {vr(vXB)}, {vr(vSEL + 6)}, {vr(vLP + 4 * p)}, {vr(vXB)}")
        s("s_nop 7")
        for e in range(4):
            s(f"v_fma_f32 v{vXB + e}, v{vXB + e}, s{sT2}, v{vXE + e}")
        s(f"""v_cvt_pk_bf16_f32 v{vXB}, v{vXB}, v{vXB + 1}
        v_cvt_pk_bf16_f32 v{vXB + 1}, v{vXB + 2}, v{vXB + 3}
        buffer_store_dwordx2 {vr(vXB, 2)}, v{vOA}, {srd(sOUT)}, s{sXN} offen""")
        self.stamp(s, 9, True)
        self.stamp_flush(s)
        s("s_endpgm")

    def fallback(self):
        vM = 192
        s = self.seg("fb0")
        s(f"""L_fb:
        s_waitcnt vmcnt(0) lgkmcnt(0)
        v_and_b32 v{vT0}, 31, v{vL}
        v_lshlrev_b32 v{vT0}, 4, v{vT0}
        v_subrev_u32 v{vT1}, {KVS0}, v{vVA}
        v_accvgpr_write_b32 a{aK2 + 1}, 0
        s_mov_b32 s{sIT}, 0
        s_mov_b32 s{sSK}, 1""")
        for q in range(4):
            s(f"v_cndmask_b32 v{vQ2 + 4 * q}, v{vQ2 + 4 * q}, 0, {MSK}\nv_mov_b32 v{vM + q}, 0xff800000")
        for r in range(vO_, vO_ + 64):
            s(f"v_mov_b32 v{r}, 0")

        def loads(k, withv):
            k(f"""s_lshr_b32 s{sT0}, s{sIT}, 3
            s_mul_i32 s{sT0}, s{sT0}, {KVST}
            s_and_b32 s{sT1}, s{sIT}, 7
            s_lshl_b32 s{sT2}, s{sT1}, 10
            s_add_u32 s{sT2}, s{sT2}, s{sT0}
            buffer_load_dwordx4 {ar(aK1)}, v{vL16}, {srd(sWS)}, s{sT2} offen sc1
            s_lshr_b32 s{sT2}, s{sT1}, 2
            s_mul_i32 s{sT2}, s{sT2}, 640
            s_and_b32 s{sT3}, s{sT1}, 3
            s_lshl_b32 s{sT3}, s{sT3}, 2
            s_add_u32 s{sT2}, s{sT2}, s{sT3}
            s_add_u32 s{sT2}, s{sT2}, s{sT0}
            s_add_u32 s{sT2}, s{sT2}, 18432
            buffer_load_dword a{aK2}, v{vT0}, {srd(sWS)}, s{sT2} offen sc1""")
            if withv:
                k(f"""s_mul_i32 s{sT2}, s{sT1}, 1280
                s_add_u32 s{sT2}, s{sT2}, s{sT0}
                buffer_load_dwordx4 {ar(aV_)}, v{vT1}, {srd(sWS)}, s{sT2} offen sc1
                buffer_load_dwordx4 {ar(aV_ + 4)}, v{vT1}, {srd(sWS)}, s{sT2} offen offset:640 sc1""")
            k("s_waitcnt vmcnt(0)")
            for q in range(4):
                k.extend(self.qk(q, q, 0))
            k("s_nop 11")

        k = self.seg("fb1")
        k("L_fb1:")
        loads(k, False)
        for q in range(4):
            for j in range(0, 16, 2):
                k(f"v_max3_f32 v{vM + q}, v{vM + q}, v{vS_ + 16 * q + j}, v{vS_ + 16 * q + j + 1}")
        k(f"""s_add_u32 s{sIT}, s{sIT}, 1
        s_cmp_lt_u32 s{sIT}, 64
        s_cbranch_scc1 L_fb1""")
        k = self.seg("fb2")
        for q in range(4):
            k(f"v_mov_b32 v{vS_ + q}, v{vM + q}")
        k("s_nop 0")
        for q in range(4):
            k(f"v_permlane32_swap_b32 v{vM + q}, v{vS_ + q}")
        for q in range(4):
            k(f"v_max_f32 v{vM + q}, v{vM + q}, v{vS_ + q}")
        k(f"s_mov_b32 s{sIT}, 0")
        k = self.seg("fb3")
        k("L_fb3:")
        loads(k, True)
        for q in range(4):
            for j in range(16):
                k(f"v_sub_f32 v{vS_ + 16 * q + j}, v{vS_ + 16 * q + j}, v{vM + q}")
            for j in range(16):
                k(f"v_exp_f32 v{vS_ + 16 * q + j}, v{vS_ + 16 * q + j}")
        k("s_nop 1")
        for q in range(4):
            k.extend(self.pv(q, q, 0))
        k(f"""s_add_u32 s{sIT}, s{sIT}, 1
        s_cmp_lt_u32 s{sIT}, 64
        s_cbranch_scc1 L_fb3""")
        k = self.seg("fb4")
        k("s_nop 11\ns_branch L_opub")


DEFAULTS = dict(fpos=66, cpf=2, ngpre=18, gstep=5, n3=2, p2=140, ne=5, pack=2, n2=2, npf0=0, nup=10, npre=6, g0=0, wskip=0, vpf=1, late=1, kpos=30, kvn=15, defer=7, ozm=1, p3=401, p4=405, align=1)


def build(path, C=2, stamps=False, xpf=False, wpf=True, forcefb=False, verbose=True, **kw):
    kw = dict(DEFAULTS, **kw)
    g = Gen1(C=C, stamps=stamps, xpf=xpf, wpf=wpf, **kw)
    g.forcefb = forcefb
    g.kvpoll, g.kvchk = kw.get("kvpoll", 300), kw.get("kvchk", 356)
    g.ne, g.n2, g.n3, g.etau = kw.get("ne", 4), kw.get("n2", 2), kw.get("n3", 2), kw.get("etau", 50)
    g.prologue()
    g.p0()
    g.p1()
    al = kw.get("align", 0)
    if al:
        names = ["ln", "ln2", "p1a", "opub", "chk", "sk4", "attpre", "e3", "fin"]
        if al >= 2:
            names += ["p0pre", "aloop", "aloop2", "b0", "p1gemm"]
        if al >= 3:
            names += ["attpre", "att0", "att1", "attl", "opub", "chk", "sk4", "opub3", "ogatf"]
        align_pass(g.segs, names, ("ln", "ln2", "p1a", "sk4", "chk", "e3"))
    probs = []
    traces = [("P0", g.trace(["entry", "entry1"] + (["pfe"] if kw.get("early") == 2 else []) + ["entry2", "p0x", "ln", "ln2", "p0pre"] + (["aloop", "aloop2"] * 7)[(1 if kw.get("late") else 0):] + ["aexit", "aswitch", "aswitch2", "aloop", "aloop2", "aexit", "b0"] + ["bloop", "bloop2"] * 3 + ["bloop", "bend"]))]
    for u in range(2):
        for o in range(2):
            fb = ["fb0", "fb1", "fb1", "fb2", "fb3", "fb3", "fb4", "opub"] if o else []
            for end in (["sk3", "e1", "fmain", "sk4", "e3", "fin"], g.sk3 + ["sk3", "e1", "fmain"] + g.sk4 + ["sk4", "e3", "fin"],
                        g.sk3[:1] + ["sk3", "e1", "e1b", "e1c", "e1d", "e1c", "e1e", "e1", "e1b", "e1c", "e1e", "e1", "fmain"] + g.sk4 + ["sk4", "e3", "e3b", "e3", "fin"]):
                t1 = ["entry", ("tl0", "tl2", "tl3", "tl0")[2 * u + o], "entry1"] + (["pfe"] if kw.get("early") == 3 else []) + ["entry2", "p1pre", "ln", "kvdma", "ln2", "p1a", f"kv{u}{o}", "p1gemm", "attpre"] + ["att0", "att1"] * 3 + ["att0", "attl"] + \
                     ["opub", "chk"] + fb + ["opub2"] + (["ogatf"] if u else ["opub3", "wo0", "wo1"] + (["wo1a", "wo1b", "wo1c", "wo1", "wo1b", "wo2", "wo0", "wo1", "wo1b", "wo2", "wo0", "wo1"] if o else []) + ["ogat"]) + ["ogatc", "xud"] + end
                traces.append(("P1", g.trace(t1)))
    auto_vm([t for _, t in traces])
    for n, t in traces:
        probs += check_trace(t, n)
    seen = set()
    for p in probs:
        key = p.split("'", 1)[1]
        if key not in seen:
            seen.add(key)
            print(p)
    if verbose:
        for s in g.segs:
            n = sum(1 for i in s.ins if i.kind != "label")
            nm = sum(1 for i in s.ins if i.kind == "mfma")
            if n > 40:
                print(f"{s.name:10s} ins {n:5d} mfma {nm:4d} est {est_cycles(s.ins)}")
    open(path, "w").write(g.text())
    return len(seen)


if __name__ == "__main__":
    import argparse
    ap = argparse.ArgumentParser()
    ap.add_argument("-o", default="cdna_kernels/" + NAME + ".s")
    ap.add_argument("-C", type=int, default=2)
    ap.add_argument("--stamps", action="store_true")
    ap.add_argument("--xpf", action="store_true")
    ap.add_argument("--nowpf", action="store_true")
    ap.add_argument("--fb", action="store_true")
    ap.add_argument("kw", nargs="*")
    a = ap.parse_args()
    kw = {}
    for x in a.kw:
        k, v = x.split("=")
        kw[k] = int(v) if v.lstrip("-").isdigit() else " " + v
    n = build(a.o, a.C, a.stamps, a.xpf, not a.nowpf, a.fb, **kw)
    print("problems:", n)
```

```python
from gen import *

vQ1, vQ2 = 96, 112
vS_, vO_, vH1 = 32, 128, 192
aK1, aK2, aV_ = 216, 224, 232
aKV = 216
vKVA, vEX = 192, 32
(vEP, vKR, vINB, vQM, vQX, vRX, vDP, vKA, vK2A, vVA, vIDX, vWM, vWX, vWN, vWNX, vXN, vPD, vOE, vFO, vBA, vXNA, vOA, vRN, vOL,
 vAND, vOR, vZ) = range(209, 236)
vL8, vL16B = 246, 247
vSEL = 236
vXB, vXE = 248, 252
XRES, XRESN = 94208, 151552
sXL, sXN, sPB, sPG, sK2, sK1, sKS, sOM, sOF, sHA, sSK = 48, 49, 50, 51, 68, 69, 70, 71, 0, 1, 3
sRDY, sTODO, sLST, sOM0, sOM1, sRO, sOTH, sTO = 60, 61, 62, 63, 64, 65, 66, 67
sOFA, sGA, sNA, vFO2 = 67, 100, 101, vRX
vOP, vOQ = vQM, vQX
MSK = f"s[{sMASK}:{sMASK + 1}]"
MK2 = f"s[{sMK2}:{sMK2 + 1}]"


class Gen1(Gen):
    def spin(self, name, mask, lim="0x40000"):
        s = self.seg(name)
        s(f"""s_mov_b32 s{sT1}, 0
        L_{name}:
        buffer_load_dword v{vPOL}, v{vINB}, {srd(sWS)}, s{sFL} offen sc1
        s_add_u32 s{sT1}, s{sT1}, 1
        s_cmp_gt_u32 s{sT1}, {lim}
        s_cbranch_scc1 L_end
        s_waitcnt vmcnt(0)
        v_cmp_eq_u32 vcc, 0, v{vPOL}
        s_nop 1
        s_and_b64 vcc, vcc, {mask}
        s_cbranch_scc1 L_{name}""")

    def oolspin(self, name, mask):
        self.seg(name + "_a")(f"L_{name}_in:")
        self.spin(name, mask)
        self.seg(name + "_b")(f"s_branch L_{name}_out")

    def p1pre(self):
        s = self.seg("p1pre")
        A, B, Cc, Dd, T, G_, OB = 192, 193, 194, 195, 196, 197, 198
        a, b, c, d = sT0, sT1, sT3, sA
        s(f"""v_and_b32 v{T}, 15, v{vL}
        v_lshrrev_b32 v{G_}, 4, v{vL}
        v_mov_b32 v{OB}, {OOB}
        v_mov_b32 v{vZ}, 0
        v_mov_b32 v{vIDX}, 0xdddddddd""")
        s(f"""v_lshrrev_b32 v{A}, 1, v{vL}
        v_mul_u32_u24 v{B}, 36, v{A}
        v_and_b32 v{Dd}, 1, v{vL}
        v_lshl_add_u32 v{B}, v{Dd}, 4, v{B}
        s_and_b32 s{a}, s{sS}, 1
        s_lshl_b32 s{a}, s{a}, 5
        s_mul_i32 s{b}, s{sW}, 1152
        s_add_u32 s{a}, s{a}, s{b}
        v_add_u32 v{vKD}, s{a}, v{B}
        v_mul_u32_u24 v{A}, 1152, v{A}
        v_lshl_add_u32 v{A}, v{Dd}, 4, v{A}
        v_cndmask_b32 v{vXN}, v{A}, v{OB}, {MSK}
        v_bfe_u32 v{A}, v{vL}, 2, 2
        v_lshl_add_u32 v{A}, v{G_}, 3, v{A}
        v_and_b32 v{B}, 3, v{vL}
        v_lshlrev_b32 v{Cc}, 3, v{B}
        v_lshl_add_u32 v{Cc}, v{A}, 5, v{Cc}
        v_add_u32 v{vKR}, {(4 if self.late and self.o.get('kve', 1) else 3) * SLOT}, v{Cc}
        v_add_u32 v{Cc}, v{Cc}, v{Cc}
        v_add_u32 v{vRX}, {2 * SLOT}, v{Cc}
        v_lshrrev_b32 v{A}, 2, v{vL}
        v_lshlrev_b32 v{Cc}, 5, v{A}
        v_lshl_add_u32 v{Cc}, v{B}, 3, v{Cc}
        v_add_u32 v{vRN}, {2 * SLOT}, v{Cc}
        s_lshl_b32 s{a}, s{sW}, 4
        v_add_u32 v{A}, s{a}, v{A}
        v_mul_u32_u24 v{A}, 1152, v{A}
        v_mul_u32_u24 v{B}, 36, v{B}
        v_add3_u32 v{vQX}, v{A}, v{B}, 32
        v_mul_u32_u24 v{A}, 1152, v{vTMP + 3}
        v_mul_u32_u24 v{B}, 36, v{vTMP + 2}
        v_lshlrev_b32 v{Cc}, 4, v{Dd}
        v_add3_u32 v{vQM}, v{A}, v{B}, v{Cc}
        v_and_b32 v{A}, 7, v{vL}
        v_lshlrev_b32 v{vDP}, 2, v{A}
        v_lshlrev_b32 v{A}, 2, v{vL}
        v_cndmask_b32 v{vINB}, v{A}, v{OB}, {MSK}""")
        s(f"""s_bitcmp1_b32 s{sS}, 1
        s_cselect_b32 s{b}, 8, 9
        s_cselect_b32 s{sKS}, 1.0, {f32(CK)}
        s_and_b32 s{a}, s{sS}, 3
        s_cmp_eq_u32 s{a}, 3
        s_cselect_b32 s{b}, 6, s{b}
        v_lshrrev_b32 v{A}, 5, v{vL}
        v_lshlrev_b32 v{A}, s{b}, v{A}
        v_lshl_add_u32 v{A}, v{T}, 4, v{A}
        s_cmp_eq_u32 s{a}, 1
        s_cselect_b32 s{b}, 3, 1
        v_and_b32 v{B}, s{b}, v{G_}
        v_cmp_eq_u32 vcc, 0, v{B}
        s_cmp_eq_u32 s{a}, 3
        s_cselect_b32 s{b}, 4, 16
        s_cselect_b32 s{c}, 2, 16
        v_cndmask_b32 v{A}, v{OB}, v{A}, vcc
        v_cmp_gt_u32 vcc, s{b}, v{T}
        v_mov_b32 v{B}, 0x3f803f80
        s_lshr_b32 s{b}, s{sR}, 1
        v_cndmask_b32 v{vEP}, v{OB}, v{A}, vcc
        v_cmp_gt_u32 vcc, s{c}, v{T}
        s_lshl_b32 s{d}, s{b}, 2
        s_mul_i32 s{b}, s{b}, {KVST}
        v_cndmask_b32 v{vAND}, 0, -1, vcc
        v_cmp_eq_u32 vcc, s{c}, v{T}
        s_cmp_eq_u32 s{sW}, 0
        s_cselect_b32 s{sPOL}, s{d}, {OOB}
        v_cndmask_b32 v{vOR}, 0, v{B}, vcc
        s_lshl_b32 s{d}, s{sR}, 2
        s_add_u32 s{d}, s{d}, 128
        s_cmp_eq_u32 s{sW}, 0
        s_cselect_b32 s{sHA}, s{d}, {OOB}
        s_and_b32 s{c}, s{sR}, 1
        s_mul_i32 s{sK1}, s{c}, 640
        s_lshl_b32 s{c}, s{c}, 2
        s_add_u32 s{c}, s{c}, s{sW}
        s_lshr_b32 s{d}, s{sS}, 2
        s_lshl_b32 s{sK2}, s{c}, 1
        s_add_u32 s{sK2}, s{sK2}, s{d}
        s_mul_i32 s{sK2}, s{sK2}, 640
        s_add_u32 s{sK2}, s{sK2}, 8192
        s_lshl_b32 s{d}, s{d}, 8
        s_add_u32 s{sK1}, s{sK1}, s{d}
        s_lshl_b32 s{c}, s{c}, 10
        s_add_u32 s{c}, s{c}, s{d}
        s_bitcmp1_b32 s{sS}, 1
        s_cselect_b32 s{sK2}, s{sK2}, s{c}
        s_and_b32 s{c}, s{sS}, 1
        s_lshl_b32 s{c}, s{c}, 9
        s_add_u32 s{sK2}, s{sK2}, s{c}
        s_add_u32 s{sK2}, s{sK2}, s{b}
        s_lshl_b32 s{c}, s{sW}, 2
        s_add_u32 s{sK1}, s{sK1}, s{c}
        s_add_u32 s{sK1}, s{sK1}, s{b}
        s_add_u32 s{sK1}, s{sK1}, 18432
        s_cmp_eq_u32 s{a}, 1
        s_cselect_b32 s{sK1}, s{sK1}, {OOB}
        s_cselect_b32 s{sK2}, {OOB}, s{sK2}""")
        s(f"""s_lshl_b32 s{a}, s{sR}, 3
        s_add_u32 s{a}, s{a}, s{sS}
        s_lshl_b32 s{a}, s{a}, 2
        s_add_u32 s{a}, s{a}, s{sW}
        s_lshl_b32 s{sFL}, s{a}, 7
        s_add_u32 s{sFL}, s{sFL}, {WS_FLAG}
        s_lshl_b32 s{sST}, s{a}, 12
        s_add_u32 s{sST}, s{sST}, {WS_HX}
        s_mul_i32 s{a}, s{sS}, 508
        s_sub_u32 s{sOF}, s{sFL}, s{a}
        s_lshl_b32 s{a}, s{sR}, 2
        s_add_u32 s{a}, s{a}, s{sW}
        s_mul_i32 s{sOM}, s{a}, {36864 + self.o.get('op', 0)}
        s_add_u32 s{sOM}, s{sOM}, {WS_OM}
        s_mul_i32 s{sC1}, s{sW}, 5120
        s_lshl_b32 s{a}, s{sW}, 12
        s_add_u32 s{sXL}, s{a}, {XRES}
        s_mul_i32 s{sPB}, s{sR}, {PSTR + self.o.get('pp', 0)}
        s_add_u32 s{sPB}, s{sPB}, s{a}
        s_add_u32 s{sPB}, s{sPB}, {WS_PART}
        s_lshr_b32 s{b}, s{sS}, 2
        s_mul_i32 s{a}, s{sS}, {9 * 16384}
        s_add_u32 s{a}, s{a}, {8 * 16384}
        s_add_u32 s{sFLN}, s{sPB}, s{a}
        s_lshl_b32 s{a}, s{sS}, 14
        s_add_u32 s{sPB}, s{sPB}, s{a}
        s_and_b32 s{c}, s{sS}, 3
        s_lshl_b32 s{c}, s{c}, 5
        s_add_u32 s{c}, s{c}, 1024
        s_lshl_b32 s{a}, s{sW}, 1
        s_add_u32 s{a}, s{a}, s{b}
        s_mul_i32 s{a}, s{a}, 18432
        s_add_u32 s{sXN}, s{a}, s{c}
        s_lshl_b32 s{sPFO}, s{sE2}, 2
        s_add_u32 s{sPFO}, s{sPFO}, s{sW}
        s_mul_i32 s{sPFO}, s{sPFO}, {81 * self.C * 128}
        s_mov_b32 s{sPG}, 640
        s_mov_b32 s{sSK}, 0""")
        s(f"buffer_store_dword v{vZ}, v{vINB}, {srd(sWS)}, s{sFL} offen sc1", tag="kvst")
        self.nd = 1 if self.C <= 2 else 2
        self.dl = -(-81 * self.C // (4 * self.nd))
        s(f"""v_min_u32 v{A}, {self.dl - 1}, v{vL}
        v_lshlrev_b32 v{vPD}, 7, v{A}
        v_add_u32 v{vKA}, {KVS0}, v{vL16}
        v_add_u32 v{A}, {KVS0 + 18432}, v{vL16}
        v_mov_b32 v{B}, {KVS0 + 8192 + 544}
        v_cndmask_b32 v{vK2A}, v{A}, v{B}, {MSK}
        v_and_b32 v{A}, 31, v{vL}
        v_cmp_eq_u32 vcc, 22, v{A}
        v_min_u32 v{B}, 19, v{A}
        v_lshrrev_b32 v{A}, 5, v{vL}
        v_cndmask_b32 v{B}, v{B}, 18, vcc
        v_lshlrev_b32 v{Cc}, 8, v{A}
        v_cmp_lt_u32 vcc, 15, v{B}
        v_lshlrev_b32 v{vVA}, 6, v{A}
        v_add_u32 v{vVA}, 256, v{vVA}
        v_cndmask_b32 v{Cc}, v{Cc}, v{vVA}, vcc
        v_lshl_add_u32 v{Cc}, v{B}, 4, v{Cc}
        v_add_u32 v{vVA}, {KVS0 + 8192}, v{Cc}""")
        s(f"""v_bfe_u32 v{B}, v{vL}, 3, 2
        v_mad_u32_u24 v{Cc}, v{A}, 18, v{B}
        s_lshl_b32 s{a}, s{sW}, 2
        v_add_u32 v{Cc}, s{a}, v{Cc}
        v_mul_u32_u24 v{Cc}, 1152, v{Cc}
        s_lshl_b32 s{d}, s{sS}, 7
        v_add3_u32 v{vWM}, v{Cc}, v{vTMP + 1}, s{d}
        v_lshrrev_b32 v{Cc}, 1, v{B}
        v_lshl_add_u32 v{B}, v{Cc}, 4, v{B}
        v_mul_u32_u24 v{Cc}, 72, v{A}
        s_and_b32 s{a}, s{sW}, 1
        s_mul_i32 s{a}, s{a}, 144
        s_lshr_b32 s{b}, s{sW}, 1
        s_mul_i32 s{b}, s{b}, 36
        s_add_u32 s{a}, s{a}, s{b}
        s_add_u32 s{a}, s{a}, 16
        v_add3_u32 v{Cc}, v{Cc}, v{B}, s{a}
        v_mul_u32_u24 v{Cc}, 1152, v{Cc}
        v_add3_u32 v{vWX}, v{Cc}, v{vTMP + 1}, s{d}""")
        s(f"""v_bfe_u32 v{B}, v{vL}, 1, 2
        v_bfe_u32 v{Cc}, v{vL}, 3, 1
        v_mad_u32_u24 v{Cc}, v{Cc}, 18, v{B}
        v_lshl_add_u32 v{Cc}, v{G_}, 2, v{Cc}
        s_mul_i32 s{a}, s{sW}, 36
        v_add_u32 v{Cc}, s{a}, v{Cc}
        v_mul_u32_u24 v{Cc}, 1152, v{Cc}
        v_lshl_add_u32 v{Cc}, v{Dd}, 4, v{Cc}
        v_add_u32 v{vWN}, s{c}, v{Cc}
        v_lshrrev_b32 v{Cc}, 1, v{B}
        v_lshl_add_u32 v{B}, v{Cc}, 4, v{B}
        v_bfe_u32 v{Cc}, v{vL}, 3, 2
        v_mul_u32_u24 v{Cc}, 72, v{Cc}
        v_add3_u32 v{B}, v{B}, v{Cc}, 16
        v_mad_u32_u24 v{B}, v{A}, 36, v{B}
        s_mul_i32 s{a}, s{sW}, 288
        v_add_u32 v{B}, s{a}, v{B}
        v_mul_u32_u24 v{B}, 1152, v{B}
        v_lshl_add_u32 v{B}, v{Dd}, 4, v{B}
        v_add_u32 v{vWNX}, s{c}, v{B}""")
        if self.o.get("cpf", 0) >= 2:
            s(f"""s_lshr_b32 s{a}, s2, 4
            s_lshl_b32 s{a}, s{a}, 2
            s_add_u32 s{a}, s{a}, s{sW}
            v_min_u32 v{A}, {2 * self.o.get('cln', 5) - 1}, v{vL}
            v_lshl_add_u32 v{A}, v{A}, 6, s{a}
            v_lshlrev_b32 v{A}, 7, v{A}
            v_min_u32 v{A}, L_end-L_pc, v{A}
            v_mov_b32 v{vXE + 1}, s101
            v_add_co_u32 v{vXE}, vcc, s100, v{A}
            s_nop 1
            v_addc_co_u32 v{vXE + 1}, vcc, 0, v{vXE + 1}, vcc""")
        s(f"""v_lshlrev_b32 v{A}, 2, v{G_}
        v_mul_u32_u24 v{B}, 18432, v{G_}
        v_lshl_add_u32 v{B}, v{T}, 4, v{B}
        v_cndmask_b32 v{vOE}, v{B}, v{OB}, {MSK}
        v_lshlrev_b32 v{vL8}, 3, v{vL}
        v_add_u32 v{vL16B}, 4096, v{vL16}
        v_mov_b32 v{vXB}, -1
        v_mov_b32 v{vXB + 1}, -1
        v_mov_b32 v{vXB + 2}, -1
        v_mov_b32 v{vXB + 3}, -1
        v_lshlrev_b32 v{B}, 9, v{vL}
        v_cmp_gt_u32 vcc, 8, v{vL}
        v_lshlrev_b32 v{Cc}, 3, v{G_}
        v_add_u32 v{vOL}, s{sXL}, v{vL16}
        v_cndmask_b32 v{vFO}, v{OB}, v{B}, vcc
        v_lshl_add_u32 v{B}, v{T}, 7, v{Cc}
        v_and_b32 v{Dd}, 7, v{vL}
        v_lshlrev_b32 v{Dd}, 4, v{Dd}
        v_xor_b32 v{B}, v{B}, v{Dd}
        v_add_u32 v{vBA}, s{sXL}, v{B}
        v_xor_b32 v{vTMP + 1}, 32, v{vBA}
        v_xor_b32 v{vTMP + 2}, 64, v{vBA}
        v_xor_b32 v{vTMP + 3}, 96, v{vBA}
        v_lshrrev_b32 v{Dd}, 3, v{vL}
        v_lshlrev_b32 v{Dd}, 4, v{Dd}
        v_xor_b32 v{vTMP}, v{vTMP}, v{Dd}
        v_lshl_add_u32 v{B}, v{T}, 5, v{Cc}
        s_add_u32 s{a}, s{sM0W}, {XRESN}
        v_add_u32 v{vXNA}, s{a}, v{B}
        v_mul_u32_u24 v{B}, 1152, v{T}
        v_add_u32 v{vOA}, v{B}, v{Cc}
        v_sub_u32 v{A}, v{T}, v{A}
        v_and_b32 v{B}, 1, v{A}
        v_lshlrev_b32 v{B}, 4, v{B}
        v_mov_b32 v{Cc}, 0x3f80
        v_lshlrev_b32 v{Cc}, v{B}, v{Cc}
        v_lshrrev_b32 v{A}, 1, v{A}
        v_cmp_eq_u32 vcc, 0, v{A}
        v_mov_b32 v{vSEL}, 0
        v_mov_b32 v{vSEL + 1}, 0
        v_cndmask_b32 v{vSEL + 2}, 0, v{Cc}, vcc
        v_cndmask_b32 v{vSEL + 6}, 0, v{Cc}, vcc
        v_cndmask_b32 v{vSEL + 8}, 0, v{Cc}, vcc
        v_cmp_eq_u32 vcc, 1, v{A}
        v_mov_b32 v{vSEL + 4}, 0
        v_mov_b32 v{vSEL + 5}, 0
        v_cndmask_b32 v{vSEL + 3}, 0, v{Cc}, vcc
        v_cndmask_b32 v{vSEL + 7}, 0, v{Cc}, vcc
        v_cndmask_b32 v{vSEL + 9}, 0, v{Cc}, vcc""")

    def p1(self):
        tl = Timeline()
        xb = lambda h: (lambda u, i: xn(u, 9 * h + i))
        for st, (acc, h) in enumerate(((vG, 0), (vG, 1), (vU, 0), (vU, 1), (vG, 0), (vG, 1))):
            self.std_mfmas(tl, 4 * st, 72 * st, acc, xb(h), h == 0)
            tl.put_reads(self.std_reads(4 * st, 72 * st, st % 4, f"r{st}"))
        R = []
        for h in range(2):
            for u in range(2):
                for i in range(9):
                    c = vr(vEX + 4 * u)
                    tl.m[432 + 18 * h + 9 * u + i] = Ins(f"v_mfma_f32_16x16x32_bf16 {c}, {ar(frag(24 + h, i))}, {xn(u, 9 * h + i)}, {'0' if h == 0 and i == 0 else c}")
            for i in range(9):
                for hh in range(2):
                    ins = Ins(f"ds_read_b64_tr_b16 {ar(frag(24 + h, i) + 2 * hh, 2)}, v{vRX} offset:{2048 * (9 * h + i) + 256 * hh}", tag="r6")
                    g0 = 432 + 18 * h
                    R.append(Item("r", ins, 432 - DD + len(R), earliest=g0 - 27 + i, deadline=g0 + i - LAT - 1))
        tl.put_reads(R)
        arr = self.o.get("kvarr", 2)
        for st in range(1, 7):
            self.barrier(tl, 72 * st - DD, [("st1", "st2", "st3", "q0", "q1", "q2")[st - 1]] + (["kvst"] if st == arr else []), f"r{st - 1}")
        tl.gap(1).bar.append(Ins("s_barrier", need=["lds:kvfr"]))
        tl.gap(72 * arr - DD).mem.append(Ins(f"buffer_atomic_add v{vONE}, v{vFLG}, {srd(sDBG)}, s{sPOL} offen sc1", tag="arr"))
        q0f = [f"s_mov_b32 s{sDM + 2}, {31 * 1152 + 140}", f"s_mov_b32 s{sDM}, s{sQ}", f"s_mov_b32 s{sDM + 1}, s{sQ + 1}"]
        if self.late:
            ls = self.o.get("lstep", 4)
            if self.kve:
                tl.gap(1).mem.append(Ins(f"buffer_load_dwordx4 v{vDM}, {srd(sG)}, s{sA} offen lds", tag="st1"))
            self.dmas(tl, 2, vDM, [f"s_add_u32 s{sDM}, s{sU}, s{sC0}", f"s_addc_u32 s{sDM + 1}, s{sU + 1}, 0"], f"s{sINC}", "st2", p0=5, step=ls)
            self.dmas(tl, 3, vDM, None, f"s{sINC}", "st3", p0=5 + 9 * ls, step=ls)
            if ls == 4:
                self.dmas(tl, 4, vQM, q0f, 32 * 1152, "q0")
            else:
                self.dmas(tl, 4, vQM, q0f, 32 * 1152, "q0", p0=103, step=5)
        else:
            self.dmas(tl, 3, vDM, None, f"s{sINC}", "st3")
            self.dmas(tl, 4, vQM, q0f, 32 * 1152, "q0")
        self.dmas(tl, 5, vQM, None, 32 * 1152, "q1")
        self.dmas(tl, 6, vQX, [f"s_mov_b32 s{sA}, 0"], 64 * 1152, "q2", srdn=sQ)
        if self.wpf and self.o.get("qpf", 1) >= 4:
            assert self.npf == 1
            tl.gap(self.o["qpf"] - 2).mem.append(Ins(f"buffer_load_dword v{vT3}, v{vPOL}, {srd(sQ)}, s{sT1} offen", tag="pf"))
        tl.gap(self.kvpoll).mem.append(Ins(f"buffer_load_dword v{vPOL}, v{vDP}, {srd(sDBG)}, 0 offen sc1", tag="poll"))
        c = self.kvchk
        assert c >= 341
        tl.gap(c).shadow.append(Ins("s_waitcnt vmcnt(63)", auto=["poll"]))
        tl.gap(c).valu += [Ins(f"v_cmp_gt_u32 vcc, 16, v{vPOL}")]
        tl.gap(c + 2).shadow += [Ins("s_cbranch_vccnz L_kvspin"), Ins("L_kvok:")]
        for sg in range(2):
            for i in range(5):
                p = c + 4 + 4 * (5 * sg + i)
                if i in (0, 4):
                    tl.gap(p - 1).shadow.append(Ins(f"s_add_u32 m0, s{sC1}, {KVS0 + KVST * sg + 1024 * i}"))
                    tl.gap(p).shadow.append(Ins(f"s_add_u32 s{sA}, s{sC1}, {KVST * sg + 1024 * i}"))
                tl.gap(p).mem.append(Ins(f"buffer_load_dwordx4 v{vL16}, {srd(sWS)}, s{sA} offen offset:{1024 * (i % 4)} sc1 lds", tag=f"kv{sg}"))
        for opt, col in (("p2p", 256), ("p3", 384), ("p4", 512)):
            p = self.o.get(opt, 1)
            if self.wpf and p > 2:
                pf = self.pf2(col)
                for k in range(0, len(pf), 2):
                    tl.gap(p + 2 * k).shadow.append(pf[k])
                    tl.gap(p + 2 * k).mem.append(pf[k + 1])
        self.shadows(tl, 420, [f"s_mov_b32 s{sIT}, 0", f"s_add_u32 s{sINC}, s{sC1}, {KVST}",
                               (f"s_add_u32 s{sDM}, s{sWS}, s{sINC}", f"s_addc_u32 s{sDM + 1}, s{sWS + 1}, 0"), f"s_mov_b32 s{sDM + 2}, 5120", f"s_and_b32 s{sRO}, s{sS}, {1 if self.o.get('rot', 0) else 0}", f"s_mul_i32 s{sHI}, s{sRO}, {9 * 4096}", f"s_mul_i32 s{sRO}, s{sRO}, 9216",
                               f"s_add_u32 s{sOM0}, s{sOM}, s{sRO}", f"s_sub_u32 s{sOM1}, s{sOM}, s{sRO}",
                               f"s_mov_b32 s{sC0}, 0", f"s_mov_b32 s{sSTN}, 0", f"s_mov_b32 s{sTODO}, 0xff", f"s_mov_b32 s{sOTH}, 0xff", f"s_bitset0_b32 s{sOTH}, s{sS}"] +
                     ([f"s_mov_b32 s{sTO}, 0xff", f"s_and_b32 s{sT2}, s{sS}, 1", f"s_mul_i32 s{sT2}, s{sT2}, 18432", f"s_add_u32 s{sOM1}, s{sOM}, 8192"] if self.o.get("opf", 0) else []) +
                     ([f"s_lshl_b32 s{sOM0}, s{sS}, 11", f"s_add_u32 s{sOM0}, s{sOM0}, s{sOM}", f"s_add_u32 s{sOM1}, s{sOM0}, 18432", f"s_add_u32 s{sOFA}, s{sOF}, 96"] if self.two else []))
        V = []
        t = 2
        for x in ([f"v_mul_f32 v{vKVA + e}, s{sKS}, v{vKVA + e}" for e in range(4)] +
                  [f"v_cvt_pk_bf16_f32 v{vKVA + e}, v{vKVA + 2 * e}, v{vKVA + 2 * e + 1}" for e in range(2)] +
                  [f"v_and_or_b32 v{vKVA + 2 + e}, v{vKVA + e}, v{vAND}, v{vOR}" for e in range(2)] +
                  [f"v_and_or_b32 v{vKVA + e}, v{vKVA + e}, v{vAND}, v{vOR}" for e in range(2)]):
            V.append(Item("v", Ins(x), t, 2))
            t += 0.5
        for e in range(2):
            V.append(Item("v", Ins(f"v_permlane16_swap_b32 v{vKVA + e}, v{vKVA + 2 + e}"), 11 + e, 11 + e))
        t = 13
        for x in (f"buffer_store_dwordx4 {vr(vKVA)}, v{vEP}, {srd(sWS)}, s{sK2} offen sc1", f"buffer_store_dword v{vKVA}, v{vEP}, {srd(sWS)}, s{sK1} offen sc1"):
            V.append(Item("m", Ins(x, tag="kvst"), t))
            t += 1
        if not self.o.get("ozm", 0):
            for r in range(64):
                V.append(Item("v", Ins(f"v_mov_b32 v{vO_ + r}, 0"), 16 + r * 68 / 64.0))
        V += self.gelu_items(0, 85, 400, False, vH1)
        z = [vQ2 + 4 * q + j for q in range(4) for j in (1, 2)] + [vQ2 + 4, vQ2 + 12]
        for j in range(8):
            ct, u = j // 2, j % 2
            rel = 360 + 9 * j + 8 + 8
            q = vQ1 + 4 * (2 * u + ct // 2)
            for e in range(2):
                V.append(Item("v", Ins(f"v_cvt_pk_bf16_f32 v{q + 2 * (ct % 2) + e}, v{vG + 4 * j + 2 * e}, v{vG + 4 * j + 2 * e + 1}"), max(rel, 408 + 2 * j) + e, rel))
            if j in (5, 6):
                for r in z[5 * (j - 5):5 * (j - 4)]:
                    V.append(Item("v", Ins(f"v_mov_b32 v{r}, 0"), rel + 2))
        for r in range(8):
            V.append(Item("v", Ins(f"v_accvgpr_write_b32 a{aV_ + 8 + r}, 0"), 441 + r))
        if self.two:
            for x in (f"v_and_b32 v{vT0}, 7, v{vL}", f"v_lshrrev_b32 v{vT1}, 3, v{vL}", f"v_lshlrev_b32 v{vT0}, 9, v{vT0}", f"v_mul_u32_u24 v{vT1}, 96, v{vT1}",
                      f"v_lshrrev_b32 v{vT2}, 4, v{vL}", f"v_lshlrev_b32 v{vT2}, 28, v{vT2}", f"v_add3_u32 v{vFO2}, v{vT0}, v{vT1}, v{vT2}"):
                V.append(Item("v", Ins(x), 449, 449))
        if self.o.get("opf", 0):
            assert not self.o.get("rot", 0)
            for x in (f"v_lshrrev_b32 v{vOQ}, 4, v{vL}", f"v_lshl_add_u32 v{vOP}, v{vL}, 7, s{sT2}"):
                V.append(Item("v", Ins(x), 449, 449))
        for q in range(4):
            for e in range(2):
                V.append(Item("v", Ins(f"v_permlane16_swap_b32 v{vQ1 + 4 * q + e}, v{vQ1 + 4 * q + 2 + e}"), 449 + q, 446))
        if self.stamps and self.o.get("gst"):
            self.gst = [(p, r) for p, r in zip(eval(self.o["gst"].replace(":", ",")), (62, 100, 12, 52, 54, 14))]
            for p, r in self.gst:
                tl.gap(p).shadow.append(Ins(f"s_memtime s[{r}:{r + 1}]"))
        tl.fill(0, 468, V, flush=10 ** 9)
        pre = [i for i in tl.emit(-DD, 0) if i.kind == "lds"]
        tl.insert_lgkm_waits(0, 468, [(-10 + k // 2, i) for k, i in enumerate(pre)][8:])
        s = self.seg("p1a")
        s("L_p1:")
        if self.wpf and self.o.get("qpf", 1) == 1:
            for i in range(self.npf):
                s(f"""s_lshr_b32 s{sT1}, s{sW}, 1
                s_mul_i32 s{sT1}, s{sT1}, 140
                s_add_u32 s{sT1}, s{sT1}, {i * self.pfstep * 1152}""")
                s(f"buffer_load_dword v{vT3}, v{vPOL}, {srd(sQ)}, s{sT1} offen", tag="pf")
        if self.wpf and self.o.get("qpf", 1) >= 4:
            s(f"s_lshr_b32 s{sT1}, s{sW}, 1\ns_mul_i32 s{sT1}, s{sT1}, 140")
        kf = lambda kk: aKV + 4 * kk if kk < 9 else frag(1, kk - 9)
        kve = self.kve
        if kve:
            s(f"v_subrev_u32 v{vT0}, {3 * SLOT - 16384}, v{vKR}")
        kr = lambda kk: [Ins(f"ds_read_b64_tr_b16 {ar(kf(kk) + 2 * h, 2)}, v{vT0 if kve and kk >= 16 else vKR} offset:{1024 * kk + 128 * h}", tag="kvfr") for h in range(2)]
        s("s_waitcnt vmcnt(63)", auto=["kvimg", "st0"])
        s("s_barrier", need=["kvimg", "st0"])
        for kk in range(9):
            s.extend(kr(kk))
        for n, fin in self.deferred:
            s("\n".join(fin))
        s(f"""s_bitcmp1_b32 s{sS}, 2
        s_cbranch_scc1 L_kvu1
        s_bitcmp1_b32 s{sS}, 1
        s_cbranch_scc1 L_kv01""")
        for u in range(2):
            for o in range(2):
                k = self.seg(f"kv{u}{o}")
                if u == 1 and o == 0:
                    k(f"L_kvu1:\ns_bitcmp1_b32 s{sS}, 1\ns_cbranch_scc1 L_kv11")
                elif o == 1:
                    k(f"L_kv{u}{o}:")
                k("s_waitcnt lgkmcnt(12)")
                for kk in range(18):
                    a, b = ar(kf(kk)), xn(u, kk)
                    if o:
                        a, b = b, a
                    k(f"v_mfma_f32_16x16x32_bf16 {vr(vKVA)}, {a}, {b}, {'0' if kk == 0 else vr(vKVA)}")
                    if kk % 3 == 2 and kk < 17:
                        k("s_waitcnt lgkmcnt(10)")
                    if self.late and kk % 2 == 0:
                        k(f"s_add_u32 m0, s{sM0W}, {SLOT + 4096 * (kk // 2)}")
                    if self.late and kk % 2 == 1:
                        k(f"s_add_u32 s{sA}, s{sA}, s{sINC}")
                    if kk < 9:
                        k.extend(kr(kk + 9))
                    else:
                        k.extend(pre[2 * (kk - 9):2 * (kk - 9) + 2])
                    if self.late and kk % 2 == 1 and not (kve and kk == 17):
                        k(f"buffer_load_dwordx4 v{vDM}, {srd(sG)}, s{sA} offen lds", tag="st1")
                k.extend(pre[18:])
                if not (u == 1 and o == 1):
                    k("s_branch L_kvdone")
        g = self.seg("p1gemm")
        g("L_kvdone:")
        self.stamp(g, 2)
        g("s_waitcnt lgkmcnt(12)")
        g.extend(tl.emit(0, 468))
        self.att()
        k = self.seg("kvspin")
        k(f"""L_kvspin:
        s_mov_b32 s{sT1}, 0
        L_kvspin2:
        buffer_load_dword v{vPOL}, v{vDP}, {srd(sDBG)}, 0 offen sc1
        s_add_u32 s{sT1}, s{sT1}, 1
        s_cmp_gt_u32 s{sT1}, 0x40000
        s_cbranch_scc1 L_end
        s_waitcnt vmcnt(0)
        v_cmp_gt_u32 vcc, 16, v{vPOL}
        s_nop 1
        s_cbranch_vccnz L_kvspin2
        s_branch L_kvok""")
        self.fallback()

    def qk(self, sb, q, kt):
        k1 = aK1 + 4 * (kt % 2)
        k2 = aK2 + 4 * ((kt // 4) % 2) + 2 * ((kt % 4) // 2)
        q2 = vQ2 + 4 * q + 2 * (kt % 2)
        S = vr(vS_ + 16 * sb, 16)
        return (Ins(f"v_mfma_f32_32x32x16_bf16 {S}, {ar(k1)}, {vr(vQ1 + 4 * q)}, 0"),
                Ins(f"v_mfma_f32_32x32x8bf16_1k {S}, {ar(k2, 2)}, {vr(q2, 2)}, {S}"))

    def pv(self, sb, q, kt):
        O = vr(vO_ + 16 * q, 16)
        v = aV_ + 8 * (kt % 2)
        return tuple(Ins(f"v_smfmac_f32_32x32x32_bf16 {O}, {ar(v + 4 * f)}, {vr(vS_ + 16 * sb + 8 * f, 8)}, v{vIDX}") for f in range(2))

    def kvreads(self, kt):
        sl, i = (kt // 8) % 2, kt % 8
        o = KVST * sl
        k1 = Ins(f"ds_read_b128 {ar(aK1 + 4 * (kt % 2))}, v{vKA} offset:{o + 1024 * i}", tag="kvr")
        k2 = Ins(f"ds_read_b128 {ar(aK2 + 4 * ((kt // 4) % 2))}, v{vK2A} offset:{o + 640 * (i // 4)}", tag="kvr") if kt % 4 == 0 else None
        vv = [Ins(f"ds_read_b128 {ar(aV_ + 8 * (kt % 2) + 4 * f)}, v{vVA} offset:{o + 640 * (2 * i + f)}", tag="kvr") for f in range(2)]
        return k1, k2, vv

    def preg(self, i):
        if i < self.ne:
            return lambda k: ar((40, 56, 112, 128, 200, 184, 168)[i] + 4 * k)
        return lambda k: vr(vO_ + 16 * ((i - self.ne) % 5) + 4 * k)

    def areg(self, i):
        k = i - self.ne - self.n2
        return (sK2, sK1, sKS, sHI, sSTN)[k] if k >= 0 else sA

    def pacc_opt(self, name, i0, n):
        names = []
        for i in range(i0, i0 + n):
            s = self.segs[-1]
            s(f"s_cmp_eq_u32 s{self.areg(i)}, {OOB}\ns_cbranch_scc1 L_{name}")
            names.append(f"{name}{i}")
            s = self.seg(names[-1])
            s("s_waitcnt vmcnt(63)", auto=[f"pl{i}"])
            s.extend(self.pacc(i, 1))
        s = self.seg(name)
        s(f"L_{name}:")
        return names

    def opf(self):
        if not self.o.get("opf", 0):
            return []
        out = [Ins(f"s_nand_b32 s{sT2}, vcc_lo, s{sTO}"), Ins(f"s_andn2_b32 s{sTO}, s{sTO}, vcc_lo")]
        for j in range(2):
            out += [Ins(f"v_bfe_u32 v{vT0 + j}, s{sT2}, v{vOQ}, 1"), Ins(f"v_lshl_add_u32 v{vT0 + j}, v{vT0 + j}, 30, v{vOP}")]
            out += [Ins(f"s_lshr_b32 s{sT2}, s{sT2}, 4")] if j == 0 else []
            out += [Ins(f"buffer_load_dword v{vT3}, v{vT0 + j}, {srd(sWS)}, s{sOM1 if j else sOM} offen sc1", tag="pf")]
        return out

    def poll(self):
        return Ins(f"buffer_load_dword v{vPOL}, v{vINB}, {srd(sWS)}, s{sFL} offen sc1", tag="poll")

    def ready(self):
        return [Ins(f"v_cmp_ne_u32 vcc, 0, v{vPOL}"), Ins("s_nop 0"), Ins(f"s_lshr_b32 s{sRDY}, vcc_lo, 8"), Ins(f"s_and_b32 s{sRDY}, s{sRDY}, s{sTODO}")]

    def pload(self, i0, n):
        out = []
        for i in range(i0, i0 + n):
            out += [Ins(f"s_ff1_i32_b32 s{sT1}, s{sRDY}"), Ins(f"s_bitset0_b32 s{sRDY}, s{sT1}"), Ins(f"s_bitset0_b32 s{sTODO}, s{sT1}"),
                    Ins(f"s_mul_i32 s{sT0}, s{sT1}, {9 * 16384}"), Ins(f"s_add_u32 s{sT0}, s{sT0}, s{sPB}"),
                    Ins(f"s_cmp_lt_i32 s{sT1}, 0"), Ins(f"s_cselect_b32 s{self.areg(i)}, {OOB}, s{sT0}")]
            out += [Ins(f"buffer_load_dwordx4 {self.preg(i)(k)}, v{vL16}, {srd(sWS)}, s{self.areg(i)} offen offset:{1024 * k} sc1", tag=f"pl{i}") for k in range(4)]
        return out

    @staticmethod
    def weave(ld):
        slots = [ld[k:k + 11] for k in range(0, len(ld), 11)]
        out = list(slots[0][:7])
        for k, sl in enumerate(slots):
            nx = slots[k + 1][:7] if k + 1 < len(slots) else []
            for j in range(4):
                out.append(sl[7 + j])
                out += nx[2 * j:2 * j + 2] if j < 3 else nx[6:]
        return out

    def pacc(self, i0, n):
        out = []
        for j in range(8):
            ct, u = j // 2, j % 2
            c = vr(vG + 4 * j)
            for i in range(i0, i0 + n):
                out.append(Ins(f"v_mfma_f32_16x16x32_bf16 {c}, {vr(vSEL + (0 if ct % 2 else 2))}, {self.preg(i)(2 * (ct // 2) + u)}, {'0' if i == 0 else c}"))
        return out

    @staticmethod
    def layer(slots, stream):
        def lay(k, ins):
            lastmem = -9
            for i in ins:
                while True:
                    cur = stream.setdefault(slots[k], [])
                    if i.kind in ("salu", "wait", "label"):
                        if not cur or i.kind == "label":
                            break
                    elif i.kind == "valu":
                        break
                    elif k - lastmem >= 2 and not any(x.kind not in ("salu", "wait") for x in cur) and not ("m0" in i.rd and any("m0" in x.wr for x in cur)):
                        lastmem = k
                        break
                    k += 1
                cur.append(i)
            return k + 1
        return lay

    def publish(self, s, hp, tag):
        vR, vW, vE = 192, 196, 28
        s(f"v_rcp_f32 v{vR}, v{vO_ + 16 * hp + 10}\ns_nop 0")
        for u in range(2):
            o = vO_ + 16 * (2 * u + hp)
            s(f"v_mul_f32 v{vR + u}, {f32(ALPHA)}, v{vR + u}")
            for j in range(10):
                s(f"v_mul_f32 v{vW + j}, v{o + j}, v{vR + u}")
            if u == 0:
                s(f"v_rcp_f32 v{vR + 1}, v{o + 32 + 10}")
            s(f"v_cvt_pk_bf16_f32 v{vE + 2 * hp + u}, v{vW + 8}, v{vW + 9}")
            for j in range(4):
                s(f"v_cvt_pk_bf16_f32 v{o + 12 + j}, v{vW + 2 * j}, v{vW + 2 * j + 1}")
            if u == 1:
                s(f"v_permlane16_swap_b32 v{vE + 2 * hp}, v{vE + 2 * hp + 1}")
            s(f"buffer_store_dwordx4 {vr(o + 12)}, v{vL16}, {srd(sWS)}, s{sOM0 + u} offen offset:{1024 * hp} sc1", tag=tag)

    def check(self, s, qs):
        s(f"s_mov_b32 s{sT0}, {f32(2.0 ** -126)}\ns_mov_b32 s{sT1}, {f32(2.0 ** 124)}")
        t = 192
        for q in qs:
            o = vO_ + 16 * q
            s(f"""v_cndmask_b32 v{t + 2}, v{o + 8}, v{o + 10}, {MSK}
            v_cndmask_b32 v{t + 3}, v{o + 9}, v{o + 10}, {MSK}""")
            if q == qs[0]:
                s(f"v_min3_f32 v{t}, abs(v{t + 2}), abs(v{t + 3}), v{o + 10}\nv_add_f32 v{t + 1}, abs(v{t + 2}), v{o + 10}")
            else:
                s(f"""v_min3_f32 v{t}, v{t}, abs(v{t + 2}), abs(v{t + 3})
                v_min_f32 v{t}, v{t}, v{o + 10}
                v_add_f32 v{t + 1}, v{t + 1}, v{o + 10}
                v_add_f32 v{t + 1}, v{t + 1}, abs(v{t + 2})""")
            s(f"v_add_f32 v{t + 1}, v{t + 1}, abs(v{t + 3})")
            for j in range(0, 8, 2):
                s(f"""v_min3_f32 v{t}, v{t}, abs(v{o + j}), abs(v{o + j + 1})
                v_add_f32 v{t + 1}, v{t + 1}, abs(v{o + j})
                v_add_f32 v{t + 1}, v{t + 1}, abs(v{o + j + 1})""")
        s(f"""v_cmp_nle_f32 vcc, s{sT0}, v{t}
        v_cmp_ngt_f32 {MK2}, s{sT1}, v{t + 1}
        s_nop 0
        s_or_b64 vcc, vcc, {MK2}""")

    KO = [0, 2, 4, 6, 8, 10, 12, 14, 1, 3, 5, 7, 9, 11, 13, 15, 16, 17]
    KB = [(0, 4), (4, 4), (8, 2), (10, 2), (12, 3), (15, 3)]

    def gather(self, blocks, base):
        gl = []
        for kb in blocks:
            j0, n = self.KB[kb]
            for u in range(2):
                o0 = None
                for j in range(j0, j0 + n):
                    off = 1024 * (18 * u + self.KO[j])
                    q = []
                    if o0 is None or off - o0 > 3072:
                        o0 = off
                        q.append(Ins(f"s_add_u32 s{sINC}, s{base}, {off}"))
                    gl.append(q + [Ins(f"buffer_load_dwordx4 {xn(u, j)}, v{vL16}, {srd(sWS)}, s{sINC} offen offset:{off - o0} sc1", tag=f"og{kb}")])
        return gl

    def att_rounds(self, a):
        T = [(j // 2 % 16, 2 * (j % 2) + j // 32) for j in range(64)]
        slots = [(j, m) for j in range(64) for m in (0, 2, 3)]
        stream = {}
        lay = self.layer(slots, stream)
        seq = []
        for i in range(4):
            seq += [Ins(f"s_add_u32 m0, s{sM0W}, {4096 * (12 + i)}"), Ins(f"s_mov_b32 s{sT0}, {36 * 1152 * (12 + i)}"),
                    Ins(f"buffer_load_dwordx4 v{vWM}, {srd(sWO)}, s{sT0} offen lds", tag="wo")]
        seq += [Ins(f"s_add_u32 m0, s{sM0W}, {2 * SLOT + 12288}"), Ins(f"buffer_load_dwordx4 v{vWN}, {srd(sWO)}, s{sSTN} offen lds", tag="wo")]
        for i in range(2):
            seq += [Ins(f"s_add_u32 m0, s{sM0W}, {4096 * (16 + i)}"), Ins(f"s_mov_b32 s{sT0}, {288 * 1152 * i}"),
                    Ins(f"buffer_load_dwordx4 v{vWX}, {srd(sWO)}, s{sT0} offen lds", tag="wo")]
        seq += [Ins(f"s_add_u32 m0, s{sM0W}, {2 * SLOT + 16384}"), Ins(f"s_lshl_b32 s{sC0}, s{sS}, 7"),
                Ins(f"buffer_load_dwordx4 v{vWNX}, {srd(sWO)}, 0 offen lds", tag="wo")]
        for i in range(4):
            seq += [Ins(f"s_add_u32 m0, s{sXL}, {1024 * i}"), Ins(f"s_add_u32 s{sT0}, s{sC0}, {9216 * i}"),
                    Ins(f"buffer_load_dwordx4 v{vTMP}, {srd(sX)}, s{sT0} offen lds", tag="xr")]
        seq += [Ins(f"s_add_u32 m0, s{sM0W}, {XRESN}"), Ins(f"buffer_load_dwordx4 v{vXN}, {srd(sX)}, s{sXN} offen lds", tag="xr")]
        if self.o.get("cpf", 0) >= 2:
            seq.append(Ins(f"global_load_dword v{vT3}, {vr(vXE, 2)}, off", tag="pf"))
        k = lay(0, seq)
        e1 = self.o.get("ne1", 3)
        rd = lambda: [Ins("s_waitcnt vmcnt(63)", auto=["poll"])] + [i for i in self.ready() if i.op != "s_nop"]
        k1 = 96 - 10 - 8 * e1 - self.o.get("eoff", 12)
        assert k <= k1 - 18, (k, k1)
        lay(k1 - 18, [self.poll()])
        lay(k1, rd() + self.weave(self.pload(0, e1)))
        fa, pa, ga = self.o.get("fa", 26), self.o.get("pa", 38), self.o.get("ga", 57)
        lay(96 + 8, [self.poll()])
        k = lay(96 + fa, [Ins("s_waitcnt vmcnt(63)", auto=["osa"]), Ins(f"buffer_store_dword v{vONE}, v{vFO}, {srd(sWS)}, s{sOFA} offen sc1", tag="flag", need=["osa"])])
        if self.ne > e1:
            k = lay(k, rd() + self.weave(self.pload(e1, self.ne - e1)))
        assert k <= 96 + ga + 1, k
        lay(96 + pa, [self.poll()])
        k = lay(max(k, 96 + ga), [Ins("s_waitcnt vmcnt(63)", auto=["poll"]), Ins(f"v_cmp_ne_u32 vcc, 0, v{vPOL}"), Ins(f"s_lshr_b32 s{sT0}, vcc_lo, 24"),
                                  Ins(f"s_andn2_b32 s{sT0}, s{sNA}, s{sT0}"), Ins(f"s_cselect_b32 s{sGA}, {OOB}, s{sOM}")] + [i for q in self.gather((0, 1), sGA) for i in q])
        assert k <= 192, k
        for j, (kt, q) in enumerate(T):
            nx = T[j + 1] if j < 63 else None
            pv = T[j - 1] if j else (15, 3)
            ms = (list(self.qk((j + 1) % 4, nx[1], nx[0])) if nx else [None, None]) + list(self.pv((j - 1) % 4, pv[1], pv[0]))
            ex = [[], [], [], []]
            if j == 14:
                ex[0] += [Ins("s_waitcnt vmcnt(63)", auto=["kv1"]), Ins("s_barrier", need=["kv1"])]
            if j == 32:
                ex[0] += [Ins("s_waitcnt vmcnt(63)", auto=["wo", "xr"]), Ins("s_barrier", need=["wo"])]
            if j < 62:
                k1_, k2_, vv = self.kvreads((kt + 1) % 16)
                if j % 2 == 0:
                    ex[0] += [k1_] + ([k2_] if k2_ else [])
                else:
                    ex[0].append(vv[0])
                    ex[2].append(vv[1])
            if j % 2 == 0:
                ex[3].append(Ins("s_waitcnt lgkmcnt(0)"))
            if j == 34:
                self.publish(a, 0, "osa")
                self.check(a, (0, 2))
                if self.forcefb == 2:
                    a("s_or_b64 vcc, vcc, 1")
                a(f"""s_cselect_b32 s{sOFA}, {OOB}, s{sOFA}
                s_cselect_b32 s{sNA}, -1, s{sOTH}""")
            sb = vS_ + 16 * (j % 4)
            for m in range(4):
                if ms[m]:
                    a.add(ms[m])
                st = stream.get((j, m), [])
                a.extend([i for i in st if i.kind not in ("vmem", "valu")] + ex[m] + [i for i in st if i.kind in ("vmem", "valu")])
                for e in range(4):
                    a(f"v_exp_f32 v{sb + 4 * m + e}, v{sb + 4 * m + e}")

    def att_stage(self, a, kt0, last):
        stream = {}
        if last:
            slots = [(tau, m) for tau in range(32, 64) for m in (0, 2, 3)]

            lay = self.layer(slots, stream)
            seq = []
            for i in range(2):
                seq += [Ins(f"s_add_u32 m0, s{sHI}, s{sM0W}"), Ins(f"s_add_u32 s{sHI}, s{sHI}, 4096"), Ins(f"buffer_load_dwordx4 v{vWM}, {srd(sWO)}, s{sC0} offen lds", tag="wo"),
                        Ins(f"s_add_u32 s{sC0}, s{sC0}, {36 * 1152}")]
            for i in range(2):
                seq += [Ins(f"s_add_u32 m0, s{sHI}, s{sM0W}"), Ins(f"s_add_u32 s{sHI}, s{sHI}, 4096"), Ins(f"s_mov_b32 s{sT0}, {288 * 1152 * i}"),
                        Ins(f"buffer_load_dwordx4 v{vWX}, {srd(sWO)}, s{sT0} offen lds", tag="wo")]
            seq += [Ins(f"s_cmp_lt_u32 s{sW}, 2"), Ins(f"s_cselect_b32 s{sT0}, s{sRO}, 0"), Ins(f"s_sub_u32 s{sT0}, s{sM0W}, s{sT0}"),
                    Ins(f"s_add_u32 m0, s{sT0}, {2 * SLOT + 16384}"), Ins(f"s_lshl_b32 s{sC0}, s{sS}, 7"),
                    Ins(f"buffer_load_dwordx4 v{vWNX}, {srd(sWO)}, 0 offen lds", tag="wo")]
            for i in range(4):
                seq += [Ins(f"s_add_u32 m0, s{sXL}, {1024 * i}"), Ins(f"s_add_u32 s{sT0}, s{sC0}, {9216 * i}"),
                        Ins(f"buffer_load_dwordx4 v{vTMP}, {srd(sX)}, s{sT0} offen lds", tag="xr")]
            seq += [Ins(f"s_add_u32 m0, s{sM0W}, {XRESN}"), Ins(f"buffer_load_dwordx4 v{vXN}, {srd(sX)}, s{sXN} offen lds", tag="xr")]
            k = lay(0, [self.poll()] + seq)
            e1 = self.o.get("ne1", 3)
            rd = lambda: [Ins("s_waitcnt vmcnt(63)", auto=["poll"])] + [i for i in self.ready() if i.op != "s_nop"]
            k = lay(k, rd() + self.weave(self.pload(0, e1)))
            if self.ne > e1:
                k1 = 96 - 13 - 8 * (self.ne - e1) - self.o.get('eoff', 0) - (5 if self.o.get('opf', 0) else 0)
                k1 = max(k1, k)
                lay(k1 - 21, [self.poll()])
                k = lay(k1, rd() + self.opf() + self.weave(self.pload(e1, self.ne - e1)))
            assert k <= 96, k
        for tau in range(4 * kt0, 4 * kt0 + 32):
            kt, q = tau // 4, tau % 4
            ms = list(self.qk((tau + 1) % 4, (tau + 1) % 4, (tau + 1) // 4)) + list(self.pv((tau - 1) % 4, (tau - 1) % 4, ((tau - 1) // 4) % 16))
            ex = [[], [], [], []]
            k1, k2, vv = self.kvreads((kt + 1) % 16)
            newstage = (kt + 1) % 8 == 0
            sg = (kt + 1) // 8 % 2
            dma = lambda so, off: Ins(f"buffer_load_dwordx4 v{vL16}, {srd(sDM)}, 0 offen offset:{off} sc1 lds", tag=f"kv{1 - sg}")
            if last and newstage:
                if q == 0:
                    ex[0] += [Ins("s_waitcnt vmcnt(63)", auto=["wo", "xr"]), Ins("s_barrier", need=["wo"])]
                if q == 3:
                    ms[0] = ms[1] = None
            else:
                if q == 0:
                    if newstage:
                        tg = [f"kv{sg}"] + (["hst"] if sg == 1 else [])
                        ex[0] += [Ins("s_waitcnt vmcnt(63)", auto=tg), Ins("s_barrier", need=tg + ["lds:kvr"])]
                        if sg == 1:
                            ex[0] += [Ins(f"buffer_atomic_add v{vONE}, v{vFLG}, {srd(sDBG)}, s{sHA} offen sc1", tag="arr")]
                    ex[0].append(k1)
                    if k2:
                        ex[2].append(k2)
                    if newstage:
                        ex[2].insert(0, Ins(f"s_add_u32 m0, s{sC1}, {KVS0 + KVST * (1 - sg)}"))
                        ex[3] += [Ins(f"s_mov_b32 s{sHA}, {OOB}")] if sg == 1 else []
                        ex[3].append(dma(sINC, 0))
                if q == 1:
                    ex[0].append(vv[0])
                    ex[2].append(vv[1])
                    if newstage:
                        ex[3].append(dma(sINC, 1024))
                if q == 2:
                    if newstage:
                        ex[0].append(dma(sINC, 2048))
                        ex[2].append(dma(sINC, 3072))
                    ex[3].append(Ins("s_waitcnt lgkmcnt(0)"))
                if q == 3 and newstage:
                    ex[0].append(Ins(f"s_add_u32 m0, s{sC1}, {KVS0 + KVST * (1 - sg) + 4096}"))
                    ex[2].append(Ins(f"buffer_load_dwordx4 v{vL16B}, {srd(sDM)}, 0 offen sc1 lds", tag=f"kv{1 - sg}"))
                    if sg == 1 and not self.two:
                        ex[3].append(Ins(f"s_cmp_eq_u32 s{sIT}, 4"))
                    if sg == 0 and self.two:
                        ex[3].append(Ins(f"s_cmp_lt_u32 s{sIT}, 3"))
                if kt % 8 == 5 and q == 2 and not last:
                    ex[0].append(Ins(f"s_add_u32 s{sDM}, s{sDM}, {KVST}"))
                    ex[2].append(Ins(f"s_addc_u32 s{sDM + 1}, s{sDM + 1}, 0"))
            if not last:
                if kt % 8 == 1 and q == 2:
                    ex[0].append(Ins(f"s_cmp_eq_u32 s{sHI}, {18 * 4096}"))
                    ex[2].append(Ins(f"s_cselect_b32 s{sHI}, 0, s{sHI}"))
                if kt % 8 in (0, 1) and q == 3:
                    ex[0].append(Ins(f"s_add_u32 m0, s{sHI}, s{sM0W}"))
                    ex[2] += [Ins(f"s_add_u32 s{sHI}, s{sHI}, 4096"), Ins(f"buffer_load_dwordx4 v{vWM}, {srd(sWO)}, s{sC0} offen lds", tag="wo")]
                    ex[3].append(Ins(f"s_add_u32 s{sC0}, s{sC0}, {36 * 1152}"))
                if kt == 2 and q == 0:
                    ex[2].append(Ins(f"s_lshl_b32 s{sT0}, s{sIT}, 12"))
                    ex[3].append(Ins(f"s_add_u32 s{sT0}, s{sT0}, s{sM0W}"))
                if kt == 2 and q == 1:
                    ex[0].insert(0, Ins(f"s_add_u32 s{sT0}, s{sT0}, s{sRO}"))
                    ex[2].insert(0, Ins(f"s_cmp_ge_u32 s{sT0}, 18432"))
                    ex[3].append(Ins(f"s_cselect_b32 s{sT1}, 18432, 0"))
                if kt == 2 and q == 2:
                    ex[0].append(Ins(f"s_sub_u32 s{sT0}, s{sT0}, s{sT1}"))
                if kt == 2 and q == 3:
                    ex[0].append(Ins(f"s_add_u32 m0, s{sT0}, {2 * SLOT}"))
                    ex[2] += [Ins(f"s_add_u32 s{sIT}, s{sIT}, 1"), Ins(f"buffer_load_dwordx4 v{vWN}, {srd(sWO)}, s{sSTN} offen lds", tag="wo")]
                    ex[3].append(Ins(f"s_add_u32 s{sSTN}, s{sSTN}, {4 * 36 * 1152}"))
                if self.o.get("cpf", 0) >= 2 and kt == 5 and q == 3:
                    ex[0].append(Ins(f"global_load_dword v{vT3}, {vr(vXE, 2)}, off", tag="pf"))
                if self.wpf and kt % 8 == 3 and q == 2:
                    ex[0].append(Ins(f"s_cmp_lt_u32 s{sIT}, 3"))
                    ex[2].append(Ins(f"s_cselect_b32 s{sT0}, 0, {OOB}"))
                if self.wpf and (kt % 8 == 3 or (kt % 8 == 4 and self.npf == 2)) and q == 3:
                    ex[0].append(Ins(f"s_add_u32 s{sT1}, s{sT0}, s{sPG}"))
                    if kt % 8 == 4:
                        ex[2].append(Ins(f"s_add_u32 s{sT1}, s{sT1}, {self.pfstep * 9216}"))
                    ex[2].append(Ins(f"buffer_load_dword v{vT3}, v{vPF}, {srd(sPF)}, s{sT1} offen", tag="pf"))
                    if kt % 8 == 2 + self.npf:
                        ex[3].append(Ins(f"s_add_u32 s{sPG}, s{sPG}, 128"))
                wd0 = self.o.get("wd0", 0)
                if self.wpf and not wd0 and kt % 8 == 4 and (q == 0 or (q == 2 and self.nd == 2)):
                    ex[0].insert(0, Ins(f"s_add_u32 s{sT1}, s{sT0}, s{sPFO}"))
                    ex[2] += [Ins(f"s_add_u32 s{sPFO}, s{sPFO}, {self.dl * 128}"), Ins(f"buffer_load_dword v{vT3}, v{vPD}, {srd(sD)}, s{sT1} offen", tag="pf")]
                if self.wpf and wd0 and kt % 8 == 4:
                    if q == 0:
                        ex[2].append(Ins(f"s_cmp_eq_u32 s{sIT}, {wd0 + 1}"))
                        ex[3].append(Ins(f"s_cselect_b32 s{sT1}, s{sPFO}, {OOB}"))
                    if q in (2, 3):
                        ex[0].append(Ins(f"s_add_u32 s{sT0}, s{sT1}, {self.dl * 128 * (2 * (kt // 8) + q - 2)}"))
                        ex[2].append(Ins(f"buffer_load_dword v{vT3}, v{vPD}, {srd(sD)}, s{sT0} offen", tag="pf"))
            sb = vS_ + 16 * (tau % 4)
            for m in range(4):
                if ms[m]:
                    a.add(ms[m])
                st = stream.get((tau, m), [])
                a.extend([i for i in st if i.kind not in ("vmem", "valu")] + ex[m] + [i for i in st if i.kind in ("vmem", "valu")])
                for e in range(4):
                    a(f"v_exp_f32 v{sb + 4 * m + e}, v{sb + 4 * m + e}")

    def att(self):
        ne, n2, n3 = self.ne, self.n2, self.n3
        pload, pacc = self.pload, self.pacc
        s = self.seg("attpre")
        if self.stamps and self.o.get("gst"):
            s("s_waitcnt lgkmcnt(0)")
            for k, (p, r) in enumerate(self.gst):
                s(f"v_writelane_b32 v0, s{r}, {2 * (20 + k)}")
        self.stamp(s, 3)
        s("s_waitcnt vmcnt(63) lgkmcnt(0)", auto=["kv0"])
        s("s_barrier", need=["kv0", "lds:r6"])
        k1, k2, vv = self.kvreads(0)
        s.extend([k1, k2, self.kvreads(1)[0]] + vv)
        for u in range(2):
            s(f"v_cvt_pk_bf16_f32 v{vQ2 + 8 * u}, v{vEX + 4 * u}, v{vEX + 4 * u + 1}")
        s("s_nop 0")
        for u in range(2):
            s(f"v_permlane32_swap_b32 v{vQ2 + 8 * u}, v{vQ2 + 8 * u + 4}")
        for q in range(4):
            s(f"v_mov_b32 v{vQ2 + 4 * q + 3}, v{vQ2 + 4 * q}")
        s("s_waitcnt lgkmcnt(2)")
        vMX = 28

        def mx(q, first):
            b, m = vS_ + 16 * q, vMX + q
            if first:
                return [f"v_max_f32 v{m}, v{b}, v{b + 1}"] + [f"v_max3_f32 v{m}, v{m}, v{b + j}, v{b + j + 1}" for j in range(2, 16, 2)]
            return [f"v_max3_f32 v{m}, v{m}, v{b + j}, v{b + j + 1}" for j in range(0, 16, 2)] + [f"v_mov_b32 v{b}, v{m}"]

        def fin(q):
            b, m = vS_ + 16 * q, vMX + q
            return [f"v_permlane32_swap_b32 v{m}, v{b}", f"v_max_f32 v{m}, v{m}, v{b}", f"v_sub_f32 v{m}, {f32(-MOFF)}, v{m}",
                    f"v_cvt_pk_bf16_f32 v{m}, v{m}, 0", f"v_cndmask_b32 v{vQ2 + 4 * q}, v{vQ2 + 4 * q}, v{m}, {MSK}", f"v_mov_b32 v{vQ2 + 4 * q + 3}, v{vQ2 + 4 * q}"]

        for q in range(4):
            m0, m1 = self.qk(q, q, 1)
            s.add(m0)
            s(f"buffer_store_dwordx4 {vr(vH1 + 4 * q)}, v{vL16}, {srd(sWS)}, s{sST} offen offset:{1024 * q} sc1", tag="hst")
            s.add(m1)
        s("s_nop 2")
        for q in range(4):
            m0, m1 = self.qk(q, q, 0)
            l = mx(q, True)
            for x in (l if q == 0 else l[4:]):
                s(x)
            s.add(m0)
            s(f"buffer_store_dwordx4 {vr(vXB)}, v{vL16}, {srd(sWS)}, s{sFLN} offen offset:{1024 * q} sc1", tag="hst")
            for x in (mx(q + 1, True)[:4] if q < 3 else mx(0, False)[:4]):
                s(x)
            s.add(m1)
        for x in mx(0, False)[4:] + mx(1, False) + fin(0) + mx(2, False)[:2]:
            s(x)
        m0, m1 = self.qk(0, 0, 0)
        s.add(m0)
        zo = [f"v_mfma_f32_32x32x8bf16_1k {vr(vO_ + 16 * q, 16)}, {ar(aV_ + 8, 2)}, {ar(aV_ + 8, 2)}, 0" for q in range(4)] if self.o.get("ozm", 0) else []
        if self.wpf and self.o.get("p4", 1) == 1:
            s.extend(self.pf2(512))
        for x in mx(2, False)[2:]:
            s(x)
        s.add(m1)
        for k, x in enumerate(fin(1) + mx(3, False) + fin(2) + fin(3)):
            s(x)
            if zo and k % 7 == 5:
                s(zo.pop())
        assert not zo
        for r in range(vS_ + 48, vS_ + 64):
            s(f"v_mov_b32 v{r}, 0")
        s("s_waitcnt lgkmcnt(0)")
        self.stamp(s, 16)
        s(".p2align 3")
        a = self.seg("att0")
        a("L_att:")
        self.att_stage(a, 0, False)
        if self.two:
            a = self.seg("att1")
            self.att_stage(a, 8, False)
            a("s_cbranch_scc1 L_att")
            a = self.seg("attl")
            self.att_rounds(a)
        else:
            a("s_cbranch_scc1 L_attl")
            a = self.seg("att1")
            self.att_stage(a, 8, False)
            a("s_branch L_att\n.p2align 3")
            a = self.seg("attl")
            a("L_attl:")
            self.att_stage(a, 8, True)
        a("s_nop 1")
        a.extend(self.pv(3, 3, 15))
        self.stamp(a, 4)
        if self.two:
            return self.tail2()
        s = self.seg("opub")
        s(f"""L_opub:
        s_lshl_b32 s{sT0}, s{sS}, 11
        s_add_u32 s{sT0}, s{sT0}, s{sOM}
        s_add_u32 s{sT1}, s{sT0}, 18432
        s_lshl_b32 s{sT2}, s{sS}, 8
        s_add_u32 s{sT2}, s{sT2}, s{sOM}
        s_add_u32 s{sT2}, s{sT2}, 16384""")
        vR, vW, vE = 192, 196, vS_ + 16
        for q in range(4):
            o, p = vO_ + 16 * q, vS_ + 4 * q
            u, hp = q // 2, q % 2
            if q == 0:
                for k in range(3):
                    s(f"v_rcp_f32 v{vR + k}, v{vO_ + 16 * k + 10}")
            if q == 2:
                s(f"v_rcp_f32 v{vR + 3}, v{vO_ + 48 + 10}")
            s(f"v_mul_f32 v{vR + q}, {f32(ALPHA)}, v{vR + q}")
            for j in range(10):
                s(f"v_mul_f32 v{vW + j}, v{o + j}, v{vR + q}")
            s(f"v_cvt_pk_bf16_f32 v{vE + 2 * hp + u}, v{vW + 8}, v{vW + 9}")
            for j in range(4):
                s(f"v_cvt_pk_bf16_f32 v{p + j}, v{vW + 2 * j}, v{vW + 2 * j + 1}")
            if u == 1:
                s(f"v_permlane16_swap_b32 v{vE + 2 * hp}, v{vE + 2 * hp + 1}")
            s(f"buffer_store_dwordx4 {vr(p)}, v{vL16}, {srd(sWS)}, s{sT0 + u} offen offset:{1024 * hp} sc1", tag="ost")
        s(f"buffer_store_dwordx4 {vr(vE)}, v{vOE}, {srd(sWS)}, s{sT2} offen sc1", tag="ost")
        s.add(self.poll())
        s(f"""s_cmp_lg_u32 s{sSK}, 0
        s_cbranch_scc1 L_chkd""")
        s = self.seg("chk")
        self.check(s, (0, 1, 2, 3))
        if self.forcefb:
            s("s_or_b64 vcc, vcc, 1")
        s("s_cbranch_scc1 L_fb")
        s = self.seg("opub2")
        s("L_chkd:")
        vXR, vXU = 176, 96
        for j in range(8):
            s(f"ds_read_b64 {vr(vXR + 2 * j, 2)}, v{vTMP + j // 2 if j > 1 else vBA} offset:{2048 * (j % 2)}", need=["xr"])
        s(f"ds_read_b64 {vr(vXR + 16, 2)}, v{vXNA}")
        unp = []
        for j in range(9):
            d = vXU + 4 * j if j < 8 else vXE
            for e in range(2):
                unp += [Ins(f"v_lshlrev_b32 v{d + 2 * e}, 16, v{vXR + 2 * j + e}"), Ins(f"v_and_b32 v{d + 2 * e + 1}, 0xffff0000, v{vXR + 2 * j + e}")]
        s("s_waitcnt vmcnt(0)")
        s(f"buffer_store_dword v{vONE}, v{vFO}, {srd(sWS)}, s{sOF} offen sc1", need=["ost"])
        self.stamp(s, 5)
        rd = self.ready()
        s.extend(rd[:3])
        s(f"""s_andn2_b32 s{sT0}, s{sOTH}, vcc_lo
        s_waitcnt lgkmcnt(0)
        s_cbranch_scc0 L_ogatf""")
        s = self.seg("opub3")
        s.add(rd[3])
        s.extend(self.opf())
        s.add(self.poll())
        pl = self.weave(pload(ne, n2))
        mf = pacc(0, ne)
        up2 = [Ins(i.text) for i in unp]
        k = 0
        while pl or mf or up2:
            if mf:
                s.add(mf.pop(0))
            if pl and k % 3 == 0:
                while pl[0].kind == "salu":
                    s.add(pl.pop(0))
                s.add(pl.pop(0))
            else:
                s.extend(up2[:2])
                up2 = up2[2:]
            k += 1
        self.owait(s)
        gl = []
        for kb in range(6):
            for u in range(2):
                for i in range(3):
                    k = 3 * kb + i
                    q = [Ins(f"s_add_u32 s{sA}, s{sOM1 if k >= 9 and not self.o.get('opf', 0) else sOM0}, {1024 * (18 * u + k)}")] if i == 0 else []
                    gl.append(q + [Ins(f"buffer_load_dwordx4 {xn(u, k)}, v{vL16}, {srd(sWS)}, s{sA} offen offset:{1024 * i} sc1", tag=f"og{kb}")])
        ng = self.o.get("ngpre", 12)
        tf = Timeline()
        vX2 = 28
        n = 0
        for kb in range(6):
            for ct in range(5):
                g0 = 30 * kb + 6 * ct
                for i in range(3):
                    k = 3 * kb + i
                    f = aFR + 4 * ((15 * kb + 3 * ct + i) % 18)
                    for hh in range(2):
                        if ct < 4:
                            off = 4096 * k + 2048 * hh
                            ins = Ins(f"ds_read_b64_tr_b16 {ar(f + 2 * hh, 2)}, v{vRB + 4 * (off // 65536) + ct} offset:{off % 65536}", tag="fr")
                        else:
                            ins = Ins(f"ds_read_b64_tr_b16 {ar(f + 2 * hh, 2)}, v{vRN} offset:{1024 * k + 512 * hh}", tag="fr")
                        tf.place(Item("r", ins, 0, earliest=g0 - 36 + 3 + i), n - 16)
                        n += 1
                    for u in range(2):
                        c = vr(vG + 4 * (2 * ct + u)) if ct < 4 else vr(vX2 if u else vXB)
                        tf.m[g0 + 3 * u + i] = Ins(f"v_mfma_f32_16x16x32_bf16 {c}, {ar(f)}, {xn(u, k)}, {'0' if ct == 4 and k == 0 else c}")
            if kb:
                tf.gap(30 * kb - 1).shadow.append(Ins("s_waitcnt vmcnt(63)", auto=[f"og{kb}"]))
        pre0 = tf.emit(-16, 0)
        cp = lambda l: [Ins(i.text, tag=i.tag) for i in l]
        s = self.seg("ogatf")
        s("L_ogatf:")
        if self.o.get("gbar", 1):
            s("s_barrier")
        self.stamp(s, 6)
        mf, pre = pacc(0, ne), cp(pre0)
        per = -(-len(mf) // (ng - 4))
        for q in gl[:ng]:
            s.extend(cp(q))
            if mf:
                for m in mf[:per]:
                    s.add(m)
                    s.extend(unp[:1])
                    unp = unp[1:]
                mf = mf[per:]
            else:
                s.extend(pre[:4])
                pre = pre[4:]
        s.extend(pre + unp)
        s("s_branch L_ogatc")
        s = self.seg("ogat")
        s("L_ogat:")
        if self.o.get("gbar", 1):
            s("s_barrier")
        self.stamp(s, 6)
        pre = list(pre0)
        for q in gl[:ng]:
            s.extend(q)
            s.extend(pre[:1])
            pre = pre[1:]
        s.extend(pre)
        s("s_waitcnt vmcnt(63)", auto=[f"pl{i}" for i in range(ne, ne + n2)])
        s.extend(pacc(ne, n2))
        s = self.seg("ogatc")
        s("L_ogatc:")
        s("s_waitcnt vmcnt(63) lgkmcnt(0)", auto=["og0"])
        gs = self.o.get("gstep", 4)
        for k, q in enumerate(gl[ng:]):
            p = 1 + gs * k
            p += 1 if p % 30 == 29 else 0
            tf.gap(p).shadow.extend(q[:-1])
            tf.gap(p).mem.append(q[-1])
        n4 = self.o.get("n4", 1)
        i3, i4 = ne + n2, ne + n2 + n3
        assert n3 + n4 <= 5

        def rnd(p, i0, n):
            rd = self.ready()
            tf.gap(p).shadow.append(Ins("s_waitcnt vmcnt(63)", auto=["poll"]))
            tf.gap(p).valu.append(rd[0])
            p, lastm = p + 1, 0
            for i in rd[2:3] + [self.poll()] + rd[3:] + self.weave(pload(i0, n)):
                if i.kind == "salu":
                    tf.gap(p).shadow.append(i)
                    p += 1
                else:
                    p = max(p, lastm + 3)
                    lastm = p
                    tf.gap(p - 1).mem.append(i)
            return p

        p1 = p + 1
        tf.gap(p1 - 50).mem.append(self.poll())
        p = rnd(p1, i3, n3)
        p2 = self.o.get("p2", 180 - 12 - 12 * n4)
        assert p <= p2, (p, p2)
        p = rnd(p2, i4, n4)
        assert p < 181, p
        if self.stamps and self.o.get("fst"):
            fst = list(zip((0, 31, 61, 91, 121, 151), (66, 68, 52, 54, 100, 72)))
            for p, r in fst:
                tf.gap(p).shadow.append(Ins(f"s_memtime s[{r}:{r + 1}]"))
        tf.insert_lgkm_waits(0, 180, [])
        s.extend(tf.emit(0, 180))
        self.endgame()

    def owait(self, s):
        ne, n2, pload, pacc = self.ne, self.n2, self.pload, self.pacc
        s(f"s_mov_b32 s{sT3}, 0")
        s = self.seg("wo0")
        s(f"L_wo0:\ns_waitcnt vmcnt({4 * n2})")
        s = self.seg("wo1")
        s("L_wo1:")
        rd = self.ready()
        s.extend(rd[:3])
        s(f"""s_andn2_b32 s{sT0}, s{sOTH}, vcc_lo
        s_cbranch_scc0 L_ogat""")
        if self.o.get("opf", 0):
            s(f"s_and_b32 s{sT0}, vcc_lo, s{sTO}\ns_cbranch_scc0 L_wo1b")
            self.seg("wo1a").extend(self.opf())
        s = self.seg("wo1b")
        s("L_wo1b:")
        s.add(self.poll())
        s(f"""s_add_u32 s{sT3}, s{sT3}, 1
        s_cmp_gt_u32 s{sT3}, 0x40000
        s_cbranch_scc1 L_end""")
        s.add(rd[3])
        s("s_cbranch_scc1 L_wo2")
        s = self.seg("wo1c")
        s("s_waitcnt vmcnt(0)\ns_branch L_wo1")
        s = self.seg("wo2")
        s("L_wo2:\ns_waitcnt vmcnt(1)")
        pl = pload(ne, n2)
        for i in range(n2):
            mf = pacc(ne + i, 1)
            for k in range(8):
                s.add(mf[k])
                if k < 7:
                    s.add(pl[11 * i + k])
            s.extend(pl[11 * i + 7:11 * i + 11])
        s("s_branch L_wo0")

    def rnd(self, tf, p, i0, n):
        rd = self.ready()
        tf.gap(p).shadow.append(Ins("s_waitcnt vmcnt(63)", auto=["poll"]))
        tf.gap(p).valu.append(rd[0])
        p, lastm = p + 1, 0
        for i in rd[2:3] + [self.poll()] + rd[3:] + self.weave(self.pload(i0, n)):
            if i.kind == "salu":
                tf.gap(p).shadow.append(i)
                p += 1
            else:
                p = max(p, lastm + 3)
                lastm = p
                tf.gap(p - 1).mem.append(i)
        return p

    def proj(self):
        tf = Timeline()
        F = 0
        for kb, (j0, n) in enumerate(self.KB):
            if kb:
                tf.gap(2 * F - 1).shadow.append(Ins("s_waitcnt vmcnt(63)", auto=[f"og{kb}"]))
            for ct in range(5):
                g0 = 2 * F
                for i in range(n):
                    k = self.KO[j0 + i]
                    f = aFR + 4 * (F % 18)
                    for hh in range(2):
                        if ct < 4:
                            off = 4096 * k + 2048 * hh
                            ins = Ins(f"ds_read_b64_tr_b16 {ar(f + 2 * hh, 2)}, v{vRB + 4 * (off // 65536) + ct} offset:{off % 65536}", tag="fr")
                        else:
                            ins = Ins(f"ds_read_b64_tr_b16 {ar(f + 2 * hh, 2)}, v{vRN} offset:{1024 * k + 512 * hh}", tag="fr")
                        tf.place(Item("r", ins, 0), 2 * F + hh - 16)
                    for u in range(2):
                        c = vr(vG + 4 * (2 * ct + u)) if ct < 4 else vr(28 if u else vXB)
                        tf.m[g0 + n * u + i] = Ins(f"v_mfma_f32_16x16x32_bf16 {c}, {ar(f)}, {xn(u, j0 + i)}, {'0' if ct == 4 and j0 + i == 0 else c}")
                    F += 1
        return tf

    def tail2(self):
        ne, n2, n3, n4 = self.ne, self.n2, self.n3, self.o.get("n4", 1)
        pload, pacc = self.pload, self.pacc
        s = self.seg("opub")
        s(f"""L_opub:
        s_lshl_b32 s{sT2}, s{sS}, 8
        s_add_u32 s{sT2}, s{sT2}, s{sOM}
        s_add_u32 s{sT2}, s{sT2}, 16384
        s_nop 0""")
        self.publish(s, 1, "ost")
        s(f"buffer_store_dwordx4 {vr(28)}, v{vOE}, {srd(sWS)}, s{sT2} offen sc1", tag="ost")
        s.add(self.poll())
        s(f"""s_cmp_lg_u32 s{sSK}, 0
        s_cbranch_scc1 L_chkd""")
        s = self.seg("chk")
        self.check(s, (1, 3))
        if self.forcefb == 1:
            s("s_or_b64 vcc, vcc, 1")
        s(f"""s_cbranch_scc1 L_fb
        s_cmp_eq_u32 s{sNA}, -1
        s_cbranch_scc1 L_fb""")
        s = self.seg("opub2")
        s("L_chkd:")
        vXR, vXU = 176, 96
        for j in range(8):
            s(f"ds_read_b64 {vr(vS_ + 2 * j, 2)}, v{vTMP + j // 2 if j > 1 else vBA} offset:{2048 * (j % 2)}", need=["xr"])
        s(f"ds_read_b64 {vr(vS_ + 16, 2)}, v{vXNA}")
        unp = []
        for j in range(9):
            d = vXU + 4 * j if j < 8 else vXE
            for e in range(2):
                unp += [Ins(f"v_lshlrev_b32 v{d + 2 * e}, 16, v{vS_ + 2 * j + e}"), Ins(f"v_and_b32 v{d + 2 * e + 1}, 0xffff0000, v{vS_ + 2 * j + e}")]
        s("s_waitcnt vmcnt(63)", auto=[f"pl{i}" for i in range(ne)])
        for k, m in enumerate(pacc(0, ne)):
            s.add(m)
            if k == 5:
                s("s_waitcnt lgkmcnt(0)")
            if k >= 5:
                s.extend(unp[:2])
                unp = unp[2:]
        s.extend(unp)
        t1 = self.proj()
        s.extend(t1.emit(-16, 0))
        s("s_waitcnt vmcnt(0)")
        s(f"buffer_store_dword v{vONE}, v{vFO2}, {srd(sWS)}, s{sOF} offen sc1", need=["ost", "osa"])
        self.stamp(s, 5)
        s(f"""s_cmp_lg_u32 s{sGA}, {OOB}
        s_cbranch_scc1 L_ga""")
        s = self.seg("pa0")
        s(f"s_mov_b32 s{sT3}, 0")
        s = self.seg("pa1")
        s(f"""L_pa1:
        v_cmp_ne_u32 vcc, 0, v{vPOL}
        s_add_u32 s{sT3}, s{sT3}, 1
        s_lshr_b32 s{sT0}, vcc_lo, 24
        s_andn2_b32 s{sT0}, s{sOTH}, s{sT0}
        s_cbranch_scc0 L_pa3""")
        s = self.seg("pa2")
        s.add(self.poll())
        s(f"""s_cmp_gt_u32 s{sT3}, 0x40000
        s_cbranch_scc1 L_end
        s_waitcnt vmcnt(0)
        s_branch L_pa1""")
        s = self.seg("pa3")
        s("L_pa3:")
        for q in self.gather((0, 1), sOM):
            s.extend(q)
        s = self.seg("ga")
        s("L_ga:")
        rd = self.ready()
        s.extend(rd[:3])
        s(f"""s_andn2_b32 s{sT0}, s{sOTH}, vcc_lo
        s_cbranch_scc1 L_ga0""")
        s = self.seg("ga1")
        self.stamp(s, 6)
        gl = self.gather((2, 3, 4, 5), sOM)
        npre = self.o.get("gpre", 4)
        for q in gl[:npre]:
            s.extend(q)
        for k, q in enumerate(gl[npre:]):
            p = 1 + 4 * k
            t1.gap(p).shadow.extend(q[:-1])
            t1.gap(p).mem.append(q[-1])
        t1.gap(self.o.get("pp1", 43)).mem.append(self.poll())
        p = self.rnd(t1, self.o.get("p1", 90), ne + n2, n3)
        p2 = self.o.get("p2", 180 - 12 - 12 * n4)
        assert p <= p2, (p, p2)
        assert self.rnd(t1, p2, ne + n2 + n3, n4) < 181
        fst = list(zip((80, 89, 100, 120, 139, 150), (72, 74, 12, 14, 16, 18))) if self.stamps and self.o.get("fst") else []
        for p, r in fst:
            t1.gap(p).shadow.insert(0, Ins(f"s_memrealtime s[{r}:{r + 1}]"))
        o80 = t1.insert_lgkm_waits(0, 80, [])
        t1.insert_lgkm_waits(80, 180, o80)
        s("s_waitcnt vmcnt(63) lgkmcnt(0)", auto=["og0"])
        s.extend(t1.emit(0, 80))
        s = self.seg("gb")
        s("L_gb:")
        s.extend(t1.emit(80, 180))
        if fst:
            s("s_waitcnt lgkmcnt(0)")
            for k, (p, r) in enumerate(fst):
                s(f"v_writelane_b32 v0, s{r}, {2 * (20 + k) + 1}")
            s(f"v_writelane_b32 v0, s{sGA}, 60\nv_writelane_b32 v0, s{sTODO}, 62")
        self.endgame()
        s = self.seg("ga0")
        s("L_ga0:")
        t0 = self.proj()
        t0.gap(79).shadow.clear()
        p, lastm = 0, 0
        for i in rd[3:] + [self.poll()] + self.weave(pload(ne, n2)):
            if i.kind == "salu":
                t0.gap(p).shadow.append(i)
                p += 1
            elif i.tag == "poll":
                p = self.o.get("pp0", 30)
                t0.gap(p).mem.append(i)
                lastm = p = p + 1
            else:
                p = max(p, lastm + 4)
                lastm = p
                t0.gap(p - 1).mem.append(i)
        assert p < 80
        t0.insert_lgkm_waits(0, 79, [])
        s("s_waitcnt vmcnt(63) lgkmcnt(0)", auto=["og0"])
        s.extend(t0.emit(0, 80))
        self.owait(s)
        s = self.seg("ogat")
        s("L_ogat:")
        self.stamp(s, 6)
        gl = self.gather((2, 3, 4, 5), sOM)
        for q in gl[:8]:
            s.extend(q)
        s("s_waitcnt vmcnt(63)", auto=[f"pl{i}" for i in range(ne, ne + n2)])
        mf = pacc(ne, n2)
        for q in gl[8:]:
            s.extend(mf[:2] + q)
            mf = mf[2:]
        s.extend(mf)
        s.add(self.poll())
        s("s_waitcnt vmcnt(63) lgkmcnt(0)", auto=["og2"])
        s("s_branch L_gb")

    def endgame(self):
        n3, n4 = self.n3, self.o.get("n4", 1)
        i3, i4 = self.ne + self.n2, self.ne + self.n2 + n3
        pload, pacc, vX2, vXU = self.pload, self.pacc, 28, 96
        s = self.seg("xud")
        self.stamp(s, 7)
        s(f"s_mov_b32 s{sT2}, {f32(1.0 / ALPHA ** 2)}\ns_mov_b32 s{sT3}, 0")
        self.sk3 = self.pacc_opt("sk3", i3, n3)
        s = self.segs[-1]
        s(f"s_nop 3\ns_bitcmp1_b32 s{sS}, 2\ns_cselect_b64 {MK2}, -1, 0")
        for e in range(4):
            s(f"v_cndmask_b32 v{vXB + e}, v{vXB + e}, v{vX2 + e}, {MK2}")
        s = self.seg("e1")
        s(f"""L_e1:
        s_cmp_eq_u32 s{sTODO}, 0
        s_cbranch_scc1 L_e2""")
        s = self.seg("e1b")
        s("s_waitcnt vmcnt(0)")
        s.extend(pacc(i4, n4))
        s = self.seg("e1c")
        s("L_e1c:")
        rd = self.ready()
        s.extend(rd[:3] + [self.poll()])
        s(f"""s_add_u32 s{sT3}, s{sT3}, 1
        s_cmp_gt_u32 s{sT3}, 0x40000
        s_cbranch_scc1 L_end""")
        s.add(rd[3])
        s("s_cbranch_scc1 L_e1e")
        s = self.seg("e1d")
        s("s_waitcnt vmcnt(0)\ns_branch L_e1c")
        s = self.seg("e1e")
        s("L_e1e:")
        s.extend(self.weave(pload(i4, n4)))
        s("s_branch L_e1")
        vLP = 32
        lastl = lambda: [Ins(f"buffer_load_dwordx2 {vr(vLP + 2 * p, 2)}, v{vL8}, {srd(sWS)}, s{sFLN} offen offset:{512 * p} sc1", tag="pll") for p in range(8)]
        s = self.seg("fmain")
        s("L_e2:")
        self.stamp(s, 17)
        s(f"s_mov_b32 s{sLST}, 1")
        s.extend(lastl())
        self.sk4 = self.pacc_opt("sk4", i4, n4)
        s = self.segs[-1]
        s.add(self.poll())
        self.stamp(s, 18)
        for j in range(8):
            c = vG + 4 * j
            for e in range(4):
                s(f"v_fma_f32 v{c + e}, v{c + e}, s{sT2}, v{vXU + 4 * j + e}")
            s(f"v_cvt_pk_bf16_f32 v{c}, v{c}, v{c + 1}\nv_cvt_pk_bf16_f32 v{c + 1}, v{c + 2}, v{c + 3}")
        for j in range(8):
            s(f"ds_write_b64 v{vTMP + j // 2 if j > 1 else vBA}, {vr(vG + 4 * j, 2)} offset:{2048 * (j % 2)}")
        for i in range(4):
            s(f"ds_read_b128 {vr(vXU + 4 * i)}, v{vOL} offset:{1024 * i}")
        for i in range(4):
            s(f"s_waitcnt lgkmcnt({3 - i})")
            s(f"buffer_store_dwordx4 {vr(vXU + 4 * i)}, v{vTMP}, {srd(sOUT)}, s{sC0} offen")
            if i < 3:
                s(f"s_add_u32 s{sC0}, s{sC0}, 9216")
        self.stamp(s, 8)
        s("s_waitcnt vmcnt(5)")
        s = self.seg("e3")
        s("L_e3:")
        s(f"v_max3_u32 v{vT0}, v{vLP}, v{vLP + 1}, v{vLP + 2}")
        for j in range(3, 15, 2):
            s(f"v_max3_u32 v{vT0}, v{vT0}, v{vLP + j}, v{vLP + j + 1}")
        s(f"""v_max_u32 v{vT0}, v{vT0}, v{vLP + 15}
        v_cmp_eq_u32 vcc, -1, v{vT0}
        s_cmp_eq_u32 s{sLST}, 0
        s_cbranch_vccz L_fin
        s_cbranch_scc1 L_fin""")
        s = self.seg("e3b")
        s(f"s_waitcnt vmcnt(4)\nv_cmp_eq_u32 vcc, 0, v{vPOL}")
        s.extend(lastl())
        s(f"s_and_b32 s{sLST}, vcc_lo, 0xff0000")
        s.add(self.poll())
        s(f"""s_add_u32 s{sT3}, s{sT3}, 1
        s_cmp_lt_u32 s{sT3}, 0x40000
        s_waitcnt vmcnt(0)
        s_cbranch_scc1 L_e3
        s_endpgm""")
        s = self.seg("fin")
        s("L_fin:")
        for p in range(4):
            s(f"v_mfma_f32_16x16x32_bf16 {vr(vXB)}, {vr(vSEL + 6)}, {vr(vLP + 4 * p)}, {vr(vXB)}")
        s("s_nop 7")
        for e in range(4):
            s(f"v_fma_f32 v{vXB + e}, v{vXB + e}, s{sT2}, v{vXE + e}")
        s(f"""v_cvt_pk_bf16_f32 v{vXB}, v{vXB}, v{vXB + 1}
        v_cvt_pk_bf16_f32 v{vXB + 1}, v{vXB + 2}, v{vXB + 3}
        buffer_store_dwordx2 {vr(vXB, 2)}, v{vOA}, {srd(sOUT)}, s{sXN} offen""")
        self.stamp(s, 9, True)
        self.stamp_flush(s)
        s("s_endpgm")

    def fallback(self):
        vM = 192
        s = self.seg("fb0")
        s(f"""L_fb:
        s_waitcnt vmcnt(0) lgkmcnt(0)
        v_and_b32 v{vT0}, 31, v{vL}
        v_lshlrev_b32 v{vT0}, 4, v{vT0}
        v_subrev_u32 v{vT1}, {KVS0}, v{vVA}
        v_accvgpr_write_b32 a{aK2 + 1}, 0
        s_mov_b32 s{sIT}, 0
        s_mov_b32 s{sSK}, 1""")
        for q in range(4):
            s(f"v_cndmask_b32 v{vQ2 + 4 * q}, v{vQ2 + 4 * q}, 0, {MSK}\nv_mov_b32 v{vM + q}, 0xff800000")
        for r in range(vO_, vO_ + 64):
            s(f"v_mov_b32 v{r}, 0")

        def loads(k, withv):
            k(f"""s_lshr_b32 s{sT0}, s{sIT}, 3
            s_mul_i32 s{sT0}, s{sT0}, {KVST}
            s_and_b32 s{sT1}, s{sIT}, 7
            s_lshl_b32 s{sT2}, s{sT1}, 10
            s_add_u32 s{sT2}, s{sT2}, s{sT0}
            buffer_load_dwordx4 {ar(aK1)}, v{vL16}, {srd(sWS)}, s{sT2} offen sc1
            s_lshr_b32 s{sT2}, s{sT1}, 2
            s_mul_i32 s{sT2}, s{sT2}, 640
            s_and_b32 s{sT3}, s{sT1}, 3
            s_lshl_b32 s{sT3}, s{sT3}, 2
            s_add_u32 s{sT2}, s{sT2}, s{sT3}
            s_add_u32 s{sT2}, s{sT2}, s{sT0}
            s_add_u32 s{sT2}, s{sT2}, 18432
            buffer_load_dword a{aK2}, v{vT0}, {srd(sWS)}, s{sT2} offen sc1""")
            if withv:
                k(f"""s_mul_i32 s{sT2}, s{sT1}, 1280
                s_add_u32 s{sT2}, s{sT2}, s{sT0}
                buffer_load_dwordx4 {ar(aV_)}, v{vT1}, {srd(sWS)}, s{sT2} offen sc1
                buffer_load_dwordx4 {ar(aV_ + 4)}, v{vT1}, {srd(sWS)}, s{sT2} offen offset:640 sc1""")
            k("s_waitcnt vmcnt(0)")
            for q in range(4):
                k.extend(self.qk(q, q, 0))
            k("s_nop 11")

        k = self.seg("fb1")
        k("L_fb1:")
        loads(k, False)
        for q in range(4):
            for j in range(0, 16, 2):
                k(f"v_max3_f32 v{vM + q}, v{vM + q}, v{vS_ + 16 * q + j}, v{vS_ + 16 * q + j + 1}")
        k(f"""s_add_u32 s{sIT}, s{sIT}, 1
        s_cmp_lt_u32 s{sIT}, 64
        s_cbranch_scc1 L_fb1""")
        k = self.seg("fb2")
        for q in range(4):
            k(f"v_mov_b32 v{vS_ + q}, v{vM + q}")
        k("s_nop 0")
        for q in range(4):
            k(f"v_permlane32_swap_b32 v{vM + q}, v{vS_ + q}")
        for q in range(4):
            k(f"v_max_f32 v{vM + q}, v{vM + q}, v{vS_ + q}")
        k(f"s_mov_b32 s{sIT}, 0")
        k = self.seg("fb3")
        k("L_fb3:")
        loads(k, True)
        for q in range(4):
            for j in range(16):
                k(f"v_sub_f32 v{vS_ + 16 * q + j}, v{vS_ + 16 * q + j}, v{vM + q}")
            for j in range(16):
                k(f"v_exp_f32 v{vS_ + 16 * q + j}, v{vS_ + 16 * q + j}")
        k("s_nop 1")
        for q in range(4):
            k.extend(self.pv(q, q, 0))
        k(f"""s_add_u32 s{sIT}, s{sIT}, 1
        s_cmp_lt_u32 s{sIT}, 64
        s_cbranch_scc1 L_fb3""")
        k = self.seg("fb4")
        k("s_nop 11")
        if self.two:
            k(f"s_cmp_eq_u32 s{sNA}, -1\ns_cbranch_scc0 L_opub")
            k = self.seg("fb5")
            self.publish(k, 0, "osa")
        k("s_branch L_opub")


DEFAULTS = dict(fpos=66, cpf=2, ngpre=18, gstep=5, n3=2, p2=156, ne=5, pack=2, n2=2, npf0=0, nup=10, npre=6, g0=0, wskip=0, vpf=1, late=1, kpos=30, kvn=15, defer=7, ozm=1, p3=401, p4=405, align=1,
                two=1, ne1=3, gpre=8, fa=22, pa=36, ga=52, p1=110, pp1=60)


def build(path, C=2, stamps=False, xpf=False, wpf=True, forcefb=False, verbose=True, **kw):
    kw = dict(DEFAULTS, **kw)
    g = Gen1(C=C, stamps=stamps, xpf=xpf, wpf=wpf, **kw)
    g.forcefb = kw.get('ffb', forcefb)
    g.two = kw.get('two', 0)
    g.kvpoll, g.kvchk = kw.get("kvpoll", 300), kw.get("kvchk", 356)
    g.ne, g.n2, g.n3, g.etau = kw.get("ne", 4), kw.get("n2", 2), kw.get("n3", 2), kw.get("etau", 50)
    g.prologue()
    g.p0()
    g.p1()
    al = kw.get("align", 0)
    if al:
        names = ["ln", "ln2", "p1a", "opub", "chk", "sk4", "attpre", "e3", "fin"]
        if al >= 2:
            names += ["p0pre", "aloop", "aloop2", "b0", "p1gemm"]
        if al >= 3:
            names += ["attpre", "att0", "att1", "attl", "opub", "chk", "sk4", "opub3", "ogatf"]
        align_pass(g.segs, names, ("ln", "ln2", "p1a", "sk4", "chk", "e3"))
    probs = []
    traces = [("P0", g.trace(["entry", "entry1"] + (["pfe"] if kw.get("early") == 2 else []) + ["entry2", "p0x", "ln", "ln2", "p0pre"] + (["aloop", "aloop2"] * 7)[(1 if kw.get("late") else 0):] + ["aexit", "aswitch", "aswitch2", "aloop", "aloop2", "aexit", "b0"] + ["bloop", "bloop2"] * 3 + ["bloop", "bend"]))]
    for u in range(2):
        for o in range(2):
            fb = ["fb0", "fb1", "fb1", "fb2", "fb3", "fb3", "fb4", "opub"] if o else []
            for end in (["sk3", "e1", "fmain", "sk4", "e3", "fin"], g.sk3 + ["sk3", "e1", "fmain"] + g.sk4 + ["sk4", "e3", "fin"],
                        g.sk3[:1] + ["sk3", "e1", "e1b", "e1c", "e1d", "e1c", "e1e", "e1", "e1b", "e1c", "e1e", "e1", "fmain"] + g.sk4 + ["sk4", "e3", "e3b", "e3", "fin"]):
                t1 = ["entry", ("tl0", "tl2", "tl3", "tl0")[2 * u + o], "entry1"] + (["pfe"] if kw.get("early") == 3 else []) + ["entry2", "p1pre", "ln", "kvdma", "ln2", "p1a", f"kv{u}{o}", "p1gemm", "attpre"] + ["att0", "att1"] * 3 + ["att0", "attl"] + \
                     ["opub", "chk"] + fb + ["opub2"] + (["ogatf"] if u else ["opub3", "wo0", "wo1"] + (["wo1a", "wo1b", "wo1c", "wo1", "wo1b", "wo2", "wo0", "wo1", "wo1b", "wo2", "wo0", "wo1"] if o else []) + ["ogat"]) + ["ogatc", "xud"] + end
                if not g.two:
                    traces.append(("P1", g.trace(t1)))
                    continue
                head = t1[:t1.index("attpre") + 1] + ["att0", "att1"] * 3 + ["attl", "opub", "chk"] + (fb[:-1] + ["fb5"] * u + ["opub"] if o else []) + ["opub2"]
                for pa in ([], ["pa0", "pa1", "pa3"], ["pa0", "pa1", "pa2", "pa1", "pa3"]):
                    for gg in (["ga1"], ["ga0", "wo0", "wo1", "ogat"], ["ga0", "wo0", "wo1", "wo1b", "wo1c", "wo1", "wo1b", "wo2", "wo0", "wo1", "wo1b", "wo2", "wo0", "wo1", "ogat"]):
                        if (u, o) in ((0, 0), (1, 1)) or (not pa and gg == ["ga1"]):
                            traces.append(("P1", g.trace(head + pa + ["ga"] + gg + ["gb", "xud"] + end)))
    auto_vm([t for _, t in traces])
    for n, t in traces:
        probs += check_trace(t, n)
    seen = set()
    for p in probs:
        key = p.split("'", 1)[1]
        if key not in seen:
            seen.add(key)
            print(p)
    if verbose:
        for s in g.segs:
            n = sum(1 for i in s.ins if i.kind != "label")
            nm = sum(1 for i in s.ins if i.kind == "mfma")
            if n > 40:
                print(f"{s.name:10s} ins {n:5d} mfma {nm:4d} est {est_cycles(s.ins)}")
    open(path, "w").write(g.text())
    return len(seen)


if __name__ == "__main__":
    import argparse
    ap = argparse.ArgumentParser()
    ap.add_argument("-o", default="cdna_kernels/" + NAME + ".s")
    ap.add_argument("-C", type=int, default=2)
    ap.add_argument("--stamps", action="store_true")
    ap.add_argument("--xpf", action="store_true")
    ap.add_argument("--nowpf", action="store_true")
    ap.add_argument("--fb", action="store_true")
    ap.add_argument("kw", nargs="*")
    a = ap.parse_args()
    kw = {}
    for x in a.kw:
        k, v = x.split("=")
        kw[k] = int(v) if v.lstrip("-").isdigit() else " " + v
    n = build(a.o, a.C, a.stamps, a.xpf, not a.nowpf, a.fb, **kw)
    print("problems:", n)
```

```python
import sys
from ubl import *
ON_GPU = os.path.exists('/dev/kfd')
def kernel(flag, n, lds):
    s = """
    s_load_dwordx4 s[4:7], s[0:1], 0
    v_lshrrev_b32 v1, 6, v0
    s_nop 1
    v_readfirstlane_b32 s20, v1
    v_and_b32 v2, 63, v0
    s_waitcnt lgkmcnt(0)
    s_mov_b32 s8, s4
    s_and_b32 s9, s5, 0xffff
    s_mov_b32 s10, 0x100000
    s_mov_b32 s11, 0x20000
    s_mov_b32 s12, s6
    s_and_b32 s13, s7, 0xffff
    s_mov_b32 s14, 0x10000000
    s_mov_b32 s15, 0x20000
    s_lshl_b32 s40, s2, 2
    s_add_u32 s40, s40, s20
    s_mul_i32 s40, s40, 37888
    s_lshl_b32 s30, s20, 10
    s_mov_b32 m0, s30
    v_lshlrev_b32 v3, 4, v2
    buffer_load_dword v5, v3, s[12:15], s40 offen
    s_add_u32 s40, s40, 1024
    s_waitcnt vmcnt(0)
    s_barrier
    s_memrealtime s[24:25]
    s_waitcnt lgkmcnt(0)
"""
    for i in range(n):
        if lds: s += f"    buffer_load_dwordx4 v3, s[12:15], s40 offen {flag} lds\n"
        else: s += f"    buffer_load_dwordx4 v[{16+4*i}:{19+4*i}], v3, s[12:15], s40 offen {flag}\n"
        s += "    s_add_u32 s40, s40, 1024\n"
    s += """
    s_waitcnt vmcnt(0)
    s_memrealtime s[26:27]
    s_waitcnt lgkmcnt(0)
    s_sub_u32 s26, s26, s24
    v_mov_b32 v8, s26
    s_lshl_b32 s3, s2, 2
    s_add_u32 s3, s3, s20
    s_lshl_b32 s3, s3, 2
    v_mov_b32 v3, s3
    buffer_store_dword v8, v3, s[8:11], 0 offen
    s_waitcnt vmcnt(0)
"""
    return s
if ON_GPU:
    out = DeviceBuffer(1<<20); X = DeviceBuffer(256<<20)
i = 0
for G in (8, 64, 128, 256):
  for flag, lds in (("", 0), ("sc1", 0), ("nt", 0), ("sc0 sc1", 0), ("sc1", 1)):
    i += 1
    co = build(wrap(kernel(flag, 36, lds), grid=G, block=256, lds=131072), tag=f"r{i}")
    if ON_GPU:
        k = AsmKernel(co, "k_kernel"); ka = pack_ptr_kernargs([out.ptr, X.ptr, out.ptr, out.ptr])
        r = []
        for rep in range(4):
            memset(X, rep, 64<<20)
            k.launch((G,1,1),(256,1,1), ka, 131072); sync()
            r.append(np.median(out.to_numpy(np.uint32, (1024,))[:4*G])/100)
        print(f"G={G} '{flag}' lds={lds}: 147KB in", r[1:], "us")
```

```python
import re

TRANS = ("v_exp_f32", "v_rcp_f32", "v_rsq_f32", "v_log_f32", "v_sqrt_f32")


def regs_of(tok):
    tok = tok.strip()
    tok = tok.lstrip("-")
    m = re.fullmatch(r"abs\((.*)\)", tok)
    if m:
        tok = m.group(1)
    m = re.fullmatch(r"([vas])(\d+)", tok)
    if m:
        return [m.group(1) + m.group(2)]
    m = re.fullmatch(r"([vas])\[(\d+):(\d+)\]", tok)
    if m:
        return [m.group(1) + str(i) for i in range(int(m.group(2)), int(m.group(3)) + 1)]
    if tok in ("vcc", "exec", "m0"):
        return [tok]
    if tok in ("vcc_lo", "vcc_hi"):
        return ["vcc"]
    return []


class Ins:
    __slots__ = ("text", "op", "kind", "rd", "wr", "tag", "passes", "srcc", "ab", "vm", "lg", "nop", "need", "idx", "auto", "dpp")

    def __init__(self, text, tag=None, need=None, idx=None, auto=None):
        self.text = text
        self.auto = auto
        self.tag = tag
        self.need = need
        self.idx = idx
        t = text.split(";")[0].strip()
        self.dpp = "_dpp" in t
        t = re.sub(r"\s(quad_perm|op_sel|op_sel_hi):\[[^\]]*\]", "", t)
        self.vm = self.lg = None
        self.nop = 1
        self.passes = 0
        self.srcc = []
        self.ab = []
        self.rd = []
        self.wr = []
        if t.endswith(":") or t.startswith(".") or not t:
            self.op = ""
            self.kind = "label"
            self.nop = 0
            return
        parts = t.split(None, 1)
        op = self.op = parts[0]
        rest = parts[1] if len(parts) > 1 else ""
        ops = [o.strip() for o in rest.split(",")]
        mods = ""
        if ops:
            sp = ops[-1].split(None, 1)
            if sp:
                ops[-1] = sp[0]
                mods = sp[1] if len(sp) > 1 else ""
        R = [regs_of(o) for o in ops]
        flat = lambda l: [x for y in l for x in y]
        if op.startswith("v_mfma") or op.startswith("v_smfmac"):
            self.kind = "mfma"
            self.passes = 8 if "32x32" in op else 4
            self.wr = R[0]
            if op.startswith("v_smfmac"):
                self.srcc = R[0]
                self.ab = R[1] + R[2] + R[3]
            else:
                self.srcc = R[3]
                self.ab = R[1] + R[2]
            self.rd = self.ab + self.srcc
        elif op.startswith("ds_read"):
            self.kind = "lds"
            self.wr = R[0]
            self.rd = R[1]
        elif op.startswith("ds_write"):
            self.kind = "lds"
            self.rd = flat(R)
        elif op.startswith("buffer_load") or op.startswith("global_load"):
            self.kind = "vmem"
            if re.search(r"\blds\b", mods):
                self.rd = flat(R) + ["m0"]
            else:
                self.wr = R[0]
                self.rd = flat(R[1:])
        elif op.startswith("buffer_store") or op.startswith("buffer_atomic"):
            self.kind = "vmem"
            self.rd = flat(R)
        elif op == "s_waitcnt":
            self.kind = "wait"
            m = re.search(r"vmcnt\((\d+)\)", t)
            if m:
                self.vm = int(m.group(1))
            m = re.search(r"lgkmcnt\((\d+)\)", t)
            if m:
                self.lg = int(m.group(1))
        elif op == "s_nop":
            self.kind = "salu"
            self.nop = int(ops[0]) + 1
        elif op.startswith("s_load") or op in ("s_memtime", "s_memrealtime"):
            self.kind = "smem"
            self.wr = R[0]
            self.rd = flat(R[1:])
        elif op.startswith("s_cmp") or op.startswith("s_bitcmp") or op.startswith("s_cbranch") or op in ("s_branch", "s_barrier", "s_endpgm", "s_sleep", "s_setprio", "s_set_gpr_idx_off"):
            self.kind = "salu"
            self.rd = flat(R)
            if op in ("s_cbranch_vccnz", "s_cbranch_vccz"):
                self.rd = ["vcc"]
        elif op == "s_set_gpr_idx_on":
            self.kind = "salu"
            self.rd = R[0]
            self.wr = ["m0"]
        elif op.startswith("s_"):
            self.kind = "salu"
            self.wr = R[0]
            self.rd = flat(R[1:])
        elif op.startswith("v_"):
            self.kind = "trans" if op.replace("_e32", "").replace("_e64", "") in TRANS else "valu"
            if op.startswith("v_permlane"):
                self.wr = R[0] + R[1]
                self.rd = R[0] + R[1]
            elif op.startswith("v_dot2c") or op.startswith("v_fmac"):
                self.wr = R[0]
                self.rd = flat(R)
            elif op.startswith("v_add_co") or op.startswith("v_addc_co"):
                self.wr = R[0] + R[1]
                self.rd = flat(R[2:])
            elif op.startswith("v_cndmask") and len(ops) == 4:
                self.wr = R[0]
                self.rd = flat(R[1:])
            else:
                self.wr = R[0]
                self.rd = flat(R[1:])
        else:
            raise ValueError("unknown instruction: " + text)

    def cost(self):
        if self.kind == "trans":
            return 8
        return 4


class Seg:
    def __init__(self, name):
        self.name = name
        self.ins = []

    def __call__(self, text, **kw):
        for l in text.split("\n"):
            l = l.strip()
            if l:
                self.ins.append(Ins(l, **kw))
        return self

    def add(self, i):
        self.ins.append(i)

    def extend(self, l):
        self.ins.extend(l)

    def text(self):
        out = []
        for i in self.ins:
            out.append(i.text if i.kind == "label" else "    " + i.text)
        return "\n".join(out) + "\n"


def check_trace(trace, name="", verbose=False):
    probs = []
    vmq = []
    lgq = []
    pend_vm = {}
    pend_lg = {}
    pos = 0
    last_valu_wr = {}
    last_mfma_wr = {}
    last_srcc_rd = {}
    last_salu_m0 = -100
    last_store_data = {}
    done_tags = set()
    seen_tags = set()
    maxvm = 0
    scc = None
    NOSCC = ("s_mov", "s_cselect", "s_mul_i32", "s_nop", "s_cbranch", "s_branch", "s_barrier", "s_sleep", "s_set_gpr", "s_endpgm", "s_setprio", "s_getreg", "s_getpc", "s_ff1", "s_bitset")

    def P(i, n, msg):
        probs.append(f"[{name}] #{n} '{i.text}': {msg}")

    for n, i in enumerate(trace):
        if i.kind == "label":
            continue
        here = pos
        isvalu = i.kind in ("valu", "trans")
        wr = list(i.wr)
        if i.idx:
            wr = [r[0] + str(int(r[1:]) + o) for r in i.wr for o in i.idx]
        for r in i.rd + wr:
            if r in pend_vm and not (i.kind == "vmem" and r in wr and r not in i.rd):
                P(i, n, f"{r} has vm load pending from '{pend_vm[r].text}'")
                del pend_vm[r]
            if r in pend_lg and not (i.kind in ("lds", "smem") and r in wr and r not in i.rd):
                P(i, n, f"{r} has lgkm load pending from '{pend_lg[r].text}'")
                del pend_lg[r]
        if i.need:
            for t in i.need:
                if t.startswith("lds:"):
                    tg, _, k = t[4:].partition("/")
                    if sum(1 for q in lgq if q.tag == tg) > int(k or 0):
                        P(i, n, f"lds tag {t} still outstanding")
                elif t.startswith("old:"):
                    tg, k = t[4:].split("/")
                    c = sum(1 for q in vmq if q.tag == tg)
                    if c > int(k):
                        P(i, n, f"vm tag {tg}: {c} outstanding > {k}")
                else:
                    if any(q.tag == t for q in vmq):
                        P(i, n, f"vm tag {t} still outstanding")
                    if t not in seen_tags:
                        P(i, n, f"vm tag {t} never issued")

        def dist(d, r):
            return here - d[r][0] if r in d else 1000

        if i.kind == "mfma":
            for r in i.rd:
                if dist(last_valu_wr, r) < 2:
                    P(i, n, f"VALU write {r} -> MFMA read needs 2")
            for r in i.ab:
                if r in last_mfma_wr:
                    need = 8 if last_mfma_wr[r][1].passes == 4 else 12
                    if dist(last_mfma_wr, r) < need:
                        P(i, n, f"MFMA write {r} -> MFMA A/B read needs {need}, has {dist(last_mfma_wr, r)}")
            for r in set(i.srcc + i.wr):
                if r in last_mfma_wr:
                    p = last_mfma_wr[r][1]
                    exact = (p.wr == (i.srcc if r in i.srcc else i.wr)) and p.passes == i.passes
                    if not exact:
                        need = 6 if p.passes == 4 else 10
                        if dist(last_mfma_wr, r) < need:
                            P(i, n, f"MFMA write {r} -> overlapped SrcC/D needs {need}")
        if isvalu or i.kind in ("vmem", "lds"):
            for r in i.rd + wr:
                if r in last_mfma_wr:
                    need = 8 if last_mfma_wr[r][1].passes == 4 else 12
                    if dist(last_mfma_wr, r) < need:
                        P(i, n, f"MFMA write {r} -> access needs {need}, has {dist(last_mfma_wr, r)}")
        if isvalu:
            for r in wr:
                if r in last_srcc_rd:
                    need = 3 if last_srcc_rd[r][1].passes == 4 else 7
                    if dist(last_srcc_rd, r) < need:
                        P(i, n, f"MFMA SrcC read {r} -> VALU write needs {need}")
                if dist(last_store_data, r) < 2:
                    P(i, n, f"store data {r} -> VALU write needs 2")
            for r in i.rd:
                if r in last_valu_wr:
                    p = last_valu_wr[r][1]
                    d = dist(last_valu_wr, r)
                    if p.kind == "trans" and i.kind != "trans" and d < 1:
                        P(i, n, f"trans write {r} -> VALU read needs 1")
                    if i.dpp and d < 2:
                        P(i, n, f"VALU write {r} -> DPP needs 2")
                    if i.op.startswith("v_permlane") and d < 2:
                        P(i, n, f"VALU write {r} -> permlane needs 2")
                    if (i.op.startswith("v_readfirstlane") or i.op.startswith("v_readlane")) and d < 1:
                        P(i, n, f"VALU write {r} -> readlane needs 1")
                    if (r[0] == "s" or r == "vcc") and d < 2:
                        P(i, n, f"VALU write {r} -> VALU const read needs 2")
                    if p.op.startswith("v_dot") and d < 3:
                        same_c = p.op == i.op and r in i.wr
                        if not same_c:
                            P(i, n, f"dot write {r} -> read needs 3")
            for r in wr:
                if r in last_valu_wr and last_valu_wr[r][1].op.startswith("v_dot") and last_valu_wr[r][1].op != i.op and dist(last_valu_wr, r) < 3:
                    P(i, n, f"dot write {r} -> write needs 3")
        if i.kind in ("lds", "vmem") and wr:
            for r in wr:
                if dist(last_store_data, r) < 1:
                    P(i, n, f"store data {r} -> write needs 1")
        if i.kind == "vmem":
            for r in i.rd:
                if r[0] == "s" and dist(last_valu_wr, r) < 5:
                    P(i, n, f"VALU write {r} -> VMEM read needs 5")
            if "m0" in i.rd and here - last_salu_m0 < 1:
                P(i, n, "m0 write -> DMA needs 1")
        if i.kind == "salu":
            for r in i.rd:
                if (r[0] == "s" or r == "vcc") and dist(last_valu_wr, r) < 1:
                    P(i, n, f"VALU write {r} -> SALU read (pad 1+)")

        if i.op.startswith("s_cselect") or i.op.startswith("s_cbranch_scc"):
            if scc is None or not (scc.op.startswith("s_cmp") or scc.op.startswith("s_bitcmp") or scc.op in ("s_and_b64", "s_or_b64", "s_andn2_b32") or scc.op == "s_and_b32" and i.op.startswith("s_cbranch")):
                P(i, n, f"SCC last written by '{scc.text if scc else None}'")
        if i.op == "s_addc_u32" and (scc is None or scc.op != "s_add_u32"):
            P(i, n, "addc without add")
        if i.kind == "salu" and not i.op.startswith(NOSCC):
            scc = i
        pos += i.nop
        if i.kind == "wait":
            if i.vm is not None:
                while len(vmq) > i.vm:
                    q = vmq.pop(0)
                    for r in q.wr:
                        if pend_vm.get(r) is q:
                            del pend_vm[r]
            if i.lg is not None:
                if any(q.kind == "smem" for q in lgq) and i.lg != 0:
                    P(i, n, "counted lgkmcnt with SMEM outstanding")
                while len(lgq) > i.lg:
                    q = lgq.pop(0)
                    for r in q.wr:
                        if pend_lg.get(r) is q:
                            del pend_lg[r]
        elif i.kind == "vmem":
            vmq.append(i)
            maxvm = max(maxvm, len(vmq))
            if len(vmq) > 63:
                P(i, n, "more than 63 vm ops outstanding")
            if i.tag:
                seen_tags.add(i.tag)
            for r in i.wr:
                pend_vm[r] = i
            if i.op.startswith("buffer_store_dwordx4") or i.op.startswith("buffer_store_dwordx3"):
                for r in regs_of(i.text.split(None, 1)[1].split(",")[0]):
                    last_store_data[r] = (pos, i)
        elif i.kind in ("lds", "smem"):
            lgq.append(i)
            for r in i.wr:
                pend_lg[r] = i
        if isvalu:
            for r in wr:
                last_valu_wr[r] = (pos, i)
                last_mfma_wr.pop(r, None)
        elif i.kind == "mfma":
            for r in i.wr:
                last_mfma_wr[r] = (pos, i)
                last_valu_wr.pop(r, None)
            for r in i.srcc:
                last_srcc_rd[r] = (pos, i)
        elif i.kind == "salu":
            for r in i.wr:
                last_valu_wr.pop(r, None)
            if "m0" in i.wr:
                last_salu_m0 = pos
        else:
            for r in i.wr:
                last_valu_wr.pop(r, None)
                last_mfma_wr.pop(r, None)
    return probs


def est_cycles(ins):
    t = 0
    pipe = 0
    prev = None
    shadow = False
    for i in ins:
        if i.kind == "label":
            continue
        if i.kind == "mfma":
            t = max(t, pipe)
            pipe = t + 4 * i.passes
            c = 12 if i.op.startswith("v_smfmac") else (4 if "1k" in i.op else 8)
            t += c
            shadow = c >= 8
        else:
            if i.kind in ("salu", "wait") and shadow and i.op not in ("s_barrier",) and i.nop == 1:
                pass
            elif i.op == "s_barrier":
                t += 36
            elif i.op == "s_nop":
                t += 4 * i.nop
            else:
                t += i.cost()
                if i.kind in ("lds", "vmem") and prev is not None and prev.kind in ("valu", "trans"):
                    t += 8
                if i.op.startswith("buffer_store_dwordx4"):
                    t += 16
            shadow = False
        prev = i
    return max(t, pipe)


def auto_vm(traces):
    best = {}
    for tr in traces:
        ops = []
        for i in tr:
            if i.kind == "vmem":
                ops.append(i.tag)
            elif i.kind == "wait" and i.auto:
                last = -1
                for k in range(len(ops) - 1, -1, -1):
                    if ops[k] in i.auto:
                        last = k
                        break
                n = min(63, len(ops) - 1 - last) if last >= 0 else 63
                best[id(i)] = (i, min(n, best.get(id(i), (i, 63))[1]))
    for i, n in best.values():
        i.vm = n
        i.text = re.sub(r"vmcnt\(\d+\)", f"vmcnt({n})", i.text)


import subprocess

_PROMOTE = ("v_mul_f32", "v_add_f32", "v_exp_f32", "v_rcp_f32", "v_mov_b32", "v_lshlrev_b32", "v_max_f32", "v_sub_f32", "v_rsq_f32", "v_min_f32",
            "v_add_u32", "v_and_b32", "v_lshrrev_b32", "v_xor_b32")


def ins_sizes(ins):
    texts = sorted({i.text for i in ins if i.kind != "label" and "L_" not in i.text})
    r = subprocess.run(["llvm-mc", "-triple=amdgcn-amd-amdhsa", "-mcpu=gfx950", "--show-encoding"],
                       input="\n".join(texts) + "\n", capture_output=True, text=True)
    enc = re.findall(r"encoding: \[([^\]]*)\]", r.stdout)
    assert len(enc) == len(texts), r.stderr[:500]
    size = {t: len(e.split(",")) for t, e in zip(texts, enc)}
    for i in ins:
        if i.kind != "label" and "L_" in i.text:
            size[i.text] = 4 if i.op.startswith("s_") else 8
    return size


def align_pass(segs, names, nopsegs=(), stubs=None, targets=(), nostub=()):
    size = ins_sizes([i for s in segs for i in s.ins])
    off = 0
    paged = False
    nextpage = None
    last_stub = -10 ** 9
    want, wfrom = False, 0
    for s in segs:
        out = []
        run = []

        def stub():
            nonlocal off, last_stub, run
            lab = Ins(f"L_w{len(stubs)}:")
            br = Ins("s_cbranch_execz L_x")
            stubs.append((s.name, br))
            out.extend([lab, br])
            last_stub = off
            off += 4
            run = run + [br]

        for k, i in enumerate(s.ins):
            if i.kind == "label":
                m = re.match(r"\.p2align (\d+)", i.text)
                if m:
                    a = 1 << int(m.group(1))
                    off = (off + a - 1) // a * a
                    run = []
                    if a == 4096:
                        paged, nextpage = True, off + 4096
                out.append(i)
                if stubs is not None and i.text.rstrip(":") in targets and off - last_stub > 256:
                    want, wfrom = True, off
                continue
            n = size[i.text]
            if stubs is not None and paged:
                if off >= nextpage:
                    if s.name not in nostub:
                        want, wfrom = True, nextpage
                    nextpage += 4096
                if want:
                    prev = next((z for z in reversed(out) if z.kind != "label"), None)
                    shadow = prev is not None and prev.kind == "mfma" and "1k" not in prev.op and i.kind not in ("salu", "wait")
                    if shadow or off + n > wfrom // 64 * 64 + 56:
                        stub()
                        want = False
            if n == 8 and off % 8 and s.name in names:
                c = [x for x in run if x.op in _PROMOTE and not x.idx]
                if c:
                    x = c[-1]
                    y = Ins(x.text.replace(x.op, x.op + "_e64", 1), tag=x.tag)
                    out[max(j for j, z in enumerate(out) if z is x)] = y
                    off += 4
                elif s.name in nopsegs and sum(1 for z in s.ins[k:k + 8] if z.kind != "label" and size[z.text] == 8) == 8:
                    out.append(Ins("s_nop 0"))
                    off += 4
            out.append(i)
            off += n
            run = run + [i] if n == 4 else []
        s.ins = out
```

```python
import math, struct, sys
from asmlib import Ins, Seg, check_trace, est_cycles, auto_vm, align_pass
from sched import Timeline, Item, LAT

NAME = "parallel_sum__grouped_kv_mqa__geglu_ffn__prompt"


def f32(x):
    return "0x%08x" % struct.unpack("<I", struct.pack("<f", x))[0]


LOG2E = 1.4426950408889634
K0 = 2 * LOG2E * math.sqrt(2 / math.pi)
K1 = K0 * 0.044715
ALPHA = K1 ** (1.0 / 3.0)
K0P = K0 / ALPHA
CK = LOG2E / math.sqrt(18.0) / ALPHA ** 2
MOFF = 98.0
OOB = 0x40000000

SLOT = 36864
KVS0, KVS1, KVST = 110592, 131072, 20480
WS_KV, WS_FLAG, WS_HX, WS_OM, WS_PART, WS_STAMP = 0, 0x40000, 0x80000, 0x300000, 0x600000, 0x1C00000
WS_SIZE = 0x2000000
PSTR = 0x120000
DD = 20

sX, sG, sU, sD, sWS, sOUT, sDBG, sQ, sKV, sWO, sPF = 8, 12, 16, 20, 24, 28, 32, 36, 40, 44, 72
sW, sR, sS, sROLE, sE1, sE2 = 76, 77, 78, 79, 80, 81
sM0W, sA, sC0, sC1, sINC, sIT, sHI, sNK, sT0, sT1, sT2, sT3 = 82, 83, 84, 85, 86, 87, 88, 89, 90, 91, 92, 93
sST, sFL, sPFO, sPOL, sSTN, sFLN = 94, 95, 96, 97, 98, 99
pG, pU, sDM, sDG, sINN, sNRN = 48, 50, 56, 60, 68, 69
sMASK = 4
sMK2 = 6


def srd(n):
    return f"s[{n}:{n + 3}]"


vL, vT0, vT1, vT2, vT3 = 1, 2, 3, 4, 5
vL16, vFLG = 6, 7
vRB = 8
vDM, vPF, vPOL, vONE = 24, 25, 26, 27
vTMP = 20
vDN = 28
vGL, vG, vU, vH = 32, 64, 96, 128
vLO, vRAW = 40, 112


def lo_raw(n):
    return (40 + 4 * n, 76 + 4 * n) if n < 9 else (112 + 4 * (n - 9), 148 + 4 * (n - 9))


aXN, aFR, aH0 = 0, 144, 216
vKD = 208


def vr(a, n=4):
    return f"v[{a}:{a + n - 1}]" if n > 1 else f"v{a}"


def ar(a, n=4):
    return f"a[{a}:{a + n - 1}]" if n > 1 else f"a{a}"


def xn(u, k):
    return ar(aXN + 4 * (18 * u + k))


def frag(gam, i):
    return aFR + 36 * (gam % 2) + 4 * i


class Gen:
    def __init__(self, C=1, stamps=False, xpf=True, wpf=True, **kw):
        self.o = kw
        self.late = kw.get('late', 0)
        self.defer = kw.get('defer', 0) if self.late else 0
        self.deferred = []
        self.C = C
        self.stamps = stamps
        self.xpf = xpf
        self.wpf = wpf
        self.segs = []
        self.nstamp = {}

    def seg(self, name):
        s = Seg(name)
        self.segs.append(s)
        return s

    def stamp(self, s, k, last=False):
        if not self.stamps or (self.o.get("minst") and not last):
            return
        s(f"""s_waitcnt lgkmcnt(0)
        s_memtime s[52:53]
        s_memrealtime s[54:55]
        s_waitcnt lgkmcnt(0)
        v_writelane_b32 v0, s52, {2 * k}
        v_writelane_b32 v0, s54, {2 * k + 1}""")

    def stamp_flush(self, s):
        if not self.stamps:
            return
        s(f"""s_lshl_b32 s48, s2, 2
        s_add_u32 s48, s48, s{sW}
        s_lshl_b32 s48, s48, 8
        s_add_u32 s48, s48, {WS_STAMP}
        v_lshlrev_b32 v{vT0}, 2, v{vL}
        buffer_store_dword v0, v{vT0}, {srd(sWS)}, s48 offen""")

    def std_reads(self, gam0, pos0, slot, tag):
        R = []
        n = 0
        for ct in range(4):
            for i in range(9):
                for h in range(2):
                    f = frag(gam0 + ct, i) + 2 * h
                    off = slot * SLOT + 4096 * i + 2048 * h
                    ins = Ins(f"ds_read_b64_tr_b16 {ar(f, 2)}, v{vRB + 4 * (off // 65536) + ct} offset:{off % 65536}", tag=tag)
                    g0 = pos0 + 18 * ct
                    R.append(Item("r", ins, pos0 - DD + n, earliest=g0 - 27 + i, deadline=g0 + i - LAT - 1))
                    n += 1
        return R

    def std_mfmas(self, tl, gam0, pos0, acc, bfun, zero):
        for ct in range(4):
            for u in range(2):
                for i in range(9):
                    c = vr(acc + 4 * (2 * ct + u))
                    cin = "0" if (zero and i == 0) else c
                    tl.m[pos0 + 18 * ct + 9 * u + i] = Ins(f"v_mfma_f32_16x16x32_bf16 {c}, {ar(frag(gam0 + ct, i))}, {bfun(u, i)}, {cin}")

    def barrier(self, tl, p, vmtags, ldstag):
        g = tl.gap(p)
        g.shadow.append(Ins("s_waitcnt vmcnt(63) lgkmcnt(6)", auto=vmtags))
        g.bar.append(Ins("s_barrier", need=list(vmtags) + [f"lds:{ldstag}/6"]))

    def dmas(self, tl, stage, voff, first, inc, tag, srdn=None, p0=None, step=8):
        for i in range(9):
            p = (72 * (stage - 3) + 7 if p0 is None else p0) + step * i
            m0 = f"s_add_u32 m0, s{sM0W}, {(stage % 4) * SLOT + 4096 * i}"
            if srdn is not None:
                sh = [m0, first[0] if (i == 0 and first) else f"s_add_u32 s{sA}, s{sA}, {inc}"]
                op = f"buffer_load_dwordx4 v{voff}, {srd(srdn)}, s{sA} offen lds"
            else:
                sh = [m0] + (first if (i == 0 and first) else [f"s_add_u32 s{sDM}, s{sDM}, {inc}", f"s_addc_u32 s{sDM + 1}, s{sDM + 1}, 0"])
                op = f"buffer_load_dwordx4 v{voff}, {srd(sDM)}, 0 offen lds"
            for k, t in enumerate(sh):
                tl.gap(p - len(sh) + 1 + k).shadow.append(Ins(t))
            tl.gap(p).mem.append(Ins(op, tag=tag))

    def first_dmas(self, tl, p0):
        self.dmas(tl, 1, vDM, None, f"s{sINC}", "st1", p0=p0, step=4)
        self.dmas(tl, 2, vDM, [f"s_add_u32 s{sDM}, s{sU}, s{sC0}", f"s_addc_u32 s{sDM + 1}, s{sU + 1}, 0"], f"s{sINC}", "st2", p0=p0 + 36, step=4)
        self.dmas(tl, 3, vDM, None, f"s{sINC}", "st3", p0=p0 + (73 if p0 > 0 else 75), step=(4 if p0 > 0 else 5))

    def shadows(self, tl, p, seq):
        for t in seq:
            tt = t if isinstance(t, tuple) else (t,)
            while any(tl.gap(p + k).shadow for k in range(len(tt))):
                p += 1
            for x in tt:
                tl.gap(p).shadow.append(Ins(x))
                p += 1
        return p

    def gelu_items(self, base, t0, t1, idx, hreg):
        raw = []
        for j in range(8):
            rel = base + 72 + 9 * j + 8 + 4
            dl = base + 288 + 9 * j - 1
            g, t = vG + 4 * j, vGL + 4 * j
            for e in range(4):
                raw.append(("v", [Ins(f"v_fma_f32 v{t + e}, -v{g + e}, v{g + e}, s{sNK}")], rel, dl))
            for e in range(4):
                raw.append(("v", [Ins(f"v_mul_f32 v{t + e}, v{t + e}, v{g + e}")], rel, dl))
            for e in range(4):
                raw.append(("v", [Ins(f"v_exp_f32 v{t + e}, v{t + e}")], rel, dl))
            for e in range(4):
                raw.append(("v", [Ins(f"v_add_f32 v{t + e}, 1.0, v{t + e}")], rel, dl))
            for e in range(4):
                raw.append(("v", [Ins(f"v_rcp_f32 v{t + e}, v{t + e}")], rel, dl))
            for e in range(4):
                raw.append(("v", [Ins(f"v_mul_f32 v{t + e}, v{t + e}, v{g + e}")], rel, dl))
        for j in (0, 2, 4, 6, 1, 3, 5, 7):
            ct, u = j // 2, j % 2
            rel = base + 216 + 9 * j + 8 + 4
            dl = base + 288 + 144 + 9 * j - 1
            t, uu = vGL + 4 * j, vU + 4 * j
            h = hreg + 8 * (ct // 2) + 4 * u + 2 * (ct % 2)
            for e in range(4):
                raw.append(("v", [Ins(f"v_mul_f32 v{t + e}, v{t + e}, v{uu + e}")], rel, dl))
            if idx:
                offs = [16 * k for k in range(8)]
                raw.append(("x", [Ins(f"v_cvt_pk_bf16_f32 v{h + e}, v{t + 2 * e}, v{t + 2 * e + 1}", idx=offs) for e in range(2)], rel, dl))
            else:
                for e in range(2):
                    raw.append(("v", [Ins(f"v_cvt_pk_bf16_f32 v{h + e}, v{t + 2 * e}, v{t + 2 * e + 1}")], rel, dl))
        items = []
        for k, ins, rel, dl in raw:
            if k == "x":
                items.append(Item("x", ins, 0, rel, dl, pre=Ins(f"s_set_gpr_idx_on s{sHI}, 8"), post=Ins("s_set_gpr_idx_off")))
            else:
                items.append(Item("v", ins, 0, rel, dl))
        for c, i in enumerate(items):
            i.target = t0 + (t1 - t0) * c / len(items)
        return items

    def prologue(self):
        C = self.C
        s = self.seg("entry")
        if self.stamps:
            s("s_memtime s[96:97]\ns_memrealtime s[98:99]")
        s(f"""s_cmp_ge_u32 s2, 256
        s_cbranch_scc1 L_end
        s_load_dwordx16 s[48:63], s[0:1], 0
        s_load_dwordx8 s[64:71], s[0:1], 64
        v_lshrrev_b32 v{vT0}, 6, v0
        v_and_b32 v{vL}, 63, v0
        v_readfirstlane_b32 s{sW}, v{vT0}
        s_and_b32 s{sT0}, s2, 7
        s_lshr_b32 s{sT1}, s2, 3
        s_bitcmp1_b32 s2, 3
        s_cselect_b32 s{sROLE}, 1, 0
        s_lshr_b32 s{sT1}, s{sT1}, 1""")
        lc = C.bit_length() - 1
        s(f"""s_and_b32 s{sS}, s{sT0}, {8 // C - 1}
        s_lshl_b32 s{sS}, s{sS}, {lc}
        s_and_b32 s{sT2}, s{sT1}, {C - 1}
        s_add_u32 s{sS}, s{sS}, s{sT2}
        s_lshl_b32 s{sE1}, s{sT2}, 1
        s_add_u32 s{sE1}, s{sE1}, s{sROLE}
        s_lshr_b32 s{sE2}, s{sT1}, {lc}
        s_lshr_b32 s{sR}, s{sT0}, {3 - lc}
        s_lshl_b32 s{sR}, s{sR}, {4 - lc}
        s_add_u32 s{sR}, s{sR}, s{sE2}
        s_lshl_b32 s{sM0W}, s{sW}, 10
        v_lshlrev_b32 v{vL16}, 4, v{vL}
        v_lshrrev_b32 v{vT0}, 3, v{vL}
        v_and_b32 v{vT1}, 7, v{vL}
        s_lshl_b32 s{sT0}, s{sW}, 5
        v_add_u32 v{vT2}, s{sT0}, v{vT0}
        v_mul_u32_u24 v{vT2}, 1152, v{vT2}
        v_lshl_add_u32 v{vTMP}, v{vT1}, 4, v{vT2}
        v_and_b32 v{vT0}, 48, v{vL}
        v_xor_b32 v28, v{vTMP}, v{vT0}
        v_xor_b32 v29, 64, v28
        v_add_u32 v29, 9216, v29
        s_mul_i32 s{sT0}, s{sROLE}, {18432 if self.o.get("swp", 0) else 0}
        s_sub_u32 s{sT1}, 18432, s{sT0}
        v_add_u32 v30, s{sT1}, v28
        v_add_u32 v31, s{sT1}, v29
        v_add_u32 v28, s{sT0}, v28
        v_add_u32 v29, s{sT0}, v29
        s_mul_i32 s{sT0}, s{sR}, 147456
        s_mul_i32 s{sT1}, s{sS}, 1152""")
        if self.o.get("cpf", 0):
            s(f"""s_getpc_b64 s[100:101]
            L_pc:
            s_lshr_b32 s{sT2}, s2, 3
            s_lshl_b32 s{sT2}, s{sT2}, 2
            s_add_u32 s{sT2}, s{sT2}, s{sW}
            v_min_u32 v32, {self.o.get('cln', 5) - 1}, v{vL}
            v_lshl_add_u32 v32, v32, 7, s{sT2}
            v_lshlrev_b32 v32, 7, v32
            v_min_u32 v32, L_end-L_pc, v32
            v_mov_b32 v33, s101
            v_add_co_u32 v32, vcc, s100, v32
            s_nop 1
            v_addc_co_u32 v33, vcc, 0, v33, vcc""")
            if not self.o.get("cpos", 0):
                s(f"global_load_dword v{vT3}, v[32:33], off", tag="pf")
        s("s_waitcnt lgkmcnt(0)")
        self.stamp0(s)

        def mk(n, src, offreg, size, sub=False):
            s = self.segs[-1]
            if offreg is None:
                s(f"s_mov_b32 s{n}, s{src}\ns_and_b32 s{n + 1}, s{src + 1}, 0xffff")
            else:
                s(f"s_add_u32 s{n}, s{src}, s{offreg}\ns_addc_u32 s{n + 1}, s{src + 1}, 0\ns_and_b32 s{n + 1}, s{n + 1}, 0xffff")
            if sub:
                s(f"s_sub_u32 s{n + 2}, {size}, s{offreg}")
            else:
                s(f"s_mov_b32 s{n + 2}, {size}")
            s(f"s_mov_b32 s{n + 3}, 0x20000")

        tlb2 = self.o.get("tlb2", 0)
        assert not tlb2 or self.o.get("pp", 0) >= 256

        def touch():
            s = self.segs[-1]
            d = f"s{sIT}"
            s(f"s_cmp_eq_u32 s{sROLE}, 0\ns_cbranch_scc1 L_tl4\ns_cmp_ge_u32 s{sW}, 2\ns_cbranch_scc1 L_tl2")
            k = self.seg("tl0")
            k(f"""s_cmp_eq_u32 s{sW}, 0
            s_cselect_b32 s6, s60, s62
            s_cselect_b32 s7, s61, s63
            s_cselect_b32 s4, s50, s56
            s_cselect_b32 s5, s51, s57
            s_mov_b32 s{sT2}, 0x200000
            s_mov_b32 s{sT3}, 0x400000
            s_mov_b32 s{sA}, {5308416 - 64}
            s_load_dword {d}, s[6:7], 0
            s_load_dword {d}, s[6:7], s{sT2}
            s_load_dword {d}, s[6:7], s{sT3}
            s_load_dword {d}, s[6:7], s{sA}
            s_load_dword {d}, s[4:5], 0
            s_load_dword {d}, s[4:5], {663552 - 64}
            s_branch L_tl4""")
            k = self.seg("tl2")
            k(f"""L_tl2:
            s_cmp_eq_u32 s{sW}, 3
            s_cbranch_scc1 L_tl3
            s_mul_i32 s{sT2}, s{sS}, 663552
            s_add_u32 s{sT3}, s{sT2}, {663552 - 64}
            s_load_dword {d}, s[52:53], 0
            s_load_dword {d}, s[54:55], 0
            s_load_dword {d}, s[64:65], s{sT2}
            s_load_dword {d}, s[64:65], s{sT3}
            s_load_dword {d}, s[66:67], s{sT0}
            s_branch L_tl4""")
            k = self.seg("tl3")
            k(f"""L_tl3:
            s_mov_b32 s{sT2}, {WS_HX + 0x200000}
            s_mov_b32 s{sT3}, {WS_OM + 0x240000}
            s_mul_i32 s{sA}, s{sR}, {PSTR + self.o.get('pp', 0)}
            s_add_u32 s{sA}, s{sA}, {WS_PART - 128}
            s_load_dword {d}, s[70:71], {WS_FLAG - 128}
            s_load_dword {d}, s[70:71], s{sT2}
            s_load_dword {d}, s[70:71], s{sT3}
            s_load_dword {d}, s[70:71], s{sA}
            s_add_u32 s{sA}, s{sA}, {8 * 147456 + 128}
            s_load_dword {d}, s[70:71], s{sA}""")
            k = self.seg("entry1")
            k("L_tl4:")
            return k

        if tlb2 == 1:
            s = touch()
        mk(sX, 48, sT0, 147456)
        vXO = 28
        xl = []
        for u in range(2):
            for c in range(9):
                for r2 in range(2):
                    rg = 2 * u + r2
                    xl.append([Ins(f"s_add_u32 m0, s{sM0W}, {rg * SLOT + 4096 * c - 128 * c}"),
                               Ins(f"buffer_load_dwordx4 v{vXO + rg}, {srd(sX)}, 0 offen offset:{128 * c} lds", tag=f"x{9 * u + c}")])
        NUP = self.o.get("nup", 12)
        xpos = self.o.get("xpos", 0)
        early = self.o.get("early", 0)

        def xpref():
            per = 144 // C
            n = (per + 63) // 64
            lanes = per // n
            s(f"""s_lshl_b32 s{sT2}, s{sE1}, 2
            s_add_u32 s{sT2}, s{sT2}, s{sW}
            s_mul_i32 s{sT2}, s{sT2}, {per * 128}
            v_min_u32 v{vT2}, {lanes - 1}, v{vL}
            v_lshlrev_b32 v{vT2}, 7, v{vT2}""")
            for i in range(n):
                s(f"buffer_load_dword v{vT3}, v{vT2}, {srd(sX)}, s{sT2} offen", tag="pf")
                if i + 1 < n:
                    s(f"s_add_u32 s{sT2}, s{sT2}, {lanes * 128}")

        def xfirst(a, b):
            s = self.segs[-1]
            for q in xl[a:b]:
                s.add(q[0])
                if len(q) > 1:
                    s("s_nop 0")
                    s.add(q[1])

        if self.o.get("cpos", 0):
            xl.insert(self.o["cpos"], [Ins(f"global_load_dword v{vT3}, v[32:33], off", tag="pf")])
        xsplit = self.o.get("xsplit", 0)
        if xsplit:
            n = 72 // C
            s(f"""s_mul_i32 s{sT2}, s{sE1}, {n * 128}
            s_mul_i32 s{sT3}, s{sW}, 36864
            s_add_u32 s{sT2}, s{sT2}, s{sT3}
            v_min_u32 v32, {n - 1}, v{vL}
            v_lshl_add_u32 v32, v32, 7, s{sT2}
            v_add_u32 v207, 18432, v32""")
            s(f"buffer_load_dword v{vT3}, v32, {srd(sX)}, 0 offen", tag="pf")
            xl.insert(xsplit, [Ins(f"buffer_load_dword v{vT3}, v207, {srd(sX)}, 0 offen", tag="pf")])
        xfirst(0, min(xpos, NUP))
        if self.xpf:
            xpref()
        if not early:
            xfirst(min(xpos, NUP), NUP)
        if tlb2 == 2:
            s = touch()
        if self.stamps and not self.o.get("minst") and not tlb2:
            s("s_memtime s[96:97]\ns_waitcnt lgkmcnt(0)\nv_writelane_b32 v0, s96, 52")
        tlb = self.o.get("tlb", 0)
        if tlb:
            step = 5308416 // tlb // 4 // 64 * 64
            s(f"s_mul_i32 s{sA}, s{sW}, {step}")
            for i in range(tlb):
                s(f"s_load_dword s100, s[60:61], s{sA}\ns_load_dword s100, s[62:63], s{sA}\ns_add_u32 s{sA}, s{sA}, {4 * step}")
            s("s_load_dword s100, s[50:51], 0\ns_load_dword s100, s[52:53], 0\ns_load_dword s100, s[54:55], 0")
        mk(sG, 60, sT1, 5308416, sub=True)
        mk(sU, 62, sT1, 5308416, sub=True)
        s(f"""s_bitcmp1_b32 s{sS}, 1
        s_cselect_b32 s{sKV}, s54, s52
        s_cselect_b32 s{sKV + 1}, s55, s53
        s_and_b32 s{sKV + 1}, s{sKV + 1}, 0xffff
        s_mov_b32 s{sKV + 2}, 20736
        s_mov_b32 s{sKV + 3}, 0x20000
        s_cmp_ge_u32 s{sW}, 2
        s_cselect_b32 s{sPF}, s{sU}, s{sG}
        s_cselect_b32 s{sPF + 1}, s{sU + 1}, s{sG + 1}
        s_mov_b32 s{sPF + 2}, s{sG + 2}
        s_mov_b32 s{sPF + 3}, 0x20000
        s_cmp_eq_u32 s{sROLE}, 0
        s_cselect_b32 s{sC0}, 128, 0""")
        npf = 1 if C <= 2 else 2
        self.npf = npf
        lanes = 18 * C // npf
        self.pfstep = lanes * (32 // C)
        s(f"""s_and_b32 s{sT0}, s{sW}, 1
        s_lshl_b32 s{sT1}, s{sE2}, 1
        s_add_u32 s{sT0}, s{sT0}, s{sT1}
        v_lshlrev_b32 v{vT0}, {5 - lc}, v{vL}
        v_add_u32 v{vT0}, s{sT0}, v{vT0}
        v_mul_u32_u24 v{vPF}, 9216, v{vT0}
        v_mul_u32_u24 v{vPOL}, 1152, v{vT0}
        v_mov_b32 v{vT1}, {OOB}
        v_cmp_gt_u32 vcc, {lanes}, v{vL}
        s_nop 1
        v_cndmask_b32 v{vPF}, v{vT1}, v{vPF}, vcc
        v_cndmask_b32 v{vPOL}, v{vT1}, v{vPOL}, vcc""")
        spf = self.o.get("spf", 0)
        nsb = self.o.get("nsb", 3) if spf else 0

        def sbatch(b):
            s = self.segs[-1]
            if b >= nsb:
                return
            s(f"""s_lshl_b32 s{sT0}, s{sE2}, 2
            s_add_u32 s{sT0}, s{sT0}, s{sW}
            s_mul_i32 s{sT0}, s{sT0}, {spf}
            s_add_u32 s{sT0}, s{sT0}, {b * spf * 64 // C}
            s_cmp_ge_u32 s{sT0}, {576 - spf + 1}
            s_cselect_b32 s100, s{sU}, s{sG}
            s_cselect_b32 s101, s{sU + 1}, s{sG + 1}
            s_cselect_b32 s{sT1}, {576 // spf * spf}, 0
            s_sub_u32 s{sT0}, s{sT0}, s{sT1}
            s_min_u32 s{sT0}, s{sT0}, {576 - spf}
            s_mul_i32 s{sT0}, s{sT0}, 9216
            s_add_u32 s{sT0}, s{sT0}, s{sC0}
            s_add_u32 s100, s100, s{sT0}
            s_addc_u32 s101, s101, 0""")
            for j in range(spf):
                s(f"s_load_dword s{sIT}, s[100:101], {9216 * j}")

        sbatch(0)
        n2 = self.o.get("nup2", NUP)
        kvpf = f"""s_and_b32 s{sT2}, s{sE2}, 3
        s_lshl_b32 s{sT2}, s{sT2}, 2
        s_add_u32 s{sT2}, s{sT2}, s{sW}
        s_mul_i32 s{sT2}, s{sT2}, {11 * 128}
        s_cmp_eq_u32 s{sROLE}, {1 if early == 2 else 0}
        s_cselect_b32 s{sT2}, {OOB}, s{sT2}
        v_min_u32 v{vT2}, 10, v{vL}
        v_lshlrev_b32 v{vT2}, 7, v{vT2}"""
        if early:
            s(kvpf)
            if early >= 2:
                s("s_cbranch_scc1 L_nopf")
                s = self.seg("pfe")
            s(f"buffer_load_dword v{vT3}, v{vT2}, {srd(sKV)}, s{sT2} offen", tag="pf")
            for i in range(npf):
                s(f"s_add_u32 s{sT0}, s{sC0}, {i * self.pfstep * 9216}")
                s(f"buffer_load_dword v{vT3}, v{vPF}, {srd(sPF)}, s{sT0} offen", tag="pf")
                if early >= 2:
                    s(f"s_mov_b32 s{sT0}, {(128 if early == 3 else 0) + i * self.pfstep * 9216}")
                    s(f"buffer_load_dword v{vT3}, v{vPF}, {srd(sPF)}, s{sT0} offen", tag="pf")
            if early >= 2:
                s = self.seg("entry2")
                s("L_nopf:")
            xfirst(min(xpos, NUP), NUP)
        s(f"s_mul_i32 s{sT0}, s{sR}, 147456")
        mk(sOUT, 66, sT0, 147456)
        s(f"s_mul_i32 s{sT0}, s{sS}, 663552\ns_mul_i32 s{sT1}, s{sS}, 144")
        mk(sD, 64, sT0, 663552)
        mk(sQ, 50, sT1, 663552, sub=True)
        mk(sWS, 70, None, WS_SIZE)
        mk(sDBG, 68, None, 256)
        mk(sWO, 56, None, 663552)
        s(f"""s_add_u32 s{sT0}, s{sC0}, {8 * 32 * 9216}
        s_add_u32 s{sDM}, s{sG if self.late else sU}, s{sT0}
        s_addc_u32 s{sDM + 1}, s{(sG if self.late else sU) + 1}, 0
        s_mov_b32 s{sDM + 2}, {31 * 9216 + 128}
        s_mov_b32 s{sDM + 3}, 0x20000""")
        s(f"""v_lshrrev_b32 v{vT0}, 2, v{vL}
        v_lshlrev_b32 v{vT0}, 7, v{vT0}
        v_and_b32 v{vT1}, 3, v{vL}
        v_lshl_add_u32 v{vT0}, v{vT1}, 3, v{vT0}
        v_bfe_u32 v{vT1}, v{vL}, 3, 2""")
        for ct in range(4):
            s(f"""v_xor_b32 v{vT2}, {ct}, v{vT1}
            v_lshl_add_u32 v{vRB + ct}, v{vT2}, 5, v{vT0}
            v_add_u32 v{vRB + 4 + ct}, 0x10000, v{vRB + ct}
            v_add_u32 v{vRB + 8 + ct}, 0x20000, v{vRB + ct}""")
        s(f"""v_bfe_u32 v{vT0}, v{vL}, 1, 2
        v_lshrrev_b32 v{vT1}, 4, v{vL}
        v_xor_b32 v{vTMP + 2}, v{vT0}, v{vT1}
        v_and_b32 v{vT1}, 1, v{vL}
        v_lshlrev_b32 v{vT1}, 4, v{vT1}
        v_lshl_add_u32 v{vTMP + 1}, v{vTMP + 2}, 5, v{vT1}""")
        vXB = (vFLG, vONE)
        aONE = 252
        s(f"""v_lshrrev_b32 v{vT0}, 5, v{vL}
        v_bfe_u32 v{vT1}, v{vL}, 3, 2
        v_lshl_add_u32 v{vT0}, v{vT0}, 3, v{vT1}
        s_and_b32 s{sT0}, s{sW}, 1
        s_lshl_b32 s{sT0}, s{sT0}, 4
        s_lshr_b32 s{sT1}, s{sW}, 1
        s_lshl_b32 s{sT1}, s{sT1}, 2
        s_add_u32 s{sT0}, s{sT0}, s{sT1}
        v_add_u32 v{vTMP + 3}, s{sT0}, v{vT0}
        v_mul_u32_u24 v{vDM}, 9216, v{vTMP + 3}
        v_add_u32 v{vDM}, v{vDM}, v{vTMP + 1}
        s_mov_b32 s{sNK}, {f32(-K0P)}
        s_mov_b32 s{sMASK}, 0
        s_mov_b32 s{sMASK + 1}, -1
        s_mov_b32 s{sINC}, {32 * 9216}
        v_bfe_u32 v{vT0}, v{vL}, 1, 3
        v_lshrrev_b32 v{vT1}, 4, v{vL}
        v_xor_b32 v{vT0}, v{vT0}, v{vT1}
        v_and_b32 v{vT2}, 7, v{vL}
        v_lshl_add_u32 v{vT0}, v{vT2}, 3, v{vT0}
        v_lshl_add_u32 v{vT0}, v{vT0}, 4, s{sM0W}
        v_bfe_u32 v{vT2}, v{vL}, 3, 1
        v_mul_u32_u24 v{vT2}, {SLOT}, v{vT2}
        v_add_u32 v{vXB[0]}, v{vT0}, v{vT2}
        v_xor_b32 v{vXB[1]}, 64, v{vXB[0]}
        v_and_b32 v{vT0}, 15, v{vL}
        v_lshlrev_b32 v{vT1}, 2, v{vT1}
        v_sub_u32 v{vT0}, v{vT0}, v{vT1}
        v_mov_b32 v{vT1}, 0x3f803f80""")
        for j in range(4):
            s(f"v_cmp_eq_u32 s[{sDG + 2 * j}:{sDG + 2 * j + 1}], {j}, v{vT0}\nv_accvgpr_write_b32 a{aONE + j}, v{vT1}")
        if not early:
            s(kvpf)
        if not tlb2:
            self.stamp(s, 27)
        warm = self.o.get("warm", 0)
        self.warm_jumps = []

        def dispatch(k):
            k("s_mov_b64 exec, 0")
            for w in range(4):
                if w < 3:
                    k(f"s_cmp_eq_u32 s{sW}, {w}")
                self.warm_jumps.append(Ins("s_cbranch_scc1 L_x" if w < 3 else "s_branch L_x"))
                k.add(self.warm_jumps[-1])

        npre = self.o.get("npre", 0)
        if npre:
            s(f"s_cmp_eq_u32 s{sROLE}, 1\ns_cbranch_scc1 L_p1pre")
            self.seg("p0x")
            xfirst(NUP, NUP + npre)
            if warm:
                dispatch(self.segs[-1])
            else:
                self.segs[-1]("s_branch L_ln")
            self.p1pre()
            k = self.segs[-1]
            old, k.ins = k.ins, [Ins("L_p1pre:")]
            step = len(old) // npre
            pos = [step * (j + 1) - 1 for j in range(npre)]
            j = 0
            for n, i in enumerate(old):
                k.add(i)
                nxt = old[n + 1] if n + 1 < len(old) else None
                dead = True
                for y in old[n + 1:]:
                    if y.op.startswith("s_cselect") or y.op.startswith("s_addc"):
                        dead = False
                        break
                    if y.kind == "salu" and not y.op.startswith(("s_mov", "s_mul", "s_nop")):
                        break
                if j < npre and n >= pos[j] and dead:
                    q = xl[NUP + j]
                    k.extend([Ins(q[0].text), Ins("s_nop 0"), Ins(q[1].text, tag=q[1].tag)] if len(q) > 1 else [Ins(q[0].text, tag=q[0].tag)])
                    j += 1
            assert j == npre
            NUP += npre
            n2 = max(n2, NUP)
        else:
            s(f"s_cmp_eq_u32 s{sROLE}, 0\ns_cbranch_scc1 L_ln")
            self.p1pre()
        if warm:
            dispatch(self.segs[-1])
            self.segs[-1](".p2align 12")
        s = self.seg("ln")
        s("L_ln:")
        if warm:
            s("L_wb:\ns_mov_b64 exec, -1")
        xfirst(NUP, n2)
        NUP = n2
        if tlb or spf or tlb2:
            s("s_waitcnt lgkmcnt(0)")
        pf1, pf2 = [], []
        if self.wpf and not early:
            pf1.append([Ins(f"buffer_load_dword v{vT3}, v{vT2}, {srd(sKV)}, s{sT2} offen", tag="pf")])
            for i in range(npf if self.o.get("vpf", 1) else 0):
                pf1.append([Ins(f"s_add_u32 s{sT0}, s{sC0}, {i * self.pfstep * 9216}"),
                            Ins(f"buffer_load_dword v{vT3}, v{vPF}, {srd(sPF)}, s{sT0} offen", tag="pf")])
        if self.wpf and self.o.get("vpf", 1) == 2:
            pf1.append([Ins(f"s_cmp_eq_u32 s{sROLE}, 0"), Ins(f"s_cselect_b32 s{sT0}, 64, {OOB // 4}"), Ins(f"s_lshl_b32 s{sT0}, s{sT0}, 2"),
                        Ins(f"buffer_load_dword v{vT3}, v{vPF}, {srd(sPF)}, s{sT0} offen", tag="pf")])
        if self.wpf and self.o.get("qpf", 1) == 2:
            for i in range(npf):
                pf1.append([Ins(f"s_lshr_b32 s{sT1}, s{sW}, 1"), Ins(f"s_mul_i32 s{sT1}, s{sT1}, 140"), Ins(f"s_add_u32 s{sT1}, s{sT1}, {i * self.pfstep * 1152}"),
                            Ins(f"s_cmp_eq_u32 s{sROLE}, 0"), Ins(f"s_cselect_b32 s{sT1}, {OOB}, s{sT1}"),
                            Ins(f"buffer_load_dword v{vT3}, v{vPOL}, {srd(sQ)}, s{sT1} offen", tag="pf")])
        self.pf2 = lambda col: [x for i in range(npf) for x in (Ins(f"s_mov_b32 s{sT0}, {col + i * self.pfstep * 9216}"),
                                                                 Ins(f"buffer_load_dword v{vT3}, v{vPF}, {srd(sPF)}, s{sT0} offen", tag="pf"))]
        wl = []
        for st in range(3):
            for i in range(9):
                wl.append([Ins(f"s_add_u32 m0, s{sM0W}, {st * SLOT + 4096 * i}"),
                           Ins(f"s_mov_b32 s{sA}, s{sC0}" if (i == 0 and st % 2 == 0) else f"s_add_u32 s{sA}, s{sA}, s{sINC}"),
                           Ins(f"buffer_load_dwordx4 v{vDM}, {srd(sG if st < 2 else sU)}, s{sA} offen lds", tag=f"st{st}", need=[f"lds:xr{st // 2}"])])
        if self.late:
            wl = wl[:9] + pf1[1:]
            pf1 = pf1[:1]
            if self.o.get("kve", 1):
                xl.insert(self.o.get("kpos", 22), pf1.pop())
        pfpos = max(NUP, self.o.get("pfpos", len(xl)))
        g0 = self.o.get("g0", 0)
        w1 = self.o.get("w1", 18)
        wskip = self.o.get("wskip", 0)
        q0 = xl[NUP:pfpos] + (wl[:g0] if pfpos == len(xl) else []) + pf1 + xl[pfpos:]
        xq = self.o.get("xq", 18)
        q0 = q0[:xq] + [None] * (18 - xq) + q0[xq:]
        vSU, vGR, vK = 32, 36, 2

        def xread(u, c, hh):
            return Ins(f"ds_read_b128 {vr(lo_raw(2 * c + hh)[1])}, v{vXB[hh]} offset:{4096 * c}", tag=f"xr{u}", need=[f"x{9 * u + c}"])

        def xwait(u, c):
            return Ins("s_waitcnt vmcnt(63)", auto=[f"x{9 * u + c}"])

        def vmop(s, q, pad):
            s.extend(q[:-1])
            if pad and len(q) == 2 and "m0" in q[0].wr:
                s("s_nop 0")
            s.add(q[-1])

        kve = self.kve = self.late and self.o.get("kve", 1)

        def kvdma(s):
            s(f"s_cmp_eq_u32 s{sROLE}, 0\ns_cbranch_scc1 L_nokv")
            k = self.seg("kvdma")
            for i in range(5):
                dst = (4 * SLOT + 4096 * i if i < 4 else SLOT + 32768) if kve else 3 * SLOT + 4096 * i
                k(f"s_add_u32 m0, s{sM0W}, {dst}")
                k(f"s_mov_b32 s{sT0}, {4608 * i}")
                k(f"buffer_load_dwordx4 v{vKD}, {srd(sKV)}, s{sT0} offen lds", tag="kvimg", need=["lds:xr0" if kve else "lds:xr1"])
            s = self.seg("ln2")
            s("L_nokv:")
            return s

        for u in range(2):
            queue = q0 if u == 0 else [None] * wskip + wl[g0:w1]
            if u == 0:
                for c in range(2):
                    s.add(xwait(0, c))
                    s.extend([xread(0, c, 0), xread(0, c, 1)])
                    if c == 0:
                        self.stamp(s, 10)
            s(f"s_waitcnt lgkmcnt({0 if (u == 1 and nsb > 1) else 2})")
            for c in range(9):
                for hh in range(2):
                    n = 2 * c + hh
                    lo, r = lo_raw(n)
                    s(f"v_mfma_f32_16x16x32_bf16 {vr(vSU)}, {ar(aONE)}, {vr(r)}, {'0' if n == 0 else vr(vSU)}")
                    if hh == 0 and c + 2 < 9:
                        s.add(xwait(u, c + 2))
                        s.add(xread(u, c + 2, 0))
                    if hh == 1 and queue:
                        q = queue.pop(0)
                        if q:
                            vmop(s, q, True)
                    for j in range(4):
                        s(f"v_lshlrev_b32 v{lo + j}, 16, v{r + j}")
                    s(f"v_mfma_f32_16x16x32_bf16 {vr(vGR)}, {vr(r)}, {vr(r)}, {'0' if n == 0 else vr(vGR)}")
                    if hh == 0:
                        q = queue.pop(0) if queue else None
                        if q:
                            s.extend(q[:-1])
                        if c + 2 < 9:
                            s.add(xread(u, c + 2, 1))
                        elif q and len(q) == 2:
                            s("s_nop 0")
                        if q:
                            s.add(q[-1])
                    elif c < 8:
                        s(f"s_waitcnt lgkmcnt({2 if c + 2 < 9 else 0})")
                    for j in range(4):
                        s(f"v_and_b32 v{r + j}, 0xffff0000, v{r + j}")
            self.stamp(s, 11 + 2 * u)
            if u == 0:
                s(f"v_add_u32 v{vXB[0]}, {2 * SLOT}, v{vXB[0]}\nv_add_u32 v{vXB[1]}, {2 * SLOT}, v{vXB[1]}\ns_nop 1")
            else:
                assert not queue
                queue = wl[w1:]
                if not kve:
                    s = kvdma(s)
                s("s_nop 3" if kve else "s_nop 1")
            sbatch(1 + u)
            s(f"v_cndmask_b32 v{vGR}, 0, v{vGR}, s[{sDG}:{sDG + 1}]")
            for j in range(1, 4):
                s(f"v_cndmask_b32 v{vGR}, v{vGR}, v{vGR + j}, s[{sDG + 2 * j}:{sDG + 2 * j + 1}]")
            s(f"""v_mov_b32 v{vGR + 1}, v{vGR}
            v_mul_f32 v{vSU}, {f32(1 / 576)}, v{vSU}
            s_nop 0
            v_permlane16_swap_b32 v{vGR}, v{vGR + 1}
            v_add_f32 v{vGR}, v{vGR}, v{vGR + 1}
            v_mov_b32 v{vGR + 1}, v{vGR}
            v_mul_f32 v{vSU + 1}, v{vSU}, v{vSU}
            s_nop 0
            v_permlane32_swap_b32 v{vGR}, v{vGR + 1}
            v_add_f32 v{vGR}, v{vGR}, v{vGR + 1}
            v_mul_f32 v{vGR}, {f32(1 / 576)}, v{vGR}
            v_sub_f32 v{vGR}, v{vGR}, v{vSU + 1}
            v_max_f32 v{vGR}, 0, v{vGR}
            v_add_f32 v{vGR}, {f32(1e-5)}, v{vGR}
            v_rsq_f32 v{vGR}, v{vGR}
            s_nop 0
            v_mul_f32 v{vK}, {f32(ALPHA)}, v{vGR}
            v_mul_f32 v{vK + 1}, v{vK}, -v{vSU}""")
            for n in range(18):
                lo, r = lo_raw(n)
                k = vr(vK, 2)
                lim = 16 if u == 0 else 18
                while queue and (n % 2 == 0 or len(queue) > (lim - n) // 2):
                    vmop(s, queue.pop(0), True)
                    if len(queue) < lim - n:
                        break
                if u == 0 and kve and n == self.o.get("kvn", 12):
                    s = kvdma(s)
                if u == 0 and n == 16:
                    assert not queue
                    s.add(xwait(1, 1))
                    s.extend([xread(1, c, hh) for c in range(2) for hh in range(2)])
                for j in (0, 2):
                    s(f"v_pk_fma_f32 {vr(lo + j, 2)}, {vr(lo + j, 2)}, {k}, {k} op_sel:[0,0,1] op_sel_hi:[1,0,1]")
                    s(f"v_pk_fma_f32 {vr(r + j, 2)}, {vr(r + j, 2)}, {k}, {k} op_sel:[0,0,1] op_sel_hi:[1,0,1]")
                fin = [f"v_cvt_pk_bf16_f32 v{lo + j}, v{lo + j}, v{r + j}" for j in range(4)]
                fin += [f"v_accvgpr_write_b32 a{aXN + 4 * (18 * u + n) + j}, v{lo + j}" for j in range(4)]
                if u == 1 and n >= 18 - self.defer:
                    self.deferred.append((n, fin))
                else:
                    s("\n".join(fin))
            assert not queue
            self.stamp(s, 12 + 2 * u)
        s(f"""v_mov_b32 v{vT1}, {OOB}
        v_cmp_eq_u32 vcc, 0, v{vL}
        v_mov_b32 v{vONE}, 1
        s_nop 0
        v_cndmask_b32 v{vFLG}, v{vT1}, 0, vcc""")
        if nsb > 2:
            s("s_waitcnt lgkmcnt(0)")
        self.stamp(s, 1)
        s(f"""s_cmp_lg_u32 s{sROLE}, 0
        s_cbranch_scc1 L_p1""")

    def stamp0(self, s):
        if not self.stamps:
            return
        s(f"""s_memtime s[58:59]
        s_waitcnt lgkmcnt(0)
        v_writelane_b32 v0, s58, 38
        v_writelane_b32 v0, s96, 0
        v_writelane_b32 v0, s98, 1""")

    def p0(self):
        tl = Timeline()
        xb = lambda h: (lambda u, i: xn(u, 9 * h + i))
        for st, (acc, h) in enumerate(((vG, 0), (vG, 1), (vU, 0), (vU, 1), (vG, 0), (vG, 1))):
            self.std_mfmas(tl, 4 * st, 72 * st, acc, xb(h), h == 0)
            tl.put_reads(self.std_reads(4 * st, 72 * st, st % 4, f"r{st % 4}"))
            if st:
                self.barrier(tl, 72 * st - DD, [f"st{st % 4}"], f"r{(st - 1) % 4}")
        for st in range(3, 9):
            sl = st % 4
            first = [f"s_mov_b32 s{sDM}, s{pG if sl < 2 else pU}", f"s_mov_b32 s{sDM + 1}, s{(pG if sl < 2 else pU) + 1}"] if sl % 2 == 0 else None
            self.dmas(tl, st, vDM, first, f"s{sINC}", f"st{sl}")
        tl.gap(306).mem.append(Ins(f"buffer_load_dword v{vPOL}, off, {srd(sDBG)}, s{sPOL} sc1", tag="poll"))
        e = self.shadows(tl, 360, [f"s_mov_b32 s{sINC}, s{sINN}", f"s_mov_b32 s{sDM + 2}, s{sNRN}"])
        assert e <= 365
        tl.gap(362).valu.append(Ins(f"v_mov_b32 v{vDM}, v{vDN}"))
        self.shadows(tl, 120, [f"s_add_u32 s{sHI}, s{sHI}, 16", f"s_and_b32 s{sHI}, s{sHI}, 127", f"s_add_u32 s{sIT}, s{sIT}, 1",
                               (f"s_add_u32 s{pG}, s{pG}, 128", f"s_addc_u32 s{pG + 1}, s{pG + 1}, 0"),
                               (f"s_cmp_eq_u32 s{sIT}, 6", f"s_cselect_b32 s{sPOL}, s{sT3}, {OOB}")])
        self.shadows(tl, 224, [(f"s_add_u32 s{pU}, s{pU}, 128", f"s_addc_u32 s{pU + 1}, s{pU + 1}, 0")])
        tl.gap(287).shadow.append(Ins(f"s_cmp_lt_u32 s{sIT}, 7"))
        V = self.gelu_items(0, 85, 371, True, vH)
        pk = dict(ahead=12, pack=self.o["pack"], lagmax=4.0) if "pack" in self.o else {}
        nV0 = len(V)
        tl.fill(85, 144, V, **pk)
        nV1 = nV0 - len(V)
        tl.fill(144, 288, V, **pk)
        state = {"V": [i.ins[0].text for i in V]}
        tl.fill(288, 373, V, flush=10 ** 9, **pk)
        for p in range(288, 373):
            tl.g[p - 288] = tl.g[p]
        pre = [(p, m) for p in range(262, 268) for m in tl.gap(p).mem if m.kind == "lds"]
        state["out"] = tl.insert_lgkm_waits(268, 288, pre)
        o144 = tl.insert_lgkm_waits(0, 144, [(p - 288, m) for p, m in state["out"]])
        tl.insert_lgkm_waits(144, 268, o144)
        prew = [m for m in tl.gap(268).mem if m.kind == "lds"]
        prew += [m for p in range(269, 288) for m in tl.gap(p).ins() if m.kind == "lds" or (m.kind == "wait" and m.lg is not None)]
        s = self.seg("p0pre")
        if self.wpf:
            for c in range(self.o.get("npf0", 1)):
                s.extend(self.pf2(256 + 128 * c))
            if self.o.get("qpf", 1) == 3:
                for i in range(self.npf):
                    s(f"s_lshr_b32 s{sT1}, s{sW}, 1\ns_mul_i32 s{sT1}, s{sT1}, 140\ns_add_u32 s{sT1}, s{sT1}, {i * self.pfstep * 1152}")
                    s(f"buffer_load_dword v{vT3}, v{vPOL}, {srd(sQ)}, s{sT1} offen", tag="pf")
        late = self.late
        s(f"""s_add_u32 s{pG}, s{sG}, {384 if late else 256}
        s_addc_u32 s{pG + 1}, s{sG + 1}, 0
        s_add_u32 s{pU}, s{sU}, 256
        s_addc_u32 s{pU + 1}, s{sU + 1}, 0
        s_mov_b32 s{sIT}, {self.o.get("dbgskip", 0) + (1 if late else 0)}
        s_mov_b32 s{sHI}, {0 if late else 112}
        s_mov_b32 s{sPOL}, {OOB}
        s_lshl_b32 s{sT3}, s{sR}, 2
        s_add_u32 s{sT3}, s{sT3}, 128
        s_mov_b32 s{sINN}, s{sINC}
        s_mov_b32 s{sNRN}, s{sDM + 2}
        v_mov_b32 v{vDN}, v{vDM}""")
        s("s_waitcnt vmcnt(63)", auto=["st0"])
        s("s_barrier", need=["st0"])
        if late:
            tp = Timeline()
            for st, (acc, h) in enumerate(((vG, 0), (vG, 1), (vU, 0))):
                self.std_mfmas(tp, 4 * st, 72 * st, acc, xb(h), h == 0)
                tp.put_reads(self.std_reads(4 * st, 72 * st, st, f"r{st}"))
                if st:
                    self.barrier(tp, 72 * st - DD, [f"st{st}"], f"r{st - 1}")
            self.first_dmas(tp, -DD + 2)
            self.dmas(tp, 4, vDM, [f"s_add_u32 s{sDM}, s{sG}, 256", f"s_addc_u32 s{sDM + 1}, s{sG + 1}, 0"], f"s{sINC}", "st0", p0=103, step=5)
            if self.o.get("p2g", 0):
                pf = self.pf2(256)
                tp.gap(self.o["p2g"]).shadow.append(pf[0])
                tp.gap(self.o["p2g"]).mem.append(pf[1])
            V0 = [Item("v", Ins(x), 0, deadline=81 + n - 9 - 2) for n, fin in self.deferred for x in fin]
            for c, it in enumerate(V0):
                it.target = 80.0 * c / len(V0)
            tp.fill(0, 85, V0, flush=10 ** 9)
            V1 = self.gelu_items(0, 85, 371, True, vH)[:nV1]
            tp.fill(85, 144, V1, flush=10 ** 9)
            tp.insert_lgkm_waits(-DD, 144, [])
            s.extend(tp.emit(-DD, 144))
            s(f"s_waitcnt lgkmcnt({min(15, len(o144))})")
            s(".p2align 3")
            a = self.seg("aloop2")
            a("L_amid:")
            a.extend(tl.emit(144, 288))
            if self.stamps and self.o.get("ist"):
                a(f"s_waitcnt lgkmcnt(0)\ns_memtime s[52:53]\ns_mul_i32 s54, s{sIT}, 2\ns_waitcnt lgkmcnt(0)\ns_mov_b32 m0, s54\ns_nop 3\nv_writelane_b32 v29, s52, m0")
            a("s_cbranch_scc0 L_aexit")
            a = self.seg("aloop")
            a("L_aloop:")
            a.extend(tl.emit(0, 144))
            a("s_branch L_amid")
        else:
            s.extend(prew)
            s(".p2align 3")
            a = self.seg("aloop")
            a("L_aloop:")
            a.extend(tl.emit(0, 144))
            a = self.seg("aloop2")
            a.extend(tl.emit(144, 288))
            a("s_cbranch_scc1 L_aloop")
        a2 = self.seg("aexit")
        a2(f"""L_aexit:
        s_cmp_eq_u32 s{sIT}, 7
        s_cbranch_scc0 L_bstart""")
        w = self.seg("aswitch")
        w(f"""v_readfirstlane_b32 s{sT0}, v{vPOL}
        s_mov_b32 s{sT1}, 0
        s_cmp_ge_u32 s{sT0}, 8
        s_cbranch_scc1 L_hready""")
        sp = self.seg("hspin")
        sp(f"""L_hspin:
        buffer_load_dword v{vPOL}, off, {srd(sDBG)}, s{sT3} sc1
        s_add_u32 s{sT1}, s{sT1}, 1
        s_waitcnt vmcnt(0)
        v_readfirstlane_b32 s{sT0}, v{vPOL}
        s_cmp_gt_u32 s{sT1}, 0x100000
        s_cbranch_scc1 L_end
        s_cmp_ge_u32 s{sT0}, 8
        s_cbranch_scc0 L_hspin""")
        w = self.seg("aswitch2")
        w(f"""L_hready:
        s_lshl_b32 s{sT0}, s{sR}, 3
        s_add_u32 s{sT0}, s{sT0}, s{sS}
        s_lshl_b32 s{sT1}, s{sT0}, 2
        s_add_u32 s{sT1}, s{sT1}, s{sW}
        s_lshl_b32 s{sT1}, s{sT1}, 12
        s_add_u32 s{sT1}, s{sT1}, {WS_HX}""")
        rest = f"""s_mov_b32 s{sINN}, {32 * 1152}
        s_mov_b32 s{sNRN}, {31 * 1152 + 128}
        s_lshl_b32 s{sC0}, s{sS}, 7
        s_add_u32 s{pG}, s{sD}, s{sC0}
        s_addc_u32 s{pG + 1}, s{sD + 1}, 0
        s_add_u32 s{sC0}, s{sC0}, 128
        s_and_b32 s{sC0}, s{sC0}, 1023
        s_add_u32 s{pU}, s{sD}, s{sC0}
        s_addc_u32 s{pU + 1}, s{sD + 1}, 0
        v_lshrrev_b32 v{vT0}, 3, v{vL}
        s_lshl_b32 s{sC1}, s{sW}, 3
        v_add_u32 v{vT0}, s{sC1}, v{vT0}
        v_mul_u32_u24 v{vT0}, 1152, v{vT0}
        v_add_u32 v{vDN}, v{vT0}, v{vTMP + 1}
        v_lshlrev_b32 v{vT0}, 9, v{vL}
        v_mov_b32 v{vT1}, {OOB}
        v_cmp_gt_u32 vcc, 8, v{vL}
        v_lshlrev_b32 v{vT2}, 3, v{vL}
        s_mul_i32 s{sT2}, s{sR}, {PSTR + self.o.get('pp', 0)}
        v_cndmask_b32 v{vT0}, v{vT1}, v{vT0}, vcc
        s_lshl_b32 s{sC1}, s{sW}, 12
        s_add_u32 s{sT2}, s{sT2}, s{sC1}
        s_add_u32 s{sT2}, s{sT2}, {WS_PART}
        s_lshl_b32 s{sSTN}, s{sS}, 9
        s_add_u32 s{sSTN}, s{sT2}, s{sSTN}
        s_mul_i32 s{sC1}, s{sS}, {9 * 16384}
        s_add_u32 s{sT2}, s{sT2}, s{sC1}
        s_lshl_b32 s{sT3}, s{sR}, 12
        s_lshl_b32 s{sC1}, s{sW}, 7
        s_add_u32 s{sT3}, s{sT3}, s{sC1}
        s_lshl_b32 s{sC1}, s{sS}, 2
        s_add_u32 s{sT3}, s{sT3}, s{sC1}
        s_add_u32 s{sT3}, s{sT3}, {WS_FLAG + 32}""".split("\n")
        for k in range(4):
            w(f"buffer_load_dwordx4 {ar(aH0 + 4 * k)}, v{vL16}, {srd(sWS)}, s{sT1} offen offset:{1024 * k} sc1", tag="h0")
            w("\n".join(rest[11 * k:11 * k + 11]))
        w("s_branch L_aloop")

        def hb(h):
            def f(u, i):
                k = 9 * h + i
                c, a_ = k // 2, k % 2
                if c == 0:
                    return ar(aH0 + 8 * a_ + 4 * u)
                return vr(vH + 16 * (c - 1) + 8 * a_ + 4 * u)
            return f

        def outv(base, tag):
            V = []
            for j in range(8):
                ct, u = j // 2, j % 2
                rel = base + 72 + 9 * j + 8 + 8
                dl = base + 144 + 9 * j - 1
                p = vU + 8 * (ct // 2) + 4 * u + 2 * (ct % 2)
                for e in range(2):
                    V.append(Item("v", Ins(f"v_cvt_pk_bf16_f32 v{p + e}, v{vG + 4 * j + 2 * e}, v{vG + 4 * j + 2 * e + 1}"), rel + e, rel, dl))
                st = lambda k, t: Item("m", Ins(f"buffer_store_dwordx4 {vr(vU + 4 * k)}, v{vL16}, {srd(sWS)}, s{sST} offen offset:{1024 * k} sc1", tag=tag), t + 1, t)
                if self.o.get("stg", 1):
                    if j >= 4:
                        V.append(st(j - 4, rel + (4 if j < 6 else 1)))
                elif ct % 2 == 1:
                    V.append(st(2 * (ct // 2) + u, rel + 1))
            return V

        tb = Timeline()
        fpos = self.o.get("fpos", 124)
        for st in range(8):
            h = st % 2
            self.std_mfmas(tb, 4 * st, 72 * st, vG, hb(h), h == 0)
            tb.put_reads(self.std_reads(4 * st, 72 * st, st % 4, f"r{st % 4}"))
            if st:
                self.barrier(tb, 72 * st - DD, [f"st{st % 4}"], f"r{(st - 1) % 4}")
        for st in range(3, 9):
            first = [f"s_mov_b32 s{sDM + 2}, s{sNRN}", f"s_add_u32 s{sDM}, s{sD}, s{sC0}", f"s_addc_u32 s{sDM + 1}, s{sD + 1}, 0"]
            self.dmas(tb, st, vDM, first if st % 2 == 0 else None, f"s{sINC}" if self.o.get("binc", 1) else 32 * 1152, f"st{st % 4}")
        for step in range(3):
            base = 144 * step
            prev = f"part{(step - 1) % 2}"
            g = tb.gap(base + fpos)
            if g.bar:
                g.shadow[0].auto.append(prev)
            else:
                g.shadow.append(Ins("s_waitcnt vmcnt(63)", auto=[prev]))
            g.mem.append(Ins(f"buffer_store_dword v{vONE}, v{vFLG}, {srd(sWS)}, s{sFL} offen sc1", tag="flag", need=[f"old:{prev}/0"]))
            e = self.shadows(tb, base + 24, [f"s_add_u32 s{sT0}, s{sIT}, s{sS}", f"s_and_b32 s{sT1}, s{sT0}, 7",
                                             f"s_add_u32 s{sT0}, s{sT0}, 2", f"s_and_b32 s{sT0}, s{sT0}, 7",
                                             (f"s_cmp_lt_u32 s{sIT}, 6", f"s_cselect_b32 s{sT0}, s{sT0}, 8"),
                                             f"s_lshl_b32 s{sC0}, s{sT0}, 7",
                                             (f"s_cmp_lt_u32 s{sIT}, 7", f"s_cselect_b32 s{sNRN}, s{sNRN}, 0"),
                                             f"s_lshl_b32 s{sST}, s{sT1}, 14", f"s_add_u32 s{sST}, s{sST}, s{sT2}",
                                             f"s_mov_b32 s{sFL}, s{sFLN}", f"s_lshl_b32 s{sFLN}, s{sT1}, 9",
                                             f"s_add_u32 s{sFLN}, s{sFLN}, s{sT3}", f"s_add_u32 s{sIT}, s{sIT}, 1"])
            assert e < base + min(fpos, 76)
        tb.gap(287).shadow.append(Ins(f"s_cmp_eq_u32 s{sIT}, 8"))
        Vall = self.gelu_items(-288, 0, 1, False, vH + 112)
        nrem = sum(2 if t.startswith("v_cvt") else 1 for t in state["V"])
        V = Vall[len(Vall) - nrem:]
        assert V[0].ins[0].text == state["V"][0], (V[0].ins[0].text, state["V"][0])
        for c, i in enumerate(V):
            i.target = 82.0 * c / len(V)
            if i.ins[0].op.startswith("v_cvt"):
                u = ((int(i.ins[0].wr[0][1:]) - vH) // 4) % 2
                i.deadline = 72 + 7 + 9 * u - 2
        bstate = []
        o = [(p - 288, m) for p, m in state["out"]]
        for step in range(3):
            V += outv(144 * step, f"part{step % 2}")
            tb.fill(144 * step, 144 * step + 144, V)
            o = tb.insert_lgkm_waits(144 * step, 144 * step + 144, o)
            bstate.append(([i.ins[0].text for i in V], len(o)))
            if step == 1:
                nleft, o1 = len(V), list(o)
            for p in range(144 * step + 20, 144 * step + 90):
                assert not any(m.op.startswith("buffer_store_dwordx4") for m in tb.gap(p).mem)
        assert bstate[0][0] == bstate[2][0] and bstate[2][1] <= bstate[0][1], bstate
        te = Timeline()
        for st in (4, 5):
            self.std_mfmas(te, 4 * st, 72 * st, vG, hb(st % 2), st == 4)
            te.put_reads(self.std_reads(4 * st, 72 * st, st % 4, f"r{st % 4}"))
        self.barrier(te, 360 - DD, ["st1"], "r0")
        fpos = self.o.get("fposl", fpos)
        te.gap(288 + fpos).shadow.append(Ins("s_waitcnt vmcnt(63)", auto=["part1"]))
        te.gap(288 + fpos).mem.append(Ins(f"buffer_store_dword v{vONE}, v{vFLG}, {srd(sWS)}, s{sFLN} offen sc1", tag="flag", need=["part1"]))
        te.gap(300).shadow.append(Ins(f"s_add_u32 s{sT3}, s{sT3}, 32"))
        V = outv(144, "part1")[-nleft:]
        for j in range(8):
            ct, u = j // 2, j % 2
            rel = 360 + 9 * j + 8 + (4 if j < 4 else 8)
            te.gap(360 + 9 * j + 7).shadow.append(Ins(f"s_add_u32 s{sA + (j % 2)}, s{sSTN}, {((ct + 4 * u) * 9 + 8) * 16384}"))
            for e in range(2):
                V.append(Item("v", Ins(f"v_cvt_pk_bf16_f32 v{vGL + 2 * j + e}, v{vG + 4 * j + 2 * e}, v{vG + 4 * j + 2 * e + 1}"), rel, rel))
            V.append(Item("m", Ins(f"buffer_store_dwordx2 {vr(vGL + 2 * j, 2)}, v{vT2}, {srd(sWS)}, s{sA + (j % 2)} offen sc1", tag="part0"), rel + 1, rel + 1))
        te.fill(288, 432, V)
        te.insert_lgkm_waits(288, 432, o1)
        s = self.seg("b0")
        s(f"""L_bstart:
        s_mov_b32 s{sIT}, 0
        s_mov_b32 s{sFLN}, {OOB}""")
        self.stamp(s, 2)
        s.extend(tb.emit(0, 144))
        s(".p2align 3")
        bl = self.seg("bloop")
        bl("L_bloop:")
        bl.extend(tb.emit(144, 288))
        bl("s_cbranch_scc1 L_blast")
        bl = self.seg("bloop2")
        bl.extend(tb.emit(288, 432))
        bl("s_branch L_bloop\n.p2align 3")
        e = self.seg("bend")
        e("L_blast:")
        e.extend(te.emit(288, 432))
        e("s_nop 6")
        for it in V:
            e.extend(it.ins)
        self.stamp(e, 3)
        e("s_waitcnt vmcnt(0)")
        e(f"buffer_store_dword v{vONE}, v{vT0}, {srd(sWS)}, s{sT3} offen sc1", need=["part0", "part1"])
        if self.stamps and self.o.get("ist"):
            for k in range(1, 9):
                e(f"v_readlane_b32 s52, v29, {2 * k}\ns_nop 3\nv_writelane_b32 v0, s52, {2 * (19 + k)}")
        self.stamp(e, 4, True)
        self.stamp_flush(e)
        e("s_endpgm")

    def text(self):
        head = open("cdna_kernels/" + NAME + ".s.ref").read()
        lines = head.split("\n")
        top = [l for l in lines if l.startswith(";") and "@launch" not in l and "Override" not in l and "grid=ceil" not in l]
        out = "\n".join(top) + "\n; @launch grid=(256,1,1) block=(256,1,1) lds=163840\n"
        out += """; One launch, 256 workgroups (one per CU), two roles per (128-token block r, split s):
; Generated by my own scheduler scripts (MFMA gap scheduling, counted waits, hazard checks).
"""
        out += f""".amdgcn_target "amdgcn-amd-amdhsa--gfx950"
.text
.globl {NAME}_kernel
.p2align 8
.type {NAME}_kernel,@function
{NAME}_kernel:
"""
        for s in self.segs:
            out += f"; ---- {s.name}\n" + s.text()
        out += f"""L_end:
    s_endpgm
.section .rodata,"a"
.p2align 6
.amdhsa_kernel {NAME}_kernel
  .amdhsa_next_free_vgpr 512
  .amdhsa_next_free_sgpr 102
  .amdhsa_accum_offset 256
  .amdhsa_group_segment_fixed_size 0
  .amdhsa_kernarg_size 96
  .amdhsa_user_sgpr_count 2
  .amdhsa_user_sgpr_kernarg_segment_ptr 1
  .amdhsa_system_sgpr_workgroup_id_x 1
.end_amdhsa_kernel
"""
        return out

    def trace(self, names):
        d = {s.name: s for s in self.segs}
        t = []
        for n in names:
            if n in d:
                t += d[n].ins
            else:
                assert n in ("pfe", "entry2", "p0x", "wo1a", "entry1", "tl0", "tl2", "tl3"), n
        return t
```

```python
from gen import *

vQ1, vQ2 = 96, 112
vS_, vO_, vH1 = 32, 128, 192
aK1, aK2, aV_ = 216, 224, 232
aKV = 216
vKVA, vEX = 192, 32
(vEP, vKR, vINB, vQM, vQX, vRX, vDP, vKA, vK2A, vVA, vIDX, vWM, vWX, vWN, vWNX, vXN, vPD, vOE, vFO, vBA, vXNA, vOA, vRN, vOL,
 vAND, vOR, vZ) = range(209, 236)
vL8, vL16B = 246, 247
vSEL = 236
vXB, vXE = 248, 252
XRES, XRESN = 94208, 151552
sXL, sXN, sPB, sPG, sK2, sK1, sKS, sOM, sOF, sHA, sSK = 48, 49, 50, 51, 68, 69, 70, 71, 0, 1, 3
sRDY, sTODO, sLST, sOM0, sOM1, sRO, sOTH, sTO = 60, 61, 62, 63, 64, 65, 66, 67
sOFA, sGA, sNA, vFO2, vL16U = 67, 100, 101, vRX, vQM
sNEW, sMB = sPG, sPFO
sP7, sB7 = sPOL, sE1
vOP, vOQ = vQM, vQX
MSK = f"s[{sMASK}:{sMASK + 1}]"
MK2 = f"s[{sMK2}:{sMK2 + 1}]"


class Gen1(Gen):
    def spin(self, name, mask, lim="0x100000"):
        s = self.seg(name)
        s(f"""s_mov_b32 s{sT1}, 0
        L_{name}:
        buffer_load_dword v{vPOL}, v{vINB}, {srd(sWS)}, s{sFL} offen sc1
        s_add_u32 s{sT1}, s{sT1}, 1
        s_cmp_gt_u32 s{sT1}, {lim}
        s_cbranch_scc1 L_end
        s_waitcnt vmcnt(0)
        v_cmp_eq_u32 vcc, 0, v{vPOL}
        s_nop 1
        s_and_b64 vcc, vcc, {mask}
        s_cbranch_scc1 L_{name}""")

    def oolspin(self, name, mask):
        self.seg(name + "_a")(f"L_{name}_in:")
        self.spin(name, mask)
        self.seg(name + "_b")(f"s_branch L_{name}_out")

    def p1pre(self):
        s = self.seg("p1pre")
        A, B, Cc, Dd, T, G_, OB = 192, 193, 194, 195, 196, 197, 198
        a, b, c, d = sT0, sT1, sT3, sA
        s(f"""v_and_b32 v{T}, 15, v{vL}
        v_lshrrev_b32 v{G_}, 4, v{vL}
        v_mov_b32 v{OB}, {OOB}
        v_mov_b32 v{vZ}, 0
        v_mov_b32 v{vIDX}, 0xdddddddd""")
        s(f"""v_lshrrev_b32 v{A}, 1, v{vL}
        v_mul_u32_u24 v{B}, 36, v{A}
        v_and_b32 v{Dd}, 1, v{vL}
        v_lshl_add_u32 v{B}, v{Dd}, 4, v{B}
        s_and_b32 s{a}, s{sS}, 1
        s_lshl_b32 s{a}, s{a}, 5
        s_mul_i32 s{b}, s{sW}, 1152
        s_add_u32 s{a}, s{a}, s{b}
        v_add_u32 v{vKD}, s{a}, v{B}
        v_mul_u32_u24 v{A}, 1152, v{A}
        v_lshl_add_u32 v{A}, v{Dd}, 4, v{A}
        v_cndmask_b32 v{vXN}, v{A}, v{OB}, {MSK}
        v_bfe_u32 v{A}, v{vL}, 2, 2
        v_lshl_add_u32 v{A}, v{G_}, 3, v{A}
        v_and_b32 v{B}, 3, v{vL}
        v_lshlrev_b32 v{Cc}, 3, v{B}
        v_lshl_add_u32 v{Cc}, v{A}, 5, v{Cc}
        v_add_u32 v{vKR}, {(4 if self.late and self.o.get('kve', 1) else 3) * SLOT}, v{Cc}
        v_add_u32 v{Cc}, v{Cc}, v{Cc}
        v_add_u32 v{vRX}, {2 * SLOT}, v{Cc}
        v_lshrrev_b32 v{A}, 2, v{vL}
        v_lshlrev_b32 v{Cc}, 5, v{A}
        v_lshl_add_u32 v{Cc}, v{B}, 3, v{Cc}
        v_add_u32 v{vRN}, {2 * SLOT}, v{Cc}
        s_lshl_b32 s{a}, s{sW}, 4
        v_add_u32 v{A}, s{a}, v{A}
        v_mul_u32_u24 v{A}, 1152, v{A}
        v_mul_u32_u24 v{B}, 36, v{B}
        v_add3_u32 v{vQX}, v{A}, v{B}, 32
        v_mul_u32_u24 v{A}, 1152, v{vTMP + 3}
        v_mul_u32_u24 v{B}, 36, v{vTMP + 2}
        v_lshlrev_b32 v{Cc}, 4, v{Dd}
        v_add3_u32 v{vQM}, v{A}, v{B}, v{Cc}
        v_and_b32 v{A}, 7, v{vL}
        v_lshlrev_b32 v{vDP}, 2, v{A}
        v_lshlrev_b32 v{A}, 2, v{vL}
        v_cndmask_b32 v{vINB}, v{A}, v{OB}, {MSK}""")
        s(f"""s_bitcmp1_b32 s{sS}, 1
        s_cselect_b32 s{b}, 8, 9
        s_cselect_b32 s{sKS}, 1.0, {f32(CK)}
        s_and_b32 s{a}, s{sS}, 3
        s_cmp_eq_u32 s{a}, 3
        s_cselect_b32 s{b}, 6, s{b}
        v_lshrrev_b32 v{A}, 5, v{vL}
        v_lshlrev_b32 v{A}, s{b}, v{A}
        v_lshl_add_u32 v{A}, v{T}, 4, v{A}
        s_cmp_eq_u32 s{a}, 1
        s_cselect_b32 s{b}, 3, 1
        v_and_b32 v{B}, s{b}, v{G_}
        v_cmp_eq_u32 vcc, 0, v{B}
        s_cmp_eq_u32 s{a}, 3
        s_cselect_b32 s{b}, 4, 16
        s_cselect_b32 s{c}, 2, 16
        v_cndmask_b32 v{A}, v{OB}, v{A}, vcc
        v_cmp_gt_u32 vcc, s{b}, v{T}
        v_mov_b32 v{B}, 0x3f803f80
        s_lshr_b32 s{b}, s{sR}, 1
        v_cndmask_b32 v{vEP}, v{OB}, v{A}, vcc
        v_cmp_gt_u32 vcc, s{c}, v{T}
        s_lshl_b32 s{d}, s{b}, 2
        s_mul_i32 s{b}, s{b}, {KVST}
        v_cndmask_b32 v{vAND}, 0, -1, vcc
        v_cmp_eq_u32 vcc, s{c}, v{T}
        s_cmp_eq_u32 s{sW}, 0
        s_cselect_b32 s{sPOL}, s{d}, {OOB}
        v_cndmask_b32 v{vOR}, 0, v{B}, vcc
        s_lshl_b32 s{d}, s{sR}, 2
        s_add_u32 s{d}, s{d}, 128
        s_cmp_eq_u32 s{sW}, 0
        s_cselect_b32 s{sHA}, s{d}, {OOB}
        s_and_b32 s{c}, s{sR}, 1
        s_mul_i32 s{sK1}, s{c}, 640
        s_lshl_b32 s{c}, s{c}, 2
        s_add_u32 s{c}, s{c}, s{sW}
        s_lshr_b32 s{d}, s{sS}, 2
        s_xor_b32 s{d}, s{d}, {self.swp}
        s_lshl_b32 s{sK2}, s{c}, 1
        s_add_u32 s{sK2}, s{sK2}, s{d}
        s_mul_i32 s{sK2}, s{sK2}, 640
        s_add_u32 s{sK2}, s{sK2}, 8192
        s_lshl_b32 s{d}, s{d}, 8
        s_add_u32 s{sK1}, s{sK1}, s{d}
        s_lshl_b32 s{c}, s{c}, 10
        s_add_u32 s{c}, s{c}, s{d}
        s_bitcmp1_b32 s{sS}, 1
        s_cselect_b32 s{sK2}, s{sK2}, s{c}
        s_and_b32 s{c}, s{sS}, 1
        s_lshl_b32 s{c}, s{c}, 9
        s_add_u32 s{sK2}, s{sK2}, s{c}
        s_add_u32 s{sK2}, s{sK2}, s{b}
        s_lshl_b32 s{c}, s{sW}, 2
        s_add_u32 s{sK1}, s{sK1}, s{c}
        s_add_u32 s{sK1}, s{sK1}, s{b}
        s_add_u32 s{sK1}, s{sK1}, 18432
        s_cmp_eq_u32 s{a}, 1
        s_cselect_b32 s{sK1}, s{sK1}, {OOB}
        s_cselect_b32 s{sK2}, {OOB}, s{sK2}""")
        s(f"""s_lshl_b32 s{a}, s{sR}, 3
        s_add_u32 s{a}, s{a}, s{sS}
        s_lshl_b32 s{a}, s{a}, 2
        s_add_u32 s{a}, s{a}, s{sW}
        s_lshl_b32 s{sFL}, s{a}, 7
        s_add_u32 s{sFL}, s{sFL}, {WS_FLAG}
        s_lshl_b32 s{sST}, s{a}, 12
        s_add_u32 s{sST}, s{sST}, {WS_HX}
        s_mul_i32 s{a}, s{sS}, 508
        s_sub_u32 s{sOF}, s{sFL}, s{a}
        s_lshl_b32 s{a}, s{sR}, 2
        s_add_u32 s{a}, s{a}, s{sW}
        s_mul_i32 s{sOM}, s{a}, {36864 + self.o.get('op', 0)}
        s_add_u32 s{sOM}, s{sOM}, {WS_OM}
        s_mul_i32 s{sC1}, s{sW}, 5120
        s_lshl_b32 s{a}, s{sW}, 12
        s_add_u32 s{sXL}, s{a}, {XRES}
        s_mul_i32 s{sPB}, s{sR}, {PSTR + self.o.get('pp', 0)}
        s_add_u32 s{sPB}, s{sPB}, s{a}
        s_add_u32 s{sPB}, s{sPB}, {WS_PART}
        s_lshr_b32 s{b}, s{sS}, 2
        s_mul_i32 s{a}, s{sS}, {9 * 16384}
        s_add_u32 s{a}, s{a}, {8 * 16384}
        s_add_u32 s{sFLN}, s{sPB}, s{a}
        s_lshl_b32 s{a}, s{sS}, 14
        s_add_u32 s{sPB}, s{sPB}, s{a}
        s_and_b32 s{c}, s{sS}, 3
        s_lshl_b32 s{c}, s{c}, 5
        s_add_u32 s{c}, s{c}, 1024
        s_lshl_b32 s{a}, s{sW}, 1
        s_add_u32 s{a}, s{a}, s{b}
        s_mul_i32 s{a}, s{a}, 18432
        s_add_u32 s{sXN}, s{a}, s{c}
        s_lshl_b32 s{sPFO}, s{sE2}, 2
        s_add_u32 s{sPFO}, s{sPFO}, s{sW}
        s_mul_i32 s{sPFO}, s{sPFO}, {81 * self.C * 128}
        s_mov_b32 s{sPG}, 640
        s_mov_b32 s{sSK}, 0""")
        s(f"buffer_store_dword v{vZ}, v{vINB}, {srd(sWS)}, s{sFL} offen sc1", tag="kvst")
        self.nd = 1 if self.C <= 2 else 2
        self.dl = -(-81 * self.C // (4 * self.nd))
        s(f"""v_min_u32 v{A}, {self.dl - 1}, v{vL}
        v_lshlrev_b32 v{vPD}, 7, v{A}
        v_add_u32 v{vKA}, {KVS0}, v{vL16}
        v_add_u32 v{A}, {KVS0 + 18432}, v{vL16}
        v_mov_b32 v{B}, {KVS0 + 8192 + 544}
        v_cndmask_b32 v{vK2A}, v{A}, v{B}, {MSK}
        v_and_b32 v{A}, 31, v{vL}
        v_cmp_eq_u32 vcc, 22, v{A}
        v_min_u32 v{B}, 19, v{A}
        v_lshrrev_b32 v{A}, 5, v{vL}
        v_cndmask_b32 v{B}, v{B}, 18, vcc
        v_lshlrev_b32 v{Cc}, 8, v{A}
        v_cmp_lt_u32 vcc, 15, v{B}
        v_lshlrev_b32 v{vVA}, 6, v{A}
        v_add_u32 v{vVA}, 256, v{vVA}
        v_cndmask_b32 v{Cc}, v{Cc}, v{vVA}, vcc
        v_lshl_add_u32 v{Cc}, v{B}, 4, v{Cc}
        v_add_u32 v{vVA}, {KVS0 + 8192}, v{Cc}""")
        s(f"""v_bfe_u32 v{B}, v{vL}, 3, 2
        v_mad_u32_u24 v{Cc}, v{A}, 18, v{B}
        s_lshl_b32 s{a}, s{sW}, 2
        v_add_u32 v{Cc}, s{a}, v{Cc}
        v_mul_u32_u24 v{Cc}, 1152, v{Cc}
        s_lshl_b32 s{d}, s{sS}, 7
        v_add3_u32 v{vWM}, v{Cc}, v{vTMP + 1}, s{d}
        v_lshrrev_b32 v{Cc}, 1, v{B}
        v_lshl_add_u32 v{B}, v{Cc}, 4, v{B}
        v_mul_u32_u24 v{Cc}, 72, v{A}
        s_and_b32 s{a}, s{sW}, 1
        s_mul_i32 s{a}, s{a}, 144
        s_lshr_b32 s{b}, s{sW}, 1
        s_mul_i32 s{b}, s{b}, 36
        s_add_u32 s{a}, s{a}, s{b}
        s_add_u32 s{a}, s{a}, 16
        v_add3_u32 v{Cc}, v{Cc}, v{B}, s{a}
        v_mul_u32_u24 v{Cc}, 1152, v{Cc}
        v_add3_u32 v{vWX}, v{Cc}, v{vTMP + 1}, s{d}""")
        s(f"""v_bfe_u32 v{B}, v{vL}, 1, 2
        v_bfe_u32 v{Cc}, v{vL}, 3, 1
        v_mad_u32_u24 v{Cc}, v{Cc}, 18, v{B}
        v_lshl_add_u32 v{Cc}, v{G_}, 2, v{Cc}
        s_mul_i32 s{a}, s{sW}, 36
        v_add_u32 v{Cc}, s{a}, v{Cc}
        v_mul_u32_u24 v{Cc}, 1152, v{Cc}
        v_lshl_add_u32 v{Cc}, v{Dd}, 4, v{Cc}
        v_add_u32 v{vWN}, s{c}, v{Cc}
        v_lshrrev_b32 v{Cc}, 1, v{B}
        v_lshl_add_u32 v{B}, v{Cc}, 4, v{B}
        v_bfe_u32 v{Cc}, v{vL}, 3, 2
        v_mul_u32_u24 v{Cc}, 72, v{Cc}
        v_add3_u32 v{B}, v{B}, v{Cc}, 16
        v_mad_u32_u24 v{B}, v{A}, 36, v{B}
        s_mul_i32 s{a}, s{sW}, 288
        v_add_u32 v{B}, s{a}, v{B}
        v_mul_u32_u24 v{B}, 1152, v{B}
        v_lshl_add_u32 v{B}, v{Dd}, 4, v{B}
        v_add_u32 v{vWNX}, s{c}, v{B}""")
        if self.o.get("cpf", 0) >= 2:
            s(f"""s_lshr_b32 s{a}, s2, 4
            s_lshl_b32 s{a}, s{a}, 2
            s_add_u32 s{a}, s{a}, s{sW}
            v_min_u32 v{A}, {2 * self.o.get('cln', 5) - 1}, v{vL}
            v_lshl_add_u32 v{A}, v{A}, 6, s{a}
            v_lshlrev_b32 v{A}, 7, v{A}
            v_min_u32 v{A}, L_end-L_pc, v{A}
            v_mov_b32 v{vXE + 1}, s101
            v_add_co_u32 v{vXE}, vcc, s100, v{A}
            s_nop 1
            v_addc_co_u32 v{vXE + 1}, vcc, 0, v{vXE + 1}, vcc""")
        if self.o.get("mvp", 0):
            s = self.lateaddr = Seg("late")
        s(f"""v_lshlrev_b32 v{A}, 2, v{G_}
        v_xor_b32 v{B}, {self.swp}, v{G_}
        v_mul_u32_u24 v{B}, 18432, v{B}
        v_lshl_add_u32 v{B}, v{T}, 4, v{B}
        v_cndmask_b32 v{vOE}, v{B}, v{OB}, {MSK}
        v_lshlrev_b32 v{vL8}, 3, v{vL}
        v_add_u32 v{vL16B}, 4096, v{vL16}
        v_mov_b32 v{vXB}, -1
        v_mov_b32 v{vXB + 1}, -1
        v_mov_b32 v{vXB + 2}, -1
        v_mov_b32 v{vXB + 3}, -1
        v_lshlrev_b32 v{B}, 9, v{vL}
        v_cmp_gt_u32 vcc, 8, v{vL}
        v_lshlrev_b32 v{Cc}, 3, v{G_}
        v_add_u32 v{vOL}, s{sXL}, v{vL16}
        v_cndmask_b32 v{vFO}, v{OB}, v{B}, vcc
        v_lshl_add_u32 v{B}, v{T}, 7, v{Cc}
        v_and_b32 v{Dd}, 7, v{vL}
        v_lshlrev_b32 v{Dd}, 4, v{Dd}
        v_xor_b32 v{B}, v{B}, v{Dd}
        v_add_u32 v{vBA}, s{sXL}, v{B}
        v_xor_b32 v{vTMP + 1}, 32, v{vBA}
        v_xor_b32 v{vTMP + 2}, 64, v{vBA}
        v_xor_b32 v{vTMP + 3}, 96, v{vBA}
        v_lshrrev_b32 v{Dd}, 3, v{vL}
        v_lshlrev_b32 v{Dd}, 4, v{Dd}
        v_xor_b32 v{vTMP}, v{vTMP}, v{Dd}
        v_lshl_add_u32 v{B}, v{T}, 5, v{Cc}
        v_add_u32 v{B}, {XRESN}, v{B}
        v_add_u32 v{vXNA}, s{sM0W}, v{B}
        v_mul_u32_u24 v{B}, 1152, v{T}
        v_add_u32 v{vOA}, v{B}, v{Cc}
        v_sub_u32 v{A}, v{T}, v{A}
        v_and_b32 v{B}, 1, v{A}
        v_lshlrev_b32 v{B}, 4, v{B}
        v_mov_b32 v{Cc}, 0x3f80
        v_lshlrev_b32 v{Cc}, v{B}, v{Cc}
        v_lshrrev_b32 v{A}, 1, v{A}
        v_cmp_eq_u32 vcc, 0, v{A}
        v_mov_b32 v{vSEL}, 0
        v_mov_b32 v{vSEL + 1}, 0
        v_cndmask_b32 v{vSEL + 2}, 0, v{Cc}, vcc
        v_cndmask_b32 v{vSEL + 6}, 0, v{Cc}, vcc
        v_cndmask_b32 v{vSEL + 8}, 0, v{Cc}, vcc
        v_cmp_eq_u32 vcc, 1, v{A}
        v_mov_b32 v{vSEL + 4}, 0
        v_mov_b32 v{vSEL + 5}, 0
        v_cndmask_b32 v{vSEL + 3}, 0, v{Cc}, vcc
        v_cndmask_b32 v{vSEL + 7}, 0, v{Cc}, vcc
        v_cndmask_b32 v{vSEL + 9}, 0, v{Cc}, vcc""")

    def p1(self):
        tl = Timeline()
        xb = lambda h: (lambda u, i: xn(u, 9 * h + i))
        for st, (acc, h) in enumerate(((vG, 0), (vG, 1), (vU, 0), (vU, 1), (vG, 0), (vG, 1))):
            self.std_mfmas(tl, 4 * st, 72 * st, acc, xb(h), h == 0)
            tl.put_reads(self.std_reads(4 * st, 72 * st, st % 4, f"r{st}"))
        R = []
        for h in range(2):
            for u in range(2):
                for i in range(9):
                    c = vr(vEX + 4 * u)
                    tl.m[432 + 18 * h + 9 * u + i] = Ins(f"v_mfma_f32_16x16x32_bf16 {c}, {ar(frag(24 + h, i))}, {xn(u, 9 * h + i)}, {'0' if h == 0 and i == 0 else c}")
            for i in range(9):
                for hh in range(2):
                    ins = Ins(f"ds_read_b64_tr_b16 {ar(frag(24 + h, i) + 2 * hh, 2)}, v{vRX} offset:{2048 * (9 * h + i) + 256 * hh}", tag="r6")
                    g0 = 432 + 18 * h
                    R.append(Item("r", ins, 432 - DD + len(R), earliest=g0 - 27 + i, deadline=g0 + i - LAT - 1))
        tl.put_reads(R)
        arr = self.o.get("kvarr", 2)
        for st in range(1, 7):
            self.barrier(tl, 72 * st - DD, [("st1", "st2", "st3", "q0", "q1", "q2")[st - 1]] + (["kvst"] if st == arr else []), f"r{st - 1}")
        tl.gap(1).bar.append(Ins("s_barrier", need=["lds:kvfr"]))
        tl.gap(72 * arr - DD).mem.append(Ins(f"buffer_atomic_add v{vONE}, v{vFLG}, {srd(sDBG)}, s{sPOL} offen sc1", tag="arr"))
        q0f = [f"s_mov_b32 s{sDM + 2}, {31 * 1152 + 140}", f"s_mov_b32 s{sDM}, s{sQ}", f"s_mov_b32 s{sDM + 1}, s{sQ + 1}"]
        if self.late:
            ls = self.o.get("lstep", 4)
            if self.kve:
                tl.gap(1).mem.append(Ins(f"buffer_load_dwordx4 v{vDM}, {srd(sG)}, s{sA} offen lds", tag="st1"))
            self.dmas(tl, 2, vDM, [f"s_add_u32 s{sDM}, s{sU}, s{sC0}", f"s_addc_u32 s{sDM + 1}, s{sU + 1}, 0"], f"s{sINC}", "st2", p0=5, step=ls)
            self.dmas(tl, 3, vDM, None, f"s{sINC}", "st3", p0=5 + 9 * ls, step=ls)
            if ls == 4:
                self.dmas(tl, 4, vQM, q0f, 32 * 1152, "q0")
            else:
                self.dmas(tl, 4, vQM, q0f, 32 * 1152, "q0", p0=103, step=5)
        else:
            self.dmas(tl, 3, vDM, None, f"s{sINC}", "st3")
            self.dmas(tl, 4, vQM, q0f, 32 * 1152, "q0")
        self.dmas(tl, 5, vQM, None, 32 * 1152, "q1")
        self.dmas(tl, 6, vQX, [f"s_mov_b32 s{sA}, 0"], 64 * 1152, "q2", srdn=sQ)
        if self.wpf and self.o.get("qpf", 1) >= 4:
            assert self.npf == 1
            tl.gap(self.o["qpf"] - 2).mem.append(Ins(f"buffer_load_dword v{vT3}, v{vPOL}, {srd(sQ)}, s{sT1} offen", tag="pf"))
        tl.gap(self.kvpoll).mem.append(Ins(f"buffer_load_dword v{vPOL}, v{vDP}, {srd(sDBG)}, 0 offen sc1", tag="poll"))
        c = self.kvchk
        assert c >= 341
        tl.gap(c).shadow.append(Ins("s_waitcnt vmcnt(63)", auto=["poll"]))
        tl.gap(c).valu += [Ins(f"v_cmp_gt_u32 vcc, 16, v{vPOL}")]
        tl.gap(c + 2).shadow += [Ins("s_cbranch_vccnz L_kvspin"), Ins("L_kvok:")]
        for sg in range(2):
            for i in range(5):
                p = c + 4 + 4 * (5 * sg + i)
                if i in (0, 4):
                    tl.gap(p - 1).shadow.append(Ins(f"s_add_u32 m0, s{sC1}, {KVS0 + KVST * sg + 1024 * i}"))
                    tl.gap(p).shadow.append(Ins(f"s_add_u32 s{sA}, s{sC1}, {KVST * sg + 1024 * i}"))
                tl.gap(p).mem.append(Ins(f"buffer_load_dwordx4 v{vL16}, {srd(sWS)}, s{sA} offen offset:{1024 * (i % 4)} sc1 lds", tag=f"kv{sg}"))
        for opt, col in (("p2p", 256), ("p3", 384), ("p4", 512)):
            p = self.o.get(opt, 1)
            if self.wpf and p > 2:
                pf = self.pf2(col)
                for k in range(0, len(pf), 2):
                    tl.gap(p + 2 * k).shadow.append(pf[k])
                    tl.gap(p + 2 * k).mem.append(pf[k + 1])
        self.shadows(tl, 420, [f"s_mov_b32 s{sIT}, 0", f"s_add_u32 s{sINC}, s{sC1}, {KVST}",
                               (f"s_add_u32 s{sDM}, s{sWS}, s{sINC}", f"s_addc_u32 s{sDM + 1}, s{sWS + 1}, 0"), f"s_mov_b32 s{sDM + 2}, 5120", f"s_and_b32 s{sRO}, s{sS}, {1 if self.o.get('rot', 0) else 0}", f"s_mul_i32 s{sHI}, s{sRO}, {9 * 4096}", f"s_mul_i32 s{sRO}, s{sRO}, 9216",
                               f"s_add_u32 s{sOM0}, s{sOM}, s{sRO}", f"s_sub_u32 s{sOM1}, s{sOM}, s{sRO}",
                               f"s_mov_b32 s{sC0}, 0", f"s_mov_b32 s{sSTN}, 0", f"s_mov_b32 s{sTODO}, 0xff", f"s_mov_b32 s{sOTH}, 0xff", f"s_bitset0_b32 s{sOTH}, s{sS}"] +
                     ([f"s_mov_b32 s{sTO}, 0xff", f"s_and_b32 s{sT2}, s{sS}, 1", f"s_mul_i32 s{sT2}, s{sT2}, 18432", f"s_add_u32 s{sOM1}, s{sOM}, 8192"] if self.o.get("opf", 0) else []) +
                     ([f"s_lshl_b32 s{sOM0}, s{sS}, 11", f"s_add_u32 s{sOM0}, s{sOM0}, s{sOM}", f"s_add_u32 s{sOM1}, s{sOM0}, 18432", f"s_add_u32 s{sOFA}, s{sOF}, 96"] if self.two else []) +
                     ([f"s_add_u32 s{sB7}, s{sS}, 1", f"s_and_b32 s{sB7}, s{sB7}, 7", f"s_bitset0_b32 s{sTODO}, s{sB7}", f"s_mul_i32 s{sP7}, s{sB7}, {9 * 16384}",
                       f"s_add_u32 s{sP7}, s{sP7}, s{sPB}", f"s_add_u32 s{sB7}, s{sB7}, 8"] if self.p7 else []))
        V = []
        t = 2
        for x in ([f"v_mul_f32 v{vKVA + e}, s{sKS}, v{vKVA + e}" for e in range(4)] +
                  [f"v_cvt_pk_bf16_f32 v{vKVA + e}, v{vKVA + 2 * e}, v{vKVA + 2 * e + 1}" for e in range(2)] +
                  [f"v_and_or_b32 v{vKVA + 2 + e}, v{vKVA + e}, v{vAND}, v{vOR}" for e in range(2)] +
                  [f"v_and_or_b32 v{vKVA + e}, v{vKVA + e}, v{vAND}, v{vOR}" for e in range(2)]):
            V.append(Item("v", Ins(x), t, 2))
            t += 0.5
        for e in range(2):
            V.append(Item("v", Ins(f"v_permlane16_swap_b32 v{vKVA + e}, v{vKVA + 2 + e}"), 11 + e, 11 + e))
        t = 13
        for x in (f"buffer_store_dwordx4 {vr(vKVA)}, v{vEP}, {srd(sWS)}, s{sK2} offen sc1", f"buffer_store_dword v{vKVA}, v{vEP}, {srd(sWS)}, s{sK1} offen sc1"):
            V.append(Item("m", Ins(x, tag="kvst"), t))
            t += 1
        if self.o.get("mvp", 0):
            n = len(self.lateaddr.ins)
            for k, i in enumerate(self.lateaddr.ins):
                V.append(Item("v", i, 17 + k * 66.0 / n, 17))
        if not self.o.get("ozm", 0):
            for r in range(64):
                V.append(Item("v", Ins(f"v_mov_b32 v{vO_ + r}, 0"), 16 + r * 68 / 64.0))
        V += self.gelu_items(0, 85, 400, False, vH1)
        z = [vQ2 + 4 * q + j for q in range(4) for j in (1, 2)] + [vQ2 + 4, vQ2 + 12]
        for j in range(8):
            ct, u = j // 2, j % 2
            rel = 360 + 9 * j + 8 + 8
            q = vQ1 + 4 * (2 * u + ct // 2)
            for e in range(2):
                V.append(Item("v", Ins(f"v_cvt_pk_bf16_f32 v{q + 2 * (ct % 2) + e}, v{vG + 4 * j + 2 * e}, v{vG + 4 * j + 2 * e + 1}"), max(rel, 408 + 2 * j) + e, rel))
            if j in (5, 6):
                for r in z[5 * (j - 5):5 * (j - 4)]:
                    V.append(Item("v", Ins(f"v_mov_b32 v{r}, 0"), rel + 2))
        for r in range(8):
            V.append(Item("v", Ins(f"v_accvgpr_write_b32 a{aV_ + 8 + r}, 0"), 441 + r))
        if self.two:
            for x in (f"v_and_b32 v{vT0}, 7, v{vL}", f"v_lshrrev_b32 v{vT1}, 3, v{vL}", f"v_lshlrev_b32 v{vT0}, 9, v{vT0}", f"v_mul_u32_u24 v{vT1}, 96, v{vT1}",
                      f"v_lshrrev_b32 v{vT2}, 4, v{vL}", f"v_lshlrev_b32 v{vT2}, 28, v{vT2}", f"v_add3_u32 v{vFO2}, v{vT0}, v{vT1}, v{vT2}",
                      f"v_add_u32 v{vL16U}, 18432, v{vL16}"):
                V.append(Item("v", Ins(x), 449, 449))
        if self.o.get("opf", 0):
            assert not self.o.get("rot", 0)
            for x in (f"v_lshrrev_b32 v{vOQ}, 4, v{vL}", f"v_lshl_add_u32 v{vOP}, v{vL}, 7, s{sT2}"):
                V.append(Item("v", Ins(x), 449, 449))
        for q in range(4):
            for e in range(2):
                V.append(Item("v", Ins(f"v_permlane16_swap_b32 v{vQ1 + 4 * q + e}, v{vQ1 + 4 * q + 2 + e}"), 449 + q, 446))
        if self.stamps and self.o.get("gst"):
            self.gst = [(p, r) for p, r in zip(eval(self.o["gst"].replace(":", ",")), (62, 100, 12, 52, 54, 14))]
            for p, r in self.gst:
                tl.gap(p).shadow.append(Ins(f"s_memtime s[{r}:{r + 1}]"))
        if self.o.get("pack1") is not None:
            tl.fill(0, 85, V)
            tl.fill(85, 400, V, ahead=6, pack=self.o["pack1"], lagmax=4.0)
            tl.fill(400, 468, V, flush=10 ** 9)
        else:
            tl.fill(0, 468, V, flush=10 ** 9)
        pre = [i for i in tl.emit(-DD, 0) if i.kind == "lds"]
        tl.insert_lgkm_waits(0, 468, [(-10 + k // 2, i) for k, i in enumerate(pre)][8:])
        s = self.seg("p1a")
        s("L_p1:")
        if self.wpf and self.o.get("qpf", 1) == 1:
            for i in range(self.npf):
                s(f"""s_lshr_b32 s{sT1}, s{sW}, 1
                s_mul_i32 s{sT1}, s{sT1}, 140
                s_add_u32 s{sT1}, s{sT1}, {i * self.pfstep * 1152}""")
                s(f"buffer_load_dword v{vT3}, v{vPOL}, {srd(sQ)}, s{sT1} offen", tag="pf")
        if self.wpf and self.o.get("qpf", 1) >= 4:
            s(f"s_lshr_b32 s{sT1}, s{sW}, 1\ns_mul_i32 s{sT1}, s{sT1}, 140")
        kf = lambda kk: aKV + 4 * kk if kk < 9 else frag(1, kk - 9)
        kve = self.kve
        if kve:
            s(f"v_subrev_u32 v{vT0}, {3 * SLOT - 16384}, v{vKR}")
        kr = lambda kk: [Ins(f"ds_read_b64_tr_b16 {ar(kf(kk) + 2 * h, 2)}, v{vT0 if kve and kk >= 16 else vKR} offset:{1024 * kk + 128 * h}", tag="kvfr") for h in range(2)]
        s("s_waitcnt vmcnt(63)", auto=["kvimg", "st0"])
        s("s_barrier", need=["kvimg", "st0"])
        for kk in range(9):
            s.extend(kr(kk))
        for n, fin in self.deferred:
            s("\n".join(fin))
        s(f"""s_bitcmp1_b32 s{sS}, 2
        s_cbranch_scc1 L_kvu1
        s_bitcmp1_b32 s{sS}, 1
        s_cbranch_scc1 L_kv01""")
        for u in range(2):
            for o in range(2):
                k = self.seg(f"kv{u}{o}")
                if u == 1 and o == 0:
                    k(f"L_kvu1:\ns_bitcmp1_b32 s{sS}, 1\ns_cbranch_scc1 L_kv11")
                elif o == 1:
                    k(f"L_kv{u}{o}:")
                k("s_waitcnt lgkmcnt(12)")
                for kk in range(18):
                    a, b = ar(kf(kk)), xn(u, kk)
                    if o:
                        a, b = b, a
                    k(f"v_mfma_f32_16x16x32_bf16 {vr(vKVA)}, {a}, {b}, {'0' if kk == 0 else vr(vKVA)}")
                    if kk % 3 == 2 and kk < 17:
                        k("s_waitcnt lgkmcnt(10)")
                    if self.late and kk % 2 == 0:
                        k(f"s_add_u32 m0, s{sM0W}, {SLOT + 4096 * (kk // 2)}")
                    if self.late and kk % 2 == 1:
                        k(f"s_add_u32 s{sA}, s{sA}, s{sINC}")
                    if kk < 9:
                        k.extend(kr(kk + 9))
                    else:
                        k.extend(pre[2 * (kk - 9):2 * (kk - 9) + 2])
                    if self.late and kk % 2 == 1 and not (kve and kk == 17):
                        k(f"buffer_load_dwordx4 v{vDM}, {srd(sG)}, s{sA} offen lds", tag="st1")
                k.extend(pre[18:])
                if not (u == 1 and o == 1):
                    k("s_branch L_kvdone")
        g = self.seg("p1gemm")
        g("L_kvdone:")
        self.stamp(g, 2)
        g("s_waitcnt lgkmcnt(12)")
        g.extend(tl.emit(0, 468))
        self.att()
        k = self.seg("kvspin")
        k(f"""L_kvspin:
        s_mov_b32 s{sT1}, 0
        L_kvspin2:
        buffer_load_dword v{vPOL}, v{vDP}, {srd(sDBG)}, 0 offen sc1
        s_add_u32 s{sT1}, s{sT1}, 1
        s_cmp_gt_u32 s{sT1}, 0x100000
        s_cbranch_scc1 L_end
        s_waitcnt vmcnt(0)
        v_cmp_gt_u32 vcc, 16, v{vPOL}
        s_nop 1
        s_cbranch_vccnz L_kvspin2
        s_branch L_kvok""")
        self.fallback()

    def qk(self, sb, q, kt):
        k1 = aK1 + 4 * (kt % 2)
        k2 = aK2 + 4 * ((kt // 4) % 2) + 2 * ((kt % 4) // 2)
        q2 = vQ2 + 4 * q + 2 * (kt % 2)
        S = vr(vS_ + 16 * sb, 16)
        return (Ins(f"v_mfma_f32_32x32x16_bf16 {S}, {ar(k1)}, {vr(vQ1 + 4 * q)}, 0"),
                Ins(f"v_mfma_f32_32x32x8bf16_1k {S}, {ar(k2, 2)}, {vr(q2, 2)}, {S}"))

    def pv(self, sb, q, kt):
        O = vr(vO_ + 16 * q, 16)
        v = aV_ + 8 * (kt % 2)
        return tuple(Ins(f"v_smfmac_f32_32x32x32_bf16 {O}, {ar(v + 4 * f)}, {vr(vS_ + 16 * sb + 8 * f, 8)}, v{vIDX}") for f in range(2))

    def kvreads(self, kt):
        sl, i = (kt // 8) % 2, kt % 8
        o = KVST * sl
        k1 = Ins(f"ds_read_b128 {ar(aK1 + 4 * (kt % 2))}, v{vKA} offset:{o + 1024 * i}", tag="kvr")
        k2 = Ins(f"ds_read_b128 {ar(aK2 + 4 * ((kt // 4) % 2))}, v{vK2A} offset:{o + 640 * (i // 4)}", tag="kvr") if kt % 4 == 0 else None
        vv = [Ins(f"ds_read_b128 {ar(aV_ + 8 * (kt % 2) + 4 * f)}, v{vVA} offset:{o + 640 * (2 * i + f)}", tag="kvr") for f in range(2)]
        return k1, k2, vv

    def preg(self, i):
        if i < self.ne:
            return lambda k: ar((40, 56, 112, 128, 200, 184, 168)[i] + 4 * k)
        return lambda k: vr(vO_ + 16 * ((i - self.ne) % 5) + 4 * k)

    def areg(self, i):
        k = i - self.ne - self.n2
        return (sK2, sK1, sKS, sHI, sSTN)[k] if k >= 0 else sA

    def pacc_opt(self, name, i0, n):
        names = []
        for i in range(i0, i0 + n):
            s = self.segs[-1]
            s(f"s_cmp_eq_u32 s{self.areg(i)}, {OOB}\ns_cbranch_scc1 L_{name}")
            names.append(f"{name}{i}")
            s = self.seg(names[-1])
            s("s_waitcnt vmcnt(63)", auto=[f"pl{i}"])
            s.extend(self.pacc(i, 1))
        s = self.seg(name)
        s(f"L_{name}:")
        return names

    def opf(self):
        if not self.o.get("opf", 0):
            return []
        out = [Ins(f"s_nand_b32 s{sT2}, vcc_lo, s{sTO}"), Ins(f"s_andn2_b32 s{sTO}, s{sTO}, vcc_lo")]
        for j in range(2):
            out += [Ins(f"v_bfe_u32 v{vT0 + j}, s{sT2}, v{vOQ}, 1"), Ins(f"v_lshl_add_u32 v{vT0 + j}, v{vT0 + j}, 30, v{vOP}")]
            out += [Ins(f"s_lshr_b32 s{sT2}, s{sT2}, 4")] if j == 0 else []
            out += [Ins(f"buffer_load_dword v{vT3}, v{vT0 + j}, {srd(sWS)}, s{sOM1 if j else sOM} offen sc1", tag="pf")]
        return out

    def p7load(self):
        i = self.ne + self.n2 + self.n3 + self.o.get("n4", 1)
        return [Ins(f"buffer_load_dwordx4 {self.preg(i)(k)}, v{vL16}, {srd(sWS)}, s{sP7} offen offset:{1024 * k} sc1", tag="p7") for k in range(4)]

    def poll(self):
        return Ins(f"buffer_load_dword v{vPOL}, v{vINB}, {srd(sWS)}, s{sFL} offen sc1", tag="poll")

    def ready(self):
        return [Ins(f"v_cmp_ne_u32 vcc, 0, v{vPOL}"), Ins("s_nop 0"), Ins(f"s_lshr_b32 s{sRDY}, vcc_lo, 8"), Ins(f"s_and_b32 s{sRDY}, s{sRDY}, s{sTODO}")]

    def pload(self, i0, n):
        out = []
        for i in range(i0, i0 + n):
            out += [Ins(f"s_ff1_i32_b32 s{sT1}, s{sRDY}"), Ins(f"s_bitset0_b32 s{sRDY}, s{sT1}"), Ins(f"s_bitset0_b32 s{sTODO}, s{sT1}"),
                    Ins(f"s_mul_i32 s{sT0}, s{sT1}, {9 * 16384}"), Ins(f"s_add_u32 s{sT0}, s{sT0}, s{sPB}"),
                    Ins(f"s_cmp_lt_i32 s{sT1}, 0"), Ins(f"s_cselect_b32 s{self.areg(i)}, {OOB}, s{sT0}")]
            out += [Ins(f"buffer_load_dwordx4 {self.preg(i)(k)}, v{vL16}, {srd(sWS)}, s{self.areg(i)} offen offset:{1024 * k} sc1", tag=f"pl{i}") for k in range(4)]
        return out

    @staticmethod
    def weave(ld):
        slots = [ld[k:k + 11] for k in range(0, len(ld), 11)]
        out = list(slots[0][:7])
        for k, sl in enumerate(slots):
            nx = slots[k + 1][:7] if k + 1 < len(slots) else []
            for j in range(4):
                out.append(sl[7 + j])
                out += nx[2 * j:2 * j + 2] if j < 3 else nx[6:]
        return out

    def pacc(self, i0, n):
        out = []
        for j in range(8):
            ct, u = j // 2, j % 2
            c = vr(vG + 4 * j)
            for i in range(i0, i0 + n):
                out.append(Ins(f"v_mfma_f32_16x16x32_bf16 {c}, {vr(vSEL + (0 if ct % 2 else 2))}, {self.preg(i)(2 * (ct // 2) + u)}, {'0' if i == 0 else c}"))
        return out

    @staticmethod
    def layer(slots, stream):
        def lay(k, ins, gap=2, ns=1):
            lastmem = -9
            for i in ins:
                while True:
                    cur = stream.setdefault(slots[k], [])
                    if i.kind in ("salu", "wait", "label"):
                        if (len(cur) < ns and all(x.kind == "salu" for x in cur)) or i.kind == "label":
                            break
                    elif i.kind == "valu":
                        break
                    elif k - lastmem >= gap and not any(x.kind not in ("salu", "wait") for x in cur) and not ("m0" in i.rd and any("m0" in x.wr for x in cur)):
                        lastmem = k
                        break
                    k += 1
                cur.append(i)
            return k + 1
        return lay

    def publish(self, s, hp, tag):
        vR, vW, vE = 192, 196, 28
        s(f"v_rcp_f32 v{vR}, v{vO_ + 16 * hp + 10}\ns_nop 0")
        for u in range(2):
            o = vO_ + 16 * (2 * u + hp)
            s(f"v_mul_f32 v{vR + u}, {f32(ALPHA)}, v{vR + u}")
            for j in range(10):
                s(f"v_mul_f32 v{vW + j}, v{o + j}, v{vR + u}")
            if u == 0:
                s(f"v_rcp_f32 v{vR + 1}, v{o + 32 + 10}")
            s(f"v_cvt_pk_bf16_f32 v{vE + 2 * hp + u}, v{vW + 8}, v{vW + 9}")
            for j in range(4):
                s(f"v_cvt_pk_bf16_f32 v{o + 12 + j}, v{vW + 2 * j}, v{vW + 2 * j + 1}")
            if u == 1:
                s(f"v_permlane16_swap_b32 v{vE + 2 * hp}, v{vE + 2 * hp + 1}")
            s(f"buffer_store_dwordx4 {vr(o + 12)}, v{vL16}, {srd(sWS)}, s{sOM0 + (u ^ self.swp)} offen offset:{1024 * hp} sc1", tag=tag)

    def check(self, s, qs):
        s(f"s_mov_b32 s{sT0}, {f32(2.0 ** -126)}\ns_mov_b32 s{sT1}, {f32(2.0 ** 124)}")
        t = 192
        for q in qs:
            o = vO_ + 16 * q
            s(f"""v_cndmask_b32 v{t + 2}, v{o + 8}, v{o + 10}, {MSK}
            v_cndmask_b32 v{t + 3}, v{o + 9}, v{o + 10}, {MSK}""")
            if q == qs[0]:
                s(f"v_min3_f32 v{t}, abs(v{t + 2}), abs(v{t + 3}), v{o + 10}\nv_add_f32 v{t + 1}, abs(v{t + 2}), v{o + 10}")
            else:
                s(f"""v_min3_f32 v{t}, v{t}, abs(v{t + 2}), abs(v{t + 3})
                v_min_f32 v{t}, v{t}, v{o + 10}
                v_add_f32 v{t + 1}, v{t + 1}, v{o + 10}
                v_add_f32 v{t + 1}, v{t + 1}, abs(v{t + 2})""")
            s(f"v_add_f32 v{t + 1}, v{t + 1}, abs(v{t + 3})")
            for j in range(0, 8, 2):
                s(f"""v_min3_f32 v{t}, v{t}, abs(v{o + j}), abs(v{o + j + 1})
                v_add_f32 v{t + 1}, v{t + 1}, abs(v{o + j})
                v_add_f32 v{t + 1}, v{t + 1}, abs(v{o + j + 1})""")
        s(f"""v_cmp_nle_f32 vcc, s{sT0}, v{t}
        v_cmp_ngt_f32 {MK2}, s{sT1}, v{t + 1}
        s_nop 0
        s_or_b64 vcc, vcc, {MK2}""")

    KO = [0, 2, 4, 6, 8, 10, 12, 14, 1, 3, 5, 7, 9, 11, 13, 15, 16, 17]
    KB = [(0, 4), (4, 4), (8, 2), (10, 2), (12, 3), (15, 3)]

    def gather(self, blocks, base):
        gl = []
        for kb in blocks:
            j0, n = self.KB[kb]
            for u in range(2):
                o0 = None
                for j in range(j0, j0 + n):
                    off = 1024 * (18 * u + self.KO[j])
                    q = []
                    if o0 is None or off - o0 > 3072:
                        o0 = off
                        q.append(Ins(f"s_add_u32 s{sINC}, s{base}, {off}"))
                    gl.append(q + [Ins(f"buffer_load_dwordx4 {xn(u, j)}, v{vL16}, {srd(sWS)}, s{sINC} offen offset:{off - o0} sc1", tag=f"og{kb}")])
        return gl

    def ofr(self, p, hp, tag):
        return [Ins(f"buffer_load_dwordx4 {xn(u, 8 * hp + p)}, v{vL16U if u else vL16}, {srd(sWS)}, s{sINC} offen offset:{1024 * hp} sc1", tag=tag) for u in range(2)]

    def fetch(self, name, hp, tag):
        names = []
        for p in range(8):
            s = self.segs[-1] if p == 0 else self.seg(f"{name}t{p}")
            if p:
                s(f"L_{name}{p}:")
            s(f"s_bitcmp1_b32 s{sNEW}, {p}\ns_cbranch_scc0 L_{name}{p + 1}")
            s = self.seg(f"{name}l{p}")
            s(f"s_add_u32 s{sINC}, s{sOM}, {2048 * p}")
            s.extend(self.ofr(p, hp, tag))
            names.append(([f"{name}t{p}"] if p else [], [f"{name}l{p}"]))
        self.seg(f"{name}e")(f"L_{name}8:")
        return lambda on: [x for t, l in names for x in t + (l if on else [])] + [f"{name}e"]

    def att_rounds(self, a):
        T = [(j // 2 % 16, 2 * (j % 2) + j // 32) for j in range(64)]
        slots = [(j, m) for j in range(64) for m in (0, 2, 3)]
        stream = {}
        lay = self.layer(slots, stream)
        seq = []
        for i in range(4):
            seq += [Ins(f"s_add_u32 m0, s{sM0W}, {4096 * (12 + i)}"), Ins(f"s_mov_b32 s{sT0}, {36 * 1152 * (12 + i)}"),
                    Ins(f"buffer_load_dwordx4 v{vWM}, {srd(sWO)}, s{sT0} offen lds", tag="wo")]
        seq += [Ins(f"s_add_u32 m0, s{sM0W}, {2 * SLOT + 12288}"), Ins(f"buffer_load_dwordx4 v{vWN}, {srd(sWO)}, s{sSTN} offen lds", tag="wo")]
        for i in range(2):
            seq += [Ins(f"s_add_u32 m0, s{sM0W}, {4096 * (16 + i)}"), Ins(f"s_mov_b32 s{sT0}, {288 * 1152 * i}"),
                    Ins(f"buffer_load_dwordx4 v{vWX}, {srd(sWO)}, s{sT0} offen lds", tag="wo")]
        seq += [Ins(f"s_add_u32 m0, s{sM0W}, {2 * SLOT + 16384}"), Ins(f"s_lshl_b32 s{sC0}, s{sS}, 7"),
                Ins(f"buffer_load_dwordx4 v{vWNX}, {srd(sWO)}, 0 offen lds", tag="wo")]
        for i in range(4):
            seq += [Ins(f"s_add_u32 m0, s{sXL}, {1024 * i}"), Ins(f"s_add_u32 s{sT0}, s{sC0}, {9216 * i}"),
                    Ins(f"buffer_load_dwordx4 v{vTMP}, {srd(sX)}, s{sT0} offen lds", tag="xr")]
        seq += [Ins(f"s_add_u32 m0, s{sM0W}, {XRESN}"), Ins(f"buffer_load_dwordx4 v{vXN}, {srd(sX)}, s{sXN} offen lds", tag="xr")]
        if self.o.get("cpf", 0) >= 2:
            seq.append(Ins(f"global_load_dword v{vT3}, {vr(vXE, 2)}, off", tag="pf"))
        k = lay(0, seq)
        e1 = self.o.get("ne1", 3)
        rd = lambda: [Ins("s_waitcnt vmcnt(63)", auto=["poll"])] + [i for i in self.ready() if i.op != "s_nop"]
        k1 = 96 - 10 - 8 * e1 - self.o.get("eoff", 12)
        assert k <= k1 - 18, (k, k1)
        lay(k1 - 18, [self.poll()])
        lay(k1, rd() + self.weave(self.pload(0, e1)))
        fa, pa, ga = self.o.get("fa", 26), self.o.get("pa", 38), self.o.get("ga", 57)
        lay(96 + 8, [self.poll()])
        k = lay(96 + fa, [Ins("s_waitcnt vmcnt(63)", auto=["osa"]), Ins(f"buffer_store_dword v{vONE}, v{vFO}, {srd(sWS)}, s{sOFA} offen sc1", tag="flag", need=["osa"])])
        e3 = self.o.get("ne3", 0)
        if self.ne - e3 > e1:
            k = lay(k, rd() + self.weave(self.pload(e1, self.ne - e3 - e1)))
        assert k <= 96 + ga + 1, k
        lay(96 + pa, [self.poll()])
        if self.dyn:
            gl = [Ins("s_waitcnt vmcnt(63)", auto=["poll"]), Ins(f"v_cmp_ne_u32 vcc, 0, v{vPOL}"), Ins(f"s_lshr_b32 s{sT0}, vcc_lo, 24"),
                  Ins(f"s_andn2_b32 s{sGA}, s{sNA}, s{sT0}")]
            sc = lambda p: [Ins(f"s_add_u32 s{sT0}, s{sOM}, {2048 * p}"), Ins(f"s_bitcmp1_b32 s{sGA}, {p}"), Ins(f"s_cselect_b32 s{sINC}, {OOB}, s{sT0}")]
            gl += (self.ready()[2:] if e3 else []) + sc(0)
            for p in range(8):
                l0, l1 = self.ofr(p, 0, "og0")
                nx = sc(p + 1) if p < 7 else []
                gl += [l0] + nx[:1] + [l1] + nx[1:] if e3 else [l0] + nx[:2] + [l1] + nx[2:]
            k = lay(max(k, 96 + ga), gl, gap=1 if e3 else 2)
            if e3:
                k = lay(k, self.weave(self.pload(self.ne - e3, e3)), gap=1, ns=2)
        else:
            k = lay(max(k, 96 + ga), [Ins("s_waitcnt vmcnt(63)", auto=["poll"]), Ins(f"v_cmp_ne_u32 vcc, 0, v{vPOL}"), Ins(f"s_lshr_b32 s{sT0}, vcc_lo, 24"),
                                      Ins(f"s_andn2_b32 s{sT0}, s{sNA}, s{sT0}"), Ins(f"s_cselect_b32 s{sGA}, {OOB}, s{sOM}")] + [i for q in self.gather((0, 1), sGA) for i in q])
        assert k <= 192, k
        for j, (kt, q) in enumerate(T):
            nx = T[j + 1] if j < 63 else None
            pv = T[j - 1] if j else (15, 3)
            ms = (list(self.qk((j + 1) % 4, nx[1], nx[0])) if nx else [None, None]) + list(self.pv((j - 1) % 4, pv[1], pv[0]))
            ex = [[], [], [], []]
            if j == 14:
                ex[0] += [Ins("s_waitcnt vmcnt(63)", auto=["kv1"]), Ins("s_barrier", need=["kv1"])]
            if j == 32:
                ex[0] += [Ins("s_waitcnt vmcnt(63)", auto=["wo", "xr"]), Ins("s_barrier", need=["wo"])]
            if j < 62:
                k1_, k2_, vv = self.kvreads((kt + 1) % 16)
                if j % 2 == 0:
                    ex[0] += [k1_] + ([k2_] if k2_ else [])
                else:
                    ex[0].append(vv[0])
                    ex[2].append(vv[1])
            if j % 2 == 0:
                ex[3].append(Ins("s_waitcnt lgkmcnt(0)"))
            if j == 34:
                self.publish(a, 0, "osa")
                self.check(a, (0, 2))
                if self.forcefb == 2:
                    a("s_or_b64 vcc, vcc, 1")
                a(f"""s_cselect_b32 s{sOFA}, {OOB}, s{sOFA}
                s_cselect_b32 s{sNA}, 0xff, s{sOTH}""")
            sb = vS_ + 16 * (j % 4)
            for m in range(4):
                if ms[m]:
                    a.add(ms[m])
                st = stream.get((j, m), [])
                a.extend([i for i in st if i.kind not in ("vmem", "valu")] + ex[m] + [i for i in st if i.kind in ("vmem", "valu")])
                for e in range(4):
                    a(f"v_exp_f32 v{sb + 4 * m + e}, v{sb + 4 * m + e}")

    def att_stage(self, a, kt0, last):
        stream = {}
        if last:
            slots = [(tau, m) for tau in range(32, 64) for m in (0, 2, 3)]

            lay = self.layer(slots, stream)
            seq = []
            for i in range(2):
                seq += [Ins(f"s_add_u32 m0, s{sHI}, s{sM0W}"), Ins(f"s_add_u32 s{sHI}, s{sHI}, 4096"), Ins(f"buffer_load_dwordx4 v{vWM}, {srd(sWO)}, s{sC0} offen lds", tag="wo"),
                        Ins(f"s_add_u32 s{sC0}, s{sC0}, {36 * 1152}")]
            for i in range(2):
                seq += [Ins(f"s_add_u32 m0, s{sHI}, s{sM0W}"), Ins(f"s_add_u32 s{sHI}, s{sHI}, 4096"), Ins(f"s_mov_b32 s{sT0}, {288 * 1152 * i}"),
                        Ins(f"buffer_load_dwordx4 v{vWX}, {srd(sWO)}, s{sT0} offen lds", tag="wo")]
            seq += [Ins(f"s_cmp_lt_u32 s{sW}, 2"), Ins(f"s_cselect_b32 s{sT0}, s{sRO}, 0"), Ins(f"s_sub_u32 s{sT0}, s{sM0W}, s{sT0}"),
                    Ins(f"s_add_u32 m0, s{sT0}, {2 * SLOT + 16384}"), Ins(f"s_lshl_b32 s{sC0}, s{sS}, 7"),
                    Ins(f"buffer_load_dwordx4 v{vWNX}, {srd(sWO)}, 0 offen lds", tag="wo")]
            for i in range(4):
                seq += [Ins(f"s_add_u32 m0, s{sXL}, {1024 * i}"), Ins(f"s_add_u32 s{sT0}, s{sC0}, {9216 * i}"),
                        Ins(f"buffer_load_dwordx4 v{vTMP}, {srd(sX)}, s{sT0} offen lds", tag="xr")]
            seq += [Ins(f"s_add_u32 m0, s{sM0W}, {XRESN}"), Ins(f"buffer_load_dwordx4 v{vXN}, {srd(sX)}, s{sXN} offen lds", tag="xr")]
            k = lay(0, [self.poll()] + seq)
            e1 = self.o.get("ne1", 3)
            rd = lambda: [Ins("s_waitcnt vmcnt(63)", auto=["poll"])] + [i for i in self.ready() if i.op != "s_nop"]
            k = lay(k, rd() + self.weave(self.pload(0, e1)))
            if self.ne > e1:
                k1 = 96 - 13 - 8 * (self.ne - e1) - self.o.get('eoff', 0) - (5 if self.o.get('opf', 0) else 0)
                k1 = max(k1, k)
                lay(k1 - 21, [self.poll()])
                k = lay(k1, rd() + self.opf() + self.weave(self.pload(e1, self.ne - e1)))
            assert k <= 96, k
        for tau in range(4 * kt0, 4 * kt0 + 32):
            kt, q = tau // 4, tau % 4
            ms = list(self.qk((tau + 1) % 4, (tau + 1) % 4, (tau + 1) // 4)) + list(self.pv((tau - 1) % 4, (tau - 1) % 4, ((tau - 1) // 4) % 16))
            ex = [[], [], [], []]
            k1, k2, vv = self.kvreads((kt + 1) % 16)
            newstage = (kt + 1) % 8 == 0
            sg = (kt + 1) // 8 % 2
            dma = lambda so, off: Ins(f"buffer_load_dwordx4 v{vL16}, {srd(sDM)}, 0 offen offset:{off} sc1 lds", tag=f"kv{1 - sg}")
            if last and newstage:
                if q == 0:
                    ex[0] += [Ins("s_waitcnt vmcnt(63)", auto=["wo", "xr"]), Ins("s_barrier", need=["wo"])]
                if q == 3:
                    ms[0] = ms[1] = None
            else:
                if q == 0:
                    if newstage:
                        tg = [f"kv{sg}"] + (["hst"] if sg == 1 else [])
                        ex[0] += [Ins("s_waitcnt vmcnt(63)", auto=tg), Ins("s_barrier", need=tg + ["lds:kvr"])]
                        if sg == 1:
                            ex[0] += [Ins(f"buffer_atomic_add v{vONE}, v{vFLG}, {srd(sDBG)}, s{sHA} offen sc1", tag="arr")]
                    ex[0].append(k1)
                    if k2:
                        ex[2].append(k2)
                    if newstage:
                        ex[2].insert(0, Ins(f"s_add_u32 m0, s{sC1}, {KVS0 + KVST * (1 - sg)}"))
                        ex[3] += [Ins(f"s_mov_b32 s{sHA}, {OOB}")] if sg == 1 else []
                        ex[3].append(dma(sINC, 0))
                if q == 1:
                    ex[0].append(vv[0])
                    ex[2].append(vv[1])
                    if newstage:
                        ex[3].append(dma(sINC, 1024))
                if q == 2:
                    if newstage:
                        ex[0].append(dma(sINC, 2048))
                        ex[2].append(dma(sINC, 3072))
                    ex[3].append(Ins("s_waitcnt lgkmcnt(0)"))
                if q == 3 and newstage:
                    ex[0].append(Ins(f"s_add_u32 m0, s{sC1}, {KVS0 + KVST * (1 - sg) + 4096}"))
                    ex[2].append(Ins(f"buffer_load_dwordx4 v{vL16B}, {srd(sDM)}, 0 offen sc1 lds", tag=f"kv{1 - sg}"))
                    if sg == 1 and not self.two:
                        ex[3].append(Ins(f"s_cmp_eq_u32 s{sIT}, 4"))
                    if sg == 0 and self.two:
                        ex[3].append(Ins(f"s_cmp_lt_u32 s{sIT}, 3"))
                if kt % 8 == 5 and q == 2 and not last:
                    ex[0].append(Ins(f"s_add_u32 s{sDM}, s{sDM}, {KVST}"))
                    ex[2].append(Ins(f"s_addc_u32 s{sDM + 1}, s{sDM + 1}, 0"))
            if not last:
                if kt % 8 == 1 and q == 2:
                    ex[0].append(Ins(f"s_cmp_eq_u32 s{sHI}, {18 * 4096}"))
                    ex[2].append(Ins(f"s_cselect_b32 s{sHI}, 0, s{sHI}"))
                if kt % 8 in (0, 1) and q == 3:
                    ex[0].append(Ins(f"s_add_u32 m0, s{sHI}, s{sM0W}"))
                    ex[2] += [Ins(f"s_add_u32 s{sHI}, s{sHI}, 4096"), Ins(f"buffer_load_dwordx4 v{vWM}, {srd(sWO)}, s{sC0} offen lds", tag="wo")]
                    ex[3].append(Ins(f"s_add_u32 s{sC0}, s{sC0}, {36 * 1152}"))
                if kt == 2 and q == 0:
                    ex[2].append(Ins(f"s_lshl_b32 s{sT0}, s{sIT}, 12"))
                    ex[3].append(Ins(f"s_add_u32 s{sT0}, s{sT0}, s{sM0W}"))
                if kt == 2 and q == 1:
                    ex[0].insert(0, Ins(f"s_add_u32 s{sT0}, s{sT0}, s{sRO}"))
                    ex[2].insert(0, Ins(f"s_cmp_ge_u32 s{sT0}, 18432"))
                    ex[3].append(Ins(f"s_cselect_b32 s{sT1}, 18432, 0"))
                if kt == 2 and q == 2:
                    ex[0].append(Ins(f"s_sub_u32 s{sT0}, s{sT0}, s{sT1}"))
                if kt == 2 and q == 3:
                    ex[0].append(Ins(f"s_add_u32 m0, s{sT0}, {2 * SLOT}"))
                    ex[2] += [Ins(f"s_add_u32 s{sIT}, s{sIT}, 1"), Ins(f"buffer_load_dwordx4 v{vWN}, {srd(sWO)}, s{sSTN} offen lds", tag="wo")]
                    ex[3].append(Ins(f"s_add_u32 s{sSTN}, s{sSTN}, {4 * 36 * 1152}"))
                if self.o.get("cpf", 0) >= 2 and kt == 5 and q == 3:
                    ex[0].append(Ins(f"global_load_dword v{vT3}, {vr(vXE, 2)}, off", tag="pf"))
                if self.wpf and kt % 8 == 3 and q == 2:
                    ex[0].append(Ins(f"s_cmp_lt_u32 s{sIT}, 3"))
                    ex[2].append(Ins(f"s_cselect_b32 s{sT0}, 0, {OOB}"))
                if self.wpf and (kt % 8 == 3 or (kt % 8 == 4 and self.npf == 2)) and q == 3:
                    ex[0].append(Ins(f"s_add_u32 s{sT1}, s{sT0}, s{sPG}"))
                    if kt % 8 == 4:
                        ex[2].append(Ins(f"s_add_u32 s{sT1}, s{sT1}, {self.pfstep * 9216}"))
                    ex[2].append(Ins(f"buffer_load_dword v{vT3}, v{vPF}, {srd(sPF)}, s{sT1} offen", tag="pf"))
                    if kt % 8 == 2 + self.npf:
                        ex[3].append(Ins(f"s_add_u32 s{sPG}, s{sPG}, 128"))
                wd0 = self.o.get("wd0", 0)
                if self.wpf and not wd0 and kt % 8 == 4 and (q == 0 or (q == 2 and self.nd == 2)):
                    ex[0].insert(0, Ins(f"s_add_u32 s{sT1}, s{sT0}, s{sPFO}"))
                    ex[2] += [Ins(f"s_add_u32 s{sPFO}, s{sPFO}, {self.dl * 128}"), Ins(f"buffer_load_dword v{vT3}, v{vPD}, {srd(sD)}, s{sT1} offen", tag="pf")]
                if self.wpf and wd0 and kt % 8 == 4:
                    if q == 0:
                        ex[2].append(Ins(f"s_cmp_eq_u32 s{sIT}, {wd0 + 1}"))
                        ex[3].append(Ins(f"s_cselect_b32 s{sT1}, s{sPFO}, {OOB}"))
                    if q in (2, 3):
                        ex[0].append(Ins(f"s_add_u32 s{sT0}, s{sT1}, {self.dl * 128 * (2 * (kt // 8) + q - 2)}"))
                        ex[2].append(Ins(f"buffer_load_dword v{vT3}, v{vPD}, {srd(sD)}, s{sT0} offen", tag="pf"))
            sb = vS_ + 16 * (tau % 4)
            for m in range(4):
                if ms[m]:
                    a.add(ms[m])
                st = stream.get((tau, m), [])
                a.extend([i for i in st if i.kind not in ("vmem", "valu")] + ex[m] + [i for i in st if i.kind in ("vmem", "valu")])
                for e in range(4):
                    a(f"v_exp_f32 v{sb + 4 * m + e}, v{sb + 4 * m + e}")

    def att(self):
        ne, n2, n3 = self.ne, self.n2, self.n3
        pload, pacc = self.pload, self.pacc
        s = self.seg("attpre")
        if self.stamps and self.o.get("gst"):
            s("s_waitcnt lgkmcnt(0)")
            for k, (p, r) in enumerate(self.gst):
                s(f"v_writelane_b32 v0, s{r}, {2 * (20 + k)}")
        self.stamp(s, 3)
        s("s_waitcnt vmcnt(63) lgkmcnt(0)", auto=["kv0"])
        s("s_barrier", need=["kv0", "lds:r6"])
        k1, k2, vv = self.kvreads(0)
        s.extend([k1, k2, self.kvreads(1)[0]] + vv)
        for u in range(2):
            s(f"v_cvt_pk_bf16_f32 v{vQ2 + 8 * u}, v{vEX + 4 * u}, v{vEX + 4 * u + 1}")
        s("s_nop 0")
        for u in range(2):
            s(f"v_permlane32_swap_b32 v{vQ2 + 8 * u}, v{vQ2 + 8 * u + 4}")
        for q in range(4):
            s(f"v_mov_b32 v{vQ2 + 4 * q + 3}, v{vQ2 + 4 * q}")
        s("s_waitcnt lgkmcnt(2)")
        vMX = 28

        def mx(q, first):
            b, m = vS_ + 16 * q, vMX + q
            if first:
                return [f"v_max_f32 v{m}, v{b}, v{b + 1}"] + [f"v_max3_f32 v{m}, v{m}, v{b + j}, v{b + j + 1}" for j in range(2, 16, 2)]
            return [f"v_max3_f32 v{m}, v{m}, v{b + j}, v{b + j + 1}" for j in range(0, 16, 2)] + [f"v_mov_b32 v{b}, v{m}"]

        def fin(q):
            b, m = vS_ + 16 * q, vMX + q
            return [f"v_permlane32_swap_b32 v{m}, v{b}", f"v_max_f32 v{m}, v{m}, v{b}", f"v_sub_f32 v{m}, {f32(-MOFF)}, v{m}",
                    f"v_cvt_pk_bf16_f32 v{m}, v{m}, 0", f"v_cndmask_b32 v{vQ2 + 4 * q}, v{vQ2 + 4 * q}, v{m}, {MSK}", f"v_mov_b32 v{vQ2 + 4 * q + 3}, v{vQ2 + 4 * q}"]

        for q in range(4):
            m0, m1 = self.qk(q, q, 1)
            s.add(m0)
            s(f"buffer_store_dwordx4 {vr(vH1 + 4 * q)}, v{vL16}, {srd(sWS)}, s{sST} offen offset:{1024 * (q ^ self.swp)} sc1", tag="hst")
            s.add(m1)
        s("s_nop 2")
        for q in range(4):
            m0, m1 = self.qk(q, q, 0)
            l = mx(q, True)
            for x in (l if q == 0 else l[4:]):
                s(x)
            s.add(m0)
            s(f"buffer_store_dwordx4 {vr(vXB)}, v{vL16}, {srd(sWS)}, s{sFLN} offen offset:{1024 * q} sc1", tag="hst")
            for x in (mx(q + 1, True)[:4] if q < 3 else mx(0, False)[:4]):
                s(x)
            s.add(m1)
        for x in mx(0, False)[4:] + mx(1, False) + fin(0) + mx(2, False)[:2]:
            s(x)
        m0, m1 = self.qk(0, 0, 0)
        s.add(m0)
        zo = [f"v_mfma_f32_32x32x8bf16_1k {vr(vO_ + 16 * q, 16)}, {ar(aV_ + 8, 2)}, {ar(aV_ + 8, 2)}, 0" for q in range(4)] if self.o.get("ozm", 0) else []
        assert zo or not self.p7
        if self.wpf and self.o.get("p4", 1) == 1:
            s.extend(self.pf2(512))
        for x in mx(2, False)[2:]:
            s(x)
        s.add(m1)
        for k, x in enumerate(fin(1) + mx(3, False) + fin(2) + fin(3)):
            s(x)
            if zo and k % 7 == 5:
                s(zo.pop())
                if self.p7:
                    s(f"buffer_store_dwordx4 {vr(vXB)}, v{vL16}, {srd(sWS)}, s{sP7} offen offset:{1024 * len(zo)} sc1", tag="hst")
        assert not zo
        for r in range(vS_ + 48, vS_ + 64):
            s(f"v_mov_b32 v{r}, 0")
        s("s_waitcnt lgkmcnt(0)")
        self.stamp(s, 16)
        s(".p2align 3")
        a = self.seg("att0")
        a("L_att:")
        self.att_stage(a, 0, False)
        if self.two:
            a = self.seg("att1")
            self.att_stage(a, 8, False)
            a("s_cbranch_scc1 L_att")
            a = self.seg("attl")
            self.att_rounds(a)
        else:
            a("s_cbranch_scc1 L_attl")
            a = self.seg("att1")
            self.att_stage(a, 8, False)
            a("s_branch L_att\n.p2align 3")
            a = self.seg("attl")
            a("L_attl:")
            self.att_stage(a, 8, True)
        a("s_nop 1")
        a.extend(self.pv(3, 3, 15))
        self.stamp(a, 4)
        if self.two:
            return self.tail2()
        s = self.seg("opub")
        s(f"""L_opub:
        s_lshl_b32 s{sT0}, s{sS}, 11
        s_add_u32 s{sT0}, s{sT0}, s{sOM}
        s_add_u32 s{sT1}, s{sT0}, 18432
        s_lshl_b32 s{sT2}, s{sS}, 8
        s_add_u32 s{sT2}, s{sT2}, s{sOM}
        s_add_u32 s{sT2}, s{sT2}, 16384""")
        vR, vW, vE = 192, 196, vS_ + 16
        for q in range(4):
            o, p = vO_ + 16 * q, vS_ + 4 * q
            u, hp = q // 2, q % 2
            if q == 0:
                for k in range(3):
                    s(f"v_rcp_f32 v{vR + k}, v{vO_ + 16 * k + 10}")
            if q == 2:
                s(f"v_rcp_f32 v{vR + 3}, v{vO_ + 48 + 10}")
            s(f"v_mul_f32 v{vR + q}, {f32(ALPHA)}, v{vR + q}")
            for j in range(10):
                s(f"v_mul_f32 v{vW + j}, v{o + j}, v{vR + q}")
            s(f"v_cvt_pk_bf16_f32 v{vE + 2 * hp + u}, v{vW + 8}, v{vW + 9}")
            for j in range(4):
                s(f"v_cvt_pk_bf16_f32 v{p + j}, v{vW + 2 * j}, v{vW + 2 * j + 1}")
            if u == 1:
                s(f"v_permlane16_swap_b32 v{vE + 2 * hp}, v{vE + 2 * hp + 1}")
            s(f"buffer_store_dwordx4 {vr(p)}, v{vL16}, {srd(sWS)}, s{sT0 + (u ^ self.swp)} offen offset:{1024 * hp} sc1", tag="ost")
        s(f"buffer_store_dwordx4 {vr(vE)}, v{vOE}, {srd(sWS)}, s{sT2} offen sc1", tag="ost")
        s.add(self.poll())
        s(f"""s_cmp_lg_u32 s{sSK}, 0
        s_cbranch_scc1 L_chkd""")
        s = self.seg("chk")
        self.check(s, (0, 1, 2, 3))
        if self.forcefb:
            s("s_or_b64 vcc, vcc, 1")
        s("s_cbranch_scc1 L_fb")
        s = self.seg("opub2")
        s("L_chkd:")
        vXR, vXU = 176, 96
        for j in range(8):
            s(f"ds_read_b64 {vr(vXR + 2 * j, 2)}, v{vTMP + j // 2 if j > 1 else vBA} offset:{2048 * (j % 2)}", need=["xr"])
        s(f"ds_read_b64 {vr(vXR + 16, 2)}, v{vXNA}")
        unp = []
        for j in range(9):
            d = vXU + 4 * j if j < 8 else vXE
            for e in range(2):
                unp += [Ins(f"v_lshlrev_b32 v{d + 2 * e}, 16, v{vXR + 2 * j + e}"), Ins(f"v_and_b32 v{d + 2 * e + 1}, 0xffff0000, v{vXR + 2 * j + e}")]
        s("s_waitcnt vmcnt(0)")
        s(f"buffer_store_dword v{vONE}, v{vFO}, {srd(sWS)}, s{sOF} offen sc1", need=["ost"])
        self.stamp(s, 5)
        rd = self.ready()
        s.extend(rd[:3])
        s(f"""s_andn2_b32 s{sT0}, s{sOTH}, vcc_lo
        s_waitcnt lgkmcnt(0)
        s_cbranch_scc0 L_ogatf""")
        s = self.seg("opub3")
        s.add(rd[3])
        s.extend(self.opf())
        s.add(self.poll())
        pl = self.weave(pload(ne, n2))
        mf = pacc(0, ne)
        up2 = [Ins(i.text) for i in unp]
        k = 0
        while pl or mf or up2:
            if mf:
                s.add(mf.pop(0))
            if pl and k % 3 == 0:
                while pl[0].kind == "salu":
                    s.add(pl.pop(0))
                s.add(pl.pop(0))
            else:
                s.extend(up2[:2])
                up2 = up2[2:]
            k += 1
        self.owait(s)
        gl = []
        for kb in range(6):
            for u in range(2):
                for i in range(3):
                    k = 3 * kb + i
                    q = [Ins(f"s_add_u32 s{sA}, s{sOM1 if k >= 9 and not self.o.get('opf', 0) else sOM0}, {1024 * (18 * u + k)}")] if i == 0 else []
                    gl.append(q + [Ins(f"buffer_load_dwordx4 {xn(u, k)}, v{vL16}, {srd(sWS)}, s{sA} offen offset:{1024 * i} sc1", tag=f"og{kb}")])
        ng = self.o.get("ngpre", 12)
        tf = Timeline()
        vX2 = 28
        n = 0
        for kb in range(6):
            for ct in range(5):
                g0 = 30 * kb + 6 * ct
                for i in range(3):
                    k = 3 * kb + i
                    f = aFR + 4 * ((15 * kb + 3 * ct + i) % 18)
                    for hh in range(2):
                        if ct < 4:
                            off = 4096 * k + 2048 * hh
                            ins = Ins(f"ds_read_b64_tr_b16 {ar(f + 2 * hh, 2)}, v{vRB + 4 * (off // 65536) + ct} offset:{off % 65536}", tag="fr")
                        else:
                            ins = Ins(f"ds_read_b64_tr_b16 {ar(f + 2 * hh, 2)}, v{vRN} offset:{1024 * k + 512 * hh}", tag="fr")
                        tf.place(Item("r", ins, 0, earliest=g0 - 36 + 3 + i), n - 16)
                        n += 1
                    for u in range(2):
                        c = vr(vG + 4 * (2 * ct + u)) if ct < 4 else vr(vX2 if u else vXB)
                        tf.m[g0 + 3 * u + i] = Ins(f"v_mfma_f32_16x16x32_bf16 {c}, {ar(f)}, {xn(u, k)}, {'0' if ct == 4 and k == 0 else c}")
            if kb:
                tf.gap(30 * kb - 1).shadow.append(Ins("s_waitcnt vmcnt(63)", auto=[f"og{kb}"]))
        pre0 = tf.emit(-16, 0)
        cp = lambda l: [Ins(i.text, tag=i.tag) for i in l]
        s = self.seg("ogatf")
        s("L_ogatf:")
        if self.o.get("gbar", 1):
            s("s_barrier")
        self.stamp(s, 6)
        mf, pre = pacc(0, ne), cp(pre0)
        per = -(-len(mf) // (ng - 4))
        for q in gl[:ng]:
            s.extend(cp(q))
            if mf:
                for m in mf[:per]:
                    s.add(m)
                    s.extend(unp[:1])
                    unp = unp[1:]
                mf = mf[per:]
            else:
                s.extend(pre[:4])
                pre = pre[4:]
        s.extend(pre + unp)
        s("s_branch L_ogatc")
        s = self.seg("ogat")
        s("L_ogat:")
        if self.o.get("gbar", 1):
            s("s_barrier")
        self.stamp(s, 6)
        pre = list(pre0)
        for q in gl[:ng]:
            s.extend(q)
            s.extend(pre[:1])
            pre = pre[1:]
        s.extend(pre)
        s("s_waitcnt vmcnt(63)", auto=[f"pl{i}" for i in range(ne, ne + n2)])
        s.extend(pacc(ne, n2))
        s = self.seg("ogatc")
        s("L_ogatc:")
        s("s_waitcnt vmcnt(63) lgkmcnt(0)", auto=["og0"])
        gs = self.o.get("gstep", 4)
        for k, q in enumerate(gl[ng:]):
            p = 1 + gs * k
            p += 1 if p % 30 == 29 else 0
            tf.gap(p).shadow.extend(q[:-1])
            tf.gap(p).mem.append(q[-1])
        n4 = self.o.get("n4", 1)
        i3, i4 = ne + n2, ne + n2 + n3
        assert n3 + n4 <= 5

        def rnd(p, i0, n):
            rd = self.ready()
            tf.gap(p).shadow.append(Ins("s_waitcnt vmcnt(63)", auto=["poll"]))
            tf.gap(p).valu.append(rd[0])
            p, lastm = p + 1, 0
            for i in rd[2:3] + [self.poll()] + rd[3:] + self.weave(pload(i0, n)):
                if i.kind == "salu":
                    tf.gap(p).shadow.append(i)
                    p += 1
                else:
                    p = max(p, lastm + 3)
                    lastm = p
                    tf.gap(p - 1).mem.append(i)
            return p

        p1 = p + 1
        tf.gap(p1 - 50).mem.append(self.poll())
        p = rnd(p1, i3, n3)
        p2 = self.o.get("p2", 180 - 12 - 12 * n4)
        assert p <= p2, (p, p2)
        p = rnd(p2, i4, n4)
        assert p < 181, p
        if self.stamps and self.o.get("fst"):
            fst = list(zip((0, 31, 61, 91, 121, 151), (66, 68, 52, 54, 100, 72)))
            for p, r in fst:
                tf.gap(p).shadow.append(Ins(f"s_memtime s[{r}:{r + 1}]"))
        tf.insert_lgkm_waits(0, 180, [])
        s.extend(tf.emit(0, 180))
        self.endgame()

    def owait(self, s):
        ne, n2, pload, pacc = self.ne, self.n2, self.pload, self.pacc
        s(f"s_mov_b32 s{sT3}, 0")
        s = self.seg("wo0")
        s(f"L_wo0:\ns_waitcnt vmcnt({4 * n2})")
        s = self.seg("wo1")
        s("L_wo1:")
        rd = self.ready()
        s.extend(rd[:3])
        s(f"""s_andn2_b32 s{sT0}, s{sOTH}, vcc_lo
        s_cbranch_scc0 L_ogat""")
        if self.o.get("opf", 0):
            s(f"s_and_b32 s{sT0}, vcc_lo, s{sTO}\ns_cbranch_scc0 L_wo1b")
            self.seg("wo1a").extend(self.opf())
        s = self.seg("wo1b")
        s("L_wo1b:")
        s.add(self.poll())
        s(f"""s_add_u32 s{sT3}, s{sT3}, 1
        s_cmp_gt_u32 s{sT3}, 0x100000
        s_cbranch_scc1 L_end""")
        s.add(rd[3])
        s("s_cbranch_scc1 L_wo2")
        s = self.seg("wo1c")
        s("s_waitcnt vmcnt(0)\ns_branch L_wo1")
        s = self.seg("wo2")
        s("L_wo2:\ns_waitcnt vmcnt(1)")
        pl = pload(ne, n2)
        for i in range(n2):
            mf = pacc(ne + i, 1)
            for k in range(8):
                s.add(mf[k])
                if k < 7:
                    s.add(pl[11 * i + k])
            s.extend(pl[11 * i + 7:11 * i + 11])
        s("s_branch L_wo0")

    def rnd(self, tf, p, i0, n):
        rd = self.ready()
        tf.gap(p).shadow.append(Ins("s_waitcnt vmcnt(63)", auto=["poll"]))
        tf.gap(p).valu.append(rd[0])
        p, lastm = p + 1, 0
        for i in rd[2:3] + [self.poll()] + rd[3:] + self.weave(self.pload(i0, n)):
            if i.kind == "salu":
                tf.gap(p).shadow.append(i)
                p += 1
            else:
                p = max(p, lastm + 3)
                lastm = p
                tf.gap(p - 1).mem.append(i)
        return p

    def proj(self):
        tf = Timeline()
        F = 0
        for kb, (j0, n) in enumerate(self.KB):
            if kb:
                tf.gap(2 * F - 1).shadow.append(Ins("s_waitcnt vmcnt(63)", auto=[f"og{kb}"]))
            for ct in range(5):
                g0 = 2 * F
                for i in range(n):
                    k = self.KO[j0 + i]
                    f = aFR + 4 * (F % 18)
                    for hh in range(2):
                        if ct < 4:
                            off = 4096 * k + 2048 * hh
                            ins = Ins(f"ds_read_b64_tr_b16 {ar(f + 2 * hh, 2)}, v{vRB + 4 * (off // 65536) + ct} offset:{off % 65536}", tag="fr")
                        else:
                            ins = Ins(f"ds_read_b64_tr_b16 {ar(f + 2 * hh, 2)}, v{vRN} offset:{1024 * k + 512 * hh}", tag="fr")
                        tf.place(Item("r", ins, 0), 2 * F + hh - 16)
                    for u in range(2):
                        c = vr(vG + 4 * (2 * ct + u)) if ct < 4 else vr(28 if u else vXB)
                        tf.m[g0 + n * u + i] = Ins(f"v_mfma_f32_16x16x32_bf16 {c}, {ar(f)}, {xn(u, j0 + i)}, {'0' if ct == 4 and j0 + i == 0 else c}")
                    F += 1
        return tf

    def tail2(self):
        ne, n2, n3, n4 = self.ne, self.n2, self.n3, self.o.get("n4", 1)
        pload, pacc = self.pload, self.pacc
        s = self.seg("opub")
        s(f"""L_opub:
        s_lshl_b32 s{sT2}, s{sS}, 8
        s_add_u32 s{sT2}, s{sT2}, s{sOM}
        s_add_u32 s{sT2}, s{sT2}, 16384
        s_nop 0""")
        self.publish(s, 1, "ost")
        s(f"buffer_store_dwordx4 {vr(28)}, v{vOE}, {srd(sWS)}, s{sT2} offen sc1", tag="ost")
        s.add(self.poll())
        s(f"""s_cmp_lg_u32 s{sSK}, 0
        s_cbranch_scc1 L_chkd""")
        s = self.seg("chk")
        self.check(s, (1, 3))
        if self.forcefb == 1:
            s("s_or_b64 vcc, vcc, 1")
        s(f"""s_cbranch_scc1 L_fb
        s_cmp_eq_u32 s{sNA}, 0xff
        s_cbranch_scc1 L_fb""")
        s = self.seg("opub2")
        s("L_chkd:")
        vXR, vXU = 176, 96
        for j in range(8):
            s(f"ds_read_b64 {vr(vS_ + 2 * j, 2)}, v{vTMP + j // 2 if j > 1 else vBA} offset:{2048 * (j % 2)}", need=["xr"])
        s(f"ds_read_b64 {vr(vS_ + 16, 2)}, v{vXNA}")
        unp = []
        for j in range(9):
            d = vXU + 4 * j if j < 8 else vXE
            for e in range(2):
                unp += [Ins(f"v_lshlrev_b32 v{d + 2 * e}, 16, v{vS_ + 2 * j + e}"), Ins(f"v_and_b32 v{d + 2 * e + 1}, 0xffff0000, v{vS_ + 2 * j + e}")]
        s("s_waitcnt vmcnt(63)", auto=[f"pl{i}" for i in range(min(ne, self.o.get("nb", 5)))])
        nb = min(ne, self.o.get("nb", 5))
        late_acc = pacc(nb, ne - nb) if ne > nb else []
        for k, m in enumerate(pacc(0, nb)):
            s.add(m)
            if k == 5:
                s("s_waitcnt lgkmcnt(0)")
            if k >= 5:
                s.extend(unp[:2])
                unp = unp[2:]
        s.extend(unp)
        t1 = self.proj()
        if not late_acc:
            s.extend(t1.emit(-16, 0))
        s("s_waitcnt vmcnt(0)")
        s(f"buffer_store_dword v{vONE}, v{vFO2}, {srd(sWS)}, s{sOF} offen sc1", need=["ost", "osa"])
        if late_acc:
            s.extend(late_acc + t1.emit(-16, 0))
        self.stamp(s, 5)
        if self.o.get("fack"):
            s("s_waitcnt vmcnt(0)")
            self.stamp(s, 15)
        if self.dyn:
            s(f"""s_mov_b32 s{sT3}, 0
            s_cmp_eq_u32 s{sGA}, 0
            s_cbranch_scc1 L_ga""")
            s = self.seg("pa1")
            s(f"""L_pa1:
            v_cmp_ne_u32 vcc, 0, v{vPOL}
            s_add_u32 s{sT3}, s{sT3}, 1
            s_lshr_b32 s{sT0}, vcc_lo, 24
            s_orn2_b32 s{sT0}, s{sT0}, s{sOTH}
            s_and_b32 s{sNEW}, s{sT0}, s{sGA}
            s_cbranch_scc0 L_fa8
            s_andn2_b32 s{sGA}, s{sGA}, s{sNEW}""")
            self.trA = self.fetch("fa", 0, "og0")
            s = self.segs[-1]
            s(f"""s_cmp_eq_u32 s{sGA}, 0
            s_cbranch_scc1 L_ga""")
            s = self.seg("pa2")
            s.add(self.poll())
            s(f"""s_cmp_gt_u32 s{sT3}, 0x100000
            s_cbranch_scc1 L_end
            s_waitcnt vmcnt(0)
            s_branch L_pa1""")
        else:
            s(f"""s_cmp_lg_u32 s{sGA}, {OOB}
        s_cbranch_scc1 L_ga""")
            s = self.seg("pa0")
            s(f"s_mov_b32 s{sT3}, 0")
            s = self.seg("pa1")
            s(f"""L_pa1:
        v_cmp_ne_u32 vcc, 0, v{vPOL}
        s_add_u32 s{sT3}, s{sT3}, 1
        s_lshr_b32 s{sT0}, vcc_lo, 24
        s_andn2_b32 s{sT0}, s{sOTH}, s{sT0}
        s_cbranch_scc0 L_pa3""")
            s = self.seg("pa2")
            s.add(self.poll())
            s(f"""s_cmp_gt_u32 s{sT3}, 0x100000
        s_cbranch_scc1 L_end
        s_waitcnt vmcnt(0)
        s_branch L_pa1""")
            s = self.seg("pa3")
            s("L_pa3:")
            for q in self.gather((0, 1), sOM):
                s.extend(q)
        if self.dyn == 2:
            return self.tail3(t1)
        s = self.seg("ga")
        s("L_ga:")
        rd = self.ready()
        s.extend(rd[:3])
        s(f"""s_andn2_b32 s{sT0}, s{sOTH}, vcc_lo
        s_cbranch_scc1 L_ga0""")
        s = self.seg("ga1")
        self.stamp(s, 6)
        gl = self.gather((2, 3, 4, 5), sOM)
        npre = self.o.get("gpre", 4)
        for q in gl[:npre]:
            s.extend(q)
        for k, q in enumerate(gl[npre:]):
            p = 1 + 4 * k
            t1.gap(p).shadow.extend(q[:-1])
            t1.gap(p).mem.append(q[-1])
        t1.gap(self.o.get("pp1", 43)).mem.append(self.poll())
        p = self.rnd(t1, self.o.get("p1", 90), ne + n2, n3)
        p2 = self.o.get("p2", 180 - 12 - 12 * n4)
        assert p <= p2, (p, p2)
        assert self.rnd(t1, p2, ne + n2 + n3, n4) < 181
        fst = list(zip((80, 100, 109, 120, 150, 160), (72, 74, 12, 14, 16, 18))) if self.stamps and self.o.get("fst") else []
        for p, r in fst:
            t1.gap(p).shadow.insert(0, Ins(f"s_memrealtime s[{r}:{r + 1}]"))
        o80 = t1.insert_lgkm_waits(0, 80, [])
        t1.insert_lgkm_waits(80, 180, o80)
        s("s_waitcnt vmcnt(63) lgkmcnt(0)", auto=["og0"])
        s.extend(t1.emit(0, 80))
        s = self.seg("gb")
        s("L_gb:")
        s.extend(t1.emit(80, 180))
        if fst:
            s("s_waitcnt lgkmcnt(0)")
            for k, (p, r) in enumerate(fst):
                s(f"v_writelane_b32 v0, s{r}, {2 * (20 + k) + 1}")
            s(f"v_writelane_b32 v0, s{sGA}, 60\nv_writelane_b32 v0, s{sTODO}, 62")
        self.endgame()
        s = self.seg("ga0")
        s("L_ga0:")
        t0 = self.proj()
        t0.gap(79).shadow.clear()
        p, lastm = 0, 0
        for i in rd[3:] + [self.poll()] + self.weave(pload(ne, n2)):
            if i.kind == "salu":
                t0.gap(p).shadow.append(i)
                p += 1
            elif i.tag == "poll":
                p = self.o.get("pp0", 30)
                t0.gap(p).mem.append(i)
                lastm = p = p + 1
            else:
                p = max(p, lastm + 4)
                lastm = p
                t0.gap(p - 1).mem.append(i)
        assert p < 80
        t0.insert_lgkm_waits(0, 79, [])
        s("s_waitcnt vmcnt(63) lgkmcnt(0)", auto=["og0"])
        s.extend(t0.emit(0, 80))
        if self.dyn:
            self.stamp(s, 28)
            s(f"s_mov_b32 s{sT3}, 0\ns_mov_b32 s{sMB}, 0xff\ns_waitcnt vmcnt({4 * n2})")
            s = self.seg("wo1")
            s("L_wo1:")
            rd = self.ready()
            s.extend(rd[:3])
            s(f"""s_orn2_b32 s{sT0}, vcc_lo, s{sOTH}
            s_and_b32 s{sNEW}, s{sT0}, s{sMB}
            s_cbranch_scc0 L_wo1b
            s_andn2_b32 s{sMB}, s{sMB}, s{sNEW}""")
            self.trB = self.fetch("fb_", 1, "og2")
            s = self.segs[-1]
            s(f"""s_cmp_eq_u32 s{sMB}, 0
            s_cbranch_scc1 L_ogat""")
            s = self.seg("wo1b")
            s("L_wo1b:")
            s.add(self.poll())
            s(f"""s_add_u32 s{sT3}, s{sT3}, 1
            s_cmp_gt_u32 s{sT3}, 0x100000
            s_cbranch_scc1 L_end""")
            s.add(rd[3])
            s("s_cbranch_scc1 L_wo2")
            s = self.seg("wo1c")
            s("s_waitcnt vmcnt(0)\ns_branch L_wo1")
            s = self.seg("wo2")
            s("L_wo2:\ns_waitcnt vmcnt(1)")
            pl = pload(ne, n2)
            for i in range(n2):
                mf = pacc(ne + i, 1)
                for k in range(8):
                    s.add(mf[k])
                    if k < 7:
                        s.add(pl[11 * i + k])
                s.extend(pl[11 * i + 7:11 * i + 11])
            s(f"s_waitcnt vmcnt({4 * n2})\ns_branch L_wo1")
            s = self.seg("ogat")
            s("L_ogat:")
            self.stamp(s, 6)
            if self.stamps:
                s(f"v_writelane_b32 v0, s{sT3}, 58")
            s(f"s_add_u32 s{sINC}, s{sOM}, 16384")
            for j in range(2):
                for u in range(2):
                    s(f"buffer_load_dwordx4 {xn(u, 16 + j)}, v{vL16U if u else vL16}, {srd(sWS)}, s{sINC} offen offset:{1024 * j} sc1", tag="og5")
            s.add(self.poll())
            s("s_waitcnt vmcnt(7)")
            s.extend(pacc(ne, n2))
            s("s_waitcnt vmcnt(5) lgkmcnt(0)\ns_branch L_gb")
            return
        self.owait(s)
        s = self.seg("ogat")
        s("L_ogat:")
        self.stamp(s, 6)
        gl = self.gather((2, 3, 4, 5), sOM)
        for q in gl[:8]:
            s.extend(q)
        s("s_waitcnt vmcnt(63)", auto=[f"pl{i}" for i in range(ne, ne + n2)])
        mf = pacc(ne, n2)
        for q in gl[8:]:
            s.extend(mf[:2] + q)
            mf = mf[2:]
        s.extend(mf)
        s.add(self.poll())
        s("s_waitcnt vmcnt(63) lgkmcnt(0)", auto=["og2"])
        s("s_branch L_gb")

    def tail3(self, t1):
        ne, n2, n3, n4 = self.ne, self.n2, self.n3, self.o.get("n4", 1)
        pload, pacc = self.pload, self.pacc
        s = self.seg("ga")
        s(f"""L_ga:
        v_cmp_ne_u32 vcc, 0, v{vPOL}
        s_mov_b32 s{sLST}, 0
        s_andn2_b32 s{sMB}, s{sOTH}, vcc_lo""")
        sc = lambda p: [Ins(f"s_add_u32 s{sT0}, s{sOM}, {2048 * p}"), Ins(f"s_bitcmp1_b32 s{sMB}, {p}" if p < 8 else f"s_cmp_lg_u32 s{sMB}, 0"),
                        Ins(f"s_cselect_b32 s{sINC}, {OOB}, s{sT0}")]
        ext = lambda: [Ins(f"buffer_load_dwordx4 {xn(u, 16 + j)}, v{vL16U if u else vL16}, {srd(sWS)}, s{sINC} offen offset:{1024 * j} sc1", tag="og5")
                       for j in range(2) for u in range(2)]
        gl = []
        for p in range(8):
            gl.append((sc(p), self.ofr(p, 1, "og%d" % (2, 2, 3, 3, 4, 4, 4, 5)[p])))
        gl.append((sc(8), ext()))
        npre, gs = self.o.get("gpre", 8) // 2, self.o.get("gs", 4)
        for a_, b_ in gl[:npre]:
            s.extend(a_ + b_)
        p = 0
        for a_, b_ in gl[npre:]:
            while any(t1.gap(p + k).shadow for k in range(3)):
                p += 1
            for k, i in enumerate(a_):
                t1.gap(p + k).shadow.append(i)
            for k, i in enumerate(b_):
                t1.gap(p + 2 + gs * k).mem.append(i)
            p += gs * len(b_)
        assert p < 78
        t1.gap(self.o.get("pp1", 43)).mem.append(self.poll())
        t1.gap(78).shadow.append(Ins(f"s_cmp_lg_u32 s{sMB}, 0"))
        p = self.rnd(t1, self.o.get("p1", 90), ne + n2, n3)
        p2 = self.o.get("p2", 180 - 12 - 12 * n4)
        assert p <= p2, (p, p2)
        assert self.rnd(t1, p2, ne + n2 + n3, n4) < 181
        if self.p7:
            assert n3 + n4 + 1 <= 5
            p = self.p7
            for i in self.p7load():
                while any(m.kind == "vmem" for m in t1.gap(p).mem):
                    p += 1
                assert p < 180
                t1.gap(p).mem.append(i)
                p += 3
        o80 = t1.insert_lgkm_waits(0, 80, [])
        t1.insert_lgkm_waits(80, 180, o80)
        s("s_waitcnt vmcnt(63) lgkmcnt(0)", auto=["og0"])
        s.extend(t1.emit(0, 80))
        s("s_cbranch_scc1 L_wo0")
        s = self.seg("gb")
        s("L_gb:")
        self.stamp(s, 6)
        s.extend(t1.emit(80, 180))
        self.endgame()
        s = self.seg("wo0")
        s(f"L_wo0:\ns_mov_b32 s{sT3}, 0")
        s("s_waitcnt vmcnt(63)", auto=["poll"])
        s = self.seg("wo1")
        s("L_wo1:")
        rd = self.ready()
        s.extend(rd[:3])
        s(f"""s_and_b32 s{sNEW}, vcc_lo, s{sMB}
        s_cbranch_scc0 L_wo1b
        s_andn2_b32 s{sMB}, s{sMB}, s{sNEW}""")
        self.trB = self.fetch("fb_", 1, "og2")
        s = self.segs[-1]
        s(f"""s_cmp_eq_u32 s{sMB}, 0
        s_cbranch_scc1 L_ogat""")
        s = self.seg("wo1b")
        s("L_wo1b:")
        s.add(self.poll())
        s(f"""s_add_u32 s{sT3}, s{sT3}, 1
        s_cmp_gt_u32 s{sT3}, 0x100000
        s_cbranch_scc1 L_end""")
        s.add(rd[3])
        s("s_cbranch_scc1 L_wo2")
        s = self.seg("wo1c")
        s("s_waitcnt vmcnt(0)\ns_branch L_wo1")
        s = self.seg("wo2")
        s(f"L_wo2:\ns_cmp_eq_u32 s{sLST}, 0\ns_cbranch_scc1 L_wo4")
        s = self.seg("wo3")
        s("s_waitcnt vmcnt(1)")
        s.extend(pacc(ne, n2))
        s = self.seg("wo4")
        s(f"L_wo4:\ns_mov_b32 s{sLST}, 1")
        s.extend(self.weave(pload(ne, n2)))
        s(f"s_waitcnt vmcnt({4 * n2})\ns_branch L_wo1")
        s = self.seg("ogat")
        s(f"L_ogat:\ns_add_u32 s{sINC}, s{sOM}, 16384")
        s.extend(ext())
        s.add(self.poll())
        s(f"s_cmp_eq_u32 s{sLST}, 0\ns_cbranch_scc1 L_ogat3")
        s = self.seg("ogat2")
        s("s_waitcnt vmcnt(7)")
        s.extend(pacc(ne, n2))
        s = self.seg("ogat3")
        s("L_ogat3:\ns_waitcnt vmcnt(5) lgkmcnt(0)\ns_branch L_gb")

    def endgame(self):
        n3, n4 = self.n3, self.o.get("n4", 1)
        i3, i4 = self.ne + self.n2, self.ne + self.n2 + n3
        pload, pacc, vX2, vXU = self.pload, self.pacc, 28, 96
        s = self.seg("xud")
        self.stamp(s, 7)
        s(f"s_mov_b32 s{sT2}, {f32(1.0 / ALPHA ** 2)}\ns_mov_b32 s{sT3}, 0")
        self.sk3 = self.pacc_opt("sk3", i3, n3)
        s = self.segs[-1]
        s(f"s_nop 3\ns_bitcmp1_b32 s{sS}, 2\ns_cselect_b64 {MK2}, -1, 0")
        for e in range(4):
            s(f"v_cndmask_b32 v{vXB + e}, v{vXB + e}, v{vX2 + e}, {MK2}")
        s = self.seg("e1")
        s(f"""L_e1:
        s_cmp_eq_u32 s{sTODO}, 0
        s_cbranch_scc1 L_e2""")
        s = self.seg("e1b")
        s("s_waitcnt vmcnt(0)")
        s.extend(pacc(i4, n4))
        s = self.seg("e1c")
        s("L_e1c:")
        rd = self.ready()
        s.extend(rd[:3] + [self.poll()])
        s(f"""s_add_u32 s{sT3}, s{sT3}, 1
        s_cmp_gt_u32 s{sT3}, 0x100000
        s_cbranch_scc1 L_end""")
        s.add(rd[3])
        s("s_cbranch_scc1 L_e1e")
        s = self.seg("e1d")
        s("s_waitcnt vmcnt(0)\ns_branch L_e1c")
        s = self.seg("e1e")
        s("L_e1e:")
        s.extend(self.weave(pload(i4, n4)))
        s("s_branch L_e1")
        vLP = 32
        lastl = lambda: [Ins(f"buffer_load_dwordx2 {vr(vLP + 2 * p, 2)}, v{vL8}, {srd(sWS)}, s{sFLN} offen offset:{512 * p} sc1", tag="pll") for p in range(8)]
        s = self.seg("fmain")
        s("L_e2:")
        self.stamp(s, 17)
        s(f"s_mov_b32 s{sLST}, 1")
        s.extend(lastl())
        self.sk4 = self.pacc_opt("sk4", i4, n4)
        s = self.segs[-1]
        if self.p7:
            b7 = int(self.preg(i4 + n4)(0)[2:].split(":")[0])
            s(f"s_mov_b32 s{sT1}, 1")
            s("s_waitcnt vmcnt(63)", auto=["p7", "poll"])
            s = self.seg("q1")
            s(f"L_q1:\nv_max3_u32 v{vT0}, v{b7}, v{b7 + 1}, v{b7 + 2}")
            for j in range(3, 15, 2):
                s(f"v_max3_u32 v{vT0}, v{vT0}, v{b7 + j}, v{b7 + j + 1}")
            s(f"""v_max_u32 v{vT0}, v{vT0}, v{b7 + 15}
            v_cmp_eq_u32 vcc, -1, v{vT0}
            s_cmp_eq_u32 s{sT1}, 0
            s_cbranch_vccz L_q3
            s_cbranch_scc1 L_q3""")
            s = self.seg("q2")
            s(f"v_cmp_eq_u32 vcc, 0, v{vPOL}")
            s.extend(self.p7load())
            s(f"s_lshr_b32 s{sT1}, vcc_lo, s{sB7}\ns_and_b32 s{sT1}, s{sT1}, 1")
            s.add(self.poll())
            s(f"""s_add_u32 s{sT3}, s{sT3}, 1
            s_cmp_lt_u32 s{sT3}, 0x100000
            s_waitcnt vmcnt(0)
            s_cbranch_scc1 L_q1
            s_endpgm""")
            s = self.seg("q3")
            s("L_q3:")
            s.extend(pacc(i4 + n4, 1))
        s.add(self.poll())
        self.stamp(s, 18)
        for j in range(8):
            c = vG + 4 * j
            for e in range(4):
                s(f"v_fma_f32 v{c + e}, v{c + e}, s{sT2}, v{vXU + 4 * j + e}")
            s(f"v_cvt_pk_bf16_f32 v{c}, v{c}, v{c + 1}\nv_cvt_pk_bf16_f32 v{c + 1}, v{c + 2}, v{c + 3}")
        for j in range(8):
            s(f"ds_write_b64 v{vTMP + j // 2 if j > 1 else vBA}, {vr(vG + 4 * j, 2)} offset:{2048 * (j % 2)}")
        for i in range(4):
            s(f"ds_read_b128 {vr(vXU + 4 * i)}, v{vOL} offset:{1024 * i}")
        for i in range(4):
            s(f"s_waitcnt lgkmcnt({3 - i})")
            s(f"buffer_store_dwordx4 {vr(vXU + 4 * i)}, v{vTMP}, {srd(sOUT)}, s{sC0} offen")
            if i < 3:
                s(f"s_add_u32 s{sC0}, s{sC0}, 9216")
        self.stamp(s, 8)
        s("s_waitcnt vmcnt(5)")
        s = self.seg("e3")
        s("L_e3:")
        s(f"v_max3_u32 v{vT0}, v{vLP}, v{vLP + 1}, v{vLP + 2}")
        for j in range(3, 15, 2):
            s(f"v_max3_u32 v{vT0}, v{vT0}, v{vLP + j}, v{vLP + j + 1}")
        s(f"""v_max_u32 v{vT0}, v{vT0}, v{vLP + 15}
        v_cmp_eq_u32 vcc, -1, v{vT0}
        s_cmp_eq_u32 s{sLST}, 0
        s_cbranch_vccz L_fin
        s_cbranch_scc1 L_fin""")
        s = self.seg("e3b")
        s(f"s_waitcnt vmcnt(4)\nv_cmp_eq_u32 vcc, 0, v{vPOL}")
        s.extend(lastl())
        s(f"s_and_b32 s{sLST}, vcc_lo, 0xff0000")
        s.add(self.poll())
        s(f"""s_add_u32 s{sT3}, s{sT3}, 1
        s_cmp_lt_u32 s{sT3}, 0x100000
        s_waitcnt vmcnt(0)
        s_cbranch_scc1 L_e3
        s_endpgm""")
        s = self.seg("fin")
        s("L_fin:")
        for p in range(4):
            s(f"v_mfma_f32_16x16x32_bf16 {vr(vXB)}, {vr(vSEL + 6)}, {vr(vLP + 4 * p)}, {vr(vXB)}")
        s("s_nop 7")
        for e in range(4):
            s(f"v_fma_f32 v{vXB + e}, v{vXB + e}, s{sT2}, v{vXE + e}")
        s(f"""v_cvt_pk_bf16_f32 v{vXB}, v{vXB}, v{vXB + 1}
        v_cvt_pk_bf16_f32 v{vXB + 1}, v{vXB + 2}, v{vXB + 3}
        buffer_store_dwordx2 {vr(vXB, 2)}, v{vOA}, {srd(sOUT)}, s{sXN} offen""")
        self.stamp(s, 9, True)
        self.stamp_flush(s)
        s("s_endpgm")

    def fallback(self):
        vM = 192
        s = self.seg("fb0")
        s(f"""L_fb:
        s_waitcnt vmcnt(0) lgkmcnt(0)
        v_and_b32 v{vT0}, 31, v{vL}
        v_lshlrev_b32 v{vT0}, 4, v{vT0}
        v_subrev_u32 v{vT1}, {KVS0}, v{vVA}
        v_accvgpr_write_b32 a{aK2 + 1}, 0
        s_mov_b32 s{sIT}, 0
        s_mov_b32 s{sSK}, 1""")
        for q in range(4):
            s(f"v_cndmask_b32 v{vQ2 + 4 * q}, v{vQ2 + 4 * q}, 0, {MSK}\nv_mov_b32 v{vM + q}, 0xff800000")
        for r in range(vO_, vO_ + 64):
            s(f"v_mov_b32 v{r}, 0")

        def loads(k, withv):
            k(f"""s_lshr_b32 s{sT0}, s{sIT}, 3
            s_mul_i32 s{sT0}, s{sT0}, {KVST}
            s_and_b32 s{sT1}, s{sIT}, 7
            s_lshl_b32 s{sT2}, s{sT1}, 10
            s_add_u32 s{sT2}, s{sT2}, s{sT0}
            buffer_load_dwordx4 {ar(aK1)}, v{vL16}, {srd(sWS)}, s{sT2} offen sc1
            s_lshr_b32 s{sT2}, s{sT1}, 2
            s_mul_i32 s{sT2}, s{sT2}, 640
            s_and_b32 s{sT3}, s{sT1}, 3
            s_lshl_b32 s{sT3}, s{sT3}, 2
            s_add_u32 s{sT2}, s{sT2}, s{sT3}
            s_add_u32 s{sT2}, s{sT2}, s{sT0}
            s_add_u32 s{sT2}, s{sT2}, 18432
            buffer_load_dword a{aK2}, v{vT0}, {srd(sWS)}, s{sT2} offen sc1""")
            if withv:
                k(f"""s_mul_i32 s{sT2}, s{sT1}, 1280
                s_add_u32 s{sT2}, s{sT2}, s{sT0}
                buffer_load_dwordx4 {ar(aV_)}, v{vT1}, {srd(sWS)}, s{sT2} offen sc1
                buffer_load_dwordx4 {ar(aV_ + 4)}, v{vT1}, {srd(sWS)}, s{sT2} offen offset:640 sc1""")
            k("s_waitcnt vmcnt(0)")
            for q in range(4):
                k.extend(self.qk(q, q, 0))
            k("s_nop 11")

        k = self.seg("fb1")
        k("L_fb1:")
        loads(k, False)
        for q in range(4):
            for j in range(0, 16, 2):
                k(f"v_max3_f32 v{vM + q}, v{vM + q}, v{vS_ + 16 * q + j}, v{vS_ + 16 * q + j + 1}")
        k(f"""s_add_u32 s{sIT}, s{sIT}, 1
        s_cmp_lt_u32 s{sIT}, 64
        s_cbranch_scc1 L_fb1""")
        k = self.seg("fb2")
        for q in range(4):
            k(f"v_mov_b32 v{vS_ + q}, v{vM + q}")
        k("s_nop 0")
        for q in range(4):
            k(f"v_permlane32_swap_b32 v{vM + q}, v{vS_ + q}")
        for q in range(4):
            k(f"v_max_f32 v{vM + q}, v{vM + q}, v{vS_ + q}")
        k(f"s_mov_b32 s{sIT}, 0")
        k = self.seg("fb3")
        k("L_fb3:")
        loads(k, True)
        for q in range(4):
            for j in range(16):
                k(f"v_sub_f32 v{vS_ + 16 * q + j}, v{vS_ + 16 * q + j}, v{vM + q}")
            for j in range(16):
                k(f"v_exp_f32 v{vS_ + 16 * q + j}, v{vS_ + 16 * q + j}")
        k("s_nop 1")
        for q in range(4):
            k.extend(self.pv(q, q, 0))
        k(f"""s_add_u32 s{sIT}, s{sIT}, 1
        s_cmp_lt_u32 s{sIT}, 64
        s_cbranch_scc1 L_fb3""")
        k = self.seg("fb4")
        k("s_nop 11")
        if self.two:
            k(f"s_cmp_eq_u32 s{sNA}, 0xff\ns_cbranch_scc0 L_opub")
            k = self.seg("fb5")
            self.publish(k, 0, "osa")
        k("s_branch L_opub")


DEFAULTS = dict(fpos=66, cpf=2, ngpre=18, gstep=5, n3=3, p2=156, ne=6, ne3=1, nb=6, pack=2, n2=2, npf0=0, nup=10, npre=6, g0=0, wskip=0, vpf=1, late=1, kpos=30, kvn=15, defer=7, ozm=1, p3=401, p4=405, align=1,
                two=1, ne1=3, gpre=8, fa=20, pa=32, ga=50, p1=100, pp1=55, wd0=1, dyn=2)


def build(path, C=2, stamps=False, xpf=False, wpf=True, forcefb=False, verbose=True, **kw):
    kw = dict(DEFAULTS, **kw)
    g = Gen1(C=C, stamps=stamps, xpf=xpf, wpf=wpf, **kw)
    g.forcefb = kw.get('ffb', forcefb)
    g.two = kw.get('two', 0)
    g.dyn = kw.get('dyn', 0)
    g.p7 = kw.get('p7', 0)
    g.swp = kw.get('swp', 0)
    g.kvpoll, g.kvchk = kw.get("kvpoll", 300), kw.get("kvchk", 356)
    g.ne, g.n2, g.n3, g.etau = kw.get("ne", 4), kw.get("n2", 2), kw.get("n3", 2), kw.get("etau", 50)
    g.prologue()
    g.p0()
    g.p1()
    al = kw.get("align", 0)
    if al:
        names = ["ln", "ln2", "p1a", "opub", "chk", "sk4", "attpre", "e3", "fin", "q1", "q3"]
        if al >= 2:
            names += ["p0pre", "aloop", "aloop2", "b0", "p1gemm"]
        if al >= 3:
            names += ["attpre", "att0", "att1", "attl", "opub", "chk", "sk4", "opub3", "ogatf"]
        stubs = [] if kw.get("warm") else None
        align_pass(g.segs, names, ("ln", "ln2", "p1a", "sk4", "chk", "e3", "q1", "q3"), stubs,
                   ("L_p1", "L_kvdone", "L_kvu1", "L_kv11", "L_bstart", "L_blast", "L_wo0", "L_ogat", "L_aexit"), ("fb0", "fb1", "fb2", "fb3", "fb4", "fb5", "kvspin"))
        if stubs is not None:
            order = [x.name for x in g.segs]
            p1from = order.index("p1a")
            kind = lambda n: 2 if n in ("ln", "ln2", "kvdma") else (1 if order.index(n) >= p1from else 0)
            common = [k for k, (n, _) in enumerate(stubs) if kind(n) == 2]
            assert len(common) <= 4
            for k in common:
                stubs[k][1].text = "s_cbranch_execz L_wb"
            for role in range(2):
                mine = [k for k, (n, _) in enumerate(stubs) if kind(n) == role]
                for w in range(4):
                    ch = mine[w::4]
                    end = f"L_w{common[3 - w]}" if 3 - w < len(common) else "L_wb"
                    for a_, b_ in zip(ch, [f"L_w{x}" for x in ch[1:]] + [end]):
                        stubs[a_][1].text = f"s_cbranch_execz {b_}"
                    j = g.warm_jumps[4 * role + w]
                    j.text = j.text.replace("L_x", f"L_w{ch[0]}" if ch else end)
            if verbose:
                print("stubs:", [n for n, _ in stubs])
    probs = []
    traces = [("P0", g.trace(["entry", "entry1"] + (["pfe"] if kw.get("early") == 2 else []) + ["entry2", "p0x", "ln", "ln2", "p0pre"] + (["aloop", "aloop2"] * 7)[(1 if kw.get("late") else 0):] + ["aexit", "aswitch", "aswitch2", "aloop", "aloop2", "aexit", "b0"] + ["bloop", "bloop2"] * 3 + ["bloop", "bend"]))]
    for u in range(2):
        for o in range(2):
            fb = ["fb0", "fb1", "fb1", "fb2", "fb3", "fb3", "fb4", "opub"] if o else []
            for end in (["sk3", "e1", "fmain", "sk4", "e3", "fin"], g.sk3 + ["sk3", "e1", "fmain"] + g.sk4 + ["sk4", "e3", "fin"],
                        g.sk3[:1] + ["sk3", "e1", "e1b", "e1c", "e1d", "e1c", "e1e", "e1", "e1b", "e1c", "e1e", "e1", "fmain"] + g.sk4 + ["sk4", "e3", "e3b", "e3", "fin"]):
                if g.p7:
                    k = end.index("sk4") + 1
                    end = end[:k] + (["q1", "q2", "q1", "q3"] if "e3b" in end else ["q1", "q3"]) + end[k:]
                t1 = ["entry", ("tl0", "tl2", "tl3", "tl0")[2 * u + o], "entry1"] + (["pfe"] if kw.get("early") == 3 else []) + ["entry2", "p1pre", "ln", "kvdma", "ln2", "p1a", f"kv{u}{o}", "p1gemm", "attpre"] + ["att0", "att1"] * 3 + ["att0", "attl"] + \
                     ["opub", "chk"] + fb + ["opub2"] + (["ogatf"] if u else ["opub3", "wo0", "wo1"] + (["wo1a", "wo1b", "wo1c", "wo1", "wo1b", "wo2", "wo0", "wo1", "wo1b", "wo2", "wo0", "wo1"] if o else []) + ["ogat"]) + ["ogatc", "xud"] + end
                if not g.two:
                    traces.append(("P1", g.trace(t1)))
                    continue
                head = t1[:t1.index("attpre") + 1] + ["att0", "att1"] * 3 + ["attl", "opub", "chk"] + (fb[:-1] + ["fb5"] * u + ["opub"] if o else []) + ["opub2"]
                pas = ([], ["pa0", "pa1", "pa3"], ["pa0", "pa1", "pa2", "pa1", "pa3"])
                ggs = (["ga1"], ["ga0", "wo0", "wo1", "ogat"], ["ga0", "wo0", "wo1", "wo1b", "wo1c", "wo1", "wo1b", "wo2", "wo0", "wo1", "wo1b", "wo2", "wo0", "wo1", "ogat"])
                if g.dyn:
                    one = lambda tr: tr(1)[:1] + tr(0)
                    pas = ([], ["pa1"] + g.trA(1), ["pa1"] + g.trA(1) + ["pa2", "pa1", "fae", "pa2", "pa1"] + one(g.trA))
                    ggs = (["ga1"], ["ga0", "wo1"] + g.trB(1) + ["ogat"],
                           ["ga0", "wo1"] + g.trB(1) + ["wo1b", "wo1c", "wo1", "wo1b", "wo2", "wo1"] + one(g.trB) + ["wo1b", "wo2", "wo1"] + one(g.trB) + ["ogat"])
                if g.dyn == 2:
                    ggs = ([], ["wo0", "wo1"] + g.trB(1) + ["ogat", "ogat3"],
                           ["wo0", "wo1"] + g.trB(1) + ["wo1b", "wo1c", "wo1", "wo1b", "wo2", "wo4", "wo1"] + one(g.trB) + ["wo1b", "wo2", "wo3", "wo4", "wo1"] + one(g.trB) + ["ogat", "ogat2", "ogat3"])
                for pa in pas:
                    for gg in ggs:
                        if (u, o) in ((0, 0), (1, 1)) or (not pa and gg is ggs[0]):
                            traces.append(("P1", g.trace(head + pa + ["ga"] + gg + ["gb", "xud"] + end)))
    auto_vm([t for _, t in traces])
    for n, t in traces:
        probs += check_trace(t, n)
    seen = set()
    for p in probs:
        key = p.split("'", 1)[1]
        if key not in seen:
            seen.add(key)
            print(p)
    if verbose:
        for s in g.segs:
            n = sum(1 for i in s.ins if i.kind != "label")
            nm = sum(1 for i in s.ins if i.kind == "mfma")
            if n > 40:
                print(f"{s.name:10s} ins {n:5d} mfma {nm:4d} est {est_cycles(s.ins)}")
    open(path, "w").write(g.text())
    return len(seen)


if __name__ == "__main__":
    import argparse
    ap = argparse.ArgumentParser()
    ap.add_argument("-o", default="cdna_kernels/" + NAME + ".s")
    ap.add_argument("-C", type=int, default=2)
    ap.add_argument("--stamps", action="store_true")
    ap.add_argument("--xpf", action="store_true")
    ap.add_argument("--nowpf", action="store_true")
    ap.add_argument("--fb", action="store_true")
    ap.add_argument("kw", nargs="*")
    a = ap.parse_args()
    kw = {}
    for x in a.kw:
        k, v = x.split("=")
        kw[k] = int(v) if v.lstrip("-").isdigit() else " " + v
    n = build(a.o, a.C, a.stamps, a.xpf, not a.nowpf, a.fb, **kw)
    print("problems:", n)
```

```python
import sys
from ubl import *
ON_GPU = os.path.exists('/dev/kfd')
def kernel(offs):
    s = """
    s_load_dwordx4 s[4:7], s[0:1], 0
    v_lshrrev_b32 v1, 6, v0
    s_nop 1
    v_readfirstlane_b32 s20, v1
    s_waitcnt lgkmcnt(0)
    s_mov_b32 s8, s4
    s_and_b32 s9, s5, 0xffff
    s_mov_b32 s10, 0x100000
    s_mov_b32 s11, 0x20000
    s_getpc_b64 s[40:41]
    v_lshlrev_b32 v2, 6, v0
    global_load_dword v3, v2, s[40:41]
"""
    for r in range(4, 64): s += f"    v_mov_b32 v{r}, 0\n"
    s += "    v_add_u32 v2, 16384, v2\n    global_load_dword v3, v2, s[40:41]\n    s_waitcnt vmcnt(0)\n    s_sleep 60\n"
    st = [b for b in range(30) if b % 8 in offs]
    s += "    s_memtime s[92:93]\n"
    if st: s += f"    s_mov_b64 exec, 0\n    s_branch LS{st[0]}\nLBACK:\n    s_mov_b64 exec, -1\n"
    s += "    s_memtime s[94:95]\n    s_sleep 20\n    s_barrier\n    s_branch LGO\n.p2align 12\nLGO:\n"
    for b in range(30):
        n = 0
        if b in st:
            nx = st[st.index(b) + 1] if b != st[-1] else None
            s += f"LS{b}:\n    s_cbranch_execz {'LS%d' % nx if nx is not None else 'LBACK'}\n    s_nop 0\n    v_fma_f32 v50, v51, v52, v53\n    v_fma_f32 v50, v51, v52, v53\n"
            n = 24
        s += f"    s_memtime s[{30+2*b}:{31+2*b}]\n"
        while n < 504:
            c = 16 + 4*((n//24) % 8)
            s += f"    v_mfma_f32_16x16x32_bf16 v[{c}:{c+3}], v[4:7], v[8:11], v[{c}:{c+3}]\n    v_fma_f32 v50, v51, v52, v53\n    v_fma_f32 v54, v55, v56, v57\n"
            n += 24
    s += "    s_waitcnt lgkmcnt(0)\n"
    for b in range(30): s += f"    v_writelane_b32 v12, s{30+2*b}, {b}\n"
    s += "    s_sub_u32 s94, s94, s92\n    v_writelane_b32 v12, s94, 40\n"
    s += """
    s_lshl_b32 s3, s2, 2
    s_add_u32 s3, s3, s20
    s_lshl_b32 s3, s3, 8
    v_and_b32 v3, 63, v0
    v_lshlrev_b32 v3, 2, v3
    buffer_store_dword v12, v3, s[8:11], s3 offen
    s_waitcnt vmcnt(0)
"""
    return s
for offs in ((), (0,), (0, 1)):
    co = build(wrap(kernel(offs), grid=256, block=256, lds=131072), tag="ic3%d" % len(offs))
    if ON_GPU:
        out = DeviceBuffer(1<<20)
        for rep in range(2):
            k = AsmKernel(co, "k_kernel", check=(rep == 0)); ka = pack_ptr_kernargs([out.ptr]*4)
            k.launch((256,1,1),(256,1,1), ka, 131072); sync()
            r = out.to_numpy(np.uint32, (1024, 64)).astype(np.int64)
            for w in (0, 500): print(offs, rep, w, "touch", r[w, 40], list(np.diff(r[w, :30])))
```

```python
import sys
from ubl import *
ON_GPU = os.path.exists('/dev/kfd')

def kernel(gen, iters):
    s = """
    s_load_dwordx4 s[4:7], s[0:1], 0
    v_lshrrev_b32 v1, 6, v0
    s_nop 1
    v_readfirstlane_b32 s20, v1
    s_waitcnt lgkmcnt(0)
    s_mov_b32 s8, s4
    s_and_b32 s9, s5, 0xffff
    s_mov_b32 s10, 0x100000
    s_mov_b32 s11, 0x20000
    s_mov_b32 s12, s6
    s_and_b32 s13, s7, 0xffff
    s_mov_b32 s14, 0x1000000
    s_mov_b32 s15, 0x20000
    v_lshlrev_b32 v3, 4, v0
    s_lshl_b32 s41, s2, 16
"""
    for i in range(16):
        s += f"    buffer_load_dwordx4 v[{128+4*i}:{131+4*i}], v3, s[12:15], s41 offen\n    s_add_u32 s41, s41, 4096\n"
    s += "    s_waitcnt vmcnt(0)\n"
    for r in range(0, 128):
        s += f"    v_accvgpr_write_b32 a{r}, 0\n"
    for r in range(0, 64):
        s += f"    v_accvgpr_write_b32 a{128+r}, v{128+r}\n"
    for r in range(4, 128):
        s += f"    v_mov_b32 v{r}, 0\n"
    s += "    v_mov_b32 v200, 0xdddddddd\n    v_mov_b32 v201, 0x88888888\n"
    s += f"""
    s_mov_b32 s21, {iters}
    s_waitcnt lgkmcnt(0)
    s_barrier
    s_memtime s[24:25]
    s_memrealtime s[34:35]
    s_waitcnt lgkmcnt(0)
.p2align 6
LA:
"""
    s += gen()
    s += """
    s_sub_u32 s21, s21, 1
    s_cmp_lg_u32 s21, 0
    s_cbranch_scc1 LA
    s_memtime s[26:27]
    s_memrealtime s[36:37]
    s_waitcnt lgkmcnt(0) vmcnt(0)
    s_sub_u32 s26, s26, s24
    s_sub_u32 s36, s36, s34
    v_mov_b32 v8, s26
    v_mov_b32 v9, s36
    s_lshl_b32 s3, s2, 3
    s_add_u32 s3, s3, s20
    s_lshl_b32 s3, s3, 3
    v_mov_b32 v3, s3
    buffer_store_dwordx2 v[8:9], v3, s[8:11], 0 offen
    s_waitcnt vmcnt(0)
"""
    return s

def mk(shape, fa, fb, fc, cf="a", af="v", bf="v", op=None):
    def gen():
        s = ""
        n = 64 if shape == 32 else 128
        w = 16 if shape == 32 else 4
        o = op or ("v_mfma_f32_32x32x16_bf16" if shape == 32 else "v_mfma_f32_16x16x32_bf16")
        for i in range(n):
            a = 128 + 4*(fa(i) % 8); b = 160 + 4*(fb(i) % 8); c = w*fc(i) + (16 if cf == "v" else 0)
            s += f"    {o} {cf}[{c}:{c+w-1}], {af}[{a}:{a+3}], {bf}[{b}:{b+3}], {cf}[{c}:{c+w-1}]\n"
        return s
    return gen
def smf(shape):
    def gen():
        s = ""
        n = 64 if shape == 32 else 128
        w = 16 if shape == 32 else 4
        o = "v_smfmac_f32_32x32x32_bf16" if shape == 32 else "v_smfmac_f32_16x16x64_bf16"
        for i in range(n):
            a = 128 + 4*((i//2) % 8); b = 160 + 8*((i//4) % 4); c = w*(i % 4)
            s += f"    {o} a[{c}:{c+w-1}], v[{a}:{a+3}], v[{b}:{b+7}], v{200+i%2}\n"
        return s
    return gen

def ch(extra):
    def gen():
        s = ""
        for i in range(144):
            a = 128 + 4*(i % 8); b = 160 + 4*((i*3+i//8) % 8); c = 16 + 4*((i//9) % 8)
            s += f"    v_mfma_f32_16x16x32_bf16 v[{c}:{c+3}], v[{a}:{a+3}], v[{b}:{b+3}], v[{c}:{c+3}]\n"
            n = extra.get(i % 9, 0)
            if n: s += f"    s_nop {n + 2}\n"
        return s
    return gen
tests = {
 "none": ch({}),
 "in 2x+4": ch({2: 1, 5: 1}),
 "bd 1x+8": ch({8: 2}),
 "in 4x+4": ch({1: 1, 3: 1, 5: 1, 7: 1}),
 "bd 1x+16": ch({8: 4}),
 "in 1x+16": ch({4: 4}),
 "in 8x+4": ch({k: 1 for k in range(8)}),
 "bd 1x+32": ch({8: 8}),
}
if ON_GPU:
    out = DeviceBuffer(1<<20)
    f = np.random.randn(1<<23).astype(np.float32)
    W = DeviceBuffer.from_numpy((f.view(np.uint32) >> 16).astype(np.uint16))
    big = DeviceBuffer(512<<20)
i = 0
for name, g in tests.items():
    iters = 14
    i += 1
    asm = wrap(kernel(g, iters), grid=256, block=256, lds=131072, vgpr=512, acc=256)
    co = build(asm, tag=f"c{i}")
    if ON_GPU:
        res = []
        k = AsmKernel(co, "k_kernel"); ka = pack_ptr_kernargs([out.ptr, W.ptr, out.ptr, out.ptr])
        for rep in range(6):
            memset(big, rep, 512<<20)
            k.launch((256,1,1),(256,1,1), ka, 131072); sync()
            r = out.to_numpy(np.uint32, (256, 8, 2))[:, :4].astype(float)
            res.append((np.median(r[:,:,0]), np.mean(r[:,:,1])/100, r[:,:,1].max()/100))
        print(f"{name:20s}", " | ".join(f"{c:.0f}cyc {t:.2f}us {c/t:.0f}MHz" for c,t,m in res[1:]))
print("done")
```
